```python
import torch

def _softmax(x, axis=-1):
    return torch.softmax(x, dim=axis)
def _gelu(x):
    return torch.nn.functional.gelu(x, approximate="tanh")
def _silu(x):
    return torch.nn.functional.silu(x)
def _sigmoid(x):
    return torch.sigmoid(x)
def _layernorm(x, axis=-1, eps=1e-5):
    m = x.mean(dim=axis, keepdim=True)
    v = x.var(dim=axis, keepdim=True, unbiased=False)
    return (x - m) / torch.sqrt(v + eps)
def _scatter_add(tgt, idx, src, axis=0):
    return tgt.clone().index_add_(axis, idx, src)
def _segment_sum(src, seg, n):
    out = torch.zeros((n,) + src.shape[1:], dtype=src.dtype)
    return out.index_add_(0, seg, src)
def _pad(x, pw):
    flat = tuple(v for pair in reversed(pw) for v in pair)
    return torch.nn.functional.pad(x, flat)

kernel_name = 'interleave_layers__sliding_block__ssm_conv_h3__prompt'

def setup_inputs():

    _w = (lambda a: (lambda t: t.to(torch.bfloat16) if t.is_floating_point() else t)(torch.as_tensor(a)))
    def _A_setup():
        B, S, D = 1, 2048, 640
        return {
            "x": _w((lambda *s: torch.randn(*s, dtype=torch.bfloat16) * 0.05)(B, S, D)),
            "wqkv": _w((lambda *s: torch.randn(*s, dtype=torch.bfloat16) * 0.05)(D, 3 * D)),
            "wo": _w((lambda *s: torch.randn(*s, dtype=torch.bfloat16) * 0.05)(D, D)),
        }
    _A_in = _A_setup()

    def _B_setup():
        B, S, D = 1, 2048, 640
        ks = 4
        return {
            "q": _w((lambda *s: torch.randn(*s, dtype=torch.bfloat16) * 0.05)(B, S, D)),
            "k": _w((lambda *s: torch.randn(*s, dtype=torch.bfloat16) * 0.4)(B, S, D)),
            "v": _w((lambda *s: torch.randn(*s, dtype=torch.bfloat16) * 0.4)(B, S, D)),
            "shift_k": _w((lambda *s: torch.randn(*s, dtype=torch.bfloat16) * 0.4)(D, ks) * 0.5),
            "ssm_k": _w((lambda *s: torch.randn(*s, dtype=torch.bfloat16) * 0.8)(D, S) * (1.0 / S ** 0.5)),
            "ssm_D": _w((lambda *s: torch.randn(*s, dtype=torch.bfloat16) * 0.4)(D)),
        }
    _B_in = _B_setup()

    return {
        "A_x": _A_in["x"],
        "A_wqkv": _A_in["wqkv"],
        "A_wo": _A_in["wo"],
        "B_q": _B_in["q"],
        "B_k": _B_in["k"],
        "B_v": _B_in["v"],
        "B_shift_k": _B_in["shift_k"],
        "B_ssm_k": _B_in["ssm_k"],
        "B_ssm_D": _B_in["ssm_D"],
    }

def reference(A_x, A_wqkv, A_wo, B_q, B_k, B_v, B_shift_k, B_ssm_k, B_ssm_D):
    def _A_ref(x, wqkv, wo):
        B, S, D = x.shape
        H = 32; Dh = D // H; W = 256
        qkv = (lambda x, *d: x.permute(*d))((x @ wqkv).reshape(B, S, 3, H, Dh), 2, 0, 3, 1, 4)
        q, k, v = qkv[0], qkv[1], qkv[2]
        scores = torch.einsum("bhqd,bhkd->bhqk", q, k) * (Dh ** -0.5)
        idx = torch.arange(S)
        mask = (idx[:, None] - idx[None, :] >= 0) & (idx[:, None] - idx[None, :] < W)
        scores = torch.where(mask[None, None], scores, -1e9)
        p = _softmax(scores, axis=-1)
        o = torch.einsum("bhqk,bhkd->bhqd", p, v)
        return (lambda x, *d: x.permute(*d))(o, 0, 2, 1, 3).reshape(B, S, D) @ wo

    def _B_ref(q, k, v, shift_k, ssm_k, ssm_D):
        B, S, D = q.shape
        ks = shift_k.shape[-1]
        k_pad = _pad(k, ((0, 0), (ks - 1, 0), (0, 0)))
        k_shift = torch.zeros_like(k)
        for t in range(ks):
            k_shift = k_shift + k_pad[:, t:t + S, :] * shift_k[:, ks - 1 - t][None, None, :]
        kv = k_shift * v
        L = 2 * S
        kv_pad = _pad(kv, ((0, 0), (0, S), (0, 0)))
        kf_pad = _pad(ssm_k, ((0, 0), (0, S)))
        kv_f = (lambda x, axes=(-2,-1): torch.fft.rfft2(x.float(), dim=axes))(kv_pad[:, None, :, :], axes=(1, 2))
        kf_f = (lambda x, axes=(-2,-1): torch.fft.rfft2(x.float(), dim=axes))(kf_pad[:, None, :], axes=(1, 2))
        kf_f = (lambda x, *d: x.permute(*d))(kf_f, 1, 2, 0)
        y_f = kv_f * kf_f[None, :, :, :]
        y = (lambda x, s, axes=(-2,-1): torch.fft.irfft2(x, s=s, dim=axes).to(torch.bfloat16))(y_f, (1, L), axes=(1, 2))[:, 0, :S, :]
        y = y + kv * ssm_D[None, None, :]
        return q * y

    x = A_x
    x = x + _A_ref(_layernorm(x, axis=-1), A_wqkv, A_wo)
    x = x + _B_ref(_layernorm(x, axis=-1), B_k, B_v, B_shift_k, B_ssm_k, B_ssm_D)
    x = x + _A_ref(_layernorm(x, axis=-1), A_wqkv, A_wo)
    x = x + _B_ref(_layernorm(x, axis=-1), B_k, B_v, B_shift_k, B_ssm_k, B_ssm_D)
    return x
```

```python
import re

def v(i, n=1): return f"v{i}" if n == 1 else f"v[{i}:{i+n-1}]"
def a(i, n=1): return f"a{i}" if n == 1 else f"a[{i}:{i+n-1}]"
def s(i, n=1): return f"s{i}" if n == 1 else f"s[{i}:{i+n-1}]"

_REG = re.compile(r"^(-|abs\()?([vas])(?:(\d+)|\[(\d+):(\d+)\])\)?$")

def regs_of(tok):
    tok = tok.strip()
    if tok in ("vcc",): return {("s", "vcc")}
    if tok in ("exec",): return {("s", "exec")}
    if tok == "m0": return {("s", "m0")}
    if tok in ("vcc_lo", "vcc_hi"): return {("s", "vcc")}
    m = _REG.match(tok)
    if not m: return set()
    k = m.group(2)
    if m.group(3) is not None: return {(k, int(m.group(3)))}
    return {(k, i) for i in range(int(m.group(4)), int(m.group(5)) + 1)}

TRANS = ("v_exp_f32", "v_log_f32", "v_rcp_f32", "v_rsq_f32", "v_sqrt_f32", "v_sin_f32", "v_cos_f32", "v_exp_f16", "v_rcp_iflag_f32")

def mfma_passes(op):
    if "32x32x16" in op or "32x32x8" in op: return 8
    if "16x16x32" in op or "16x16x16" in op: return 4
    raise ValueError(op)

class Ins:
    __slots__ = ("op", "ops", "mods", "text", "rd", "wr", "kind", "label", "target", "cmt")
    def __init__(self, op, ops, mods="", cmt=""):
        self.op, self.ops, self.mods, self.cmt = op, list(ops), mods, cmt
        self.label = None; self.target = None
        self.classify()
    def classify(self):
        op, o = self.op, self.ops
        R = lambda idx: set().union(*[regs_of(o[i]) for i in idx if i < len(o)]) if idx else set()
        n = len(o); allx = list(range(n))
        self.kind = "other"; self.rd = set(); self.wr = set()
        if op.startswith("v_mfma"):
            self.kind = "mfma"; self.wr = R([0]); self.rd = R([1, 2, 3])
        elif op.startswith("v_cmpx"):
            self.kind = "valu"; self.wr = R([0]) | {("s", "exec")}; self.rd = R(allx[1:])
        elif op.startswith("v_cmp"):
            self.kind = "valu"; self.wr = R([0]); self.rd = R(allx[1:])
        elif op.startswith("v_readfirstlane") or op.startswith("v_readlane"):
            self.kind = "valu"; self.wr = R([0]); self.rd = R(allx[1:])
        elif op.startswith("v_permlane") and "swap" in op:
            self.kind = "valu"; self.wr = R([0, 1]); self.rd = R([0, 1])
        elif op.startswith(("v_add_co", "v_sub_co", "v_addc_co", "v_subb_co", "v_subrev_co")):
            self.kind = "valu"; self.wr = R([0, 1]); self.rd = R(allx[2:])
        elif op.startswith("v_"):
            self.kind = "valu"; self.wr = R([0]); self.rd = R(allx[1:])
            if op.startswith(("v_fmac", "v_pk_fmac", "v_dot2c", "v_writelane")) or "dpp" in op or "row_" in self.mods or "quad_perm" in self.mods:
                self.rd |= R([0])
            if op.startswith("v_cndmask") and n == 3: self.rd |= {("s", "vcc")}
        elif op == "buffer_wbl2":
            self.kind = "vmem"
        elif op.startswith(("global_load", "buffer_load", "ds_read", "ds_bpermute", "ds_swizzle")):
            self.kind = "ds" if op.startswith("ds_") else "vmem"
            if " lds" in (" " + self.mods): self.rd = R(allx) | {("s", "m0")}
            else: self.wr = R([0]); self.rd = R(allx[1:])
        elif op.startswith(("global_store", "buffer_store", "global_atomic", "buffer_atomic")):
            self.kind = "vmem"; self.rd = R(allx)
        elif op.startswith(("ds_write", "ds_add")):
            self.kind = "ds"; self.rd = R(allx)
        elif op.startswith("s_load") or op.startswith("s_memtime") or op.startswith("s_memrealtime"):
            self.kind = "smem"; self.wr = R([0]); self.rd = R(allx[1:])
        elif op.startswith("s_cmp"):
            self.kind = "salu"; self.rd = R(allx); self.wr = {("s", "scc")}
        elif op.startswith(("s_cbranch", "s_branch")):
            self.kind = "branch"; self.target = o[0]
        elif op in ("s_waitcnt", "s_barrier", "s_nop", "s_endpgm", "s_sleep", "s_setprio"):
            self.kind = op
        elif op.startswith("s_setpc") or op.startswith("s_swappc"):
            self.kind = "jump"; self.rd = R(allx)
        elif op.startswith("s_"):
            self.kind = "salu"; self.wr = R([0]); self.rd = R(allx[1:])
            if "saveexec" in op: self.wr |= {("s", "exec")}
    def states(self):
        if self.op == "s_nop": return int(self.ops[0]) + 1
        return 1
    def render(self):
        t = "  " + self.op
        if self.ops: t += " " + ", ".join(str(x) for x in self.ops)
        if self.mods: t += " " + self.mods
        if self.cmt: t += "    ; " + self.cmt
        return t

def is_wide_store(i):
    return i.kind == "vmem" and re.search(r"store_dwordx[34]", i.op)

def need(prod, cons):
    w = 0
    pv = lambda S: {r for r in S if r[0] in "va"}
    ps = lambda S: {r for r in S if r[0] == "s"}
    if prod.kind == "valu":
        vw = pv(prod.wr); sw = ps(prod.wr)
        if cons.kind == "mfma" and vw & cons.rd: w = max(w, 2)
        if cons.kind == "mfma" and ("s", "exec") in sw: w = max(w, 4)
        if cons.op.startswith("v_permlane") and vw & cons.rd: w = max(w, 2)
        if cons.op.startswith("v_permlane") and ("s", "exec") in sw: w = max(w, 4)
        if cons.kind == "valu" and ("dpp" in cons.op or "row_" in cons.mods or "quad_perm" in cons.mods) and vw & cons.rd: w = max(w, 2)
        if cons.op.startswith(("v_readfirstlane", "v_readlane")) and vw & cons.rd: w = max(w, 1)
        if cons.op.startswith(("v_readfirstlane", "v_readlane", "v_writelane")) and ("s", "exec") in sw: w = max(w, 4)
        if cons.kind == "vmem" and sw & cons.rd: w = max(w, 5)
        if cons.kind == "valu" and (sw - {("s", "exec")}) & cons.rd: w = max(w, 2)
        if cons.op.startswith(("v_readlane", "v_writelane")) and sw & cons.rd: w = max(w, 4)
        if prod.op in TRANS and cons.kind in ("valu", "mfma") and vw & cons.rd and cons.op not in TRANS: w = max(w, 1)
        if prod.op in TRANS and cons.kind in ("vmem", "ds") and vw & cons.rd: w = max(w, 1)
        if ("sdwa" in prod.op or "op_sel" in prod.mods) and cons.kind == "valu" and vw & (cons.rd | cons.wr): w = max(w, 1)
        if cons.kind == "salu" and (sw - {("s", "exec")}) & cons.rd: w = max(w, 1)
        if cons.kind == "branch" and cons.op in ("s_cbranch_vccz", "s_cbranch_vccnz") and ("s", "vcc") in sw: w = max(w, 1)
        if cons.kind == "branch" and cons.op in ("s_cbranch_execz", "s_cbranch_execnz") and ("s", "exec") in sw: w = max(w, 5)
    if prod.kind == "mfma":
        p = mfma_passes(prod.op); D = prod.wr
        far = {2: 5, 4: 8, 8: 12, 16: 20}[p]
        if cons.kind == "mfma":
            A = set().union(*[regs_of(x) for x in cons.ops[1:3]]); C = regs_of(cons.ops[3])
            if D & A: w = max(w, far)
            if D & C:
                same = (regs_of(cons.ops[3]) == D) and mfma_passes(cons.op) == p
                if not same: w = max(w, {2: 4, 4: 6, 8: 10, 16: 18}[p])
            if D & cons.wr and not (D & C):
                w = max(w, far)
        elif cons.kind in ("valu", "vmem", "ds"):
            if D & (cons.rd | cons.wr): w = max(w, far)
        Cp = regs_of(prod.ops[3])
        if cons.kind == "valu" and Cp & cons.wr: w = max(w, {2: 1, 4: 3, 8: 7, 16: 15}[p])
        if cons.kind in ("ds", "vmem") and Cp & cons.wr: w = max(w, {2: 1, 4: 3, 8: 7, 16: 15}[p])
    if is_wide_store(prod) or prod.op.startswith("ds_write_b128") or prod.op.startswith("ds_write_b96"):
        data = set().union(*[regs_of(x) for x in prod.ops])
        if cons.kind == "valu" and pv(data) & cons.wr and is_wide_store(prod): w = max(w, 2)
    if prod.kind == "salu" and ("s", "m0") in prod.wr and (("s", "m0") in cons.rd): w = max(w, 1)
    return w

class Asm:
    def __init__(self):
        self.items = []
        self.uid = 0
    def I(self, op, *ops, mods="", cmt=""):
        ins = Ins(op, [str(x) for x in ops], mods, cmt)
        self.items.append(ins); return ins
    def label(self, name): self.items.append(("label", name))
    def raw(self, t): self.items.append(("raw", t))
    def c(self, t): self.items.append(("raw", "  ; " + t))
    def newlabel(self, base):
        self.uid += 1; return f"L_{base}_{self.uid}"
    def __getattr__(self, op):
        if op.startswith(("v_", "s_", "ds_", "global_", "buffer_")):
            return lambda *ops, **kw: self.I(op, *ops, **kw)
        raise AttributeError(op)

    def fix_all(self, verbose=False, maxlook=21):
        total = []
        for _pass in range(200):
            items = self.items
            idx_of_label = {it[1]: k for k, it in enumerate(items) if isinstance(it, tuple) and it[0] == "label"}
            jumps_to = {}
            for k, it in enumerate(items):
                if isinstance(it, Ins) and it.kind == "branch" and it.target in idx_of_label:
                    jumps_to.setdefault(idx_of_label[it.target], []).append(k)
            pred_cache = {}
            def preds(k):
                if k in pred_cache: return pred_cache[k]
                out = []; j = k - 1
                while j >= 0:
                    it = items[j]
                    if isinstance(it, Ins):
                        if not (it.op in ("s_branch", "s_endpgm") or it.kind == "jump"): out.append(j)
                        break
                    if it[0] == "label": out += jumps_to.get(j, [])
                    j -= 1
                pred_cache[k] = out
                return out
            fixes = []; last = -10**9
            for k, it in enumerate(items):
                if not isinstance(it, Ins) or it.op == "s_nop": continue
                if k - last < maxlook + 4: continue
                if not (it.rd or it.wr or it.kind == "branch"): continue
                worst = 0; who = None
                stack = [(p, 0) for p in preds(k)]; seen = {}
                while stack:
                    p, d = stack.pop()
                    if d >= maxlook or seen.get(p, 99) <= d: continue
                    seen[p] = d
                    pk = items[p].kind
                    if pk in ("valu", "mfma", "vmem", "salu"):
                        w = need(items[p], it)
                        if w - d > worst: worst = w - d; who = items[p]
                    nd = d + items[p].states()
                    for q in preds(p): stack.append((q, nd))
                if worst > 0:
                    fixes.append((k, worst, who)); last = k
            if not fixes: break
            new = []; fi = 0
            for k, it in enumerate(items):
                if fi < len(fixes) and fixes[fi][0] == k:
                    wn = fixes[fi][1]
                    total.append((it.render().strip(), fixes[fi][2].render().strip(), wn))
                    while wn > 0:
                        m = min(wn, 16); new.append(Ins("s_nop", [str(m - 1)], cmt="hazard")); wn -= m
                    fi += 1
                new.append(it)
            self.items = new
        if verbose:
            for c, p, n in total: print(f"   nop x{n}: [{p}] -> [{c}]")
        return total

    def render(self):
        out = []
        for it in self.items:
            if isinstance(it, Ins): out.append(it.render())
            elif it[0] == "label": out.append(it[1] + ":")
            else: out.append(it[1])
        return "\n".join(out) + "\n"
```

```python
import sys, math, struct
from asm import *

NAME = "interleave_layers__sliding_block__ssm_conv_h3__prompt_kernel"

OFF_N    = 0x0
OFF_XCC  = 0x1000
OFF_FL   = 0x10000
OFF_HFL  = 0x14000
OFF_YFL  = 0x24000
OFF_Z    = 0x100000
OFF_HALO = 0x600000
OFF_O    = 0x1400000
OFF_A    = 0x1900000
OFF_R    = 0x1E00000
OFF_Y    = 0x2100000
OFF_DBG  = 0x3000000
ZG = 327680
HALO_SZ = 28672
NONCE_C = 0x9E3779B9

L_W    = 0
L_WT1  = 40960
L_K    = 81920
L_V    = 94208
L_VS   = 110592
L_SP   = 118784
L_HK   = 135168
L_HV   = 147456
LDS_BYTES = 163840

sX, sWQ, sWO, sBK, sBV, sSH, sSK, sSD, sOUT, sDBG, sWS = 4, 6, 8, 12, 14, 16, 18, 20, 22, 24, 26
sG, sS, sW, sTOK, sMODE, sL = 28, 29, 30, 31, 32, 33
sSRD = 36
sM0, sM1 = 40, 42
sT = 44
sTO = 64
sXCC = 65
sZB, sOB, sAB, sHB, sHP = 66, 68, 70, 72, 74
sRET = 76
sU = 80

vTID, vLANE, vL16 = 0, 1, 2
vX, vY = 232, 244

def f32(x): return "0x%08x" % struct.unpack("<I", struct.pack("<f", x))[0]

class K(Asm):
    def __init__(self, stop=None, stamps=False, opts=None):
        super().__init__()
        self.stop = stop; self.stamps = stamps; self.o = opts or {}
        self.nstamp = 0; self.stamp_names = []

    def smul(self, d, a_, imm):
        self.s_mul_i32(s(d), s(a_), imm)
    def base64(self, d, ptr, off_sreg=None, imm=0):
        if imm:
            self.s_add_u32(s(d), s(ptr), hex(imm)); self.s_addc_u32(s(d + 1), s(ptr + 1), 0)
        else:
            self.s_mov_b32(s(d), s(ptr)); self.s_mov_b32(s(d + 1), s(ptr + 1))
        if off_sreg is not None:
            self.s_add_u32(s(d), s(d), s(off_sreg)); self.s_addc_u32(s(d + 1), s(d + 1), 0)
    def setexec(self, m):
        if isinstance(m, int):
            if m == -1: self.s_mov_b64("exec", -1)
            else:
                self.s_mov_b32("exec_lo", hex(m & 0xffffffff)); self.s_mov_b32("exec_hi", hex(m >> 32))
        else: self.s_mov_b64("exec", m)
    def wait(self, vm=None, lg=None):
        p = []
        if vm is not None: p.append(f"vmcnt({vm})")
        if lg is not None: p.append(f"lgkmcnt({lg})")
        self.s_waitcnt(" ".join(p))
    def stamp(self, name):
        if not self.stamps: return
        i = self.nstamp; self.nstamp += 1; self.stamp_names.append(name)
        lab = self.newlabel("st")
        self.s_cmp_lg_u32(s(sW), 0); self.s_cbranch_scc1(lab)
        self.s_memrealtime(s(96, 2)); self.wait(lg=0)
        self.s_mov_b64(s(98, 2), "exec"); self.setexec(1)
        self.v_mov_b32(v(230), s(96)); self.v_mov_b32(v(231), s(97))
        self.s_lshl_b32(s(96), s(2), 9); self.s_add_u32(s(96), s(96), hex(OFF_DBG + 8 * i))
        self.s_lshl_b32(s(97), s(sL), 8); self.s_add_u32(s(96), s(96), s(97))
        self.v_mov_b32(v(229), s(96))
        self.global_store_dwordx2(v(229), v(230, 2), s(sWS, 2))
        self.s_mov_b64("exec", s(98, 2))
        self.label(lab)
    def maybe_stop(self, name):
        if self.stop == name:
            self.wait(vm=0, lg=0); self.s_endpgm(); self.stopped = True
            return True
        return False

    def store(self, width, vaddr, vdata, sbase, off=0):
        op = {4: "global_store_dword", 8: "global_store_dwordx2", 16: "global_store_dwordx4"}[width]
        m = f"offset:{off}" if off else ""
        return (op, vaddr, vdata, sbase, m)
    def stores(self, lst):
        l1, l2 = self.newlabel("slow"), self.newlabel("stj")
        self.s_cmp_lg_u32(s(sMODE), 0); self.s_cbranch_scc1(l1)
        for it in lst:
            if it[0] == "exec": self.setexec(it[1])
            else: self.I(it[0], it[1], it[2], it[3], mods=it[4])
        self.label(l2)
        self.cold.append((l1, l2, lst))
    def emit_cold(self):
        for l1, l2, lst in self.cold:
            self.label(l1)
            for it in lst:
                if it[0] == "exec": self.setexec(it[1])
                else: self.I(it[0], it[1], it[2], it[3], mods=(it[4] + " sc1").strip())
            self.s_branch(l2)
        self.cold = []

    def signal(self, phase_expr_sreg=None, phase_imm=None, vt=4):
        self.wait(vm=0); self.s_barrier()
        lab = self.newlabel("sig")
        self.s_cmp_lg_u32(s(sW), 0); self.s_cbranch_scc1(lab)
        if phase_imm is not None: self.s_mov_b32(s(sT), phase_imm)
        else: self.s_mov_b32(s(sT), s(phase_expr_sreg))
        self.s_add_u32(s(sT + 1), s(sTOK), s(sT)); self.s_add_u32(s(sT + 1), s(sT + 1), 1)
        self.s_lshl_b32(s(sT), s(sT), 3); self.s_add_u32(s(sT), s(sT), s(sG)); self.s_lshl_b32(s(sT), s(sT), 7)
        self.s_lshl_b32(s(sT + 2), s(sS), 2); self.s_add_u32(s(sT), s(sT), s(sT + 2)); self.s_add_u32(s(sT), s(sT), hex(OFF_FL))
        self.v_mov_b32(v(vt), s(sT)); self.v_mov_b32(v(vt + 1), s(sT + 1))
        self.setexec(1)
        self.stores([self.store(4, v(vt), v(vt + 1), s(sWS, 2))])
        self.setexec(-1)
        self.label(lab)

    def poll(self, vaddr, vtmp, s_exp, s_mask):
        lp, dn = self.newlabel("poll"), self.newlabel("polld")
        self.label(lp)
        self.global_load_dword(v(vtmp), v(vaddr), s(sWS, 2), mods="sc1")
        self.s_cmp_eq_u32(s(sTO), 0); self.s_cbranch_scc1(dn)
        self.s_sub_u32(s(sTO), s(sTO), 1)
        self.wait(vm=0)
        self.v_cmp_ne_u32("vcc", s(s_exp), v(vtmp))
        self.s_and_b64("vcc", "vcc", s(s_mask, 2))
        self.s_cbranch_scc1(lp)
        self.label(dn)

    def wait_flags(self, phase_sreg, mask_sreg, vt=4):
        self.s_add_u32(s(sT + 1), s(sTOK), s(phase_sreg)); self.s_add_u32(s(sT + 1), s(sT + 1), 1)
        self.s_lshl_b32(s(sT), s(phase_sreg), 3); self.s_add_u32(s(sT), s(sT), s(sG)); self.s_lshl_b32(s(sT), s(sT), 7)
        self.s_add_u32(s(sT), s(sT), hex(OFF_FL))
        self.v_and_b32(v(vt), 31, v(vLANE)); self.v_lshlrev_b32(v(vt), 2, v(vt)); self.v_add_u32(v(vt), s(sT), v(vt))
        self.poll(vt, vt + 1, sT + 1, mask_sreg)

    def wave_sum2(self, a_, b_, t0, t1):
        for r in (a_, b_): self.v_add_f32_dpp(v(r), v(r), v(r), mods="quad_perm:[2,3,0,1] row_mask:0xf bank_mask:0xf")
        for r in (a_, b_): self.v_add_f32_dpp(v(r), v(r), v(r), mods="row_ror:4 row_mask:0xf bank_mask:0xf")
        for r in (a_, b_): self.v_add_f32_dpp(v(r), v(r), v(r), mods="row_ror:8 row_mask:0xf bank_mask:0xf")
        self.v_mov_b32(v(t0), v(a_)); self.v_mov_b32(v(t1), v(b_))
        self.v_permlane16_swap_b32(v(a_), v(t0)); self.v_permlane16_swap_b32(v(b_), v(t1))
        self.v_add_f32(v(a_), v(a_), v(t0)); self.v_add_f32(v(b_), v(b_), v(t1))
        self.v_mov_b32(v(t0), v(a_)); self.v_mov_b32(v(t1), v(b_))
        self.v_permlane32_swap_b32(v(a_), v(t0)); self.v_permlane32_swap_b32(v(b_), v(t1))
        self.v_add_f32(v(a_), v(a_), v(t0)); self.v_add_f32(v(b_), v(b_), v(t1))
    def rbf(self, r, t):
        self.v_cvt_pk_bf16_f32(v(t), v(r), v(r)); self.v_and_b32(v(r), "0xffff0000", v(t))
    def ln_stats(self, xf, t):
        S, Q, a0, a1 = t + 4, t + 6, t + 8, t + 10
        self.v_pk_add_f32(v(S, 2), v(xf, 2), v(xf + 2, 2))
        self.v_pk_mul_f32(v(Q, 2), v(xf, 2), v(xf, 2))
        self.v_pk_fma_f32(v(Q, 2), v(xf + 2, 2), v(xf + 2, 2), v(Q, 2))
        for j in range(2, 12):
            self.v_pk_add_f32(v(S, 2), v(S, 2), v(xf + 2 * j, 2))
            self.v_pk_fma_f32(v(Q, 2), v(xf + 2 * j, 2), v(xf + 2 * j, 2), v(Q, 2))
        self.v_add_f32(v(S), v(S), v(S + 1)); self.v_add_f32(v(Q), v(Q), v(Q + 1))
        self.wave_sum2(S, Q, a0, a1)
        self.v_mul_f32(v(S), f32(1.0 / 640), v(S)); self.v_mul_f32(v(Q), f32(1.0 / 640), v(Q))
        self.v_fma_f32(v(Q), f"-{v(S)}", v(S), v(Q))
        self.v_max_f32(v(Q), 0, v(Q))
        self.rbf(S, a0); self.rbf(Q, a1)
        self.v_add_f32(v(Q), f32(1e-5), v(Q)); self.rbf(Q, a1)
        self.v_sqrt_f32(v(Q), v(Q)); self.rbf(Q, a1)
        self.v_rcp_f32(v(t), v(Q))
        self.v_mov_b32(v(t + 1), v(t))
        self.v_mul_f32(v(t + 2), v(S), v(t)); self.v_sub_f32(v(t + 2), 0, v(t + 2))
        self.v_mov_b32(v(t + 3), v(t + 2))
    def unpack(self, dst, src, n):
        for j in range(n):
            self.v_lshlrev_b32(v(dst + 2 * j), 16, v(src + j))
            self.v_and_b32(v(dst + 2 * j + 1), "0xffff0000", v(src + j))
    def pack(self, dst, src, n):
        for j in range(n): self.v_cvt_pk_bf16_f32(v(dst + j), v(src + 2 * j), v(src + 2 * j + 1))

    def z_store(self, zp, sbase, va):
        self.s_lshr_b32(s(sT), s(sS), 2); self.smul(sT, sT, 40960)
        self.s_and_b32(s(sT + 1), s(sS), 3); self.s_lshl_b32(s(sT + 1), s(sT + 1), 7)
        self.s_add_u32(s(sT), s(sT), s(sT + 1)); self.s_lshl_b32(s(sT + 1), s(sW), 5); self.s_add_u32(s(sT), s(sT), s(sT + 1))
        self.v_lshrrev_b32(v(va), 1, v(vLANE)); self.v_lshlrev_b32(v(va), 9, v(va))
        self.v_and_b32(v(va + 1), 1, v(vLANE)); self.v_lshlrev_b32(v(va + 1), 4, v(va + 1))
        self.v_add3_u32(v(va), v(va), v(va + 1), s(sT))
        self.v_add_u32(v(va + 1), 32 * 512, v(va)); self.v_add_u32(v(va + 2), 64 * 512, v(va))
        self.stores([self.store(16, v(va), v(zp, 4), s(sbase, 2)), self.store(16, v(va + 1), v(zp + 4, 4), s(sbase, 2)),
                     ("exec", 0xffffffff), self.store(16, v(va + 2), v(zp + 8, 4), s(sbase, 2)), ("exec", -1)])

    def setup(self):
        self.cold = []
        self.s_cmp_ge_u32(s(2), 256); self.s_cbranch_scc1("L_END")
        self.s_load_dwordx4(s(4, 4), s(0, 2), 0)
        self.s_load_dwordx2(s(8, 2), s(0, 2), 16)
        self.s_load_dwordx8(s(12, 8), s(0, 2), 32)
        self.s_load_dwordx8(s(20, 8), s(0, 2), 64)
        self.s_getpc_b64(s(sT, 2))
        self.label("L_PC")
        self.v_and_b32(v(vLANE), 63, v(vTID))
        self.v_lshlrev_b32(v(vL16), 4, v(vLANE))
        self.v_lshrrev_b32(v(4), 6, v(vTID))
        self.s_and_b32(s(sG), s(2), 7); self.s_lshr_b32(s(sS), s(2), 3)
        self.v_readfirstlane_b32(s(sW), v(4))
        self.s_mov_b32(s(sTO), 400000)
        self.s_mov_b32(s(sMODE), 0); self.s_mov_b32(s(sL), 0)
        self.s_getreg_b32(s(sXCC), "hwreg(HW_REG_XCC_ID, 0, 4)")
        self.v_lshlrev_b32(v(4), 4, v(vTID))
        self.npf = self.o.get("npf", 8)
        for i in range(self.npf):
            self.v_min_u32(v(5), "L_HOTEND-L_PC-16", v(4))
            self.global_load_dwordx4(v(224, 4), v(5), s(sT, 2))
            self.v_add_u32(v(4), 4096, v(4))
        self.wait(lg=0)
        self.s_load_dword(s(sTOK), s(sWS, 2), OFF_N)

    def x_addr(self, va):
        self.s_lshl_b32(s(sT), s(sG), 8); self.s_lshl_b32(s(sT + 1), s(sS), 3); self.s_add_u32(s(sT), s(sT), s(sT + 1))
        self.s_lshl_b32(s(sT + 1), s(sW), 1); self.s_add_u32(s(sT), s(sT), s(sT + 1)); self.smul(sT, sT, 1280)
        self.v_and_b32(v(va), 1, v(vLANE)); self.v_mul_u32_u24(v(va), 1280, v(va))
        self.v_lshrrev_b32(v(va + 1), 1, v(vLANE)); self.v_lshlrev_b32(v(va + 1), 4, v(va + 1))
        self.v_add3_u32(v(va), v(va), v(va + 1), s(sT))

    def p0_issue_x(self):
        self.x_addr(4)
        for j in range(8, 12): self.v_mov_b32(v(vX + j), 0)
        self.global_load_dwordx4(v(vX, 4), v(4), s(sX, 2))
        self.global_load_dwordx4(v(vX + 4, 4), v(4), s(sX, 2), mods="offset:512")
        self.setexec(0xffffffff)
        self.global_load_dwordx4(v(vX + 8, 4), v(4), s(sX, 2), mods="offset:1024")
        self.setexec(-1)

    WREG = 96
    def p0_issue_w(self):
        self.s_mov_b32(s(sSRD), s(sWQ)); self.s_mov_b32(s(sSRD + 1), s(sWQ + 1))
        self.s_mov_b32(s(sSRD + 2), 640 * 1920 * 2); self.s_mov_b32(s(sSRD + 3), "0x00020000")
        self.v_mul_u32_u24(v(8), 5462, v(vLANE)); self.v_lshrrev_b32(v(8), 16, v(8))
        self.v_mul_u32_u24(v(9), 12, v(8)); self.v_sub_u32(v(9), v(vLANE), v(9))
        self.v_lshrrev_b32(v(10), 2, v(9))
        self.v_and_b32(v(11), 3, v(vLANE))
        self.smul(sT, sW, 160)
        self.v_add_u32(v(8), s(sT), v(8))
        self.s_mov_b32(s(sT + 1), 3840)
        self.v_mul_lo_u32(v(12), s(sT + 1), v(8))
        self.v_mul_u32_u24(v(13), 1280, v(10))
        self.v_lshlrev_b32(v(14), 4, v(11))
        self.v_add3_u32(v(12), v(12), v(13), v(14))
        self.smul(sT + 2, sS, 40)
        self.v_add_u32(v(12), s(sT + 2), v(12))
        self.v_lshlrev_b32(v(13), 5, v(10))
        self.v_add_u32(v(13), v(13), v(14))
        self.v_cmp_eq_u32("vcc", 2, v(10))
        self.v_add_u32(v(15), L_WT1 + 32, v(14))
        self.v_cndmask_b32(v(13), v(13), v(15), "vcc")
        self.v_lshlrev_b32(v(15), 4, v(10))
        self.v_min_u32(v(15), 24, v(15)); self.v_add_u32(v(15), L_WT1, v(15))
        self.v_cmp_eq_u32("vcc", 2, v(11))
        self.v_cndmask_b32(v(13), v(13), v(15), "vcc")
        self.v_lshlrev_b32(v(7), 6, v(8)); self.v_add_u32(v(7), v(7), v(13))
        self.setexec((1 << 60) - 1)
        self.s_mov_b32(s(sT + 3), 0)
        for i in range(32):
            self.buffer_load_dwordx4(v(self.WREG + 4 * i, 4), v(12), s(sSRD, 4), s(sT + 3), mods="offen")
            if i < 31: self.s_add_u32(s(sT + 3), s(sT + 3), 5 * 3840)
        self.setexec(-1)

    def p0_w_to_lds(self):
        m128 = sum(1 << l for l in range(60) if (l & 3) < 2)
        m64 = sum(1 << l for l in range(60) if (l & 3) == 2)
        self.setexec(m128)
        for i in range(32): self.ds_write_b128(v(7), v(self.WREG + 4 * i, 4), mods=f"offset:{320 * i}")
        self.setexec(m64)
        for i in range(32): self.ds_write_b64(v(7), v(self.WREG + 4 * i, 2), mods=f"offset:{320 * i}")
        self.setexec(-1)
        self.v_mov_b32(v(8), 0); self.v_mov_b32(v(9), 0)
        self.v_lshlrev_b32(v(10), 6, v(vTID)); self.v_add_u32(v(10), L_WT1 + 8, v(10))
        self.ds_write_b64(v(10), v(8, 2)); self.ds_write_b64(v(10), v(8, 2), mods=f"offset:{256 * 64}")
        lab = self.newlabel("wz")
        self.s_cmp_ge_u32(s(sW), 2); self.s_cbranch_scc1(lab)
        self.ds_write_b64(v(10), v(8, 2), mods=f"offset:{512 * 64}")
        self.label(lab)

    def mode_setup(self):
        self.wait(lg=0)
        self.s_add_u32(s(sTOK), s(sTOK), hex(NONCE_C))
        lab = self.newlabel("xp")
        self.s_cmp_lg_u32(s(sW), 0); self.s_cbranch_scc1(lab)
        self.s_lshl_b32(s(sT), s(sG), 5); self.s_add_u32(s(sT), s(sT), s(sS)); self.s_lshl_b32(s(sT), s(sT), 7)
        self.s_add_u32(s(sT), s(sT), hex(OFF_XCC))
        self.s_add_u32(s(sT + 1), s(sTOK), s(sXCC)); self.s_add_u32(s(sT + 1), s(sT + 1), 64)
        self.v_mov_b32(v(8), s(sT)); self.v_mov_b32(v(9), s(sT + 1))
        self.setexec(1)
        self.global_store_dword(v(8), v(9), s(sWS, 2), mods="sc1")
        self.setexec(-1)
        self.label(lab)
    def mode_wait(self):
        self.s_lshl_b32(s(sT), s(sG), 12); self.s_add_u32(s(sT), s(sT), hex(OFF_XCC))
        self.v_and_b32(v(8), 31, v(vLANE)); self.v_lshlrev_b32(v(8), 7, v(8)); self.v_add_u32(v(8), s(sT), v(8))
        self.s_add_u32(s(sT + 1), s(sTOK), 64)
        lp, dn = self.newlabel("xpoll"), self.newlabel("xpolld")
        self.label(lp)
        self.global_load_dword(v(9), v(8), s(sWS, 2), mods="sc1")
        self.s_cmp_eq_u32(s(sTO), 0); self.s_cbranch_scc1(dn)
        self.s_sub_u32(s(sTO), s(sTO), 1)
        self.wait(vm=0)
        self.v_subrev_u32(v(9), s(sT + 1), v(9))
        self.v_cmp_le_u32("vcc", 16, v(9))
        self.s_cmp_lg_u64("vcc", 0)
        self.s_cbranch_scc1(lp)
        self.label(dn)
        self.v_cmp_ne_u32("vcc", s(sXCC), v(9))
        self.s_cmp_lg_u64("vcc", 0)
        self.s_cselect_b32(s(sMODE), 1, 0)
        if self.o.get("force_slow"): self.s_mov_b32(s(sMODE), 1)

    def p0_ln(self):
        XF = 16
        self.unpack(XF, vX, 12)
        self.ln_stats(XF, 40)
        for j in range(12): self.v_pk_fma_f32(v(XF + 2 * j, 2), v(XF + 2 * j, 2), v(40, 2), v(42, 2))
        self.pack(56, XF, 12)

    def layer_bases(self):
        self.s_lshl_b32(s(sT), s(sL), 3); self.s_add_u32(s(sT), s(sT), s(sG))
        self.smul(sT + 1, sT, ZG)
        self.base64(sZB, sWS, sT + 1, OFF_Z); self.base64(sOB, sWS, sT + 1, OFF_O); self.base64(sAB, sWS, sT + 1, OFF_A)
        self.s_lshl_b32(s(sT + 2), s(sT), 5); self.s_add_u32(s(sT + 2), s(sT + 2), s(sS))
        self.smul(sT + 2, sT + 2, HALO_SZ)
        self.base64(sHB, sWS, sT + 2, OFF_HALO)
        self.s_sub_u32(s(sT + 2), s(sT + 2), 32 * HALO_SZ)
        self.base64(sHP, sWS, None, OFF_HALO)
        self.s_cmp_eq_u32(s(sG), 0); self.s_cselect_b32(s(sT + 2), 0, s(sT + 2))
        self.s_add_u32(s(sHP), s(sHP), s(sT + 2)); self.s_addc_u32(s(sHP + 1), s(sHP + 1), 0)

    ACC = 16
    ZR = 96
    WF = 160
    def qkv(self):
        ACC, ZR, WF = self.ACC, self.ZR, self.WF
        vzA, vzB, vw0, vw1 = 8, 9, 10, 11
        self.smul(sT, sW, 40960); self.v_add_u32(v(vzA), s(sT), v(vL16))
        self.s_sub_u32(s(sT + 1), 7, s(sW)); self.smul(sT + 1, sT + 1, 40960); self.v_add_u32(v(vzB), s(sT + 1), v(vL16))
        self.v_lshrrev_b32(v(12), 5, v(vLANE)); self.v_lshlrev_b32(v(12), 3, v(12))
        self.v_bfe_u32(v(13), v(vLANE), 2, 2); self.v_add_u32(v(12), v(12), v(13))
        self.v_lshlrev_b32(v(12), 6, v(12))
        self.v_bfe_u32(v(13), v(vLANE), 4, 1); self.v_lshlrev_b32(v(13), 5, v(13))
        self.v_and_b32(v(14), 3, v(vLANE)); self.v_lshlrev_b32(v(14), 3, v(14))
        self.v_add3_u32(v(vw0), v(12), v(13), v(14))
        self.v_add_u32(v(vw1), L_WT1, v(vw0))
        sc = "" if self.o.get("z_plain") else " sc1"
        def zload(j, kk):
            if not self.o.get("noz"):
                self.global_load_dwordx4(v(ZR + 8 * j, 4), v(vzA), s(sZB, 2), mods=f"offset:{(kk % 4) * 1024}{sc}")
                self.global_load_dwordx4(v(ZR + 8 * j + 4, 4), v(vzB), s(sZB, 2), mods=f"offset:{(kk % 4) * 1024}{sc}")
            if kk % 4 == 3:
                self.v_add_u32(v(vzA), 4096, v(vzA)); self.v_add_u32(v(vzB), 4096, v(vzB))
        def wread(st, kk):
            if self.o.get("now"): return
            for T, vw in ((0, vw0), (1, vw1)):
                r = WF + 8 * st + 4 * T
                self.ds_read_b64_tr_b16(v(r, 2), v(vw), mods=f"offset:{kk * 1024}")
                self.ds_read_b64_tr_b16(v(r + 2, 2), v(vw), mods=f"offset:{kk * 1024 + 256}")
        for j in range(8): zload(j, j)
        for r in range(64): self.v_mov_b32(v(ACC + r), 0)
        wread(0, 0)
        def body(last):
            for j in range(8):
                st = j & 1
                if not (last and j == 7): wread(st ^ 1, j + 1)
                self.wait(vm=(14 - 2 * j) if last else 14, lg=0 if (last and j == 7) else 4)
                for blk in range(2):
                    for T in range(2):
                        d = ACC + 32 * blk + 16 * T
                        self.v_mfma_f32_32x32x16_bf16(v(d, 16), v(WF + 8 * st + 4 * T, 4), v(ZR + 8 * j + 4 * blk, 4), v(d, 16))
                if not last: zload(j, j)
            if not last:
                self.v_add_u32(v(vw0), 8192, v(vw0)); self.v_add_u32(v(vw1), 8192, v(vw1))
        lp = self.newlabel("qkv")
        self.s_mov_b32(s(sU), 4)
        self.label(lp)
        body(False)
        self.s_sub_u32(s(sU), s(sU), 1); self.s_cmp_lg_u32(s(sU), 0); self.s_cbranch_scc1(lp)
        body(True)

    QA, QB = 80, 86
    def qkv_epilogue(self):
        ACC = self.ACC
        c = math.log2(math.e) / math.sqrt(20.0)
        self.s_mov_b32(s(sU), f32(c)); self.s_mov_b32(s(sU + 1), f32(c))
        PK = 96
        vsw, vtr, vkl, vvl, vgh = 8, 9, 10, 11, 12
        self.v_and_b32(v(13), 31, v(vLANE)); self.v_lshlrev_b32(v(14), 6, v(13))
        self.s_lshl_b32(s(sT), s(sW), 11); self.s_add_u32(s(sT), s(sT), L_VS)
        self.v_add_u32(v(14), s(sT), v(14))
        self.v_bfe_u32(v(15), v(13), 1, 3)
        self.v_lshrrev_b32(v(13), 5, v(vLANE))
        self.v_sub_u32(v(vsw), 5, v(13)); self.v_xor_b32(v(vsw), v(vsw), v(15)); self.v_lshl_add_u32(v(vsw), v(vsw), 3, v(14))
        self.v_xor_b32(v(vsw + 168), v(13), v(15)); self.v_lshl_add_u32(v(vsw + 168), v(vsw + 168), 3, v(14))
        self.v_add_u32(v(177), 2, v(13)); self.v_xor_b32(v(177), v(177), v(15)); self.v_lshl_add_u32(v(177), v(177), 3, v(14))
        self.v_add_u32(v(178), 6, v(13)); self.v_xor_b32(v(178), v(178), v(15)); self.v_lshl_add_u32(v(178), v(178), 3, v(14))
        self.v_mov_b32(v(180), "0x3f80"); self.v_mov_b32(v(181), 0)
        self.ds_write_b64(v(178), v(180, 2))
        self.v_bfe_u32(v(13), v(vLANE), 2, 2)
        self.v_lshrrev_b32(v(14), 5, v(vLANE)); self.v_lshl_add_u32(v(13), v(14), 2, v(13))
        self.v_bfe_u32(v(14), v(vLANE), 4, 1); self.v_lshlrev_b32(v(14), 2, v(14))
        self.v_and_b32(v(15), 3, v(vLANE)); self.v_add_u32(v(14), v(14), v(15))
        for m in range(4):
            self.v_add_u32(v(15), 8 * m, v(13)); self.v_bfe_u32(v(179), v(15), 1, 3)
            self.v_xor_b32(v(179), v(179), v(14)); self.v_lshlrev_b32(v(179), 3, v(179))
            self.v_lshl_add_u32(v(182 + m), v(15), 6, v(179)); self.v_add_u32(v(182 + m), s(sT), v(182 + m))
        for blk in range(2):
            A0 = ACC + 32 * blk; A1 = A0 + 16
            Q = self.QA if blk == 0 else self.QB
            for r in (0, 2, 4, 6): self.v_pk_mul_f32(v(A0 + r, 2), v(A0 + r, 2), s(sU, 2))
            for r in (0, 2): self.v_pk_mul_f32(v(A1 + r, 2), v(A1 + r, 2), s(sU, 2))
            self.pack(Q, A0, 4); self.pack(Q + 4, A1, 2)
            K0 = PK; K1 = PK + 4; VV = PK + 6; VF = PK + 12
            self.pack(K0, A0 + 8, 4); self.pack(K1, A1 + 4, 2); self.pack(VV, A1 + 8, 4)
            self.ds_write_b64(v(vsw), v(K1, 2)); self.ds_write_b64(v(176), v(VV, 2)); self.ds_write_b64(v(177), v(VV + 2, 2))
            if blk == 0: self.s_mov_b32(s(sT + 1), s(sW))
            else: self.s_sub_u32(s(sT + 1), 7, s(sW))
            self.smul(sT + 2, sT + 1, 1536); self.s_add_u32(s(sT + 3), s(sT + 2), L_K)
            self.v_add_u32(v(vkl), s(sT + 3), v(vL16))
            self.v_lshrrev_b32(v(13), 1, v(vL16)); self.v_add_u32(v(13), s(sT + 3), v(13))
            self.ds_write_b128(v(vkl), v(K0, 4)); self.ds_write_b64(v(13), v(K1, 2), mods="offset:1024")
            self.wait(lg=2)
            for m in range(4): self.ds_read_b64_tr_b16(v(VF + 2 * m, 2), v(182 + m))
            self.v_add_u32(v(vgh), s(sT + 2), v(vL16))
            self.v_lshrrev_b32(v(14), 1, v(vL16)); self.v_add_u32(v(14), s(sT + 2), v(14)); self.v_add_u32(v(14), 1024, v(14))
            self.s_lshl_b32(s(sT + 2), s(sT + 1), 11)
            self.s_add_u32(s(sT + 3), s(sT + 2), L_V); self.v_add_u32(v(vvl), s(sT + 3), v(vL16))
            self.s_add_u32(s(sT + 2), s(sT + 2), 12288); self.v_add_u32(v(15), s(sT + 2), v(vL16))
            self.global_store_dwordx4(v(vgh), v(K0, 4), s(sHB, 2), mods="sc1")
            self.global_store_dwordx2(v(14), v(K1, 2), s(sHB, 2), mods="sc1")
            self.wait(lg=0)
            self.ds_write_b128(v(vvl), v(VF, 4)); self.ds_write_b128(v(vvl), v(VF + 4, 4), mods="offset:1024")
            self.global_store_dwordx4(v(15), v(VF, 4), s(sHB, 2), mods="sc1")
            self.global_store_dwordx4(v(15), v(VF + 4, 4), s(sHB, 2), mods="offset:1024 sc1")
            if blk == 0: self.wait(lg=0); self.s_nop(1)

    OA, OB, SA, SB, PP = 16, 32, 48, 64, 96
    KF0, KF1, VF0, VF1, MSK = 104, 108, 110, 114, 120
    def mask_gen(self, far):
        self.v_and_b32(v(8), 31, v(vLANE)); self.v_lshrrev_b32(v(9), 5, v(vLANE)); self.v_lshlrev_b32(v(9), 2, v(9))
        self.v_sub_u32(v(8), v(8), v(9))
        self.v_mov_b32(v(10), f32(-1e30)); self.v_mov_b32(v(11), 0)
        for r in range(16):
            kk = 8 * (r >> 2) + (r & 3)
            self.v_cmp_le_i32(s(sU + 2 * (r & 1), 2), kk, v(8))
            if far: self.v_cndmask_b32(v(self.MSK + r), v(11), v(10), s(sU + 2 * (r & 1), 2))
            else: self.v_cndmask_b32(v(self.MSK + r), v(10), v(11), s(sU + 2 * (r & 1), 2))

    KP0, KP1 = 136, 140
    def attn_seq(self, Q, O, sKb, sVb, sN, sMI):
        SA, SB, PP, KF0, KF1, VF0, VF1, MSK = self.SA, self.SB, self.PP, self.KF0, self.KF1, self.VF0, self.VF1, self.MSK
        KP0, KP1 = self.KP0, self.KP1
        vk, vk1, vv = 8, 9, 10
        sI = sU + 4
        self.v_add_u32(v(vk), s(sKb), v(vL16)); self.v_lshrrev_b32(v(vk1), 1, v(vL16)); self.v_add_u32(v(vk1), s(sKb), v(vk1))
        self.v_add_u32(v(vv), s(sVb), v(vL16))
        def qk(S, kreg):
            lm, lr = self.newlabel("am"), self.newlabel("ar")
            self.s_cmp_eq_u32(s(sI), s(sMI)); self.s_cbranch_scc1(lm)
            self.v_mfma_f32_32x32x16_bf16(v(S, 16), v(kreg, 4), v(Q, 4), 0)
            self.label(lr)
            self.cold2.append((lm, lr, S, kreg, Q))
        self.ds_read_b128(v(KP0, 4), v(vk)); self.ds_read_b64(v(KP1, 2), v(vk1), mods="offset:1024")
        self.ds_read_b128(v(KF0, 4), v(vk), mods="offset:1536"); self.ds_read_b64(v(KF1, 2), v(vk1), mods="offset:2560")
        self.ds_read_b128(v(VF0, 4), v(vv))
        self.s_mov_b32(s(sI), 0)
        self.wait(lg=3)
        qk(SA, KP0)
        self.v_mfma_f32_32x32x8_bf16(v(SA, 16), v(KP1, 2), v(Q + 4, 2), v(SA, 16))
        self.wait(lg=1)
        lp, ex, first = self.newlabel("att"), self.newlabel("attx"), self.newlabel("attf")
        self.s_branch(first)
        def body(S, Sn, entry):
            self.wait(lg=1)
            self.v_mfma_f32_32x32x16_bf16(v(O, 16), v(VF1, 4), v(PP + 4, 4), v(O, 16))
            if entry: self.label(entry)
            self.ds_read_b128(v(VF1, 4), v(vv), mods="offset:1024")
            for e in range(4): self.v_exp_f32(v(S + e), v(S + e))
            self.s_add_u32(s(sI), s(sI), 1)
            self.v_cvt_pk_bf16_f32(v(PP), v(S), v(S + 1)); self.v_cvt_pk_bf16_f32(v(PP + 1), v(S + 2), v(S + 3))
            qk(Sn, KF0)
            self.ds_read_b128(v(KF0, 4), v(vk), mods="offset:3072")
            for e in range(4, 8): self.v_exp_f32(v(S + e), v(S + e))
            self.v_cvt_pk_bf16_f32(v(PP + 2), v(S + 4), v(S + 5)); self.v_cvt_pk_bf16_f32(v(PP + 3), v(S + 6), v(S + 7))
            self.v_mfma_f32_32x32x8_bf16(v(Sn, 16), v(KF1, 2), v(Q + 4, 2), v(Sn, 16))
            self.ds_read_b64(v(KF1, 2), v(vk1), mods="offset:4096")
            for e in range(8, 12): self.v_exp_f32(v(S + e), v(S + e))
            self.wait(lg=3)
            self.v_mfma_f32_32x32x16_bf16(v(O, 16), v(VF0, 4), v(PP, 4), v(O, 16))
            self.ds_read_b128(v(VF0, 4), v(vv), mods="offset:2048")
            self.v_cvt_pk_bf16_f32(v(PP + 4), v(S + 8), v(S + 9)); self.v_cvt_pk_bf16_f32(v(PP + 5), v(S + 10), v(S + 11))
            for e in range(12, 16): self.v_exp_f32(v(S + e), v(S + e))
            self.v_add_u32(v(vk), 1536, v(vk)); self.v_add_u32(v(vk1), 1536, v(vk1))
            self.v_cvt_pk_bf16_f32(v(PP + 6), v(S + 12), v(S + 13)); self.v_cvt_pk_bf16_f32(v(PP + 7), v(S + 14), v(S + 15))
            self.v_add_u32(v(vv), 2048, v(vv))
            self.s_cmp_ge_u32(s(sI), s(sN))
        self.label(lp)
        body(SA, SB, first)
        self.s_cbranch_scc1(ex)
        body(SB, SA, None)
        self.s_cbranch_scc0(lp)
        self.label(ex)
        self.wait(lg=0)
        self.v_mfma_f32_32x32x16_bf16(v(O, 16), v(VF1, 4), v(PP + 4, 4), v(O, 16))

    def emit_cold2(self):
        for lm, lr, S, kreg, Q in self.cold2:
            self.label(lm)
            self.v_mfma_f32_32x32x16_bf16(v(S, 16), v(kreg, 4), v(Q, 4), v(self.MSK, 16))
            self.s_branch(lr)
        self.cold2 = []

    def attn_local(self):
        sKb, sVb, sN, sMI = sU + 6, sU + 7, sU + 8, sU + 9
        for r in range(32): self.v_mov_b32(v(self.OA + r), 0)
        self.mask_gen(False)
        self.s_mov_b32(s(sKb), L_K); self.s_mov_b32(s(sVb), L_V)
        self.s_add_u32(s(sN), s(sW), 1); self.s_mov_b32(s(sMI), s(sW))
        self.attn_seq(self.QA, self.OA, sKb, sVb, sN, sMI)
        self.s_sub_u32(s(sN), 8, s(sW)); self.s_sub_u32(s(sMI), 7, s(sW))
        self.attn_seq(self.QB, self.OB, sKb, sVb, sN, sMI)

    def halo_fetch(self):
        self.s_lshl_b32(s(sT), s(sL), 3); self.s_add_u32(s(sT), s(sT), s(sG)); self.s_sub_u32(s(sT), s(sT), 1)
        self.s_lshl_b32(s(sT), s(sT), 5); self.s_add_u32(s(sT), s(sT), s(sS)); self.s_lshl_b32(s(sT), s(sT), 7)
        self.s_add_u32(s(sT), s(sT), hex(OFF_HFL))
        self.v_mov_b32(v(8), s(sT))
        self.s_add_u32(s(sT + 1), s(sTOK), s(sL)); self.s_add_u32(s(sT + 1), s(sT + 1), 16)
        self.s_mov_b64(s(sT + 2, 2), -1)
        self.poll(8, 9, sT + 1, sT + 2)
        self.smul(sT, sW, 7168); self.v_add_u32(v(8), s(sT), v(vL16))
        self.v_add_u32(v(10), 4096, v(8))
        R = 144
        for j in range(7):
            self.global_load_dwordx4(v(R + 4 * j, 4), v(8 if j < 4 else 10), s(sHP, 2), mods=f"offset:{(j % 4) * 1024} sc1")
        self.v_add_u32(v(9), L_HK, v(8))
        for j in range(7):
            self.wait(vm=6 - j)
            self.ds_write_b128(v(9), v(R + 4 * j, 4), mods=f"offset:{j * 1024}")
        self.wait(lg=0); self.s_barrier()

    def halo_signal(self):
        self.wait(vm=0); self.s_barrier()
        lab = self.newlabel("hs")
        self.s_cmp_lg_u32(s(sW), 0); self.s_cbranch_scc1(lab)
        self.s_lshl_b32(s(sT), s(sL), 3); self.s_add_u32(s(sT), s(sT), s(sG))
        self.s_lshl_b32(s(sT), s(sT), 5); self.s_add_u32(s(sT), s(sT), s(sS)); self.s_lshl_b32(s(sT), s(sT), 7)
        self.s_add_u32(s(sT), s(sT), hex(OFF_HFL))
        self.s_add_u32(s(sT + 1), s(sTOK), s(sL)); self.s_add_u32(s(sT + 1), s(sT + 1), 16)
        self.v_mov_b32(v(8), s(sT)); self.v_mov_b32(v(9), s(sT + 1))
        self.setexec(1)
        self.global_store_dword(v(8), v(9), s(sWS, 2), mods="sc1")
        self.setexec(-1)
        self.label(lab)

    def attn_halo(self):
        sKb, sVb, sN, sMI = sU + 6, sU + 7, sU + 8, sU + 9
        self.mask_gen(True)
        self.s_mov_b32(s(sMI), 0)
        self.smul(sKb, sW, 1536); self.s_add_u32(s(sKb), s(sKb), L_HK)
        self.s_lshl_b32(s(sVb), s(sW), 11); self.s_add_u32(s(sVb), s(sVb), L_HV)
        self.s_sub_u32(s(sN), 8, s(sW))
        self.attn_seq(self.QA, self.OA, sKb, sVb, sN, sMI)
        self.s_sub_u32(s(sT), 7, s(sW))
        self.smul(sKb, sT, 1536); self.s_add_u32(s(sKb), s(sKb), L_HK)
        self.s_lshl_b32(s(sVb), s(sT), 11); self.s_add_u32(s(sVb), s(sVb), L_HV)
        self.s_add_u32(s(sN), s(sW), 1)
        self.attn_seq(self.QB, self.OB, sKb, sVb, sN, sMI)

    def o_store(self):
        self.s_lshr_b32(s(sT), s(sS), 4); self.smul(sT, sT, 10); self.s_and_b32(s(sT + 1), s(sS), 15)
        self.s_lshr_b32(s(sT + 2), s(sT + 1), 1); self.s_add_u32(s(sT + 2), s(sT + 2), s(sT)); self.s_lshl_b32(s(sT + 2), s(sT + 2), 10)
        self.s_and_b32(s(sT + 3), s(sT + 1), 1); self.s_lshl_b32(s(sT + 4), s(sT + 3), 9); self.s_add_u32(s(sT + 2), s(sT + 2), s(sT + 4))
        self.s_lshr_b32(s(sT + 4), s(sT + 1), 3); self.s_add_u32(s(sT + 4), s(sT + 4), s(sT)); self.s_add_u32(s(sT + 4), s(sT + 4), 8)
        self.s_lshl_b32(s(sT + 4), s(sT + 4), 10)
        self.s_bfe_u32(s(sT + 5), s(sT + 1), (2 << 16) | 1); self.s_lshl_b32(s(sT + 5), s(sT + 5), 8); self.s_add_u32(s(sT + 4), s(sT + 4), s(sT + 5))
        self.s_lshl_b32(s(sT + 3), s(sT + 3), 3); self.s_add_u32(s(sT + 4), s(sT + 4), s(sT + 3))
        self.v_bfe_u32(v(8), v(vLANE), 4, 1); self.v_mul_u32_u24(v(8), 20480, v(8))
        self.v_and_b32(v(9), 15, v(vLANE)); self.v_lshl_add_u32(v(8), v(9), 4, v(8))
        self.v_lshrrev_b32(v(9), 5, v(vLANE)); self.v_lshl_add_u32(v(9), v(9), 8, v(8))
        lst = []
        for blk, O in ((0, self.OA), (1, self.OB)):
            if blk == 0: self.s_mov_b32(s(sT + 6), s(sW))
            else: self.s_sub_u32(s(sT + 6), 7, s(sW))
            self.smul(sT + 6, sT + 6, 40960)
            self.s_add_u32(s(sT + 7), s(sT + 6), s(sT + 2)); self.s_add_u32(s(sT + 6), s(sT + 6), s(sT + 4))
            va = 10 + 2 * blk
            self.v_add_u32(v(va), s(sT + 7), v(9)); self.v_add_u32(v(va + 1), s(sT + 6), v(8))
            self.v_rcp_f32(v(14), v(O + 12))
            self.v_mov_b32(v(15), v(14))
            for r in range(0, 12, 2): self.v_pk_mul_f32(v(O + r, 2), v(O + r, 2), v(14, 2))
            P = 48 + 8 * blk
            self.pack(P, O, 6)
            lst += [self.store(16, v(va), v(P, 4), s(sOB, 2)), ("exec", 0xffffffff), self.store(8, v(va + 1), v(P + 4, 2), s(sOB, 2)), ("exec", -1)]
        self.stores(lst)

    def wo_load(self):
        self.s_and_b32(s(sU), s(sS), 7)
        self.smul(sU, sU, 160)
        self.s_mov_b32(s(sSRD), s(sWO)); self.s_mov_b32(s(sSRD + 1), s(sWO + 1))
        self.s_mov_b32(s(sSRD + 2), 640 * 640 * 2); self.s_mov_b32(s(sSRD + 3), "0x00020000")
        self.v_mul_u32_u24(v(8), 6554, v(vLANE)); self.v_lshrrev_b32(v(8), 16, v(8))
        self.v_mul_u32_u24(v(9), 10, v(8)); self.v_sub_u32(v(9), v(vLANE), v(9))
        self.smul(sU + 1, sW, 80); self.v_add_u32(v(8), s(sU + 1), v(8))
        self.v_mul_u32_u24(v(10), 1280, v(8)); self.v_lshl_add_u32(v(10), v(9), 4, v(10)); self.v_add_u32(v(10), s(sU), v(10))
        self.v_mul_u32_u24(v(11), 160, v(8)); self.v_lshl_add_u32(v(11), v(9), 4, v(11)); self.v_add_u32(v(11), L_K, v(11))
        self.v_lshrrev_b32(v(12), 4, v(vLANE))
        self.v_bfe_u32(v(13), v(vLANE), 2, 2)
        self.v_and_b32(v(14), 3, v(vLANE)); self.v_lshlrev_b32(v(14), 3, v(14)); self.v_add_u32(v(14), L_K, v(14))
        self.v_lshrrev_b32(v(17), 1, v(12)); self.v_mul_u32_u24(v(17), 20, v(17))
        self.v_and_b32(v(18), 1, v(12)); self.v_lshl_add_u32(v(17), v(18), 2, v(17)); self.v_add_u32(v(17), v(17), v(13))
        self.v_mul_u32_u24(v(17), 160, v(17)); self.v_add_u32(v(17), v(17), v(14))
        self.v_mul_u32_u24(v(18), 40, v(12)); self.v_add3_u32(v(18), v(18), v(13), 16)
        self.v_mul_u32_u24(v(18), 160, v(18)); self.v_add_u32(v(18), v(18), v(14))
        R = 96
        for hh in range(2):
            self.setexec((1 << 50) - 1)
            self.s_mov_b32(s(sU + 2), hh * 320 * 1280)
            for i in range(16):
                self.buffer_load_dwordx4(v(R + 4 * i, 4), v(10), s(sSRD, 4), s(sU + 2), mods="offen")
                if i < 15: self.s_add_u32(s(sU + 2), s(sU + 2), 5 * 1280)
            for i in range(16):
                self.wait(vm=15 - i)
                self.ds_write_b128(v(11), v(R + 4 * i, 4), mods=f"offset:{800 * i}")
            self.setexec(-1)
            self.wait(lg=0); self.s_barrier()
            if self.o.get("fine"): self.stamp(f"wo{hh}st")
            lab = self.newlabel("wo")
            self.s_lshr_b32(s(sU + 2), s(sW), 1); self.s_cmp_lg_u32(s(sU + 2), hh); self.s_cbranch_scc1(lab)
            for kl in range(10):
                for ct in range(5):
                    d = (kl * 5 + ct) * 4
                    if kl < 8: vb, o0, o1 = 17, 6400 * kl + 32 * ct, 6400 * kl + 32 * ct + 1280
                    else: vb, o0, o1 = 18, 25600 * (kl - 8) + 32 * ct, 25600 * (kl - 8) + 32 * ct + 3200
                    self.ds_read_b64_tr_b16(a(d, 2), v(vb), mods=f"offset:{o0}")
                    self.ds_read_b64_tr_b16(a(d + 2, 2), v(vb), mods=f"offset:{o1}")
                self.wait(lg=0)
            self.label(lab)
            self.s_barrier()

    def outproj(self):
        OF, AC, P = 96, 16, 56
        self.s_lshr_b32(s(sU), s(sS), 3); self.s_lshl_b32(s(sU), s(sU), 2)
        self.s_and_b32(s(sU + 1), s(sW), 1); self.s_lshl_b32(s(sU + 1), s(sU + 1), 1); self.s_add_u32(s(sU), s(sU), s(sU + 1))
        self.s_lshr_b32(s(sU + 1), s(sW), 1)
        self.s_add_u32(s(sU + 2), s(sU), s(sU + 1))
        self.s_xor_b32(s(sU + 3), s(sU + 2), 1)
        self.smul(sU + 4, sU + 1, 10240)
        for j, sr in ((0, sU + 2), (1, sU + 3)):
            self.smul(sU + 5, sr, 20480); self.s_add_u32(s(sU + 5), s(sU + 5), s(sU + 4))
            self.v_add_u32(v(8 + j), s(sU + 5), v(vL16))
        for kl in range(10):
            for j in range(2):
                self.global_load_dwordx4(v(OF + 8 * kl + 4 * j, 4), v(8 + j), s(sOB, 2), mods=f"offset:{(kl % 4) * 1024} sc1")
            if kl % 4 == 3:
                self.v_add_u32(v(8), 4096, v(8)); self.v_add_u32(v(9), 4096, v(9))
        for r in range(40): self.v_mov_b32(v(AC + r), 0)
        for kl in range(10):
            self.wait(vm=18 - 2 * kl)
            for j in range(2):
                for ct in range(5):
                    d = AC + 20 * j + 4 * ct
                    self.v_mfma_f32_16x16x32_bf16(v(d, 4), a((kl * 5 + ct) * 4, 4), v(OF + 8 * kl + 4 * j, 4), v(d, 4))
        self.smul(sU + 5, sW, 5120); self.s_add_u32(s(sU + 5), s(sU + 5), L_K); self.v_add_u32(v(10), s(sU + 5), v(vL16))
        self.s_xor_b32(s(sU + 5), s(sW), 2); self.smul(sU + 5, sU + 5, 5120); self.s_add_u32(s(sU + 5), s(sU + 5), L_K)
        self.v_add_u32(v(11), s(sU + 5), v(vL16))
        for ct in range(5): self.ds_write_b128(v(10), v(AC + 20 + 4 * ct, 4), mods=f"offset:{1024 * ct}")
        self.wait(lg=0); self.s_barrier()
        for ct in range(5): self.ds_read_b128(v(OF + 4 * ct, 4), v(11), mods=f"offset:{1024 * ct}")
        self.s_lshl_b32(s(sU + 5), s(sU + 2), 1); self.smul(sU + 5, sU + 5, 10240)
        self.s_and_b32(s(sU + 6), s(sS), 7); self.smul(sU + 6, sU + 6, 1280); self.s_add_u32(s(sU + 5), s(sU + 5), s(sU + 6))
        self.v_bfe_u32(v(12), v(vLANE), 3, 1); self.v_mul_u32_u24(v(12), 10240, v(12))
        self.v_and_b32(v(13), 7, v(vLANE)); self.v_lshl_add_u32(v(12), v(13), 4, v(12))
        self.v_bfe_u32(v(13), v(vLANE), 4, 1); self.v_lshl_add_u32(v(12), v(13), 8, v(12))
        self.v_lshrrev_b32(v(13), 5, v(vLANE)); self.v_lshl_add_u32(v(12), v(13), 7, v(12))
        self.v_add_u32(v(12), s(sU + 5), v(12))
        self.wait(lg=0)
        for ct in range(5):
            for r in (0, 2): self.v_pk_add_f32(v(AC + 4 * ct + r, 2), v(AC + 4 * ct + r, 2), v(OF + 4 * ct + r, 2))
        self.pack(P, AC, 10)
        self.v_mov_b32(v(P + 10), 0); self.v_mov_b32(v(P + 11), 0)
        for q in range(3):
            self.v_permlane16_swap_b32(v(P + 4 * q), v(P + 4 * q + 2)); self.v_permlane16_swap_b32(v(P + 4 * q + 1), v(P + 4 * q + 3))
        self.stores([self.store(16, v(12), v(P, 4), s(sAB, 2)), self.store(16, v(12), v(P + 4, 4), s(sAB, 2), 512),
                     ("exec", 0x0000ffff0000ffff), self.store(16, v(12), v(P + 8, 4), s(sAB, 2), 1024), ("exec", -1)])

    def y_load(self):
        LY = L_SP
        self.s_lshl_b32(s(sU), s(sG), 8); self.s_lshl_b32(s(sU + 1), s(sS), 3); self.s_add_u32(s(sU), s(sU), s(sU + 1)); self.s_lshl_b32(s(sU), s(sU), 1)
        self.s_add_u32(s(sU), s(sU), hex(OFF_Y))
        self.v_lshlrev_b32(v(8), 12, v(vTID)); self.v_add_u32(v(8), s(sU), v(8))
        self.global_load_dwordx4(v(16, 4), v(8), s(sWS, 2), mods="sc1")
        self.v_add_u32(v(9), 256 * 4096, v(8)); self.global_load_dwordx4(v(20, 4), v(9), s(sWS, 2), mods="sc1")
        lab = self.newlabel("yl")
        self.s_cmp_ge_u32(s(sW), 2); self.s_cbranch_scc1(lab)
        self.v_add_u32(v(9), 512 * 4096, v(8)); self.global_load_dwordx4(v(24, 4), v(9), s(sWS, 2), mods="sc1")
        self.label(lab)
        self.v_and_b32(v(10), 7, v(vTID)); self.v_mul_u32_u24(v(10), 320, v(10))
        self.v_lshrrev_b32(v(11), 3, v(vTID)); self.v_lshl_add_u32(v(10), v(11), 2, v(10)); self.v_add_u32(v(10), LY, v(10))
        self.wait(vm=0)
        for i in range(2):
            for w in range(4): self.ds_write_b32(v(10), v(16 + 4 * i + w), mods=f"offset:{2560 * w + 128 * i}")
        lab = self.newlabel("yl")
        self.s_cmp_ge_u32(s(sW), 2); self.s_cbranch_scc1(lab)
        for w in range(4): self.ds_write_b32(v(10), v(24 + w), mods=f"offset:{2560 * w + 256}")
        self.label(lab)
        self.wait(lg=0); self.s_barrier()
        self.smul(sU, sW, 2560); self.s_add_u32(s(sU), s(sU), LY)
        self.v_bfe_u32(v(10), v(vLANE), 2, 2); self.v_mul_u32_u24(v(10), 320, v(10))
        self.v_lshrrev_b32(v(11), 4, v(vLANE)); self.v_lshl_add_u32(v(10), v(11), 5, v(10))
        self.v_and_b32(v(11), 3, v(vLANE)); self.v_lshl_add_u32(v(10), v(11), 3, v(10)); self.v_add_u32(v(10), s(sU), v(10))
        for m in range(3):
            self.ds_read_b64_tr_b16(v(vY + 4 * m, 2), v(10), mods=f"offset:{128 * m}")
            self.ds_read_b64_tr_b16(v(vY + 4 * m + 2, 2), v(10), mods=f"offset:{128 * m + 4 * 320}")
        self.wait(lg=0)
        self.setexec(0xffffffff00000000)
        for j in range(8, 12): self.v_mov_b32(v(vY + j), 0)
        self.setexec(-1)
        self.s_barrier()

    def p4(self, last_label):
        XF, AF, AP, ST = 16, 64, 96, 40
        self.smul(sU, sS, 10240); self.s_lshl_b32(s(sU + 1), s(sW), 5); self.s_add_u32(s(sU), s(sU), s(sU + 1))
        self.v_lshrrev_b32(v(8), 1, v(vLANE)); self.v_lshlrev_b32(v(8), 7, v(8))
        self.v_and_b32(v(9), 1, v(vLANE)); self.v_lshl_add_u32(v(8), v(9), 4, v(8)); self.v_add_u32(v(8), s(sU), v(8))
        self.v_add_u32(v(9), 8192, v(8))
        for j in range(8, 12): self.v_mov_b32(v(AP + j), 0)
        self.global_load_dwordx4(v(AP, 4), v(8), s(sAB, 2), mods="sc1")
        self.v_add_u32(v(10), 4096, v(8))
        self.global_load_dwordx4(v(AP + 4, 4), v(10), s(sAB, 2), mods="sc1")
        self.setexec(0xffffffff)
        self.global_load_dwordx4(v(AP + 8, 4), v(9), s(sAB, 2), mods="sc1")
        self.setexec(-1)
        self.unpack(XF, vX, 12)
        self.wait(vm=0)
        self.unpack(AF, AP, 12)
        for j in range(12): self.v_pk_add_f32(v(XF + 2 * j, 2), v(XF + 2 * j, 2), v(AF + 2 * j, 2))
        self.pack(AP, XF, 12); self.unpack(XF, AP, 12)
        self.ln_stats(XF, ST)
        self.unpack(AF, vY, 12)
        for j in range(12):
            self.v_pk_fma_f32(v(AP + 16 + 2 * j, 2), v(XF + 2 * j, 2), v(ST, 2), v(ST + 2, 2))
        for j in range(12):
            self.v_pk_fma_f32(v(XF + 2 * j, 2), v(AP + 16 + 2 * j, 2), v(AF + 2 * j, 2), v(XF + 2 * j, 2))
        self.pack(vX, XF, 12)

    def p4_tail_z(self):
        XF, ST = 16, 40
        self.unpack(XF, vX, 12)
        self.ln_stats(XF, ST)
        for j in range(12): self.v_pk_fma_f32(v(XF + 2 * j, 2), v(XF + 2 * j, 2), v(ST, 2), v(ST + 2, 2))
        self.pack(56, XF, 12)

    def out_store(self):
        self.x_addr(8)
        self.global_store_dwordx4(v(8), v(vX, 4), s(sOUT, 2))
        self.global_store_dwordx4(v(8), v(vX + 4, 4), s(sOUT, 2), mods="offset:512")
        self.setexec(0xffffffff)
        self.global_store_dwordx4(v(8), v(vX + 8, 4), s(sOUT, 2), mods="offset:1024")
        self.setexec(-1)

    def c0(self):
        KP, VP, SP = 96, 124, 140
        KF, VF, SKF, U = 16, 0, 160, 192
        lab = self.newlabel("c0")
        self.s_mov_b32(s(sSRD), s(sBK)); self.s_mov_b32(s(sSRD + 1), s(sBK + 1))
        self.s_mov_b32(s(sSRD + 2), 2048 * 1280); self.s_mov_b32(s(sSRD + 3), "0x00020000")
        self.v_mul_u32_u24(v(8), 6554, v(vTID)); self.v_lshrrev_b32(v(8), 16, v(8))
        self.v_mul_u32_u24(v(9), 10, v(8)); self.v_sub_u32(v(9), v(vTID), v(9))
        self.v_cmp_gt_u32("vcc", 160, v(vTID))
        self.s_and_saveexec_b64(s(sM0, 2), "vcc")
        self.s_cbranch_execz(lab)
        self.s_lshl_b32(s(sU), s(sS), 6); self.s_sub_u32(s(sU), s(sU), 3)
        self.v_lshl_add_u32(v(10), v(8), 2, s(sU))
        self.s_mov_b32(s(sU + 1), 1280); self.v_mul_lo_u32(v(10), s(sU + 1), v(10))
        self.smul(sU + 2, sG, 160); self.v_lshl_add_u32(v(11), v(9), 4, s(sU + 2))
        self.v_add_u32(v(10), v(10), v(11))
        for j in range(7):
            self.buffer_load_dwordx4(v(KP + 4 * j, 4), v(10), s(sSRD, 4), 0, mods="offen")
            if j == 2: self.v_add_u32(v(12), 1280, v(10))
            self.v_add_u32(v(10), 1280, v(10))
        self.s_mov_b32(s(sSRD), s(sBV)); self.s_mov_b32(s(sSRD + 1), s(sBV + 1))
        for j in range(4):
            self.buffer_load_dwordx4(v(VP + 4 * j, 4), v(12), s(sSRD, 4), 0, mods="offen")
            self.v_add_u32(v(12), 1280, v(12))
        self.smul(sU + 2, sG, 640); self.v_lshl_add_u32(v(11), v(9), 6, s(sU + 2))
        for j in range(4): self.global_load_dwordx4(v(SP + 4 * j, 4), v(11), s(sSH, 2), mods=f"offset:{16 * j}")
        self.wait(vm=0)
        for m in range(4):
            for e in range(2):
                c = 2 * m + e
                self.v_lshlrev_b32(v(SKF + 0 + 2 * m + e), 16, v(SP + 2 * c))
                self.v_and_b32(v(SKF + 8 + 2 * m + e), "0xffff0000", v(SP + 2 * c))
                self.v_lshlrev_b32(v(SKF + 16 + 2 * m + e), 16, v(SP + 2 * c + 1))
                self.v_and_b32(v(SKF + 24 + 2 * m + e), "0xffff0000", v(SP + 2 * c + 1))
        for j in range(7): self.unpack(KF + 8 * j, KP + 4 * j, 4)
        for i in range(4):
            self.unpack(72, VP + 4 * i, 4)
            for m in range(4):
                u = U + 8 * i + 2 * m
                self.v_pk_mul_f32(v(u, 2), v(KF + 8 * i + 2 * m, 2), v(SKF + 24 + 2 * m, 2))
                self.v_pk_fma_f32(v(u, 2), v(KF + 8 * (i + 1) + 2 * m, 2), v(SKF + 16 + 2 * m, 2), v(u, 2))
                self.v_pk_fma_f32(v(u, 2), v(KF + 8 * (i + 2) + 2 * m, 2), v(SKF + 8 + 2 * m, 2), v(u, 2))
                self.v_pk_fma_f32(v(u, 2), v(KF + 8 * (i + 3) + 2 * m, 2), v(SKF + 0 + 2 * m, 2), v(u, 2))
                self.v_pk_mul_f32(v(u, 2), v(u, 2), v(72 + 2 * m, 2))
        self.v_mul_u32_u24(v(10), 1168, v(9)); self.v_lshlrev_b32(v(11), 3, v(8)); self.v_sub_u32(v(10), v(10), v(11))
        self.v_add_u32(v(10), L_K + 120, v(10))
        for c in range(8):
            self.v_cvt_pk_bf16_f32(v(96 + 2 * c), v(U + 24 + c), v(U + 16 + c))
            self.v_cvt_pk_bf16_f32(v(97 + 2 * c), v(U + 8 + c), v(U + c))
            self.ds_write_b64(v(10), v(96 + 2 * c, 2), mods=f"offset:{144 * c}")
        self.label(lab)
        self.s_mov_b64("exec", -1)
        self.wait(lg=0); self.s_barrier()
        self.v_lshrrev_b32(v(8), 6, v(vTID)); self.v_mul_u32_u24(v(8), 1168, v(8))
        self.v_bfe_u32(v(9), v(vTID), 3, 3); self.v_mul_u32_u24(v(9), 144, v(9))
        self.v_and_b32(v(10), 7, v(vTID)); self.v_lshlrev_b32(v(10), 4, v(10))
        self.v_add3_u32(v(8), v(8), v(9), v(10)); self.v_add_u32(v(8), L_K, v(8))
        self.smul(sU, sG, 80 * 4096); self.s_lshl_b32(s(sU + 1), s(sS), 7); self.s_sub_u32(s(sU), s(sU), s(sU + 1))
        self.s_add_u32(s(sU), s(sU), hex(OFF_R + 1984 * 2))
        self.v_lshrrev_b32(v(9), 3, v(vTID)); self.v_lshlrev_b32(v(9), 12, v(9)); self.v_add3_u32(v(9), v(9), v(10), s(sU))
        self.ds_read_b128(v(16, 4), v(8)); self.ds_read_b128(v(20, 4), v(8), mods=f"offset:{4 * 1168}")
        self.ds_read_b128(v(24, 4), v(8), mods=f"offset:{8 * 1168}")
        self.v_add_u32(v(11), 32 * 4096, v(9)); self.v_add_u32(v(12), 64 * 4096, v(9))
        self.wait(lg=0)
        hi = 0 if False else None
        l1 = self.newlabel("c0s")
        self.stores([self.store(16, v(9), v(16, 4), s(sWS, 2)), self.store(16, v(11), v(20, 4), s(sWS, 2))])
        self.s_cmp_ge_u32(s(sW), 2); self.s_cbranch_scc1(l1)
        self.stores([self.store(16, v(12), v(24, 4), s(sWS, 2))])
        self.label(l1)

    CH_SZ = 24832
    def conv_pair(self, sCH):
        D, E, AL = 96, 112, 128
        self.s_lshr_b32(s(sU), s(sW), 1); self.s_add_u32(s(sU + 1), s(sCH), s(sU))
        self.smul(sU + 2, sU, self.CH_SZ); self.s_add_u32(s(sU + 2), s(sU + 2), L_K)
        self.s_lshl_b32(s(sU + 3), s(sU + 1), 12)
        self.s_mov_b32(s(sSRD), s(sSK)); self.s_mov_b32(s(sSRD + 1), s(sSK + 1))
        self.s_mov_b32(s(sSRD + 2), 640 * 4096); self.s_mov_b32(s(sSRD + 3), "0x00020000")
        self.v_and_b32(v(8), 127, v(vTID))
        self.v_lshlrev_b32(v(9), 4, v(8))
        for i in range(2):
            self.buffer_load_dwordx4(v(D + 8 * i, 4), v(9), s(sSRD, 4), s(sU + 3), mods=f"offen offset:{2048 * i}")
            self.buffer_load_dwordx2(v(D + 8 * i + 4, 2), v(9), s(sSRD, 4), s(sU + 3), mods=f"offen offset:{2048 * i + 16}")
            self.buffer_load_dwordx4(v(E + 4 * i, 4), v(9), s(sSRD, 4), s(sU + 3), mods=f"offen offset:{2048 * i + 4}")
        self.s_add_u32(s(sU + 4), s(sU + 3), hex(OFF_R)); self.v_add_u32(v(10), s(sU + 4), v(9))
        self.global_load_dwordx4(v(120, 4), v(10), s(sWS, 2), mods="sc1")
        self.global_load_dwordx4(v(124, 4), v(10), s(sWS, 2), mods="offset:2048 sc1")
        self.s_add_u32(s(sU + 6), s(sSK), s(sU + 3)); self.s_addc_u32(s(sU + 7), s(sSK + 1), 0)
        self.s_load_dwordx2(s(sU + 8, 2), s(sU + 6, 2), 0)
        self.s_lshr_b32(s(sU + 5), s(sU + 1), 1); self.s_lshl_b32(s(sU + 5), s(sU + 5), 2)
        self.s_add_u32(s(sU + 6), s(sSD), s(sU + 5)); self.s_addc_u32(s(sU + 7), s(sSD + 1), 0)
        self.s_load_dword(s(sU + 10), s(sU + 6, 2), 0)
        for r in range(4): self.v_mov_b32(v(24 + r), 0)
        self.v_add_u32(v(11), s(sU + 2), v(9))
        self.ds_write_b128(v(11), v(24, 4), mods=f"offset:{16640 + 320 * 16}")
        self.v_and_b32(v(16), 63, v(8)); self.v_lshlrev_b32(v(16), 4, v(16)); self.v_add_u32(v(16), s(sU + 2), v(16))
        self.ds_write_b128(v(16), v(24, 4), mods=f"offset:{16640 + 448 * 16}")
        self.wait(lg=0)
        self.s_and_b32(s(sU + 11), s(sU + 1), 1); self.s_lshl_b32(s(sU + 11), s(sU + 11), 4)
        self.s_lshr_b32(s(sU + 10), s(sU + 10), s(sU + 11)); self.s_lshl_b32(s(sU + 10), s(sU + 10), 16)
        self.s_lshl_b32(s(sU + 11), s(sU + 8), 16)
        self.v_mov_b32(v(16), s(sU + 10)); self.v_add_f32(v(16), s(sU + 11), v(16))
        self.v_cvt_pk_bf16_f32(v(16), v(16), v(16)); self.v_and_b32(v(16), "0xffff", v(16))
        self.s_and_b32(s(sU + 8), s(sU + 8), "0xffff0000"); self.v_or_b32(v(16), s(sU + 8), v(16))
        self.v_mov_b32(v(17), s(sU + 9))
        self.v_lshrrev_b32(v(18), 2, v(vLANE)); self.v_sub_u32(v(19), 3, v(18)); self.v_lshlrev_b32(v(19), 4, v(19))
        self.v_and_b32(v(19), 63, v(19))
        self.v_lshlrev_b64(v(26, 2), v(19), v(16, 2))
        self.v_and_b32(v(19), 3, v(vLANE)); self.v_cmp_eq_u32("vcc", 3, v(19))
        self.v_cndmask_b32(v(26), 0, v(26), "vcc"); self.v_cndmask_b32(v(27), 0, v(27), "vcc")
        self.v_mul_u32_u24(v(18), 4160, v(18)); self.v_lshl_add_u32(v(18), v(19), 4, v(18)); self.v_add_u32(v(18), s(sU + 2), v(18))
        lab = self.newlabel("hd")
        self.s_and_b32(s(sU + 5), s(sW), 1); self.s_cmp_lg_u32(s(sU + 5), 0); self.s_cbranch_scc1(lab)
        self.setexec(0xffff); self.ds_write_b128(v(18), v(24, 4)); self.setexec(-1)
        self.label(lab)
        self.v_add_u32(v(11), 64, v(11))
        for i in range(2):
            self.wait(vm=2 + 3 * (1 - i))
            d = D + 8 * i
            for j in range(4): self.v_alignbit_b32(v(AL + j), v(d + j + 1), v(d + j), 16)
            for j in range(3): self.v_mov_b32(v(AL + 4 + j), v(AL + 1 + j))
            self.v_alignbit_b32(v(AL + 7), v(d + 5), v(d + 4), 16)
            o = 2048 * i
            self.ds_write_b128(v(11), v(AL, 4), mods=f"offset:{o}")
            self.ds_write_b128(v(11), v(E + 4 * i, 4), mods=f"offset:{o + 4160}")
            self.ds_write_b128(v(11), v(AL + 4, 4), mods=f"offset:{o + 2 * 4160}")
            self.ds_write_b128(v(11), v(d + 2, 4), mods=f"offset:{o + 3 * 4160}")
        self.v_lshrrev_b32(v(16), 2, v(8)); self.v_add_u32(v(16), v(16), v(8)); self.v_lshlrev_b32(v(16), 4, v(16))
        self.v_add_u32(v(16), s(sU + 2), v(16))
        self.wait(vm=0)
        self.ds_write_b128(v(16), v(120, 4), mods="offset:16640"); self.ds_write_b128(v(16), v(124, 4), mods=f"offset:{16640 + 160 * 16}")
        self.wait(lg=0); self.s_barrier()
        LO, HI, F = 16, 32, 96
        vA, vB = 8, 9
        self.s_and_b32(s(sU + 5), s(sW), 1)
        self.v_and_b32(v(10), 3, v(vLANE)); self.v_mul_u32_u24(v(10), 4160, v(10))
        self.v_bfe_u32(v(11), v(vLANE), 2, 3); self.v_lshl_add_u32(v(10), v(11), 3, v(10))
        self.v_lshrrev_b32(v(11), 5, v(vLANE)); self.v_lshl_add_u32(v(10), v(11), 4, v(10))
        self.s_lshl_b32(s(sU + 6), s(sU + 5), 10); self.s_add_u32(s(sU + 6), s(sU + 6), s(sU + 2))
        self.v_add_u32(v(vA), s(sU + 6), v(10))
        self.v_and_b32(v(10), 31, v(vLANE)); self.v_sub_u32(v(10), 31, v(10)); self.v_mul_u32_u24(v(10), 5, v(10))
        self.v_add_u32(v(10), v(10), v(11)); self.v_lshlrev_b32(v(10), 4, v(10))
        self.smul(sU + 6, sU + 5, 16 * 80); self.s_add_u32(s(sU + 6), s(sU + 6), s(sU + 2)); self.s_add_u32(s(sU + 6), s(sU + 6), 16640)
        self.v_add_u32(v(vB), s(sU + 6), v(10))
        for r in range(32): self.v_mov_b32(v(LO + r), 0)
        def reads(st, par, extra):
            f = F + 16 * st
            oa, ob = 32 * par + extra * 64, 32 * par + extra * 80
            self.ds_read_b64(v(f, 2), v(vA), mods=f"offset:{oa}"); self.ds_read_b64(v(f + 2, 2), v(vA), mods=f"offset:{oa + 8}")
            self.ds_read_b128(v(f + 8, 4), v(vB), mods=f"offset:{ob + 2560}")
            self.ds_read_b128(v(f + 12, 4), v(vB), mods=f"offset:{ob}")
            self.ds_read_b64(v(f + 4, 2), v(vA), mods=f"offset:{oa + 2048}"); self.ds_read_b64(v(f + 6, 2), v(vA), mods=f"offset:{oa + 2056}")
        def mm(st):
            f = F + 16 * st
            self.v_mfma_f32_32x32x16_bf16(v(LO, 16), v(f, 4), v(f + 8, 4), v(LO, 16))
            self.v_mfma_f32_32x32x16_bf16(v(HI, 16), v(f, 4), v(f + 12, 4), v(HI, 16))
            self.v_mfma_f32_32x32x16_bf16(v(HI, 16), v(f + 4, 4), v(f + 8, 4), v(HI, 16))
        reads(0, 0, 0)
        lp = self.newlabel("cv")
        self.s_mov_b32(s(sU + 6), 16)
        self.label(lp)
        reads(1, 1, 0); self.wait(lg=6); mm(0)
        reads(0, 0, 1); self.wait(lg=6); mm(1)
        self.v_add_u32(v(vA), 64, v(vA)); self.v_add_u32(v(vB), 80, v(vB))
        self.s_sub_u32(s(sU + 6), s(sU + 6), 1); self.s_cmp_lg_u32(s(sU + 6), 0); self.s_cbranch_scc1(lp)
        self.wait(lg=0); self.s_barrier()
        self.s_lshl_b32(s(sU + 6), s(sU + 5), 12); self.s_add_u32(s(sU + 6), s(sU + 6), s(sU + 2)); self.v_add_u32(v(10), s(sU + 6), v(vL16))
        self.s_xor_b32(s(sU + 7), s(sU + 5), 1); self.s_lshl_b32(s(sU + 7), s(sU + 7), 12); self.s_add_u32(s(sU + 7), s(sU + 7), s(sU + 2))
        self.v_add_u32(v(11), s(sU + 7), v(vL16))
        l1, l2 = self.newlabel("cx"), self.newlabel("cy")
        self.s_cmp_lg_u32(s(sU + 5), 0); self.s_cbranch_scc1(l1)
        for j in range(4): self.ds_write_b128(v(10), v(HI + 4 * j, 4), mods=f"offset:{1024 * j}")
        self.s_branch(l2)
        self.label(l1)
        for j in range(4): self.ds_write_b128(v(10), v(LO + 4 * j, 4), mods=f"offset:{1024 * j}")
        for r in range(16): self.v_mov_b32(v(LO + r), v(HI + r))
        self.label(l2)
        self.wait(lg=0); self.s_barrier()
        for j in range(4): self.ds_read_b128(v(F + 4 * j, 4), v(11), mods=f"offset:{1024 * j}")
        self.wait(lg=0)
        for r in range(0, 16, 2): self.v_pk_add_f32(v(LO + r, 2), v(LO + r, 2), v(F + r, 2))
        self.pack(F, LO, 8)
        self.s_lshl_b32(s(sU + 6), s(sU + 5), 11); self.s_add_u32(s(sU + 6), s(sU + 6), s(sU + 2)); self.s_add_u32(s(sU + 6), s(sU + 6), 8192)
        self.v_and_b32(v(10), 31, v(vLANE)); self.v_lshlrev_b32(v(10), 6, v(10))
        self.v_lshrrev_b32(v(11), 5, v(vLANE)); self.v_lshl_add_u32(v(10), v(11), 3, v(10)); self.v_add_u32(v(10), s(sU + 6), v(10))
        for rho in range(4): self.ds_write_b64(v(10), v(F + 2 * rho, 2), mods=f"offset:{16 * rho}")
        self.v_add_u32(v(11), s(sU + 6), v(vL16))
        self.wait(lg=0)
        self.ds_read_b128(v(LO, 4), v(11)); self.ds_read_b128(v(LO + 4, 4), v(11), mods="offset:1024")
        self.s_lshl_b32(s(sU + 6), s(sU + 5), 11); self.s_add_u32(s(sU + 6), s(sU + 6), s(sU + 3)); self.s_add_u32(s(sU + 6), s(sU + 6), hex(OFF_Y))
        self.v_add_u32(v(10), s(sU + 6), v(vL16))
        self.wait(lg=0)
        self.global_store_dwordx4(v(10), v(LO, 4), s(sWS, 2), mods="sc1")
        self.global_store_dwordx4(v(10), v(LO + 4, 4), s(sWS, 2), mods="offset:1024 sc1")
        self.s_barrier()

    def y_signal(self):
        self.wait(vm=0); self.s_barrier()
        lab = self.newlabel("ys")
        self.s_cmp_lg_u32(s(sW), 0); self.s_cbranch_scc1(lab)
        self.s_lshl_b32(s(sT), s(2), 7); self.s_add_u32(s(sT), s(sT), hex(OFF_YFL))
        self.s_add_u32(s(sT + 1), s(sTOK), 32)
        self.v_mov_b32(v(8), s(sT)); self.v_mov_b32(v(9), s(sT + 1))
        self.setexec(1); self.global_store_dword(v(8), v(9), s(sWS, 2), mods="sc1"); self.setexec(-1)
        self.label(lab)
    def y_wait(self):
        self.v_lshlrev_b32(v(8), 7, v(vTID)); self.v_add_u32(v(8), OFF_YFL, v(8))
        self.s_add_u32(s(sT + 1), s(sTOK), 32); self.s_mov_b64(s(sT + 2, 2), -1)
        self.poll(8, 9, sT + 1, sT + 2)
        self.s_barrier()
        lab = self.newlabel("nu")
        self.s_cmp_lg_u32(s(2), 0); self.s_cbranch_scc1(lab)
        self.s_cmp_lg_u32(s(sW), 0); self.s_cbranch_scc1(lab)
        self.v_mov_b32(v(8), OFF_N); self.v_mov_b32(v(9), s(sTOK))
        self.setexec(1); self.global_store_dword(v(8), v(9), s(sWS, 2), mods="sc1"); self.setexec(-1)
        self.label(lab)

    def lanemask(self, d, first_sreg_or_imm, count):
        self.s_mov_b32(s(d), hex((1 << count) - 1 & 0xffffffff)); self.s_mov_b32(s(d + 1), 0)
        self.s_lshl_b64(s(d, 2), s(d, 2), first_sreg_or_imm)

    def build(self):
        self.cold = []; self.cold2 = []
        self.setup()
        self.stamp("start")
        self.p0_issue_x()
        self.p0_issue_w()
        self.mode_setup()
        self.stamp("issued")
        self.wait(vm=32 + (1 if self.stamps else 0) * 0)
        self.stamp("xarr")
        self.p0_ln()
        self.stamp("lncomp")
        if self.o.get("wwait"):
            self.wait(vm=0)
            self.stamp("warr")
        self.mode_wait()
        self.stamp("ln0")
        self.layer_bases()
        self.z_store(56, sZB, 8)
        self.signal(phase_imm=0)
        self.stamp("z0sig")
        self.p0_w_to_lds()
        self.wait(lg=0); self.s_barrier()
        self.stamp("wlds")
        self.wo_load()
        self.stamp("wo")
        self.c0()
        self.signal(phase_imm=6)
        self.s_mov_b32(s(sU + 12), 6); self.s_mov_b32(s(sM1), -1); self.s_mov_b32(s(sM1 + 1), 0)
        self.wait_flags(sU + 12, sM1)
        self.stamp("c0")
        sCH = sU + 13
        self.smul(sCH, sG, 80); self.s_lshl_b32(s(sT), s(sS), 1); self.s_add_u32(s(sCH), s(sCH), s(sT))
        self.conv_pair(sCH)
        lab = self.newlabel("cv2")
        self.s_cmp_ge_u32(s(sS), 8); self.s_cbranch_scc1(lab)
        self.s_add_u32(s(sCH), s(sCH), 64)
        self.conv_pair(sCH)
        self.label(lab)
        self.y_signal()
        self.stamp("conv")
        if self.maybe_stop("conv"): return self.finish()
        self.label("L_LAYER")
        self.layer_bases()
        self.smul(sU + 12, sL, 3)
        self.s_lshl_b32(s(sT + 4), s(sW), 2); self.lanemask(sM0, s(sT + 4), 4)
        self.s_sub_u32(s(sT + 4), 28, s(sT + 4)); self.lanemask(sM1, s(sT + 4), 4)
        self.s_or_b64(s(sM1, 2), s(sM1, 2), s(sM0, 2))
        self.wait_flags(sU + 12, sM1)
        self.stamp("zwait")
        self.qkv()
        self.stamp("qkv")
        self.qkv_epilogue()
        self.halo_signal()
        self.wait(lg=0); self.s_barrier()
        self.stamp("qkvepi")
        if self.maybe_stop("qkv"): return self.finish()
        self.attn_local()
        self.stamp("local")
        lab = self.newlabel("nohalo")
        self.s_cmp_eq_u32(s(sG), 0); self.s_cbranch_scc1(lab)
        self.halo_fetch()
        self.stamp("halof")
        self.attn_halo()
        self.label(lab)
        self.stamp("halo")
        self.o_store()
        self.smul(sU + 12, sL, 3); self.s_add_u32(s(sU + 12), s(sU + 12), 1)
        self.signal(phase_expr_sreg=sU + 12)
        if self.maybe_stop("attn"): return self.finish()
        self.stamp("osig")
        self.s_lshr_b32(s(sT + 4), s(sW), 1); self.s_lshl_b32(s(sT + 4), s(sT + 4), 4); self.lanemask(sM1, s(sT + 4), 16)
        self.wait_flags(sU + 12, sM1)
        self.stamp("owait")
        self.outproj()
        self.smul(sU + 12, sL, 3); self.s_add_u32(s(sU + 12), s(sU + 12), 2)
        self.signal(phase_expr_sreg=sU + 12)
        self.stamp("asig")
        if self.maybe_stop("oproj"): return self.finish()
        lab = self.newlabel("ydone")
        self.s_cmp_lg_u32(s(sL), 0); self.s_cbranch_scc1(lab)
        self.y_wait()
        self.y_load()
        self.label(lab)
        self.smul(sU + 12, sL, 3); self.s_add_u32(s(sU + 12), s(sU + 12), 2)
        self.s_lshr_b32(s(sT + 4), s(sS), 3); self.s_lshl_b32(s(sT + 4), s(sT + 4), 3); self.lanemask(sM1, s(sT + 4), 8)
        self.wait_flags(sU + 12, sM1)
        self.stamp("await")
        self.p4(None)
        self.s_cmp_lg_u32(s(sL), 0); self.s_cbranch_scc1("L_FINAL")
        self.p4_tail_z()
        self.s_mov_b32(s(sL), 1)
        self.layer_bases()
        self.z_store(56, sZB, 8)
        self.signal(phase_imm=3)
        self.stamp("p4")
        if self.maybe_stop("l1"): return self.finish()
        self.s_branch("L_LAYER")
        self.label("L_FINAL")
        self.out_store()
        self.stamp("end")
        return self.finish()

    def finish(self):
        self.label("L_END")
        self.s_endpgm()
        self.emit_cold2()
        self.label("L_HOTEND")
        self.emit_cold()
        self.s_endpgm()

def render_file(k, lds=LDS_BYTES):
    hdr = open("interleave_layers__sliding_block__ssm_conv_h3__prompt.s.ref").read()
    head = hdr[:hdr.index(".amdgcn_target")]
    head = head.replace("; @launch grid=(5120,1,1) block=(256,1,1) lds=0", f"; @launch grid=(256,1,1) block=(256,1,1) lds={lds}")
    out = head + '.amdgcn_target "amdgcn-amd-amdhsa--gfx950"\n.text\n'
    out += f".globl {NAME}\n.p2align 8\n.type {NAME},@function\n{NAME}:\n"
    out += k.render()
    out += f""".section .rodata,"a"
.p2align 6
.amdhsa_kernel {NAME}
  .amdhsa_next_free_vgpr 512
  .amdhsa_next_free_sgpr 102
  .amdhsa_accum_offset 256
  .amdhsa_group_segment_fixed_size 0
  .amdhsa_kernarg_size 96
  .amdhsa_user_sgpr_count 2
  .amdhsa_user_sgpr_kernarg_segment_ptr 1
  .amdhsa_system_sgpr_workgroup_id_x 1
  .amdhsa_float_denorm_mode_32 3
.end_amdhsa_kernel
"""
    return out

if __name__ == "__main__":
    import argparse
    ap = argparse.ArgumentParser()
    ap.add_argument("-o", default="k.s"); ap.add_argument("--stop"); ap.add_argument("--stamps", action="store_true")
    ap.add_argument("--slow", action="store_true"); ap.add_argument("-v", action="store_true"); ap.add_argument("--opt", default="")
    a_ = ap.parse_args()
    k = K(stop=a_.stop, stamps=a_.stamps, opts=dict({"force_slow": a_.slow}, **{x.split("=")[0]: (int(x.split("=")[1]) if "=" in x else 1) for x in a_.opt.split(",") if x}))
    k.build()
    ins = k.fix_all(verbose=a_.v)
    open(a_.o, "w").write(render_file(k))
    n = sum(1 for it in k.items if isinstance(it, Ins))
    print("instructions:", n, "nops inserted:", len(ins), "stamps:", k.stamp_names)
```

```python
import sys, math
from asm import *
import kern as B
from kern import (NAME, OFF_N, OFF_XCC, OFF_HFL, OFF_YFL, OFF_Z, OFF_HALO, OFF_O, OFF_A, OFF_R, OFF_Y, OFF_DBG, ZG, HALO_SZ,
                  NONCE_C, L_W, L_WT1, L_K, L_V, L_VS, L_SP, L_HK, L_HV, LDS_BYTES, f32,
                  sX, sWQ, sWO, sBK, sBV, sSH, sSK, sSD, sOUT, sDBG, sWS, sG, sS, sW, sTOK, sMODE, sL, sSRD, sM0, sM1, sT, sTO, sXCC, sU,
                  vTID, vLANE, vL16, vX, vY, render_file)

OFF_FL2 = 0x40000
L_CNT = 135104
sEXP, sHEXP = 34, 35
sFZ, sFO, sFA, sFN = 56, 58, 60, 62
sZB, sOB, sAB, sHB, sHP, sZN = 66, 68, 70, 72, 74, 76
sHFO, sHFI = 78, 79
sMZ, sMO, sMA = 4, 6, 10
vL8, vPL = 3, 15
vZERO = 92
vSO = 6

class K2(B.K):
    def stamp(self, name):
        if not self.stamps: return
        i = self.nstamp; self.nstamp += 1; self.stamp_names.append(name)
        lab = self.newlabel("st")
        self.s_cselect_b32(s(101), 1, 0)
        self.s_cmp_lg_u32(s(sW), 0); self.s_cbranch_scc1(lab)
        self.s_memrealtime(s(96, 2)); self.wait(lg=0)
        self.s_mov_b64(s(98, 2), "exec"); self.setexec(1)
        self.v_accvgpr_write_b32(a(250), s(96)); self.v_accvgpr_write_b32(a(251), s(97))
        self.s_lshl_b32(s(96), s(2), 9); self.s_add_u32(s(96), s(96), hex(OFF_DBG + 8 * i))
        self.s_lshl_b32(s(97), s(sL), 8); self.s_add_u32(s(96), s(96), s(97))
        self.v_mov_b32(v(7), s(96))
        self.global_store_dwordx2(v(7), a(250, 2), s(sWS, 2))
        self.s_mov_b64("exec", s(98, 2))
        self.label(lab)
        self.s_cmp_lg_u32(s(101), 0)

    def poll2(self, sbase, voff, s_exp, s_mask, vtmp=4):
        lp, dn = self.newlabel("poll"), self.newlabel("polld")
        self.label(lp)
        self.global_load_dword(v(vtmp), v(voff), s(sbase, 2), mods="sc1")
        self.s_cmp_eq_u32(s(sTO), 0); self.s_cbranch_scc1(dn)
        self.s_sub_u32(s(sTO), s(sTO), 1)
        self.wait(vm=0)
        self.v_cmp_ne_u32("vcc", s(s_exp), v(vtmp))
        self.s_and_b64("vcc", "vcc", s(s_mask, 2))
        self.s_cbranch_scc1(lp)
        self.label(dn)
    def flag_store(self, sbase, vval, force_sc1=False):
        lab = self.newlabel("sig")
        self.s_cmp_lg_u32(s(sW), 0); self.s_cbranch_scc1(lab)
        self.setexec(1)
        if force_sc1: self.global_store_dword(v(vSO), v(vval), s(sbase, 2), mods="sc1")
        else: self.stores([self.store(4, v(vSO), v(vval), s(sbase, 2))])
        self.setexec(-1)
        self.label(lab)
    def signal2(self, sbase, vval, force_sc1=False):
        self.wait(vm=0); self.s_barrier()
        self.flag_store(sbase, vval, force_sc1)
    def stores_sc1(self, lst):
        for it in lst:
            if it[0] == "exec": self.setexec(it[1])
            else: self.I(it[0], it[1], it[2], it[3], mods=(it[4] + " sc1").strip())
    def flagbase(self, d, phase_off_sreg_or_imm):
        self.smul(sT, sL, 3); self.s_add_u32(s(sT), s(sT), phase_off_sreg_or_imm)
        self.s_lshl_b32(s(sT), s(sT), 3); self.s_add_u32(s(sT), s(sT), s(sG)); self.s_lshl_b32(s(sT), s(sT), 12)
        self.base64(d, sWS, sT, OFF_FL2)

    def layer_bases2(self):
        self.s_lshl_b32(s(sT + 4), s(sL), 3); self.s_add_u32(s(sT + 4), s(sT + 4), s(sG))
        self.smul(sT + 1, sG, ZG)
        self.base64(sZB, sWS, sT + 1, OFF_Z); self.base64(sOB, sWS, sT + 1, OFF_O); self.base64(sAB, sWS, sT + 1, OFF_A)
        self.s_mov_b64(s(sZN, 2), s(sZB, 2))
        self.s_lshl_b32(s(sT + 2), s(sT + 4), 5); self.s_add_u32(s(sT + 2), s(sT + 2), s(sS))
        self.s_lshl_b32(s(sHFO), s(sT + 2), 7); self.s_add_u32(s(sHFO), s(sHFO), hex(OFF_HFL))
        self.s_sub_u32(s(sHFI), s(sHFO), 32 * 128)
        self.smul(sT + 2, sT + 2, HALO_SZ)
        self.base64(sHB, sWS, sT + 2, OFF_HALO - L_K)
        self.s_sub_u32(s(sT + 2), s(sT + 2), 32 * HALO_SZ)
        self.s_cmp_eq_u32(s(sG), 0); self.s_cselect_b32(s(sT + 2), 0, s(sT + 2))
        self.base64(sHP, sWS, sT + 2, OFF_HALO)
        self.flagbase(sFZ, 0)
        self.s_add_u32(s(sFO), s(sFZ), 8 * 4096); self.s_addc_u32(s(sFO + 1), s(sFZ + 1), 0)
        self.s_add_u32(s(sFA), s(sFO), 8 * 4096); self.s_addc_u32(s(sFA + 1), s(sFO + 1), 0)
        self.s_add_u32(s(sFN), s(sFA), 8 * 4096); self.s_addc_u32(s(sFN + 1), s(sFA + 1), 0)
        self.smul(sEXP, sL, 3); self.s_add_u32(s(sEXP), s(sEXP), s(sTOK)); self.s_add_u32(s(sEXP), s(sEXP), 1)
        self.s_add_u32(s(sHEXP), s(sTOK), s(sL)); self.s_add_u32(s(sHEXP), s(sHEXP), 16)

    def wave_sum2(self, a_, b_, t0, t1):
        for r in (a_, b_): self.v_add_f32_dpp(v(r), v(r), v(r), mods="quad_perm:[2,3,0,1] row_mask:0xf bank_mask:0xf")
        for r in (a_, b_): self.v_add_f32_dpp(v(r), v(r), v(r), mods="row_ror:4 row_mask:0xf bank_mask:0xf")
        for r in (a_, b_): self.v_add_f32_dpp(v(r), v(r), v(r), mods="row_ror:8 row_mask:0xf bank_mask:0xf")
        self.v_permlane16_swap_b32(v(a_), v(b_)); self.v_add_f32(v(a_), v(a_), v(b_))
        self.v_mov_b32(v(t0), v(a_)); self.v_permlane32_swap_b32(v(a_), v(t0)); self.v_add_f32(v(a_), v(a_), v(t0))
        self.v_mov_b32(v(b_), v(a_)); self.v_permlane16_swap_b32(v(a_), v(b_))

    def setup2(self):
        self.cold = []; self.cold2 = []
        self.s_cmp_ge_u32(s(2), 256); self.s_cbranch_scc1("L_END")
        self.s_load_dwordx4(s(4, 4), s(0, 2), 0); self.s_load_dwordx2(s(8, 2), s(0, 2), 16)
        self.s_load_dwordx8(s(12, 8), s(0, 2), 32); self.s_load_dwordx8(s(20, 8), s(0, 2), 64)
        self.s_getpc_b64(s(sT + 8, 2))
        self.label("L_PC")
        self.v_and_b32(v(vLANE), 63, v(vTID)); self.v_lshlrev_b32(v(vL16), 4, v(vLANE)); self.v_lshlrev_b32(v(vL8), 3, v(vLANE))
        self.v_lshrrev_b32(v(4), 6, v(vTID))
        self.s_and_b32(s(sG), s(2), 7); self.s_lshr_b32(s(sS), s(2), 3)
        self.v_readfirstlane_b32(s(sW), v(4))
        self.s_mov_b32(s(sTO), 400000); self.s_mov_b32(s(sMODE), 0); self.s_mov_b32(s(sL), 0)
        self.s_getreg_b32(s(sXCC), "hwreg(HW_REG_XCC_ID, 0, 4)")
        self.x_addr(8)
        self.wait(lg=0)
        self.s_load_dword(s(sTOK), s(sWS, 2), OFF_N)
    def code_prefetch(self):
        self.v_lshlrev_b32(v(4), 4, v(vTID))
        for i in range(self.o.get("npf", 7)):
            self.v_min_u32(v(5), "L_HOTEND-L_PC-16", v(4))
            self.global_load_dwordx4(v(224, 4), v(5), s(sT + 8, 2))
            self.v_add_u32(v(4), 4096, v(4))
    def issue_x(self):
        for j in range(8, 12): self.v_mov_b32(v(vX + j), 0)
        self.global_load_dwordx4(v(vX, 4), v(8), s(sX, 2))
        self.global_load_dwordx4(v(vX + 4, 4), v(8), s(sX, 2), mods="offset:512")
        self.setexec(0xffffffff)
        self.global_load_dwordx4(v(vX + 8, 4), v(8), s(sX, 2), mods="offset:1024")
        self.setexec(-1)

    def w_addr(self):
        self.s_mov_b32(s(sSRD), s(sWQ)); self.s_mov_b32(s(sSRD + 1), s(sWQ + 1))
        self.s_mov_b32(s(sSRD + 2), 640 * 1920 * 2); self.s_mov_b32(s(sSRD + 3), "0x00020000")
        self.v_mul_u32_u24(v(8), 5462, v(vLANE)); self.v_lshrrev_b32(v(8), 16, v(8))
        self.v_mul_u32_u24(v(9), 12, v(8)); self.v_sub_u32(v(9), v(vLANE), v(9))
        self.v_lshrrev_b32(v(10), 2, v(9)); self.v_and_b32(v(11), 3, v(vLANE))
        self.smul(sT, sW, 160); self.v_add_u32(v(8), s(sT), v(8))
        self.s_mov_b32(s(sT + 1), 3840); self.v_mul_lo_u32(v(90), s(sT + 1), v(8))
        self.v_mul_u32_u24(v(91), 1280, v(10)); self.v_lshlrev_b32(v(14), 4, v(11)); self.v_add3_u32(v(90), v(90), v(91), v(14))
        self.smul(sT + 2, sS, 40); self.v_add_u32(v(90), s(sT + 2), v(90))
        self.v_lshlrev_b32(v(91), 5, v(10)); self.v_add_u32(v(91), v(91), v(14))
        self.v_cmp_eq_u32("vcc", 2, v(10)); self.v_add_u32(v(5), L_WT1 + 32, v(14)); self.v_cndmask_b32(v(91), v(91), v(5), "vcc")
        self.v_lshlrev_b32(v(5), 4, v(10)); self.v_min_u32(v(5), 24, v(5)); self.v_add_u32(v(5), L_WT1, v(5))
        self.v_cmp_eq_u32("vcc", 2, v(11)); self.v_cndmask_b32(v(91), v(91), v(5), "vcc")
        self.v_lshlrev_b32(v(8), 6, v(8)); self.v_add_u32(v(91), v(91), v(8))
    WM = sum(1 << l for l in range(60) if (l & 3) < 3)
    def w_issue(self, lo, hi):
        self.setexec(self.WM)
        self.s_mov_b32(s(sT + 3), lo * 5 * 3840)
        for i in range(lo, hi):
            self.buffer_load_dwordx4(v(96 + 4 * i, 4), v(90), s(sSRD + 0, 4), s(sT + 3), mods="offen")
            if i < hi - 1: self.s_add_u32(s(sT + 3), s(sT + 3), 5 * 3840)
        self.setexec(-1)
    def w_lds(self, lo, hi):
        m128 = sum(1 << l for l in range(60) if (l & 3) < 2); m64 = sum(1 << l for l in range(60) if (l & 3) == 2)
        self.setexec(m128)
        for i in range(lo, hi): self.ds_write_b128(v(91), v(96 + 4 * i, 4), mods=f"offset:{320 * i}")
        self.setexec(m64)
        for i in range(lo, hi): self.ds_write_b64(v(91), v(96 + 4 * i, 2), mods=f"offset:{320 * i}")
        self.setexec(-1)
    def w_zero(self):
        self.v_lshlrev_b32(v(10), 6, v(vTID)); self.v_add_u32(v(10), L_WT1 + 8, v(10))
        self.ds_write_b64(v(10), v(vZERO, 2)); self.ds_write_b64(v(10), v(vZERO, 2), mods=f"offset:{256 * 64}")
        lab = self.newlabel("wz")
        self.s_cmp_ge_u32(s(sW), 2); self.s_cbranch_scc1(lab)
        self.ds_write_b64(v(10), v(vZERO, 2), mods=f"offset:{512 * 64}")
        self.label(lab)

    def z_addr(self, va):
        self.s_lshr_b32(s(sT), s(sS), 2); self.smul(sT, sT, 40960)
        self.s_and_b32(s(sT + 1), s(sS), 3); self.s_lshl_b32(s(sT + 1), s(sT + 1), 7)
        self.s_add_u32(s(sT), s(sT), s(sT + 1)); self.s_lshl_b32(s(sT + 1), s(sW), 5); self.s_add_u32(s(sT), s(sT), s(sT + 1))
        self.v_lshrrev_b32(v(va), 1, v(vLANE)); self.v_lshlrev_b32(v(va), 9, v(va))
        self.v_and_b32(v(va + 1), 1, v(vLANE)); self.v_lshlrev_b32(v(va + 1), 4, v(va + 1))
        self.v_add3_u32(v(va), v(va), v(va + 1), s(sT))
        self.v_add_u32(v(va + 1), 32 * 512, v(va)); self.v_add_u32(v(va + 2), 64 * 512, v(va))
    def z_store_list(self, zp, sbase, va):
        return [self.store(16, v(va), v(zp, 4), s(sbase, 2)), self.store(16, v(va + 1), v(zp + 4, 4), s(sbase, 2)),
                ("exec", 0xffffffff), self.store(16, v(va + 2), v(zp + 8, 4), s(sbase, 2)), ("exec", -1)]

    CKP, CVP, CSP = 160, 188, 204
    def c0_issue(self):
        KP, VP, SP = self.CKP, self.CVP, self.CSP
        lab = self.newlabel("c0i")
        self.s_mov_b32(s(sSRD), s(sBK)); self.s_mov_b32(s(sSRD + 1), s(sBK + 1))
        self.s_mov_b32(s(sSRD + 2), 2048 * 1280); self.s_mov_b32(s(sSRD + 3), "0x00020000")
        self.v_mul_u32_u24(v(68), 6554, v(vTID)); self.v_lshrrev_b32(v(68), 16, v(68))
        self.v_mul_u32_u24(v(69), 10, v(68)); self.v_sub_u32(v(69), v(vTID), v(69))
        self.v_cmp_gt_u32("vcc", 160, v(vTID))
        self.s_and_saveexec_b64(s(sM0, 2), "vcc")
        self.s_cbranch_execz(lab)
        self.s_lshl_b32(s(sU), s(sS), 6); self.s_sub_u32(s(sU), s(sU), 3)
        self.v_lshl_add_u32(v(10), v(68), 2, s(sU))
        self.s_mov_b32(s(sU + 1), 1280); self.v_mul_lo_u32(v(10), s(sU + 1), v(10))
        self.smul(sU + 2, sG, 160); self.v_lshl_add_u32(v(11), v(69), 4, s(sU + 2)); self.v_add_u32(v(10), v(10), v(11))
        for j in range(7):
            self.buffer_load_dwordx4(v(KP + 4 * j, 4), v(10), s(sSRD, 4), 0, mods="offen")
            if j == 2: self.v_add_u32(v(12), 1280, v(10))
            self.v_add_u32(v(10), 1280, v(10))
        self.s_mov_b32(s(sSRD), s(sBV)); self.s_mov_b32(s(sSRD + 1), s(sBV + 1))
        for j in range(4):
            self.buffer_load_dwordx4(v(VP + 4 * j, 4), v(12), s(sSRD, 4), 0, mods="offen")
            self.v_add_u32(v(12), 1280, v(12))
        self.smul(sU + 2, sG, 640); self.v_lshl_add_u32(v(11), v(69), 6, s(sU + 2))
        for j in range(4): self.global_load_dwordx4(v(SP + 4 * j, 4), v(11), s(sSH, 2), mods=f"offset:{16 * j}")
        self.label(lab)
        self.s_mov_b64("exec", -1)
    def c0_compute(self):
        KP, VP, SP = self.CKP, self.CVP, self.CSP
        KF, SK, VF, U, PKD = 16, 30, 38, 46, 54
        lab = self.newlabel("c0c")
        self.v_cmp_gt_u32("vcc", 160, v(vTID))
        self.s_and_saveexec_b64(s(sM0, 2), "vcc")
        self.s_cbranch_execz(lab)
        self.v_mul_u32_u24(v(10), 1168, v(69)); self.v_lshlrev_b32(v(11), 3, v(68)); self.v_sub_u32(v(10), v(10), v(11))
        self.v_add_u32(v(10), L_K + 120, v(10))
        for m in range(4):
            for j in range(7):
                self.v_lshlrev_b32(v(KF + 2 * j), 16, v(KP + 4 * j + m)); self.v_and_b32(v(KF + 2 * j + 1), "0xffff0000", v(KP + 4 * j + m))
            for e in range(2):
                c = 2 * m + e
                self.v_lshlrev_b32(v(SK + 0 + e), 16, v(SP + 2 * c)); self.v_and_b32(v(SK + 2 + e), "0xffff0000", v(SP + 2 * c))
                self.v_lshlrev_b32(v(SK + 4 + e), 16, v(SP + 2 * c + 1)); self.v_and_b32(v(SK + 6 + e), "0xffff0000", v(SP + 2 * c + 1))
            for i in range(4):
                self.v_lshlrev_b32(v(VF + 2 * i), 16, v(VP + 4 * i + m)); self.v_and_b32(v(VF + 2 * i + 1), "0xffff0000", v(VP + 4 * i + m))
            for i in range(4): self.v_pk_mul_f32(v(U + 2 * i, 2), v(KF + 2 * i, 2), v(SK + 6, 2))
            for i in range(4): self.v_pk_fma_f32(v(U + 2 * i, 2), v(KF + 2 * (i + 1), 2), v(SK + 4, 2), v(U + 2 * i, 2))
            for i in range(4): self.v_pk_fma_f32(v(U + 2 * i, 2), v(KF + 2 * (i + 2), 2), v(SK + 2, 2), v(U + 2 * i, 2))
            for i in range(4): self.v_pk_fma_f32(v(U + 2 * i, 2), v(KF + 2 * (i + 3), 2), v(SK + 0, 2), v(U + 2 * i, 2))
            for i in range(4): self.v_pk_mul_f32(v(U + 2 * i, 2), v(U + 2 * i, 2), v(VF + 2 * i, 2))
            for e in range(2):
                p = PKD + 2 * e + 4 * (m & 1)
                self.v_cvt_pk_bf16_f32(v(p), v(U + 6 + e), v(U + 4 + e)); self.v_cvt_pk_bf16_f32(v(p + 1), v(U + 2 + e), v(U + e))
                self.ds_write_b64(v(10), v(p, 2), mods=f"offset:{144 * (2 * m + e)}")
        self.label(lab)
        self.s_mov_b64("exec", -1)
        self.wait(lg=0); self.s_barrier()
        self.v_lshrrev_b32(v(8), 6, v(vTID)); self.v_mul_u32_u24(v(8), 1168, v(8))
        self.v_bfe_u32(v(9), v(vTID), 3, 3); self.v_mul_u32_u24(v(9), 144, v(9))
        self.v_and_b32(v(10), 7, v(vTID)); self.v_lshlrev_b32(v(10), 4, v(10))
        self.v_add3_u32(v(8), v(8), v(9), v(10)); self.v_add_u32(v(8), L_K, v(8))
        self.smul(sU, sG, 80 * 4096); self.s_lshl_b32(s(sU + 1), s(sS), 7); self.s_sub_u32(s(sU), s(sU), s(sU + 1))
        self.s_add_u32(s(sU), s(sU), hex(OFF_R + 1984 * 2))
        self.v_lshrrev_b32(v(9), 3, v(vTID)); self.v_lshlrev_b32(v(9), 12, v(9)); self.v_add3_u32(v(9), v(9), v(10), s(sU))
        self.ds_read_b128(v(16, 4), v(8)); self.ds_read_b128(v(20, 4), v(8), mods=f"offset:{4 * 1168}")
        self.ds_read_b128(v(24, 4), v(8), mods=f"offset:{8 * 1168}")
        self.v_add_u32(v(11), 32 * 4096, v(9)); self.v_add_u32(v(14), 64 * 4096, v(9))
        self.wait(lg=0)
        self.global_store_dwordx4(v(9), v(16, 4), s(sWS, 2), mods="sc1"); self.global_store_dwordx4(v(11), v(20, 4), s(sWS, 2), mods="sc1")
        l1 = self.newlabel("c0s")
        self.s_cmp_ge_u32(s(sW), 2); self.s_cbranch_scc1(l1)
        self.global_store_dwordx4(v(14), v(24, 4), s(sWS, 2), mods="sc1")
        self.label(l1)

    ACC, ZR, WF = 16, 96, 160
    OA, OB, MSK = 176, 192, 208
    SA, SB, PP, KF0, KF1, VF0, VF1, KP0, KP1 = 16, 32, 48, 56, 60, 62, 66, 70, 74
    QA, QB = 80, 86
    vSA, vSB, vSC, vTR0, vTR1, vKA, vK1A, vVA = 224, 225, 226, 227, 228, 229, 230, 231
    vKB, vK1B, vVB = 12, 13, 14
    def zero16(self, d):
        self.v_mfma_f32_32x32x16_bf16(v(d, 16), v(vZERO, 4), v(vZERO, 4), 0)
    def qkv_prep(self):
        vzA, vzB, vw0, vw1 = 8, 9, 10, 11
        self.smul(sT, sW, 40960); self.v_add_u32(v(vzA), s(sT), v(vL16))
        self.s_sub_u32(s(sT + 1), 7, s(sW)); self.smul(sT + 1, sT + 1, 40960); self.v_add_u32(v(vzB), s(sT + 1), v(vL16))
        self.v_lshrrev_b32(v(4), 5, v(vLANE)); self.v_lshlrev_b32(v(4), 3, v(4))
        self.v_bfe_u32(v(5), v(vLANE), 2, 2); self.v_add_u32(v(4), v(4), v(5)); self.v_lshlrev_b32(v(4), 6, v(4))
        self.v_bfe_u32(v(5), v(vLANE), 4, 1); self.v_lshlrev_b32(v(5), 5, v(5))
        self.v_and_b32(v(vw0), 3, v(vLANE)); self.v_lshlrev_b32(v(vw0), 3, v(vw0))
        self.v_add3_u32(v(vw0), v(4), v(5), v(vw0)); self.v_add_u32(v(vw1), L_WT1, v(vw0))
        for d in (16, 32, 48, 64): self.zero16(d)
        self.zero16(self.OA); self.zero16(self.OB)
        self.wread(0, 0)
    def wread(self, st, kk):
        for T, vw in ((0, 10), (1, 11)):
            r = self.WF + 8 * st + 4 * T
            self.ds_read_b64_tr_b16(v(r, 2), v(vw), mods=f"offset:{kk * 1024}")
            self.ds_read_b64_tr_b16(v(r + 2, 2), v(vw), mods=f"offset:{kk * 1024 + 256}")
    def qkv_run(self):
        ACC, ZR, WF = self.ACC, self.ZR, self.WF
        vzA, vzB, vw0, vw1 = 8, 9, 10, 11
        def zload(j, kk):
            self.global_load_dwordx4(v(ZR + 8 * j, 4), v(vzA), s(sZB, 2), mods=f"offset:{(kk % 4) * 1024} sc1")
            self.global_load_dwordx4(v(ZR + 8 * j + 4, 4), v(vzB), s(sZB, 2), mods=f"offset:{(kk % 4) * 1024} sc1")
            if kk % 4 == 3:
                self.v_add_u32(v(vzA), 4096, v(vzA)); self.v_add_u32(v(vzB), 4096, v(vzB))
        for j in range(8): zload(j, j)
        def body(last):
            for j in range(8):
                st = j & 1
                if not (last and j == 7): self.wread(st ^ 1, j + 1)
                self.wait(vm=(14 - 2 * j) if last else 14, lg=0 if (last and j == 7) else 4)
                for blk in range(2):
                    for T in range(2):
                        d = ACC + 32 * blk + 16 * T
                        self.v_mfma_f32_32x32x16_bf16(v(d, 16), v(WF + 8 * st + 4 * T, 4), v(ZR + 8 * j + 4 * blk, 4), v(d, 16))
                if not last: zload(j, j)
            if not last:
                self.v_add_u32(v(vw0), 8192, v(vw0)); self.v_add_u32(v(vw1), 8192, v(vw1))
        lp = self.newlabel("qkv")
        self.s_mov_b32(s(sU), 4)
        self.label(lp)
        body(False)
        self.s_sub_u32(s(sU), s(sU), 1); self.s_cmp_lg_u32(s(sU), 0); self.s_cbranch_scc1(lp)
        body(True)

    def epi_prep(self):
        vSA, vSB, vSC, vTR0, vTR1 = self.vSA, self.vSB, self.vSC, self.vTR0, self.vTR1
        self.s_lshl_b32(s(sT), s(sW), 11); self.s_add_u32(s(sT), s(sT), L_VS)
        self.v_and_b32(v(4), 31, v(vLANE)); self.v_bfe_u32(v(5), v(4), 1, 3)
        self.v_lshlrev_b32(v(4), 6, v(4)); self.v_add_u32(v(4), s(sT), v(4))
        self.v_lshrrev_b32(v(vSA), 5, v(vLANE)); self.v_xor_b32(v(vSA), v(vSA), v(5)); self.v_lshl_add_u32(v(vSA), v(vSA), 3, v(4))
        self.v_xor_b32(v(vSB), 16, v(vSA))
        self.v_xor_b32(v(vSC), 40, v(vSA))
        self.v_xor_b32(v(4), 48, v(vSA))
        self.v_mov_b32(v(88), "0x3f80"); self.v_mov_b32(v(89), 0)
        self.ds_write_b64(v(4), v(88, 2))
        self.v_bfe_u32(v(4), v(vLANE), 2, 2); self.v_lshrrev_b32(v(5), 5, v(vLANE)); self.v_lshl_add_u32(v(4), v(5), 2, v(4))
        self.v_bfe_u32(v(5), v(vLANE), 4, 1); self.v_lshlrev_b32(v(5), 2, v(5)); self.v_and_b32(v(vTR0), 3, v(vLANE)); self.v_add_u32(v(5), v(5), v(vTR0))
        self.v_lshrrev_b32(v(vTR0), 1, v(4)); self.v_xor_b32(v(5), v(5), v(vTR0)); self.v_lshlrev_b32(v(5), 3, v(5))
        self.v_lshl_add_u32(v(vTR0), v(4), 6, v(5)); self.v_add_u32(v(vTR0), s(sT), v(vTR0)); self.v_xor_b32(v(vTR1), 32, v(vTR0))
        for (k0, k1, vv, blk) in ((self.vKA, self.vK1A, self.vVA, 0), (self.vKB, self.vK1B, self.vVB, 1)):
            if blk == 0: self.s_mov_b32(s(sT + 1), s(sW))
            else: self.s_sub_u32(s(sT + 1), 7, s(sW))
            self.smul(sT + 2, sT + 1, 1536); self.s_add_u32(s(sT + 2), s(sT + 2), L_K)
            self.v_add_u32(v(k0), s(sT + 2), v(vL16)); self.s_add_u32(s(sT + 2), s(sT + 2), 1024); self.v_add_u32(v(k1), s(sT + 2), v(vL8))
            self.s_lshl_b32(s(sT + 2), s(sT + 1), 11); self.s_add_u32(s(sT + 2), s(sT + 2), L_V); self.v_add_u32(v(vv), s(sT + 2), v(vL16))
        self.s_mov_b32(s(sU + 14), f32(math.log2(math.e) / math.sqrt(20.0))); self.s_mov_b32(s(sU + 15), s(sU + 14))
    def epi_run(self):
        ACC = self.ACC
        sets = []
        for blk in range(2):
            A0 = ACC + 32 * blk; A1 = A0 + 16
            Q = self.QA if blk == 0 else self.QB
            PK = 96 + 24 * blk
            K0, K1, VV, VF = PK, PK + 4, PK + 6, PK + 12
            sets.append((K0, K1, VV, VF))
            self.pack(K1, A1 + 4, 2); self.pack(VV, A1 + 8, 4)
            self.ds_write_b64(v(self.vSC), v(K1, 2)); self.ds_write_b64(v(self.vSA), v(VV, 2)); self.ds_write_b64(v(self.vSB), v(VV + 2, 2))
            self.pack(K0, A0 + 8, 4)
            for m in range(4): self.ds_read_b64_tr_b16(v(VF + 2 * m, 2), v(self.vTR1 if m & 1 else self.vTR0), mods=f"offset:{512 * m}")
            k0, k1, vv = (self.vKA, self.vK1A, self.vVA) if blk == 0 else (self.vKB, self.vK1B, self.vVB)
            self.ds_write_b128(v(k0), v(K0, 4)); self.ds_write_b64(v(k1), v(K1, 2))
            self.global_store_dwordx4(v(k0), v(K0, 4), s(sHB, 2), mods="sc1")
            self.global_store_dwordx2(v(k1), v(K1, 2), s(sHB, 2), mods="sc1")
            for r in (0, 2, 4, 6): self.v_pk_mul_f32(v(A0 + r, 2), v(A0 + r, 2), s(sU + 14, 2))
            for r in (0, 2): self.v_pk_mul_f32(v(A1 + r, 2), v(A1 + r, 2), s(sU + 14, 2))
            self.pack(Q, A0, 4); self.pack(Q + 4, A1, 2)
            self.wait(lg=2)
            self.ds_write_b128(v(vv), v(VF, 4)); self.ds_write_b128(v(vv), v(VF + 4, 4), mods="offset:1024")
            self.global_store_dwordx4(v(vv), v(VF, 4), s(sHB, 2), mods="sc1")
            self.global_store_dwordx4(v(vv), v(VF + 4, 4), s(sHB, 2), mods="offset:1024 sc1")
        self.wait(lg=0); self.s_barrier()

    def mask_gen(self, far):
        self.v_and_b32(v(4), 31, v(vLANE)); self.v_lshrrev_b32(v(5), 5, v(vLANE)); self.v_lshlrev_b32(v(5), 2, v(5))
        self.v_sub_u32(v(4), v(4), v(5))
        self.v_mov_b32(v(5), f32(-1e30))
        for r in range(16):
            kk = 8 * (r >> 2) + (r & 3)
            self.v_cmp_le_i32(s(sU + 2 * (r & 3), 2), kk, v(4))
            if r >= 1:
                q = r - 1
                self._msel(q, far)
        self._msel(15, far)
    def _msel(self, r, far):
        if far: self.v_cndmask_b32(v(self.MSK + r), 0, v(5), s(sU + 2 * (r & 3), 2))
        else: self.v_cndmask_b32(v(self.MSK + r), v(5), 0, s(sU + 2 * (r & 3), 2))

    def halo_publish(self):
        lab = self.newlabel("hp"); l0, l1 = self.newlabel("hw"), self.newlabel("hw")
        self.s_cmp_lg_u32(s(sL), 0); self.s_cbranch_scc1(l0)
        self.wait(vm=self.N_C1); self.s_branch(l1)
        self.label(l0); self.wait(vm=0); self.label(l1)
        self.setexec(1)
        self.v_mov_b32(v(4), L_CNT); self.v_mov_b32(v(5), 1)
        self.ds_add_rtn_u32(v(5), v(4), v(5))
        self.wait(lg=0)
        self.v_readfirstlane_b32(s(sT), v(5))
        self.s_and_b32(s(sT), s(sT), 3); self.s_cmp_lg_u32(s(sT), 3); self.s_cbranch_scc1(lab)
        self.v_mov_b32(v(4), s(sHFO)); self.v_mov_b32(v(5), s(sHEXP))
        self.global_store_dword(v(4), v(5), s(sWS, 2), mods="sc1")
        self.label(lab)
        self.setexec(-1)

    CD, CE, CR, CDV = 96, 112, 120, 128
    CH_SZ = 24832
    def conv_srd(self):
        self.s_mov_b32(s(sSRD), s(sSK)); self.s_mov_b32(s(sSRD + 1), s(sSK + 1))
        self.s_mov_b32(s(sSRD + 2), 640 * 4096); self.s_mov_b32(s(sSRD + 3), "0x00020000")
    def conv1_issue(self):
        D, E, R = self.CD, self.CE, self.CR
        self.smul(sT, sG, 80); self.s_lshl_b32(s(sT + 1), s(sS), 1); self.s_add_u32(s(sT + 1), s(sT + 1), s(sT))
        self.s_lshr_b32(s(sT + 2), s(sW), 1); self.s_add_u32(s(sT + 1), s(sT + 1), s(sT + 2))
        self.s_lshl_b32(s(sT + 3), s(sT + 1), 12)
        self.conv_srd()
        self.v_and_b32(v(4), 127, v(vTID)); self.v_lshlrev_b32(v(4), 4, v(4))
        for i in range(2):
            self.buffer_load_dwordx4(v(D + 8 * i, 4), v(4), s(sSRD, 4), s(sT + 3), mods=f"offen offset:{2048 * i}")
            self.buffer_load_dwordx2(v(D + 8 * i + 4, 2), v(4), s(sSRD, 4), s(sT + 3), mods=f"offen offset:{2048 * i + 16}")
            self.buffer_load_dwordx4(v(E + 4 * i, 4), v(4), s(sSRD, 4), s(sT + 3), mods=f"offen offset:{2048 * i + 4}")
        self.s_add_u32(s(sT + 4), s(sT + 3), hex(OFF_R)); self.v_add_u32(v(5), s(sT + 4), v(4))
        self.global_load_dwordx4(v(R, 4), v(5), s(sWS, 2), mods="sc1")
        self.global_load_dwordx4(v(R + 4, 4), v(5), s(sWS, 2), mods="offset:2048 sc1")
        self.s_lshr_b32(s(sT + 4), s(sT + 1), 1); self.s_lshl_b32(s(sT + 4), s(sT + 4), 2); self.v_mov_b32(v(5), s(sT + 4))
        self.global_load_dword(v(self.CDV), v(5), s(sSD, 2))
        self.v_min_u32(v(5), 199, v(vTID)); self.v_lshlrev_b32(v(5), 7, v(5)); self.smul(sT + 4, sS, 25600); self.v_add_u32(v(5), s(sT + 4), v(5))
        self.global_load_dword(v(self.CDV + 1), v(5), s(sWO, 2))
    N_C1 = 10

    def conv_head(self, sbase, sch, first_wave_cond):
        D = self.CD
        self.v_readlane_b32(s(sT + 6), v(D), 0); self.v_readlane_b32(s(sT + 7), v(D + 1), 0)
        self.v_readfirstlane_b32(s(sT + 8), v(self.CDV))
        self.s_and_b32(s(sT + 9), s(sch), 1); self.s_lshl_b32(s(sT + 9), s(sT + 9), 4)
        self.s_lshr_b32(s(sT + 8), s(sT + 8), s(sT + 9)); self.s_lshl_b32(s(sT + 8), s(sT + 8), 16)
        self.s_lshl_b32(s(sT + 9), s(sT + 6), 16)
        self.v_mov_b32(v(16), s(sT + 8)); self.v_add_f32(v(16), s(sT + 9), v(16))
        self.v_cvt_pk_bf16_f32(v(16), v(16), v(16)); self.v_and_b32(v(16), "0xffff", v(16))
        self.s_and_b32(s(sT + 6), s(sT + 6), "0xffff0000"); self.v_or_b32(v(16), s(sT + 6), v(16))
        self.v_mov_b32(v(17), s(sT + 7))
        self.v_lshrrev_b32(v(18), 2, v(vLANE)); self.v_sub_u32(v(19), 3, v(18)); self.v_lshlrev_b32(v(19), 4, v(19)); self.v_and_b32(v(19), 63, v(19))
        self.v_lshlrev_b64(v(26, 2), v(19), v(16, 2))
        self.v_and_b32(v(19), 3, v(vLANE)); self.v_cmp_eq_u32("vcc", 3, v(19))
        self.v_mov_b32(v(24), 0); self.v_mov_b32(v(25), 0)
        self.v_cndmask_b32(v(26), 0, v(26), "vcc"); self.v_cndmask_b32(v(27), 0, v(27), "vcc")
        self.v_mul_u32_u24(v(18), 4160, v(18)); self.v_lshl_add_u32(v(18), v(19), 4, v(18)); self.v_add_u32(v(18), s(sbase), v(18))
        self.setexec(0xffff); self.ds_write_b128(v(18), v(24, 4)); self.setexec(-1)
    def conv_copies(self, vaddr, d, e, off):
        AL = 132
        for j in range(4): self.v_alignbit_b32(v(AL + j), v(d + j + 1), v(d + j), 16)
        for j in range(3): self.v_mov_b32(v(AL + 4 + j), v(AL + 1 + j))
        self.v_alignbit_b32(v(AL + 7), v(d + 5), v(d + 4), 16)
        self.ds_write_b128(v(vaddr), v(AL, 4), mods=f"offset:{off}")
        self.ds_write_b128(v(vaddr), v(e, 4), mods=f"offset:{off + 4160}")
        self.ds_write_b128(v(vaddr), v(AL + 4, 4), mods=f"offset:{off + 2 * 4160}")
        self.ds_write_b128(v(vaddr), v(d + 2, 4), mods=f"offset:{off + 3 * 4160}")
    def conv_addr(self, sbase, sstep0):
        self.v_and_b32(v(10), 3, v(vLANE)); self.v_mul_u32_u24(v(10), 4160, v(10))
        self.v_bfe_u32(v(11), v(vLANE), 2, 3); self.v_lshl_add_u32(v(10), v(11), 3, v(10))
        self.v_lshrrev_b32(v(11), 5, v(vLANE)); self.v_lshl_add_u32(v(10), v(11), 4, v(10))
        self.s_lshl_b32(s(sT + 6), s(sstep0), 5); self.s_add_u32(s(sT + 6), s(sT + 6), s(sbase)); self.v_add_u32(v(8), s(sT + 6), v(10))
        self.v_and_b32(v(10), 31, v(vLANE)); self.v_sub_u32(v(10), 31, v(10)); self.v_mul_u32_u24(v(10), 5, v(10))
        self.v_add_u32(v(10), v(10), v(11)); self.v_lshlrev_b32(v(10), 4, v(10))
        self.smul(sT + 6, sstep0, 40); self.s_add_u32(s(sT + 6), s(sT + 6), s(sbase)); self.s_add_u32(s(sT + 6), s(sT + 6), 16640)
        self.v_add_u32(v(9), s(sT + 6), v(10))

    def conv1_run(self):
        D, E, R = self.CD, self.CE, self.CR
        sB, sCHN, sHW = sU + 2, sU + 1, sU + 5
        self.s_lshr_b32(s(sU), s(sW), 1); self.smul(sB, sU, self.CH_SZ); self.s_add_u32(s(sB), s(sB), L_K)
        self.smul(sT, sG, 80); self.s_lshl_b32(s(sCHN), s(sS), 1); self.s_add_u32(s(sCHN), s(sCHN), s(sT)); self.s_add_u32(s(sCHN), s(sCHN), s(sU))
        self.s_and_b32(s(sHW), s(sW), 1)
        self.v_and_b32(v(8), 127, v(vTID)); self.v_lshlrev_b32(v(9), 4, v(8))
        self.v_add_u32(v(11), s(sB), v(9))
        self.ds_write_b128(v(11), v(vZERO, 4), mods=f"offset:{16640 + 320 * 16}")
        self.v_and_b32(v(16), 63, v(8)); self.v_lshlrev_b32(v(16), 4, v(16)); self.v_add_u32(v(16), s(sB), v(16))
        self.ds_write_b128(v(16), v(vZERO, 4), mods=f"offset:{16640 + 448 * 16}")
        self.v_add_u32(v(11), 64, v(11))
        self.v_lshrrev_b32(v(12), 2, v(8)); self.v_add_u32(v(12), v(12), v(8)); self.v_lshlrev_b32(v(12), 4, v(12)); self.v_add_u32(v(12), s(sB), v(12))
        self.wait(vm=1)
        for i in range(2): self.conv_copies(11, D + 8 * i, E + 4 * i, 2048 * i)
        self.ds_write_b128(v(12), v(R, 4), mods="offset:16640"); self.ds_write_b128(v(12), v(R + 4, 4), mods=f"offset:{16640 + 160 * 16}")
        lab = self.newlabel("hd")
        self.s_cmp_lg_u32(s(sHW), 0); self.s_cbranch_scc1(lab)
        self.conv_head(sB, sCHN, None)
        self.label(lab)
        LO, HI, F = 16, 32, 96
        self.s_lshl_b32(s(sT + 5), s(sHW), 5)
        self.conv_addr(sB, sT + 5)
        self.wait(lg=0); self.s_barrier()
        self.zero16(LO); self.zero16(HI)
        def reads(st, par, extra):
            f = F + 16 * st
            oa, ob = 32 * par + extra * 64, 32 * par + extra * 80
            self.ds_read_b64(v(f, 2), v(8), mods=f"offset:{oa}"); self.ds_read_b64(v(f + 2, 2), v(8), mods=f"offset:{oa + 8}")
            self.ds_read_b128(v(f + 8, 4), v(9), mods=f"offset:{ob + 2560}")
            self.ds_read_b128(v(f + 12, 4), v(9), mods=f"offset:{ob}")
            self.ds_read_b64(v(f + 4, 2), v(8), mods=f"offset:{oa + 2048}"); self.ds_read_b64(v(f + 6, 2), v(8), mods=f"offset:{oa + 2056}")
        def mm(st):
            f = F + 16 * st
            self.v_mfma_f32_32x32x16_bf16(v(LO, 16), v(f, 4), v(f + 8, 4), v(LO, 16))
            self.v_mfma_f32_32x32x16_bf16(v(HI, 16), v(f, 4), v(f + 12, 4), v(HI, 16))
            self.v_mfma_f32_32x32x16_bf16(v(HI, 16), v(f + 4, 4), v(f + 8, 4), v(HI, 16))
        reads(0, 0, 0)
        lp = self.newlabel("cv")
        self.s_mov_b32(s(sT + 6), 16)
        self.label(lp)
        reads(1, 1, 0); self.wait(lg=6); mm(0)
        reads(0, 0, 1); self.wait(lg=6); mm(1)
        self.v_add_u32(v(8), 64, v(8)); self.v_add_u32(v(9), 80, v(9))
        self.s_sub_u32(s(sT + 6), s(sT + 6), 1); self.s_cmp_lg_u32(s(sT + 6), 0); self.s_cbranch_scc1(lp)
        self.s_lshl_b32(s(sT + 6), s(sHW), 12); self.s_add_u32(s(sT + 6), s(sT + 6), s(sB)); self.v_add_u32(v(10), s(sT + 6), v(vL16))
        self.s_xor_b32(s(sT + 7), s(sHW), 1); self.s_lshl_b32(s(sT + 7), s(sT + 7), 12); self.s_add_u32(s(sT + 7), s(sT + 7), s(sB))
        self.v_add_u32(v(11), s(sT + 7), v(vL16))
        self.wait(lg=0); self.s_barrier()
        l1, l2 = self.newlabel("cx"), self.newlabel("cy")
        self.s_cmp_lg_u32(s(sHW), 0); self.s_cbranch_scc1(l1)
        for j in range(4): self.ds_write_b128(v(10), v(HI + 4 * j, 4), mods=f"offset:{1024 * j}")
        self.s_branch(l2)
        self.label(l1)
        for j in range(4): self.ds_write_b128(v(10), v(LO + 4 * j, 4), mods=f"offset:{1024 * j}")
        for r in range(16): self.v_mov_b32(v(LO + r), v(HI + r))
        self.label(l2)
        self.s_lshl_b32(s(sT + 6), s(sHW), 11); self.s_add_u32(s(sT + 6), s(sT + 6), s(sB)); self.s_add_u32(s(sT + 6), s(sT + 6), 8192)
        self.v_and_b32(v(12), 31, v(vLANE)); self.v_lshlrev_b32(v(12), 6, v(12))
        self.v_lshrrev_b32(v(13), 5, v(vLANE)); self.v_lshl_add_u32(v(12), v(13), 3, v(12)); self.v_add_u32(v(12), s(sT + 6), v(12))
        self.v_add_u32(v(13), s(sT + 6), v(vL16))
        self.wait(lg=0); self.s_barrier()
        for j in range(4): self.ds_read_b128(v(F + 4 * j, 4), v(11), mods=f"offset:{1024 * j}")
        for j in range(4):
            self.wait(lg=3 - j)
            for r in (0, 2): self.v_pk_add_f32(v(LO + 4 * j + r, 2), v(LO + 4 * j + r, 2), v(F + 4 * j + r, 2))
            self.pack(F + 16 + 2 * j, LO + 4 * j, 2)
            self.ds_write_b64(v(12), v(F + 16 + 2 * j, 2), mods=f"offset:{16 * j}") if False else None
        for j in range(4): self.ds_write_b64(v(12), v(F + 16 + 2 * j, 2), mods=f"offset:{16 * j}")
        self.s_lshl_b32(s(sT + 6), s(sHW), 11); self.s_lshl_b32(s(sT + 7), s(sCHN), 12); self.s_add_u32(s(sT + 6), s(sT + 6), s(sT + 7))
        self.s_add_u32(s(sT + 6), s(sT + 6), hex(OFF_Y)); self.v_add_u32(v(10), s(sT + 6), v(vL16))
        self.ds_read_b128(v(LO, 4), v(13)); self.ds_read_b128(v(LO + 4, 4), v(13), mods="offset:1024")
        self.wait(lg=0)
        self.global_store_dwordx4(v(10), v(LO, 4), s(sWS, 2), mods="sc1")
        self.global_store_dwordx4(v(10), v(LO + 4, 4), s(sWS, 2), mods="offset:1024 sc1")
        self.s_barrier()

    def conv2_issue(self):
        D, E, R = self.CD, self.CE, self.CR
        self.smul(sT, sG, 80); self.s_lshr_b32(s(sT + 1), s(sS), 1); self.s_add_u32(s(sT + 1), s(sT + 1), s(sT)); self.s_add_u32(s(sT + 1), s(sT + 1), 64)
        self.s_lshl_b32(s(sT + 3), s(sT + 1), 12)
        self.conv_srd()
        self.v_lshlrev_b32(v(4), 4, v(vTID))
        self.buffer_load_dwordx4(v(D, 4), v(4), s(sSRD, 4), s(sT + 3), mods="offen")
        self.buffer_load_dwordx2(v(D + 4, 2), v(4), s(sSRD, 4), s(sT + 3), mods="offen offset:16")
        self.buffer_load_dwordx4(v(E, 4), v(4), s(sSRD, 4), s(sT + 3), mods="offen offset:4")
        self.s_add_u32(s(sT + 4), s(sT + 3), hex(OFF_R)); self.v_add_u32(v(5), s(sT + 4), v(4))
        self.global_load_dwordx4(v(R, 4), v(5), s(sWS, 2), mods="sc1")
        self.s_lshr_b32(s(sT + 4), s(sT + 1), 1); self.s_lshl_b32(s(sT + 4), s(sT + 4), 2); self.v_mov_b32(v(5), s(sT + 4))
        self.global_load_dword(v(self.CDV), v(5), s(sSD, 2))
    def conv2_run(self):
        D, E, R = self.CD, self.CE, self.CR
        sB, sCHN, sPART = sU + 2, sU + 1, sU + 5
        self.s_mov_b32(s(sB), L_K)
        self.smul(sT, sG, 80); self.s_lshr_b32(s(sCHN), s(sS), 1); self.s_add_u32(s(sCHN), s(sCHN), s(sT)); self.s_add_u32(s(sCHN), s(sCHN), 64)
        self.s_and_b32(s(sPART), s(sS), 1)
        self.v_lshlrev_b32(v(9), 4, v(vTID)); self.v_add_u32(v(11), L_K, v(9))
        self.v_min_u32(v(16), 191, v(vTID)); self.v_lshlrev_b32(v(16), 4, v(16)); self.v_add_u32(v(16), L_K, v(16))
        self.ds_write_b128(v(16), v(vZERO, 4), mods=f"offset:{16640 + 320 * 16}")
        self.v_add_u32(v(11), 64, v(11))
        self.v_lshrrev_b32(v(12), 2, v(vTID)); self.v_add_u32(v(12), v(12), v(vTID)); self.v_lshlrev_b32(v(12), 4, v(12)); self.v_add_u32(v(12), L_K, v(12))
        self.wait(vm=0)
        self.conv_copies(11, D, E, 0)
        self.ds_write_b128(v(12), v(R, 4), mods="offset:16640")
        lab = self.newlabel("hd")
        self.s_cmp_lg_u32(s(sW), 0); self.s_cbranch_scc1(lab)
        self.conv_head(sB, sCHN, None)
        self.label(lab)
        AC, F = 16, 96
        self.s_lshl_b32(s(sT + 5), s(sW), 4)
        self.conv_addr(sB, sT + 5)
        self.wait(lg=0); self.s_barrier()
        self.zero16(AC)
        def reads(st, par, extra, hi):
            f = F + 16 * st
            oa, ob = 32 * par + extra * 64, 32 * par + extra * 80
            self.ds_read_b64(v(f, 2), v(8), mods=f"offset:{oa}"); self.ds_read_b64(v(f + 2, 2), v(8), mods=f"offset:{oa + 8}")
            self.ds_read_b128(v(f + 8, 4), v(9), mods=f"offset:{ob + 2560}")
            if hi:
                self.ds_read_b128(v(f + 12, 4), v(9), mods=f"offset:{ob}")
                self.ds_read_b64(v(f + 4, 2), v(8), mods=f"offset:{oa + 2048}"); self.ds_read_b64(v(f + 6, 2), v(8), mods=f"offset:{oa + 2056}")
        def mm(st, hi):
            f = F + 16 * st
            if hi:
                self.v_mfma_f32_32x32x16_bf16(v(AC, 16), v(f, 4), v(f + 12, 4), v(AC, 16))
                self.v_mfma_f32_32x32x16_bf16(v(AC, 16), v(f + 4, 4), v(f + 8, 4), v(AC, 16))
            else:
                self.v_mfma_f32_32x32x16_bf16(v(AC, 16), v(f, 4), v(f + 8, 4), v(AC, 16))
        lhi, ldone = self.newlabel("c2hi"), self.newlabel("c2d")
        self.s_mov_b32(s(sT + 6), 8)
        self.s_cmp_lg_u32(s(sPART), 0); self.s_cbranch_scc1(lhi)
        for hi in (0, 1):
            if hi: self.label(lhi)
            n = 6 if hi else 3
            reads(0, 0, 0, hi)
            lp = self.newlabel("cv")
            self.label(lp)
            reads(1, 1, 0, hi); self.wait(lg=n); mm(0, hi)
            reads(0, 0, 1, hi); self.wait(lg=n); mm(1, hi)
            self.v_add_u32(v(8), 64, v(8)); self.v_add_u32(v(9), 80, v(9))
            self.s_sub_u32(s(sT + 6), s(sT + 6), 1); self.s_cmp_lg_u32(s(sT + 6), 0); self.s_cbranch_scc1(lp)
            if not hi: self.s_branch(ldone)
        self.label(ldone)
        self.s_lshl_b32(s(sT + 6), s(sW), 12); self.s_add_u32(s(sT + 6), s(sT + 6), L_K); self.v_add_u32(v(10), s(sT + 6), v(vL16))
        self.s_lshl_b32(s(sT + 6), s(sW), 10); self.s_add_u32(s(sT + 6), s(sT + 6), L_K); self.v_add_u32(v(11), s(sT + 6), v(vL16))
        self.wait(lg=0); self.s_barrier()
        for j in range(4): self.ds_write_b128(v(10), v(AC + 4 * j, 4), mods=f"offset:{1024 * j}")
        self.v_and_b32(v(12), 31, v(vLANE)); self.v_lshlrev_b32(v(12), 6, v(12))
        self.v_lshrrev_b32(v(13), 5, v(vLANE)); self.v_lshl_add_u32(v(12), v(13), 3, v(12))
        self.s_lshl_b32(s(sT + 6), s(sW), 4); self.s_add_u32(s(sT + 6), s(sT + 6), L_K + 16384); self.v_add_u32(v(12), s(sT + 6), v(12))
        self.wait(lg=0); self.s_barrier()
        for j in range(4): self.ds_read_b128(v(F + 4 * j, 4), v(11), mods=f"offset:{4096 * j}")
        self.wait(lg=0)
        for r in (0, 2):
            self.v_pk_add_f32(v(F + r, 2), v(F + r, 2), v(F + 4 + r, 2)); self.v_pk_add_f32(v(F + 8 + r, 2), v(F + 8 + r, 2), v(F + 12 + r, 2))
        for r in (0, 2): self.v_pk_add_f32(v(F + r, 2), v(F + r, 2), v(F + 8 + r, 2))
        self.pack(F + 16, F, 2)
        self.ds_write_b64(v(12), v(F + 16, 2))
        self.v_lshlrev_b32(v(13), 4, v(vTID)); self.v_add_u32(v(10), L_K + 16384, v(13))
        self.s_lshl_b32(s(sT + 6), s(sPART), 11); self.s_lshl_b32(s(sT + 7), s(sCHN), 12); self.s_add_u32(s(sT + 6), s(sT + 6), s(sT + 7))
        self.s_add_u32(s(sT + 6), s(sT + 6), hex(OFF_Y)); self.v_add_u32(v(13), s(sT + 6), v(13))
        self.wait(lg=0); self.s_barrier()
        lab = self.newlabel("c2s")
        self.s_cmp_ge_u32(s(sW), 2); self.s_cbranch_scc1(lab)
        self.ds_read_b128(v(16, 4), v(10))
        self.wait(lg=0)
        self.global_store_dwordx4(v(13), v(16, 4), s(sWS, 2), mods="sc1")
        self.label(lab)

    def attn_local(self):
        sKb, sVb, sN, sMI = sU + 6, sU + 7, sU + 8, sU + 9
        self.s_mov_b32(s(sKb), L_K); self.s_mov_b32(s(sVb), L_V)
        self.s_sub_u32(s(sN), 8, s(sW)); self.s_sub_u32(s(sMI), 7, s(sW))
        self.attn_seq(self.QB, self.OB, sKb, sVb, sN, sMI)
        self.halo_publish()
        self.s_add_u32(s(sN), s(sW), 1); self.s_mov_b32(s(sMI), s(sW))
        self.attn_seq(self.QA, self.OA, sKb, sVb, sN, sMI)

    def halo_prep(self):
        self.mask_gen(True)
        self.smul(sT, sW, 7168); self.v_add_u32(v(8), s(sT), v(vL16)); self.v_add_u32(v(10), 4096, v(8)); self.v_add_u32(v(9), L_HK, v(8))
        self.v_mov_b32(v(11), s(sHFI))
    def halo_fetch(self):
        self.s_mov_b64(s(sT + 2, 2), -1)
        self.poll2(sWS, 11, sHEXP, sT + 2)
        R = 96
        for j in range(7):
            self.global_load_dwordx4(v(R + 4 * j, 4), v(8 if j < 4 else 10), s(sHP, 2), mods=f"offset:{(j % 4) * 1024} sc1")
        for j in range(7):
            self.wait(vm=6 - j)
            self.ds_write_b128(v(9), v(R + 4 * j, 4), mods=f"offset:{j * 1024}")
        self.wait(lg=0); self.s_barrier()

    def attn_halo(self):
        sKb, sVb, sN, sMI = sU + 6, sU + 7, sU + 8, sU + 9
        self.s_mov_b32(s(sMI), 0)
        self.smul(sKb, sW, 1536); self.s_add_u32(s(sKb), s(sKb), L_HK)
        self.s_lshl_b32(s(sVb), s(sW), 11); self.s_add_u32(s(sVb), s(sVb), L_HV)
        self.s_sub_u32(s(sN), 8, s(sW))
        self.attn_seq(self.QA, self.OA, sKb, sVb, sN, sMI)
        self.s_sub_u32(s(sT), 7, s(sW))
        self.smul(sKb, sT, 1536); self.s_add_u32(s(sKb), s(sKb), L_HK)
        self.s_lshl_b32(s(sVb), s(sT), 11); self.s_add_u32(s(sVb), s(sVb), L_HV)
        self.s_add_u32(s(sN), s(sW), 1)
        self.attn_seq(self.QB, self.OB, sKb, sVb, sN, sMI)

    vOA = 160
    def o_prep(self):
        self.s_lshr_b32(s(sT), s(sS), 4); self.smul(sT, sT, 10); self.s_and_b32(s(sT + 1), s(sS), 15)
        self.s_lshr_b32(s(sT + 2), s(sT + 1), 1); self.s_add_u32(s(sT + 2), s(sT + 2), s(sT)); self.s_lshl_b32(s(sT + 2), s(sT + 2), 10)
        self.s_and_b32(s(sT + 3), s(sT + 1), 1); self.s_lshl_b32(s(sT + 4), s(sT + 3), 9); self.s_add_u32(s(sT + 2), s(sT + 2), s(sT + 4))
        self.s_lshr_b32(s(sT + 4), s(sT + 1), 3); self.s_add_u32(s(sT + 4), s(sT + 4), s(sT)); self.s_add_u32(s(sT + 4), s(sT + 4), 8)
        self.s_lshl_b32(s(sT + 4), s(sT + 4), 10)
        self.s_bfe_u32(s(sT + 5), s(sT + 1), (2 << 16) | 1); self.s_lshl_b32(s(sT + 5), s(sT + 5), 8); self.s_add_u32(s(sT + 4), s(sT + 4), s(sT + 5))
        self.s_lshl_b32(s(sT + 3), s(sT + 3), 3); self.s_add_u32(s(sT + 4), s(sT + 4), s(sT + 3))
        self.v_bfe_u32(v(4), v(vLANE), 4, 1); self.v_mul_u32_u24(v(4), 20480, v(4))
        self.v_and_b32(v(5), 15, v(vLANE)); self.v_lshl_add_u32(v(4), v(5), 4, v(4))
        self.v_lshrrev_b32(v(5), 5, v(vLANE)); self.v_lshl_add_u32(v(5), v(5), 8, v(4))
        for blk in range(2):
            if blk == 0: self.s_mov_b32(s(sT + 6), s(sW))
            else: self.s_sub_u32(s(sT + 6), 7, s(sW))
            self.smul(sT + 6, sT + 6, 40960)
            self.s_add_u32(s(sT + 7), s(sT + 6), s(sT + 2)); self.s_add_u32(s(sT + 6), s(sT + 6), s(sT + 4))
            self.v_add_u32(v(self.vOA + 2 * blk), s(sT + 7), v(5)); self.v_add_u32(v(self.vOA + 2 * blk + 1), s(sT + 6), v(4))
    def o_store(self):
        lst = []
        self.v_rcp_f32(v(8), v(self.OA + 12)); self.v_rcp_f32(v(10), v(self.OB + 12))
        self.v_mov_b32(v(9), v(8)); self.v_mov_b32(v(11), v(10))
        for blk, O in ((0, self.OA), (1, self.OB)):
            for r in range(0, 12, 2): self.v_pk_mul_f32(v(O + r, 2), v(O + r, 2), v(8 + 2 * blk, 2))
            P = 48 + 8 * blk
            self.pack(P, O, 6)
            va = self.vOA + 2 * blk
            lst += [self.store(16, v(va), v(P, 4), s(sOB, 2)), ("exec", 0xffffffff), self.store(8, v(va + 1), v(P + 4, 2), s(sOB, 2)), ("exec", -1)]
        self.stores(lst)

    def prestore(self):
        lst = []
        for blk in range(2):
            va = self.vOA + 2 * blk
            lst += [self.store(16, v(va), v(vZERO, 4), s(sOB, 2)), ("exec", 0xffffffff), self.store(8, v(va + 1), v(vZERO, 2), s(sOB, 2)), ("exec", -1)]
        self.op_prep()
        lst += [self.store(16, v(12), v(vZERO, 4), s(sAB, 2)), self.store(16, v(12), v(vZERO, 4), s(sAB, 2), 512),
                ("exec", 0x0000ffff0000ffff), self.store(16, v(12), v(vZERO, 4), s(sAB, 2), 1024), ("exec", -1)]
        self.stores(lst)

    def op_prep(self):
        self.s_lshr_b32(s(sU), s(sS), 3); self.s_lshl_b32(s(sU), s(sU), 2)
        self.s_and_b32(s(sU + 1), s(sW), 1); self.s_lshl_b32(s(sU + 1), s(sU + 1), 1); self.s_add_u32(s(sU), s(sU), s(sU + 1))
        self.s_lshr_b32(s(sU + 1), s(sW), 1)
        self.s_add_u32(s(sU + 2), s(sU), s(sU + 1)); self.s_xor_b32(s(sU + 3), s(sU + 2), 1)
        self.smul(sU + 4, sU + 1, 10240)
        for j, sr in ((0, sU + 2), (1, sU + 3)):
            self.smul(sU + 5, sr, 20480); self.s_add_u32(s(sU + 5), s(sU + 5), s(sU + 4))
            self.v_add_u32(v(8 + j), s(sU + 5), v(vL16))
        self.smul(sU + 5, sW, 5120); self.s_add_u32(s(sU + 5), s(sU + 5), L_K); self.v_add_u32(v(10), s(sU + 5), v(vL16))
        self.s_xor_b32(s(sU + 5), s(sW), 2); self.smul(sU + 5, sU + 5, 5120); self.s_add_u32(s(sU + 5), s(sU + 5), L_K)
        self.v_add_u32(v(11), s(sU + 5), v(vL16))
        self.s_lshl_b32(s(sU + 5), s(sU + 2), 1); self.smul(sU + 5, sU + 5, 10240)
        self.s_and_b32(s(sU + 6), s(sS), 7); self.smul(sU + 6, sU + 6, 1280); self.s_add_u32(s(sU + 5), s(sU + 5), s(sU + 6))
        self.v_bfe_u32(v(12), v(vLANE), 3, 1); self.v_mul_u32_u24(v(12), 10240, v(12))
        self.v_and_b32(v(13), 7, v(vLANE)); self.v_lshl_add_u32(v(12), v(13), 4, v(12))
        self.v_bfe_u32(v(13), v(vLANE), 4, 1); self.v_lshl_add_u32(v(12), v(13), 8, v(12))
        self.v_lshrrev_b32(v(13), 5, v(vLANE)); self.v_lshl_add_u32(v(12), v(13), 7, v(12))
        self.v_add_u32(v(12), s(sU + 5), v(12))
        self.v_mov_b32(v(66), 0); self.v_mov_b32(v(67), 0)
    def op_run(self):
        OF, AC, P = 96, 16, 56
        for kl in range(10):
            for j in range(2):
                self.global_load_dwordx4(v(OF + 8 * kl + 4 * j, 4), v(8 + j), s(sOB, 2), mods=f"offset:{(kl % 4) * 1024} sc1")
            if kl % 4 == 3:
                self.v_add_u32(v(8), 4096, v(8)); self.v_add_u32(v(9), 4096, v(9))
        for kl in range(10):
            self.wait(vm=18 - 2 * kl)
            for j in (1, 0):
                for ct in range(5):
                    d = AC + 20 * j + 4 * ct
                    self.v_mfma_f32_16x16x32_bf16(v(d, 4), a((kl * 5 + ct) * 4, 4), v(OF + 8 * kl + 4 * j, 4), v(d, 4) if kl else 0)
        for ct in range(5): self.ds_write_b128(v(10), v(AC + 20 + 4 * ct, 4), mods=f"offset:{1024 * ct}")
        self.wait(lg=0); self.s_barrier()
        for ct in range(5): self.ds_read_b128(v(OF + 4 * ct, 4), v(11), mods=f"offset:{1024 * ct}")
        for ct in range(5):
            self.wait(lg=4 - ct)
            for r in (0, 2): self.v_pk_add_f32(v(AC + 4 * ct + r, 2), v(AC + 4 * ct + r, 2), v(OF + 4 * ct + r, 2))
            self.pack(P + 2 * ct, AC + 4 * ct, 2)
        for q in range(3):
            self.v_permlane16_swap_b32(v(P + 4 * q), v(P + 4 * q + 2)); self.v_permlane16_swap_b32(v(P + 4 * q + 1), v(P + 4 * q + 3))
        self.stores([self.store(16, v(12), v(P, 4), s(sAB, 2)), self.store(16, v(12), v(P + 4, 4), s(sAB, 2), 512),
                     ("exec", 0x0000ffff0000ffff), self.store(16, v(12), v(P + 8, 4), s(sAB, 2), 1024), ("exec", -1)])

    XF, AF, AP, UU, ST, YF = 16, 64, 96, 112, 40, 136
    def p4_prep(self):
        AP = self.AP
        self.smul(sU, sS, 10240); self.s_lshl_b32(s(sU + 1), s(sW), 5); self.s_add_u32(s(sU), s(sU), s(sU + 1))
        self.v_lshrrev_b32(v(8), 1, v(vLANE)); self.v_lshlrev_b32(v(8), 7, v(8))
        self.v_and_b32(v(9), 1, v(vLANE)); self.v_lshl_add_u32(v(8), v(9), 4, v(8)); self.v_add_u32(v(8), s(sU), v(8))
        self.v_add_u32(v(9), 4096, v(8)); self.v_add_u32(v(10), 8192, v(8))
        for j in range(8, 12): self.v_mov_b32(v(AP + j), 0)
        self.unpack(self.XF, vX, 12)
        self.unpack(self.YF, vY, 12)
    def p4_run(self):
        XF, AF, AP, UU, ST, YF = self.XF, self.AF, self.AP, self.UU, self.ST, self.YF
        self.global_load_dwordx4(v(AP, 4), v(8), s(sAB, 2), mods="sc1")
        self.global_load_dwordx4(v(AP + 4, 4), v(9), s(sAB, 2), mods="sc1")
        self.setexec(0xffffffff)
        self.global_load_dwordx4(v(AP + 8, 4), v(10), s(sAB, 2), mods="sc1")
        self.setexec(-1)
        for m in range(3):
            self.wait(vm=2 - m)
            self.unpack(AF + 8 * m, AP + 4 * m, 4)
            for j in range(4 * m, 4 * m + 4): self.v_pk_add_f32(v(XF + 2 * j, 2), v(XF + 2 * j, 2), v(AF + 2 * j, 2))
        self.ln_stats(XF, ST)
        for j in range(12): self.v_pk_fma_f32(v(UU + 2 * j, 2), v(XF + 2 * j, 2), v(ST, 2), v(ST + 2, 2))
        for j in range(12): self.v_pk_fma_f32(v(XF + 2 * j, 2), v(UU + 2 * j, 2), v(YF + 2 * j, 2), v(XF + 2 * j, 2))
    def p4_z(self):
        XF, ST = self.XF, self.ST
        self.ln_stats(XF, ST)
        for j in range(12): self.v_pk_fma_f32(v(self.UU + 2 * j, 2), v(XF + 2 * j, 2), v(ST, 2), v(ST + 2, 2))
        self.pack(56, self.UU, 12)

    def y_wait2(self):
        self.v_lshlrev_b32(v(8), 7, v(vTID)); self.v_add_u32(v(8), OFF_YFL, v(8))
        self.s_add_u32(s(sT + 1), s(sTOK), 32); self.s_mov_b64(s(sT + 2, 2), -1)
        self.poll2(sWS, 8, sT + 1, sT + 2)
        self.s_barrier()
        lab = self.newlabel("nu")
        self.s_cmp_lg_u32(s(2), 0); self.s_cbranch_scc1(lab)
        self.s_cmp_lg_u32(s(sW), 0); self.s_cbranch_scc1(lab)
        self.v_mov_b32(v(8), OFF_N); self.v_mov_b32(v(9), s(sTOK))
        self.setexec(1); self.global_store_dword(v(8), v(9), s(sWS, 2), mods="sc1"); self.setexec(-1)
        self.label(lab)

    def build(self):
        self.setup2()
        self.issue_x()
        self.code_prefetch()
        self.c0_issue()
        self.w_addr()
        self.w_issue(0, 16)
        self.stamp("w1iss")
        for r in range(4): self.v_mov_b32(v(vZERO + r), 0)
        self.v_and_b32(v(vPL), 31, v(vLANE)); self.v_lshlrev_b32(v(vPL), 7, v(vPL))
        self.s_lshl_b32(s(sT), s(sS), 7); self.v_mov_b32(v(vSO), s(sT))
        self.v_mov_b32(v(4), L_CNT); self.ds_write_b32(v(4), v(vZERO))
        self.z_addr(8)
        self.wait(vm=23)
        self.p0_ln()
        self.wait(lg=0)
        self.s_add_u32(s(sTOK), s(sTOK), hex(NONCE_C))
        self.layer_bases2()
        self.stores_sc1(self.z_store_list(56, sZB, 8))
        self.stamp("z0st")
        self.wait(vm=16 + 3)
        self.c0_compute()
        lab = self.newlabel("xp")
        self.s_cmp_lg_u32(s(sW), 0); self.s_cbranch_scc1(lab)
        self.s_lshl_b32(s(sT), s(sG), 5); self.s_add_u32(s(sT), s(sT), s(sS)); self.s_lshl_b32(s(sT), s(sT), 7); self.s_add_u32(s(sT), s(sT), hex(OFF_XCC))
        self.s_add_u32(s(sT + 1), s(sTOK), s(sXCC)); self.s_add_u32(s(sT + 1), s(sT + 1), 64)
        self.v_mov_b32(v(4), s(sT)); self.v_mov_b32(v(5), s(sT + 1))
        self.setexec(1); self.global_store_dword(v(4), v(5), s(sWS, 2), mods="sc1"); self.setexec(-1)
        self.label(lab)
        self.stamp("c0")
        self.w_issue(16, 32)
        self.stamp("w2iss")
        self.wait(vm=16); self.s_barrier()
        lab = self.newlabel("f0")
        self.s_cmp_lg_u32(s(sW), 0); self.s_cbranch_scc1(lab)
        self.v_mov_b32(v(4), s(sEXP)); self.s_add_u32(s(sT), s(sTOK), 7); self.v_mov_b32(v(5), s(sT))
        self.s_add_u32(s(sT), s(sFZ), 6 * 8 * 4096); self.s_addc_u32(s(sT + 1), s(sFZ + 1), 0)
        self.setexec(1)
        self.global_store_dword(v(vSO), v(4), s(sFZ, 2), mods="sc1"); self.global_store_dword(v(vSO), v(5), s(sT, 2), mods="sc1")
        self.setexec(-1)
        self.label(lab)
        self.w_lds(0, 16)
        self.w_zero()
        self.s_lshl_b32(s(sT + 4), s(sW), 2); self.lanemask(sM0, s(sT + 4), 4)
        self.s_sub_u32(s(sT + 4), 28, s(sT + 4)); self.lanemask(sMZ, s(sT + 4), 4); self.s_or_b64(s(sMZ, 2), s(sMZ, 2), s(sM0, 2))
        self.s_lshr_b32(s(sT + 4), s(sW), 1); self.s_lshl_b32(s(sT + 4), s(sT + 4), 4); self.lanemask(sMO, s(sT + 4), 16)
        self.s_lshr_b32(s(sT + 4), s(sS), 3); self.s_lshl_b32(s(sT + 4), s(sT + 4), 3); self.lanemask(sMA, s(sT + 4), 8)
        self.epi_prep()
        self.stamp("prep")
        self.wait(vm=0)
        self.w_lds(16, 32)
        self.mask_gen(False)
        self.mode_wait()
        self.s_add_u32(s(sT), s(sFZ), 6 * 8 * 4096); self.s_addc_u32(s(sT + 1), s(sFZ + 1), 0)
        self.s_add_u32(s(sT + 2), s(sTOK), 7); self.s_mov_b32(s(sM1), -1); self.s_mov_b32(s(sM1 + 1), 0)
        self.poll2(sT, vPL, sT + 2, sM1)
        self.wait(lg=0); self.s_barrier()
        self.stamp("wlds")
        self.qkv_prep()
        self.s_branch("L_ZWAIT")
        self.label("L_LAYER")
        self.layer_bases2()
        self.epi_prep(); self.mask_gen(False)
        self.qkv_prep()
        self.label("L_ZWAIT")
        self.poll2(sFZ, vPL, sEXP, sMZ)
        self.stamp("zwait")
        self.qkv_run()
        self.stamp("qkv")
        self.epi_run()
        self.stamp("epi")
        lab = self.newlabel("aux0")
        self.s_cmp_lg_u32(s(sL), 0); self.s_cbranch_scc1(lab)
        self.conv1_issue()
        self.label(lab)
        self.attn_local()
        self.stamp("local")
        self.o_prep()
        lab = self.newlabel("aux1")
        self.s_cmp_lg_u32(s(sL), 0); self.s_cbranch_scc1(lab)
        self.s_barrier()
        self.conv1_run()
        self.stamp("conv1")
        self.prestore()
        self.wo_load()
        self.stamp("wo")
        self.label(lab)
        nohalo = self.newlabel("nohalo")
        self.s_cmp_eq_u32(s(sG), 0); self.s_cbranch_scc1(nohalo)
        self.halo_prep()
        self.halo_fetch()
        self.stamp("halof")
        self.attn_halo()
        self.label(nohalo)
        self.stamp("halo")
        self.o_store()
        lab = self.newlabel("aux1b")
        self.s_add_u32(s(sT), s(sEXP), 1); self.v_mov_b32(v(5), s(sT))
        self.signal2(sFO, 5)
        self.s_cmp_lg_u32(s(sL), 0); self.s_cbranch_scc1(lab)
        self.conv2_issue()
        self.label(lab)
        self.stamp("osig")
        lab = self.newlabel("aux2")
        self.s_cmp_lg_u32(s(sL), 0); self.s_cbranch_scc1(lab)
        self.conv2_run()
        self.y_signal()
        self.stamp("conv2")
        self.label(lab)
        self.op_prep()
        self.s_add_u32(s(sT + 8), s(sEXP), 1)
        self.poll2(sFO, vPL, sT + 8, sMO)
        self.stamp("owait")
        self.op_run()
        self.s_add_u32(s(sT), s(sEXP), 2); self.v_mov_b32(v(5), s(sT))
        self.signal2(sFA, 5)
        self.stamp("asig")
        lab = self.newlabel("ydone")
        self.s_cmp_lg_u32(s(sL), 0); self.s_cbranch_scc1(lab)
        self.y_wait2()
        self.y_load()
        self.label(lab)
        self.p4_prep()
        self.s_add_u32(s(sT + 8), s(sEXP), 2)
        self.poll2(sFA, vPL, sT + 8, sMA)
        self.stamp("await")
        self.p4_run()
        self.s_cmp_lg_u32(s(sL), 0); self.s_cbranch_scc1("L_FINAL")
        self.z_addr(8)
        self.p4_z()
        self.stores(self.z_store_list(56, sZN, 8))
        self.pack(vX, self.XF, 12)
        self.s_add_u32(s(sT), s(sEXP), 3); self.v_mov_b32(v(5), s(sT))
        self.signal2(sFN, 5)
        self.stamp("p4")
        self.s_mov_b32(s(sL), 1)
        self.s_branch("L_LAYER")
        self.label("L_FINAL")
        self.pack(vX, self.XF, 12)
        self.out_store()
        self.stamp("end")
        return self.finish()

if __name__ == "__main__":
    import argparse
    ap = argparse.ArgumentParser()
    ap.add_argument("-o", default="k2.s"); ap.add_argument("--stamps", action="store_true")
    ap.add_argument("--slow", action="store_true"); ap.add_argument("-v", action="store_true"); ap.add_argument("--opt", default="")
    a_ = ap.parse_args()
    k = K2(stamps=a_.stamps, opts=dict({"force_slow": a_.slow}, **{x.split("=")[0]: (int(x.split("=")[1]) if "=" in x else 1) for x in a_.opt.split(",") if x}))
    k.build()
    ins = k.fix_all(verbose=a_.v)
    open(a_.o, "w").write(render_file(k))
    n = sum(1 for it in k.items if isinstance(it, Ins))
    print("instructions:", n, "nops inserted:", len(ins), "stamps:", ",".join(k.stamp_names))
```

```python
import sys, math
from asm import *
import kern as B
from kern import (NAME, OFF_N, OFF_XCC, OFF_HFL, OFF_YFL, OFF_Z, OFF_HALO, OFF_O, OFF_A, OFF_R, OFF_Y, OFF_DBG, ZG, HALO_SZ,
                  NONCE_C, L_W, L_WT1, L_K, L_V, L_VS, L_SP, L_HK, L_HV, LDS_BYTES, f32,
                  sX, sWQ, sWO, sBK, sBV, sSH, sSK, sSD, sOUT, sDBG, sWS, sG, sS, sW, sTOK, sMODE, sL, sSRD, sM0, sM1, sT, sTO, sXCC, sU,
                  vTID, vLANE, vL16, vX, vY, render_file)

OFF_FL2 = 0x40000
L_CNT = 135104
sEXP, sHEXP = 34, 35
sFZ, sFO, sFA, sFN = 56, 58, 60, 62
sZB, sOB, sAB, sHB, sHP, sZN = 66, 68, 70, 72, 74, 76
sHFO, sHFI = 78, 79
sMZ, sMO, sMA = 4, 6, 10
vL8, vPL = 3, 15
vZERO = 92
vSO = 6

class K2(B.K):
    def stamp(self, name):
        if not self.stamps: return
        i = self.nstamp; self.nstamp += 1; self.stamp_names.append(name)
        lab = self.newlabel("st")
        self.s_cmp_lg_u32(s(sW), 0); self.s_cbranch_scc1(lab)
        (self.s_memtime if self.o.get("cyc") else self.s_memrealtime)(s(96, 2)); self.wait(lg=0)
        self.s_mov_b64(s(98, 2), "exec"); self.setexec(1)
        self.v_accvgpr_write_b32(a(250), s(96)); self.v_accvgpr_write_b32(a(251), s(97))
        self.s_lshl_b32(s(96), s(2), 9); self.s_add_u32(s(96), s(96), hex(OFF_DBG + 8 * i))
        self.s_lshl_b32(s(97), s(sL), 8); self.s_add_u32(s(96), s(96), s(97))
        self.v_mov_b32(v(7), s(96))
        self.global_store_dwordx2(v(7), a(250, 2), s(sWS, 2))
        self.s_mov_b64("exec", s(98, 2))
        self.label(lab)

    def poll2(self, sbase, voff, s_exp, s_mask, vtmp=4):
        lp, dn = self.newlabel("poll"), self.newlabel("polld")
        self.label(lp)
        self.global_load_dword(v(vtmp), v(voff), s(sbase, 2), mods="sc1")
        self.s_cmp_eq_u32(s(sTO), 0); self.s_cbranch_scc1(dn)
        self.s_sub_u32(s(sTO), s(sTO), 1)
        self.wait(vm=0)
        self.v_cmp_ne_u32("vcc", s(s_exp), v(vtmp))
        self.s_and_b64("vcc", "vcc", s(s_mask, 2))
        self.s_cbranch_scc1(lp)
        self.label(dn)
    def flag_store(self, sbase, vval, force_sc1=False):
        lab = self.newlabel("sig")
        self.s_cmp_lg_u32(s(sW), 0); self.s_cbranch_scc1(lab)
        self.setexec(1)
        if force_sc1: self.global_store_dword(v(vSO), v(vval), s(sbase, 2), mods="sc1")
        else: self.stores([self.store(4, v(vSO), v(vval), s(sbase, 2))])
        self.setexec(-1)
        self.label(lab)
    def signal2(self, sbase, vval, force_sc1=False):
        self.wait(vm=0); self.s_barrier()
        self.flag_store(sbase, vval, force_sc1)
    def stores_sc1(self, lst):
        for it in lst:
            if it[0] == "exec": self.setexec(it[1])
            else: self.I(it[0], it[1], it[2], it[3], mods=(it[4] + " sc1").strip())
    def first_flags(self):
        self.s_lshl_b32(s(sT), s(sG), 12); self.s_add_u32(s(sT + 1), s(sT), hex(OFF_XCC)); self.s_add_u32(s(sT), s(sT), hex(OFF_FL2 + 6 * 8 * 4096))
        self.v_mov_b32(v(16), s(sT + 1)); self.v_mov_b32(v(17), s(sT))
        self.s_mov_b32(s(sM1), 0); self.s_mov_b32(s(sM1 + 1), -1)
        self.v_cndmask_b32(v(16), v(16), v(17), s(sM1, 2)); self.v_add_u32(v(16), v(16), v(vPL))
        self.s_add_u32(s(sT + 2), s(sTOK), 64); self.s_add_u32(s(sT + 3), s(sTOK), 7)
        self.v_mov_b32(v(17), s(sT + 2)); self.v_mov_b32(v(18), s(sT + 3)); self.v_cndmask_b32(v(17), v(17), v(18), s(sM1, 2))
        self.v_mov_b32(v(18), 16); self.v_cndmask_b32(v(18), v(18), 1, s(sM1, 2))
        lp, dn = self.newlabel("xpoll"), self.newlabel("xpolld")
        self.label(lp)
        self.global_load_dword(v(4), v(vPL), s(sFZ, 2), mods="sc1")
        self.global_load_dword(v(5), v(16), s(sWS, 2), mods="sc1")
        self.s_cmp_eq_u32(s(sTO), 0); self.s_cbranch_scc1(dn)
        self.s_sub_u32(s(sTO), s(sTO), 1)
        self.wait(vm=0)
        self.v_cmp_ne_u32("vcc", s(sEXP), v(4)); self.s_and_b64(s(sM0, 2), "vcc", s(sMZ, 2))
        self.v_sub_u32(v(5), v(5), v(17))
        self.v_cmp_le_u32("vcc", v(18), v(5))
        self.s_or_b64("vcc", "vcc", s(sM0, 2)); self.s_cbranch_scc1(lp)
        self.label(dn)
        self.v_cmp_ne_u32("vcc", s(sXCC), v(5))
        self.s_and_b32(s(sT), "vcc_lo", -1)
        self.s_cselect_b32(s(sMODE), 1, 0)
        if self.o.get("force_slow"): self.s_mov_b32(s(sMODE), 1)
    def flagbase(self, d, phase_off_sreg_or_imm):
        self.smul(sT, sL, 3); self.s_add_u32(s(sT), s(sT), phase_off_sreg_or_imm)
        self.s_lshl_b32(s(sT), s(sT), 3); self.s_add_u32(s(sT), s(sT), s(sG)); self.s_lshl_b32(s(sT), s(sT), 12)
        self.base64(d, sWS, sT, OFF_FL2)

    def layer_bases2(self):
        self.s_lshl_b32(s(sT + 4), s(sL), 3); self.s_add_u32(s(sT + 4), s(sT + 4), s(sG))
        self.smul(sT + 1, sG, ZG)
        self.base64(sZB, sWS, sT + 1, OFF_Z); self.base64(sOB, sWS, sT + 1, OFF_O); self.base64(sAB, sWS, sT + 1, OFF_A)
        self.s_mov_b64(s(sZN, 2), s(sZB, 2))
        self.s_lshl_b32(s(sT + 2), s(sT + 4), 5); self.s_add_u32(s(sT + 2), s(sT + 2), s(sS))
        self.s_lshl_b32(s(sHFO), s(sT + 2), 7); self.s_add_u32(s(sHFO), s(sHFO), hex(OFF_HFL))
        self.s_sub_u32(s(sHFI), s(sHFO), 32 * 128)
        self.smul(sT + 2, sT + 2, HALO_SZ)
        self.base64(sHB, sWS, sT + 2, OFF_HALO - L_K)
        self.s_sub_u32(s(sT + 2), s(sT + 2), 32 * HALO_SZ)
        self.s_cmp_eq_u32(s(sG), 0); self.s_cselect_b32(s(sT + 2), 0, s(sT + 2))
        self.base64(sHP, sWS, sT + 2, OFF_HALO)
        self.flagbase(sFZ, 0)
        self.s_add_u32(s(sFO), s(sFZ), 8 * 4096); self.s_addc_u32(s(sFO + 1), s(sFZ + 1), 0)
        self.s_add_u32(s(sFA), s(sFO), 8 * 4096); self.s_addc_u32(s(sFA + 1), s(sFO + 1), 0)
        self.s_add_u32(s(sFN), s(sFA), 8 * 4096); self.s_addc_u32(s(sFN + 1), s(sFA + 1), 0)
        self.smul(sEXP, sL, 3); self.s_add_u32(s(sEXP), s(sEXP), s(sTOK)); self.s_add_u32(s(sEXP), s(sEXP), 1)
        self.s_add_u32(s(sHEXP), s(sTOK), s(sL)); self.s_add_u32(s(sHEXP), s(sHEXP), 16)

    def wave_sum2(self, a_, b_, t0, t1):
        for r in (a_, b_): self.v_add_f32_dpp(v(r), v(r), v(r), mods="quad_perm:[2,3,0,1] row_mask:0xf bank_mask:0xf")
        for r in (a_, b_): self.v_add_f32_dpp(v(r), v(r), v(r), mods="row_ror:4 row_mask:0xf bank_mask:0xf")
        for r in (a_, b_): self.v_add_f32_dpp(v(r), v(r), v(r), mods="row_ror:8 row_mask:0xf bank_mask:0xf")
        self.v_permlane16_swap_b32(v(a_), v(b_)); self.v_add_f32(v(a_), v(a_), v(b_))
        self.v_mov_b32(v(t0), v(a_)); self.v_permlane32_swap_b32(v(a_), v(t0)); self.v_add_f32(v(a_), v(a_), v(t0))
        self.v_mov_b32(v(b_), v(a_)); self.v_permlane16_swap_b32(v(a_), v(b_))

    def setup2(self):
        self.cold = []; self.cold2 = []
        self.s_cmp_ge_u32(s(2), 256); self.s_cbranch_scc1("L_END")
        self.s_load_dwordx4(s(4, 4), s(0, 2), 0); self.s_load_dwordx2(s(8, 2), s(0, 2), 16)
        self.s_load_dwordx8(s(12, 8), s(0, 2), 32); self.s_load_dwordx8(s(20, 8), s(0, 2), 64)
        self.s_getpc_b64(s(100, 2))
        self.label("L_PC")
        self.v_and_b32(v(vLANE), 63, v(vTID)); self.v_lshlrev_b32(v(vL16), 4, v(vLANE)); self.v_lshlrev_b32(v(vL8), 3, v(vLANE))
        self.v_lshrrev_b32(v(4), 6, v(vTID))
        self.s_and_b32(s(sG), s(2), 7); self.s_lshr_b32(s(sS), s(2), 3)
        self.v_readfirstlane_b32(s(sW), v(4))
        self.s_mov_b32(s(sTO), 400000); self.s_mov_b32(s(sMODE), 0); self.s_mov_b32(s(sL), 0)
        self.s_getreg_b32(s(sXCC), "hwreg(HW_REG_XCC_ID, 0, 4)")
        self.x_addr(8)
        self.wait(lg=0)
        if self.o.get("span"):
            self.stamps = True; self.stamp("t0"); self.stamps = False
        self.s_load_dword(s(sTOK), s(sWS, 2), OFF_N)
    sPC = 100
    def code_prefetch(self, vd=224):
        self.v_lshlrev_b32(v(5), 7, v(vTID))
        self.v_min_u32(v(5), "L_HOTEND-L_PC-4", v(5))
        self.global_load_dword(v(vd), v(5), s(self.sPC, 2))
    def issue_x(self):
        for j in range(8, 12): self.v_mov_b32(v(vX + j), 0)
        self.global_load_dwordx4(v(vX, 4), v(8), s(sX, 2))
        self.global_load_dwordx4(v(vX + 4, 4), v(8), s(sX, 2), mods="offset:512")
        self.setexec(0xffffffff)
        self.global_load_dwordx4(v(vX + 8, 4), v(8), s(sX, 2), mods="offset:1024")
        self.setexec(-1)

    def w_addr(self):
        self.s_mov_b32(s(sSRD), s(sWQ)); self.s_mov_b32(s(sSRD + 1), s(sWQ + 1))
        self.s_mov_b32(s(sSRD + 2), 640 * 1920 * 2); self.s_mov_b32(s(sSRD + 3), "0x00020000")
        self.v_mul_u32_u24(v(8), 5462, v(vLANE)); self.v_lshrrev_b32(v(8), 16, v(8))
        self.v_mul_u32_u24(v(9), 12, v(8)); self.v_sub_u32(v(9), v(vLANE), v(9))
        self.v_lshrrev_b32(v(10), 2, v(9)); self.v_and_b32(v(11), 3, v(vLANE))
        self.smul(sT, sW, 160); self.v_add_u32(v(8), s(sT), v(8))
        self.s_mov_b32(s(sT + 1), 3840); self.v_mul_lo_u32(v(90), s(sT + 1), v(8))
        self.v_mul_u32_u24(v(91), 1280, v(10)); self.v_lshlrev_b32(v(14), 4, v(11)); self.v_add3_u32(v(90), v(90), v(91), v(14))
        self.smul(sT + 2, sS, 40); self.v_add_u32(v(90), s(sT + 2), v(90))
        self.v_lshlrev_b32(v(91), 5, v(10)); self.v_add_u32(v(91), v(91), v(14))
        self.v_cmp_eq_u32("vcc", 2, v(10)); self.v_add_u32(v(5), L_WT1 + 32, v(14)); self.v_cndmask_b32(v(91), v(91), v(5), "vcc")
        self.v_lshlrev_b32(v(5), 4, v(10)); self.v_min_u32(v(5), 24, v(5)); self.v_add_u32(v(5), L_WT1, v(5))
        self.v_cmp_eq_u32("vcc", 2, v(11)); self.v_cndmask_b32(v(91), v(91), v(5), "vcc")
        self.v_lshlrev_b32(v(8), 6, v(8)); self.v_add_u32(v(91), v(91), v(8))
    WM = sum(1 << l for l in range(60) if (l & 3) < 3)
    def w_issue(self, lo, hi):
        self.setexec(self.WM)
        self.s_mov_b32(s(sT + 3), lo * 5 * 3840)
        for i in range(lo, hi):
            self.buffer_load_dwordx4(v(96 + 4 * i, 4), v(90), s(sSRD + 0, 4), s(sT + 3), mods="offen")
            if i < hi - 1: self.s_add_u32(s(sT + 3), s(sT + 3), 5 * 3840)
        self.setexec(-1)
    def w_lds(self, lo, hi):
        m128 = sum(1 << l for l in range(60) if (l & 3) < 2); m64 = sum(1 << l for l in range(60) if (l & 3) == 2)
        self.setexec(m128)
        for i in range(lo, hi): self.ds_write_b128(v(91), v(96 + 4 * i, 4), mods=f"offset:{320 * i}")
        self.setexec(m64)
        for i in range(lo, hi): self.ds_write_b64(v(91), v(96 + 4 * i, 2), mods=f"offset:{320 * i}")
        self.setexec(-1)
    def w_zero(self):
        self.v_lshlrev_b32(v(10), 6, v(vTID)); self.v_add_u32(v(10), L_WT1 + 8, v(10))
        self.ds_write_b64(v(10), v(vZERO, 2)); self.ds_write_b64(v(10), v(vZERO, 2), mods=f"offset:{256 * 64}")
        lab = self.newlabel("wz")
        self.s_cmp_ge_u32(s(sW), 2); self.s_cbranch_scc1(lab)
        self.ds_write_b64(v(10), v(vZERO, 2), mods=f"offset:{512 * 64}")
        self.label(lab)

    def z_addr(self, va):
        self.s_lshr_b32(s(sT), s(sS), 2); self.smul(sT, sT, 40960)
        self.s_and_b32(s(sT + 1), s(sS), 3); self.s_lshl_b32(s(sT + 1), s(sT + 1), 7)
        self.s_add_u32(s(sT), s(sT), s(sT + 1)); self.s_lshl_b32(s(sT + 1), s(sW), 5); self.s_add_u32(s(sT), s(sT), s(sT + 1))
        self.v_lshrrev_b32(v(va), 1, v(vLANE)); self.v_lshlrev_b32(v(va), 9, v(va))
        self.v_and_b32(v(va + 1), 1, v(vLANE)); self.v_lshlrev_b32(v(va + 1), 4, v(va + 1))
        self.v_add3_u32(v(va), v(va), v(va + 1), s(sT))
        self.v_add_u32(v(va + 1), 32 * 512, v(va)); self.v_add_u32(v(va + 2), 64 * 512, v(va))
    def z_store_list(self, zp, sbase, va):
        return [self.store(16, v(va), v(zp, 4), s(sbase, 2)), self.store(16, v(va + 1), v(zp + 4, 4), s(sbase, 2)),
                ("exec", 0xffffffff), self.store(16, v(va + 2), v(zp + 8, 4), s(sbase, 2)), ("exec", -1)]

    CKP, CVP, CSP = 160, 188, 204
    def c0_issue(self):
        KP, VP, SP = self.CKP, self.CVP, self.CSP
        lab = self.newlabel("c0i")
        self.s_mov_b32(s(sSRD), s(sBK)); self.s_mov_b32(s(sSRD + 1), s(sBK + 1))
        self.s_mov_b32(s(sSRD + 2), 2048 * 1280); self.s_mov_b32(s(sSRD + 3), "0x00020000")
        self.v_mul_u32_u24(v(68), 6554, v(vTID)); self.v_lshrrev_b32(v(68), 16, v(68))
        self.v_mul_u32_u24(v(69), 10, v(68)); self.v_sub_u32(v(69), v(vTID), v(69))
        self.v_cmp_gt_u32("vcc", 160, v(vTID))
        self.s_and_saveexec_b64(s(sM0, 2), "vcc")
        self.s_cbranch_execz(lab)
        self.s_lshl_b32(s(sU), s(sS), 6); self.s_sub_u32(s(sU), s(sU), 3)
        self.v_lshl_add_u32(v(10), v(68), 2, s(sU))
        self.s_mov_b32(s(sU + 1), 1280); self.v_mul_lo_u32(v(10), s(sU + 1), v(10))
        self.smul(sU + 2, sG, 160); self.v_lshl_add_u32(v(11), v(69), 4, s(sU + 2)); self.v_add_u32(v(10), v(10), v(11))
        for j in range(7):
            self.buffer_load_dwordx4(v(KP + 4 * j, 4), v(10), s(sSRD, 4), 0, mods="offen")
            if j == 2: self.v_add_u32(v(12), 1280, v(10))
            self.v_add_u32(v(10), 1280, v(10))
        self.s_mov_b32(s(sSRD), s(sBV)); self.s_mov_b32(s(sSRD + 1), s(sBV + 1))
        for j in range(4):
            self.buffer_load_dwordx4(v(VP + 4 * j, 4), v(12), s(sSRD, 4), 0, mods="offen")
            self.v_add_u32(v(12), 1280, v(12))
        self.smul(sU + 2, sG, 640); self.v_lshl_add_u32(v(11), v(69), 6, s(sU + 2))
        for j in range(4): self.global_load_dwordx4(v(SP + 4 * j, 4), v(11), s(sSH, 2), mods=f"offset:{16 * j}")
        self.label(lab)
        self.s_mov_b64("exec", -1)
    def c0_compute(self):
        KP, VP, SP = self.CKP, self.CVP, self.CSP
        KF, SK, VF, U, PKD = 16, 30, 38, 46, 54
        lab = self.newlabel("c0c")
        self.v_cmp_gt_u32("vcc", 160, v(vTID))
        self.s_and_saveexec_b64(s(sM0, 2), "vcc")
        self.s_cbranch_execz(lab)
        self.v_mul_u32_u24(v(10), 1168, v(69)); self.v_lshlrev_b32(v(11), 3, v(68)); self.v_sub_u32(v(10), v(10), v(11))
        self.v_add_u32(v(10), L_K + 120, v(10))
        for m in range(4):
            for j in range(7):
                self.v_lshlrev_b32(v(KF + 2 * j), 16, v(KP + 4 * j + m)); self.v_and_b32(v(KF + 2 * j + 1), "0xffff0000", v(KP + 4 * j + m))
            for e in range(2):
                c = 2 * m + e
                self.v_lshlrev_b32(v(SK + 0 + e), 16, v(SP + 2 * c)); self.v_and_b32(v(SK + 2 + e), "0xffff0000", v(SP + 2 * c))
                self.v_lshlrev_b32(v(SK + 4 + e), 16, v(SP + 2 * c + 1)); self.v_and_b32(v(SK + 6 + e), "0xffff0000", v(SP + 2 * c + 1))
            for i in range(4):
                self.v_lshlrev_b32(v(VF + 2 * i), 16, v(VP + 4 * i + m)); self.v_and_b32(v(VF + 2 * i + 1), "0xffff0000", v(VP + 4 * i + m))
            for i in range(4): self.v_pk_mul_f32(v(U + 2 * i, 2), v(KF + 2 * i, 2), v(SK + 6, 2))
            for i in range(4): self.v_pk_fma_f32(v(U + 2 * i, 2), v(KF + 2 * (i + 1), 2), v(SK + 4, 2), v(U + 2 * i, 2))
            for i in range(4): self.v_pk_fma_f32(v(U + 2 * i, 2), v(KF + 2 * (i + 2), 2), v(SK + 2, 2), v(U + 2 * i, 2))
            for i in range(4): self.v_pk_fma_f32(v(U + 2 * i, 2), v(KF + 2 * (i + 3), 2), v(SK + 0, 2), v(U + 2 * i, 2))
            for i in range(4): self.v_pk_mul_f32(v(U + 2 * i, 2), v(U + 2 * i, 2), v(VF + 2 * i, 2))
            for e in range(2):
                p = PKD + 2 * e + 4 * (m & 1)
                self.v_cvt_pk_bf16_f32(v(p), v(U + 6 + e), v(U + 4 + e)); self.v_cvt_pk_bf16_f32(v(p + 1), v(U + 2 + e), v(U + e))
                self.ds_write_b64(v(10), v(p, 2), mods=f"offset:{144 * (2 * m + e)}")
        self.label(lab)
        self.s_mov_b64("exec", -1)
        self.wait(lg=0); self.s_barrier()
        self.v_lshrrev_b32(v(8), 6, v(vTID)); self.v_mul_u32_u24(v(8), 1168, v(8))
        self.v_bfe_u32(v(9), v(vTID), 3, 3); self.v_mul_u32_u24(v(9), 144, v(9))
        self.v_and_b32(v(10), 7, v(vTID)); self.v_lshlrev_b32(v(10), 4, v(10))
        self.v_add3_u32(v(8), v(8), v(9), v(10)); self.v_add_u32(v(8), L_K, v(8))
        self.smul(sU, sG, 80 * 4096); self.s_lshl_b32(s(sU + 1), s(sS), 7); self.s_sub_u32(s(sU), s(sU), s(sU + 1))
        self.s_add_u32(s(sU), s(sU), hex(OFF_R + 1984 * 2))
        self.v_lshrrev_b32(v(9), 3, v(vTID)); self.v_lshlrev_b32(v(9), 12, v(9)); self.v_add3_u32(v(9), v(9), v(10), s(sU))
        self.ds_read_b128(v(16, 4), v(8)); self.ds_read_b128(v(20, 4), v(8), mods=f"offset:{4 * 1168}")
        self.ds_read_b128(v(24, 4), v(8), mods=f"offset:{8 * 1168}")
        self.v_add_u32(v(11), 32 * 4096, v(9)); self.v_add_u32(v(14), 64 * 4096, v(9))
        self.wait(lg=0)
        self.global_store_dwordx4(v(9), v(16, 4), s(sWS, 2), mods="sc1"); self.global_store_dwordx4(v(11), v(20, 4), s(sWS, 2), mods="sc1")
        l1 = self.newlabel("c0s")
        self.s_cmp_ge_u32(s(sW), 2); self.s_cbranch_scc1(l1)
        self.global_store_dwordx4(v(14), v(24, 4), s(sWS, 2), mods="sc1")
        self.label(l1)

    ACC, ZR, WF = 16, 96, 160
    OA, OB, MSK = 176, 192, 208
    SA, SB, PP, KF0, KF1, VF0, VF1, KP0, KP1 = 16, 32, 48, 56, 60, 62, 66, 70, 74
    QA, QB = 80, 86
    vSA, vSB, vSC, vTR0, vTR1, vKA, vK1A, vVA = 224, 225, 226, 227, 228, 229, 230, 231
    vKB, vK1B, vVB = 12, 13, 14
    def zero16(self, d):
        self.v_mfma_f32_32x32x16_bf16(v(d, 16), v(vZERO, 4), v(vZERO, 4), 0)
    def qkv_addr(self):
        vzA, vzB, vw0, vw1 = 8, 9, 10, 11
        self.smul(sT, sW, 40960); self.v_add_u32(v(vzA), s(sT), v(vL16))
        self.s_sub_u32(s(sT + 1), 7, s(sW)); self.smul(sT + 1, sT + 1, 40960); self.v_add_u32(v(vzB), s(sT + 1), v(vL16))
        self.v_lshrrev_b32(v(4), 5, v(vLANE)); self.v_lshlrev_b32(v(4), 3, v(4))
        self.v_bfe_u32(v(5), v(vLANE), 2, 2); self.v_add_u32(v(4), v(4), v(5)); self.v_lshlrev_b32(v(4), 6, v(4))
        self.v_bfe_u32(v(5), v(vLANE), 4, 1); self.v_lshlrev_b32(v(5), 5, v(5))
        self.v_and_b32(v(vw0), 3, v(vLANE)); self.v_lshlrev_b32(v(vw0), 3, v(vw0))
        self.v_add3_u32(v(vw0), v(4), v(5), v(vw0)); self.v_add_u32(v(vw1), L_WT1, v(vw0))
    def qkv_init(self):
        for d in (16, 32, 48, 64): self.zero16(d)
        self.zero16(self.OA); self.zero16(self.OB)
        self.wread(0, 0)
    def wread(self, st, kk):
        for T, vw in ((0, 10), (1, 11)):
            r = self.WF + 8 * st + 4 * T
            self.ds_read_b64_tr_b16(v(r, 2), v(vw), mods=f"offset:{kk * 1024}")
            self.ds_read_b64_tr_b16(v(r + 2, 2), v(vw), mods=f"offset:{kk * 1024 + 256}")
    def zload(self, j, kk):
        ZR, vzA, vzB = self.ZR, 8, 9
        self.global_load_dwordx4(v(ZR + 8 * j, 4), v(vzA), s(sZB, 2), mods=f"offset:{(kk % 4) * 1024} sc1")
        self.global_load_dwordx4(v(ZR + 8 * j + 4, 4), v(vzB), s(sZB, 2), mods=f"offset:{(kk % 4) * 1024} sc1")
        if kk % 4 == 3:
            self.v_add_u32(v(vzA), 4096, v(vzA)); self.v_add_u32(v(vzB), 4096, v(vzB))
    def qkv_zissue(self):
        for j in range(8): self.zload(j, j)
    def qkv_run(self):
        ACC, ZR, WF = self.ACC, self.ZR, self.WF
        vzA, vzB, vw0, vw1 = 8, 9, 10, 11
        zload = self.zload
        def body(last):
            for j in range(8):
                st = j & 1
                if not (last and j == 7): self.wread(st ^ 1, j + 1)
                self.wait(vm=(14 - 2 * j) if last else 14, lg=0 if (last and j == 7) else 4)
                for blk in range(2):
                    for T in range(2):
                        d = ACC + 32 * blk + 16 * T
                        self.v_mfma_f32_32x32x16_bf16(v(d, 16), v(WF + 8 * st + 4 * T, 4), v(ZR + 8 * j + 4 * blk, 4), v(d, 16))
                if not last: zload(j, j)
            if not last:
                self.v_add_u32(v(vw0), 8192, v(vw0)); self.v_add_u32(v(vw1), 8192, v(vw1))
        lp = self.newlabel("qkv")
        self.s_mov_b32(s(sU), 4)
        self.label(lp)
        body(False)
        self.s_sub_u32(s(sU), s(sU), 1); self.s_cmp_lg_u32(s(sU), 0); self.s_cbranch_scc1(lp)
        body(True)

    def epi_prep(self):
        vSA, vSB, vSC, vTR0, vTR1 = self.vSA, self.vSB, self.vSC, self.vTR0, self.vTR1
        self.s_lshl_b32(s(sT), s(sW), 11); self.s_add_u32(s(sT), s(sT), L_VS)
        self.v_and_b32(v(4), 31, v(vLANE)); self.v_bfe_u32(v(5), v(4), 1, 3)
        self.v_lshlrev_b32(v(4), 6, v(4)); self.v_add_u32(v(4), s(sT), v(4))
        self.v_lshrrev_b32(v(vSA), 5, v(vLANE)); self.v_xor_b32(v(vSA), v(vSA), v(5)); self.v_lshl_add_u32(v(vSA), v(vSA), 3, v(4))
        self.v_xor_b32(v(vSB), 16, v(vSA))
        self.v_xor_b32(v(vSC), 40, v(vSA))
        self.v_xor_b32(v(4), 48, v(vSA))
        self.v_mov_b32(v(88), "0x3f80"); self.v_mov_b32(v(89), 0)
        self.ds_write_b64(v(4), v(88, 2))
        self.v_bfe_u32(v(4), v(vLANE), 2, 2); self.v_lshrrev_b32(v(5), 5, v(vLANE)); self.v_lshl_add_u32(v(4), v(5), 2, v(4))
        self.v_bfe_u32(v(5), v(vLANE), 4, 1); self.v_lshlrev_b32(v(5), 2, v(5)); self.v_and_b32(v(vTR0), 3, v(vLANE)); self.v_add_u32(v(5), v(5), v(vTR0))
        self.v_lshrrev_b32(v(vTR0), 1, v(4)); self.v_xor_b32(v(5), v(5), v(vTR0)); self.v_lshlrev_b32(v(5), 3, v(5))
        self.v_lshl_add_u32(v(vTR0), v(4), 6, v(5)); self.v_add_u32(v(vTR0), s(sT), v(vTR0)); self.v_xor_b32(v(vTR1), 32, v(vTR0))
        for (k0, k1, vv, blk) in ((self.vKA, self.vK1A, self.vVA, 0), (self.vKB, self.vK1B, self.vVB, 1)):
            if blk == 0: self.s_mov_b32(s(sT + 1), s(sW))
            else: self.s_sub_u32(s(sT + 1), 7, s(sW))
            self.smul(sT + 2, sT + 1, 1536); self.s_add_u32(s(sT + 2), s(sT + 2), L_K)
            self.v_add_u32(v(k0), s(sT + 2), v(vL16)); self.s_add_u32(s(sT + 2), s(sT + 2), 1024); self.v_add_u32(v(k1), s(sT + 2), v(vL8))
            self.s_lshl_b32(s(sT + 2), s(sT + 1), 11); self.s_add_u32(s(sT + 2), s(sT + 2), L_V); self.v_add_u32(v(vv), s(sT + 2), v(vL16))
        self.s_mov_b32(s(sU + 14), f32(math.log2(math.e) / math.sqrt(20.0))); self.s_mov_b32(s(sU + 15), s(sU + 14))
    def epi_run(self):
        ACC = self.ACC
        sets = []
        for blk in range(2):
            A0 = ACC + 32 * blk; A1 = A0 + 16
            Q = self.QA if blk == 0 else self.QB
            PK = 96 + 24 * blk
            K0, K1, VV, VF = PK, PK + 4, PK + 6, PK + 12
            sets.append((K0, K1, VV, VF))
            self.pack(K1, A1 + 4, 2); self.pack(VV, A1 + 8, 4)
            self.ds_write_b64(v(self.vSC), v(K1, 2)); self.ds_write_b64(v(self.vSA), v(VV, 2)); self.ds_write_b64(v(self.vSB), v(VV + 2, 2))
            self.pack(K0, A0 + 8, 4)
            for m in range(4): self.ds_read_b64_tr_b16(v(VF + 2 * m, 2), v(self.vTR1 if m & 1 else self.vTR0), mods=f"offset:{512 * m}")
            k0, k1, vv = (self.vKA, self.vK1A, self.vVA) if blk == 0 else (self.vKB, self.vK1B, self.vVB)
            self.ds_write_b128(v(k0), v(K0, 4)); self.ds_write_b64(v(k1), v(K1, 2))
            self.global_store_dwordx4(v(k0), v(K0, 4), s(sHB, 2), mods="sc1")
            self.global_store_dwordx2(v(k1), v(K1, 2), s(sHB, 2), mods="sc1")
            for r in (0, 2, 4, 6): self.v_pk_mul_f32(v(A0 + r, 2), v(A0 + r, 2), s(sU + 14, 2))
            for r in (0, 2): self.v_pk_mul_f32(v(A1 + r, 2), v(A1 + r, 2), s(sU + 14, 2))
            self.pack(Q, A0, 4); self.pack(Q + 4, A1, 2)
            self.wait(lg=2)
            self.ds_write_b128(v(vv), v(VF, 4)); self.ds_write_b128(v(vv), v(VF + 4, 4), mods="offset:1024")
            self.global_store_dwordx4(v(vv), v(VF, 4), s(sHB, 2), mods="sc1")
            self.global_store_dwordx4(v(vv), v(VF + 4, 4), s(sHB, 2), mods="offset:1024 sc1")
        self.wait(lg=0); self.s_barrier()

    def mask_gen(self, far):
        self.v_and_b32(v(4), 31, v(vLANE)); self.v_lshrrev_b32(v(5), 5, v(vLANE)); self.v_lshlrev_b32(v(5), 2, v(5))
        self.v_sub_u32(v(4), v(4), v(5))
        self.v_mov_b32(v(5), f32(-1e30))
        for r in range(16):
            kk = 8 * (r >> 2) + (r & 3)
            self.v_cmp_le_i32(s(sU + 2 * (r & 3), 2), kk, v(4))
            if r >= 1:
                q = r - 1
                self._msel(q, far)
        self._msel(15, far)
    def _msel(self, r, far):
        if far: self.v_cndmask_b32(v(self.MSK + r), 0, v(5), s(sU + 2 * (r & 3), 2))
        else: self.v_cndmask_b32(v(self.MSK + r), v(5), 0, s(sU + 2 * (r & 3), 2))

    def halo_publish(self):
        lab = self.newlabel("hp"); l0, l1 = self.newlabel("hw"), self.newlabel("hw")
        self.s_cmp_lg_u32(s(sL), 0); self.s_cbranch_scc1(l0)
        self.wait(vm=self.N_C1); self.s_branch(l1)
        self.label(l0); self.wait(vm=0); self.label(l1)
        self.setexec(1)
        self.v_mov_b32(v(4), L_CNT); self.v_mov_b32(v(5), 1)
        self.ds_add_rtn_u32(v(5), v(4), v(5))
        self.wait(lg=0)
        self.v_readfirstlane_b32(s(sT), v(5))
        self.s_and_b32(s(sT), s(sT), 3); self.s_cmp_lg_u32(s(sT), 3); self.s_cbranch_scc1(lab)
        self.v_mov_b32(v(4), s(sHFO)); self.v_mov_b32(v(5), s(sHEXP))
        self.global_store_dword(v(4), v(5), s(sWS, 2), mods="sc1")
        self.label(lab)
        self.setexec(-1)

    CD, CE, CR, CDV = 96, 112, 120, 128
    C2D, C2E, C2R, C2DV = 164, 170, 224, 228
    CH_SZ = 24832
    def conv_srd(self):
        self.s_mov_b32(s(sSRD), s(sSK)); self.s_mov_b32(s(sSRD + 1), s(sSK + 1))
        self.s_mov_b32(s(sSRD + 2), 640 * 4096); self.s_mov_b32(s(sSRD + 3), "0x00020000")
    def conv1_issue(self):
        D, R = self.CD, self.CR
        self.smul(sT, sG, 80); self.s_lshl_b32(s(sT + 1), s(sS), 1); self.s_add_u32(s(sT + 1), s(sT + 1), s(sT))
        self.s_lshr_b32(s(sT + 2), s(sW), 1); self.s_add_u32(s(sT + 1), s(sT + 1), s(sT + 2))
        self.s_lshl_b32(s(sT + 3), s(sT + 1), 12)
        self.conv_srd()
        self.v_and_b32(v(4), 127, v(vTID)); self.v_lshlrev_b32(v(4), 4, v(4))
        for i in range(2):
            self.buffer_load_dwordx4(v(D + 8 * i, 4), v(4), s(sSRD, 4), s(sT + 3), mods=f"offen offset:{2048 * i}")
            self.buffer_load_dwordx2(v(D + 8 * i + 4, 2), v(4), s(sSRD, 4), s(sT + 3), mods=f"offen offset:{2048 * i + 16}")
        self.s_add_u32(s(sT + 4), s(sT + 3), hex(OFF_R)); self.v_add_u32(v(5), s(sT + 4), v(4))
        self.global_load_dwordx4(v(R, 4), v(5), s(sWS, 2), mods="sc1")
        self.global_load_dwordx4(v(R + 4, 4), v(5), s(sWS, 2), mods="offset:2048 sc1")
        self.s_lshr_b32(s(sT + 4), s(sT + 1), 1); self.s_lshl_b32(s(sT + 4), s(sT + 4), 2); self.v_mov_b32(v(5), s(sT + 4))
        self.global_load_dword(v(self.CDV), v(5), s(sSD, 2))
        self.v_min_u32(v(5), 199, v(vTID)); self.v_lshlrev_b32(v(5), 7, v(5)); self.smul(sT + 4, sS, 25600); self.v_add_u32(v(5), s(sT + 4), v(5))
        self.global_load_dword(v(231), v(5), s(sWO, 2))
    N_C1 = 8

    def pretouch_addr(self, va):
        self.v_min_u32(v(va), 159, v(vTID)); self.v_lshlrev_b32(v(va), 7, v(va))
        self.smul(sT, sG, ZG); self.smul(sT + 1, sS, 10240); self.s_add_u32(s(sT), s(sT), s(sT + 1)); self.s_add_u32(s(sT), s(sT), hex(OFF_O))
        self.v_add_u32(v(va), s(sT), v(va))
        self.v_add_u32(v(5), OFF_A - OFF_O - 80 * 128, v(va))
        self.v_cmp_gt_u32("vcc", 80, v(vTID)); self.v_cndmask_b32(v(va), v(5), v(va), "vcc")

    WOL = (0, 100)
    vWG = 14
    def wo_addr(self):
        self.s_and_b32(s(sT), s(sS), 7); self.smul(sT, sT, 160)
        self.v_min_u32(v(4), 49, v(vLANE))
        self.v_mul_u32_u24(v(5), 6554, v(4)); self.v_lshrrev_b32(v(5), 16, v(5))
        self.v_mul_u32_u24(v(self.vWG), 10, v(5)); self.v_sub_u32(v(4), v(4), v(self.vWG))
        self.smul(sT + 1, sW, 80); self.v_add_u32(v(5), s(sT + 1), v(5))
        self.v_mul_u32_u24(v(self.vWG), 1280, v(5)); self.v_lshl_add_u32(v(self.vWG), v(4), 4, v(self.vWG)); self.v_add_u32(v(self.vWG), s(sT), v(self.vWG))
    def wo_srd(self):
        self.s_mov_b32(s(sSRD), s(sWO)); self.s_mov_b32(s(sSRD + 1), s(sWO + 1))
        self.s_mov_b32(s(sSRD + 2), 640 * 640 * 2); self.s_mov_b32(s(sSRD + 3), "0x00020000")
    def wo_issue_one(self, n):
        hh, i = divmod(n, 16)
        self.s_mov_b32(s(sT + 7), hh * 320 * 1280 + i * 5 * 1280)
        self.buffer_load_dwordx4(a(self.WOL[hh] + 4 * i, 4), v(self.vWG), s(sSRD, 4), s(sT + 7), mods="offen")
    def wo_stage(self):
        self.v_min_u32(v(4), 49, v(vLANE))
        self.v_mul_u32_u24(v(8), 6554, v(4)); self.v_lshrrev_b32(v(8), 16, v(8))
        self.v_mul_u32_u24(v(9), 10, v(8)); self.v_sub_u32(v(9), v(4), v(9))
        self.smul(sT + 1, sW, 80); self.v_add_u32(v(8), s(sT + 1), v(8))
        self.v_mul_u32_u24(v(11), 160, v(8)); self.v_lshl_add_u32(v(11), v(9), 4, v(11)); self.v_add_u32(v(11), L_K, v(11))
        self.s_lshr_b32(s(sT), s(sW), 1)
        self.v_lshrrev_b32(v(12), 4, v(vLANE)); self.v_bfe_u32(v(13), v(vLANE), 2, 2)
        self.v_and_b32(v(16), 3, v(vLANE)); self.v_lshlrev_b32(v(16), 3, v(16)); self.v_add_u32(v(16), L_K, v(16))
        self.v_lshrrev_b32(v(17), 1, v(12)); self.v_mul_u32_u24(v(17), 20, v(17))
        self.v_and_b32(v(18), 1, v(12)); self.v_lshl_add_u32(v(17), v(18), 2, v(17)); self.v_add_u32(v(17), v(17), v(13))
        self.v_mul_u32_u24(v(17), 160, v(17)); self.v_add_u32(v(17), v(17), v(16))
        self.v_mul_u32_u24(v(18), 40, v(12)); self.v_add3_u32(v(18), v(18), v(13), 16)
        self.v_mul_u32_u24(v(18), 160, v(18)); self.v_add_u32(v(18), v(18), v(16))
        self.smul(sT + 1, sT, 32000); self.v_add_u32(v(17), s(sT + 1), v(17))
        self.s_cmp_eq_u32(s(sT), 0)
        self.s_mov_b32(s(sT + 4), 25600); self.s_mov_b32(s(sT + 5), 3200)
        self.s_cselect_b32(s(sT + 2), 6400, s(sT + 4)); self.s_cselect_b32(s(sT + 3), 1280, s(sT + 5))
        self.s_cselect_b64(s(sM0, 2), -1, 0)
        self.v_add_u32(v(19), 3 * 6400, v(17)); self.v_cndmask_b32(v(19), v(18), v(19), s(sM0, 2))
        self.v_add_u32(v(20), s(sT + 3), v(19)); self.v_add_u32(v(21), s(sT + 2), v(19)); self.v_add_u32(v(22), s(sT + 3), v(21))
        for hh in range(2):
            self.setexec((1 << 50) - 1)
            for i in range(16): self.ds_write_b128(v(11), a(self.WOL[hh] + 4 * i, 4), mods=f"offset:{800 * i}")
            self.setexec(-1)
            self.wait(lg=0); self.s_barrier()
            for jj in range(5):
                for ct in range(5):
                    d = ((5 * hh + jj) * 5 + ct) * 4
                    if jj < 3:
                        self.ds_read_b64_tr_b16(a(d, 2), v(17), mods=f"offset:{6400 * jj + 32 * ct}")
                        self.ds_read_b64_tr_b16(a(d + 2, 2), v(17), mods=f"offset:{6400 * jj + 32 * ct + 1280}")
                    else:
                        self.ds_read_b64_tr_b16(a(d, 2), v(19 + 2 * (jj - 3)), mods=f"offset:{32 * ct}")
                        self.ds_read_b64_tr_b16(a(d + 2, 2), v(20 + 2 * (jj - 3)), mods=f"offset:{32 * ct}")
                self.wait(lg=0) if jj == 4 else self.wait(lg=5)
            if hh == 1: self.wait(vm=0)
            self.s_barrier()

    def conv_head(self, sbase, sch, D, DV):
        self.v_readlane_b32(s(sT + 6), v(D), 0); self.v_readlane_b32(s(sT + 7), v(D + 1), 0)
        self.v_readfirstlane_b32(s(sT + 8), v(DV))
        self.s_and_b32(s(sT + 9), s(sch), 1); self.s_lshl_b32(s(sT + 9), s(sT + 9), 4)
        self.s_lshr_b32(s(sT + 8), s(sT + 8), s(sT + 9)); self.s_lshl_b32(s(sT + 8), s(sT + 8), 16)
        self.s_lshl_b32(s(sT + 9), s(sT + 6), 16)
        self.v_mov_b32(v(16), s(sT + 8)); self.v_add_f32(v(16), s(sT + 9), v(16))
        self.v_cvt_pk_bf16_f32(v(16), v(16), v(16)); self.v_and_b32(v(16), "0xffff", v(16))
        self.s_and_b32(s(sT + 6), s(sT + 6), "0xffff0000"); self.v_or_b32(v(16), s(sT + 6), v(16))
        self.v_mov_b32(v(17), s(sT + 7))
        self.v_lshrrev_b32(v(18), 2, v(vLANE)); self.v_sub_u32(v(19), 3, v(18)); self.v_lshlrev_b32(v(19), 4, v(19)); self.v_and_b32(v(19), 63, v(19))
        self.v_lshlrev_b64(v(26, 2), v(19), v(16, 2))
        self.v_and_b32(v(19), 3, v(vLANE)); self.v_cmp_eq_u32("vcc", 3, v(19))
        self.v_mov_b32(v(24), 0); self.v_mov_b32(v(25), 0)
        self.v_cndmask_b32(v(26), 0, v(26), "vcc"); self.v_cndmask_b32(v(27), 0, v(27), "vcc")
        self.v_mul_u32_u24(v(18), 4160, v(18)); self.v_lshl_add_u32(v(18), v(19), 4, v(18)); self.v_add_u32(v(18), s(sbase), v(18))
        self.setexec(0xffff); self.ds_write_b128(v(18), v(24, 4)); self.setexec(-1)
    def conv_copies(self, vaddr, d, e, off):
        AL = 132
        for j in range(4): self.v_alignbit_b32(v(AL + j), v(d + j + 1), v(d + j), 16)
        for j in range(3): self.v_mov_b32(v(AL + 4 + j), v(AL + 1 + j))
        self.v_alignbit_b32(v(AL + 7), v(d + 5), v(d + 4), 16)
        for j in range(4): self.v_mov_b32(v(e + j), v(d + 1 + j))
        self.ds_write_b128(v(vaddr), v(AL, 4), mods=f"offset:{off}")
        self.ds_write_b128(v(vaddr), v(e, 4), mods=f"offset:{off + 4160}")
        self.ds_write_b128(v(vaddr), v(AL + 4, 4), mods=f"offset:{off + 2 * 4160}")
        self.ds_write_b128(v(vaddr), v(d + 2, 4), mods=f"offset:{off + 3 * 4160}")
    def conv_addr(self, sbase, sstep0):
        self.v_and_b32(v(10), 3, v(vLANE)); self.v_mul_u32_u24(v(10), 4160, v(10))
        self.v_bfe_u32(v(11), v(vLANE), 2, 3); self.v_lshl_add_u32(v(10), v(11), 3, v(10))
        self.v_lshrrev_b32(v(11), 5, v(vLANE)); self.v_lshl_add_u32(v(10), v(11), 4, v(10))
        self.s_lshl_b32(s(sT + 6), s(sstep0), 5); self.s_add_u32(s(sT + 6), s(sT + 6), s(sbase)); self.v_add_u32(v(8), s(sT + 6), v(10))
        self.v_and_b32(v(10), 31, v(vLANE)); self.v_sub_u32(v(10), 31, v(10)); self.v_mul_u32_u24(v(10), 5, v(10))
        self.v_add_u32(v(10), v(10), v(11)); self.v_lshlrev_b32(v(10), 4, v(10))
        self.smul(sT + 6, sstep0, 40); self.s_add_u32(s(sT + 6), s(sT + 6), s(sbase)); self.s_add_u32(s(sT + 6), s(sT + 6), 16640)
        self.v_add_u32(v(9), s(sT + 6), v(10))

    def conv1_run(self):
        D, E, R = self.CD, self.CE, self.CR
        sB, sCHN, sHW = sU + 2, sU + 1, sU + 5
        self.s_lshr_b32(s(sU), s(sW), 1); self.smul(sB, sU, self.CH_SZ); self.s_add_u32(s(sB), s(sB), L_K)
        self.smul(sT, sG, 80); self.s_lshl_b32(s(sCHN), s(sS), 1); self.s_add_u32(s(sCHN), s(sCHN), s(sT)); self.s_add_u32(s(sCHN), s(sCHN), s(sU))
        self.s_and_b32(s(sHW), s(sW), 1)
        self.v_and_b32(v(8), 127, v(vTID)); self.v_lshlrev_b32(v(9), 4, v(8))
        self.v_add_u32(v(11), s(sB), v(9))
        self.ds_write_b128(v(11), v(vZERO, 4), mods=f"offset:{16640 + 320 * 16}")
        self.v_and_b32(v(16), 63, v(8)); self.v_lshlrev_b32(v(16), 4, v(16)); self.v_add_u32(v(16), s(sB), v(16))
        self.ds_write_b128(v(16), v(vZERO, 4), mods=f"offset:{16640 + 448 * 16}")
        self.v_add_u32(v(11), 64, v(11))
        self.v_lshrrev_b32(v(12), 2, v(8)); self.v_add_u32(v(12), v(12), v(8)); self.v_lshlrev_b32(v(12), 4, v(12)); self.v_add_u32(v(12), s(sB), v(12))
        self.wo_addr(); self.pretouch_addr(13)
        self.v_mov_b32(v(229), v(13))
        self.wait(vm=1)
        if self.o.get("fine"): self.stamp("c1ld")
        for i in range(2): self.conv_copies(11, D + 8 * i, E + 4 * i, 2048 * i)
        self.ds_write_b128(v(12), v(R, 4), mods="offset:16640"); self.ds_write_b128(v(12), v(R + 4, 4), mods=f"offset:{16640 + 160 * 16}")
        lab = self.newlabel("hd")
        self.s_cmp_lg_u32(s(sHW), 0); self.s_cbranch_scc1(lab)
        self.conv_head(sB, sCHN, D, self.CDV)
        self.label(lab)
        LO, HI, F = 16, 32, 96
        self.s_lshl_b32(s(sT + 5), s(sHW), 5)
        self.conv_addr(sB, sT + 5)
        self.wait(lg=0); self.s_barrier()
        if self.o.get("fine"): self.stamp("c1fill")
        self.zero16(LO); self.zero16(HI)
        def rd(m):
            f = F + 16 * (m & 3); oa = 32 * m; ob = 80 * (m >> 1) + 32 * (m & 1)
            return [lambda: self.ds_read_b64(v(f, 2), v(8), mods=f"offset:{oa}"), lambda: self.ds_read_b64(v(f + 2, 2), v(8), mods=f"offset:{oa + 8}"),
                    lambda: self.ds_read_b128(v(f + 8, 4), v(9), mods=f"offset:{ob + 2560}"), lambda: self.ds_read_b128(v(f + 12, 4), v(9), mods=f"offset:{ob}"),
                    lambda: self.ds_read_b64(v(f + 4, 2), v(8), mods=f"offset:{oa + 2048}"), lambda: self.ds_read_b64(v(f + 6, 2), v(8), mods=f"offset:{oa + 2056}")]
        self.conv2_issue()
        self.wo_srd()
        for m in (0, 1):
            for f_ in rd(m): f_()
        for m in range(32):
            f = F + 16 * (m & 3)
            nx = rd(m + 2) if m + 2 < 32 else [lambda: None] * 6
            self.wait(lg=6 if m < 31 else 0)
            self.v_mfma_f32_32x32x16_bf16(v(LO, 16), v(f, 4), v(f + 8, 4), v(LO, 16)); nx[0](); nx[1]()
            self.v_mfma_f32_32x32x16_bf16(v(HI, 16), v(f, 4), v(f + 12, 4), v(HI, 16)); nx[2](); nx[3]()
            self.v_mfma_f32_32x32x16_bf16(v(HI, 16), v(f + 4, 4), v(f + 8, 4), v(HI, 16)); nx[4](); nx[5]()
            self.wo_issue_one(m)
        self.global_load_dword(v(230), v(229), s(sWS, 2))
        if self.o.get("fine"): self.stamp("c1main")
        self.s_lshl_b32(s(sT + 6), s(sHW), 12); self.s_add_u32(s(sT + 6), s(sT + 6), s(sB)); self.v_add_u32(v(10), s(sT + 6), v(vL16))
        self.s_xor_b32(s(sT + 7), s(sHW), 1); self.s_lshl_b32(s(sT + 7), s(sT + 7), 12); self.s_add_u32(s(sT + 7), s(sT + 7), s(sB))
        self.v_add_u32(v(11), s(sT + 7), v(vL16))
        self.wait(lg=0); self.s_barrier()
        l1, l2 = self.newlabel("cx"), self.newlabel("cy")
        self.s_cmp_lg_u32(s(sHW), 0); self.s_cbranch_scc1(l1)
        for j in range(4): self.ds_write_b128(v(10), v(HI + 4 * j, 4), mods=f"offset:{1024 * j}")
        self.s_branch(l2)
        self.label(l1)
        for j in range(4): self.ds_write_b128(v(10), v(LO + 4 * j, 4), mods=f"offset:{1024 * j}")
        for r in range(16): self.v_mov_b32(v(LO + r), v(HI + r))
        self.label(l2)
        self.s_lshl_b32(s(sT + 6), s(sHW), 11); self.s_add_u32(s(sT + 6), s(sT + 6), s(sB)); self.s_add_u32(s(sT + 6), s(sT + 6), 8192)
        self.v_and_b32(v(12), 31, v(vLANE)); self.v_lshlrev_b32(v(12), 6, v(12))
        self.v_lshrrev_b32(v(13), 5, v(vLANE)); self.v_lshl_add_u32(v(12), v(13), 3, v(12)); self.v_add_u32(v(12), s(sT + 6), v(12))
        self.v_add_u32(v(13), s(sT + 6), v(vL16))
        self.wait(lg=0); self.s_barrier()
        for j in range(4): self.ds_read_b128(v(F + 4 * j, 4), v(11), mods=f"offset:{1024 * j}")
        for j in range(4):
            self.wait(lg=3 - j)
            for r in (0, 2): self.v_pk_add_f32(v(LO + 4 * j + r, 2), v(LO + 4 * j + r, 2), v(F + 4 * j + r, 2))
            self.pack(F + 16 + 2 * j, LO + 4 * j, 2)
            self.ds_write_b64(v(12), v(F + 16 + 2 * j, 2), mods=f"offset:{16 * j}") if False else None
        for j in range(4): self.ds_write_b64(v(12), v(F + 16 + 2 * j, 2), mods=f"offset:{16 * j}")
        self.s_lshl_b32(s(sT + 6), s(sHW), 11); self.s_lshl_b32(s(sT + 7), s(sCHN), 12); self.s_add_u32(s(sT + 6), s(sT + 6), s(sT + 7))
        self.s_add_u32(s(sT + 6), s(sT + 6), hex(OFF_Y)); self.v_add_u32(v(10), s(sT + 6), v(vL16))
        self.ds_read_b128(v(LO, 4), v(13)); self.ds_read_b128(v(LO + 4, 4), v(13), mods="offset:1024")
        self.wait(lg=0)
        self.global_store_dwordx4(v(10), v(LO, 4), s(sWS, 2), mods="sc1")
        self.global_store_dwordx4(v(10), v(LO + 4, 4), s(sWS, 2), mods="offset:1024 sc1")
        self.s_barrier()

    def conv2_issue(self):
        D, E, R = self.C2D, self.C2E, self.C2R
        self.smul(sT, sG, 80); self.s_lshr_b32(s(sT + 1), s(sS), 1); self.s_add_u32(s(sT + 1), s(sT + 1), s(sT)); self.s_add_u32(s(sT + 1), s(sT + 1), 64)
        self.s_lshl_b32(s(sT + 3), s(sT + 1), 12)
        self.conv_srd()
        self.v_lshlrev_b32(v(4), 4, v(vTID))
        self.buffer_load_dwordx4(v(D, 4), v(4), s(sSRD, 4), s(sT + 3), mods="offen")
        self.buffer_load_dwordx2(v(D + 4, 2), v(4), s(sSRD, 4), s(sT + 3), mods="offen offset:16")
        self.s_add_u32(s(sT + 4), s(sT + 3), hex(OFF_R)); self.v_add_u32(v(5), s(sT + 4), v(4))
        self.global_load_dwordx4(v(R, 4), v(5), s(sWS, 2), mods="sc1")
        self.s_lshr_b32(s(sT + 4), s(sT + 1), 1); self.s_lshl_b32(s(sT + 4), s(sT + 4), 2); self.v_mov_b32(v(5), s(sT + 4))
        self.global_load_dword(v(self.C2DV), v(5), s(sSD, 2))
    def conv2_run(self):
        D, E, R = self.C2D, self.C2E, self.C2R
        sB, sCHN, sPART = sU + 2, sU + 1, sU + 5
        self.s_mov_b32(s(sB), L_K)
        self.smul(sT, sG, 80); self.s_lshr_b32(s(sCHN), s(sS), 1); self.s_add_u32(s(sCHN), s(sCHN), s(sT)); self.s_add_u32(s(sCHN), s(sCHN), 64)
        self.s_and_b32(s(sPART), s(sS), 1)
        self.v_lshlrev_b32(v(9), 4, v(vTID)); self.v_add_u32(v(11), L_K, v(9))
        self.v_min_u32(v(16), 191, v(vTID)); self.v_lshlrev_b32(v(16), 4, v(16)); self.v_add_u32(v(16), L_K, v(16))
        self.ds_write_b128(v(16), v(vZERO, 4), mods=f"offset:{16640 + 320 * 16}")
        self.v_add_u32(v(11), 64, v(11))
        self.v_lshrrev_b32(v(12), 2, v(vTID)); self.v_add_u32(v(12), v(12), v(vTID)); self.v_lshlrev_b32(v(12), 4, v(12)); self.v_add_u32(v(12), L_K, v(12))
        self.wait(vm=35)
        self.conv_copies(11, D, E, 0)
        self.ds_write_b128(v(12), v(R, 4), mods="offset:16640")
        lab = self.newlabel("hd")
        self.s_cmp_lg_u32(s(sW), 0); self.s_cbranch_scc1(lab)
        self.conv_head(sB, sCHN, D, self.C2DV)
        self.label(lab)
        AC, F = 16, 96
        self.s_lshl_b32(s(sT + 5), s(sW), 4)
        self.conv_addr(sB, sT + 5)
        self.wait(lg=0); self.s_barrier()
        self.zero16(AC)
        def reads(st, par, extra, hi):
            f = F + 16 * st
            oa, ob = 32 * par + extra * 64, 32 * par + extra * 80
            self.ds_read_b64(v(f, 2), v(8), mods=f"offset:{oa}"); self.ds_read_b64(v(f + 2, 2), v(8), mods=f"offset:{oa + 8}")
            self.ds_read_b128(v(f + 8, 4), v(9), mods=f"offset:{ob + 2560}")
            if hi:
                self.ds_read_b128(v(f + 12, 4), v(9), mods=f"offset:{ob}")
                self.ds_read_b64(v(f + 4, 2), v(8), mods=f"offset:{oa + 2048}"); self.ds_read_b64(v(f + 6, 2), v(8), mods=f"offset:{oa + 2056}")
        def mm(st, hi):
            f = F + 16 * st
            if hi:
                self.v_mfma_f32_32x32x16_bf16(v(AC, 16), v(f, 4), v(f + 12, 4), v(AC, 16))
                self.v_mfma_f32_32x32x16_bf16(v(AC, 16), v(f + 4, 4), v(f + 8, 4), v(AC, 16))
            else:
                self.v_mfma_f32_32x32x16_bf16(v(AC, 16), v(f, 4), v(f + 8, 4), v(AC, 16))
        lhi, ldone = self.newlabel("c2hi"), self.newlabel("c2d")
        self.s_mov_b32(s(sT + 6), 8)
        self.s_cmp_lg_u32(s(sPART), 0); self.s_cbranch_scc1(lhi)
        for hi in (0, 1):
            if hi: self.label(lhi)
            n = 6 if hi else 3
            reads(0, 0, 0, hi)
            lp = self.newlabel("cv")
            self.label(lp)
            reads(1, 1, 0, hi); self.wait(lg=n); mm(0, hi)
            reads(0, 0, 1, hi); self.wait(lg=n); mm(1, hi)
            self.v_add_u32(v(8), 64, v(8)); self.v_add_u32(v(9), 80, v(9))
            self.s_sub_u32(s(sT + 6), s(sT + 6), 1); self.s_cmp_lg_u32(s(sT + 6), 0); self.s_cbranch_scc1(lp)
            if not hi: self.s_branch(ldone)
        self.label(ldone)
        self.s_lshl_b32(s(sT + 6), s(sW), 12); self.s_add_u32(s(sT + 6), s(sT + 6), L_K); self.v_add_u32(v(10), s(sT + 6), v(vL16))
        self.s_lshl_b32(s(sT + 6), s(sW), 10); self.s_add_u32(s(sT + 6), s(sT + 6), L_K); self.v_add_u32(v(11), s(sT + 6), v(vL16))
        self.wait(lg=0); self.s_barrier()
        for j in range(4): self.ds_write_b128(v(10), v(AC + 4 * j, 4), mods=f"offset:{1024 * j}")
        self.v_and_b32(v(12), 31, v(vLANE)); self.v_lshlrev_b32(v(12), 6, v(12))
        self.v_lshrrev_b32(v(13), 5, v(vLANE)); self.v_lshl_add_u32(v(12), v(13), 3, v(12))
        self.s_lshl_b32(s(sT + 6), s(sW), 4); self.s_add_u32(s(sT + 6), s(sT + 6), L_K + 16384); self.v_add_u32(v(12), s(sT + 6), v(12))
        self.wait(lg=0); self.s_barrier()
        for j in range(4): self.ds_read_b128(v(F + 4 * j, 4), v(11), mods=f"offset:{4096 * j}")
        self.wait(lg=0)
        for r in (0, 2):
            self.v_pk_add_f32(v(F + r, 2), v(F + r, 2), v(F + 4 + r, 2)); self.v_pk_add_f32(v(F + 8 + r, 2), v(F + 8 + r, 2), v(F + 12 + r, 2))
        for r in (0, 2): self.v_pk_add_f32(v(F + r, 2), v(F + r, 2), v(F + 8 + r, 2))
        self.pack(F + 16, F, 2)
        self.ds_write_b64(v(12), v(F + 16, 2))
        self.v_lshlrev_b32(v(13), 4, v(vTID)); self.v_add_u32(v(10), L_K + 16384, v(13))
        self.s_lshl_b32(s(sT + 6), s(sPART), 11); self.s_lshl_b32(s(sT + 7), s(sCHN), 12); self.s_add_u32(s(sT + 6), s(sT + 6), s(sT + 7))
        self.s_add_u32(s(sT + 6), s(sT + 6), hex(OFF_Y)); self.v_add_u32(v(13), s(sT + 6), v(13))
        self.wait(lg=0); self.s_barrier()
        lab = self.newlabel("c2s")
        self.s_cmp_ge_u32(s(sW), 2); self.s_cbranch_scc1(lab)
        self.ds_read_b128(v(16, 4), v(10))
        self.wait(lg=0)
        self.global_store_dwordx4(v(13), v(16, 4), s(sWS, 2), mods="sc1")
        self.label(lab)

    def attn_local(self):
        sKb, sVb, sN, sMI = sU + 6, sU + 7, sU + 8, sU + 9
        self.s_mov_b32(s(sKb), L_K); self.s_mov_b32(s(sVb), L_V)
        self.s_sub_u32(s(sN), 8, s(sW)); self.s_sub_u32(s(sMI), 7, s(sW))
        self.attn_seq(self.QB, self.OB, sKb, sVb, sN, sMI)
        self.halo_publish()
        self.s_add_u32(s(sN), s(sW), 1); self.s_mov_b32(s(sMI), s(sW))
        self.attn_seq(self.QA, self.OA, sKb, sVb, sN, sMI)

    def halo_prep(self):
        self.mask_gen(True)
        self.smul(sT, sW, 7168); self.v_add_u32(v(8), s(sT), v(vL16)); self.v_add_u32(v(10), 4096, v(8)); self.v_add_u32(v(9), L_HK, v(8))
        self.v_mov_b32(v(11), s(sHFI))
    def halo_fetch(self):
        self.s_mov_b64(s(sT + 2, 2), -1)
        self.poll2(sWS, 11, sHEXP, sT + 2)
        R = 96
        for j in range(7):
            self.global_load_dwordx4(v(R + 4 * j, 4), v(8 if j < 4 else 10), s(sHP, 2), mods=f"offset:{(j % 4) * 1024} sc1")
        for j in range(7):
            self.wait(vm=6 - j)
            self.ds_write_b128(v(9), v(R + 4 * j, 4), mods=f"offset:{j * 1024}")
        self.wait(lg=0); self.s_barrier()

    def attn_halo(self):
        sKb, sVb, sN, sMI = sU + 6, sU + 7, sU + 8, sU + 9
        self.s_mov_b32(s(sMI), 0)
        self.smul(sKb, sW, 1536); self.s_add_u32(s(sKb), s(sKb), L_HK)
        self.s_lshl_b32(s(sVb), s(sW), 11); self.s_add_u32(s(sVb), s(sVb), L_HV)
        self.s_sub_u32(s(sN), 8, s(sW))
        self.attn_seq(self.QA, self.OA, sKb, sVb, sN, sMI)
        self.s_sub_u32(s(sT), 7, s(sW))
        self.smul(sKb, sT, 1536); self.s_add_u32(s(sKb), s(sKb), L_HK)
        self.s_lshl_b32(s(sVb), s(sT), 11); self.s_add_u32(s(sVb), s(sVb), L_HV)
        self.s_add_u32(s(sN), s(sW), 1)
        self.attn_seq(self.QB, self.OB, sKb, sVb, sN, sMI)

    vOA = 160
    def o_prep(self):
        self.s_lshr_b32(s(sT), s(sS), 4); self.s_and_b32(s(sT + 1), s(sS), 15)
        self.s_lshr_b32(s(sT + 2), s(sT + 1), 1)
        self.s_cmp_ge_u32(s(sT + 2), 5); self.s_cselect_b32(s(sT + 5), 1, 0); self.s_add_u32(s(sT + 5), s(sT + 5), s(sT)); self.smul(sT + 5, sT + 5, 5)
        self.s_add_u32(s(sT + 2), s(sT + 2), s(sT + 5)); self.s_lshl_b32(s(sT + 2), s(sT + 2), 10)
        self.s_and_b32(s(sT + 3), s(sT + 1), 1); self.s_lshl_b32(s(sT + 4), s(sT + 3), 9); self.s_add_u32(s(sT + 2), s(sT + 2), s(sT + 4))
        self.smul(sT, sT, 5); self.s_lshr_b32(s(sT + 4), s(sT + 1), 3); self.s_add_u32(s(sT + 4), s(sT + 4), s(sT)); self.s_add_u32(s(sT + 4), s(sT + 4), 13)
        self.s_lshl_b32(s(sT + 4), s(sT + 4), 10)
        self.s_bfe_u32(s(sT + 5), s(sT + 1), (2 << 16) | 1); self.s_lshl_b32(s(sT + 5), s(sT + 5), 8); self.s_add_u32(s(sT + 4), s(sT + 4), s(sT + 5))
        self.s_lshl_b32(s(sT + 3), s(sT + 3), 3); self.s_add_u32(s(sT + 4), s(sT + 4), s(sT + 3))
        self.v_bfe_u32(v(4), v(vLANE), 4, 1); self.v_mul_u32_u24(v(4), 20480, v(4))
        self.v_and_b32(v(5), 15, v(vLANE)); self.v_lshl_add_u32(v(4), v(5), 4, v(4))
        self.v_lshrrev_b32(v(5), 5, v(vLANE)); self.v_lshl_add_u32(v(5), v(5), 8, v(4))
        for blk in range(2):
            if blk == 0: self.s_mov_b32(s(sT + 6), s(sW))
            else: self.s_sub_u32(s(sT + 6), 7, s(sW))
            self.smul(sT + 6, sT + 6, 40960)
            self.s_add_u32(s(sT + 7), s(sT + 6), s(sT + 2)); self.s_add_u32(s(sT + 6), s(sT + 6), s(sT + 4))
            self.v_add_u32(v(self.vOA + 2 * blk), s(sT + 7), v(5)); self.v_add_u32(v(self.vOA + 2 * blk + 1), s(sT + 6), v(4))
    def o_store(self):
        lst = []
        self.v_rcp_f32(v(8), v(self.OA + 12)); self.v_rcp_f32(v(10), v(self.OB + 12))
        self.v_mov_b32(v(9), v(8)); self.v_mov_b32(v(11), v(10))
        for blk, O in ((0, self.OA), (1, self.OB)):
            for r in range(0, 12, 2): self.v_pk_mul_f32(v(O + r, 2), v(O + r, 2), v(8 + 2 * blk, 2))
            P = 48 + 8 * blk
            self.pack(P, O, 6)
            va = self.vOA + 2 * blk
            lst += [self.store(16, v(va), v(P, 4), s(sOB, 2)), ("exec", 0xffffffff), self.store(8, v(va + 1), v(P + 4, 2), s(sOB, 2)), ("exec", -1)]
        self.stores(lst)

    def prestore(self):
        lst = []
        for blk in range(2):
            va = self.vOA + 2 * blk
            lst += [self.store(16, v(va), v(vZERO, 4), s(sOB, 2)), ("exec", 0xffffffff), self.store(8, v(va + 1), v(vZERO, 2), s(sOB, 2)), ("exec", -1)]
        self.op_prep()
        lst += [self.store(16, v(12), v(vZERO, 4), s(sAB, 2)), self.store(16, v(12), v(vZERO, 4), s(sAB, 2), 512),
                ("exec", 0x0000ffff0000ffff), self.store(16, v(12), v(vZERO, 4), s(sAB, 2), 1024), ("exec", -1)]
        self.stores(lst)

    def op_prep(self):
        self.s_lshr_b32(s(sU), s(sS), 3); self.s_lshl_b32(s(sU), s(sU), 2)
        self.s_and_b32(s(sU + 1), s(sW), 1); self.s_lshl_b32(s(sU + 1), s(sU + 1), 1); self.s_add_u32(s(sU), s(sU), s(sU + 1))
        self.s_lshr_b32(s(sU + 1), s(sW), 1)
        self.s_add_u32(s(sU + 2), s(sU), s(sU + 1)); self.s_xor_b32(s(sU + 3), s(sU + 2), 1)
        self.smul(sU + 4, sU + 1, 10240)
        for j, sr in ((0, sU + 2), (1, sU + 3)):
            self.smul(sU + 5, sr, 20480); self.s_add_u32(s(sU + 5), s(sU + 5), s(sU + 4))
            self.v_add_u32(v(8 + j), s(sU + 5), v(vL16))
        self.smul(sU + 5, sW, 5120); self.s_add_u32(s(sU + 5), s(sU + 5), L_K); self.v_add_u32(v(10), s(sU + 5), v(vL16))
        self.s_xor_b32(s(sU + 5), s(sW), 2); self.smul(sU + 5, sU + 5, 5120); self.s_add_u32(s(sU + 5), s(sU + 5), L_K)
        self.v_add_u32(v(11), s(sU + 5), v(vL16))
        self.s_lshl_b32(s(sU + 5), s(sU + 2), 1); self.smul(sU + 5, sU + 5, 10240)
        self.s_and_b32(s(sU + 6), s(sS), 7); self.smul(sU + 6, sU + 6, 1280); self.s_add_u32(s(sU + 5), s(sU + 5), s(sU + 6))
        self.v_bfe_u32(v(12), v(vLANE), 3, 1); self.v_mul_u32_u24(v(12), 10240, v(12))
        self.v_and_b32(v(13), 7, v(vLANE)); self.v_lshl_add_u32(v(12), v(13), 4, v(12))
        self.v_bfe_u32(v(13), v(vLANE), 4, 1); self.v_lshl_add_u32(v(12), v(13), 8, v(12))
        self.v_lshrrev_b32(v(13), 5, v(vLANE)); self.v_lshl_add_u32(v(12), v(13), 7, v(12))
        self.v_add_u32(v(12), s(sU + 5), v(12))
        self.v_mov_b32(v(66), 0); self.v_mov_b32(v(67), 0)
    def op_run(self):
        OF, AC, P = 96, 16, 56
        for kl in range(10):
            for j in range(2):
                self.global_load_dwordx4(v(OF + 8 * kl + 4 * j, 4), v(8 + j), s(sOB, 2), mods=f"offset:{(kl % 4) * 1024} sc1")
            if kl % 4 == 3:
                self.v_add_u32(v(8), 4096, v(8)); self.v_add_u32(v(9), 4096, v(9))
        for kl in range(10):
            self.wait(vm=18 - 2 * kl)
            if kl == 0 and self.o.get("fine2"): self.stamp("op_d0"); self.wait(vm=0)
            for j in (1, 0):
                for ct in range(5):
                    d = AC + 20 * j + 4 * ct
                    self.v_mfma_f32_16x16x32_bf16(v(d, 4), a((kl * 5 + ct) * 4, 4), v(OF + 8 * kl + 4 * j, 4), v(d, 4) if kl else 0)
        if self.o.get("fine2"): self.stamp("op_mm")
        for ct in range(5): self.ds_write_b128(v(10), v(AC + 20 + 4 * ct, 4), mods=f"offset:{1024 * ct}")
        self.wait(lg=0); self.s_barrier()
        if self.o.get("fine2"): self.stamp("op_x")
        for ct in range(5): self.ds_read_b128(v(OF + 4 * ct, 4), v(11), mods=f"offset:{1024 * ct}")
        for ct in range(5):
            self.wait(lg=4 - ct)
            for r in (0, 2): self.v_pk_add_f32(v(AC + 4 * ct + r, 2), v(AC + 4 * ct + r, 2), v(OF + 4 * ct + r, 2))
            self.pack(P + 2 * ct, AC + 4 * ct, 2)
        for q in range(3):
            self.v_permlane16_swap_b32(v(P + 4 * q), v(P + 4 * q + 2)); self.v_permlane16_swap_b32(v(P + 4 * q + 1), v(P + 4 * q + 3))
        self.stores([self.store(16, v(12), v(P, 4), s(sAB, 2)), self.store(16, v(12), v(P + 4, 4), s(sAB, 2), 512),
                     ("exec", 0x0000ffff0000ffff), self.store(16, v(12), v(P + 8, 4), s(sAB, 2), 1024), ("exec", -1)])

    XF, AF, AP, UU, ST, YF = 16, 64, 96, 112, 40, 136
    def p4_prep(self):
        AP = self.AP
        self.smul(sU, sS, 10240); self.s_lshl_b32(s(sU + 1), s(sW), 5); self.s_add_u32(s(sU), s(sU), s(sU + 1))
        self.v_lshrrev_b32(v(8), 1, v(vLANE)); self.v_lshlrev_b32(v(8), 7, v(8))
        self.v_and_b32(v(9), 1, v(vLANE)); self.v_lshl_add_u32(v(8), v(9), 4, v(8)); self.v_add_u32(v(8), s(sU), v(8))
        self.v_add_u32(v(9), 4096, v(8)); self.v_add_u32(v(10), 8192, v(8))
        for j in range(8, 12): self.v_mov_b32(v(AP + j), 0)
        self.unpack(self.XF, vX, 12)
        self.unpack(self.YF, vY, 12)
    def p4_run(self):
        XF, AF, AP, UU, ST, YF = self.XF, self.AF, self.AP, self.UU, self.ST, self.YF
        self.global_load_dwordx4(v(AP, 4), v(8), s(sAB, 2), mods="sc1")
        self.global_load_dwordx4(v(AP + 4, 4), v(9), s(sAB, 2), mods="sc1")
        self.setexec(0xffffffff)
        self.global_load_dwordx4(v(AP + 8, 4), v(10), s(sAB, 2), mods="sc1")
        self.setexec(-1)
        for m in range(3):
            self.wait(vm=2 - m)
            self.unpack(AF + 8 * m, AP + 4 * m, 4)
            for j in range(4 * m, 4 * m + 4): self.v_pk_add_f32(v(XF + 2 * j, 2), v(XF + 2 * j, 2), v(AF + 2 * j, 2))
        if self.o.get("fine2"): self.stamp("p4_ld")
        self.ln_stats(XF, ST)
        for j in range(12): self.v_pk_fma_f32(v(UU + 2 * j, 2), v(XF + 2 * j, 2), v(ST, 2), v(ST + 2, 2))
        for j in range(12): self.v_pk_fma_f32(v(XF + 2 * j, 2), v(UU + 2 * j, 2), v(YF + 2 * j, 2), v(XF + 2 * j, 2))
    def p4_z(self):
        XF, ST = self.XF, self.ST
        self.ln_stats(XF, ST)
        for j in range(12): self.v_pk_fma_f32(v(self.UU + 2 * j, 2), v(XF + 2 * j, 2), v(ST, 2), v(ST + 2, 2))
        self.pack(56, self.UU, 12)

    def y_flag(self):
        lab = self.newlabel("ys")
        self.s_cmp_lg_u32(s(sW), 0); self.s_cbranch_scc1(lab)
        self.s_lshl_b32(s(sT), s(2), 7); self.s_add_u32(s(sT), s(sT), hex(OFF_YFL))
        self.s_add_u32(s(sT + 1), s(sTOK), 32)
        self.v_mov_b32(v(8), s(sT)); self.v_mov_b32(v(9), s(sT + 1))
        self.setexec(1); self.global_store_dword(v(8), v(9), s(sWS, 2), mods="sc1"); self.setexec(-1)
        self.label(lab)
    def y_wait2(self):
        self.v_lshlrev_b32(v(8), 7, v(vTID)); self.v_add_u32(v(8), OFF_YFL, v(8))
        self.s_add_u32(s(sT + 1), s(sTOK), 32); self.s_mov_b64(s(sT + 2, 2), -1)
        self.poll2(sWS, 8, sT + 1, sT + 2)
        self.s_barrier()
        lab = self.newlabel("nu")
        self.s_cmp_lg_u32(s(2), 0); self.s_cbranch_scc1(lab)
        self.s_cmp_lg_u32(s(sW), 0); self.s_cbranch_scc1(lab)
        self.v_mov_b32(v(8), OFF_N); self.v_mov_b32(v(9), s(sTOK))
        self.setexec(1); self.global_store_dword(v(8), v(9), s(sWS, 2), mods="sc1"); self.setexec(-1)
        self.label(lab)

    def build(self):
        self.setup2()
        self.issue_x()
        self.code_prefetch()
        self.c0_issue()
        self.w_addr()
        self.w_issue(0, 16)
        self.stamp("w1iss")
        for r in range(4): self.v_mov_b32(v(vZERO + r), 0)
        self.v_and_b32(v(vPL), 31, v(vLANE)); self.v_lshlrev_b32(v(vPL), 7, v(vPL))
        self.s_lshl_b32(s(sT), s(sS), 7); self.v_mov_b32(v(vSO), s(sT))
        self.v_mov_b32(v(4), L_CNT); self.ds_write_b32(v(4), v(vZERO))
        self.z_addr(8)
        self.wait(vm=17)
        self.p0_ln()
        self.wait(lg=0)
        self.s_add_u32(s(sTOK), s(sTOK), hex(NONCE_C))
        self.layer_bases2()
        self.stores_sc1(self.z_store_list(56, sZB, 8))
        self.stamp("z0st")
        self.wait(vm=16 + 3)
        self.c0_compute()
        lab = self.newlabel("xp")
        self.s_cmp_lg_u32(s(sW), 0); self.s_cbranch_scc1(lab)
        self.s_lshl_b32(s(sT), s(sG), 5); self.s_add_u32(s(sT), s(sT), s(sS)); self.s_lshl_b32(s(sT), s(sT), 7); self.s_add_u32(s(sT), s(sT), hex(OFF_XCC))
        self.s_add_u32(s(sT + 1), s(sTOK), s(sXCC)); self.s_add_u32(s(sT + 1), s(sT + 1), 64)
        self.v_mov_b32(v(4), s(sT)); self.v_mov_b32(v(5), s(sT + 1))
        self.setexec(1); self.global_store_dword(v(4), v(5), s(sWS, 2), mods="sc1"); self.setexec(-1)
        self.label(lab)
        self.stamp("c0")
        self.w_issue(16, 22)
        self.wait(vm=6); self.s_barrier()
        lab = self.newlabel("f0")
        self.s_cmp_lg_u32(s(sW), 0); self.s_cbranch_scc1(lab)
        self.v_mov_b32(v(4), s(sEXP)); self.s_add_u32(s(sT), s(sTOK), 7); self.v_mov_b32(v(5), s(sT))
        self.s_add_u32(s(sT), s(sFZ), 6 * 8 * 4096); self.s_addc_u32(s(sT + 1), s(sFZ + 1), 0)
        self.setexec(1)
        self.global_store_dword(v(vSO), v(4), s(sFZ, 2), mods="sc1"); self.global_store_dword(v(vSO), v(5), s(sT, 2), mods="sc1")
        self.setexec(-1)
        self.label(lab)
        self.stamp("flags")
        self.w_issue(22, 32)
        self.stamp("w2iss")
        self.w_lds(0, 16)
        self.w_zero()
        self.s_lshl_b32(s(sT + 4), s(sW), 2); self.lanemask(sM0, s(sT + 4), 4)
        self.s_sub_u32(s(sT + 4), 28, s(sT + 4)); self.lanemask(sMZ, s(sT + 4), 4); self.s_or_b64(s(sMZ, 2), s(sMZ, 2), s(sM0, 2))
        self.s_mov_b32(s(sMO), -1); self.s_mov_b32(s(sMO + 1), 0)
        self.s_lshr_b32(s(sT + 4), s(sS), 3); self.s_lshl_b32(s(sT + 4), s(sT + 4), 3); self.lanemask(sMA, s(sT + 4), 8)
        self.epi_prep()
        self.qkv_addr()
        self.stamp("prep")
        self.first_flags()
        self.qkv_zissue()
        self.w_lds(16, 32)
        self.mask_gen(False)
        self.wait(lg=0); self.s_barrier()
        self.stamp("wlds")
        self.qkv_init()
        self.s_branch("L_QKV")
        self.label("L_LAYER")
        self.layer_bases2()
        self.epi_prep(); self.mask_gen(False)
        self.qkv_addr(); self.qkv_init()
        self.poll2(sFZ, vPL, sEXP, sMZ)
        self.stamp("zwait")
        self.qkv_zissue()
        self.label("L_QKV")
        self.qkv_run()
        self.stamp("qkv")
        self.epi_run()
        self.stamp("epi")
        lab = self.newlabel("aux0")
        self.s_cmp_lg_u32(s(sL), 0); self.s_cbranch_scc1(lab)
        self.conv1_issue()
        self.label(lab)
        self.attn_local()
        self.stamp("local")
        self.o_prep()
        lab = self.newlabel("aux1")
        self.s_cmp_lg_u32(s(sL), 0); self.s_cbranch_scc1(lab)
        self.s_barrier()
        self.conv1_run()
        self.stamp("conv1")
        self.conv2_run()
        self.stamp("conv2")
        self.wait(vm=3)
        self.wo_stage()
        self.y_flag()
        self.stamp("wo")
        self.label(lab)
        nohalo = self.newlabel("nohalo")
        self.s_cmp_eq_u32(s(sG), 0); self.s_cbranch_scc1(nohalo)
        self.halo_prep()
        self.halo_fetch()
        self.stamp("halof")
        self.attn_halo()
        self.label(nohalo)
        self.stamp("halo")
        self.o_store()
        lab = self.newlabel("aux1b")
        self.s_add_u32(s(sT), s(sEXP), 1); self.v_mov_b32(v(5), s(sT))
        self.signal2(sFO, 5)
        self.stamp("osig")
        self.s_cmp_lg_u32(s(sL), 0); self.s_cbranch_scc1(lab)
        self.y_wait2()
        self.y_load()
        self.stamp("yld")
        self.label(lab)
        self.op_prep()
        self.s_add_u32(s(sT + 8), s(sEXP), 1)
        self.poll2(sFO, vPL, sT + 8, sMO)
        self.stamp("owait")
        self.op_run()
        if self.o.get("fine2"): self.stamp("op_st")
        self.s_add_u32(s(sT), s(sEXP), 2); self.v_mov_b32(v(5), s(sT))
        self.signal2(sFA, 5)
        self.stamp("asig")
        self.p4_prep()
        self.s_add_u32(s(sT + 8), s(sEXP), 2)
        self.poll2(sFA, vPL, sT + 8, sMA)
        self.stamp("await")
        self.p4_run()
        self.s_cmp_lg_u32(s(sL), 0); self.s_cbranch_scc1("L_FINAL")
        self.z_addr(8)
        self.p4_z()
        self.stores(self.z_store_list(56, sZN, 8))
        if self.o.get("fine2"): self.stamp("p4_st")
        self.pack(vX, self.XF, 12)
        self.s_add_u32(s(sT), s(sEXP), 3); self.v_mov_b32(v(5), s(sT))
        self.signal2(sFN, 5)
        self.stamp("p4")
        self.s_mov_b32(s(sL), 1)
        self.s_branch("L_LAYER")
        self.label("L_FINAL")
        self.pack(vX, self.XF, 12)
        self.out_store()
        if self.o.get("span"):
            self.wait(vm=0); self.stamps = True
        self.stamp("end")
        return self.finish()

if __name__ == "__main__":
    import argparse
    ap = argparse.ArgumentParser()
    ap.add_argument("-o", default="k2.s"); ap.add_argument("--stamps", action="store_true")
    ap.add_argument("--slow", action="store_true"); ap.add_argument("-v", action="store_true"); ap.add_argument("--opt", default="")
    a_ = ap.parse_args()
    k = K2(stamps=a_.stamps, opts=dict({"force_slow": a_.slow}, **{x.split("=")[0]: (int(x.split("=")[1]) if "=" in x else 1) for x in a_.opt.split(",") if x}))
    k.build()
    ins = k.fix_all(verbose=a_.v)
    open(a_.o, "w").write(render_file(k))
    n = sum(1 for it in k.items if isinstance(it, Ins))
    print("instructions:", n, "nops inserted:", len(ins), "stamps:", ",".join(k.stamp_names))
```

```python
import sys, math
from asm import *
import kern as B
from kern import (NAME, OFF_N, OFF_XCC, OFF_HFL, OFF_YFL, OFF_Z, OFF_HALO, OFF_O, OFF_A, OFF_R, OFF_Y, OFF_DBG, ZG, HALO_SZ,
                  NONCE_C, L_W, L_WT1, L_K, L_V, L_VS, L_SP, L_HK, L_HV, LDS_BYTES, f32,
                  sX, sWQ, sWO, sBK, sBV, sSH, sSK, sSD, sOUT, sDBG, sWS, sG, sS, sW, sTOK, sMODE, sL, sSRD, sM0, sM1, sT, sTO, sXCC, sU,
                  vTID, vLANE, vL16, vX, vY, render_file)

OFF_FL2 = 0x40000
L_CNT = 135104
sEXP, sHEXP = 34, 35
sFZ, sFO, sFA, sFN = 56, 58, 60, 62
sZB, sOB, sAB, sHB, sHP, sZN = 66, 68, 70, 72, 74, 76
sHFO, sHFI = 78, 79
sMZ, sMO, sMA = 4, 6, 10
vL8, vPL = 3, 15
vZERO = 92
vSO = 6

class K2(B.K):
    def stamp(self, name):
        if not self.stamps: return
        i = self.nstamp; self.nstamp += 1; self.stamp_names.append(name)
        lab = self.newlabel("st")
        self.s_cmp_lg_u32(s(sW), 0); self.s_cbranch_scc1(lab)
        (self.s_memtime if self.o.get("cyc") else self.s_memrealtime)(s(96, 2)); self.wait(lg=0)
        self.s_mov_b64(s(98, 2), "exec"); self.setexec(1)
        self.v_accvgpr_write_b32(a(250), s(96)); self.v_accvgpr_write_b32(a(251), s(97))
        self.s_lshl_b32(s(96), s(2), 9); self.s_add_u32(s(96), s(96), hex(OFF_DBG + 8 * i))
        self.s_lshl_b32(s(97), s(sL), 8); self.s_add_u32(s(96), s(96), s(97))
        self.v_mov_b32(v(7), s(96))
        self.global_store_dwordx2(v(7), a(250, 2), s(sWS, 2))
        self.s_mov_b64("exec", s(98, 2))
        self.label(lab)

    def dstamp(self, i):
        if not self.o.get("dbgspan"): return
        lab = self.newlabel("ds")
        self.s_cmp_lg_u32(s(sW), 0); self.s_cbranch_scc1(lab)
        self.s_memrealtime(s(96, 2)); self.wait(lg=0)
        if i == 0: self.v_accvgpr_write_b32(a(252), s(96))
        self.v_accvgpr_read_b32(v(7), a(252)); self.v_sub_u32(v(7), s(96), v(7))
        self.s_mov_b64(s(98, 2), "exec"); self.setexec(1)
        self.v_accvgpr_write_b32(a(250), v(7)); self.v_mov_b32(v(7), 4 * i)
        self.global_atomic_umax(v(7), a(250), s(sDBG, 2))
        self.s_mov_b64("exec", s(98, 2))
        self.label(lab)

    def poll2(self, sbase, voff, s_exp, s_mask, vtmp=4):
        lp, dn = self.newlabel("poll"), self.newlabel("polld")
        self.label(lp)
        self.global_load_dword(v(vtmp), v(voff), s(sbase, 2), mods="sc1")
        self.s_cmp_eq_u32(s(sTO), 0); self.s_cbranch_scc1(dn)
        self.s_sub_u32(s(sTO), s(sTO), 1)
        self.wait(vm=0)
        self.v_cmp_ne_u32("vcc", s(s_exp), v(vtmp))
        self.s_and_b64("vcc", "vcc", s(s_mask, 2))
        self.s_cbranch_scc1(lp)
        self.label(dn)
    def flag_store(self, sbase, vval, force_sc1=False):
        lab = self.newlabel("sig")
        self.s_cmp_lg_u32(s(sW), 0); self.s_cbranch_scc1(lab)
        self.setexec(1)
        if force_sc1: self.global_store_dword(v(vSO), v(vval), s(sbase, 2), mods="sc1")
        else: self.stores([self.store(4, v(vSO), v(vval), s(sbase, 2))])
        self.setexec(-1)
        self.label(lab)
    def signal2(self, sbase, vval, force_sc1=False):
        self.wait(vm=0); self.s_barrier()
        self.flag_store(sbase, vval, force_sc1)
    def stores_sc1(self, lst):
        for it in lst:
            if it[0] == "exec": self.setexec(it[1])
            else: self.I(it[0], it[1], it[2], it[3], mods=(it[4] + " sc1").strip())
    def first_flags(self):
        self.s_lshl_b32(s(sT), s(sG), 12); self.s_add_u32(s(sT + 1), s(sT), hex(OFF_XCC)); self.s_add_u32(s(sT), s(sT), hex(OFF_FL2 + 6 * 8 * 4096))
        self.v_mov_b32(v(16), s(sT + 1)); self.v_mov_b32(v(17), s(sT))
        self.s_mov_b32(s(sM1), 0); self.s_mov_b32(s(sM1 + 1), -1)
        self.v_cndmask_b32(v(16), v(16), v(17), s(sM1, 2)); self.v_add_u32(v(16), v(16), v(vPL))
        self.s_add_u32(s(sT + 2), s(sTOK), 64); self.s_add_u32(s(sT + 3), s(sTOK), 7)
        self.v_mov_b32(v(17), s(sT + 2)); self.v_mov_b32(v(18), s(sT + 3)); self.v_cndmask_b32(v(17), v(17), v(18), s(sM1, 2))
        self.v_mov_b32(v(18), 16); self.v_cndmask_b32(v(18), v(18), 1, s(sM1, 2))
        lp, dn = self.newlabel("xpoll"), self.newlabel("xpolld")
        self.label(lp)
        self.global_load_dword(v(4), v(vPL), s(sFZ, 2), mods="sc1")
        self.global_load_dword(v(5), v(16), s(sWS, 2), mods="sc1")
        self.s_cmp_eq_u32(s(sTO), 0); self.s_cbranch_scc1(dn)
        self.s_sub_u32(s(sTO), s(sTO), 1)
        self.wait(vm=0)
        self.v_cmp_ne_u32("vcc", s(sEXP), v(4)); self.s_and_b64(s(sM0, 2), "vcc", s(sMZ, 2))
        self.v_sub_u32(v(5), v(5), v(17))
        self.v_cmp_le_u32("vcc", v(18), v(5))
        self.s_or_b64("vcc", "vcc", s(sM0, 2)); self.s_cbranch_scc1(lp)
        self.label(dn)
        self.v_cmp_ne_u32("vcc", s(sXCC), v(5))
        self.s_and_b32(s(sT), "vcc_lo", -1)
        self.s_cselect_b32(s(sMODE), 1, 0)
        if self.o.get("force_slow"): self.s_mov_b32(s(sMODE), 1)
    def flagbase(self, d, phase_off_sreg_or_imm):
        self.smul(sT, sL, 3); self.s_add_u32(s(sT), s(sT), phase_off_sreg_or_imm)
        self.s_lshl_b32(s(sT), s(sT), 3); self.s_add_u32(s(sT), s(sT), s(sG)); self.s_lshl_b32(s(sT), s(sT), 12)
        self.base64(d, sWS, sT, OFF_FL2)

    def layer_bases2(self):
        self.s_lshl_b32(s(sT + 4), s(sL), 3); self.s_add_u32(s(sT + 4), s(sT + 4), s(sG))
        self.smul(sT + 1, sG, ZG)
        self.base64(sZB, sWS, sT + 1, OFF_Z); self.base64(sOB, sWS, sT + 1, OFF_O); self.base64(sAB, sWS, sT + 1, OFF_A)
        self.s_mov_b64(s(sZN, 2), s(sZB, 2))
        self.s_lshl_b32(s(sT + 2), s(sT + 4), 5); self.s_add_u32(s(sT + 2), s(sT + 2), s(sS))
        self.s_lshl_b32(s(sHFO), s(sT + 2), 7); self.s_add_u32(s(sHFO), s(sHFO), hex(OFF_HFL))
        self.s_sub_u32(s(sHFI), s(sHFO), 32 * 128)
        self.smul(sT + 2, sT + 2, HALO_SZ)
        self.base64(sHB, sWS, sT + 2, OFF_HALO - L_K)
        self.s_sub_u32(s(sT + 2), s(sT + 2), 32 * HALO_SZ)
        self.s_cmp_eq_u32(s(sG), 0); self.s_cselect_b32(s(sT + 2), 0, s(sT + 2))
        self.base64(sHP, sWS, sT + 2, OFF_HALO)
        self.flagbase(sFZ, 0)
        self.s_add_u32(s(sFO), s(sFZ), 8 * 4096); self.s_addc_u32(s(sFO + 1), s(sFZ + 1), 0)
        self.s_add_u32(s(sFA), s(sFO), 8 * 4096); self.s_addc_u32(s(sFA + 1), s(sFO + 1), 0)
        self.s_add_u32(s(sFN), s(sFA), 8 * 4096); self.s_addc_u32(s(sFN + 1), s(sFA + 1), 0)
        self.smul(sEXP, sL, 3); self.s_add_u32(s(sEXP), s(sEXP), s(sTOK)); self.s_add_u32(s(sEXP), s(sEXP), 1)
        self.s_add_u32(s(sHEXP), s(sTOK), s(sL)); self.s_add_u32(s(sHEXP), s(sHEXP), 16)

    def wave_sum2(self, a_, b_, t0, t1):
        for r in (a_, b_): self.v_add_f32_dpp(v(r), v(r), v(r), mods="quad_perm:[2,3,0,1] row_mask:0xf bank_mask:0xf")
        for r in (a_, b_): self.v_add_f32_dpp(v(r), v(r), v(r), mods="row_ror:4 row_mask:0xf bank_mask:0xf")
        for r in (a_, b_): self.v_add_f32_dpp(v(r), v(r), v(r), mods="row_ror:8 row_mask:0xf bank_mask:0xf")
        self.v_permlane16_swap_b32(v(a_), v(b_)); self.v_add_f32(v(a_), v(a_), v(b_))
        self.v_mov_b32(v(t0), v(a_)); self.v_permlane32_swap_b32(v(a_), v(t0)); self.v_add_f32(v(a_), v(a_), v(t0))
        self.v_mov_b32(v(b_), v(a_)); self.v_permlane16_swap_b32(v(a_), v(b_))

    def setup2(self):
        self.cold = []; self.cold2 = []
        self.s_cmp_ge_u32(s(2), 256); self.s_cbranch_scc1("L_END")
        self.s_load_dwordx4(s(4, 4), s(0, 2), 0); self.s_load_dwordx2(s(8, 2), s(0, 2), 16)
        self.s_load_dwordx8(s(12, 8), s(0, 2), 32); self.s_load_dwordx8(s(20, 8), s(0, 2), 64)
        self.s_getpc_b64(s(100, 2))
        self.label("L_PC")
        self.v_and_b32(v(vLANE), 63, v(vTID)); self.v_lshlrev_b32(v(vL16), 4, v(vLANE)); self.v_lshlrev_b32(v(vL8), 3, v(vLANE))
        self.v_lshrrev_b32(v(4), 6, v(vTID))
        self.s_and_b32(s(sG), s(2), 7); self.s_lshr_b32(s(sS), s(2), 3)
        self.v_readfirstlane_b32(s(sW), v(4))
        self.s_mov_b32(s(sTO), 400000); self.s_mov_b32(s(sMODE), 0); self.s_mov_b32(s(sL), 0)
        self.s_getreg_b32(s(sXCC), "hwreg(HW_REG_XCC_ID, 0, 4)")
        self.x_addr(8)
        self.wait(lg=0)
        if self.o.get("span"):
            self.stamps = True; self.stamp("t0"); self.stamps = False
        self.dstamp(0)
        self.s_load_dword(s(sTOK), s(sWS, 2), OFF_N)
    sPC = 100
    def code_prefetch(self, vd=224):
        self.v_lshlrev_b32(v(5), 7, v(vTID))
        self.v_min_u32(v(5), "L_HOTEND-L_PC-4", v(5))
        self.global_load_dword(v(vd), v(5), s(self.sPC, 2))
    def issue_x(self):
        for j in range(8, 12): self.v_mov_b32(v(vX + j), 0)
        self.global_load_dwordx4(v(vX, 4), v(8), s(sX, 2))
        self.global_load_dwordx4(v(vX + 4, 4), v(8), s(sX, 2), mods="offset:512")
        self.setexec(0xffffffff)
        self.global_load_dwordx4(v(vX + 8, 4), v(8), s(sX, 2), mods="offset:1024")
        self.setexec(-1)

    def w_addr(self):
        self.s_mov_b32(s(sSRD), s(sWQ)); self.s_mov_b32(s(sSRD + 1), s(sWQ + 1))
        self.s_mov_b32(s(sSRD + 2), 640 * 1920 * 2); self.s_mov_b32(s(sSRD + 3), "0x00020000")
        self.v_mul_u32_u24(v(8), 5462, v(vLANE)); self.v_lshrrev_b32(v(8), 16, v(8))
        self.v_mul_u32_u24(v(9), 12, v(8)); self.v_sub_u32(v(9), v(vLANE), v(9))
        self.v_lshrrev_b32(v(10), 2, v(9)); self.v_and_b32(v(11), 3, v(vLANE))
        self.smul(sT, sW, 160); self.v_add_u32(v(8), s(sT), v(8))
        self.s_mov_b32(s(sT + 1), 3840); self.v_mul_lo_u32(v(90), s(sT + 1), v(8))
        self.v_mul_u32_u24(v(91), 1280, v(10)); self.v_lshlrev_b32(v(14), 4, v(11)); self.v_add3_u32(v(90), v(90), v(91), v(14))
        self.smul(sT + 2, sS, 40); self.v_add_u32(v(90), s(sT + 2), v(90))
        self.v_lshlrev_b32(v(91), 5, v(10)); self.v_add_u32(v(91), v(91), v(14))
        self.v_cmp_eq_u32("vcc", 2, v(10)); self.v_add_u32(v(5), L_WT1 + 32, v(14)); self.v_cndmask_b32(v(91), v(91), v(5), "vcc")
        self.v_lshlrev_b32(v(5), 4, v(10)); self.v_min_u32(v(5), 24, v(5)); self.v_add_u32(v(5), L_WT1, v(5))
        self.v_cmp_eq_u32("vcc", 2, v(11)); self.v_cndmask_b32(v(91), v(91), v(5), "vcc")
        self.v_lshlrev_b32(v(8), 6, v(8)); self.v_add_u32(v(91), v(91), v(8))
    WM = sum(1 << l for l in range(60) if (l & 3) < 3)
    def w_issue(self, lo, hi):
        self.setexec(self.WM)
        self.s_mov_b32(s(sT + 3), lo * 5 * 3840)
        for i in range(lo, hi):
            self.buffer_load_dwordx4(v(96 + 4 * i, 4), v(90), s(sSRD + 0, 4), s(sT + 3), mods="offen")
            if i < hi - 1: self.s_add_u32(s(sT + 3), s(sT + 3), 5 * 3840)
        self.setexec(-1)
    def w_lds(self, lo, hi):
        m128 = sum(1 << l for l in range(60) if (l & 3) < 2); m64 = sum(1 << l for l in range(60) if (l & 3) == 2)
        self.setexec(m128)
        for i in range(lo, hi): self.ds_write_b128(v(91), v(96 + 4 * i, 4), mods=f"offset:{320 * i}")
        self.setexec(m64)
        for i in range(lo, hi): self.ds_write_b64(v(91), v(96 + 4 * i, 2), mods=f"offset:{320 * i}")
        self.setexec(-1)
    def w_zero(self):
        self.v_lshlrev_b32(v(10), 6, v(vTID)); self.v_add_u32(v(10), L_WT1 + 8, v(10))
        self.ds_write_b64(v(10), v(vZERO, 2)); self.ds_write_b64(v(10), v(vZERO, 2), mods=f"offset:{256 * 64}")
        lab = self.newlabel("wz")
        self.s_cmp_ge_u32(s(sW), 2); self.s_cbranch_scc1(lab)
        self.ds_write_b64(v(10), v(vZERO, 2), mods=f"offset:{512 * 64}")
        self.label(lab)

    def z_addr(self, va):
        self.s_lshr_b32(s(sT), s(sS), 2); self.smul(sT, sT, 40960)
        self.s_and_b32(s(sT + 1), s(sS), 3); self.s_lshl_b32(s(sT + 1), s(sT + 1), 7)
        self.s_add_u32(s(sT), s(sT), s(sT + 1)); self.s_lshl_b32(s(sT + 1), s(sW), 5); self.s_add_u32(s(sT), s(sT), s(sT + 1))
        self.v_lshrrev_b32(v(va), 1, v(vLANE)); self.v_lshlrev_b32(v(va), 9, v(va))
        self.v_and_b32(v(va + 1), 1, v(vLANE)); self.v_lshlrev_b32(v(va + 1), 4, v(va + 1))
        self.v_add3_u32(v(va), v(va), v(va + 1), s(sT))
        self.v_add_u32(v(va + 1), 32 * 512, v(va)); self.v_add_u32(v(va + 2), 64 * 512, v(va))
    def z_store_list(self, zp, sbase, va):
        return [self.store(16, v(va), v(zp, 4), s(sbase, 2)), self.store(16, v(va + 1), v(zp + 4, 4), s(sbase, 2)),
                ("exec", 0xffffffff), self.store(16, v(va + 2), v(zp + 8, 4), s(sbase, 2)), ("exec", -1)]

    CKP, CVP, CSP = 160, 188, 204
    def c0_issue(self):
        KP, VP, SP = self.CKP, self.CVP, self.CSP
        lab = self.newlabel("c0i")
        self.s_mov_b32(s(sSRD), s(sBK)); self.s_mov_b32(s(sSRD + 1), s(sBK + 1))
        self.s_mov_b32(s(sSRD + 2), 2048 * 1280); self.s_mov_b32(s(sSRD + 3), "0x00020000")
        self.v_mul_u32_u24(v(68), 6554, v(vTID)); self.v_lshrrev_b32(v(68), 16, v(68))
        self.v_mul_u32_u24(v(69), 10, v(68)); self.v_sub_u32(v(69), v(vTID), v(69))
        self.v_cmp_gt_u32("vcc", 160, v(vTID))
        self.s_and_saveexec_b64(s(sM0, 2), "vcc")
        self.s_cbranch_execz(lab)
        self.s_lshl_b32(s(sU), s(sS), 6); self.s_sub_u32(s(sU), s(sU), 3)
        self.v_lshl_add_u32(v(10), v(68), 2, s(sU))
        self.s_mov_b32(s(sU + 1), 1280); self.v_mul_lo_u32(v(10), s(sU + 1), v(10))
        self.smul(sU + 2, sG, 160); self.v_lshl_add_u32(v(11), v(69), 4, s(sU + 2)); self.v_add_u32(v(10), v(10), v(11))
        for j in range(7):
            self.buffer_load_dwordx4(v(KP + 4 * j, 4), v(10), s(sSRD, 4), 0, mods="offen")
            if j == 2: self.v_add_u32(v(12), 1280, v(10))
            self.v_add_u32(v(10), 1280, v(10))
        self.s_mov_b32(s(sSRD), s(sBV)); self.s_mov_b32(s(sSRD + 1), s(sBV + 1))
        for j in range(4):
            self.buffer_load_dwordx4(v(VP + 4 * j, 4), v(12), s(sSRD, 4), 0, mods="offen")
            self.v_add_u32(v(12), 1280, v(12))
        self.smul(sU + 2, sG, 640); self.v_lshl_add_u32(v(11), v(69), 6, s(sU + 2))
        for j in range(4): self.global_load_dwordx4(v(SP + 4 * j, 4), v(11), s(sSH, 2), mods=f"offset:{16 * j}")
        self.label(lab)
        self.s_mov_b64("exec", -1)
    def c0_compute(self):
        KP, VP, SP = self.CKP, self.CVP, self.CSP
        KF, SK, VF, U, PKD = 16, 30, 38, 46, 54
        lab = self.newlabel("c0c")
        self.v_cmp_gt_u32("vcc", 160, v(vTID))
        self.s_and_saveexec_b64(s(sM0, 2), "vcc")
        self.s_cbranch_execz(lab)
        self.v_mul_u32_u24(v(10), 1168, v(69)); self.v_lshlrev_b32(v(11), 3, v(68)); self.v_sub_u32(v(10), v(10), v(11))
        self.v_add_u32(v(10), L_K + 120, v(10))
        for m in range(4):
            for j in range(7):
                self.v_lshlrev_b32(v(KF + 2 * j), 16, v(KP + 4 * j + m)); self.v_and_b32(v(KF + 2 * j + 1), "0xffff0000", v(KP + 4 * j + m))
            for e in range(2):
                c = 2 * m + e
                self.v_lshlrev_b32(v(SK + 0 + e), 16, v(SP + 2 * c)); self.v_and_b32(v(SK + 2 + e), "0xffff0000", v(SP + 2 * c))
                self.v_lshlrev_b32(v(SK + 4 + e), 16, v(SP + 2 * c + 1)); self.v_and_b32(v(SK + 6 + e), "0xffff0000", v(SP + 2 * c + 1))
            for i in range(4):
                self.v_lshlrev_b32(v(VF + 2 * i), 16, v(VP + 4 * i + m)); self.v_and_b32(v(VF + 2 * i + 1), "0xffff0000", v(VP + 4 * i + m))
            for i in range(4): self.v_pk_mul_f32(v(U + 2 * i, 2), v(KF + 2 * i, 2), v(SK + 6, 2))
            for i in range(4): self.v_pk_fma_f32(v(U + 2 * i, 2), v(KF + 2 * (i + 1), 2), v(SK + 4, 2), v(U + 2 * i, 2))
            for i in range(4): self.v_pk_fma_f32(v(U + 2 * i, 2), v(KF + 2 * (i + 2), 2), v(SK + 2, 2), v(U + 2 * i, 2))
            for i in range(4): self.v_pk_fma_f32(v(U + 2 * i, 2), v(KF + 2 * (i + 3), 2), v(SK + 0, 2), v(U + 2 * i, 2))
            for i in range(4): self.v_pk_mul_f32(v(U + 2 * i, 2), v(U + 2 * i, 2), v(VF + 2 * i, 2))
            for e in range(2):
                p = PKD + 2 * e + 4 * (m & 1)
                self.v_cvt_pk_bf16_f32(v(p), v(U + 6 + e), v(U + 4 + e)); self.v_cvt_pk_bf16_f32(v(p + 1), v(U + 2 + e), v(U + e))
                self.ds_write_b64(v(10), v(p, 2), mods=f"offset:{144 * (2 * m + e)}")
        self.label(lab)
        self.s_mov_b64("exec", -1)
        self.wait(lg=0); self.s_barrier()
        self.v_lshrrev_b32(v(8), 6, v(vTID)); self.v_mul_u32_u24(v(8), 1168, v(8))
        self.v_bfe_u32(v(9), v(vTID), 3, 3); self.v_mul_u32_u24(v(9), 144, v(9))
        self.v_and_b32(v(10), 7, v(vTID)); self.v_lshlrev_b32(v(10), 4, v(10))
        self.v_add3_u32(v(8), v(8), v(9), v(10)); self.v_add_u32(v(8), L_K, v(8))
        self.smul(sU, sG, 80 * 4096); self.s_lshl_b32(s(sU + 1), s(sS), 7); self.s_sub_u32(s(sU), s(sU), s(sU + 1))
        self.s_add_u32(s(sU), s(sU), hex(OFF_R + 1984 * 2))
        self.v_lshrrev_b32(v(9), 3, v(vTID)); self.v_lshlrev_b32(v(9), 12, v(9)); self.v_add3_u32(v(9), v(9), v(10), s(sU))
        self.ds_read_b128(v(16, 4), v(8)); self.ds_read_b128(v(20, 4), v(8), mods=f"offset:{4 * 1168}")
        self.ds_read_b128(v(24, 4), v(8), mods=f"offset:{8 * 1168}")
        self.v_add_u32(v(11), 32 * 4096, v(9)); self.v_add_u32(v(14), 64 * 4096, v(9))
        self.wait(lg=0)
        self.global_store_dwordx4(v(9), v(16, 4), s(sWS, 2), mods="sc1"); self.global_store_dwordx4(v(11), v(20, 4), s(sWS, 2), mods="sc1")
        l1 = self.newlabel("c0s")
        self.s_cmp_ge_u32(s(sW), 2); self.s_cbranch_scc1(l1)
        self.global_store_dwordx4(v(14), v(24, 4), s(sWS, 2), mods="sc1")
        self.label(l1)

    ACC, ZR, WF = 16, 96, 160
    OA, OB, MSK = 176, 192, 208
    SA, SB, PP, KF0, KF1, VF0, VF1, KP0, KP1 = 16, 32, 48, 56, 60, 62, 66, 70, 74
    QA, QB = 80, 86
    vSA, vSB, vSC, vTR0, vTR1, vKA, vK1A, vVA = 224, 225, 226, 227, 228, 229, 230, 231
    vKB, vK1B, vVB = 12, 13, 14
    def zero16(self, d):
        self.v_mfma_f32_32x32x16_bf16(v(d, 16), v(vZERO, 4), v(vZERO, 4), 0)
    def qkv_addr(self):
        vzA, vzB, vw0, vw1 = 8, 9, 10, 11
        self.smul(sT, sW, 40960); self.v_add_u32(v(vzA), s(sT), v(vL16))
        self.s_sub_u32(s(sT + 1), 7, s(sW)); self.smul(sT + 1, sT + 1, 40960); self.v_add_u32(v(vzB), s(sT + 1), v(vL16))
        self.v_lshrrev_b32(v(4), 5, v(vLANE)); self.v_lshlrev_b32(v(4), 3, v(4))
        self.v_bfe_u32(v(5), v(vLANE), 2, 2); self.v_add_u32(v(4), v(4), v(5)); self.v_lshlrev_b32(v(4), 6, v(4))
        self.v_bfe_u32(v(5), v(vLANE), 4, 1); self.v_lshlrev_b32(v(5), 5, v(5))
        self.v_and_b32(v(vw0), 3, v(vLANE)); self.v_lshlrev_b32(v(vw0), 3, v(vw0))
        self.v_add3_u32(v(vw0), v(4), v(5), v(vw0)); self.v_add_u32(v(vw1), L_WT1, v(vw0))
    def qkv_init(self):
        for d in (16, 32, 48, 64): self.zero16(d)
        self.zero16(self.OA); self.zero16(self.OB)
        self.wread(0, 0)
    def wread(self, st, kk):
        for T, vw in ((0, 10), (1, 11)):
            r = self.WF + 8 * st + 4 * T
            self.ds_read_b64_tr_b16(v(r, 2), v(vw), mods=f"offset:{kk * 1024}")
            self.ds_read_b64_tr_b16(v(r + 2, 2), v(vw), mods=f"offset:{kk * 1024 + 256}")
    def zload(self, j, kk):
        ZR, vzA, vzB = self.ZR, 8, 9
        self.global_load_dwordx4(v(ZR + 8 * j, 4), v(vzA), s(sZB, 2), mods=f"offset:{(kk % 4) * 1024} sc1")
        self.global_load_dwordx4(v(ZR + 8 * j + 4, 4), v(vzB), s(sZB, 2), mods=f"offset:{(kk % 4) * 1024} sc1")
        if kk % 4 == 3:
            self.v_add_u32(v(vzA), 4096, v(vzA)); self.v_add_u32(v(vzB), 4096, v(vzB))
    def qkv_zissue(self):
        for j in range(8): self.zload(j, j)
    def qkv_run(self):
        ACC, ZR, WF = self.ACC, self.ZR, self.WF
        vzA, vzB, vw0, vw1 = 8, 9, 10, 11
        zload = self.zload
        def body(last):
            for j in range(8):
                st = j & 1
                if not (last and j == 7): self.wread(st ^ 1, j + 1)
                self.wait(vm=(14 - 2 * j) if last else 14, lg=0 if (last and j == 7) else 4)
                for blk in range(2):
                    for T in range(2):
                        d = ACC + 32 * blk + 16 * T
                        self.v_mfma_f32_32x32x16_bf16(v(d, 16), v(WF + 8 * st + 4 * T, 4), v(ZR + 8 * j + 4 * blk, 4), v(d, 16))
                if not last: zload(j, j)
            if not last:
                self.v_add_u32(v(vw0), 8192, v(vw0)); self.v_add_u32(v(vw1), 8192, v(vw1))
        lp = self.newlabel("qkv")
        self.s_mov_b32(s(sU), 4)
        self.label(lp)
        body(False)
        self.s_sub_u32(s(sU), s(sU), 1); self.s_cmp_lg_u32(s(sU), 0); self.s_cbranch_scc1(lp)
        body(True)

    def epi_prep(self):
        vSA, vSB, vSC, vTR0, vTR1 = self.vSA, self.vSB, self.vSC, self.vTR0, self.vTR1
        self.s_lshl_b32(s(sT), s(sW), 11); self.s_add_u32(s(sT), s(sT), L_VS)
        self.v_and_b32(v(4), 31, v(vLANE)); self.v_bfe_u32(v(5), v(4), 1, 3)
        self.v_lshlrev_b32(v(4), 6, v(4)); self.v_add_u32(v(4), s(sT), v(4))
        self.v_lshrrev_b32(v(vSA), 5, v(vLANE)); self.v_xor_b32(v(vSA), v(vSA), v(5)); self.v_lshl_add_u32(v(vSA), v(vSA), 3, v(4))
        self.v_xor_b32(v(vSB), 16, v(vSA))
        self.v_xor_b32(v(vSC), 40, v(vSA))
        self.v_xor_b32(v(4), 48, v(vSA))
        self.v_mov_b32(v(88), "0x3f80"); self.v_mov_b32(v(89), 0)
        self.ds_write_b64(v(4), v(88, 2))
        self.v_bfe_u32(v(4), v(vLANE), 2, 2); self.v_lshrrev_b32(v(5), 5, v(vLANE)); self.v_lshl_add_u32(v(4), v(5), 2, v(4))
        self.v_bfe_u32(v(5), v(vLANE), 4, 1); self.v_lshlrev_b32(v(5), 2, v(5)); self.v_and_b32(v(vTR0), 3, v(vLANE)); self.v_add_u32(v(5), v(5), v(vTR0))
        self.v_lshrrev_b32(v(vTR0), 1, v(4)); self.v_xor_b32(v(5), v(5), v(vTR0)); self.v_lshlrev_b32(v(5), 3, v(5))
        self.v_lshl_add_u32(v(vTR0), v(4), 6, v(5)); self.v_add_u32(v(vTR0), s(sT), v(vTR0)); self.v_xor_b32(v(vTR1), 32, v(vTR0))
        for (k0, k1, vv, blk) in ((self.vKA, self.vK1A, self.vVA, 0), (self.vKB, self.vK1B, self.vVB, 1)):
            if blk == 0: self.s_mov_b32(s(sT + 1), s(sW))
            else: self.s_sub_u32(s(sT + 1), 7, s(sW))
            self.smul(sT + 2, sT + 1, 1536); self.s_add_u32(s(sT + 2), s(sT + 2), L_K)
            self.v_add_u32(v(k0), s(sT + 2), v(vL16)); self.s_add_u32(s(sT + 2), s(sT + 2), 1024); self.v_add_u32(v(k1), s(sT + 2), v(vL8))
            self.s_lshl_b32(s(sT + 2), s(sT + 1), 11); self.s_add_u32(s(sT + 2), s(sT + 2), L_V); self.v_add_u32(v(vv), s(sT + 2), v(vL16))
        self.s_mov_b32(s(sU + 14), f32(math.log2(math.e) / math.sqrt(20.0))); self.s_mov_b32(s(sU + 15), s(sU + 14))
    def epi_run(self):
        ACC = self.ACC
        sets = []
        for blk in range(2):
            A0 = ACC + 32 * blk; A1 = A0 + 16
            Q = self.QA if blk == 0 else self.QB
            PK = 96 + 24 * blk
            K0, K1, VV, VF = PK, PK + 4, PK + 6, PK + 12
            sets.append((K0, K1, VV, VF))
            self.pack(K1, A1 + 4, 2); self.pack(VV, A1 + 8, 4)
            self.ds_write_b64(v(self.vSC), v(K1, 2)); self.ds_write_b64(v(self.vSA), v(VV, 2)); self.ds_write_b64(v(self.vSB), v(VV + 2, 2))
            self.pack(K0, A0 + 8, 4)
            for m in range(4): self.ds_read_b64_tr_b16(v(VF + 2 * m, 2), v(self.vTR1 if m & 1 else self.vTR0), mods=f"offset:{512 * m}")
            k0, k1, vv = (self.vKA, self.vK1A, self.vVA) if blk == 0 else (self.vKB, self.vK1B, self.vVB)
            self.ds_write_b128(v(k0), v(K0, 4)); self.ds_write_b64(v(k1), v(K1, 2))
            self.global_store_dwordx4(v(k0), v(K0, 4), s(sHB, 2), mods="sc1")
            self.global_store_dwordx2(v(k1), v(K1, 2), s(sHB, 2), mods="sc1")
            for r in (0, 2, 4, 6): self.v_pk_mul_f32(v(A0 + r, 2), v(A0 + r, 2), s(sU + 14, 2))
            for r in (0, 2): self.v_pk_mul_f32(v(A1 + r, 2), v(A1 + r, 2), s(sU + 14, 2))
            self.pack(Q, A0, 4); self.pack(Q + 4, A1, 2)
            self.wait(lg=2)
            self.ds_write_b128(v(vv), v(VF, 4)); self.ds_write_b128(v(vv), v(VF + 4, 4), mods="offset:1024")
            self.global_store_dwordx4(v(vv), v(VF, 4), s(sHB, 2), mods="sc1")
            self.global_store_dwordx4(v(vv), v(VF + 4, 4), s(sHB, 2), mods="offset:1024 sc1")
        self.wait(lg=0); self.s_barrier()

    def mask_gen(self, far):
        self.v_and_b32(v(4), 31, v(vLANE)); self.v_lshrrev_b32(v(5), 5, v(vLANE)); self.v_lshlrev_b32(v(5), 2, v(5))
        self.v_sub_u32(v(4), v(4), v(5))
        self.v_mov_b32(v(5), f32(-1e30))
        for r in range(16):
            kk = 8 * (r >> 2) + (r & 3)
            self.v_cmp_le_i32(s(sU + 2 * (r & 3), 2), kk, v(4))
            if r >= 1:
                q = r - 1
                self._msel(q, far)
        self._msel(15, far)
    def _msel(self, r, far):
        if far: self.v_cndmask_b32(v(self.MSK + r), 0, v(5), s(sU + 2 * (r & 3), 2))
        else: self.v_cndmask_b32(v(self.MSK + r), v(5), 0, s(sU + 2 * (r & 3), 2))

    def halo_publish(self):
        lab = self.newlabel("hp"); l0, l1 = self.newlabel("hw"), self.newlabel("hw")
        self.s_cmp_lg_u32(s(sL), 0); self.s_cbranch_scc1(l0)
        self.wait(vm=self.N_C1); self.s_branch(l1)
        self.label(l0); self.wait(vm=0); self.label(l1)
        self.setexec(1)
        self.v_mov_b32(v(4), L_CNT); self.v_mov_b32(v(5), 1)
        self.ds_add_rtn_u32(v(5), v(4), v(5))
        self.wait(lg=0)
        self.v_readfirstlane_b32(s(sT), v(5))
        self.s_and_b32(s(sT), s(sT), 3); self.s_cmp_lg_u32(s(sT), 3); self.s_cbranch_scc1(lab)
        self.v_mov_b32(v(4), s(sHFO)); self.v_mov_b32(v(5), s(sHEXP))
        self.global_store_dword(v(4), v(5), s(sWS, 2), mods="sc1")
        self.label(lab)
        self.setexec(-1)

    CD, CE, CR, CDV = 96, 112, 120, 128
    C2D, C2E, C2R, C2DV = 164, 170, 224, 228
    CH_SZ = 24832
    def conv_srd(self):
        self.s_mov_b32(s(sSRD), s(sSK)); self.s_mov_b32(s(sSRD + 1), s(sSK + 1))
        self.s_mov_b32(s(sSRD + 2), 640 * 4096); self.s_mov_b32(s(sSRD + 3), "0x00020000")
    def conv1_issue(self):
        D, R = self.CD, self.CR
        self.smul(sT, sG, 80); self.s_lshl_b32(s(sT + 1), s(sS), 1); self.s_add_u32(s(sT + 1), s(sT + 1), s(sT))
        self.s_lshr_b32(s(sT + 2), s(sW), 1); self.s_add_u32(s(sT + 1), s(sT + 1), s(sT + 2))
        self.s_lshl_b32(s(sT + 3), s(sT + 1), 12)
        self.conv_srd()
        self.v_and_b32(v(4), 127, v(vTID)); self.v_lshlrev_b32(v(4), 4, v(4))
        for i in range(2):
            self.buffer_load_dwordx4(v(D + 8 * i, 4), v(4), s(sSRD, 4), s(sT + 3), mods=f"offen offset:{2048 * i}")
            self.buffer_load_dwordx2(v(D + 8 * i + 4, 2), v(4), s(sSRD, 4), s(sT + 3), mods=f"offen offset:{2048 * i + 16}")
        self.s_add_u32(s(sT + 4), s(sT + 3), hex(OFF_R)); self.v_add_u32(v(5), s(sT + 4), v(4))
        self.global_load_dwordx4(v(R, 4), v(5), s(sWS, 2), mods="sc1")
        self.global_load_dwordx4(v(R + 4, 4), v(5), s(sWS, 2), mods="offset:2048 sc1")
        self.s_lshr_b32(s(sT + 4), s(sT + 1), 1); self.s_lshl_b32(s(sT + 4), s(sT + 4), 2); self.v_mov_b32(v(5), s(sT + 4))
        self.global_load_dword(v(self.CDV), v(5), s(sSD, 2))
        self.v_min_u32(v(5), 199, v(vTID)); self.v_lshlrev_b32(v(5), 7, v(5)); self.smul(sT + 4, sS, 25600); self.v_add_u32(v(5), s(sT + 4), v(5))
        self.global_load_dword(v(231), v(5), s(sWO, 2))
    N_C1 = 8

    def pretouch_addr(self, va):
        self.v_min_u32(v(va), 159, v(vTID)); self.v_lshlrev_b32(v(va), 7, v(va))
        self.smul(sT, sG, ZG); self.smul(sT + 1, sS, 10240); self.s_add_u32(s(sT), s(sT), s(sT + 1)); self.s_add_u32(s(sT), s(sT), hex(OFF_O))
        self.v_add_u32(v(va), s(sT), v(va))
        self.v_add_u32(v(5), OFF_A - OFF_O - 80 * 128, v(va))
        self.v_cmp_gt_u32("vcc", 80, v(vTID)); self.v_cndmask_b32(v(va), v(5), v(va), "vcc")

    WOL = (0, 100)
    vWG = 14
    def wo_addr(self):
        self.s_and_b32(s(sT), s(sS), 7); self.smul(sT, sT, 160)
        self.v_min_u32(v(4), 49, v(vLANE))
        self.v_mul_u32_u24(v(5), 6554, v(4)); self.v_lshrrev_b32(v(5), 16, v(5))
        self.v_mul_u32_u24(v(self.vWG), 10, v(5)); self.v_sub_u32(v(4), v(4), v(self.vWG))
        self.smul(sT + 1, sW, 80); self.v_add_u32(v(5), s(sT + 1), v(5))
        self.v_mul_u32_u24(v(self.vWG), 1280, v(5)); self.v_lshl_add_u32(v(self.vWG), v(4), 4, v(self.vWG)); self.v_add_u32(v(self.vWG), s(sT), v(self.vWG))
    def wo_srd(self):
        self.s_mov_b32(s(sSRD), s(sWO)); self.s_mov_b32(s(sSRD + 1), s(sWO + 1))
        self.s_mov_b32(s(sSRD + 2), 640 * 640 * 2); self.s_mov_b32(s(sSRD + 3), "0x00020000")
    def wo_issue_one(self, n):
        hh, i = divmod(n, 16)
        self.s_mov_b32(s(sT + 7), hh * 320 * 1280 + i * 5 * 1280)
        self.buffer_load_dwordx4(a(self.WOL[hh] + 4 * i, 4), v(self.vWG), s(sSRD, 4), s(sT + 7), mods="offen")
    def wo_stage(self):
        self.v_min_u32(v(4), 49, v(vLANE))
        self.v_mul_u32_u24(v(8), 6554, v(4)); self.v_lshrrev_b32(v(8), 16, v(8))
        self.v_mul_u32_u24(v(9), 10, v(8)); self.v_sub_u32(v(9), v(4), v(9))
        self.smul(sT + 1, sW, 80); self.v_add_u32(v(8), s(sT + 1), v(8))
        self.v_mul_u32_u24(v(11), 160, v(8)); self.v_lshl_add_u32(v(11), v(9), 4, v(11)); self.v_add_u32(v(11), L_K, v(11))
        self.s_lshr_b32(s(sT), s(sW), 1)
        self.v_lshrrev_b32(v(12), 4, v(vLANE)); self.v_bfe_u32(v(13), v(vLANE), 2, 2)
        self.v_and_b32(v(16), 3, v(vLANE)); self.v_lshlrev_b32(v(16), 3, v(16)); self.v_add_u32(v(16), L_K, v(16))
        self.v_lshrrev_b32(v(17), 1, v(12)); self.v_mul_u32_u24(v(17), 20, v(17))
        self.v_and_b32(v(18), 1, v(12)); self.v_lshl_add_u32(v(17), v(18), 2, v(17)); self.v_add_u32(v(17), v(17), v(13))
        self.v_mul_u32_u24(v(17), 160, v(17)); self.v_add_u32(v(17), v(17), v(16))
        self.v_mul_u32_u24(v(18), 40, v(12)); self.v_add3_u32(v(18), v(18), v(13), 16)
        self.v_mul_u32_u24(v(18), 160, v(18)); self.v_add_u32(v(18), v(18), v(16))
        self.smul(sT + 1, sT, 32000); self.v_add_u32(v(17), s(sT + 1), v(17))
        self.s_cmp_eq_u32(s(sT), 0)
        self.s_mov_b32(s(sT + 4), 25600); self.s_mov_b32(s(sT + 5), 3200)
        self.s_cselect_b32(s(sT + 2), 6400, s(sT + 4)); self.s_cselect_b32(s(sT + 3), 1280, s(sT + 5))
        self.s_cselect_b64(s(sM0, 2), -1, 0)
        self.v_add_u32(v(19), 3 * 6400, v(17)); self.v_cndmask_b32(v(19), v(18), v(19), s(sM0, 2))
        self.v_add_u32(v(20), s(sT + 3), v(19)); self.v_add_u32(v(21), s(sT + 2), v(19)); self.v_add_u32(v(22), s(sT + 3), v(21))
        for hh in range(2):
            self.setexec((1 << 50) - 1)
            for i in range(16): self.ds_write_b128(v(11), a(self.WOL[hh] + 4 * i, 4), mods=f"offset:{800 * i}")
            self.setexec(-1)
            self.wait(lg=0); self.s_barrier()
            n = 0
            for jj in range(5):
                for ct in range(5):
                    d = ((5 * hh + jj) * 5 + ct) * 4
                    if n >= 12 and ct in (0, 2, 4): self.wait(lg=9)
                    if jj < 3:
                        self.ds_read_b64_tr_b16(a(d, 2), v(17), mods=f"offset:{6400 * jj + 32 * ct}")
                        self.ds_read_b64_tr_b16(a(d + 2, 2), v(17), mods=f"offset:{6400 * jj + 32 * ct + 1280}")
                    else:
                        self.ds_read_b64_tr_b16(a(d, 2), v(19 + 2 * (jj - 3)), mods=f"offset:{32 * ct}")
                        self.ds_read_b64_tr_b16(a(d + 2, 2), v(20 + 2 * (jj - 3)), mods=f"offset:{32 * ct}")
                    n += 2
            self.wait(lg=0)
            if hh == 1: self.wait(vm=0)
            self.s_barrier()

    def conv_head(self, sbase, sch, D, DV):
        self.v_readlane_b32(s(sT + 6), v(D), 0); self.v_readlane_b32(s(sT + 7), v(D + 1), 0)
        self.v_readfirstlane_b32(s(sT + 8), v(DV))
        self.s_and_b32(s(sT + 9), s(sch), 1); self.s_lshl_b32(s(sT + 9), s(sT + 9), 4)
        self.s_lshr_b32(s(sT + 8), s(sT + 8), s(sT + 9)); self.s_lshl_b32(s(sT + 8), s(sT + 8), 16)
        self.s_lshl_b32(s(sT + 9), s(sT + 6), 16)
        self.v_mov_b32(v(16), s(sT + 8)); self.v_add_f32(v(16), s(sT + 9), v(16))
        self.v_cvt_pk_bf16_f32(v(16), v(16), v(16)); self.v_and_b32(v(16), "0xffff", v(16))
        self.s_and_b32(s(sT + 6), s(sT + 6), "0xffff0000"); self.v_or_b32(v(16), s(sT + 6), v(16))
        self.v_mov_b32(v(17), s(sT + 7))
        self.v_lshrrev_b32(v(18), 2, v(vLANE)); self.v_sub_u32(v(19), 3, v(18)); self.v_lshlrev_b32(v(19), 4, v(19)); self.v_and_b32(v(19), 63, v(19))
        self.v_lshlrev_b64(v(26, 2), v(19), v(16, 2))
        self.v_and_b32(v(19), 3, v(vLANE)); self.v_cmp_eq_u32("vcc", 3, v(19))
        self.v_mov_b32(v(24), 0); self.v_mov_b32(v(25), 0)
        self.v_cndmask_b32(v(26), 0, v(26), "vcc"); self.v_cndmask_b32(v(27), 0, v(27), "vcc")
        self.v_mul_u32_u24(v(18), 4160, v(18)); self.v_lshl_add_u32(v(18), v(19), 4, v(18)); self.v_add_u32(v(18), s(sbase), v(18))
        self.setexec(0xffff); self.ds_write_b128(v(18), v(24, 4)); self.setexec(-1)
    def conv_copies(self, vaddr, d, e, off):
        AL = 132
        for j in range(4): self.v_alignbit_b32(v(AL + j), v(d + j + 1), v(d + j), 16)
        for j in range(3): self.v_mov_b32(v(AL + 4 + j), v(AL + 1 + j))
        self.v_alignbit_b32(v(AL + 7), v(d + 5), v(d + 4), 16)
        for j in range(4): self.v_mov_b32(v(e + j), v(d + 1 + j))
        self.ds_write_b128(v(vaddr), v(AL, 4), mods=f"offset:{off}")
        self.ds_write_b128(v(vaddr), v(e, 4), mods=f"offset:{off + 4160}")
        self.ds_write_b128(v(vaddr), v(AL + 4, 4), mods=f"offset:{off + 2 * 4160}")
        self.ds_write_b128(v(vaddr), v(d + 2, 4), mods=f"offset:{off + 3 * 4160}")
    def conv_addr(self, sbase, sstep0):
        self.v_and_b32(v(10), 3, v(vLANE)); self.v_mul_u32_u24(v(10), 4160, v(10))
        self.v_bfe_u32(v(11), v(vLANE), 2, 3); self.v_lshl_add_u32(v(10), v(11), 3, v(10))
        self.v_lshrrev_b32(v(11), 5, v(vLANE)); self.v_lshl_add_u32(v(10), v(11), 4, v(10))
        self.s_lshl_b32(s(sT + 6), s(sstep0), 5); self.s_add_u32(s(sT + 6), s(sT + 6), s(sbase)); self.v_add_u32(v(8), s(sT + 6), v(10))
        self.v_and_b32(v(10), 31, v(vLANE)); self.v_sub_u32(v(10), 31, v(10)); self.v_mul_u32_u24(v(10), 5, v(10))
        self.v_add_u32(v(10), v(10), v(11)); self.v_lshlrev_b32(v(10), 4, v(10))
        self.smul(sT + 6, sstep0, 40); self.s_add_u32(s(sT + 6), s(sT + 6), s(sbase)); self.s_add_u32(s(sT + 6), s(sT + 6), 16640)
        self.v_add_u32(v(9), s(sT + 6), v(10))

    def conv1_run(self):
        D, E, R = self.CD, self.CE, self.CR
        sB, sCHN, sHW = sU + 2, sU + 1, sU + 5
        self.s_lshr_b32(s(sU), s(sW), 1); self.smul(sB, sU, self.CH_SZ); self.s_add_u32(s(sB), s(sB), L_K)
        self.smul(sT, sG, 80); self.s_lshl_b32(s(sCHN), s(sS), 1); self.s_add_u32(s(sCHN), s(sCHN), s(sT)); self.s_add_u32(s(sCHN), s(sCHN), s(sU))
        self.s_and_b32(s(sHW), s(sW), 1)
        self.v_and_b32(v(8), 127, v(vTID)); self.v_lshlrev_b32(v(9), 4, v(8))
        self.v_add_u32(v(11), s(sB), v(9))
        self.ds_write_b128(v(11), v(vZERO, 4), mods=f"offset:{16640 + 320 * 16}")
        self.v_and_b32(v(16), 63, v(8)); self.v_lshlrev_b32(v(16), 4, v(16)); self.v_add_u32(v(16), s(sB), v(16))
        self.ds_write_b128(v(16), v(vZERO, 4), mods=f"offset:{16640 + 448 * 16}")
        self.v_add_u32(v(11), 64, v(11))
        self.v_lshrrev_b32(v(12), 2, v(8)); self.v_add_u32(v(12), v(12), v(8)); self.v_lshlrev_b32(v(12), 4, v(12)); self.v_add_u32(v(12), s(sB), v(12))
        self.wo_addr(); self.pretouch_addr(13)
        self.v_mov_b32(v(229), v(13))
        self.wait(vm=1)
        if self.o.get("fine"): self.stamp("c1ld")
        for i in range(2): self.conv_copies(11, D + 8 * i, E + 4 * i, 2048 * i)
        self.ds_write_b128(v(12), v(R, 4), mods="offset:16640"); self.ds_write_b128(v(12), v(R + 4, 4), mods=f"offset:{16640 + 160 * 16}")
        lab = self.newlabel("hd")
        self.s_cmp_lg_u32(s(sHW), 0); self.s_cbranch_scc1(lab)
        self.conv_head(sB, sCHN, D, self.CDV)
        self.label(lab)
        LO, HI, F = 16, 32, 96
        self.s_lshl_b32(s(sT + 5), s(sHW), 5)
        self.conv_addr(sB, sT + 5)
        self.wait(lg=0); self.s_barrier()
        if self.o.get("fine"): self.stamp("c1fill")
        self.zero16(LO); self.zero16(HI)
        def rd(m):
            f = F + 16 * (m & 3); oa = 32 * m; ob = 80 * (m >> 1) + 32 * (m & 1)
            return [lambda: self.ds_read_b64(v(f, 2), v(8), mods=f"offset:{oa}"), lambda: self.ds_read_b64(v(f + 2, 2), v(8), mods=f"offset:{oa + 8}"),
                    lambda: self.ds_read_b128(v(f + 8, 4), v(9), mods=f"offset:{ob + 2560}"), lambda: self.ds_read_b128(v(f + 12, 4), v(9), mods=f"offset:{ob}"),
                    lambda: self.ds_read_b64(v(f + 4, 2), v(8), mods=f"offset:{oa + 2048}"), lambda: self.ds_read_b64(v(f + 6, 2), v(8), mods=f"offset:{oa + 2056}")]
        self.conv2_issue()
        self.wo_srd()
        for m in (0, 1):
            for f_ in rd(m): f_()
        for m in range(32):
            f = F + 16 * (m & 3)
            nx = rd(m + 2) if m + 2 < 32 else [lambda: None] * 6
            self.wait(lg=6 if m < 31 else 0)
            self.v_mfma_f32_32x32x16_bf16(v(LO, 16), v(f, 4), v(f + 8, 4), v(LO, 16)); nx[0](); nx[1]()
            self.v_mfma_f32_32x32x16_bf16(v(HI, 16), v(f, 4), v(f + 12, 4), v(HI, 16)); nx[2](); nx[3]()
            self.v_mfma_f32_32x32x16_bf16(v(HI, 16), v(f + 4, 4), v(f + 8, 4), v(HI, 16)); nx[4](); nx[5]()
            self.wo_issue_one(m)
        self.global_load_dword(v(230), v(229), s(sWS, 2))
        if self.o.get("fine"): self.stamp("c1main")
        XB = L_HK
        self.s_lshl_b32(s(sT + 6), s(sW), 12); self.s_add_u32(s(sT + 6), s(sT + 6), XB); self.v_add_u32(v(10), s(sT + 6), v(vL16))
        self.s_xor_b32(s(sT + 7), s(sW), 1); self.s_lshl_b32(s(sT + 7), s(sT + 7), 12); self.s_add_u32(s(sT + 7), s(sT + 7), XB)
        self.v_add_u32(v(11), s(sT + 7), v(vL16))
        self.s_lshl_b32(s(sT + 6), s(sW), 11); self.s_add_u32(s(sT + 6), s(sT + 6), XB + 16384)
        self.v_and_b32(v(12), 31, v(vLANE)); self.v_lshlrev_b32(v(12), 6, v(12))
        self.v_lshrrev_b32(v(13), 5, v(vLANE)); self.v_lshl_add_u32(v(12), v(13), 3, v(12)); self.v_add_u32(v(12), s(sT + 6), v(12))
        self.v_add_u32(v(13), s(sT + 6), v(vL16))
        self.s_lshl_b32(s(sT + 6), s(sHW), 11); self.s_lshl_b32(s(sT + 7), s(sCHN), 12); self.s_add_u32(s(sT + 6), s(sT + 6), s(sT + 7))
        self.s_add_u32(s(sT + 6), s(sT + 6), hex(OFF_Y))
        l1, l2 = self.newlabel("cx"), self.newlabel("cy")
        self.s_cmp_lg_u32(s(sHW), 0); self.s_cbranch_scc1(l1)
        for role, (keep, send) in enumerate(((LO, HI), (HI, LO))):
            if role: self.label(l1)
            for q in range(4): self.ds_write_b128(v(10), v(send + 4 * q, 4), mods=f"offset:{1024 * q}")
            self.wait(lg=0); self.s_barrier()
            for q in range(4): self.ds_read_b128(v(F + 4 * q, 4), v(11), mods=f"offset:{1024 * q}")
            for q in range(4):
                self.wait(lg=3 - q)
                for r in (0, 2): self.v_pk_add_f32(v(keep + 4 * q + r, 2), v(keep + 4 * q + r, 2), v(F + 4 * q + r, 2))
                self.pack(F + 16 + 2 * q, keep + 4 * q, 2)
                if q == 2: pass
            for q in range(4): self.ds_write_b64(v(12), v(F + 16 + 2 * q, 2), mods=f"offset:{16 * q}")
            if role == 0: self.s_branch(l2)
        self.label(l2)
        self.v_add_u32(v(10), s(sT + 6), v(vL16))
        self.ds_read_b128(v(LO, 4), v(13)); self.ds_read_b128(v(LO + 4, 4), v(13), mods="offset:1024")
        self.wait(lg=0)
        self.global_store_dwordx4(v(10), v(LO, 4), s(sWS, 2), mods="sc1")
        self.global_store_dwordx4(v(10), v(LO + 4, 4), s(sWS, 2), mods="offset:1024 sc1")

    def conv2_issue(self):
        D, E, R = self.C2D, self.C2E, self.C2R
        self.smul(sT, sG, 80); self.s_lshr_b32(s(sT + 1), s(sS), 1); self.s_add_u32(s(sT + 1), s(sT + 1), s(sT)); self.s_add_u32(s(sT + 1), s(sT + 1), 64)
        self.s_lshl_b32(s(sT + 3), s(sT + 1), 12)
        self.conv_srd()
        self.v_lshlrev_b32(v(4), 4, v(vTID))
        self.buffer_load_dwordx4(v(D, 4), v(4), s(sSRD, 4), s(sT + 3), mods="offen")
        self.buffer_load_dwordx2(v(D + 4, 2), v(4), s(sSRD, 4), s(sT + 3), mods="offen offset:16")
        self.s_add_u32(s(sT + 4), s(sT + 3), hex(OFF_R)); self.v_add_u32(v(5), s(sT + 4), v(4))
        self.global_load_dwordx4(v(R, 4), v(5), s(sWS, 2), mods="sc1")
        self.s_lshr_b32(s(sT + 4), s(sT + 1), 1); self.s_lshl_b32(s(sT + 4), s(sT + 4), 2); self.v_mov_b32(v(5), s(sT + 4))
        self.global_load_dword(v(self.C2DV), v(5), s(sSD, 2))
    def conv2_run(self):
        D, E, R = self.C2D, self.C2E, self.C2R
        sB, sCHN, sPART = sU + 2, sU + 1, sU + 5
        self.s_mov_b32(s(sB), L_K)
        self.smul(sT, sG, 80); self.s_lshr_b32(s(sCHN), s(sS), 1); self.s_add_u32(s(sCHN), s(sCHN), s(sT)); self.s_add_u32(s(sCHN), s(sCHN), 64)
        self.s_and_b32(s(sPART), s(sS), 1)
        self.v_lshlrev_b32(v(9), 4, v(vTID)); self.v_add_u32(v(11), L_K, v(9))
        self.v_min_u32(v(16), 191, v(vTID)); self.v_lshlrev_b32(v(16), 4, v(16)); self.v_add_u32(v(16), L_K, v(16))
        self.ds_write_b128(v(16), v(vZERO, 4), mods=f"offset:{16640 + 320 * 16}")
        self.v_add_u32(v(11), 64, v(11))
        self.v_lshrrev_b32(v(12), 2, v(vTID)); self.v_add_u32(v(12), v(12), v(vTID)); self.v_lshlrev_b32(v(12), 4, v(12)); self.v_add_u32(v(12), L_K, v(12))
        self.wait(vm=35)
        self.conv_copies(11, D, E, 0)
        self.ds_write_b128(v(12), v(R, 4), mods="offset:16640")
        lab = self.newlabel("hd")
        self.s_cmp_lg_u32(s(sW), 0); self.s_cbranch_scc1(lab)
        self.conv_head(sB, sCHN, D, self.C2DV)
        self.label(lab)
        AC, F = 16, 96
        self.s_lshl_b32(s(sT + 5), s(sW), 4)
        self.conv_addr(sB, sT + 5)
        self.wait(lg=0); self.s_barrier()
        self.zero16(AC)
        def reads(st, par, extra, hi):
            f = F + 16 * st
            oa, ob = 32 * par + extra * 64, 32 * par + extra * 80
            self.ds_read_b64(v(f, 2), v(8), mods=f"offset:{oa}"); self.ds_read_b64(v(f + 2, 2), v(8), mods=f"offset:{oa + 8}")
            self.ds_read_b128(v(f + 8, 4), v(9), mods=f"offset:{ob + 2560}")
            if hi:
                self.ds_read_b128(v(f + 12, 4), v(9), mods=f"offset:{ob}")
                self.ds_read_b64(v(f + 4, 2), v(8), mods=f"offset:{oa + 2048}"); self.ds_read_b64(v(f + 6, 2), v(8), mods=f"offset:{oa + 2056}")
        def mm(st, hi):
            f = F + 16 * st
            if hi:
                self.v_mfma_f32_32x32x16_bf16(v(AC, 16), v(f, 4), v(f + 12, 4), v(AC, 16))
                self.v_mfma_f32_32x32x16_bf16(v(AC, 16), v(f + 4, 4), v(f + 8, 4), v(AC, 16))
            else:
                self.v_mfma_f32_32x32x16_bf16(v(AC, 16), v(f, 4), v(f + 8, 4), v(AC, 16))
        lhi, ldone = self.newlabel("c2hi"), self.newlabel("c2d")
        self.s_mov_b32(s(sT + 6), 8)
        self.s_cmp_lg_u32(s(sPART), 0); self.s_cbranch_scc1(lhi)
        for hi in (0, 1):
            if hi: self.label(lhi)
            n = 6 if hi else 3
            reads(0, 0, 0, hi)
            lp = self.newlabel("cv")
            self.label(lp)
            reads(1, 1, 0, hi); self.wait(lg=n); mm(0, hi)
            reads(0, 0, 1, hi); self.wait(lg=n); mm(1, hi)
            self.v_add_u32(v(8), 64, v(8)); self.v_add_u32(v(9), 80, v(9))
            self.s_sub_u32(s(sT + 6), s(sT + 6), 1); self.s_cmp_lg_u32(s(sT + 6), 0); self.s_cbranch_scc1(lp)
            if not hi: self.s_branch(ldone)
        self.label(ldone)
        XB = L_HK
        self.s_lshl_b32(s(sT + 6), s(sW), 12); self.s_add_u32(s(sT + 6), s(sT + 6), XB); self.v_add_u32(v(10), s(sT + 6), v(vL16))
        self.s_lshl_b32(s(sT + 6), s(sW), 10); self.s_add_u32(s(sT + 6), s(sT + 6), XB); self.v_add_u32(v(11), s(sT + 6), v(vL16))
        self.v_and_b32(v(12), 31, v(vLANE)); self.v_lshlrev_b32(v(12), 6, v(12))
        self.v_lshrrev_b32(v(13), 5, v(vLANE)); self.v_lshl_add_u32(v(12), v(13), 3, v(12))
        self.s_lshl_b32(s(sT + 6), s(sW), 4); self.s_add_u32(s(sT + 6), s(sT + 6), XB + 16384); self.v_add_u32(v(12), s(sT + 6), v(12))
        for j in range(4): self.ds_write_b128(v(10), v(AC + 4 * j, 4), mods=f"offset:{1024 * j}")
        self.v_lshlrev_b32(v(13), 4, v(vTID)); self.v_add_u32(v(10), XB + 16384, v(13))
        self.s_lshl_b32(s(sT + 6), s(sPART), 11); self.s_lshl_b32(s(sT + 7), s(sCHN), 12); self.s_add_u32(s(sT + 6), s(sT + 6), s(sT + 7))
        self.s_add_u32(s(sT + 6), s(sT + 6), hex(OFF_Y)); self.v_add_u32(v(13), s(sT + 6), v(13))
        self.wait(lg=0); self.s_barrier()
        for j in range(4): self.ds_read_b128(v(F + 4 * j, 4), v(11), mods=f"offset:{4096 * j}")
        self.wait(lg=0)
        for r in (0, 2):
            self.v_pk_add_f32(v(F + r, 2), v(F + r, 2), v(F + 4 + r, 2)); self.v_pk_add_f32(v(F + 8 + r, 2), v(F + 8 + r, 2), v(F + 12 + r, 2))
        for r in (0, 2): self.v_pk_add_f32(v(F + r, 2), v(F + r, 2), v(F + 8 + r, 2))
        self.pack(F + 16, F, 2)
        self.ds_write_b64(v(12), v(F + 16, 2))
        self.wait(lg=0); self.s_barrier()
        lab = self.newlabel("c2s")
        self.s_cmp_ge_u32(s(sW), 2); self.s_cbranch_scc1(lab)
        self.ds_read_b128(v(16, 4), v(10))
        self.wait(lg=0)
        self.global_store_dwordx4(v(13), v(16, 4), s(sWS, 2), mods="sc1")
        self.label(lab)

    def attn_local(self):
        sKb, sVb, sN, sMI = sU + 6, sU + 7, sU + 8, sU + 9
        self.s_mov_b32(s(sKb), L_K); self.s_mov_b32(s(sVb), L_V)
        self.s_sub_u32(s(sN), 8, s(sW)); self.s_sub_u32(s(sMI), 7, s(sW))
        self.attn_seq(self.QB, self.OB, sKb, sVb, sN, sMI)
        self.halo_publish()
        self.s_add_u32(s(sN), s(sW), 1); self.s_mov_b32(s(sMI), s(sW))
        self.attn_seq(self.QA, self.OA, sKb, sVb, sN, sMI)

    def halo_prep(self):
        self.mask_gen(True)
        self.smul(sT, sW, 7168); self.v_add_u32(v(8), s(sT), v(vL16)); self.v_add_u32(v(10), 4096, v(8)); self.v_add_u32(v(9), L_HK, v(8))
        self.v_mov_b32(v(11), s(sHFI))
    def halo_fetch(self):
        self.s_mov_b64(s(sT + 2, 2), -1)
        self.poll2(sWS, 11, sHEXP, sT + 2)
        R = 96
        for j in range(7):
            self.global_load_dwordx4(v(R + 4 * j, 4), v(8 if j < 4 else 10), s(sHP, 2), mods=f"offset:{(j % 4) * 1024} sc1")
        for j in range(7):
            self.wait(vm=6 - j)
            self.ds_write_b128(v(9), v(R + 4 * j, 4), mods=f"offset:{j * 1024}")
        self.wait(lg=0); self.s_barrier()

    def attn_halo(self):
        sKb, sVb, sN, sMI = sU + 6, sU + 7, sU + 8, sU + 9
        self.s_mov_b32(s(sMI), 0)
        self.smul(sKb, sW, 1536); self.s_add_u32(s(sKb), s(sKb), L_HK)
        self.s_lshl_b32(s(sVb), s(sW), 11); self.s_add_u32(s(sVb), s(sVb), L_HV)
        self.s_sub_u32(s(sN), 8, s(sW))
        self.attn_seq(self.QA, self.OA, sKb, sVb, sN, sMI)
        self.s_sub_u32(s(sT), 7, s(sW))
        self.smul(sKb, sT, 1536); self.s_add_u32(s(sKb), s(sKb), L_HK)
        self.s_lshl_b32(s(sVb), s(sT), 11); self.s_add_u32(s(sVb), s(sVb), L_HV)
        self.s_add_u32(s(sN), s(sW), 1)
        self.attn_seq(self.QB, self.OB, sKb, sVb, sN, sMI)

    def range_check(self):
        self.s_mov_b32(s(sT), f32(2.0 ** -64)); self.s_mov_b32(s(sT + 1), f32(2.0 ** 64))
        ret = []
        for blk, O in ((0, self.OA), (1, self.OB)):
            lf, lr = self.newlabel("fb"), self.newlabel("fbr")
            self.v_cmp_nle_f32("vcc", s(sT), v(O + 12))
            self.v_cmp_nge_f32(s(sM0, 2), s(sT + 1), v(O + 12))
            self.s_or_b64("vcc", "vcc", s(sM0, 2))
            self.s_cbranch_scc1(lf)
            self.label(lr)
            self.fallbacks.append((lf, lr, blk))
    def emit_fallbacks(self):
        FQ, FO, FM = 96, 104, 120
        S, P, K0, K1, V0, V1 = 16, 48, 56, 60, 62, 66
        sB, sPH, sN, sMI, sKb, sVb, sI, sPASS = sU + 8, sU + 9, sU + 10, sU + 11, sU + 12, sU + 13, sU + 14, sU + 15
        body = self.newlabel("fbody"); done = self.newlabel("fdone")
        for lf, lr, blk in self.fallbacks:
            Q = self.QA if blk == 0 else self.QB
            self.label(lf)
            for j in range(6): self.v_mov_b32(v(FQ + j), v(Q + j))
            if blk == 0: self.s_mov_b32(s(sB), s(sW))
            else: self.s_sub_u32(s(sB), 7, s(sW))
            self.s_mov_b32(s(sT + 8), blk)
            self.s_branch(body)
        self.label(body)
        self.v_add_u32(v(8), L_K, v(vL16))
        self.s_mov_b32(s(sI), 28)
        lp = self.newlabel("frl")
        self.label(lp)
        self.global_load_dwordx4(v(136, 4), v(8), s(sHB, 2), mods="sc1")
        self.wait(vm=0)
        self.ds_write_b128(v(8), v(136, 4))
        self.v_add_u32(v(8), 1024, v(8))
        self.s_sub_u32(s(sI), s(sI), 1); self.s_cmp_lg_u32(s(sI), 0); self.s_cbranch_scc1(lp)
        self.wait(lg=0)
        for r in range(16): self.v_mov_b32(v(FM + r), f32(-3.0e38))
        for r in range(16): self.v_mov_b32(v(FO + r), 0)
        self.s_mov_b32(s(sPASS), 0)
        lpass, lphase, litem, lnm, ljoin, lacc, lnext, lpe = [self.newlabel(x) for x in ("fp", "fph", "fi", "fn", "fj", "fa", "fx", "fe")]
        self.label(lpass)
        self.s_mov_b32(s(sPH), 0)
        self.label(lphase)
        l1, l2 = self.newlabel("f"), self.newlabel("f")
        self.s_cmp_lg_u32(s(sPH), 0); self.s_cbranch_scc1(l1)
        self.mask_gen(False)
        self.s_mov_b32(s(sKb), L_K); self.s_mov_b32(s(sVb), L_V); self.s_add_u32(s(sN), s(sB), 1); self.s_mov_b32(s(sMI), s(sB))
        self.s_branch(l2)
        self.label(l1)
        self.mask_gen(True)
        self.smul(sKb, sB, 1536); self.s_add_u32(s(sKb), s(sKb), L_HK); self.s_lshl_b32(s(sVb), s(sB), 11); self.s_add_u32(s(sVb), s(sVb), L_HV)
        self.s_sub_u32(s(sN), 8, s(sB)); self.s_mov_b32(s(sMI), 0)
        self.label(l2)
        self.v_add_u32(v(8), s(sKb), v(vL16)); self.v_add_u32(v(9), s(sKb), v(vL8)); self.v_add_u32(v(10), s(sVb), v(vL16))
        self.s_mov_b32(s(sI), 0)
        self.label(litem)
        self.ds_read_b128(v(K0, 4), v(8)); self.ds_read_b64(v(K1, 2), v(9), mods="offset:1024")
        self.ds_read_b128(v(V0, 4), v(10)); self.ds_read_b128(v(V1, 4), v(10), mods="offset:1024")
        self.wait(lg=0)
        self.s_cmp_eq_u32(s(sI), s(sMI)); self.s_cbranch_scc0(lnm)
        self.v_mfma_f32_32x32x16_bf16(v(S, 16), v(K0, 4), v(FQ, 4), v(self.MSK, 16))
        self.s_branch(ljoin)
        self.label(lnm)
        self.v_mfma_f32_32x32x16_bf16(v(S, 16), v(K0, 4), v(FQ, 4), 0)
        self.label(ljoin)
        self.v_mfma_f32_32x32x8_bf16(v(S, 16), v(K1, 2), v(FQ + 4, 2), v(S, 16))
        self.s_cmp_lg_u32(s(sPASS), 0); self.s_cbranch_scc1(lacc)
        for r in range(16): self.v_max_f32(v(FM + r), v(FM + r), v(S + r))
        self.s_branch(lnext)
        self.label(lacc)
        for r in range(16):
            self.v_sub_f32(v(S + r), v(S + r), v(FM)); self.v_exp_f32(v(S + r), v(S + r))
        self.pack(P, S, 8)
        self.v_mfma_f32_32x32x16_bf16(v(FO, 16), v(V0, 4), v(P, 4), v(FO, 16))
        self.v_mfma_f32_32x32x16_bf16(v(FO, 16), v(V1, 4), v(P + 4, 4), v(FO, 16))
        self.label(lnext)
        self.v_add_u32(v(8), 1536, v(8)); self.v_add_u32(v(9), 1536, v(9)); self.v_add_u32(v(10), 2048, v(10))
        self.s_add_u32(s(sI), s(sI), 1); self.s_cmp_lt_u32(s(sI), s(sN)); self.s_cbranch_scc1(litem)
        self.s_cmp_eq_u32(s(sG), 0); self.s_cbranch_scc1(lpe)
        self.s_add_u32(s(sPH), s(sPH), 1); self.s_cmp_lt_u32(s(sPH), 2); self.s_cbranch_scc1(lphase)
        self.label(lpe)
        self.s_cmp_lg_u32(s(sPASS), 0); self.s_cbranch_scc1(done)
        for r in range(1, 16): self.v_max_f32(v(FM), v(FM), v(FM + r))
        self.v_mov_b32(v(FM + 1), v(FM)); self.v_permlane32_swap_b32(v(FM), v(FM + 1)); self.v_max_f32(v(FM), v(FM), v(FM + 1))
        self.s_mov_b32(s(sPASS), 1)
        self.s_branch(lpass)
        self.label(done)
        la, lb = self.newlabel("fo"), self.newlabel("fo")
        self.s_cmp_lg_u32(s(sT + 8), 0); self.s_cbranch_scc1(la)
        for r in range(16): self.v_mov_b32(v(self.OA + r), v(FO + r))
        self.s_branch(self.fallbacks[0][1])
        self.label(la)
        for r in range(16): self.v_mov_b32(v(self.OB + r), v(FO + r))
        self.s_branch(self.fallbacks[1][1])

    vOA = 160
    def o_prep(self):
        self.s_lshr_b32(s(sT), s(sS), 4); self.s_and_b32(s(sT + 1), s(sS), 15)
        self.s_lshr_b32(s(sT + 2), s(sT + 1), 1)
        self.s_cmp_ge_u32(s(sT + 2), 5); self.s_cselect_b32(s(sT + 5), 1, 0); self.s_add_u32(s(sT + 5), s(sT + 5), s(sT)); self.smul(sT + 5, sT + 5, 5)
        self.s_add_u32(s(sT + 2), s(sT + 2), s(sT + 5)); self.s_lshl_b32(s(sT + 2), s(sT + 2), 10)
        self.s_and_b32(s(sT + 3), s(sT + 1), 1); self.s_lshl_b32(s(sT + 4), s(sT + 3), 9); self.s_add_u32(s(sT + 2), s(sT + 2), s(sT + 4))
        self.smul(sT, sT, 5); self.s_lshr_b32(s(sT + 4), s(sT + 1), 3); self.s_add_u32(s(sT + 4), s(sT + 4), s(sT)); self.s_add_u32(s(sT + 4), s(sT + 4), 13)
        self.s_lshl_b32(s(sT + 4), s(sT + 4), 10)
        self.s_bfe_u32(s(sT + 5), s(sT + 1), (2 << 16) | 1); self.s_lshl_b32(s(sT + 5), s(sT + 5), 8); self.s_add_u32(s(sT + 4), s(sT + 4), s(sT + 5))
        self.s_lshl_b32(s(sT + 3), s(sT + 3), 3); self.s_add_u32(s(sT + 4), s(sT + 4), s(sT + 3))
        self.v_bfe_u32(v(4), v(vLANE), 4, 1); self.v_mul_u32_u24(v(4), 20480, v(4))
        self.v_and_b32(v(5), 15, v(vLANE)); self.v_lshl_add_u32(v(4), v(5), 4, v(4))
        self.v_lshrrev_b32(v(5), 5, v(vLANE)); self.v_lshl_add_u32(v(5), v(5), 8, v(4))
        for blk in range(2):
            if blk == 0: self.s_mov_b32(s(sT + 6), s(sW))
            else: self.s_sub_u32(s(sT + 6), 7, s(sW))
            self.smul(sT + 6, sT + 6, 40960)
            self.s_add_u32(s(sT + 7), s(sT + 6), s(sT + 2)); self.s_add_u32(s(sT + 6), s(sT + 6), s(sT + 4))
            self.v_add_u32(v(self.vOA + 2 * blk), s(sT + 7), v(5)); self.v_add_u32(v(self.vOA + 2 * blk + 1), s(sT + 6), v(4))
    def o_store(self):
        lst = []
        self.v_rcp_f32(v(8), v(self.OA + 12)); self.v_rcp_f32(v(10), v(self.OB + 12))
        self.v_mov_b32(v(9), v(8)); self.v_mov_b32(v(11), v(10))
        for blk, O in ((0, self.OA), (1, self.OB)):
            for r in range(0, 12, 2): self.v_pk_mul_f32(v(O + r, 2), v(O + r, 2), v(8 + 2 * blk, 2))
            P = 48 + 8 * blk
            self.pack(P, O, 6)
            va = self.vOA + 2 * blk
            lst += [self.store(16, v(va), v(P, 4), s(sOB, 2)), ("exec", 0xffffffff), self.store(8, v(va + 1), v(P + 4, 2), s(sOB, 2)), ("exec", -1)]
        self.stores(lst)

    def prestore(self):
        lst = []
        for blk in range(2):
            va = self.vOA + 2 * blk
            lst += [self.store(16, v(va), v(vZERO, 4), s(sOB, 2)), ("exec", 0xffffffff), self.store(8, v(va + 1), v(vZERO, 2), s(sOB, 2)), ("exec", -1)]
        self.op_prep()
        lst += [self.store(16, v(12), v(vZERO, 4), s(sAB, 2)), self.store(16, v(12), v(vZERO, 4), s(sAB, 2), 512),
                ("exec", 0x0000ffff0000ffff), self.store(16, v(12), v(vZERO, 4), s(sAB, 2), 1024), ("exec", -1)]
        self.stores(lst)

    def op_prep(self):
        self.s_lshr_b32(s(sU), s(sS), 3); self.s_lshl_b32(s(sU), s(sU), 2)
        self.s_and_b32(s(sU + 1), s(sW), 1); self.s_lshl_b32(s(sU + 1), s(sU + 1), 1); self.s_add_u32(s(sU), s(sU), s(sU + 1))
        self.s_lshr_b32(s(sU + 1), s(sW), 1)
        self.s_add_u32(s(sU + 2), s(sU), s(sU + 1)); self.s_xor_b32(s(sU + 3), s(sU + 2), 1)
        self.smul(sU + 4, sU + 1, 10240)
        for j, sr in ((0, sU + 2), (1, sU + 3)):
            self.smul(sU + 5, sr, 20480); self.s_add_u32(s(sU + 5), s(sU + 5), s(sU + 4))
            self.v_add_u32(v(8 + j), s(sU + 5), v(vL16))
        self.smul(sU + 5, sW, 5120); self.s_add_u32(s(sU + 5), s(sU + 5), L_K); self.v_add_u32(v(10), s(sU + 5), v(vL16))
        self.s_xor_b32(s(sU + 5), s(sW), 2); self.smul(sU + 5, sU + 5, 5120); self.s_add_u32(s(sU + 5), s(sU + 5), L_K)
        self.v_add_u32(v(11), s(sU + 5), v(vL16))
        self.s_lshl_b32(s(sU + 5), s(sU + 2), 1); self.smul(sU + 5, sU + 5, 10240)
        self.s_and_b32(s(sU + 6), s(sS), 7); self.smul(sU + 6, sU + 6, 1280); self.s_add_u32(s(sU + 5), s(sU + 5), s(sU + 6))
        self.v_bfe_u32(v(12), v(vLANE), 3, 1); self.v_mul_u32_u24(v(12), 10240, v(12))
        self.v_and_b32(v(13), 7, v(vLANE)); self.v_lshl_add_u32(v(12), v(13), 4, v(12))
        self.v_bfe_u32(v(13), v(vLANE), 4, 1); self.v_lshl_add_u32(v(12), v(13), 8, v(12))
        self.v_lshrrev_b32(v(13), 5, v(vLANE)); self.v_lshl_add_u32(v(12), v(13), 7, v(12))
        self.v_add_u32(v(12), s(sU + 5), v(12))
        self.v_mov_b32(v(66), 0); self.v_mov_b32(v(67), 0)
        for j in range(2): self.v_add_u32(v(68 + j), 4096, v(8 + j)); self.v_add_u32(v(70 + j), 8192, v(8 + j))
    def op_run(self):
        OF, AC, P = 96, 16, 56
        LA = 4
        def ld(kl, j):
            va = (8, 68, 70)[kl // 4] + j
            self.global_load_dwordx4(v(OF + 8 * kl + 4 * j, 4), v(va), s(sOB, 2), mods=f"offset:{(kl % 4) * 1024} sc1")
        for kl in range(LA): ld(kl, 1); ld(kl, 0)
        for kl in range(10):
            issued = 2 * min(10, kl + LA)
            for j in (1, 0):
                self.wait(vm=issued - 2 * kl - (1 if j == 1 else 2))
                for ct in range(5):
                    d = AC + 20 * j + 4 * ct
                    self.v_mfma_f32_16x16x32_bf16(v(d, 4), a((kl * 5 + ct) * 4, 4), v(OF + 8 * kl + 4 * j, 4), v(d, 4) if kl else 0)
                    if ct == 1 and kl + LA < 10:
                        ld(kl + LA, j); issued += 1
        if self.o.get("fine2"): self.stamp("op_mm")
        for ct in range(5): self.ds_write_b128(v(10), v(AC + 20 + 4 * ct, 4), mods=f"offset:{1024 * ct}")
        self.wait(lg=0); self.s_barrier()
        if self.o.get("fine2"): self.stamp("op_x")
        for ct in range(5): self.ds_read_b128(v(OF + 4 * ct, 4), v(11), mods=f"offset:{1024 * ct}")
        for ct in range(5):
            self.wait(lg=4 - ct)
            for r in (0, 2): self.v_pk_add_f32(v(AC + 4 * ct + r, 2), v(AC + 4 * ct + r, 2), v(OF + 4 * ct + r, 2))
            self.pack(P + 2 * ct, AC + 4 * ct, 2)
        for q in range(3):
            self.v_permlane16_swap_b32(v(P + 4 * q), v(P + 4 * q + 2)); self.v_permlane16_swap_b32(v(P + 4 * q + 1), v(P + 4 * q + 3))
        self.stores([self.store(16, v(12), v(P, 4), s(sAB, 2)), self.store(16, v(12), v(P + 4, 4), s(sAB, 2), 512),
                     ("exec", 0x0000ffff0000ffff), self.store(16, v(12), v(P + 8, 4), s(sAB, 2), 1024), ("exec", -1)])

    XF, AF, AP, UU, ST, YF = 16, 64, 96, 112, 40, 136
    def p4_prep(self):
        AP = self.AP
        self.smul(sU, sS, 10240); self.s_lshl_b32(s(sU + 1), s(sW), 5); self.s_add_u32(s(sU), s(sU), s(sU + 1))
        self.v_lshrrev_b32(v(8), 1, v(vLANE)); self.v_lshlrev_b32(v(8), 7, v(8))
        self.v_and_b32(v(9), 1, v(vLANE)); self.v_lshl_add_u32(v(8), v(9), 4, v(8)); self.v_add_u32(v(8), s(sU), v(8))
        self.v_add_u32(v(9), 4096, v(8)); self.v_add_u32(v(10), 8192, v(8))
        for j in range(8, 12): self.v_mov_b32(v(AP + j), 0)
        self.unpack(self.XF, vX, 12)
        self.unpack(self.YF, vY, 12)
    def p4_run(self):
        XF, AF, AP, UU, ST, YF = self.XF, self.AF, self.AP, self.UU, self.ST, self.YF
        self.global_load_dwordx4(v(AP, 4), v(8), s(sAB, 2), mods="sc1")
        self.global_load_dwordx4(v(AP + 4, 4), v(9), s(sAB, 2), mods="sc1")
        self.setexec(0xffffffff)
        self.global_load_dwordx4(v(AP + 8, 4), v(10), s(sAB, 2), mods="sc1")
        self.setexec(-1)
        for m in range(3):
            self.wait(vm=2 - m)
            self.unpack(AF + 8 * m, AP + 4 * m, 4)
            for j in range(4 * m, 4 * m + 4): self.v_pk_add_f32(v(XF + 2 * j, 2), v(XF + 2 * j, 2), v(AF + 2 * j, 2))
        if self.o.get("fine2"): self.stamp("p4_ld")
        self.ln_stats(XF, ST)
        for j in range(12): self.v_pk_fma_f32(v(UU + 2 * j, 2), v(XF + 2 * j, 2), v(ST, 2), v(ST + 2, 2))
        for j in range(12): self.v_pk_fma_f32(v(XF + 2 * j, 2), v(UU + 2 * j, 2), v(YF + 2 * j, 2), v(XF + 2 * j, 2))
    def p4_z(self):
        XF, ST = self.XF, self.ST
        self.ln_stats(XF, ST)
        for j in range(12): self.v_pk_fma_f32(v(self.UU + 2 * j, 2), v(XF + 2 * j, 2), v(ST, 2), v(ST + 2, 2))
        self.pack(56, self.UU, 12)

    def y_flag(self):
        lab = self.newlabel("ys")
        self.s_cmp_lg_u32(s(sW), 0); self.s_cbranch_scc1(lab)
        self.s_lshl_b32(s(sT), s(2), 7); self.s_add_u32(s(sT), s(sT), hex(OFF_YFL))
        self.s_add_u32(s(sT + 1), s(sTOK), 32)
        self.v_mov_b32(v(8), s(sT)); self.v_mov_b32(v(9), s(sT + 1))
        self.setexec(1); self.global_store_dword(v(8), v(9), s(sWS, 2), mods="sc1"); self.setexec(-1)
        self.label(lab)
    def y_wait2(self):
        self.v_lshlrev_b32(v(8), 7, v(vTID)); self.v_add_u32(v(8), OFF_YFL, v(8))
        self.s_add_u32(s(sT + 1), s(sTOK), 32); self.s_mov_b64(s(sT + 2, 2), -1)
        self.poll2(sWS, 8, sT + 1, sT + 2)
        self.s_barrier()
        lab = self.newlabel("nu")
        self.s_cmp_lg_u32(s(2), 0); self.s_cbranch_scc1(lab)
        self.s_cmp_lg_u32(s(sW), 0); self.s_cbranch_scc1(lab)
        self.v_mov_b32(v(8), OFF_N); self.v_mov_b32(v(9), s(sTOK))
        self.setexec(1); self.global_store_dword(v(8), v(9), s(sWS, 2), mods="sc1"); self.setexec(-1)
        self.label(lab)

    def finish(self):
        self.label("L_END")
        self.s_endpgm()
        self.emit_cold2()
        self.label("L_HOTEND")
        self.emit_cold()
        self.emit_fallbacks()
        self.s_endpgm()

    def build(self):
        self.fallbacks = []
        self.setup2()
        self.issue_x()
        self.code_prefetch()
        self.c0_issue()
        self.w_addr()
        self.w_issue(0, 16)
        self.stamp("w1iss")
        for r in range(4): self.v_mov_b32(v(vZERO + r), 0)
        self.v_and_b32(v(vPL), 31, v(vLANE)); self.v_lshlrev_b32(v(vPL), 7, v(vPL))
        self.s_lshl_b32(s(sT), s(sS), 7); self.v_mov_b32(v(vSO), s(sT))
        self.v_mov_b32(v(4), L_CNT); self.ds_write_b32(v(4), v(vZERO))
        self.z_addr(8)
        self.wait(vm=17)
        self.p0_ln()
        self.wait(lg=0)
        self.s_add_u32(s(sTOK), s(sTOK), hex(NONCE_C))
        self.layer_bases2()
        self.stores_sc1(self.z_store_list(56, sZB, 8))
        self.stamp("z0st")
        self.wait(vm=16 + 3)
        self.c0_compute()
        lab = self.newlabel("xp")
        self.s_cmp_lg_u32(s(sW), 0); self.s_cbranch_scc1(lab)
        self.s_lshl_b32(s(sT), s(sG), 5); self.s_add_u32(s(sT), s(sT), s(sS)); self.s_lshl_b32(s(sT), s(sT), 7); self.s_add_u32(s(sT), s(sT), hex(OFF_XCC))
        self.s_add_u32(s(sT + 1), s(sTOK), s(sXCC)); self.s_add_u32(s(sT + 1), s(sT + 1), 64)
        self.v_mov_b32(v(4), s(sT)); self.v_mov_b32(v(5), s(sT + 1))
        self.setexec(1); self.global_store_dword(v(4), v(5), s(sWS, 2), mods="sc1"); self.setexec(-1)
        self.label(lab)
        self.stamp("c0")
        self.w_issue(16, 22)
        self.wait(vm=6); self.s_barrier()
        lab = self.newlabel("f0")
        self.s_cmp_lg_u32(s(sW), 0); self.s_cbranch_scc1(lab)
        self.v_mov_b32(v(4), s(sEXP)); self.s_add_u32(s(sT), s(sTOK), 7); self.v_mov_b32(v(5), s(sT))
        self.s_add_u32(s(sT), s(sFZ), 6 * 8 * 4096); self.s_addc_u32(s(sT + 1), s(sFZ + 1), 0)
        self.setexec(1)
        self.global_store_dword(v(vSO), v(4), s(sFZ, 2), mods="sc1"); self.global_store_dword(v(vSO), v(5), s(sT, 2), mods="sc1")
        self.setexec(-1)
        self.label(lab)
        self.stamp("flags")
        self.w_issue(22, 32)
        self.stamp("w2iss")
        self.w_lds(0, 16)
        self.w_zero()
        self.s_lshl_b32(s(sT + 4), s(sW), 2); self.lanemask(sM0, s(sT + 4), 4)
        self.s_sub_u32(s(sT + 4), 28, s(sT + 4)); self.lanemask(sMZ, s(sT + 4), 4); self.s_or_b64(s(sMZ, 2), s(sMZ, 2), s(sM0, 2))
        self.s_mov_b32(s(sMO), -1); self.s_mov_b32(s(sMO + 1), 0)
        self.s_lshr_b32(s(sT + 4), s(sS), 3); self.s_lshl_b32(s(sT + 4), s(sT + 4), 3); self.lanemask(sMA, s(sT + 4), 8)
        self.epi_prep()
        self.qkv_addr()
        self.stamp("prep")
        self.first_flags()
        self.qkv_zissue()
        self.w_lds(16, 32)
        self.mask_gen(False)
        self.wait(lg=0); self.s_barrier()
        self.stamp("wlds"); self.dstamp(1)
        self.qkv_init()
        self.s_branch("L_QKV")
        self.label("L_LAYER")
        self.layer_bases2()
        self.epi_prep(); self.mask_gen(False)
        self.qkv_addr(); self.qkv_init()
        self.poll2(sFZ, vPL, sEXP, sMZ)
        self.stamp("zwait")
        self.qkv_zissue()
        self.label("L_QKV")
        self.qkv_run()
        self.stamp("qkv")
        self.epi_run()
        self.stamp("epi")
        lab = self.newlabel("aux0")
        self.s_cmp_lg_u32(s(sL), 0); self.s_cbranch_scc1(lab)
        self.conv1_issue()
        self.label(lab)
        self.attn_local()
        self.stamp("local")
        self.o_prep()
        lab = self.newlabel("aux1")
        self.s_cmp_lg_u32(s(sL), 0); self.s_cbranch_scc1(lab)
        self.s_barrier()
        self.conv1_run()
        self.stamp("conv1")
        self.conv2_run()
        self.stamp("conv2")
        self.wait(vm=3)
        self.wo_stage()
        self.y_flag()
        self.stamp("wo"); self.dstamp(2)
        self.label(lab)
        nohalo = self.newlabel("nohalo")
        self.s_cmp_eq_u32(s(sG), 0); self.s_cbranch_scc1(nohalo)
        self.halo_prep()
        self.halo_fetch()
        self.stamp("halof")
        self.attn_halo()
        self.label(nohalo)
        self.stamp("halo")
        self.range_check()
        self.o_store()
        lab = self.newlabel("aux1b")
        self.s_add_u32(s(sT), s(sEXP), 1); self.v_mov_b32(v(5), s(sT))
        self.signal2(sFO, 5)
        self.stamp("osig")
        self.s_cmp_lg_u32(s(sL), 0); self.s_cbranch_scc1(lab)
        self.y_wait2()
        self.y_load()
        self.stamp("yld")
        self.label(lab)
        self.op_prep()
        self.s_add_u32(s(sT + 8), s(sEXP), 1)
        self.poll2(sFO, vPL, sT + 8, sMO)
        self.stamp("owait")
        self.op_run()
        if self.o.get("fine2"): self.stamp("op_st")
        self.s_add_u32(s(sT), s(sEXP), 2); self.v_mov_b32(v(5), s(sT))
        self.signal2(sFA, 5)
        self.stamp("asig")
        self.p4_prep()
        self.s_add_u32(s(sT + 8), s(sEXP), 2)
        self.poll2(sFA, vPL, sT + 8, sMA)
        self.stamp("await")
        self.p4_run()
        self.s_cmp_lg_u32(s(sL), 0); self.s_cbranch_scc1("L_FINAL")
        self.z_addr(8)
        self.p4_z()
        self.stores(self.z_store_list(56, sZN, 8))
        if self.o.get("fine2"): self.stamp("p4_st")
        self.pack(vX, self.XF, 12)
        self.s_add_u32(s(sT), s(sEXP), 3); self.v_mov_b32(v(5), s(sT))
        self.signal2(sFN, 5)
        self.stamp("p4"); self.dstamp(3)
        self.s_mov_b32(s(sL), 1)
        self.s_branch("L_LAYER")
        self.label("L_FINAL")
        self.pack(vX, self.XF, 12)
        self.out_store()
        if self.o.get("span"):
            self.wait(vm=0); self.stamps = True
        self.stamp("end")
        if self.o.get("dbgspan"): self.wait(vm=0)
        self.dstamp(4)
        return self.finish()

if __name__ == "__main__":
    import argparse
    ap = argparse.ArgumentParser()
    ap.add_argument("-o", default="k2.s"); ap.add_argument("--stamps", action="store_true")
    ap.add_argument("--slow", action="store_true"); ap.add_argument("-v", action="store_true"); ap.add_argument("--opt", default="")
    a_ = ap.parse_args()
    k = K2(stamps=a_.stamps, opts=dict({"force_slow": a_.slow}, **{x.split("=")[0]: (int(x.split("=")[1]) if "=" in x else 1) for x in a_.opt.split(",") if x}))
    k.build()
    ins = k.fix_all(verbose=a_.v)
    open(a_.o, "w").write(render_file(k))
    n = sum(1 for it in k.items if isinstance(it, Ins))
    print("instructions:", n, "nops inserted:", len(ins), "stamps:", ",".join(k.stamp_names))
```

```python
import sys, math
from asm import *
import kern as B
from kern import (NAME, OFF_N, OFF_XCC, OFF_HFL, OFF_YFL, OFF_Z, OFF_HALO, OFF_O, OFF_A, OFF_R, OFF_Y, OFF_DBG, ZG, HALO_SZ,
                  NONCE_C, L_W, L_WT1, L_K, L_V, L_VS, L_SP, L_HK, L_HV, LDS_BYTES, f32,
                  sX, sWQ, sWO, sBK, sBV, sSH, sSK, sSD, sOUT, sDBG, sWS, sG, sS, sW, sTOK, sMODE, sL, sSRD, sM0, sM1, sT, sTO, sXCC, sU,
                  vTID, vLANE, vL16, vX, vY, render_file)

OFF_FL2 = 0x40000
L_CNT = 135104
sEXP, sHEXP = 34, 35
sFZ, sFO, sFA, sFN = 56, 58, 60, 62
sZB, sOB, sAB, sHB, sHP, sZN = 66, 68, 70, 72, 74, 76
sHFO, sHFI = 78, 79
sMZ, sMO, sMA = 4, 6, 10
vL8, vPL = 3, 15
vZERO = 92
vSO = 6

class K2(B.K):
    def stamp(self, name):
        if not self.stamps: return
        i = self.nstamp; self.nstamp += 1; self.stamp_names.append(name)
        lab = self.newlabel("st")
        self.s_cmp_lg_u32(s(sW), 0); self.s_cbranch_scc1(lab)
        (self.s_memtime if self.o.get("cyc") else self.s_memrealtime)(s(96, 2)); self.wait(lg=0)
        self.s_mov_b64(s(98, 2), "exec"); self.setexec(1)
        self.v_accvgpr_write_b32(a(250), s(96)); self.v_accvgpr_write_b32(a(251), s(97))
        self.s_lshl_b32(s(96), s(2), 9); self.s_add_u32(s(96), s(96), hex(OFF_DBG + 8 * i))
        self.s_lshl_b32(s(97), s(sL), 8); self.s_add_u32(s(96), s(96), s(97))
        self.v_mov_b32(v(7), s(96))
        self.global_store_dwordx2(v(7), a(250, 2), s(sWS, 2))
        self.s_mov_b64("exec", s(98, 2))
        self.label(lab)

    def dstamp(self, i, per_layer=False):
        if not self.o.get("dbgspan"): return
        self.s_memrealtime(s(96, 2)); self.wait(lg=0)
        if per_layer:
            l0, l1 = self.newlabel("dl"), self.newlabel("dl")
            self.s_cmp_lg_u32(s(sL), 0); self.s_cbranch_scc1(l0)
            self.v_accvgpr_write_b32(a(220 + i), s(96)); self.s_branch(l1)
            self.label(l0); self.v_accvgpr_write_b32(a(228 + i), s(96)); self.label(l1)
        else:
            self.v_accvgpr_write_b32(a(220 + i), s(96))
    def dflush(self):
        if not self.o.get("dbgspan"): return
        self.wait(vm=0)
        self.dstamp(15)
        lab = self.newlabel("ds")
        self.s_cmp_lg_u32(s(sW), 0); self.s_cbranch_scc1(lab)
        self.setexec(1)
        self.v_accvgpr_read_b32(v(8), a(220))
        for i in range(1, 16):
            self.v_accvgpr_read_b32(v(9), a(220 + i)); self.v_sub_u32(v(9), v(9), v(8)); self.v_mov_b32(v(7), 4 * i)
            self.global_atomic_umax(v(7), v(9), s(sDBG, 2))
        self.label(lab)

    def poll2(self, sbase, voff, s_exp, s_mask, vtmp=4):
        lp, dn = self.newlabel("poll"), self.newlabel("polld")
        self.label(lp)
        self.global_load_dword(v(vtmp), v(voff), s(sbase, 2), mods="sc1")
        self.s_cmp_eq_u32(s(sTO), 0); self.s_cbranch_scc1(dn)
        self.s_sub_u32(s(sTO), s(sTO), 1)
        self.wait(vm=0)
        self.v_cmp_ne_u32("vcc", s(s_exp), v(vtmp))
        self.s_and_b64("vcc", "vcc", s(s_mask, 2))
        self.s_cbranch_scc1(lp)
        self.label(dn)
    def flag_store(self, sbase, vval, force_sc1=False):
        lab = self.newlabel("sig")
        self.s_cmp_lg_u32(s(sW), 0); self.s_cbranch_scc1(lab)
        self.setexec(1)
        if force_sc1: self.global_store_dword(v(vSO), v(vval), s(sbase, 2), mods="sc1")
        else: self.stores([self.store(4, v(vSO), v(vval), s(sbase, 2))])
        self.setexec(-1)
        self.label(lab)
    def signal2(self, sbase, vval, force_sc1=False):
        self.wait(vm=0); self.s_barrier()
        self.flag_store(sbase, vval, force_sc1)
    def stores_sc1(self, lst):
        for it in lst:
            if it[0] == "exec": self.setexec(it[1])
            else: self.I(it[0], it[1], it[2], it[3], mods=(it[4] + " sc1").strip())
    def first_flags(self):
        self.s_lshl_b32(s(sT), s(sG), 12); self.s_add_u32(s(sT + 1), s(sT), hex(OFF_XCC)); self.s_add_u32(s(sT), s(sT), hex(OFF_FL2 + 6 * 8 * 4096))
        self.v_mov_b32(v(16), s(sT + 1)); self.v_mov_b32(v(17), s(sT))
        self.s_mov_b32(s(sM1), 0); self.s_mov_b32(s(sM1 + 1), -1)
        self.v_cndmask_b32(v(16), v(16), v(17), s(sM1, 2)); self.v_add_u32(v(16), v(16), v(vPL))
        self.s_add_u32(s(sT + 2), s(sTOK), 64); self.s_add_u32(s(sT + 3), s(sTOK), 7)
        self.v_mov_b32(v(17), s(sT + 2)); self.v_mov_b32(v(18), s(sT + 3)); self.v_cndmask_b32(v(17), v(17), v(18), s(sM1, 2))
        self.v_mov_b32(v(18), 16); self.v_cndmask_b32(v(18), v(18), 1, s(sM1, 2))
        lp, dn = self.newlabel("xpoll"), self.newlabel("xpolld")
        self.label(lp)
        self.global_load_dword(v(4), v(vPL), s(sFZ, 2), mods="sc1")
        self.global_load_dword(v(5), v(16), s(sWS, 2), mods="sc1")
        self.s_cmp_eq_u32(s(sTO), 0); self.s_cbranch_scc1(dn)
        self.s_sub_u32(s(sTO), s(sTO), 1)
        self.wait(vm=0)
        self.v_cmp_ne_u32("vcc", s(sEXP), v(4)); self.s_and_b64(s(sM0, 2), "vcc", s(sMZ, 2))
        self.v_sub_u32(v(5), v(5), v(17))
        self.v_cmp_le_u32("vcc", v(18), v(5))
        self.s_or_b64("vcc", "vcc", s(sM0, 2)); self.s_cbranch_scc1(lp)
        self.label(dn)
        self.v_cmp_ne_u32("vcc", s(sXCC), v(5))
        self.s_and_b32(s(sT), "vcc_lo", -1)
        self.s_cselect_b32(s(sMODE), 1, 0)
        if self.o.get("force_slow"): self.s_mov_b32(s(sMODE), 1)
    def flagbase(self, d, phase_off_sreg_or_imm):
        self.smul(sT, sL, 3); self.s_add_u32(s(sT), s(sT), phase_off_sreg_or_imm)
        self.s_lshl_b32(s(sT), s(sT), 3); self.s_add_u32(s(sT), s(sT), s(sG)); self.s_lshl_b32(s(sT), s(sT), 12)
        self.base64(d, sWS, sT, OFF_FL2)

    def layer_bases2(self):
        self.s_lshl_b32(s(sT + 4), s(sL), 3); self.s_add_u32(s(sT + 4), s(sT + 4), s(sG))
        self.smul(sT + 1, sG, ZG)
        self.base64(sZB, sWS, sT + 1, OFF_Z); self.base64(sOB, sWS, sT + 1, OFF_O); self.base64(sAB, sWS, sT + 1, OFF_A)
        self.s_mov_b64(s(sZN, 2), s(sZB, 2))
        self.s_lshl_b32(s(sT + 2), s(sT + 4), 5); self.s_add_u32(s(sT + 2), s(sT + 2), s(sS))
        self.s_lshl_b32(s(sHFO), s(sT + 2), 7); self.s_add_u32(s(sHFO), s(sHFO), hex(OFF_HFL))
        self.s_sub_u32(s(sHFI), s(sHFO), 32 * 128)
        self.smul(sT + 2, sT + 2, HALO_SZ)
        self.base64(sHB, sWS, sT + 2, OFF_HALO - L_K)
        self.s_sub_u32(s(sT + 2), s(sT + 2), 32 * HALO_SZ)
        self.s_cmp_eq_u32(s(sG), 0); self.s_cselect_b32(s(sT + 2), 0, s(sT + 2))
        self.base64(sHP, sWS, sT + 2, OFF_HALO)
        self.flagbase(sFZ, 0)
        self.s_add_u32(s(sFO), s(sFZ), 8 * 4096); self.s_addc_u32(s(sFO + 1), s(sFZ + 1), 0)
        self.s_add_u32(s(sFA), s(sFO), 8 * 4096); self.s_addc_u32(s(sFA + 1), s(sFO + 1), 0)
        self.s_add_u32(s(sFN), s(sFA), 8 * 4096); self.s_addc_u32(s(sFN + 1), s(sFA + 1), 0)
        self.smul(sEXP, sL, 3); self.s_add_u32(s(sEXP), s(sEXP), s(sTOK)); self.s_add_u32(s(sEXP), s(sEXP), 1)
        self.s_add_u32(s(sHEXP), s(sTOK), s(sL)); self.s_add_u32(s(sHEXP), s(sHEXP), 16)

    def wave_sum2(self, a_, b_, t0, t1):
        for r in (a_, b_): self.v_add_f32_dpp(v(r), v(r), v(r), mods="quad_perm:[2,3,0,1] row_mask:0xf bank_mask:0xf")
        for r in (a_, b_): self.v_add_f32_dpp(v(r), v(r), v(r), mods="row_ror:4 row_mask:0xf bank_mask:0xf")
        for r in (a_, b_): self.v_add_f32_dpp(v(r), v(r), v(r), mods="row_ror:8 row_mask:0xf bank_mask:0xf")
        self.v_permlane16_swap_b32(v(a_), v(b_)); self.v_add_f32(v(a_), v(a_), v(b_))
        self.v_mov_b32(v(t0), v(a_)); self.v_permlane32_swap_b32(v(a_), v(t0)); self.v_add_f32(v(a_), v(a_), v(t0))
        self.v_mov_b32(v(b_), v(a_)); self.v_permlane16_swap_b32(v(a_), v(b_))

    def setup2(self):
        self.cold = []; self.cold2 = []
        self.s_cmp_ge_u32(s(2), 256); self.s_cbranch_scc1("L_END")
        self.s_load_dwordx4(s(4, 4), s(0, 2), 0); self.s_load_dwordx2(s(8, 2), s(0, 2), 16)
        self.s_load_dwordx8(s(12, 8), s(0, 2), 32); self.s_load_dwordx8(s(20, 8), s(0, 2), 64)
        self.s_getpc_b64(s(100, 2))
        self.label("L_PC")
        self.v_and_b32(v(vLANE), 63, v(vTID)); self.v_lshlrev_b32(v(vL16), 4, v(vLANE)); self.v_lshlrev_b32(v(vL8), 3, v(vLANE))
        self.v_lshrrev_b32(v(4), 6, v(vTID))
        self.s_and_b32(s(sG), s(2), 7); self.s_lshr_b32(s(sS), s(2), 3)
        self.v_readfirstlane_b32(s(sW), v(4))
        self.s_mov_b32(s(sTO), 400000); self.s_mov_b32(s(sMODE), 0); self.s_mov_b32(s(sL), 0)
        self.s_getreg_b32(s(sXCC), "hwreg(HW_REG_XCC_ID, 0, 4)")
        self.x_addr(8)
        self.wait(lg=0)
        if self.o.get("span"):
            self.stamps = True; self.stamp("t0"); self.stamps = False
        self.dstamp(0)
        self.s_load_dword(s(sTOK), s(sWS, 2), OFF_N)
    sPC = 100
    def code_prefetch(self, vd=224):
        self.v_lshlrev_b32(v(5), 7, v(vTID))
        self.v_min_u32(v(5), "L_HOTEND-L_PC-4", v(5))
        self.global_load_dword(v(vd), v(5), s(self.sPC, 2))
    def issue_x(self):
        for j in range(8, 12): self.v_mov_b32(v(vX + j), 0)
        self.global_load_dwordx4(v(vX, 4), v(8), s(sX, 2))
        self.global_load_dwordx4(v(vX + 4, 4), v(8), s(sX, 2), mods="offset:512")
        self.setexec(0xffffffff)
        self.global_load_dwordx4(v(vX + 8, 4), v(8), s(sX, 2), mods="offset:1024")
        self.setexec(-1)

    def w_addr(self):
        self.s_mov_b32(s(sSRD), s(sWQ)); self.s_mov_b32(s(sSRD + 1), s(sWQ + 1))
        self.s_mov_b32(s(sSRD + 2), 640 * 1920 * 2); self.s_mov_b32(s(sSRD + 3), "0x00020000")
        self.v_mul_u32_u24(v(8), 5462, v(vLANE)); self.v_lshrrev_b32(v(8), 16, v(8))
        self.v_mul_u32_u24(v(9), 12, v(8)); self.v_sub_u32(v(9), v(vLANE), v(9))
        self.v_lshrrev_b32(v(10), 2, v(9)); self.v_and_b32(v(11), 3, v(vLANE))
        self.smul(sT, sW, 160); self.v_add_u32(v(8), s(sT), v(8))
        self.s_mov_b32(s(sT + 1), 3840); self.v_mul_lo_u32(v(90), s(sT + 1), v(8))
        self.v_mul_u32_u24(v(91), 1280, v(10)); self.v_lshlrev_b32(v(14), 4, v(11)); self.v_add3_u32(v(90), v(90), v(91), v(14))
        self.smul(sT + 2, sS, 40); self.v_add_u32(v(90), s(sT + 2), v(90))
        self.v_lshlrev_b32(v(91), 5, v(10)); self.v_add_u32(v(91), v(91), v(14))
        self.v_cmp_eq_u32("vcc", 2, v(10)); self.v_add_u32(v(5), L_WT1 + 32, v(14)); self.v_cndmask_b32(v(91), v(91), v(5), "vcc")
        self.v_lshlrev_b32(v(5), 4, v(10)); self.v_min_u32(v(5), 24, v(5)); self.v_add_u32(v(5), L_WT1, v(5))
        self.v_cmp_eq_u32("vcc", 2, v(11)); self.v_cndmask_b32(v(91), v(91), v(5), "vcc")
        self.v_lshlrev_b32(v(8), 6, v(8)); self.v_add_u32(v(91), v(91), v(8))
    WM = sum(1 << l for l in range(60) if (l & 3) < 3)
    def w_issue(self, lo, hi):
        self.setexec(self.WM)
        self.s_mov_b32(s(sT + 3), lo * 5 * 3840)
        for i in range(lo, hi):
            self.buffer_load_dwordx4(v(96 + 4 * i, 4), v(90), s(sSRD + 0, 4), s(sT + 3), mods="offen")
            if i < hi - 1: self.s_add_u32(s(sT + 3), s(sT + 3), 5 * 3840)
        self.setexec(-1)
    def w_lds(self, lo, hi):
        m128 = sum(1 << l for l in range(60) if (l & 3) < 2); m64 = sum(1 << l for l in range(60) if (l & 3) == 2)
        self.setexec(m128)
        for i in range(lo, hi): self.ds_write_b128(v(91), v(96 + 4 * i, 4), mods=f"offset:{320 * i}")
        self.setexec(m64)
        for i in range(lo, hi): self.ds_write_b64(v(91), v(96 + 4 * i, 2), mods=f"offset:{320 * i}")
        self.setexec(-1)
    def w_zero(self):
        self.v_lshlrev_b32(v(10), 6, v(vTID)); self.v_add_u32(v(10), L_WT1 + 8, v(10))
        self.ds_write_b64(v(10), v(vZERO, 2)); self.ds_write_b64(v(10), v(vZERO, 2), mods=f"offset:{256 * 64}")
        lab = self.newlabel("wz")
        self.s_cmp_ge_u32(s(sW), 2); self.s_cbranch_scc1(lab)
        self.ds_write_b64(v(10), v(vZERO, 2), mods=f"offset:{512 * 64}")
        self.label(lab)

    def z_addr(self, va):
        self.s_lshr_b32(s(sT), s(sS), 2); self.smul(sT, sT, 40960)
        self.s_and_b32(s(sT + 1), s(sS), 3); self.s_lshl_b32(s(sT + 1), s(sT + 1), 7)
        self.s_add_u32(s(sT), s(sT), s(sT + 1)); self.s_lshl_b32(s(sT + 1), s(sW), 5); self.s_add_u32(s(sT), s(sT), s(sT + 1))
        self.v_lshrrev_b32(v(va), 1, v(vLANE)); self.v_lshlrev_b32(v(va), 9, v(va))
        self.v_and_b32(v(va + 1), 1, v(vLANE)); self.v_lshlrev_b32(v(va + 1), 4, v(va + 1))
        self.v_add3_u32(v(va), v(va), v(va + 1), s(sT))
        self.v_add_u32(v(va + 1), 32 * 512, v(va)); self.v_add_u32(v(va + 2), 64 * 512, v(va))
    def z_store_list(self, zp, sbase, va):
        return [self.store(16, v(va), v(zp, 4), s(sbase, 2)), self.store(16, v(va + 1), v(zp + 4, 4), s(sbase, 2)),
                ("exec", 0xffffffff), self.store(16, v(va + 2), v(zp + 8, 4), s(sbase, 2)), ("exec", -1)]

    CKP, CVP, CSP = 160, 188, 204
    def c0_issue(self):
        KP, VP, SP = self.CKP, self.CVP, self.CSP
        lab = self.newlabel("c0i")
        self.s_mov_b32(s(sSRD), s(sBK)); self.s_mov_b32(s(sSRD + 1), s(sBK + 1))
        self.s_mov_b32(s(sSRD + 2), 2048 * 1280); self.s_mov_b32(s(sSRD + 3), "0x00020000")
        self.v_mul_u32_u24(v(68), 6554, v(vTID)); self.v_lshrrev_b32(v(68), 16, v(68))
        self.v_mul_u32_u24(v(69), 10, v(68)); self.v_sub_u32(v(69), v(vTID), v(69))
        self.v_cmp_gt_u32("vcc", 160, v(vTID))
        self.s_and_saveexec_b64(s(sM0, 2), "vcc")
        self.s_cbranch_execz(lab)
        self.s_lshl_b32(s(sU), s(sS), 6); self.s_sub_u32(s(sU), s(sU), 3)
        self.v_lshl_add_u32(v(10), v(68), 2, s(sU))
        self.s_mov_b32(s(sU + 1), 1280); self.v_mul_lo_u32(v(10), s(sU + 1), v(10))
        self.smul(sU + 2, sG, 160); self.v_lshl_add_u32(v(11), v(69), 4, s(sU + 2)); self.v_add_u32(v(10), v(10), v(11))
        for j in range(7):
            self.buffer_load_dwordx4(v(KP + 4 * j, 4), v(10), s(sSRD, 4), 0, mods="offen")
            if j == 2: self.v_add_u32(v(12), 1280, v(10))
            self.v_add_u32(v(10), 1280, v(10))
        self.s_mov_b32(s(sSRD), s(sBV)); self.s_mov_b32(s(sSRD + 1), s(sBV + 1))
        for j in range(4):
            self.buffer_load_dwordx4(v(VP + 4 * j, 4), v(12), s(sSRD, 4), 0, mods="offen")
            self.v_add_u32(v(12), 1280, v(12))
        self.smul(sU + 2, sG, 640); self.v_lshl_add_u32(v(11), v(69), 6, s(sU + 2))
        for j in range(4): self.global_load_dwordx4(v(SP + 4 * j, 4), v(11), s(sSH, 2), mods=f"offset:{16 * j}")
        self.label(lab)
        self.s_mov_b64("exec", -1)
    def c0_compute(self):
        KP, VP, SP = self.CKP, self.CVP, self.CSP
        KF, SK, VF, U, PKD = 16, 30, 38, 46, 54
        lab = self.newlabel("c0c")
        self.v_cmp_gt_u32("vcc", 160, v(vTID))
        self.s_and_saveexec_b64(s(sM0, 2), "vcc")
        self.s_cbranch_execz(lab)
        self.v_mul_u32_u24(v(10), 1168, v(69)); self.v_lshlrev_b32(v(11), 3, v(68)); self.v_sub_u32(v(10), v(10), v(11))
        self.v_add_u32(v(10), L_K + 120, v(10))
        for m in range(4):
            for j in range(7):
                self.v_lshlrev_b32(v(KF + 2 * j), 16, v(KP + 4 * j + m)); self.v_and_b32(v(KF + 2 * j + 1), "0xffff0000", v(KP + 4 * j + m))
            for e in range(2):
                c = 2 * m + e
                self.v_lshlrev_b32(v(SK + 0 + e), 16, v(SP + 2 * c)); self.v_and_b32(v(SK + 2 + e), "0xffff0000", v(SP + 2 * c))
                self.v_lshlrev_b32(v(SK + 4 + e), 16, v(SP + 2 * c + 1)); self.v_and_b32(v(SK + 6 + e), "0xffff0000", v(SP + 2 * c + 1))
            for i in range(4):
                self.v_lshlrev_b32(v(VF + 2 * i), 16, v(VP + 4 * i + m)); self.v_and_b32(v(VF + 2 * i + 1), "0xffff0000", v(VP + 4 * i + m))
            for i in range(4): self.v_pk_mul_f32(v(U + 2 * i, 2), v(KF + 2 * i, 2), v(SK + 6, 2))
            for i in range(4): self.v_pk_fma_f32(v(U + 2 * i, 2), v(KF + 2 * (i + 1), 2), v(SK + 4, 2), v(U + 2 * i, 2))
            for i in range(4): self.v_pk_fma_f32(v(U + 2 * i, 2), v(KF + 2 * (i + 2), 2), v(SK + 2, 2), v(U + 2 * i, 2))
            for i in range(4): self.v_pk_fma_f32(v(U + 2 * i, 2), v(KF + 2 * (i + 3), 2), v(SK + 0, 2), v(U + 2 * i, 2))
            for i in range(4): self.v_pk_mul_f32(v(U + 2 * i, 2), v(U + 2 * i, 2), v(VF + 2 * i, 2))
            for e in range(2):
                p = PKD + 2 * e + 4 * (m & 1)
                self.v_cvt_pk_bf16_f32(v(p), v(U + 6 + e), v(U + 4 + e)); self.v_cvt_pk_bf16_f32(v(p + 1), v(U + 2 + e), v(U + e))
                self.ds_write_b64(v(10), v(p, 2), mods=f"offset:{144 * (2 * m + e)}")
        self.label(lab)
        self.s_mov_b64("exec", -1)
        self.wait(lg=0); self.s_barrier()
        self.v_lshrrev_b32(v(8), 6, v(vTID)); self.v_mul_u32_u24(v(8), 1168, v(8))
        self.v_bfe_u32(v(9), v(vTID), 3, 3); self.v_mul_u32_u24(v(9), 144, v(9))
        self.v_and_b32(v(10), 7, v(vTID)); self.v_lshlrev_b32(v(10), 4, v(10))
        self.v_add3_u32(v(8), v(8), v(9), v(10)); self.v_add_u32(v(8), L_K, v(8))
        self.smul(sU, sG, 80 * 4096); self.s_lshl_b32(s(sU + 1), s(sS), 7); self.s_sub_u32(s(sU), s(sU), s(sU + 1))
        self.s_add_u32(s(sU), s(sU), hex(OFF_R + 1984 * 2))
        self.v_lshrrev_b32(v(9), 3, v(vTID)); self.v_lshlrev_b32(v(9), 12, v(9)); self.v_add3_u32(v(9), v(9), v(10), s(sU))
        self.ds_read_b128(v(16, 4), v(8)); self.ds_read_b128(v(20, 4), v(8), mods=f"offset:{4 * 1168}")
        self.ds_read_b128(v(24, 4), v(8), mods=f"offset:{8 * 1168}")
        self.v_add_u32(v(11), 32 * 4096, v(9)); self.v_add_u32(v(14), 64 * 4096, v(9))
        self.wait(lg=0)
        self.global_store_dwordx4(v(9), v(16, 4), s(sWS, 2), mods="sc1"); self.global_store_dwordx4(v(11), v(20, 4), s(sWS, 2), mods="sc1")
        l1 = self.newlabel("c0s")
        self.s_cmp_ge_u32(s(sW), 2); self.s_cbranch_scc1(l1)
        self.global_store_dwordx4(v(14), v(24, 4), s(sWS, 2), mods="sc1")
        self.label(l1)

    ACC, ZR, WF = 16, 96, 160
    OA, OB, MSK = 176, 192, 208
    SA, SB, PP, KF0, KF1, VF0, VF1, KP0, KP1 = 16, 32, 48, 56, 60, 62, 66, 70, 74
    QA, QB = 80, 86
    vSA, vSB, vSC, vTR0, vTR1, vKA, vK1A, vVA = 224, 225, 226, 227, 228, 229, 230, 231
    vKB, vK1B, vVB = 12, 13, 14
    def zero16(self, d):
        self.v_mfma_f32_32x32x16_bf16(v(d, 16), v(vZERO, 4), v(vZERO, 4), 0)
    def qkv_addr(self):
        vzA, vzB, vw0, vw1 = 8, 9, 10, 11
        self.smul(sT, sW, 40960); self.v_add_u32(v(vzA), s(sT), v(vL16))
        self.s_sub_u32(s(sT + 1), 7, s(sW)); self.smul(sT + 1, sT + 1, 40960); self.v_add_u32(v(vzB), s(sT + 1), v(vL16))
        self.v_lshrrev_b32(v(4), 5, v(vLANE)); self.v_lshlrev_b32(v(4), 3, v(4))
        self.v_bfe_u32(v(5), v(vLANE), 2, 2); self.v_add_u32(v(4), v(4), v(5)); self.v_lshlrev_b32(v(4), 6, v(4))
        self.v_bfe_u32(v(5), v(vLANE), 4, 1); self.v_lshlrev_b32(v(5), 5, v(5))
        self.v_and_b32(v(vw0), 3, v(vLANE)); self.v_lshlrev_b32(v(vw0), 3, v(vw0))
        self.v_add3_u32(v(vw0), v(4), v(5), v(vw0)); self.v_add_u32(v(vw1), L_WT1, v(vw0))
    def qkv_init(self):
        for d in (16, 32, 48, 64): self.zero16(d)
        self.zero16(self.OA); self.zero16(self.OB)
        self.wread(0, 0)
    def wread(self, st, kk):
        for T, vw in ((0, 10), (1, 11)):
            r = self.WF + 8 * st + 4 * T
            self.ds_read_b64_tr_b16(v(r, 2), v(vw), mods=f"offset:{kk * 1024}")
            self.ds_read_b64_tr_b16(v(r + 2, 2), v(vw), mods=f"offset:{kk * 1024 + 256}")
    def zload(self, j, kk):
        ZR, vzA, vzB = self.ZR, 8, 9
        self.global_load_dwordx4(v(ZR + 8 * j, 4), v(vzA), s(sZB, 2), mods=f"offset:{(kk % 4) * 1024} sc1")
        self.global_load_dwordx4(v(ZR + 8 * j + 4, 4), v(vzB), s(sZB, 2), mods=f"offset:{(kk % 4) * 1024} sc1")
        if kk % 4 == 3:
            self.v_add_u32(v(vzA), 4096, v(vzA)); self.v_add_u32(v(vzB), 4096, v(vzB))
    def qkv_zissue(self):
        for j in range(8): self.zload(j, j)
    def qkv_run(self):
        ACC, ZR, WF = self.ACC, self.ZR, self.WF
        vzA, vzB, vw0, vw1 = 8, 9, 10, 11
        zload = self.zload
        def body(last):
            for j in range(8):
                st = j & 1
                if not (last and j == 7): self.wread(st ^ 1, j + 1)
                self.wait(vm=(14 - 2 * j) if last else 14, lg=0 if (last and j == 7) else 4)
                for blk in range(2):
                    for T in range(2):
                        d = ACC + 32 * blk + 16 * T
                        self.v_mfma_f32_32x32x16_bf16(v(d, 16), v(WF + 8 * st + 4 * T, 4), v(ZR + 8 * j + 4 * blk, 4), v(d, 16))
                if not last: zload(j, j)
            if not last:
                self.v_add_u32(v(vw0), 8192, v(vw0)); self.v_add_u32(v(vw1), 8192, v(vw1))
        lp = self.newlabel("qkv")
        self.s_mov_b32(s(sU), 4)
        self.label(lp)
        body(False)
        self.s_sub_u32(s(sU), s(sU), 1); self.s_cmp_lg_u32(s(sU), 0); self.s_cbranch_scc1(lp)
        body(True)

    def epi_prep(self):
        vSA, vSB, vSC, vTR0, vTR1 = self.vSA, self.vSB, self.vSC, self.vTR0, self.vTR1
        self.s_lshl_b32(s(sT), s(sW), 11); self.s_add_u32(s(sT), s(sT), L_VS)
        self.v_and_b32(v(4), 31, v(vLANE)); self.v_bfe_u32(v(5), v(4), 1, 3)
        self.v_lshlrev_b32(v(4), 6, v(4)); self.v_add_u32(v(4), s(sT), v(4))
        self.v_lshrrev_b32(v(vSA), 5, v(vLANE)); self.v_xor_b32(v(vSA), v(vSA), v(5)); self.v_lshl_add_u32(v(vSA), v(vSA), 3, v(4))
        self.v_xor_b32(v(vSB), 16, v(vSA))
        self.v_xor_b32(v(vSC), 40, v(vSA))
        self.v_xor_b32(v(4), 48, v(vSA))
        self.v_mov_b32(v(88), "0x3f80"); self.v_mov_b32(v(89), 0)
        self.ds_write_b64(v(4), v(88, 2))
        self.v_bfe_u32(v(4), v(vLANE), 2, 2); self.v_lshrrev_b32(v(5), 5, v(vLANE)); self.v_lshl_add_u32(v(4), v(5), 2, v(4))
        self.v_bfe_u32(v(5), v(vLANE), 4, 1); self.v_lshlrev_b32(v(5), 2, v(5)); self.v_and_b32(v(vTR0), 3, v(vLANE)); self.v_add_u32(v(5), v(5), v(vTR0))
        self.v_lshrrev_b32(v(vTR0), 1, v(4)); self.v_xor_b32(v(5), v(5), v(vTR0)); self.v_lshlrev_b32(v(5), 3, v(5))
        self.v_lshl_add_u32(v(vTR0), v(4), 6, v(5)); self.v_add_u32(v(vTR0), s(sT), v(vTR0)); self.v_xor_b32(v(vTR1), 32, v(vTR0))
        for (k0, k1, vv, blk) in ((self.vKA, self.vK1A, self.vVA, 0), (self.vKB, self.vK1B, self.vVB, 1)):
            if blk == 0: self.s_mov_b32(s(sT + 1), s(sW))
            else: self.s_sub_u32(s(sT + 1), 7, s(sW))
            self.smul(sT + 2, sT + 1, 1536); self.s_add_u32(s(sT + 2), s(sT + 2), L_K)
            self.v_add_u32(v(k0), s(sT + 2), v(vL16)); self.s_add_u32(s(sT + 2), s(sT + 2), 1024); self.v_add_u32(v(k1), s(sT + 2), v(vL8))
            self.s_lshl_b32(s(sT + 2), s(sT + 1), 11); self.s_add_u32(s(sT + 2), s(sT + 2), L_V); self.v_add_u32(v(vv), s(sT + 2), v(vL16))
        self.s_mov_b32(s(sU + 14), f32(math.log2(math.e) / math.sqrt(20.0))); self.s_mov_b32(s(sU + 15), s(sU + 14))
    def epi_run(self):
        ACC = self.ACC
        sets = []
        for blk in range(2):
            A0 = ACC + 32 * blk; A1 = A0 + 16
            Q = self.QA if blk == 0 else self.QB
            PK = 96 + 24 * blk
            K0, K1, VV, VF = PK, PK + 4, PK + 6, PK + 12
            sets.append((K0, K1, VV, VF))
            self.pack(K1, A1 + 4, 2); self.pack(VV, A1 + 8, 4)
            self.ds_write_b64(v(self.vSC), v(K1, 2)); self.ds_write_b64(v(self.vSA), v(VV, 2)); self.ds_write_b64(v(self.vSB), v(VV + 2, 2))
            self.pack(K0, A0 + 8, 4)
            for m in range(4): self.ds_read_b64_tr_b16(v(VF + 2 * m, 2), v(self.vTR1 if m & 1 else self.vTR0), mods=f"offset:{512 * m}")
            k0, k1, vv = (self.vKA, self.vK1A, self.vVA) if blk == 0 else (self.vKB, self.vK1B, self.vVB)
            self.ds_write_b128(v(k0), v(K0, 4)); self.ds_write_b64(v(k1), v(K1, 2))
            self.global_store_dwordx4(v(k0), v(K0, 4), s(sHB, 2), mods="sc1")
            self.global_store_dwordx2(v(k1), v(K1, 2), s(sHB, 2), mods="sc1")
            for r in (0, 2, 4, 6): self.v_pk_mul_f32(v(A0 + r, 2), v(A0 + r, 2), s(sU + 14, 2))
            for r in (0, 2): self.v_pk_mul_f32(v(A1 + r, 2), v(A1 + r, 2), s(sU + 14, 2))
            self.pack(Q, A0, 4); self.pack(Q + 4, A1, 2)
            self.wait(lg=2)
            self.ds_write_b128(v(vv), v(VF, 4)); self.ds_write_b128(v(vv), v(VF + 4, 4), mods="offset:1024")
            self.global_store_dwordx4(v(vv), v(VF, 4), s(sHB, 2), mods="sc1")
            self.global_store_dwordx4(v(vv), v(VF + 4, 4), s(sHB, 2), mods="offset:1024 sc1")
        self.wait(lg=0); self.s_barrier()

    def mask_gen(self, far):
        self.v_and_b32(v(4), 31, v(vLANE)); self.v_lshrrev_b32(v(5), 5, v(vLANE)); self.v_lshlrev_b32(v(5), 2, v(5))
        self.v_sub_u32(v(4), v(4), v(5))
        self.v_mov_b32(v(5), f32(-1e30))
        for r in range(16):
            kk = 8 * (r >> 2) + (r & 3)
            self.v_cmp_le_i32(s(sU + 2 * (r & 3), 2), kk, v(4))
            if r >= 1:
                q = r - 1
                self._msel(q, far)
        self._msel(15, far)
    def _msel(self, r, far):
        if far: self.v_cndmask_b32(v(self.MSK + r), 0, v(5), s(sU + 2 * (r & 3), 2))
        else: self.v_cndmask_b32(v(self.MSK + r), v(5), 0, s(sU + 2 * (r & 3), 2))

    def halo_publish(self):
        lab = self.newlabel("hp"); l0, l1 = self.newlabel("hw"), self.newlabel("hw")
        self.s_cmp_lg_u32(s(sL), 0); self.s_cbranch_scc1(l0)
        self.wait(vm=self.N_C1); self.s_branch(l1)
        self.label(l0); self.wait(vm=0); self.label(l1)
        self.setexec(1)
        self.v_mov_b32(v(4), L_CNT); self.v_mov_b32(v(5), 1)
        self.ds_add_rtn_u32(v(5), v(4), v(5))
        self.wait(lg=0)
        self.v_readfirstlane_b32(s(sT), v(5))
        self.s_and_b32(s(sT), s(sT), 3); self.s_cmp_lg_u32(s(sT), 3); self.s_cbranch_scc1(lab)
        self.v_mov_b32(v(4), s(sHFO)); self.v_mov_b32(v(5), s(sHEXP))
        self.global_store_dword(v(4), v(5), s(sWS, 2), mods="sc1")
        self.label(lab)
        self.setexec(-1)

    CD, CE, CR, CDV = 96, 112, 120, 128
    C2D, C2E, C2R, C2DV = 164, 170, 224, 228
    CH_SZ = 24832
    def conv_srd(self):
        self.s_mov_b32(s(sSRD), s(sSK)); self.s_mov_b32(s(sSRD + 1), s(sSK + 1))
        self.s_mov_b32(s(sSRD + 2), 640 * 4096); self.s_mov_b32(s(sSRD + 3), "0x00020000")
    def conv1_issue(self):
        D, R = self.CD, self.CR
        self.smul(sT, sG, 80); self.s_lshl_b32(s(sT + 1), s(sS), 1); self.s_add_u32(s(sT + 1), s(sT + 1), s(sT))
        self.s_lshr_b32(s(sT + 2), s(sW), 1); self.s_add_u32(s(sT + 1), s(sT + 1), s(sT + 2))
        self.s_lshl_b32(s(sT + 3), s(sT + 1), 12)
        self.conv_srd()
        self.v_and_b32(v(4), 127, v(vTID)); self.v_lshlrev_b32(v(4), 4, v(4))
        for i in range(2):
            self.buffer_load_dwordx4(v(D + 8 * i, 4), v(4), s(sSRD, 4), s(sT + 3), mods=f"offen offset:{2048 * i}")
            self.buffer_load_dwordx2(v(D + 8 * i + 4, 2), v(4), s(sSRD, 4), s(sT + 3), mods=f"offen offset:{2048 * i + 16}")
        self.s_add_u32(s(sT + 4), s(sT + 3), hex(OFF_R)); self.v_add_u32(v(5), s(sT + 4), v(4))
        self.global_load_dwordx4(v(R, 4), v(5), s(sWS, 2), mods="sc1")
        self.global_load_dwordx4(v(R + 4, 4), v(5), s(sWS, 2), mods="offset:2048 sc1")
        self.s_lshr_b32(s(sT + 4), s(sT + 1), 1); self.s_lshl_b32(s(sT + 4), s(sT + 4), 2); self.v_mov_b32(v(5), s(sT + 4))
        self.global_load_dword(v(self.CDV), v(5), s(sSD, 2))
        self.v_min_u32(v(5), 199, v(vTID)); self.v_lshlrev_b32(v(5), 7, v(5)); self.smul(sT + 4, sS, 25600); self.v_add_u32(v(5), s(sT + 4), v(5))
        self.global_load_dword(v(231), v(5), s(sWO, 2))
    N_C1 = 8

    def pretouch_addr(self, va):
        self.v_min_u32(v(va), 159, v(vTID)); self.v_lshlrev_b32(v(va), 7, v(va))
        self.smul(sT, sG, ZG); self.smul(sT + 1, sS, 10240); self.s_add_u32(s(sT), s(sT), s(sT + 1)); self.s_add_u32(s(sT), s(sT), hex(OFF_O))
        self.v_add_u32(v(va), s(sT), v(va))
        self.v_add_u32(v(5), OFF_A - OFF_O - 80 * 128, v(va))
        self.v_cmp_gt_u32("vcc", 80, v(vTID)); self.v_cndmask_b32(v(va), v(5), v(va), "vcc")

    WOL = (0, 100)
    vWG = 14
    def wo_addr(self):
        self.s_and_b32(s(sT), s(sS), 7); self.smul(sT, sT, 160)
        self.v_min_u32(v(4), 49, v(vLANE))
        self.v_mul_u32_u24(v(5), 6554, v(4)); self.v_lshrrev_b32(v(5), 16, v(5))
        self.v_mul_u32_u24(v(self.vWG), 10, v(5)); self.v_sub_u32(v(4), v(4), v(self.vWG))
        self.smul(sT + 1, sW, 80); self.v_add_u32(v(5), s(sT + 1), v(5))
        self.v_mul_u32_u24(v(self.vWG), 1280, v(5)); self.v_lshl_add_u32(v(self.vWG), v(4), 4, v(self.vWG)); self.v_add_u32(v(self.vWG), s(sT), v(self.vWG))
    def wo_srd(self):
        self.s_mov_b32(s(sSRD), s(sWO)); self.s_mov_b32(s(sSRD + 1), s(sWO + 1))
        self.s_mov_b32(s(sSRD + 2), 640 * 640 * 2); self.s_mov_b32(s(sSRD + 3), "0x00020000")
    def wo_issue_one(self, n):
        hh, i = divmod(n, 16)
        self.s_mov_b32(s(sT + 7), hh * 320 * 1280 + i * 5 * 1280)
        self.buffer_load_dwordx4(a(self.WOL[hh] + 4 * i, 4), v(self.vWG), s(sSRD, 4), s(sT + 7), mods="offen")
    def wo_stage(self):
        self.v_min_u32(v(4), 49, v(vLANE))
        self.v_mul_u32_u24(v(8), 6554, v(4)); self.v_lshrrev_b32(v(8), 16, v(8))
        self.v_mul_u32_u24(v(9), 10, v(8)); self.v_sub_u32(v(9), v(4), v(9))
        self.smul(sT + 1, sW, 80); self.v_add_u32(v(8), s(sT + 1), v(8))
        self.v_mul_u32_u24(v(11), 160, v(8)); self.v_lshl_add_u32(v(11), v(9), 4, v(11)); self.v_add_u32(v(11), L_K, v(11))
        self.s_lshr_b32(s(sT), s(sW), 1)
        self.v_lshrrev_b32(v(12), 4, v(vLANE)); self.v_bfe_u32(v(13), v(vLANE), 2, 2)
        self.v_and_b32(v(16), 3, v(vLANE)); self.v_lshlrev_b32(v(16), 3, v(16)); self.v_add_u32(v(16), L_K, v(16))
        self.v_lshrrev_b32(v(17), 1, v(12)); self.v_mul_u32_u24(v(17), 20, v(17))
        self.v_and_b32(v(18), 1, v(12)); self.v_lshl_add_u32(v(17), v(18), 2, v(17)); self.v_add_u32(v(17), v(17), v(13))
        self.v_mul_u32_u24(v(17), 160, v(17)); self.v_add_u32(v(17), v(17), v(16))
        self.v_mul_u32_u24(v(18), 40, v(12)); self.v_add3_u32(v(18), v(18), v(13), 16)
        self.v_mul_u32_u24(v(18), 160, v(18)); self.v_add_u32(v(18), v(18), v(16))
        self.smul(sT + 1, sT, 32000); self.v_add_u32(v(17), s(sT + 1), v(17))
        self.s_cmp_eq_u32(s(sT), 0)
        self.s_mov_b32(s(sT + 4), 25600); self.s_mov_b32(s(sT + 5), 3200)
        self.s_cselect_b32(s(sT + 2), 6400, s(sT + 4)); self.s_cselect_b32(s(sT + 3), 1280, s(sT + 5))
        self.s_cselect_b64(s(sM0, 2), -1, 0)
        self.v_add_u32(v(19), 3 * 6400, v(17)); self.v_cndmask_b32(v(19), v(18), v(19), s(sM0, 2))
        self.v_add_u32(v(20), s(sT + 3), v(19)); self.v_add_u32(v(21), s(sT + 2), v(19)); self.v_add_u32(v(22), s(sT + 3), v(21))
        for hh in range(2):
            self.setexec((1 << 50) - 1)
            for i in range(16): self.ds_write_b128(v(11), a(self.WOL[hh] + 4 * i, 4), mods=f"offset:{800 * i}")
            self.setexec(-1)
            self.wait(lg=0); self.s_barrier()
            n = 0
            for jj in range(5):
                for ct in range(5):
                    d = ((5 * hh + jj) * 5 + ct) * 4
                    if n >= 12 and ct in (0, 2, 4): self.wait(lg=9)
                    if jj < 3:
                        self.ds_read_b64_tr_b16(a(d, 2), v(17), mods=f"offset:{6400 * jj + 32 * ct}")
                        self.ds_read_b64_tr_b16(a(d + 2, 2), v(17), mods=f"offset:{6400 * jj + 32 * ct + 1280}")
                    else:
                        self.ds_read_b64_tr_b16(a(d, 2), v(19 + 2 * (jj - 3)), mods=f"offset:{32 * ct}")
                        self.ds_read_b64_tr_b16(a(d + 2, 2), v(20 + 2 * (jj - 3)), mods=f"offset:{32 * ct}")
                    n += 2
            self.wait(lg=0)
            if hh == 1: self.wait(vm=0)
            self.s_barrier()

    def conv_head(self, sbase, sch, D, DV):
        self.v_readlane_b32(s(sT + 6), v(D), 0); self.v_readlane_b32(s(sT + 7), v(D + 1), 0)
        self.v_readfirstlane_b32(s(sT + 8), v(DV))
        self.s_and_b32(s(sT + 9), s(sch), 1); self.s_lshl_b32(s(sT + 9), s(sT + 9), 4)
        self.s_lshr_b32(s(sT + 8), s(sT + 8), s(sT + 9)); self.s_lshl_b32(s(sT + 8), s(sT + 8), 16)
        self.s_lshl_b32(s(sT + 9), s(sT + 6), 16)
        self.v_mov_b32(v(16), s(sT + 8)); self.v_add_f32(v(16), s(sT + 9), v(16))
        self.v_cvt_pk_bf16_f32(v(16), v(16), v(16)); self.v_and_b32(v(16), "0xffff", v(16))
        self.s_and_b32(s(sT + 6), s(sT + 6), "0xffff0000"); self.v_or_b32(v(16), s(sT + 6), v(16))
        self.v_mov_b32(v(17), s(sT + 7))
        self.v_lshrrev_b32(v(18), 2, v(vLANE)); self.v_sub_u32(v(19), 3, v(18)); self.v_lshlrev_b32(v(19), 4, v(19)); self.v_and_b32(v(19), 63, v(19))
        self.v_lshlrev_b64(v(26, 2), v(19), v(16, 2))
        self.v_and_b32(v(19), 3, v(vLANE)); self.v_cmp_eq_u32("vcc", 3, v(19))
        self.v_mov_b32(v(24), 0); self.v_mov_b32(v(25), 0)
        self.v_cndmask_b32(v(26), 0, v(26), "vcc"); self.v_cndmask_b32(v(27), 0, v(27), "vcc")
        self.v_mul_u32_u24(v(18), 4160, v(18)); self.v_lshl_add_u32(v(18), v(19), 4, v(18)); self.v_add_u32(v(18), s(sbase), v(18))
        self.setexec(0xffff); self.ds_write_b128(v(18), v(24, 4)); self.setexec(-1)
    def conv_copies(self, vaddr, d, e, off):
        AL = 132
        for j in range(4): self.v_alignbit_b32(v(AL + j), v(d + j + 1), v(d + j), 16)
        for j in range(3): self.v_mov_b32(v(AL + 4 + j), v(AL + 1 + j))
        self.v_alignbit_b32(v(AL + 7), v(d + 5), v(d + 4), 16)
        for j in range(4): self.v_mov_b32(v(e + j), v(d + 1 + j))
        self.ds_write_b128(v(vaddr), v(AL, 4), mods=f"offset:{off}")
        self.ds_write_b128(v(vaddr), v(e, 4), mods=f"offset:{off + 4160}")
        self.ds_write_b128(v(vaddr), v(AL + 4, 4), mods=f"offset:{off + 2 * 4160}")
        self.ds_write_b128(v(vaddr), v(d + 2, 4), mods=f"offset:{off + 3 * 4160}")
    def conv_addr(self, sbase, sstep0):
        self.v_and_b32(v(10), 3, v(vLANE)); self.v_mul_u32_u24(v(10), 4160, v(10))
        self.v_bfe_u32(v(11), v(vLANE), 2, 3); self.v_lshl_add_u32(v(10), v(11), 3, v(10))
        self.v_lshrrev_b32(v(11), 5, v(vLANE)); self.v_lshl_add_u32(v(10), v(11), 4, v(10))
        self.s_lshl_b32(s(sT + 6), s(sstep0), 5); self.s_add_u32(s(sT + 6), s(sT + 6), s(sbase)); self.v_add_u32(v(8), s(sT + 6), v(10))
        self.v_and_b32(v(10), 31, v(vLANE)); self.v_sub_u32(v(10), 31, v(10)); self.v_mul_u32_u24(v(10), 5, v(10))
        self.v_add_u32(v(10), v(10), v(11)); self.v_lshlrev_b32(v(10), 4, v(10))
        self.smul(sT + 6, sstep0, 40); self.s_add_u32(s(sT + 6), s(sT + 6), s(sbase)); self.s_add_u32(s(sT + 6), s(sT + 6), 16640)
        self.v_add_u32(v(9), s(sT + 6), v(10))

    def conv1_run(self):
        D, E, R = self.CD, self.CE, self.CR
        sB, sCHN, sHW = sU + 2, sU + 1, sU + 5
        self.s_lshr_b32(s(sU), s(sW), 1); self.smul(sB, sU, self.CH_SZ); self.s_add_u32(s(sB), s(sB), L_K)
        self.smul(sT, sG, 80); self.s_lshl_b32(s(sCHN), s(sS), 1); self.s_add_u32(s(sCHN), s(sCHN), s(sT)); self.s_add_u32(s(sCHN), s(sCHN), s(sU))
        self.s_and_b32(s(sHW), s(sW), 1)
        self.v_and_b32(v(8), 127, v(vTID)); self.v_lshlrev_b32(v(9), 4, v(8))
        self.v_add_u32(v(11), s(sB), v(9))
        self.ds_write_b128(v(11), v(vZERO, 4), mods=f"offset:{16640 + 320 * 16}")
        self.v_and_b32(v(16), 63, v(8)); self.v_lshlrev_b32(v(16), 4, v(16)); self.v_add_u32(v(16), s(sB), v(16))
        self.ds_write_b128(v(16), v(vZERO, 4), mods=f"offset:{16640 + 448 * 16}")
        self.v_add_u32(v(11), 64, v(11))
        self.v_lshrrev_b32(v(12), 2, v(8)); self.v_add_u32(v(12), v(12), v(8)); self.v_lshlrev_b32(v(12), 4, v(12)); self.v_add_u32(v(12), s(sB), v(12))
        self.wo_addr(); self.pretouch_addr(13)
        self.v_mov_b32(v(229), v(13))
        self.wait(vm=1)
        if self.o.get("fine"): self.stamp("c1ld")
        for i in range(2): self.conv_copies(11, D + 8 * i, E + 4 * i, 2048 * i)
        self.ds_write_b128(v(12), v(R, 4), mods="offset:16640"); self.ds_write_b128(v(12), v(R + 4, 4), mods=f"offset:{16640 + 160 * 16}")
        lab = self.newlabel("hd")
        self.s_cmp_lg_u32(s(sHW), 0); self.s_cbranch_scc1(lab)
        self.conv_head(sB, sCHN, D, self.CDV)
        self.label(lab)
        LO, HI, F = 16, 32, 96
        self.s_lshl_b32(s(sT + 5), s(sHW), 5)
        self.conv_addr(sB, sT + 5)
        self.wait(lg=0); self.s_barrier()
        if self.o.get("fine"): self.stamp("c1fill")
        self.zero16(LO); self.zero16(HI)
        def rd(m):
            f = F + 16 * (m & 3); oa = 32 * m; ob = 80 * (m >> 1) + 32 * (m & 1)
            return [lambda: self.ds_read_b64(v(f, 2), v(8), mods=f"offset:{oa}"), lambda: self.ds_read_b64(v(f + 2, 2), v(8), mods=f"offset:{oa + 8}"),
                    lambda: self.ds_read_b128(v(f + 8, 4), v(9), mods=f"offset:{ob + 2560}"), lambda: self.ds_read_b128(v(f + 12, 4), v(9), mods=f"offset:{ob}"),
                    lambda: self.ds_read_b64(v(f + 4, 2), v(8), mods=f"offset:{oa + 2048}"), lambda: self.ds_read_b64(v(f + 6, 2), v(8), mods=f"offset:{oa + 2056}")]
        self.conv2_issue()
        self.wo_srd()
        for m in (0, 1):
            for f_ in rd(m): f_()
        for m in range(32):
            f = F + 16 * (m & 3)
            nx = rd(m + 2) if m + 2 < 32 else [lambda: None] * 6
            self.wait(lg=6 if m < 31 else 0)
            self.v_mfma_f32_32x32x16_bf16(v(LO, 16), v(f, 4), v(f + 8, 4), v(LO, 16)); nx[0](); nx[1]()
            self.v_mfma_f32_32x32x16_bf16(v(HI, 16), v(f, 4), v(f + 12, 4), v(HI, 16)); nx[2](); nx[3]()
            self.v_mfma_f32_32x32x16_bf16(v(HI, 16), v(f + 4, 4), v(f + 8, 4), v(HI, 16)); nx[4](); nx[5]()
            self.wo_issue_one(m)
        self.global_load_dword(v(230), v(229), s(sWS, 2))
        if self.o.get("fine"): self.stamp("c1main")
        XB = L_HK
        self.s_lshl_b32(s(sT + 6), s(sW), 12); self.s_add_u32(s(sT + 6), s(sT + 6), XB); self.v_add_u32(v(10), s(sT + 6), v(vL16))
        self.s_xor_b32(s(sT + 7), s(sW), 1); self.s_lshl_b32(s(sT + 7), s(sT + 7), 12); self.s_add_u32(s(sT + 7), s(sT + 7), XB)
        self.v_add_u32(v(11), s(sT + 7), v(vL16))
        self.s_lshl_b32(s(sT + 6), s(sW), 11); self.s_add_u32(s(sT + 6), s(sT + 6), XB + 16384)
        self.v_and_b32(v(12), 31, v(vLANE)); self.v_lshlrev_b32(v(12), 6, v(12))
        self.v_lshrrev_b32(v(13), 5, v(vLANE)); self.v_lshl_add_u32(v(12), v(13), 3, v(12)); self.v_add_u32(v(12), s(sT + 6), v(12))
        self.v_add_u32(v(13), s(sT + 6), v(vL16))
        self.s_lshl_b32(s(sT + 6), s(sHW), 11); self.s_lshl_b32(s(sT + 7), s(sCHN), 12); self.s_add_u32(s(sT + 6), s(sT + 6), s(sT + 7))
        self.s_add_u32(s(sT + 6), s(sT + 6), hex(OFF_Y))
        l1, l2 = self.newlabel("cx"), self.newlabel("cy")
        self.s_cmp_lg_u32(s(sHW), 0); self.s_cbranch_scc1(l1)
        for role, (keep, send) in enumerate(((LO, HI), (HI, LO))):
            if role: self.label(l1)
            for q in range(4): self.ds_write_b128(v(10), v(send + 4 * q, 4), mods=f"offset:{1024 * q}")
            self.wait(lg=0); self.s_barrier()
            for q in range(4): self.ds_read_b128(v(F + 4 * q, 4), v(11), mods=f"offset:{1024 * q}")
            for q in range(4):
                self.wait(lg=3 - q)
                for r in (0, 2): self.v_pk_add_f32(v(keep + 4 * q + r, 2), v(keep + 4 * q + r, 2), v(F + 4 * q + r, 2))
                self.pack(F + 16 + 2 * q, keep + 4 * q, 2)
                if q == 2: pass
            for q in range(4): self.ds_write_b64(v(12), v(F + 16 + 2 * q, 2), mods=f"offset:{16 * q}")
            if role == 0: self.s_branch(l2)
        self.label(l2)
        self.v_add_u32(v(10), s(sT + 6), v(vL16))
        self.ds_read_b128(v(LO, 4), v(13)); self.ds_read_b128(v(LO + 4, 4), v(13), mods="offset:1024")
        self.wait(lg=0)
        self.global_store_dwordx4(v(10), v(LO, 4), s(sWS, 2), mods="sc1")
        self.global_store_dwordx4(v(10), v(LO + 4, 4), s(sWS, 2), mods="offset:1024 sc1")

    def conv2_issue(self):
        D, E, R = self.C2D, self.C2E, self.C2R
        self.smul(sT, sG, 80); self.s_lshr_b32(s(sT + 1), s(sS), 1); self.s_add_u32(s(sT + 1), s(sT + 1), s(sT)); self.s_add_u32(s(sT + 1), s(sT + 1), 64)
        self.s_lshl_b32(s(sT + 3), s(sT + 1), 12)
        self.conv_srd()
        self.v_lshlrev_b32(v(4), 4, v(vTID))
        self.buffer_load_dwordx4(v(D, 4), v(4), s(sSRD, 4), s(sT + 3), mods="offen")
        self.buffer_load_dwordx2(v(D + 4, 2), v(4), s(sSRD, 4), s(sT + 3), mods="offen offset:16")
        self.s_add_u32(s(sT + 4), s(sT + 3), hex(OFF_R)); self.v_add_u32(v(5), s(sT + 4), v(4))
        self.global_load_dwordx4(v(R, 4), v(5), s(sWS, 2), mods="sc1")
        self.s_lshr_b32(s(sT + 4), s(sT + 1), 1); self.s_lshl_b32(s(sT + 4), s(sT + 4), 2); self.v_mov_b32(v(5), s(sT + 4))
        self.global_load_dword(v(self.C2DV), v(5), s(sSD, 2))
    def conv2_run(self):
        D, E, R = self.C2D, self.C2E, self.C2R
        sB, sCHN, sPART = sU + 2, sU + 1, sU + 5
        self.s_mov_b32(s(sB), L_K)
        self.smul(sT, sG, 80); self.s_lshr_b32(s(sCHN), s(sS), 1); self.s_add_u32(s(sCHN), s(sCHN), s(sT)); self.s_add_u32(s(sCHN), s(sCHN), 64)
        self.s_and_b32(s(sPART), s(sS), 1)
        self.v_lshlrev_b32(v(9), 4, v(vTID)); self.v_add_u32(v(11), L_K, v(9))
        self.v_min_u32(v(16), 191, v(vTID)); self.v_lshlrev_b32(v(16), 4, v(16)); self.v_add_u32(v(16), L_K, v(16))
        self.ds_write_b128(v(16), v(vZERO, 4), mods=f"offset:{16640 + 320 * 16}")
        self.v_add_u32(v(11), 64, v(11))
        self.v_lshrrev_b32(v(12), 2, v(vTID)); self.v_add_u32(v(12), v(12), v(vTID)); self.v_lshlrev_b32(v(12), 4, v(12)); self.v_add_u32(v(12), L_K, v(12))
        self.wait(vm=35)
        self.conv_copies(11, D, E, 0)
        self.ds_write_b128(v(12), v(R, 4), mods="offset:16640")
        lab = self.newlabel("hd")
        self.s_cmp_lg_u32(s(sW), 0); self.s_cbranch_scc1(lab)
        self.conv_head(sB, sCHN, D, self.C2DV)
        self.label(lab)
        AC, F = 16, 96
        self.s_lshl_b32(s(sT + 5), s(sW), 4)
        self.conv_addr(sB, sT + 5)
        self.wait(lg=0); self.s_barrier()
        self.zero16(AC)
        def reads(st, par, extra, hi):
            f = F + 16 * st
            oa, ob = 32 * par + extra * 64, 32 * par + extra * 80
            self.ds_read_b64(v(f, 2), v(8), mods=f"offset:{oa}"); self.ds_read_b64(v(f + 2, 2), v(8), mods=f"offset:{oa + 8}")
            self.ds_read_b128(v(f + 8, 4), v(9), mods=f"offset:{ob + 2560}")
            if hi:
                self.ds_read_b128(v(f + 12, 4), v(9), mods=f"offset:{ob}")
                self.ds_read_b64(v(f + 4, 2), v(8), mods=f"offset:{oa + 2048}"); self.ds_read_b64(v(f + 6, 2), v(8), mods=f"offset:{oa + 2056}")
        def mm(st, hi):
            f = F + 16 * st
            if hi:
                self.v_mfma_f32_32x32x16_bf16(v(AC, 16), v(f, 4), v(f + 12, 4), v(AC, 16))
                self.v_mfma_f32_32x32x16_bf16(v(AC, 16), v(f + 4, 4), v(f + 8, 4), v(AC, 16))
            else:
                self.v_mfma_f32_32x32x16_bf16(v(AC, 16), v(f, 4), v(f + 8, 4), v(AC, 16))
        lhi, ldone = self.newlabel("c2hi"), self.newlabel("c2d")
        self.s_mov_b32(s(sT + 6), 8)
        self.s_cmp_lg_u32(s(sPART), 0); self.s_cbranch_scc1(lhi)
        for hi in (0, 1):
            if hi: self.label(lhi)
            n = 6 if hi else 3
            reads(0, 0, 0, hi)
            lp = self.newlabel("cv")
            self.label(lp)
            reads(1, 1, 0, hi); self.wait(lg=n); mm(0, hi)
            reads(0, 0, 1, hi); self.wait(lg=n); mm(1, hi)
            self.v_add_u32(v(8), 64, v(8)); self.v_add_u32(v(9), 80, v(9))
            self.s_sub_u32(s(sT + 6), s(sT + 6), 1); self.s_cmp_lg_u32(s(sT + 6), 0); self.s_cbranch_scc1(lp)
            if not hi: self.s_branch(ldone)
        self.label(ldone)
        XB = L_HK
        self.s_lshl_b32(s(sT + 6), s(sW), 12); self.s_add_u32(s(sT + 6), s(sT + 6), XB); self.v_add_u32(v(10), s(sT + 6), v(vL16))
        self.s_lshl_b32(s(sT + 6), s(sW), 10); self.s_add_u32(s(sT + 6), s(sT + 6), XB); self.v_add_u32(v(11), s(sT + 6), v(vL16))
        self.v_and_b32(v(12), 31, v(vLANE)); self.v_lshlrev_b32(v(12), 6, v(12))
        self.v_lshrrev_b32(v(13), 5, v(vLANE)); self.v_lshl_add_u32(v(12), v(13), 3, v(12))
        self.s_lshl_b32(s(sT + 6), s(sW), 4); self.s_add_u32(s(sT + 6), s(sT + 6), XB + 16384); self.v_add_u32(v(12), s(sT + 6), v(12))
        for j in range(4): self.ds_write_b128(v(10), v(AC + 4 * j, 4), mods=f"offset:{1024 * j}")
        self.v_lshlrev_b32(v(13), 4, v(vTID)); self.v_add_u32(v(10), XB + 16384, v(13))
        self.s_lshl_b32(s(sT + 6), s(sPART), 11); self.s_lshl_b32(s(sT + 7), s(sCHN), 12); self.s_add_u32(s(sT + 6), s(sT + 6), s(sT + 7))
        self.s_add_u32(s(sT + 6), s(sT + 6), hex(OFF_Y)); self.v_add_u32(v(13), s(sT + 6), v(13))
        self.wait(lg=0); self.s_barrier()
        for j in range(4): self.ds_read_b128(v(F + 4 * j, 4), v(11), mods=f"offset:{4096 * j}")
        self.wait(lg=0)
        for r in (0, 2):
            self.v_pk_add_f32(v(F + r, 2), v(F + r, 2), v(F + 4 + r, 2)); self.v_pk_add_f32(v(F + 8 + r, 2), v(F + 8 + r, 2), v(F + 12 + r, 2))
        for r in (0, 2): self.v_pk_add_f32(v(F + r, 2), v(F + r, 2), v(F + 8 + r, 2))
        self.pack(F + 16, F, 2)
        self.ds_write_b64(v(12), v(F + 16, 2))
        self.wait(lg=0); self.s_barrier()
        lab = self.newlabel("c2s")
        self.s_cmp_ge_u32(s(sW), 2); self.s_cbranch_scc1(lab)
        self.ds_read_b128(v(16, 4), v(10))
        self.wait(lg=0)
        self.global_store_dwordx4(v(13), v(16, 4), s(sWS, 2), mods="sc1")
        self.label(lab)

    def attn_local(self):
        sKb, sVb, sN, sMI = sU + 6, sU + 7, sU + 8, sU + 9
        self.s_mov_b32(s(sKb), L_K); self.s_mov_b32(s(sVb), L_V)
        self.s_sub_u32(s(sN), 8, s(sW)); self.s_sub_u32(s(sMI), 7, s(sW))
        self.attn_seq(self.QB, self.OB, sKb, sVb, sN, sMI)
        self.halo_publish()
        self.s_add_u32(s(sN), s(sW), 1); self.s_mov_b32(s(sMI), s(sW))
        self.attn_seq(self.QA, self.OA, sKb, sVb, sN, sMI)

    def halo_prep(self):
        self.mask_gen(True)
        self.smul(sT, sW, 7168); self.v_add_u32(v(8), s(sT), v(vL16)); self.v_add_u32(v(10), 4096, v(8)); self.v_add_u32(v(9), L_HK, v(8))
        self.v_mov_b32(v(11), s(sHFI))
    def halo_fetch(self):
        self.s_mov_b64(s(sT + 2, 2), -1)
        self.poll2(sWS, 11, sHEXP, sT + 2)
        R = 96
        for j in range(7):
            self.global_load_dwordx4(v(R + 4 * j, 4), v(8 if j < 4 else 10), s(sHP, 2), mods=f"offset:{(j % 4) * 1024} sc1")
        for j in range(7):
            self.wait(vm=6 - j)
            self.ds_write_b128(v(9), v(R + 4 * j, 4), mods=f"offset:{j * 1024}")
        self.wait(lg=0); self.s_barrier()

    def attn_halo(self):
        sKb, sVb, sN, sMI = sU + 6, sU + 7, sU + 8, sU + 9
        self.s_mov_b32(s(sMI), 0)
        self.smul(sKb, sW, 1536); self.s_add_u32(s(sKb), s(sKb), L_HK)
        self.s_lshl_b32(s(sVb), s(sW), 11); self.s_add_u32(s(sVb), s(sVb), L_HV)
        self.s_sub_u32(s(sN), 8, s(sW))
        self.attn_seq(self.QA, self.OA, sKb, sVb, sN, sMI)
        self.s_sub_u32(s(sT), 7, s(sW))
        self.smul(sKb, sT, 1536); self.s_add_u32(s(sKb), s(sKb), L_HK)
        self.s_lshl_b32(s(sVb), s(sT), 11); self.s_add_u32(s(sVb), s(sVb), L_HV)
        self.s_add_u32(s(sN), s(sW), 1)
        self.attn_seq(self.QB, self.OB, sKb, sVb, sN, sMI)

    def range_check(self):
        self.s_mov_b32(s(sT), f32(2.0 ** -64)); self.s_mov_b32(s(sT + 1), f32(2.0 ** 64))
        ret = []
        for blk, O in ((0, self.OA), (1, self.OB)):
            lf, lr = self.newlabel("fb"), self.newlabel("fbr")
            self.v_cmp_nle_f32("vcc", s(sT), v(O + 12))
            self.v_cmp_nge_f32(s(sM0, 2), s(sT + 1), v(O + 12))
            self.s_or_b64("vcc", "vcc", s(sM0, 2))
            self.s_cbranch_scc1(lf)
            self.label(lr)
            self.fallbacks.append((lf, lr, blk))
    def emit_fallbacks(self):
        FQ, FO, FM = 96, 104, 120
        S, P, K0, K1, V0, V1 = 16, 48, 56, 60, 62, 66
        sB, sPH, sN, sMI, sKb, sVb, sI, sPASS = sU + 8, sU + 9, sU + 10, sU + 11, sU + 12, sU + 13, sU + 14, sU + 15
        body = self.newlabel("fbody"); done = self.newlabel("fdone")
        for lf, lr, blk in self.fallbacks:
            Q = self.QA if blk == 0 else self.QB
            self.label(lf)
            for j in range(6): self.v_mov_b32(v(FQ + j), v(Q + j))
            if blk == 0: self.s_mov_b32(s(sB), s(sW))
            else: self.s_sub_u32(s(sB), 7, s(sW))
            self.s_mov_b32(s(sT + 8), blk)
            self.s_branch(body)
        self.label(body)
        self.v_add_u32(v(8), L_K, v(vL16))
        self.s_mov_b32(s(sI), 28)
        lp = self.newlabel("frl")
        self.label(lp)
        self.global_load_dwordx4(v(136, 4), v(8), s(sHB, 2), mods="sc1")
        self.wait(vm=0)
        self.ds_write_b128(v(8), v(136, 4))
        self.v_add_u32(v(8), 1024, v(8))
        self.s_sub_u32(s(sI), s(sI), 1); self.s_cmp_lg_u32(s(sI), 0); self.s_cbranch_scc1(lp)
        self.wait(lg=0)
        for r in range(16): self.v_mov_b32(v(FM + r), f32(-3.0e38))
        for r in range(16): self.v_mov_b32(v(FO + r), 0)
        self.s_mov_b32(s(sPASS), 0)
        lpass, lphase, litem, lnm, ljoin, lacc, lnext, lpe = [self.newlabel(x) for x in ("fp", "fph", "fi", "fn", "fj", "fa", "fx", "fe")]
        self.label(lpass)
        self.s_mov_b32(s(sPH), 0)
        self.label(lphase)
        l1, l2 = self.newlabel("f"), self.newlabel("f")
        self.s_cmp_lg_u32(s(sPH), 0); self.s_cbranch_scc1(l1)
        self.mask_gen(False)
        self.s_mov_b32(s(sKb), L_K); self.s_mov_b32(s(sVb), L_V); self.s_add_u32(s(sN), s(sB), 1); self.s_mov_b32(s(sMI), s(sB))
        self.s_branch(l2)
        self.label(l1)
        self.mask_gen(True)
        self.smul(sKb, sB, 1536); self.s_add_u32(s(sKb), s(sKb), L_HK); self.s_lshl_b32(s(sVb), s(sB), 11); self.s_add_u32(s(sVb), s(sVb), L_HV)
        self.s_sub_u32(s(sN), 8, s(sB)); self.s_mov_b32(s(sMI), 0)
        self.label(l2)
        self.v_add_u32(v(8), s(sKb), v(vL16)); self.v_add_u32(v(9), s(sKb), v(vL8)); self.v_add_u32(v(10), s(sVb), v(vL16))
        self.s_mov_b32(s(sI), 0)
        self.label(litem)
        self.ds_read_b128(v(K0, 4), v(8)); self.ds_read_b64(v(K1, 2), v(9), mods="offset:1024")
        self.ds_read_b128(v(V0, 4), v(10)); self.ds_read_b128(v(V1, 4), v(10), mods="offset:1024")
        self.wait(lg=0)
        self.s_cmp_eq_u32(s(sI), s(sMI)); self.s_cbranch_scc0(lnm)
        self.v_mfma_f32_32x32x16_bf16(v(S, 16), v(K0, 4), v(FQ, 4), v(self.MSK, 16))
        self.s_branch(ljoin)
        self.label(lnm)
        self.v_mfma_f32_32x32x16_bf16(v(S, 16), v(K0, 4), v(FQ, 4), 0)
        self.label(ljoin)
        self.v_mfma_f32_32x32x8_bf16(v(S, 16), v(K1, 2), v(FQ + 4, 2), v(S, 16))
        self.s_cmp_lg_u32(s(sPASS), 0); self.s_cbranch_scc1(lacc)
        for r in range(16): self.v_max_f32(v(FM + r), v(FM + r), v(S + r))
        self.s_branch(lnext)
        self.label(lacc)
        for r in range(16):
            self.v_sub_f32(v(S + r), v(S + r), v(FM)); self.v_exp_f32(v(S + r), v(S + r))
        self.pack(P, S, 8)
        self.v_mfma_f32_32x32x16_bf16(v(FO, 16), v(V0, 4), v(P, 4), v(FO, 16))
        self.v_mfma_f32_32x32x16_bf16(v(FO, 16), v(V1, 4), v(P + 4, 4), v(FO, 16))
        self.label(lnext)
        self.v_add_u32(v(8), 1536, v(8)); self.v_add_u32(v(9), 1536, v(9)); self.v_add_u32(v(10), 2048, v(10))
        self.s_add_u32(s(sI), s(sI), 1); self.s_cmp_lt_u32(s(sI), s(sN)); self.s_cbranch_scc1(litem)
        self.s_cmp_eq_u32(s(sG), 0); self.s_cbranch_scc1(lpe)
        self.s_add_u32(s(sPH), s(sPH), 1); self.s_cmp_lt_u32(s(sPH), 2); self.s_cbranch_scc1(lphase)
        self.label(lpe)
        self.s_cmp_lg_u32(s(sPASS), 0); self.s_cbranch_scc1(done)
        for r in range(1, 16): self.v_max_f32(v(FM), v(FM), v(FM + r))
        self.v_mov_b32(v(FM + 1), v(FM)); self.v_permlane32_swap_b32(v(FM), v(FM + 1)); self.v_max_f32(v(FM), v(FM), v(FM + 1))
        self.s_mov_b32(s(sPASS), 1)
        self.s_branch(lpass)
        self.label(done)
        la, lb = self.newlabel("fo"), self.newlabel("fo")
        self.s_cmp_lg_u32(s(sT + 8), 0); self.s_cbranch_scc1(la)
        for r in range(16): self.v_mov_b32(v(self.OA + r), v(FO + r))
        self.s_branch(self.fallbacks[0][1])
        self.label(la)
        for r in range(16): self.v_mov_b32(v(self.OB + r), v(FO + r))
        self.s_branch(self.fallbacks[1][1])

    vOA = 160
    def o_prep(self):
        self.s_lshr_b32(s(sT), s(sS), 4); self.s_and_b32(s(sT + 1), s(sS), 15)
        self.s_lshr_b32(s(sT + 2), s(sT + 1), 1)
        self.s_cmp_ge_u32(s(sT + 2), 5); self.s_cselect_b32(s(sT + 5), 1, 0); self.s_add_u32(s(sT + 5), s(sT + 5), s(sT)); self.smul(sT + 5, sT + 5, 5)
        self.s_add_u32(s(sT + 2), s(sT + 2), s(sT + 5)); self.s_lshl_b32(s(sT + 2), s(sT + 2), 10)
        self.s_and_b32(s(sT + 3), s(sT + 1), 1); self.s_lshl_b32(s(sT + 4), s(sT + 3), 9); self.s_add_u32(s(sT + 2), s(sT + 2), s(sT + 4))
        self.smul(sT, sT, 5); self.s_lshr_b32(s(sT + 4), s(sT + 1), 3); self.s_add_u32(s(sT + 4), s(sT + 4), s(sT)); self.s_add_u32(s(sT + 4), s(sT + 4), 13)
        self.s_lshl_b32(s(sT + 4), s(sT + 4), 10)
        self.s_bfe_u32(s(sT + 5), s(sT + 1), (2 << 16) | 1); self.s_lshl_b32(s(sT + 5), s(sT + 5), 8); self.s_add_u32(s(sT + 4), s(sT + 4), s(sT + 5))
        self.s_lshl_b32(s(sT + 3), s(sT + 3), 3); self.s_add_u32(s(sT + 4), s(sT + 4), s(sT + 3))
        self.v_bfe_u32(v(4), v(vLANE), 4, 1); self.v_mul_u32_u24(v(4), 20480, v(4))
        self.v_and_b32(v(5), 15, v(vLANE)); self.v_lshl_add_u32(v(4), v(5), 4, v(4))
        self.v_lshrrev_b32(v(5), 5, v(vLANE)); self.v_lshl_add_u32(v(5), v(5), 8, v(4))
        for blk in range(2):
            if blk == 0: self.s_mov_b32(s(sT + 6), s(sW))
            else: self.s_sub_u32(s(sT + 6), 7, s(sW))
            self.smul(sT + 6, sT + 6, 40960)
            self.s_add_u32(s(sT + 7), s(sT + 6), s(sT + 2)); self.s_add_u32(s(sT + 6), s(sT + 6), s(sT + 4))
            self.v_add_u32(v(self.vOA + 2 * blk), s(sT + 7), v(5)); self.v_add_u32(v(self.vOA + 2 * blk + 1), s(sT + 6), v(4))
    def o_store(self):
        lst = []
        self.v_rcp_f32(v(8), v(self.OA + 12)); self.v_rcp_f32(v(10), v(self.OB + 12))
        self.v_mov_b32(v(9), v(8)); self.v_mov_b32(v(11), v(10))
        for blk, O in ((0, self.OA), (1, self.OB)):
            for r in range(0, 12, 2): self.v_pk_mul_f32(v(O + r, 2), v(O + r, 2), v(8 + 2 * blk, 2))
            P = 48 + 8 * blk
            self.pack(P, O, 6)
            va = self.vOA + 2 * blk
            lst += [self.store(16, v(va), v(P, 4), s(sOB, 2)), ("exec", 0xffffffff), self.store(8, v(va + 1), v(P + 4, 2), s(sOB, 2)), ("exec", -1)]
        self.stores(lst)

    def prestore(self):
        lst = []
        for blk in range(2):
            va = self.vOA + 2 * blk
            lst += [self.store(16, v(va), v(vZERO, 4), s(sOB, 2)), ("exec", 0xffffffff), self.store(8, v(va + 1), v(vZERO, 2), s(sOB, 2)), ("exec", -1)]
        self.op_prep()
        lst += [self.store(16, v(12), v(vZERO, 4), s(sAB, 2)), self.store(16, v(12), v(vZERO, 4), s(sAB, 2), 512),
                ("exec", 0x0000ffff0000ffff), self.store(16, v(12), v(vZERO, 4), s(sAB, 2), 1024), ("exec", -1)]
        self.stores(lst)

    def op_prep(self):
        self.s_lshr_b32(s(sU), s(sS), 3); self.s_lshl_b32(s(sU), s(sU), 2)
        self.s_and_b32(s(sU + 1), s(sW), 1); self.s_lshl_b32(s(sU + 1), s(sU + 1), 1); self.s_add_u32(s(sU), s(sU), s(sU + 1))
        self.s_lshr_b32(s(sU + 1), s(sW), 1)
        self.s_add_u32(s(sU + 2), s(sU), s(sU + 1)); self.s_xor_b32(s(sU + 3), s(sU + 2), 1)
        self.smul(sU + 4, sU + 1, 10240)
        for j, sr in ((0, sU + 2), (1, sU + 3)):
            self.smul(sU + 5, sr, 20480); self.s_add_u32(s(sU + 5), s(sU + 5), s(sU + 4))
            self.v_add_u32(v(8 + j), s(sU + 5), v(vL16))
        self.smul(sU + 5, sW, 5120); self.s_add_u32(s(sU + 5), s(sU + 5), L_K); self.v_add_u32(v(10), s(sU + 5), v(vL16))
        self.s_xor_b32(s(sU + 5), s(sW), 2); self.smul(sU + 5, sU + 5, 5120); self.s_add_u32(s(sU + 5), s(sU + 5), L_K)
        self.v_add_u32(v(11), s(sU + 5), v(vL16))
        self.s_lshl_b32(s(sU + 5), s(sU + 2), 1); self.smul(sU + 5, sU + 5, 10240)
        self.s_and_b32(s(sU + 6), s(sS), 7); self.smul(sU + 6, sU + 6, 1280); self.s_add_u32(s(sU + 5), s(sU + 5), s(sU + 6))
        self.v_bfe_u32(v(12), v(vLANE), 3, 1); self.v_mul_u32_u24(v(12), 10240, v(12))
        self.v_and_b32(v(13), 7, v(vLANE)); self.v_lshl_add_u32(v(12), v(13), 4, v(12))
        self.v_bfe_u32(v(13), v(vLANE), 4, 1); self.v_lshl_add_u32(v(12), v(13), 8, v(12))
        self.v_lshrrev_b32(v(13), 5, v(vLANE)); self.v_lshl_add_u32(v(12), v(13), 7, v(12))
        self.v_add_u32(v(12), s(sU + 5), v(12))
        self.v_mov_b32(v(66), 0); self.v_mov_b32(v(67), 0)
        for j in range(2): self.v_add_u32(v(68 + j), 4096, v(8 + j)); self.v_add_u32(v(70 + j), 8192, v(8 + j))
    def op_run(self):
        OF, AC, P = 96, 16, 56
        LA = 4
        def ld(kl, j):
            va = (8, 68, 70)[kl // 4] + j
            self.global_load_dwordx4(v(OF + 8 * kl + 4 * j, 4), v(va), s(sOB, 2), mods=f"offset:{(kl % 4) * 1024} sc1")
        for kl in range(LA): ld(kl, 1); ld(kl, 0)
        for kl in range(10):
            issued = 2 * min(10, kl + LA)
            for j in (1, 0):
                self.wait(vm=issued - 2 * kl - (1 if j == 1 else 2))
                for ct in range(5):
                    d = AC + 20 * j + 4 * ct
                    self.v_mfma_f32_16x16x32_bf16(v(d, 4), a((kl * 5 + ct) * 4, 4), v(OF + 8 * kl + 4 * j, 4), v(d, 4) if kl else 0)
                    if ct == 1 and kl + LA < 10:
                        ld(kl + LA, j); issued += 1
        if self.o.get("fine2"): self.stamp("op_mm")
        for ct in range(5): self.ds_write_b128(v(10), v(AC + 20 + 4 * ct, 4), mods=f"offset:{1024 * ct}")
        self.wait(lg=0); self.s_barrier()
        if self.o.get("fine2"): self.stamp("op_x")
        for ct in range(5): self.ds_read_b128(v(OF + 4 * ct, 4), v(11), mods=f"offset:{1024 * ct}")
        for ct in range(5):
            self.wait(lg=4 - ct)
            for r in (0, 2): self.v_pk_add_f32(v(AC + 4 * ct + r, 2), v(AC + 4 * ct + r, 2), v(OF + 4 * ct + r, 2))
            self.pack(P + 2 * ct, AC + 4 * ct, 2)
        for q in range(3):
            self.v_permlane16_swap_b32(v(P + 4 * q), v(P + 4 * q + 2)); self.v_permlane16_swap_b32(v(P + 4 * q + 1), v(P + 4 * q + 3))
        self.stores([self.store(16, v(12), v(P, 4), s(sAB, 2)), self.store(16, v(12), v(P + 4, 4), s(sAB, 2), 512),
                     ("exec", 0x0000ffff0000ffff), self.store(16, v(12), v(P + 8, 4), s(sAB, 2), 1024), ("exec", -1)])

    XF, AF, AP, UU, ST, YF = 16, 64, 96, 112, 40, 136
    def p4_prep(self):
        AP = self.AP
        self.smul(sU, sS, 10240); self.s_lshl_b32(s(sU + 1), s(sW), 5); self.s_add_u32(s(sU), s(sU), s(sU + 1))
        self.v_lshrrev_b32(v(8), 1, v(vLANE)); self.v_lshlrev_b32(v(8), 7, v(8))
        self.v_and_b32(v(9), 1, v(vLANE)); self.v_lshl_add_u32(v(8), v(9), 4, v(8)); self.v_add_u32(v(8), s(sU), v(8))
        self.v_add_u32(v(9), 4096, v(8)); self.v_add_u32(v(10), 8192, v(8))
        for j in range(8, 12): self.v_mov_b32(v(AP + j), 0)
        self.unpack(self.XF, vX, 12)
        self.unpack(self.YF, vY, 12)
    def p4_run(self):
        XF, AF, AP, UU, ST, YF = self.XF, self.AF, self.AP, self.UU, self.ST, self.YF
        self.global_load_dwordx4(v(AP, 4), v(8), s(sAB, 2), mods="sc1")
        self.global_load_dwordx4(v(AP + 4, 4), v(9), s(sAB, 2), mods="sc1")
        self.setexec(0xffffffff)
        self.global_load_dwordx4(v(AP + 8, 4), v(10), s(sAB, 2), mods="sc1")
        self.setexec(-1)
        for m in range(3):
            self.wait(vm=2 - m)
            self.unpack(AF + 8 * m, AP + 4 * m, 4)
            for j in range(4 * m, 4 * m + 4): self.v_pk_add_f32(v(XF + 2 * j, 2), v(XF + 2 * j, 2), v(AF + 2 * j, 2))
        if self.o.get("fine2"): self.stamp("p4_ld")
        self.ln_stats(XF, ST)
        for j in range(12): self.v_pk_fma_f32(v(UU + 2 * j, 2), v(XF + 2 * j, 2), v(ST, 2), v(ST + 2, 2))
        for j in range(12): self.v_pk_fma_f32(v(XF + 2 * j, 2), v(UU + 2 * j, 2), v(YF + 2 * j, 2), v(XF + 2 * j, 2))
    def p4_z(self):
        XF, ST = self.XF, self.ST
        self.ln_stats(XF, ST)
        for j in range(12): self.v_pk_fma_f32(v(self.UU + 2 * j, 2), v(XF + 2 * j, 2), v(ST, 2), v(ST + 2, 2))
        self.pack(56, self.UU, 12)

    def y_flag(self):
        lab = self.newlabel("ys")
        self.s_cmp_lg_u32(s(sW), 0); self.s_cbranch_scc1(lab)
        self.s_lshl_b32(s(sT), s(2), 7); self.s_add_u32(s(sT), s(sT), hex(OFF_YFL))
        self.s_add_u32(s(sT + 1), s(sTOK), 32)
        self.v_mov_b32(v(8), s(sT)); self.v_mov_b32(v(9), s(sT + 1))
        self.setexec(1); self.global_store_dword(v(8), v(9), s(sWS, 2), mods="sc1"); self.setexec(-1)
        self.label(lab)
    def y_wait2(self):
        self.v_lshlrev_b32(v(8), 7, v(vTID)); self.v_add_u32(v(8), OFF_YFL, v(8))
        self.s_add_u32(s(sT + 1), s(sTOK), 32); self.s_mov_b64(s(sT + 2, 2), -1)
        self.poll2(sWS, 8, sT + 1, sT + 2)
        self.s_barrier()
        lab = self.newlabel("nu")
        self.s_cmp_lg_u32(s(2), 0); self.s_cbranch_scc1(lab)
        self.s_cmp_lg_u32(s(sW), 0); self.s_cbranch_scc1(lab)
        self.v_mov_b32(v(8), OFF_N); self.v_mov_b32(v(9), s(sTOK))
        self.setexec(1); self.global_store_dword(v(8), v(9), s(sWS, 2), mods="sc1"); self.setexec(-1)
        self.label(lab)

    def finish(self):
        self.label("L_END")
        self.s_endpgm()
        self.emit_cold2()
        self.label("L_HOTEND")
        self.emit_cold()
        self.emit_fallbacks()
        self.s_endpgm()

    def build(self):
        self.fallbacks = []
        self.setup2()
        self.issue_x()
        self.code_prefetch()
        self.c0_issue()
        self.w_addr()
        self.w_issue(0, 16)
        self.stamp("w1iss")
        for r in range(4): self.v_mov_b32(v(vZERO + r), 0)
        self.v_and_b32(v(vPL), 31, v(vLANE)); self.v_lshlrev_b32(v(vPL), 7, v(vPL))
        self.s_lshl_b32(s(sT), s(sS), 7); self.v_mov_b32(v(vSO), s(sT))
        self.v_mov_b32(v(4), L_CNT); self.ds_write_b32(v(4), v(vZERO))
        self.z_addr(8)
        self.wait(vm=17)
        self.p0_ln()
        self.wait(lg=0)
        self.s_add_u32(s(sTOK), s(sTOK), hex(NONCE_C))
        self.layer_bases2()
        self.stores_sc1(self.z_store_list(56, sZB, 8))
        self.stamp("z0st")
        self.wait(vm=16 + 3)
        self.c0_compute()
        lab = self.newlabel("xp")
        self.s_cmp_lg_u32(s(sW), 0); self.s_cbranch_scc1(lab)
        self.s_lshl_b32(s(sT), s(sG), 5); self.s_add_u32(s(sT), s(sT), s(sS)); self.s_lshl_b32(s(sT), s(sT), 7); self.s_add_u32(s(sT), s(sT), hex(OFF_XCC))
        self.s_add_u32(s(sT + 1), s(sTOK), s(sXCC)); self.s_add_u32(s(sT + 1), s(sT + 1), 64)
        self.v_mov_b32(v(4), s(sT)); self.v_mov_b32(v(5), s(sT + 1))
        self.setexec(1); self.global_store_dword(v(4), v(5), s(sWS, 2), mods="sc1"); self.setexec(-1)
        self.label(lab)
        self.stamp("c0")
        self.w_issue(16, 22)
        self.wait(vm=6); self.s_barrier()
        lab = self.newlabel("f0")
        self.s_cmp_lg_u32(s(sW), 0); self.s_cbranch_scc1(lab)
        self.v_mov_b32(v(4), s(sEXP)); self.s_add_u32(s(sT), s(sTOK), 7); self.v_mov_b32(v(5), s(sT))
        self.s_add_u32(s(sT), s(sFZ), 6 * 8 * 4096); self.s_addc_u32(s(sT + 1), s(sFZ + 1), 0)
        self.setexec(1)
        self.global_store_dword(v(vSO), v(4), s(sFZ, 2), mods="sc1"); self.global_store_dword(v(vSO), v(5), s(sT, 2), mods="sc1")
        self.setexec(-1)
        self.label(lab)
        self.stamp("flags"); self.dstamp(1)
        self.w_issue(22, 32)
        self.stamp("w2iss")
        self.w_lds(0, 16)
        self.w_zero()
        self.s_lshl_b32(s(sT + 4), s(sW), 2); self.lanemask(sM0, s(sT + 4), 4)
        self.s_sub_u32(s(sT + 4), 28, s(sT + 4)); self.lanemask(sMZ, s(sT + 4), 4); self.s_or_b64(s(sMZ, 2), s(sMZ, 2), s(sM0, 2))
        self.s_mov_b32(s(sMO), -1); self.s_mov_b32(s(sMO + 1), 0)
        self.s_lshr_b32(s(sT + 4), s(sS), 3); self.s_lshl_b32(s(sT + 4), s(sT + 4), 3); self.lanemask(sMA, s(sT + 4), 8)
        self.epi_prep()
        self.qkv_addr()
        self.stamp("prep")
        self.first_flags()
        self.qkv_zissue()
        self.w_lds(16, 32)
        self.mask_gen(False)
        self.wait(lg=0); self.s_barrier()
        self.stamp("wlds"); self.dstamp(2)
        self.qkv_init()
        self.s_branch("L_QKV")
        self.label("L_LAYER")
        self.layer_bases2()
        self.epi_prep(); self.mask_gen(False)
        self.qkv_addr(); self.qkv_init()
        self.poll2(sFZ, vPL, sEXP, sMZ)
        self.stamp("zwait")
        self.qkv_zissue()
        self.label("L_QKV")
        self.qkv_run()
        self.stamp("qkv"); self.dstamp(3, True)
        self.epi_run()
        self.stamp("epi")
        lab = self.newlabel("aux0")
        self.s_cmp_lg_u32(s(sL), 0); self.s_cbranch_scc1(lab)
        self.conv1_issue()
        self.label(lab)
        self.attn_local()
        self.stamp("local"); self.dstamp(4, True)
        self.o_prep()
        lab = self.newlabel("aux1")
        self.s_cmp_lg_u32(s(sL), 0); self.s_cbranch_scc1(lab)
        self.s_barrier()
        self.conv1_run()
        self.stamp("conv1")
        self.conv2_run()
        self.stamp("conv2")
        self.wait(vm=3)
        self.wo_stage()
        self.y_flag()
        self.stamp("wo"); self.dstamp(5)
        self.label(lab)
        nohalo = self.newlabel("nohalo")
        self.s_cmp_eq_u32(s(sG), 0); self.s_cbranch_scc1(nohalo)
        self.halo_prep()
        self.halo_fetch()
        self.stamp("halof")
        self.attn_halo()
        self.label(nohalo)
        self.stamp("halo"); self.dstamp(6, True)
        self.range_check()
        self.o_store()
        lab = self.newlabel("aux1b")
        self.s_add_u32(s(sT), s(sEXP), 1); self.v_mov_b32(v(5), s(sT))
        self.signal2(sFO, 5)
        self.stamp("osig")
        self.s_cmp_lg_u32(s(sL), 0); self.s_cbranch_scc1(lab)
        self.y_wait2()
        self.y_load()
        self.stamp("yld")
        self.label(lab)
        self.op_prep()
        self.s_add_u32(s(sT + 8), s(sEXP), 1)
        self.poll2(sFO, vPL, sT + 8, sMO)
        self.stamp("owait")
        self.op_run()
        if self.o.get("fine2"): self.stamp("op_st")
        self.s_add_u32(s(sT), s(sEXP), 2); self.v_mov_b32(v(5), s(sT))
        self.signal2(sFA, 5)
        self.stamp("asig"); self.dstamp(7, True)
        self.p4_prep()
        self.s_add_u32(s(sT + 8), s(sEXP), 2)
        self.poll2(sFA, vPL, sT + 8, sMA)
        self.stamp("await")
        self.p4_run()
        self.s_cmp_lg_u32(s(sL), 0); self.s_cbranch_scc1("L_FINAL")
        self.z_addr(8)
        self.p4_z()
        self.stores(self.z_store_list(56, sZN, 8))
        if self.o.get("fine2"): self.stamp("p4_st")
        self.pack(vX, self.XF, 12)
        self.s_add_u32(s(sT), s(sEXP), 3); self.v_mov_b32(v(5), s(sT))
        self.signal2(sFN, 5)
        self.stamp("p4")
        self.s_mov_b32(s(sL), 1)
        self.s_branch("L_LAYER")
        self.label("L_FINAL")
        self.pack(vX, self.XF, 12)
        self.out_store()
        if self.o.get("span"):
            self.wait(vm=0); self.stamps = True
        self.stamp("end")
        self.dflush()
        return self.finish()

if __name__ == "__main__":
    import argparse
    ap = argparse.ArgumentParser()
    ap.add_argument("-o", default="k2.s"); ap.add_argument("--stamps", action="store_true")
    ap.add_argument("--slow", action="store_true"); ap.add_argument("-v", action="store_true"); ap.add_argument("--opt", default="")
    a_ = ap.parse_args()
    k = K2(stamps=a_.stamps, opts=dict({"force_slow": a_.slow}, **{x.split("=")[0]: (int(x.split("=")[1]) if "=" in x else 1) for x in a_.opt.split(",") if x}))
    k.build()
    ins = k.fix_all(verbose=a_.v)
    open(a_.o, "w").write(render_file(k))
    n = sum(1 for it in k.items if isinstance(it, Ins))
    print("instructions:", n, "nops inserted:", len(ins), "stamps:", ",".join(k.stamp_names))
```

```python
import sys, math
from asm import *
import kern as B
from kern import (NAME, OFF_N, OFF_XCC, OFF_HFL, OFF_YFL, OFF_Z, OFF_HALO, OFF_O, OFF_A, OFF_R, OFF_Y, OFF_DBG, ZG, HALO_SZ,
                  NONCE_C, L_W, L_WT1, L_K, L_V, L_VS, L_SP, L_HK, L_HV, LDS_BYTES, f32,
                  sX, sWQ, sWO, sBK, sBV, sSH, sSK, sSD, sOUT, sDBG, sWS, sG, sS, sW, sTOK, sMODE, sL, sSRD, sM0, sM1, sT, sTO, sXCC, sU,
                  vTID, vLANE, vL16, vX, vY, render_file)

OFF_FL2 = 0x40000
L_CNT = 135104
sEXP, sHEXP = 34, 35
sFZ, sFO, sFA, sFN = 56, 58, 60, 62
sZB, sOB, sAB, sHB, sHP, sZN = 66, 68, 70, 72, 74, 76
sHFO, sHFI = 78, 79
sMZ, sMO, sMA = 4, 6, 10
vL8, vPL = 3, 15
vZERO = 92
vSO = 6

class K2(B.K):
    def stamp(self, name):
        if not self.stamps: return
        i = self.nstamp; self.nstamp += 1; self.stamp_names.append(name)
        lab = self.newlabel("st")
        self.s_cmp_lg_u32(s(sW), 0); self.s_cbranch_scc1(lab)
        (self.s_memtime if self.o.get("cyc") else self.s_memrealtime)(s(96, 2)); self.wait(lg=0)
        self.s_mov_b64(s(98, 2), "exec"); self.setexec(1)
        self.v_accvgpr_write_b32(a(250), s(96)); self.v_accvgpr_write_b32(a(251), s(97))
        self.s_lshl_b32(s(96), s(2), 9); self.s_add_u32(s(96), s(96), hex(OFF_DBG + 8 * i))
        self.s_lshl_b32(s(97), s(sL), 8); self.s_add_u32(s(96), s(96), s(97))
        self.v_mov_b32(v(7), s(96))
        self.global_store_dwordx2(v(7), a(250, 2), s(sWS, 2))
        self.s_mov_b64("exec", s(98, 2))
        self.label(lab)

    def dstamp(self, i, per_layer=False):
        if not self.o.get("dbgspan"): return
        if self.o.get("d2") and not getattr(self, "_d2ok", True): return
        self.s_memrealtime(s(96, 2)); self.wait(lg=0)
        if per_layer:
            l0, l1 = self.newlabel("dl"), self.newlabel("dl")
            self.s_cmp_lg_u32(s(sL), 0); self.s_cbranch_scc1(l0)
            self.v_accvgpr_write_b32(a(220 + i), s(96)); self.s_branch(l1)
            self.label(l0); self.v_accvgpr_write_b32(a(228 + i), s(96)); self.label(l1)
        else:
            self.v_accvgpr_write_b32(a(220 + i), s(96))
    def dflush(self):
        if not self.o.get("dbgspan"): return
        self.wait(vm=0)
        self._d2ok = True
        self.dstamp(15)
        lab = self.newlabel("ds")
        self.s_cmp_lg_u32(s(sW), 0); self.s_cbranch_scc1(lab)
        self.setexec(1)
        self.v_accvgpr_read_b32(v(8), a(220))
        for i in range(1, 16):
            self.v_accvgpr_read_b32(v(9), a(220 + i)); self.v_sub_u32(v(9), v(9), v(8)); self.v_mov_b32(v(7), 4 * i)
            self.global_atomic_umax(v(7), v(9), s(sDBG, 2))
        self.label(lab)

    def poll2(self, sbase, voff, s_exp, s_mask, vtmp=4):
        lp, dn = self.newlabel("poll"), self.newlabel("polld")
        self.label(lp)
        self.global_load_dword(v(vtmp), v(voff), s(sbase, 2), mods="sc1")
        self.s_cmp_eq_u32(s(sTO), 0); self.s_cbranch_scc1(dn)
        self.s_sub_u32(s(sTO), s(sTO), 1)
        self.wait(vm=0)
        self.v_cmp_ne_u32("vcc", s(s_exp), v(vtmp))
        self.s_and_b64("vcc", "vcc", s(s_mask, 2))
        self.s_cbranch_scc1(lp)
        self.label(dn)
    def flag_store(self, sbase, vval, force_sc1=False):
        lab = self.newlabel("sig")
        self.s_cmp_lg_u32(s(sW), 0); self.s_cbranch_scc1(lab)
        self.setexec(1)
        if force_sc1: self.global_store_dword(v(vSO), v(vval), s(sbase, 2), mods="sc1")
        else: self.stores([self.store(4, v(vSO), v(vval), s(sbase, 2))])
        self.setexec(-1)
        self.label(lab)
    def signal2(self, sbase, vval, force_sc1=False):
        self.wait(vm=0); self.s_barrier()
        self.flag_store(sbase, vval, force_sc1)
    def stores_sc1(self, lst):
        for it in lst:
            if it[0] == "exec": self.setexec(it[1])
            else: self.I(it[0], it[1], it[2], it[3], mods=(it[4] + " sc1").strip())
    def first_flags(self):
        self.s_lshl_b32(s(sT), s(sG), 12); self.s_add_u32(s(sT + 1), s(sT), hex(OFF_XCC)); self.s_add_u32(s(sT), s(sT), hex(OFF_FL2 + 6 * 8 * 4096))
        self.v_mov_b32(v(16), s(sT + 1)); self.v_mov_b32(v(17), s(sT))
        self.s_mov_b32(s(sM1), 0); self.s_mov_b32(s(sM1 + 1), -1)
        self.v_cndmask_b32(v(16), v(16), v(17), s(sM1, 2)); self.v_add_u32(v(16), v(16), v(vPL))
        self.s_add_u32(s(sT + 2), s(sTOK), 64); self.s_add_u32(s(sT + 3), s(sTOK), 7)
        self.v_mov_b32(v(17), s(sT + 2)); self.v_mov_b32(v(18), s(sT + 3)); self.v_cndmask_b32(v(17), v(17), v(18), s(sM1, 2))
        self.v_mov_b32(v(18), 16); self.v_cndmask_b32(v(18), v(18), 1, s(sM1, 2))
        lp, dn = self.newlabel("xpoll"), self.newlabel("xpolld")
        self.label(lp)
        self.global_load_dword(v(4), v(vPL), s(sFZ, 2), mods="sc1")
        self.global_load_dword(v(5), v(16), s(sWS, 2), mods="sc1")
        self.s_cmp_eq_u32(s(sTO), 0); self.s_cbranch_scc1(dn)
        self.s_sub_u32(s(sTO), s(sTO), 1)
        self.wait(vm=0)
        self.v_cmp_ne_u32("vcc", s(sEXP), v(4)); self.s_and_b64(s(sM0, 2), "vcc", s(sMZ, 2))
        self.v_sub_u32(v(5), v(5), v(17))
        self.v_cmp_le_u32("vcc", v(18), v(5))
        self.s_or_b64("vcc", "vcc", s(sM0, 2)); self.s_cbranch_scc1(lp)
        self.label(dn)
        self.v_cmp_ne_u32("vcc", s(sXCC), v(5))
        self.s_and_b32(s(sT), "vcc_lo", -1)
        self.s_cselect_b32(s(sMODE), 1, 0)
        if self.o.get("force_slow"): self.s_mov_b32(s(sMODE), 1)
    def flagbase(self, d, phase_off_sreg_or_imm):
        self.smul(sT, sL, 3); self.s_add_u32(s(sT), s(sT), phase_off_sreg_or_imm)
        self.s_lshl_b32(s(sT), s(sT), 3); self.s_add_u32(s(sT), s(sT), s(sG)); self.s_lshl_b32(s(sT), s(sT), 12)
        self.base64(d, sWS, sT, OFF_FL2)

    def layer_bases2(self):
        self.s_lshl_b32(s(sT + 4), s(sL), 3); self.s_add_u32(s(sT + 4), s(sT + 4), s(sG))
        self.smul(sT + 1, sG, ZG)
        self.base64(sZB, sWS, sT + 1, OFF_Z); self.base64(sOB, sWS, sT + 1, OFF_O); self.base64(sAB, sWS, sT + 1, OFF_A)
        self.s_mov_b64(s(sZN, 2), s(sZB, 2))
        self.s_lshl_b32(s(sT + 2), s(sT + 4), 5); self.s_add_u32(s(sT + 2), s(sT + 2), s(sS))
        self.s_lshl_b32(s(sHFO), s(sT + 2), 7); self.s_add_u32(s(sHFO), s(sHFO), hex(OFF_HFL))
        self.s_sub_u32(s(sHFI), s(sHFO), 32 * 128)
        self.smul(sT + 2, sT + 2, HALO_SZ)
        self.base64(sHB, sWS, sT + 2, OFF_HALO - L_K)
        self.s_sub_u32(s(sT + 2), s(sT + 2), 32 * HALO_SZ)
        self.s_cmp_eq_u32(s(sG), 0); self.s_cselect_b32(s(sT + 2), 0, s(sT + 2))
        self.base64(sHP, sWS, sT + 2, OFF_HALO)
        self.flagbase(sFZ, 0)
        self.s_add_u32(s(sFO), s(sFZ), 8 * 4096); self.s_addc_u32(s(sFO + 1), s(sFZ + 1), 0)
        self.s_add_u32(s(sFA), s(sFO), 8 * 4096); self.s_addc_u32(s(sFA + 1), s(sFO + 1), 0)
        self.s_add_u32(s(sFN), s(sFA), 8 * 4096); self.s_addc_u32(s(sFN + 1), s(sFA + 1), 0)
        self.smul(sEXP, sL, 3); self.s_add_u32(s(sEXP), s(sEXP), s(sTOK)); self.s_add_u32(s(sEXP), s(sEXP), 1)
        self.s_add_u32(s(sHEXP), s(sTOK), s(sL)); self.s_add_u32(s(sHEXP), s(sHEXP), 16)

    def wave_sum2(self, a_, b_, t0, t1):
        for r in (a_, b_): self.v_add_f32_dpp(v(r), v(r), v(r), mods="quad_perm:[2,3,0,1] row_mask:0xf bank_mask:0xf")
        for r in (a_, b_): self.v_add_f32_dpp(v(r), v(r), v(r), mods="row_ror:4 row_mask:0xf bank_mask:0xf")
        for r in (a_, b_): self.v_add_f32_dpp(v(r), v(r), v(r), mods="row_ror:8 row_mask:0xf bank_mask:0xf")
        self.v_permlane16_swap_b32(v(a_), v(b_)); self.v_add_f32(v(a_), v(a_), v(b_))
        self.v_mov_b32(v(t0), v(a_)); self.v_permlane32_swap_b32(v(a_), v(t0)); self.v_add_f32(v(a_), v(a_), v(t0))
        self.v_mov_b32(v(b_), v(a_)); self.v_permlane16_swap_b32(v(a_), v(b_))

    def setup2(self):
        self.cold = []; self.cold2 = []
        self.s_cmp_ge_u32(s(2), 256); self.s_cbranch_scc1("L_END")
        self.s_load_dwordx4(s(4, 4), s(0, 2), 0); self.s_load_dwordx2(s(8, 2), s(0, 2), 16)
        self.s_load_dwordx8(s(12, 8), s(0, 2), 32); self.s_load_dwordx8(s(20, 8), s(0, 2), 64)
        self.s_getpc_b64(s(100, 2))
        self.label("L_PC")
        self.v_and_b32(v(vLANE), 63, v(vTID)); self.v_lshlrev_b32(v(vL16), 4, v(vLANE)); self.v_lshlrev_b32(v(vL8), 3, v(vLANE))
        self.v_lshrrev_b32(v(4), 6, v(vTID))
        self.s_and_b32(s(sG), s(2), 7); self.s_lshr_b32(s(sS), s(2), 3)
        self.v_readfirstlane_b32(s(sW), v(4))
        self.s_mov_b32(s(sTO), 400000); self.s_mov_b32(s(sMODE), 0); self.s_mov_b32(s(sL), 0)
        self.s_getreg_b32(s(sXCC), "hwreg(HW_REG_XCC_ID, 0, 4)")
        self.x_addr(8)
        self.wait(lg=0)
        if self.o.get("span"):
            self.stamps = True; self.stamp("t0"); self.stamps = False
        self.dstamp(0)
        if not self.o.get("d2"): self.s_load_dword(s(sTOK), s(sWS, 2), OFF_N)
    sPC = 100
    def code_prefetch(self, vd=224):
        self.v_lshlrev_b32(v(5), 7, v(vTID))
        self.v_min_u32(v(5), "L_HOTEND-L_PC-4", v(5))
        self.global_load_dword(v(vd), v(5), s(self.sPC, 2))
    def issue_x(self):
        for j in range(8, 12): self.v_mov_b32(v(vX + j), 0)
        self.global_load_dwordx4(v(vX, 4), v(8), s(sX, 2))
        self.global_load_dwordx4(v(vX + 4, 4), v(8), s(sX, 2), mods="offset:512")
        self.setexec(0xffffffff)
        self.global_load_dwordx4(v(vX + 8, 4), v(8), s(sX, 2), mods="offset:1024")
        self.setexec(-1)

    def w_addr(self):
        self.s_mov_b32(s(sSRD), s(sWQ)); self.s_mov_b32(s(sSRD + 1), s(sWQ + 1))
        self.s_mov_b32(s(sSRD + 2), 640 * 1920 * 2); self.s_mov_b32(s(sSRD + 3), "0x00020000")
        self.v_mul_u32_u24(v(8), 5462, v(vLANE)); self.v_lshrrev_b32(v(8), 16, v(8))
        self.v_mul_u32_u24(v(9), 12, v(8)); self.v_sub_u32(v(9), v(vLANE), v(9))
        self.v_lshrrev_b32(v(10), 2, v(9)); self.v_and_b32(v(11), 3, v(vLANE))
        self.smul(sT, sW, 160); self.v_add_u32(v(8), s(sT), v(8))
        self.s_mov_b32(s(sT + 1), 3840); self.v_mul_lo_u32(v(90), s(sT + 1), v(8))
        self.v_mul_u32_u24(v(91), 1280, v(10)); self.v_lshlrev_b32(v(14), 4, v(11)); self.v_add3_u32(v(90), v(90), v(91), v(14))
        self.smul(sT + 2, sS, 40); self.v_add_u32(v(90), s(sT + 2), v(90))
        self.v_lshlrev_b32(v(91), 5, v(10)); self.v_add_u32(v(91), v(91), v(14))
        self.v_cmp_eq_u32("vcc", 2, v(10)); self.v_add_u32(v(5), L_WT1 + 32, v(14)); self.v_cndmask_b32(v(91), v(91), v(5), "vcc")
        self.v_lshlrev_b32(v(5), 4, v(10)); self.v_min_u32(v(5), 24, v(5)); self.v_add_u32(v(5), L_WT1, v(5))
        self.v_cmp_eq_u32("vcc", 2, v(11)); self.v_cndmask_b32(v(91), v(91), v(5), "vcc")
        self.v_lshlrev_b32(v(8), 6, v(8)); self.v_add_u32(v(91), v(91), v(8))
    WM = sum(1 << l for l in range(60) if (l & 3) < 3)
    def w_issue(self, lo, hi):
        self.setexec(self.WM)
        self.s_mov_b32(s(sT + 3), lo * 5 * 3840)
        for i in range(lo, hi):
            self.buffer_load_dwordx4(v(96 + 4 * i, 4), v(90), s(sSRD + 0, 4), s(sT + 3), mods="offen")
            if i < hi - 1: self.s_add_u32(s(sT + 3), s(sT + 3), 5 * 3840)
        self.setexec(-1)
    def w_lds(self, lo, hi):
        m128 = sum(1 << l for l in range(60) if (l & 3) < 2); m64 = sum(1 << l for l in range(60) if (l & 3) == 2)
        self.setexec(m128)
        for i in range(lo, hi): self.ds_write_b128(v(91), v(96 + 4 * i, 4), mods=f"offset:{320 * i}")
        self.setexec(m64)
        for i in range(lo, hi): self.ds_write_b64(v(91), v(96 + 4 * i, 2), mods=f"offset:{320 * i}")
        self.setexec(-1)
    def w_zero(self):
        self.v_lshlrev_b32(v(10), 6, v(vTID)); self.v_add_u32(v(10), L_WT1 + 8, v(10))
        self.ds_write_b64(v(10), v(vZERO, 2)); self.ds_write_b64(v(10), v(vZERO, 2), mods=f"offset:{256 * 64}")
        lab = self.newlabel("wz")
        self.s_cmp_ge_u32(s(sW), 2); self.s_cbranch_scc1(lab)
        self.ds_write_b64(v(10), v(vZERO, 2), mods=f"offset:{512 * 64}")
        self.label(lab)

    def z_addr(self, va):
        self.s_lshr_b32(s(sT), s(sS), 2); self.smul(sT, sT, 40960)
        self.s_and_b32(s(sT + 1), s(sS), 3); self.s_lshl_b32(s(sT + 1), s(sT + 1), 7)
        self.s_add_u32(s(sT), s(sT), s(sT + 1)); self.s_lshl_b32(s(sT + 1), s(sW), 5); self.s_add_u32(s(sT), s(sT), s(sT + 1))
        self.v_lshrrev_b32(v(va), 1, v(vLANE)); self.v_lshlrev_b32(v(va), 9, v(va))
        self.v_and_b32(v(va + 1), 1, v(vLANE)); self.v_lshlrev_b32(v(va + 1), 4, v(va + 1))
        self.v_add3_u32(v(va), v(va), v(va + 1), s(sT))
        self.v_add_u32(v(va + 1), 32 * 512, v(va)); self.v_add_u32(v(va + 2), 64 * 512, v(va))
    def z_store_list(self, zp, sbase, va):
        return [self.store(16, v(va), v(zp, 4), s(sbase, 2)), self.store(16, v(va + 1), v(zp + 4, 4), s(sbase, 2)),
                ("exec", 0xffffffff), self.store(16, v(va + 2), v(zp + 8, 4), s(sbase, 2)), ("exec", -1)]

    CKP, CVP, CSP = 160, 188, 204
    def c0_issue(self):
        KP, VP, SP = self.CKP, self.CVP, self.CSP
        lab = self.newlabel("c0i")
        self.s_mov_b32(s(sSRD), s(sBK)); self.s_mov_b32(s(sSRD + 1), s(sBK + 1))
        self.s_mov_b32(s(sSRD + 2), 2048 * 1280); self.s_mov_b32(s(sSRD + 3), "0x00020000")
        self.v_mul_u32_u24(v(68), 6554, v(vTID)); self.v_lshrrev_b32(v(68), 16, v(68))
        self.v_mul_u32_u24(v(69), 10, v(68)); self.v_sub_u32(v(69), v(vTID), v(69))
        self.v_cmp_gt_u32("vcc", 160, v(vTID))
        self.s_and_saveexec_b64(s(sM0, 2), "vcc")
        self.s_cbranch_execz(lab)
        self.s_lshl_b32(s(sU), s(sS), 6); self.s_sub_u32(s(sU), s(sU), 3)
        self.v_lshl_add_u32(v(10), v(68), 2, s(sU))
        self.s_mov_b32(s(sU + 1), 1280); self.v_mul_lo_u32(v(10), s(sU + 1), v(10))
        self.smul(sU + 2, sG, 160); self.v_lshl_add_u32(v(11), v(69), 4, s(sU + 2)); self.v_add_u32(v(10), v(10), v(11))
        for j in range(7):
            self.buffer_load_dwordx4(v(KP + 4 * j, 4), v(10), s(sSRD, 4), 0, mods="offen")
            if j == 2: self.v_add_u32(v(12), 1280, v(10))
            self.v_add_u32(v(10), 1280, v(10))
        self.s_mov_b32(s(sSRD), s(sBV)); self.s_mov_b32(s(sSRD + 1), s(sBV + 1))
        for j in range(4):
            self.buffer_load_dwordx4(v(VP + 4 * j, 4), v(12), s(sSRD, 4), 0, mods="offen")
            self.v_add_u32(v(12), 1280, v(12))
        self.smul(sU + 2, sG, 640); self.v_lshl_add_u32(v(11), v(69), 6, s(sU + 2))
        for j in range(4): self.global_load_dwordx4(v(SP + 4 * j, 4), v(11), s(sSH, 2), mods=f"offset:{16 * j}")
        self.label(lab)
        self.s_mov_b64("exec", -1)
    def c0_compute(self):
        KP, VP, SP = self.CKP, self.CVP, self.CSP
        KF, SK, VF, U, PKD = 16, 30, 38, 46, 54
        lab = self.newlabel("c0c")
        self.v_cmp_gt_u32("vcc", 160, v(vTID))
        self.s_and_saveexec_b64(s(sM0, 2), "vcc")
        self.s_cbranch_execz(lab)
        self.v_mul_u32_u24(v(10), 1168, v(69)); self.v_lshlrev_b32(v(11), 3, v(68)); self.v_sub_u32(v(10), v(10), v(11))
        self.v_add_u32(v(10), L_K + 120, v(10))
        for m in range(4):
            for j in range(7):
                self.v_lshlrev_b32(v(KF + 2 * j), 16, v(KP + 4 * j + m)); self.v_and_b32(v(KF + 2 * j + 1), "0xffff0000", v(KP + 4 * j + m))
            for e in range(2):
                c = 2 * m + e
                self.v_lshlrev_b32(v(SK + 0 + e), 16, v(SP + 2 * c)); self.v_and_b32(v(SK + 2 + e), "0xffff0000", v(SP + 2 * c))
                self.v_lshlrev_b32(v(SK + 4 + e), 16, v(SP + 2 * c + 1)); self.v_and_b32(v(SK + 6 + e), "0xffff0000", v(SP + 2 * c + 1))
            for i in range(4):
                self.v_lshlrev_b32(v(VF + 2 * i), 16, v(VP + 4 * i + m)); self.v_and_b32(v(VF + 2 * i + 1), "0xffff0000", v(VP + 4 * i + m))
            for i in range(4): self.v_pk_mul_f32(v(U + 2 * i, 2), v(KF + 2 * i, 2), v(SK + 6, 2))
            for i in range(4): self.v_pk_fma_f32(v(U + 2 * i, 2), v(KF + 2 * (i + 1), 2), v(SK + 4, 2), v(U + 2 * i, 2))
            for i in range(4): self.v_pk_fma_f32(v(U + 2 * i, 2), v(KF + 2 * (i + 2), 2), v(SK + 2, 2), v(U + 2 * i, 2))
            for i in range(4): self.v_pk_fma_f32(v(U + 2 * i, 2), v(KF + 2 * (i + 3), 2), v(SK + 0, 2), v(U + 2 * i, 2))
            for i in range(4): self.v_pk_mul_f32(v(U + 2 * i, 2), v(U + 2 * i, 2), v(VF + 2 * i, 2))
            for e in range(2):
                p = PKD + 2 * e + 4 * (m & 1)
                self.v_cvt_pk_bf16_f32(v(p), v(U + 6 + e), v(U + 4 + e)); self.v_cvt_pk_bf16_f32(v(p + 1), v(U + 2 + e), v(U + e))
                self.ds_write_b64(v(10), v(p, 2), mods=f"offset:{144 * (2 * m + e)}")
        self.label(lab)
        self.s_mov_b64("exec", -1)
        self.wait(lg=0); self.s_barrier()
        self.v_lshrrev_b32(v(8), 6, v(vTID)); self.v_mul_u32_u24(v(8), 1168, v(8))
        self.v_bfe_u32(v(9), v(vTID), 3, 3); self.v_mul_u32_u24(v(9), 144, v(9))
        self.v_and_b32(v(10), 7, v(vTID)); self.v_lshlrev_b32(v(10), 4, v(10))
        self.v_add3_u32(v(8), v(8), v(9), v(10)); self.v_add_u32(v(8), L_K, v(8))
        self.smul(sU, sG, 80 * 4096); self.s_lshl_b32(s(sU + 1), s(sS), 7); self.s_sub_u32(s(sU), s(sU), s(sU + 1))
        self.s_add_u32(s(sU), s(sU), hex(OFF_R + 1984 * 2))
        self.v_lshrrev_b32(v(9), 3, v(vTID)); self.v_lshlrev_b32(v(9), 12, v(9)); self.v_add3_u32(v(9), v(9), v(10), s(sU))
        self.ds_read_b128(v(16, 4), v(8)); self.ds_read_b128(v(20, 4), v(8), mods=f"offset:{4 * 1168}")
        self.ds_read_b128(v(24, 4), v(8), mods=f"offset:{8 * 1168}")
        self.v_add_u32(v(11), 32 * 4096, v(9)); self.v_add_u32(v(14), 64 * 4096, v(9))
        self.wait(lg=0)
        self.global_store_dwordx4(v(9), v(16, 4), s(sWS, 2), mods="sc1"); self.global_store_dwordx4(v(11), v(20, 4), s(sWS, 2), mods="sc1")
        l1 = self.newlabel("c0s")
        self.s_cmp_ge_u32(s(sW), 2); self.s_cbranch_scc1(l1)
        self.global_store_dwordx4(v(14), v(24, 4), s(sWS, 2), mods="sc1")
        self.label(l1)

    ACC, ZR, WF = 16, 96, 160
    OA, OB, MSK = 176, 192, 208
    SA, SB, PP, KF0, KF1, VF0, VF1, KP0, KP1 = 16, 32, 48, 56, 60, 62, 66, 70, 74
    QA, QB = 80, 86
    vSA, vSB, vSC, vTR0, vTR1, vKA, vK1A, vVA = 224, 225, 226, 227, 228, 229, 230, 231
    vKB, vK1B, vVB = 12, 13, 14
    def zero16(self, d):
        self.v_mfma_f32_32x32x16_bf16(v(d, 16), v(vZERO, 4), v(vZERO, 4), 0)
    def qkv_addr(self):
        vzA, vzB, vw0, vw1 = 8, 9, 10, 11
        self.smul(sT, sW, 40960); self.v_add_u32(v(vzA), s(sT), v(vL16))
        self.s_sub_u32(s(sT + 1), 7, s(sW)); self.smul(sT + 1, sT + 1, 40960); self.v_add_u32(v(vzB), s(sT + 1), v(vL16))
        self.v_lshrrev_b32(v(4), 5, v(vLANE)); self.v_lshlrev_b32(v(4), 3, v(4))
        self.v_bfe_u32(v(5), v(vLANE), 2, 2); self.v_add_u32(v(4), v(4), v(5)); self.v_lshlrev_b32(v(4), 6, v(4))
        self.v_bfe_u32(v(5), v(vLANE), 4, 1); self.v_lshlrev_b32(v(5), 5, v(5))
        self.v_and_b32(v(vw0), 3, v(vLANE)); self.v_lshlrev_b32(v(vw0), 3, v(vw0))
        self.v_add3_u32(v(vw0), v(4), v(5), v(vw0)); self.v_add_u32(v(vw1), L_WT1, v(vw0))
    def qkv_init(self):
        for d in (16, 32, 48, 64): self.zero16(d)
        self.zero16(self.OA); self.zero16(self.OB)
        self.wread(0, 0)
    def wread(self, st, kk):
        for T, vw in ((0, 10), (1, 11)):
            r = self.WF + 8 * st + 4 * T
            self.ds_read_b64_tr_b16(v(r, 2), v(vw), mods=f"offset:{kk * 1024}")
            self.ds_read_b64_tr_b16(v(r + 2, 2), v(vw), mods=f"offset:{kk * 1024 + 256}")
    def zload(self, j, kk):
        ZR, vzA, vzB = self.ZR, 8, 9
        self.global_load_dwordx4(v(ZR + 8 * j, 4), v(vzA), s(sZB, 2), mods=f"offset:{(kk % 4) * 1024} sc1")
        self.global_load_dwordx4(v(ZR + 8 * j + 4, 4), v(vzB), s(sZB, 2), mods=f"offset:{(kk % 4) * 1024} sc1")
        if kk % 4 == 3:
            self.v_add_u32(v(vzA), 4096, v(vzA)); self.v_add_u32(v(vzB), 4096, v(vzB))
    def qkv_zissue(self):
        for j in range(8): self.zload(j, j)
    def qkv_run(self):
        ACC, ZR, WF = self.ACC, self.ZR, self.WF
        vzA, vzB, vw0, vw1 = 8, 9, 10, 11
        zload = self.zload
        def body(last):
            for j in range(8):
                st = j & 1
                if not (last and j == 7): self.wread(st ^ 1, j + 1)
                self.wait(vm=(14 - 2 * j) if last else 14, lg=0 if (last and j == 7) else 4)
                for blk in range(2):
                    for T in range(2):
                        d = ACC + 32 * blk + 16 * T
                        self.v_mfma_f32_32x32x16_bf16(v(d, 16), v(WF + 8 * st + 4 * T, 4), v(ZR + 8 * j + 4 * blk, 4), v(d, 16))
                if not last: zload(j, j)
            if not last:
                self.v_add_u32(v(vw0), 8192, v(vw0)); self.v_add_u32(v(vw1), 8192, v(vw1))
        lp = self.newlabel("qkv")
        self.s_mov_b32(s(sU), 4)
        self.label(lp)
        body(False)
        self.s_sub_u32(s(sU), s(sU), 1); self.s_cmp_lg_u32(s(sU), 0); self.s_cbranch_scc1(lp)
        body(True)

    def epi_prep(self):
        vSA, vSB, vSC, vTR0, vTR1 = self.vSA, self.vSB, self.vSC, self.vTR0, self.vTR1
        self.s_lshl_b32(s(sT), s(sW), 11); self.s_add_u32(s(sT), s(sT), L_VS)
        self.v_and_b32(v(4), 31, v(vLANE)); self.v_bfe_u32(v(5), v(4), 1, 3)
        self.v_lshlrev_b32(v(4), 6, v(4)); self.v_add_u32(v(4), s(sT), v(4))
        self.v_lshrrev_b32(v(vSA), 5, v(vLANE)); self.v_xor_b32(v(vSA), v(vSA), v(5)); self.v_lshl_add_u32(v(vSA), v(vSA), 3, v(4))
        self.v_xor_b32(v(vSB), 16, v(vSA))
        self.v_xor_b32(v(vSC), 40, v(vSA))
        self.v_xor_b32(v(4), 48, v(vSA))
        self.v_mov_b32(v(88), "0x3f80"); self.v_mov_b32(v(89), 0)
        self.ds_write_b64(v(4), v(88, 2))
        self.v_bfe_u32(v(4), v(vLANE), 2, 2); self.v_lshrrev_b32(v(5), 5, v(vLANE)); self.v_lshl_add_u32(v(4), v(5), 2, v(4))
        self.v_bfe_u32(v(5), v(vLANE), 4, 1); self.v_lshlrev_b32(v(5), 2, v(5)); self.v_and_b32(v(vTR0), 3, v(vLANE)); self.v_add_u32(v(5), v(5), v(vTR0))
        self.v_lshrrev_b32(v(vTR0), 1, v(4)); self.v_xor_b32(v(5), v(5), v(vTR0)); self.v_lshlrev_b32(v(5), 3, v(5))
        self.v_lshl_add_u32(v(vTR0), v(4), 6, v(5)); self.v_add_u32(v(vTR0), s(sT), v(vTR0)); self.v_xor_b32(v(vTR1), 32, v(vTR0))
        for (k0, k1, vv, blk) in ((self.vKA, self.vK1A, self.vVA, 0), (self.vKB, self.vK1B, self.vVB, 1)):
            if blk == 0: self.s_mov_b32(s(sT + 1), s(sW))
            else: self.s_sub_u32(s(sT + 1), 7, s(sW))
            self.smul(sT + 2, sT + 1, 1536); self.s_add_u32(s(sT + 2), s(sT + 2), L_K)
            self.v_add_u32(v(k0), s(sT + 2), v(vL16)); self.s_add_u32(s(sT + 2), s(sT + 2), 1024); self.v_add_u32(v(k1), s(sT + 2), v(vL8))
            self.s_lshl_b32(s(sT + 2), s(sT + 1), 11); self.s_add_u32(s(sT + 2), s(sT + 2), L_V); self.v_add_u32(v(vv), s(sT + 2), v(vL16))
        self.s_mov_b32(s(sU + 14), f32(math.log2(math.e) / math.sqrt(20.0))); self.s_mov_b32(s(sU + 15), s(sU + 14))
    def epi_run(self):
        ACC = self.ACC
        sets = []
        for blk in range(2):
            A0 = ACC + 32 * blk; A1 = A0 + 16
            Q = self.QA if blk == 0 else self.QB
            PK = 96 + 24 * blk
            K0, K1, VV, VF = PK, PK + 4, PK + 6, PK + 12
            sets.append((K0, K1, VV, VF))
            self.pack(K1, A1 + 4, 2); self.pack(VV, A1 + 8, 4)
            self.ds_write_b64(v(self.vSC), v(K1, 2)); self.ds_write_b64(v(self.vSA), v(VV, 2)); self.ds_write_b64(v(self.vSB), v(VV + 2, 2))
            self.pack(K0, A0 + 8, 4)
            for m in range(4): self.ds_read_b64_tr_b16(v(VF + 2 * m, 2), v(self.vTR1 if m & 1 else self.vTR0), mods=f"offset:{512 * m}")
            k0, k1, vv = (self.vKA, self.vK1A, self.vVA) if blk == 0 else (self.vKB, self.vK1B, self.vVB)
            self.ds_write_b128(v(k0), v(K0, 4)); self.ds_write_b64(v(k1), v(K1, 2))
            self.global_store_dwordx4(v(k0), v(K0, 4), s(sHB, 2), mods="sc1")
            self.global_store_dwordx2(v(k1), v(K1, 2), s(sHB, 2), mods="sc1")
            for r in (0, 2, 4, 6): self.v_pk_mul_f32(v(A0 + r, 2), v(A0 + r, 2), s(sU + 14, 2))
            for r in (0, 2): self.v_pk_mul_f32(v(A1 + r, 2), v(A1 + r, 2), s(sU + 14, 2))
            self.pack(Q, A0, 4); self.pack(Q + 4, A1, 2)
            self.wait(lg=2)
            self.ds_write_b128(v(vv), v(VF, 4)); self.ds_write_b128(v(vv), v(VF + 4, 4), mods="offset:1024")
            self.global_store_dwordx4(v(vv), v(VF, 4), s(sHB, 2), mods="sc1")
            self.global_store_dwordx4(v(vv), v(VF + 4, 4), s(sHB, 2), mods="offset:1024 sc1")
        self.wait(lg=0); self.s_barrier()

    def mask_gen(self, far):
        self.v_and_b32(v(4), 31, v(vLANE)); self.v_lshrrev_b32(v(5), 5, v(vLANE)); self.v_lshlrev_b32(v(5), 2, v(5))
        self.v_sub_u32(v(4), v(4), v(5))
        self.v_mov_b32(v(5), f32(-1e30))
        for r in range(16):
            kk = 8 * (r >> 2) + (r & 3)
            self.v_cmp_le_i32(s(sU + 2 * (r & 3), 2), kk, v(4))
            if r >= 1:
                q = r - 1
                self._msel(q, far)
        self._msel(15, far)
    def _msel(self, r, far):
        if far: self.v_cndmask_b32(v(self.MSK + r), 0, v(5), s(sU + 2 * (r & 3), 2))
        else: self.v_cndmask_b32(v(self.MSK + r), v(5), 0, s(sU + 2 * (r & 3), 2))

    def halo_publish(self):
        lab = self.newlabel("hp"); l0, l1 = self.newlabel("hw"), self.newlabel("hw")
        self.s_cmp_lg_u32(s(sL), 0); self.s_cbranch_scc1(l0)
        self.wait(vm=self.N_C1); self.s_branch(l1)
        self.label(l0); self.wait(vm=0); self.label(l1)
        self.setexec(1)
        self.v_mov_b32(v(4), L_CNT); self.v_mov_b32(v(5), 1)
        self.ds_add_rtn_u32(v(5), v(4), v(5))
        self.wait(lg=0)
        self.v_readfirstlane_b32(s(sT), v(5))
        self.s_and_b32(s(sT), s(sT), 3); self.s_cmp_lg_u32(s(sT), 3); self.s_cbranch_scc1(lab)
        self.v_mov_b32(v(4), s(sHFO)); self.v_mov_b32(v(5), s(sHEXP))
        self.global_store_dword(v(4), v(5), s(sWS, 2), mods="sc1")
        self.label(lab)
        self.setexec(-1)

    CD, CE, CR, CDV = 96, 112, 120, 128
    C2D, C2E, C2R, C2DV = 164, 170, 224, 228
    CH_SZ = 24832
    def conv_srd(self):
        self.s_mov_b32(s(sSRD), s(sSK)); self.s_mov_b32(s(sSRD + 1), s(sSK + 1))
        self.s_mov_b32(s(sSRD + 2), 640 * 4096); self.s_mov_b32(s(sSRD + 3), "0x00020000")
    def conv1_issue(self):
        D, R = self.CD, self.CR
        self.smul(sT, sG, 80); self.s_lshl_b32(s(sT + 1), s(sS), 1); self.s_add_u32(s(sT + 1), s(sT + 1), s(sT))
        self.s_lshr_b32(s(sT + 2), s(sW), 1); self.s_add_u32(s(sT + 1), s(sT + 1), s(sT + 2))
        self.s_lshl_b32(s(sT + 3), s(sT + 1), 12)
        self.conv_srd()
        self.v_and_b32(v(4), 127, v(vTID)); self.v_lshlrev_b32(v(4), 4, v(4))
        for i in range(2):
            self.buffer_load_dwordx4(v(D + 8 * i, 4), v(4), s(sSRD, 4), s(sT + 3), mods=f"offen offset:{2048 * i}")
            self.buffer_load_dwordx2(v(D + 8 * i + 4, 2), v(4), s(sSRD, 4), s(sT + 3), mods=f"offen offset:{2048 * i + 16}")
        self.s_add_u32(s(sT + 4), s(sT + 3), hex(OFF_R)); self.v_add_u32(v(5), s(sT + 4), v(4))
        self.global_load_dwordx4(v(R, 4), v(5), s(sWS, 2), mods="sc1")
        self.global_load_dwordx4(v(R + 4, 4), v(5), s(sWS, 2), mods="offset:2048 sc1")
        self.s_lshr_b32(s(sT + 4), s(sT + 1), 1); self.s_lshl_b32(s(sT + 4), s(sT + 4), 2); self.v_mov_b32(v(5), s(sT + 4))
        self.global_load_dword(v(self.CDV), v(5), s(sSD, 2))
        self.v_min_u32(v(5), 199, v(vTID)); self.v_lshlrev_b32(v(5), 7, v(5)); self.smul(sT + 4, sS, 25600); self.v_add_u32(v(5), s(sT + 4), v(5))
        self.global_load_dword(v(231), v(5), s(sWO, 2))
    N_C1 = 8

    def pretouch_addr(self, va):
        self.v_min_u32(v(va), 159, v(vTID)); self.v_lshlrev_b32(v(va), 7, v(va))
        self.smul(sT, sG, ZG); self.smul(sT + 1, sS, 10240); self.s_add_u32(s(sT), s(sT), s(sT + 1)); self.s_add_u32(s(sT), s(sT), hex(OFF_O))
        self.v_add_u32(v(va), s(sT), v(va))
        self.v_add_u32(v(5), OFF_A - OFF_O - 80 * 128, v(va))
        self.v_cmp_gt_u32("vcc", 80, v(vTID)); self.v_cndmask_b32(v(va), v(5), v(va), "vcc")

    WOL = (0, 100)
    vWG = 14
    def wo_addr(self):
        self.s_and_b32(s(sT), s(sS), 7); self.smul(sT, sT, 160)
        self.v_min_u32(v(4), 49, v(vLANE))
        self.v_mul_u32_u24(v(5), 6554, v(4)); self.v_lshrrev_b32(v(5), 16, v(5))
        self.v_mul_u32_u24(v(self.vWG), 10, v(5)); self.v_sub_u32(v(4), v(4), v(self.vWG))
        self.smul(sT + 1, sW, 80); self.v_add_u32(v(5), s(sT + 1), v(5))
        self.v_mul_u32_u24(v(self.vWG), 1280, v(5)); self.v_lshl_add_u32(v(self.vWG), v(4), 4, v(self.vWG)); self.v_add_u32(v(self.vWG), s(sT), v(self.vWG))
    def wo_srd(self):
        self.s_mov_b32(s(sSRD), s(sWO)); self.s_mov_b32(s(sSRD + 1), s(sWO + 1))
        self.s_mov_b32(s(sSRD + 2), 640 * 640 * 2); self.s_mov_b32(s(sSRD + 3), "0x00020000")
    def wo_issue_one(self, n):
        hh, i = divmod(n, 16)
        self.s_mov_b32(s(sT + 7), hh * 320 * 1280 + i * 5 * 1280)
        self.buffer_load_dwordx4(a(self.WOL[hh] + 4 * i, 4), v(self.vWG), s(sSRD, 4), s(sT + 7), mods="offen")
    def wo_stage(self):
        self.v_min_u32(v(4), 49, v(vLANE))
        self.v_mul_u32_u24(v(8), 6554, v(4)); self.v_lshrrev_b32(v(8), 16, v(8))
        self.v_mul_u32_u24(v(9), 10, v(8)); self.v_sub_u32(v(9), v(4), v(9))
        self.smul(sT + 1, sW, 80); self.v_add_u32(v(8), s(sT + 1), v(8))
        self.v_mul_u32_u24(v(11), 160, v(8)); self.v_lshl_add_u32(v(11), v(9), 4, v(11)); self.v_add_u32(v(11), L_K, v(11))
        self.s_lshr_b32(s(sT), s(sW), 1)
        self.v_lshrrev_b32(v(12), 4, v(vLANE)); self.v_bfe_u32(v(13), v(vLANE), 2, 2)
        self.v_and_b32(v(16), 3, v(vLANE)); self.v_lshlrev_b32(v(16), 3, v(16)); self.v_add_u32(v(16), L_K, v(16))
        self.v_lshrrev_b32(v(17), 1, v(12)); self.v_mul_u32_u24(v(17), 20, v(17))
        self.v_and_b32(v(18), 1, v(12)); self.v_lshl_add_u32(v(17), v(18), 2, v(17)); self.v_add_u32(v(17), v(17), v(13))
        self.v_mul_u32_u24(v(17), 160, v(17)); self.v_add_u32(v(17), v(17), v(16))
        self.v_mul_u32_u24(v(18), 40, v(12)); self.v_add3_u32(v(18), v(18), v(13), 16)
        self.v_mul_u32_u24(v(18), 160, v(18)); self.v_add_u32(v(18), v(18), v(16))
        self.smul(sT + 1, sT, 32000); self.v_add_u32(v(17), s(sT + 1), v(17))
        self.s_cmp_eq_u32(s(sT), 0)
        self.s_mov_b32(s(sT + 4), 25600); self.s_mov_b32(s(sT + 5), 3200)
        self.s_cselect_b32(s(sT + 2), 6400, s(sT + 4)); self.s_cselect_b32(s(sT + 3), 1280, s(sT + 5))
        self.s_cselect_b64(s(sM0, 2), -1, 0)
        self.v_add_u32(v(19), 3 * 6400, v(17)); self.v_cndmask_b32(v(19), v(18), v(19), s(sM0, 2))
        self.v_add_u32(v(20), s(sT + 3), v(19)); self.v_add_u32(v(21), s(sT + 2), v(19)); self.v_add_u32(v(22), s(sT + 3), v(21))
        for hh in range(2):
            self.setexec((1 << 50) - 1)
            for i in range(16): self.ds_write_b128(v(11), a(self.WOL[hh] + 4 * i, 4), mods=f"offset:{800 * i}")
            self.setexec(-1)
            self.wait(lg=0); self.s_barrier()
            n = 0
            for jj in range(5):
                for ct in range(5):
                    d = ((5 * hh + jj) * 5 + ct) * 4
                    if n >= 12 and ct in (0, 2, 4): self.wait(lg=9)
                    if jj < 3:
                        self.ds_read_b64_tr_b16(a(d, 2), v(17), mods=f"offset:{6400 * jj + 32 * ct}")
                        self.ds_read_b64_tr_b16(a(d + 2, 2), v(17), mods=f"offset:{6400 * jj + 32 * ct + 1280}")
                    else:
                        self.ds_read_b64_tr_b16(a(d, 2), v(19 + 2 * (jj - 3)), mods=f"offset:{32 * ct}")
                        self.ds_read_b64_tr_b16(a(d + 2, 2), v(20 + 2 * (jj - 3)), mods=f"offset:{32 * ct}")
                    n += 2
            self.wait(lg=0)
            if hh == 1: self.wait(vm=0)
            self.s_barrier()

    def conv_head(self, sbase, sch, D, DV):
        self.v_readlane_b32(s(sT + 6), v(D), 0); self.v_readlane_b32(s(sT + 7), v(D + 1), 0)
        self.v_readfirstlane_b32(s(sT + 8), v(DV))
        self.s_and_b32(s(sT + 9), s(sch), 1); self.s_lshl_b32(s(sT + 9), s(sT + 9), 4)
        self.s_lshr_b32(s(sT + 8), s(sT + 8), s(sT + 9)); self.s_lshl_b32(s(sT + 8), s(sT + 8), 16)
        self.s_lshl_b32(s(sT + 9), s(sT + 6), 16)
        self.v_mov_b32(v(16), s(sT + 8)); self.v_add_f32(v(16), s(sT + 9), v(16))
        self.v_cvt_pk_bf16_f32(v(16), v(16), v(16)); self.v_and_b32(v(16), "0xffff", v(16))
        self.s_and_b32(s(sT + 6), s(sT + 6), "0xffff0000"); self.v_or_b32(v(16), s(sT + 6), v(16))
        self.v_mov_b32(v(17), s(sT + 7))
        self.v_lshrrev_b32(v(18), 2, v(vLANE)); self.v_sub_u32(v(19), 3, v(18)); self.v_lshlrev_b32(v(19), 4, v(19)); self.v_and_b32(v(19), 63, v(19))
        self.v_lshlrev_b64(v(26, 2), v(19), v(16, 2))
        self.v_and_b32(v(19), 3, v(vLANE)); self.v_cmp_eq_u32("vcc", 3, v(19))
        self.v_mov_b32(v(24), 0); self.v_mov_b32(v(25), 0)
        self.v_cndmask_b32(v(26), 0, v(26), "vcc"); self.v_cndmask_b32(v(27), 0, v(27), "vcc")
        self.v_mul_u32_u24(v(18), 4160, v(18)); self.v_lshl_add_u32(v(18), v(19), 4, v(18)); self.v_add_u32(v(18), s(sbase), v(18))
        self.setexec(0xffff); self.ds_write_b128(v(18), v(24, 4)); self.setexec(-1)
    def conv_copies(self, vaddr, d, e, off):
        AL = 132
        for j in range(4): self.v_alignbit_b32(v(AL + j), v(d + j + 1), v(d + j), 16)
        for j in range(3): self.v_mov_b32(v(AL + 4 + j), v(AL + 1 + j))
        self.v_alignbit_b32(v(AL + 7), v(d + 5), v(d + 4), 16)
        for j in range(4): self.v_mov_b32(v(e + j), v(d + 1 + j))
        self.ds_write_b128(v(vaddr), v(AL, 4), mods=f"offset:{off}")
        self.ds_write_b128(v(vaddr), v(e, 4), mods=f"offset:{off + 4160}")
        self.ds_write_b128(v(vaddr), v(AL + 4, 4), mods=f"offset:{off + 2 * 4160}")
        self.ds_write_b128(v(vaddr), v(d + 2, 4), mods=f"offset:{off + 3 * 4160}")
    def conv_addr(self, sbase, sstep0):
        self.v_and_b32(v(10), 3, v(vLANE)); self.v_mul_u32_u24(v(10), 4160, v(10))
        self.v_bfe_u32(v(11), v(vLANE), 2, 3); self.v_lshl_add_u32(v(10), v(11), 3, v(10))
        self.v_lshrrev_b32(v(11), 5, v(vLANE)); self.v_lshl_add_u32(v(10), v(11), 4, v(10))
        self.s_lshl_b32(s(sT + 6), s(sstep0), 5); self.s_add_u32(s(sT + 6), s(sT + 6), s(sbase)); self.v_add_u32(v(8), s(sT + 6), v(10))
        self.v_and_b32(v(10), 31, v(vLANE)); self.v_sub_u32(v(10), 31, v(10)); self.v_mul_u32_u24(v(10), 5, v(10))
        self.v_add_u32(v(10), v(10), v(11)); self.v_lshlrev_b32(v(10), 4, v(10))
        self.smul(sT + 6, sstep0, 40); self.s_add_u32(s(sT + 6), s(sT + 6), s(sbase)); self.s_add_u32(s(sT + 6), s(sT + 6), 16640)
        self.v_add_u32(v(9), s(sT + 6), v(10))

    def conv1_run(self):
        D, E, R = self.CD, self.CE, self.CR
        sB, sCHN, sHW = sU + 2, sU + 1, sU + 5
        self.s_lshr_b32(s(sU), s(sW), 1); self.smul(sB, sU, self.CH_SZ); self.s_add_u32(s(sB), s(sB), L_K)
        self.smul(sT, sG, 80); self.s_lshl_b32(s(sCHN), s(sS), 1); self.s_add_u32(s(sCHN), s(sCHN), s(sT)); self.s_add_u32(s(sCHN), s(sCHN), s(sU))
        self.s_and_b32(s(sHW), s(sW), 1)
        self.v_and_b32(v(8), 127, v(vTID)); self.v_lshlrev_b32(v(9), 4, v(8))
        self.v_add_u32(v(11), s(sB), v(9))
        self.ds_write_b128(v(11), v(vZERO, 4), mods=f"offset:{16640 + 320 * 16}")
        self.v_and_b32(v(16), 63, v(8)); self.v_lshlrev_b32(v(16), 4, v(16)); self.v_add_u32(v(16), s(sB), v(16))
        self.ds_write_b128(v(16), v(vZERO, 4), mods=f"offset:{16640 + 448 * 16}")
        self.v_add_u32(v(11), 64, v(11))
        self.v_lshrrev_b32(v(12), 2, v(8)); self.v_add_u32(v(12), v(12), v(8)); self.v_lshlrev_b32(v(12), 4, v(12)); self.v_add_u32(v(12), s(sB), v(12))
        self.wo_addr(); self.pretouch_addr(13)
        self.v_mov_b32(v(229), v(13))
        self.wait(vm=1)
        if self.o.get("fine"): self.stamp("c1ld")
        for i in range(2): self.conv_copies(11, D + 8 * i, E + 4 * i, 2048 * i)
        self.ds_write_b128(v(12), v(R, 4), mods="offset:16640"); self.ds_write_b128(v(12), v(R + 4, 4), mods=f"offset:{16640 + 160 * 16}")
        lab = self.newlabel("hd")
        self.s_cmp_lg_u32(s(sHW), 0); self.s_cbranch_scc1(lab)
        self.conv_head(sB, sCHN, D, self.CDV)
        self.label(lab)
        LO, HI, F = 16, 32, 96
        self.s_lshl_b32(s(sT + 5), s(sHW), 5)
        self.conv_addr(sB, sT + 5)
        self.wait(lg=0); self.s_barrier()
        if self.o.get("fine"): self.stamp("c1fill")
        self.zero16(LO); self.zero16(HI)
        def rd(m):
            f = F + 16 * (m & 3); oa = 32 * m; ob = 80 * (m >> 1) + 32 * (m & 1)
            return [lambda: self.ds_read_b64(v(f, 2), v(8), mods=f"offset:{oa}"), lambda: self.ds_read_b64(v(f + 2, 2), v(8), mods=f"offset:{oa + 8}"),
                    lambda: self.ds_read_b128(v(f + 8, 4), v(9), mods=f"offset:{ob + 2560}"), lambda: self.ds_read_b128(v(f + 12, 4), v(9), mods=f"offset:{ob}"),
                    lambda: self.ds_read_b64(v(f + 4, 2), v(8), mods=f"offset:{oa + 2048}"), lambda: self.ds_read_b64(v(f + 6, 2), v(8), mods=f"offset:{oa + 2056}")]
        self.conv2_issue()
        self.wo_srd()
        for m in (0, 1):
            for f_ in rd(m): f_()
        for m in range(32):
            f = F + 16 * (m & 3)
            nx = rd(m + 2) if m + 2 < 32 else [lambda: None] * 6
            self.wait(lg=6 if m < 31 else 0)
            self.v_mfma_f32_32x32x16_bf16(v(LO, 16), v(f, 4), v(f + 8, 4), v(LO, 16)); nx[0](); nx[1]()
            self.v_mfma_f32_32x32x16_bf16(v(HI, 16), v(f, 4), v(f + 12, 4), v(HI, 16)); nx[2](); nx[3]()
            self.v_mfma_f32_32x32x16_bf16(v(HI, 16), v(f + 4, 4), v(f + 8, 4), v(HI, 16)); nx[4](); nx[5]()
            self.wo_issue_one(m)
        self.global_load_dword(v(230), v(229), s(sWS, 2))
        if self.o.get("fine"): self.stamp("c1main")
        XB = L_HK
        self.s_lshl_b32(s(sT + 6), s(sW), 12); self.s_add_u32(s(sT + 6), s(sT + 6), XB); self.v_add_u32(v(10), s(sT + 6), v(vL16))
        self.s_xor_b32(s(sT + 7), s(sW), 1); self.s_lshl_b32(s(sT + 7), s(sT + 7), 12); self.s_add_u32(s(sT + 7), s(sT + 7), XB)
        self.v_add_u32(v(11), s(sT + 7), v(vL16))
        self.s_lshl_b32(s(sT + 6), s(sW), 11); self.s_add_u32(s(sT + 6), s(sT + 6), XB + 16384)
        self.v_and_b32(v(12), 31, v(vLANE)); self.v_lshlrev_b32(v(12), 6, v(12))
        self.v_lshrrev_b32(v(13), 5, v(vLANE)); self.v_lshl_add_u32(v(12), v(13), 3, v(12)); self.v_add_u32(v(12), s(sT + 6), v(12))
        self.v_add_u32(v(13), s(sT + 6), v(vL16))
        self.s_lshl_b32(s(sT + 6), s(sHW), 11); self.s_lshl_b32(s(sT + 7), s(sCHN), 12); self.s_add_u32(s(sT + 6), s(sT + 6), s(sT + 7))
        self.s_add_u32(s(sT + 6), s(sT + 6), hex(OFF_Y))
        l1, l2 = self.newlabel("cx"), self.newlabel("cy")
        self.s_cmp_lg_u32(s(sHW), 0); self.s_cbranch_scc1(l1)
        for role, (keep, send) in enumerate(((LO, HI), (HI, LO))):
            if role: self.label(l1)
            for q in range(4): self.ds_write_b128(v(10), v(send + 4 * q, 4), mods=f"offset:{1024 * q}")
            self.wait(lg=0); self.s_barrier()
            for q in range(4): self.ds_read_b128(v(F + 4 * q, 4), v(11), mods=f"offset:{1024 * q}")
            for q in range(4):
                self.wait(lg=3 - q)
                for r in (0, 2): self.v_pk_add_f32(v(keep + 4 * q + r, 2), v(keep + 4 * q + r, 2), v(F + 4 * q + r, 2))
                self.pack(F + 16 + 2 * q, keep + 4 * q, 2)
                if q == 2: pass
            for q in range(4): self.ds_write_b64(v(12), v(F + 16 + 2 * q, 2), mods=f"offset:{16 * q}")
            if role == 0: self.s_branch(l2)
        self.label(l2)
        self.v_add_u32(v(10), s(sT + 6), v(vL16))
        self.ds_read_b128(v(LO, 4), v(13)); self.ds_read_b128(v(LO + 4, 4), v(13), mods="offset:1024")
        self.wait(lg=0)
        self.global_store_dwordx4(v(10), v(LO, 4), s(sWS, 2), mods="sc1")
        self.global_store_dwordx4(v(10), v(LO + 4, 4), s(sWS, 2), mods="offset:1024 sc1")

    def conv2_issue(self):
        D, E, R = self.C2D, self.C2E, self.C2R
        self.smul(sT, sG, 80); self.s_lshr_b32(s(sT + 1), s(sS), 1); self.s_add_u32(s(sT + 1), s(sT + 1), s(sT)); self.s_add_u32(s(sT + 1), s(sT + 1), 64)
        self.s_lshl_b32(s(sT + 3), s(sT + 1), 12)
        self.conv_srd()
        self.v_lshlrev_b32(v(4), 4, v(vTID))
        self.buffer_load_dwordx4(v(D, 4), v(4), s(sSRD, 4), s(sT + 3), mods="offen")
        self.buffer_load_dwordx2(v(D + 4, 2), v(4), s(sSRD, 4), s(sT + 3), mods="offen offset:16")
        self.s_add_u32(s(sT + 4), s(sT + 3), hex(OFF_R)); self.v_add_u32(v(5), s(sT + 4), v(4))
        self.global_load_dwordx4(v(R, 4), v(5), s(sWS, 2), mods="sc1")
        self.s_lshr_b32(s(sT + 4), s(sT + 1), 1); self.s_lshl_b32(s(sT + 4), s(sT + 4), 2); self.v_mov_b32(v(5), s(sT + 4))
        self.global_load_dword(v(self.C2DV), v(5), s(sSD, 2))
    def conv2_run(self):
        D, E, R = self.C2D, self.C2E, self.C2R
        sB, sCHN, sPART = sU + 2, sU + 1, sU + 5
        self.s_mov_b32(s(sB), L_K)
        self.smul(sT, sG, 80); self.s_lshr_b32(s(sCHN), s(sS), 1); self.s_add_u32(s(sCHN), s(sCHN), s(sT)); self.s_add_u32(s(sCHN), s(sCHN), 64)
        self.s_and_b32(s(sPART), s(sS), 1)
        self.v_lshlrev_b32(v(9), 4, v(vTID)); self.v_add_u32(v(11), L_K, v(9))
        self.v_min_u32(v(16), 191, v(vTID)); self.v_lshlrev_b32(v(16), 4, v(16)); self.v_add_u32(v(16), L_K, v(16))
        self.ds_write_b128(v(16), v(vZERO, 4), mods=f"offset:{16640 + 320 * 16}")
        self.v_add_u32(v(11), 64, v(11))
        self.v_lshrrev_b32(v(12), 2, v(vTID)); self.v_add_u32(v(12), v(12), v(vTID)); self.v_lshlrev_b32(v(12), 4, v(12)); self.v_add_u32(v(12), L_K, v(12))
        self.wait(vm=35)
        self.conv_copies(11, D, E, 0)
        self.ds_write_b128(v(12), v(R, 4), mods="offset:16640")
        lab = self.newlabel("hd")
        self.s_cmp_lg_u32(s(sW), 0); self.s_cbranch_scc1(lab)
        self.conv_head(sB, sCHN, D, self.C2DV)
        self.label(lab)
        AC, F = 16, 96
        self.s_lshl_b32(s(sT + 5), s(sW), 4)
        self.conv_addr(sB, sT + 5)
        self.wait(lg=0); self.s_barrier()
        self.zero16(AC)
        def reads(st, par, extra, hi):
            f = F + 16 * st
            oa, ob = 32 * par + extra * 64, 32 * par + extra * 80
            self.ds_read_b64(v(f, 2), v(8), mods=f"offset:{oa}"); self.ds_read_b64(v(f + 2, 2), v(8), mods=f"offset:{oa + 8}")
            self.ds_read_b128(v(f + 8, 4), v(9), mods=f"offset:{ob + 2560}")
            if hi:
                self.ds_read_b128(v(f + 12, 4), v(9), mods=f"offset:{ob}")
                self.ds_read_b64(v(f + 4, 2), v(8), mods=f"offset:{oa + 2048}"); self.ds_read_b64(v(f + 6, 2), v(8), mods=f"offset:{oa + 2056}")
        def mm(st, hi):
            f = F + 16 * st
            if hi:
                self.v_mfma_f32_32x32x16_bf16(v(AC, 16), v(f, 4), v(f + 12, 4), v(AC, 16))
                self.v_mfma_f32_32x32x16_bf16(v(AC, 16), v(f + 4, 4), v(f + 8, 4), v(AC, 16))
            else:
                self.v_mfma_f32_32x32x16_bf16(v(AC, 16), v(f, 4), v(f + 8, 4), v(AC, 16))
        lhi, ldone = self.newlabel("c2hi"), self.newlabel("c2d")
        self.s_mov_b32(s(sT + 6), 8)
        self.s_cmp_lg_u32(s(sPART), 0); self.s_cbranch_scc1(lhi)
        for hi in (0, 1):
            if hi: self.label(lhi)
            n = 6 if hi else 3
            reads(0, 0, 0, hi)
            lp = self.newlabel("cv")
            self.label(lp)
            reads(1, 1, 0, hi); self.wait(lg=n); mm(0, hi)
            reads(0, 0, 1, hi); self.wait(lg=n); mm(1, hi)
            self.v_add_u32(v(8), 64, v(8)); self.v_add_u32(v(9), 80, v(9))
            self.s_sub_u32(s(sT + 6), s(sT + 6), 1); self.s_cmp_lg_u32(s(sT + 6), 0); self.s_cbranch_scc1(lp)
            if not hi: self.s_branch(ldone)
        self.label(ldone)
        XB = L_HK
        self.s_lshl_b32(s(sT + 6), s(sW), 12); self.s_add_u32(s(sT + 6), s(sT + 6), XB); self.v_add_u32(v(10), s(sT + 6), v(vL16))
        self.s_lshl_b32(s(sT + 6), s(sW), 10); self.s_add_u32(s(sT + 6), s(sT + 6), XB); self.v_add_u32(v(11), s(sT + 6), v(vL16))
        self.v_and_b32(v(12), 31, v(vLANE)); self.v_lshlrev_b32(v(12), 6, v(12))
        self.v_lshrrev_b32(v(13), 5, v(vLANE)); self.v_lshl_add_u32(v(12), v(13), 3, v(12))
        self.s_lshl_b32(s(sT + 6), s(sW), 4); self.s_add_u32(s(sT + 6), s(sT + 6), XB + 16384); self.v_add_u32(v(12), s(sT + 6), v(12))
        for j in range(4): self.ds_write_b128(v(10), v(AC + 4 * j, 4), mods=f"offset:{1024 * j}")
        self.v_lshlrev_b32(v(13), 4, v(vTID)); self.v_add_u32(v(10), XB + 16384, v(13))
        self.s_lshl_b32(s(sT + 6), s(sPART), 11); self.s_lshl_b32(s(sT + 7), s(sCHN), 12); self.s_add_u32(s(sT + 6), s(sT + 6), s(sT + 7))
        self.s_add_u32(s(sT + 6), s(sT + 6), hex(OFF_Y)); self.v_add_u32(v(13), s(sT + 6), v(13))
        self.wait(lg=0); self.s_barrier()
        for j in range(4): self.ds_read_b128(v(F + 4 * j, 4), v(11), mods=f"offset:{4096 * j}")
        self.wait(lg=0)
        for r in (0, 2):
            self.v_pk_add_f32(v(F + r, 2), v(F + r, 2), v(F + 4 + r, 2)); self.v_pk_add_f32(v(F + 8 + r, 2), v(F + 8 + r, 2), v(F + 12 + r, 2))
        for r in (0, 2): self.v_pk_add_f32(v(F + r, 2), v(F + r, 2), v(F + 8 + r, 2))
        self.pack(F + 16, F, 2)
        self.ds_write_b64(v(12), v(F + 16, 2))
        self.wait(lg=0); self.s_barrier()
        lab = self.newlabel("c2s")
        self.s_cmp_ge_u32(s(sW), 2); self.s_cbranch_scc1(lab)
        self.ds_read_b128(v(16, 4), v(10))
        self.wait(lg=0)
        self.global_store_dwordx4(v(13), v(16, 4), s(sWS, 2), mods="sc1")
        self.label(lab)

    def attn_local(self):
        sKb, sVb, sN, sMI = sU + 6, sU + 7, sU + 8, sU + 9
        self.s_mov_b32(s(sKb), L_K); self.s_mov_b32(s(sVb), L_V)
        self.s_sub_u32(s(sN), 8, s(sW)); self.s_sub_u32(s(sMI), 7, s(sW))
        self.attn_seq(self.QB, self.OB, sKb, sVb, sN, sMI)
        self.halo_publish()
        self.s_add_u32(s(sN), s(sW), 1); self.s_mov_b32(s(sMI), s(sW))
        self.attn_seq(self.QA, self.OA, sKb, sVb, sN, sMI)

    def halo_prep(self):
        self.mask_gen(True)
        self.smul(sT, sW, 7168); self.v_add_u32(v(8), s(sT), v(vL16)); self.v_add_u32(v(10), 4096, v(8)); self.v_add_u32(v(9), L_HK, v(8))
        self.v_mov_b32(v(11), s(sHFI))
    def halo_fetch(self):
        self.s_mov_b64(s(sT + 2, 2), -1)
        self.poll2(sWS, 11, sHEXP, sT + 2)
        R = 96
        for j in range(7):
            self.global_load_dwordx4(v(R + 4 * j, 4), v(8 if j < 4 else 10), s(sHP, 2), mods=f"offset:{(j % 4) * 1024} sc1")
        for j in range(7):
            self.wait(vm=6 - j)
            self.ds_write_b128(v(9), v(R + 4 * j, 4), mods=f"offset:{j * 1024}")
        self.wait(lg=0); self.s_barrier()

    def attn_halo(self):
        sKb, sVb, sN, sMI = sU + 6, sU + 7, sU + 8, sU + 9
        self.s_mov_b32(s(sMI), 0)
        self.smul(sKb, sW, 1536); self.s_add_u32(s(sKb), s(sKb), L_HK)
        self.s_lshl_b32(s(sVb), s(sW), 11); self.s_add_u32(s(sVb), s(sVb), L_HV)
        self.s_sub_u32(s(sN), 8, s(sW))
        self.attn_seq(self.QA, self.OA, sKb, sVb, sN, sMI)
        self.s_sub_u32(s(sT), 7, s(sW))
        self.smul(sKb, sT, 1536); self.s_add_u32(s(sKb), s(sKb), L_HK)
        self.s_lshl_b32(s(sVb), s(sT), 11); self.s_add_u32(s(sVb), s(sVb), L_HV)
        self.s_add_u32(s(sN), s(sW), 1)
        self.attn_seq(self.QB, self.OB, sKb, sVb, sN, sMI)

    def range_check(self):
        self.s_mov_b32(s(sT), f32(2.0 ** -64)); self.s_mov_b32(s(sT + 1), f32(2.0 ** 64))
        ret = []
        for blk, O in ((0, self.OA), (1, self.OB)):
            lf, lr = self.newlabel("fb"), self.newlabel("fbr")
            self.v_cmp_nle_f32("vcc", s(sT), v(O + 12))
            self.v_cmp_nge_f32(s(sM0, 2), s(sT + 1), v(O + 12))
            self.s_or_b64("vcc", "vcc", s(sM0, 2))
            self.s_cbranch_scc1(lf)
            self.label(lr)
            self.fallbacks.append((lf, lr, blk))
    def emit_fallbacks(self):
        FQ, FO, FM = 96, 104, 120
        S, P, K0, K1, V0, V1 = 16, 48, 56, 60, 62, 66
        sB, sPH, sN, sMI, sKb, sVb, sI, sPASS = sU + 8, sU + 9, sU + 10, sU + 11, sU + 12, sU + 13, sU + 14, sU + 15
        body = self.newlabel("fbody"); done = self.newlabel("fdone")
        for lf, lr, blk in self.fallbacks:
            Q = self.QA if blk == 0 else self.QB
            self.label(lf)
            for j in range(6): self.v_mov_b32(v(FQ + j), v(Q + j))
            if blk == 0: self.s_mov_b32(s(sB), s(sW))
            else: self.s_sub_u32(s(sB), 7, s(sW))
            self.s_mov_b32(s(sT + 8), blk)
            self.s_branch(body)
        self.label(body)
        self.v_add_u32(v(8), L_K, v(vL16))
        self.s_mov_b32(s(sI), 28)
        lp = self.newlabel("frl")
        self.label(lp)
        self.global_load_dwordx4(v(136, 4), v(8), s(sHB, 2), mods="sc1")
        self.wait(vm=0)
        self.ds_write_b128(v(8), v(136, 4))
        self.v_add_u32(v(8), 1024, v(8))
        self.s_sub_u32(s(sI), s(sI), 1); self.s_cmp_lg_u32(s(sI), 0); self.s_cbranch_scc1(lp)
        self.wait(lg=0)
        for r in range(16): self.v_mov_b32(v(FM + r), f32(-3.0e38))
        for r in range(16): self.v_mov_b32(v(FO + r), 0)
        self.s_mov_b32(s(sPASS), 0)
        lpass, lphase, litem, lnm, ljoin, lacc, lnext, lpe = [self.newlabel(x) for x in ("fp", "fph", "fi", "fn", "fj", "fa", "fx", "fe")]
        self.label(lpass)
        self.s_mov_b32(s(sPH), 0)
        self.label(lphase)
        l1, l2 = self.newlabel("f"), self.newlabel("f")
        self.s_cmp_lg_u32(s(sPH), 0); self.s_cbranch_scc1(l1)
        self.mask_gen(False)
        self.s_mov_b32(s(sKb), L_K); self.s_mov_b32(s(sVb), L_V); self.s_add_u32(s(sN), s(sB), 1); self.s_mov_b32(s(sMI), s(sB))
        self.s_branch(l2)
        self.label(l1)
        self.mask_gen(True)
        self.smul(sKb, sB, 1536); self.s_add_u32(s(sKb), s(sKb), L_HK); self.s_lshl_b32(s(sVb), s(sB), 11); self.s_add_u32(s(sVb), s(sVb), L_HV)
        self.s_sub_u32(s(sN), 8, s(sB)); self.s_mov_b32(s(sMI), 0)
        self.label(l2)
        self.v_add_u32(v(8), s(sKb), v(vL16)); self.v_add_u32(v(9), s(sKb), v(vL8)); self.v_add_u32(v(10), s(sVb), v(vL16))
        self.s_mov_b32(s(sI), 0)
        self.label(litem)
        self.ds_read_b128(v(K0, 4), v(8)); self.ds_read_b64(v(K1, 2), v(9), mods="offset:1024")
        self.ds_read_b128(v(V0, 4), v(10)); self.ds_read_b128(v(V1, 4), v(10), mods="offset:1024")
        self.wait(lg=0)
        self.s_cmp_eq_u32(s(sI), s(sMI)); self.s_cbranch_scc0(lnm)
        self.v_mfma_f32_32x32x16_bf16(v(S, 16), v(K0, 4), v(FQ, 4), v(self.MSK, 16))
        self.s_branch(ljoin)
        self.label(lnm)
        self.v_mfma_f32_32x32x16_bf16(v(S, 16), v(K0, 4), v(FQ, 4), 0)
        self.label(ljoin)
        self.v_mfma_f32_32x32x8_bf16(v(S, 16), v(K1, 2), v(FQ + 4, 2), v(S, 16))
        self.s_cmp_lg_u32(s(sPASS), 0); self.s_cbranch_scc1(lacc)
        for r in range(16): self.v_max_f32(v(FM + r), v(FM + r), v(S + r))
        self.s_branch(lnext)
        self.label(lacc)
        for r in range(16):
            self.v_sub_f32(v(S + r), v(S + r), v(FM)); self.v_exp_f32(v(S + r), v(S + r))
        self.pack(P, S, 8)
        self.v_mfma_f32_32x32x16_bf16(v(FO, 16), v(V0, 4), v(P, 4), v(FO, 16))
        self.v_mfma_f32_32x32x16_bf16(v(FO, 16), v(V1, 4), v(P + 4, 4), v(FO, 16))
        self.label(lnext)
        self.v_add_u32(v(8), 1536, v(8)); self.v_add_u32(v(9), 1536, v(9)); self.v_add_u32(v(10), 2048, v(10))
        self.s_add_u32(s(sI), s(sI), 1); self.s_cmp_lt_u32(s(sI), s(sN)); self.s_cbranch_scc1(litem)
        self.s_cmp_eq_u32(s(sG), 0); self.s_cbranch_scc1(lpe)
        self.s_add_u32(s(sPH), s(sPH), 1); self.s_cmp_lt_u32(s(sPH), 2); self.s_cbranch_scc1(lphase)
        self.label(lpe)
        self.s_cmp_lg_u32(s(sPASS), 0); self.s_cbranch_scc1(done)
        for r in range(1, 16): self.v_max_f32(v(FM), v(FM), v(FM + r))
        self.v_mov_b32(v(FM + 1), v(FM)); self.v_permlane32_swap_b32(v(FM), v(FM + 1)); self.v_max_f32(v(FM), v(FM), v(FM + 1))
        self.s_mov_b32(s(sPASS), 1)
        self.s_branch(lpass)
        self.label(done)
        la, lb = self.newlabel("fo"), self.newlabel("fo")
        self.s_cmp_lg_u32(s(sT + 8), 0); self.s_cbranch_scc1(la)
        for r in range(16): self.v_mov_b32(v(self.OA + r), v(FO + r))
        self.s_branch(self.fallbacks[0][1])
        self.label(la)
        for r in range(16): self.v_mov_b32(v(self.OB + r), v(FO + r))
        self.s_branch(self.fallbacks[1][1])

    vOA = 160
    def o_prep(self):
        self.s_lshr_b32(s(sT), s(sS), 4); self.s_and_b32(s(sT + 1), s(sS), 15)
        self.s_lshr_b32(s(sT + 2), s(sT + 1), 1)
        self.s_cmp_ge_u32(s(sT + 2), 5); self.s_cselect_b32(s(sT + 5), 1, 0); self.s_add_u32(s(sT + 5), s(sT + 5), s(sT)); self.smul(sT + 5, sT + 5, 5)
        self.s_add_u32(s(sT + 2), s(sT + 2), s(sT + 5)); self.s_lshl_b32(s(sT + 2), s(sT + 2), 10)
        self.s_and_b32(s(sT + 3), s(sT + 1), 1); self.s_lshl_b32(s(sT + 4), s(sT + 3), 9); self.s_add_u32(s(sT + 2), s(sT + 2), s(sT + 4))
        self.smul(sT, sT, 5); self.s_lshr_b32(s(sT + 4), s(sT + 1), 3); self.s_add_u32(s(sT + 4), s(sT + 4), s(sT)); self.s_add_u32(s(sT + 4), s(sT + 4), 13)
        self.s_lshl_b32(s(sT + 4), s(sT + 4), 10)
        self.s_bfe_u32(s(sT + 5), s(sT + 1), (2 << 16) | 1); self.s_lshl_b32(s(sT + 5), s(sT + 5), 8); self.s_add_u32(s(sT + 4), s(sT + 4), s(sT + 5))
        self.s_lshl_b32(s(sT + 3), s(sT + 3), 3); self.s_add_u32(s(sT + 4), s(sT + 4), s(sT + 3))
        self.v_bfe_u32(v(4), v(vLANE), 4, 1); self.v_mul_u32_u24(v(4), 20480, v(4))
        self.v_and_b32(v(5), 15, v(vLANE)); self.v_lshl_add_u32(v(4), v(5), 4, v(4))
        self.v_lshrrev_b32(v(5), 5, v(vLANE)); self.v_lshl_add_u32(v(5), v(5), 8, v(4))
        for blk in range(2):
            if blk == 0: self.s_mov_b32(s(sT + 6), s(sW))
            else: self.s_sub_u32(s(sT + 6), 7, s(sW))
            self.smul(sT + 6, sT + 6, 40960)
            self.s_add_u32(s(sT + 7), s(sT + 6), s(sT + 2)); self.s_add_u32(s(sT + 6), s(sT + 6), s(sT + 4))
            self.v_add_u32(v(self.vOA + 2 * blk), s(sT + 7), v(5)); self.v_add_u32(v(self.vOA + 2 * blk + 1), s(sT + 6), v(4))
    def o_store(self):
        lst = []
        self.v_rcp_f32(v(8), v(self.OA + 12)); self.v_rcp_f32(v(10), v(self.OB + 12))
        self.v_mov_b32(v(9), v(8)); self.v_mov_b32(v(11), v(10))
        for blk, O in ((0, self.OA), (1, self.OB)):
            for r in range(0, 12, 2): self.v_pk_mul_f32(v(O + r, 2), v(O + r, 2), v(8 + 2 * blk, 2))
            P = 48 + 8 * blk
            self.pack(P, O, 6)
            va = self.vOA + 2 * blk
            lst += [self.store(16, v(va), v(P, 4), s(sOB, 2)), ("exec", 0xffffffff), self.store(8, v(va + 1), v(P + 4, 2), s(sOB, 2)), ("exec", -1)]
        self.stores(lst)

    def prestore(self):
        lst = []
        for blk in range(2):
            va = self.vOA + 2 * blk
            lst += [self.store(16, v(va), v(vZERO, 4), s(sOB, 2)), ("exec", 0xffffffff), self.store(8, v(va + 1), v(vZERO, 2), s(sOB, 2)), ("exec", -1)]
        self.op_prep()
        lst += [self.store(16, v(12), v(vZERO, 4), s(sAB, 2)), self.store(16, v(12), v(vZERO, 4), s(sAB, 2), 512),
                ("exec", 0x0000ffff0000ffff), self.store(16, v(12), v(vZERO, 4), s(sAB, 2), 1024), ("exec", -1)]
        self.stores(lst)

    def op_prep(self):
        self.s_lshr_b32(s(sU), s(sS), 3); self.s_lshl_b32(s(sU), s(sU), 2)
        self.s_and_b32(s(sU + 1), s(sW), 1); self.s_lshl_b32(s(sU + 1), s(sU + 1), 1); self.s_add_u32(s(sU), s(sU), s(sU + 1))
        self.s_lshr_b32(s(sU + 1), s(sW), 1)
        self.s_add_u32(s(sU + 2), s(sU), s(sU + 1)); self.s_xor_b32(s(sU + 3), s(sU + 2), 1)
        self.smul(sU + 4, sU + 1, 10240)
        for j, sr in ((0, sU + 2), (1, sU + 3)):
            self.smul(sU + 5, sr, 20480); self.s_add_u32(s(sU + 5), s(sU + 5), s(sU + 4))
            self.v_add_u32(v(8 + j), s(sU + 5), v(vL16))
        self.smul(sU + 5, sW, 5120); self.s_add_u32(s(sU + 5), s(sU + 5), L_K); self.v_add_u32(v(10), s(sU + 5), v(vL16))
        self.s_xor_b32(s(sU + 5), s(sW), 2); self.smul(sU + 5, sU + 5, 5120); self.s_add_u32(s(sU + 5), s(sU + 5), L_K)
        self.v_add_u32(v(11), s(sU + 5), v(vL16))
        self.s_lshl_b32(s(sU + 5), s(sU + 2), 1); self.smul(sU + 5, sU + 5, 10240)
        self.s_and_b32(s(sU + 6), s(sS), 7); self.smul(sU + 6, sU + 6, 1280); self.s_add_u32(s(sU + 5), s(sU + 5), s(sU + 6))
        self.v_bfe_u32(v(12), v(vLANE), 3, 1); self.v_mul_u32_u24(v(12), 10240, v(12))
        self.v_and_b32(v(13), 7, v(vLANE)); self.v_lshl_add_u32(v(12), v(13), 4, v(12))
        self.v_bfe_u32(v(13), v(vLANE), 4, 1); self.v_lshl_add_u32(v(12), v(13), 8, v(12))
        self.v_lshrrev_b32(v(13), 5, v(vLANE)); self.v_lshl_add_u32(v(12), v(13), 7, v(12))
        self.v_add_u32(v(12), s(sU + 5), v(12))
        self.v_mov_b32(v(66), 0); self.v_mov_b32(v(67), 0)
        for j in range(2): self.v_add_u32(v(68 + j), 4096, v(8 + j)); self.v_add_u32(v(70 + j), 8192, v(8 + j))
    def op_run(self):
        OF, AC, P = 96, 16, 56
        LA = 4
        def ld(kl, j):
            va = (8, 68, 70)[kl // 4] + j
            self.global_load_dwordx4(v(OF + 8 * kl + 4 * j, 4), v(va), s(sOB, 2), mods=f"offset:{(kl % 4) * 1024} sc1")
        for kl in range(LA): ld(kl, 1); ld(kl, 0)
        for kl in range(10):
            issued = 2 * min(10, kl + LA)
            for j in (1, 0):
                self.wait(vm=issued - 2 * kl - (1 if j == 1 else 2))
                for ct in range(5):
                    d = AC + 20 * j + 4 * ct
                    self.v_mfma_f32_16x16x32_bf16(v(d, 4), a((kl * 5 + ct) * 4, 4), v(OF + 8 * kl + 4 * j, 4), v(d, 4) if kl else 0)
                    if ct == 1 and kl + LA < 10:
                        ld(kl + LA, j); issued += 1
        if self.o.get("fine2"): self.stamp("op_mm")
        for ct in range(5): self.ds_write_b128(v(10), v(AC + 20 + 4 * ct, 4), mods=f"offset:{1024 * ct}")
        self.wait(lg=0); self.s_barrier()
        if self.o.get("fine2"): self.stamp("op_x")
        for ct in range(5): self.ds_read_b128(v(OF + 4 * ct, 4), v(11), mods=f"offset:{1024 * ct}")
        for ct in range(5):
            self.wait(lg=4 - ct)
            for r in (0, 2): self.v_pk_add_f32(v(AC + 4 * ct + r, 2), v(AC + 4 * ct + r, 2), v(OF + 4 * ct + r, 2))
            self.pack(P + 2 * ct, AC + 4 * ct, 2)
        for q in range(3):
            self.v_permlane16_swap_b32(v(P + 4 * q), v(P + 4 * q + 2)); self.v_permlane16_swap_b32(v(P + 4 * q + 1), v(P + 4 * q + 3))
        self.stores([self.store(16, v(12), v(P, 4), s(sAB, 2)), self.store(16, v(12), v(P + 4, 4), s(sAB, 2), 512),
                     ("exec", 0x0000ffff0000ffff), self.store(16, v(12), v(P + 8, 4), s(sAB, 2), 1024), ("exec", -1)])

    XF, AF, AP, UU, ST, YF = 16, 64, 96, 112, 40, 136
    def p4_prep(self):
        AP = self.AP
        self.smul(sU, sS, 10240); self.s_lshl_b32(s(sU + 1), s(sW), 5); self.s_add_u32(s(sU), s(sU), s(sU + 1))
        self.v_lshrrev_b32(v(8), 1, v(vLANE)); self.v_lshlrev_b32(v(8), 7, v(8))
        self.v_and_b32(v(9), 1, v(vLANE)); self.v_lshl_add_u32(v(8), v(9), 4, v(8)); self.v_add_u32(v(8), s(sU), v(8))
        self.v_add_u32(v(9), 4096, v(8)); self.v_add_u32(v(10), 8192, v(8))
        for j in range(8, 12): self.v_mov_b32(v(AP + j), 0)
        self.unpack(self.XF, vX, 12)
        self.unpack(self.YF, vY, 12)
    def p4_run(self):
        XF, AF, AP, UU, ST, YF = self.XF, self.AF, self.AP, self.UU, self.ST, self.YF
        self.global_load_dwordx4(v(AP, 4), v(8), s(sAB, 2), mods="sc1")
        self.global_load_dwordx4(v(AP + 4, 4), v(9), s(sAB, 2), mods="sc1")
        self.setexec(0xffffffff)
        self.global_load_dwordx4(v(AP + 8, 4), v(10), s(sAB, 2), mods="sc1")
        self.setexec(-1)
        for m in range(3):
            self.wait(vm=2 - m)
            self.unpack(AF + 8 * m, AP + 4 * m, 4)
            for j in range(4 * m, 4 * m + 4): self.v_pk_add_f32(v(XF + 2 * j, 2), v(XF + 2 * j, 2), v(AF + 2 * j, 2))
        if self.o.get("fine2"): self.stamp("p4_ld")
        self.ln_stats(XF, ST)
        for j in range(12): self.v_pk_fma_f32(v(UU + 2 * j, 2), v(XF + 2 * j, 2), v(ST, 2), v(ST + 2, 2))
        for j in range(12): self.v_pk_fma_f32(v(XF + 2 * j, 2), v(UU + 2 * j, 2), v(YF + 2 * j, 2), v(XF + 2 * j, 2))
    def p4_z(self):
        XF, ST = self.XF, self.ST
        self.ln_stats(XF, ST)
        for j in range(12): self.v_pk_fma_f32(v(self.UU + 2 * j, 2), v(XF + 2 * j, 2), v(ST, 2), v(ST + 2, 2))
        self.pack(56, self.UU, 12)

    def y_flag(self):
        lab = self.newlabel("ys")
        self.s_cmp_lg_u32(s(sW), 0); self.s_cbranch_scc1(lab)
        self.s_lshl_b32(s(sT), s(2), 7); self.s_add_u32(s(sT), s(sT), hex(OFF_YFL))
        self.s_add_u32(s(sT + 1), s(sTOK), 32)
        self.v_mov_b32(v(8), s(sT)); self.v_mov_b32(v(9), s(sT + 1))
        self.setexec(1); self.global_store_dword(v(8), v(9), s(sWS, 2), mods="sc1"); self.setexec(-1)
        self.label(lab)
    def y_wait2(self):
        self.v_lshlrev_b32(v(8), 7, v(vTID)); self.v_add_u32(v(8), OFF_YFL, v(8))
        self.s_add_u32(s(sT + 1), s(sTOK), 32); self.s_mov_b64(s(sT + 2, 2), -1)
        self.poll2(sWS, 8, sT + 1, sT + 2)
        self.s_barrier()
        lab = self.newlabel("nu")
        self.s_cmp_lg_u32(s(2), 0); self.s_cbranch_scc1(lab)
        self.s_cmp_lg_u32(s(sW), 0); self.s_cbranch_scc1(lab)
        self.v_mov_b32(v(8), OFF_N); self.v_mov_b32(v(9), s(sTOK))
        self.setexec(1); self.global_store_dword(v(8), v(9), s(sWS, 2), mods="sc1"); self.setexec(-1)
        self.label(lab)

    def finish(self):
        self.label("L_END")
        self.s_endpgm()
        self.emit_cold2()
        self.label("L_HOTEND")
        self.emit_cold()
        self.emit_fallbacks()
        self.s_endpgm()

    def build(self):
        self.fallbacks = []
        self.setup2()
        self.issue_x()
        if self.o.get("d2"): self.dstamp(1)
        self.code_prefetch()
        if self.o.get("d2"): self.dstamp(2)
        self.c0_issue()
        if self.o.get("d2"): self.dstamp(3)
        self.w_addr()
        self.w_issue(0, 16)
        if self.o.get("d2"):
            self.dstamp(4); self.s_load_dword(s(sTOK), s(sWS, 2), OFF_N)
        self.stamp("w1iss")
        for r in range(4): self.v_mov_b32(v(vZERO + r), 0)
        self.v_and_b32(v(vPL), 31, v(vLANE)); self.v_lshlrev_b32(v(vPL), 7, v(vPL))
        self.s_lshl_b32(s(sT), s(sS), 7); self.v_mov_b32(v(vSO), s(sT))
        self.v_mov_b32(v(4), L_CNT); self.ds_write_b32(v(4), v(vZERO))
        self.z_addr(8)
        self.wait(vm=17)
        if self.o.get("d2"): self.dstamp(5)
        self.p0_ln()
        self.wait(lg=0)
        self.s_add_u32(s(sTOK), s(sTOK), hex(NONCE_C))
        self.layer_bases2()
        self.stores_sc1(self.z_store_list(56, sZB, 8))
        self.stamp("z0st")
        if self.o.get("d2"): self.dstamp(6)
        self.wait(vm=16 + 3)
        self.c0_compute()
        lab = self.newlabel("xp")
        self.s_cmp_lg_u32(s(sW), 0); self.s_cbranch_scc1(lab)
        self.s_lshl_b32(s(sT), s(sG), 5); self.s_add_u32(s(sT), s(sT), s(sS)); self.s_lshl_b32(s(sT), s(sT), 7); self.s_add_u32(s(sT), s(sT), hex(OFF_XCC))
        self.s_add_u32(s(sT + 1), s(sTOK), s(sXCC)); self.s_add_u32(s(sT + 1), s(sT + 1), 64)
        self.v_mov_b32(v(4), s(sT)); self.v_mov_b32(v(5), s(sT + 1))
        self.setexec(1); self.global_store_dword(v(4), v(5), s(sWS, 2), mods="sc1"); self.setexec(-1)
        self.label(lab)
        self.stamp("c0")
        if self.o.get("d2"): self.dstamp(7)
        self.w_issue(16, 22)
        self.wait(vm=6); self.s_barrier()
        lab = self.newlabel("f0")
        self.s_cmp_lg_u32(s(sW), 0); self.s_cbranch_scc1(lab)
        self.v_mov_b32(v(4), s(sEXP)); self.s_add_u32(s(sT), s(sTOK), 7); self.v_mov_b32(v(5), s(sT))
        self.s_add_u32(s(sT), s(sFZ), 6 * 8 * 4096); self.s_addc_u32(s(sT + 1), s(sFZ + 1), 0)
        self.setexec(1)
        self.global_store_dword(v(vSO), v(4), s(sFZ, 2), mods="sc1"); self.global_store_dword(v(vSO), v(5), s(sT, 2), mods="sc1")
        self.setexec(-1)
        self.label(lab)
        self.stamp("flags"); self.dstamp(8 if self.o.get("d2") else 1)
        self.w_issue(22, 32)
        self.stamp("w2iss")
        self.w_lds(0, 16)
        self.w_zero()
        self.s_lshl_b32(s(sT + 4), s(sW), 2); self.lanemask(sM0, s(sT + 4), 4)
        self.s_sub_u32(s(sT + 4), 28, s(sT + 4)); self.lanemask(sMZ, s(sT + 4), 4); self.s_or_b64(s(sMZ, 2), s(sMZ, 2), s(sM0, 2))
        self.s_mov_b32(s(sMO), -1); self.s_mov_b32(s(sMO + 1), 0)
        self.s_lshr_b32(s(sT + 4), s(sS), 3); self.s_lshl_b32(s(sT + 4), s(sT + 4), 3); self.lanemask(sMA, s(sT + 4), 8)
        self.epi_prep()
        self.qkv_addr()
        self.stamp("prep")
        self.first_flags()
        self.qkv_zissue()
        self.w_lds(16, 32)
        self.mask_gen(False)
        self.wait(lg=0); self.s_barrier()
        self.stamp("wlds"); self.dstamp(9 if self.o.get("d2") else 2); self._d2ok = False
        self.qkv_init()
        self.s_branch("L_QKV")
        self.label("L_LAYER")
        self.layer_bases2()
        self.epi_prep(); self.mask_gen(False)
        self.qkv_addr(); self.qkv_init()
        self.poll2(sFZ, vPL, sEXP, sMZ)
        self.stamp("zwait")
        self.qkv_zissue()
        self.label("L_QKV")
        self.qkv_run()
        self.stamp("qkv"); self.dstamp(3, True)
        self.epi_run()
        self.stamp("epi")
        lab = self.newlabel("aux0")
        self.s_cmp_lg_u32(s(sL), 0); self.s_cbranch_scc1(lab)
        self.conv1_issue()
        self.label(lab)
        self.attn_local()
        self.stamp("local"); self.dstamp(4, True)
        self.o_prep()
        lab = self.newlabel("aux1")
        self.s_cmp_lg_u32(s(sL), 0); self.s_cbranch_scc1(lab)
        self.s_barrier()
        self.conv1_run()
        self.stamp("conv1")
        self.conv2_run()
        self.stamp("conv2")
        self.wait(vm=3)
        self.wo_stage()
        self.y_flag()
        self.stamp("wo"); self.dstamp(5)
        self.label(lab)
        nohalo = self.newlabel("nohalo")
        self.s_cmp_eq_u32(s(sG), 0); self.s_cbranch_scc1(nohalo)
        self.halo_prep()
        self.halo_fetch()
        self.stamp("halof")
        self.attn_halo()
        self.label(nohalo)
        self.stamp("halo"); self.dstamp(6, True)
        self.range_check()
        self.o_store()
        lab = self.newlabel("aux1b")
        self.s_add_u32(s(sT), s(sEXP), 1); self.v_mov_b32(v(5), s(sT))
        self.signal2(sFO, 5)
        self.stamp("osig")
        self.s_cmp_lg_u32(s(sL), 0); self.s_cbranch_scc1(lab)
        self.y_wait2()
        self.y_load()
        self.stamp("yld")
        self.label(lab)
        self.op_prep()
        self.s_add_u32(s(sT + 8), s(sEXP), 1)
        self.poll2(sFO, vPL, sT + 8, sMO)
        self.stamp("owait")
        self.op_run()
        if self.o.get("fine2"): self.stamp("op_st")
        self.s_add_u32(s(sT), s(sEXP), 2); self.v_mov_b32(v(5), s(sT))
        self.signal2(sFA, 5)
        self.stamp("asig"); self.dstamp(7, True)
        self.p4_prep()
        self.s_add_u32(s(sT + 8), s(sEXP), 2)
        self.poll2(sFA, vPL, sT + 8, sMA)
        self.stamp("await")
        self.p4_run()
        self.s_cmp_lg_u32(s(sL), 0); self.s_cbranch_scc1("L_FINAL")
        self.z_addr(8)
        self.p4_z()
        self.stores(self.z_store_list(56, sZN, 8))
        if self.o.get("fine2"): self.stamp("p4_st")
        self.pack(vX, self.XF, 12)
        self.s_add_u32(s(sT), s(sEXP), 3); self.v_mov_b32(v(5), s(sT))
        self.signal2(sFN, 5)
        self.stamp("p4")
        self.s_mov_b32(s(sL), 1)
        self.s_branch("L_LAYER")
        self.label("L_FINAL")
        self.pack(vX, self.XF, 12)
        self.out_store()
        if self.o.get("span"):
            self.wait(vm=0); self.stamps = True
        self.stamp("end")
        self.dflush()
        return self.finish()

if __name__ == "__main__":
    import argparse
    ap = argparse.ArgumentParser()
    ap.add_argument("-o", default="k2.s"); ap.add_argument("--stamps", action="store_true")
    ap.add_argument("--slow", action="store_true"); ap.add_argument("-v", action="store_true"); ap.add_argument("--opt", default="")
    a_ = ap.parse_args()
    k = K2(stamps=a_.stamps, opts=dict({"force_slow": a_.slow}, **{x.split("=")[0]: (int(x.split("=")[1]) if "=" in x else 1) for x in a_.opt.split(",") if x}))
    k.build()
    ins = k.fix_all(verbose=a_.v)
    open(a_.o, "w").write(render_file(k))
    n = sum(1 for it in k.items if isinstance(it, Ins))
    print("instructions:", n, "nops inserted:", len(ins), "stamps:", ",".join(k.stamp_names))
```

```python
import sys, math
from asm import *
import kern as B
from kern import (NAME, OFF_N, OFF_XCC, OFF_HFL, OFF_YFL, OFF_Z, OFF_HALO, OFF_O, OFF_A, OFF_R, OFF_Y, OFF_DBG, ZG, HALO_SZ,
                  NONCE_C, L_W, L_WT1, L_K, L_V, L_VS, L_SP, L_HK, L_HV, LDS_BYTES, f32,
                  sX, sWQ, sWO, sBK, sBV, sSH, sSK, sSD, sOUT, sDBG, sWS, sG, sS, sW, sTOK, sMODE, sL, sSRD, sM0, sM1, sT, sTO, sXCC, sU,
                  vTID, vLANE, vL16, vX, vY, render_file)

OFF_FL2 = 0x40000
L_CNT = 135104
sEXP, sHEXP = 34, 35
sFZ, sFO, sFA, sFN = 56, 58, 60, 62
sZB, sOB, sAB, sHB, sHP, sZN = 66, 68, 70, 72, 74, 76
sHFO, sHFI = 78, 79
sMZ, sMO, sMA = 4, 6, 10
vL8, vPL = 3, 15
vZERO = 92
vSO = 6

class K2(B.K):
    def stamp(self, name):
        if not self.stamps: return
        i = self.nstamp; self.nstamp += 1; self.stamp_names.append(name)
        lab = self.newlabel("st")
        self.s_cmp_lg_u32(s(sW), 0); self.s_cbranch_scc1(lab)
        (self.s_memtime if self.o.get("cyc") else self.s_memrealtime)(s(96, 2)); self.wait(lg=0)
        self.s_mov_b64(s(98, 2), "exec"); self.setexec(1)
        self.v_accvgpr_write_b32(a(250), s(96)); self.v_accvgpr_write_b32(a(251), s(97))
        self.s_lshl_b32(s(96), s(2), 9); self.s_add_u32(s(96), s(96), hex(OFF_DBG + 8 * i))
        self.s_lshl_b32(s(97), s(sL), 8); self.s_add_u32(s(96), s(96), s(97))
        self.v_mov_b32(v(7), s(96))
        self.global_store_dwordx2(v(7), a(250, 2), s(sWS, 2))
        self.s_mov_b64("exec", s(98, 2))
        self.label(lab)

    def dstamp(self, i, per_layer=False):
        if not self.o.get("dbgspan"): return
        if self.o.get("d2") and not getattr(self, "_d2ok", True): return
        self.s_memrealtime(s(96, 2)); self.wait(lg=0)
        if per_layer:
            l0, l1 = self.newlabel("dl"), self.newlabel("dl")
            self.s_cmp_lg_u32(s(sL), 0); self.s_cbranch_scc1(l0)
            self.v_accvgpr_write_b32(a(220 + i), s(96)); self.s_branch(l1)
            self.label(l0); self.v_accvgpr_write_b32(a(228 + i), s(96)); self.label(l1)
        else:
            self.v_accvgpr_write_b32(a(220 + i), s(96))
    def dflush(self):
        if not self.o.get("dbgspan"): return
        self.wait(vm=0)
        self._d2ok = True
        self.dstamp(15)
        lab = self.newlabel("ds")
        self.s_cmp_lg_u32(s(sW), 0); self.s_cbranch_scc1(lab)
        self.setexec(1)
        self.v_accvgpr_read_b32(v(8), a(220))
        for i in range(1, 16):
            self.v_accvgpr_read_b32(v(9), a(220 + i)); self.v_sub_u32(v(9), v(9), v(8)); self.v_mov_b32(v(7), 4 * i)
            self.global_atomic_umax(v(7), v(9), s(sDBG, 2))
        self.label(lab)

    def poll2(self, sbase, voff, s_exp, s_mask, vtmp=4):
        lp, dn = self.newlabel("poll"), self.newlabel("polld")
        self.label(lp)
        self.global_load_dword(v(vtmp), v(voff), s(sbase, 2), mods="sc1")
        self.s_cmp_eq_u32(s(sTO), 0); self.s_cbranch_scc1(dn)
        self.s_sub_u32(s(sTO), s(sTO), 1)
        self.wait(vm=0)
        self.v_cmp_ne_u32("vcc", s(s_exp), v(vtmp))
        self.s_and_b64("vcc", "vcc", s(s_mask, 2))
        self.s_cbranch_scc1(lp)
        self.label(dn)
    def flag_store(self, sbase, vval, force_sc1=False):
        lab = self.newlabel("sig")
        self.s_cmp_lg_u32(s(sW), 0); self.s_cbranch_scc1(lab)
        self.setexec(1)
        if force_sc1: self.global_store_dword(v(vSO), v(vval), s(sbase, 2), mods="sc1")
        else: self.stores([self.store(4, v(vSO), v(vval), s(sbase, 2))])
        self.setexec(-1)
        self.label(lab)
    def signal2(self, sbase, vval, force_sc1=False):
        self.wait(vm=0); self.s_barrier()
        self.flag_store(sbase, vval, force_sc1)
    def stores_sc1(self, lst):
        for it in lst:
            if it[0] == "exec": self.setexec(it[1])
            else: self.I(it[0], it[1], it[2], it[3], mods=(it[4] + " sc1").strip())
    def first_flags(self):
        self.s_lshl_b32(s(sT), s(sG), 12); self.s_add_u32(s(sT), s(sT), hex(OFF_XCC))
        self.v_add_u32(v(16), s(sT), v(vPL))
        self.s_add_u32(s(sT + 2), s(sTOK), 64)
        lp, dn = self.newlabel("xpoll"), self.newlabel("xpolld")
        self.label(lp)
        self.global_load_dword(v(4), v(vPL), s(sFZ, 2), mods="sc1")
        self.global_load_dword(v(5), v(16), s(sWS, 2), mods="sc1")
        self.s_cmp_eq_u32(s(sTO), 0); self.s_cbranch_scc1(dn)
        self.s_sub_u32(s(sTO), s(sTO), 1)
        self.wait(vm=0)
        self.v_cmp_ne_u32("vcc", s(sEXP), v(4)); self.s_and_b64(s(sM0, 2), "vcc", s(sMZ, 2))
        self.v_subrev_u32(v(5), s(sT + 2), v(5))
        self.v_cmp_le_u32("vcc", 16, v(5))
        self.s_or_b64("vcc", "vcc", s(sM0, 2)); self.s_cbranch_scc1(lp)
        self.label(dn)
        self.v_cmp_ne_u32("vcc", s(sXCC), v(5))
        self.s_cmp_lg_u64("vcc", 0)
        self.s_cselect_b32(s(sMODE), 1, 0)
        if self.o.get("force_slow"): self.s_mov_b32(s(sMODE), 1)
    sFR = 8
    def rflag_base(self, d):
        self.s_lshl_b32(s(d), s(sG), 12); self.s_add_u32(s(d), s(d), hex(OFF_FL2 + 6 * 8 * 4096))
        self.s_add_u32(s(d), s(d), s(sWS)); self.s_addc_u32(s(d + 1), s(sWS + 1), 0)
    vRF = 5
    def rflag_check(self):
        ok = self.newlabel("rfok")
        self.wait(vm=8)
        self.s_add_u32(s(sT + 2), s(sTOK), 7)
        self.v_cmp_ne_u32("vcc", s(sT + 2), v(self.vRF)); self.s_cmp_eq_u64("vcc", 0); self.s_cbranch_scc1(ok)
        self.rflag_base(sT); self.s_mov_b64(s(sM1, 2), -1)
        self.poll2(sT, vPL, sT + 2, sM1)
        self.label(ok)
    def flagbase(self, d, phase_off_sreg_or_imm):
        self.smul(sT, sL, 3); self.s_add_u32(s(sT), s(sT), phase_off_sreg_or_imm)
        self.s_lshl_b32(s(sT), s(sT), 3); self.s_add_u32(s(sT), s(sT), s(sG)); self.s_lshl_b32(s(sT), s(sT), 12)
        self.base64(d, sWS, sT, OFF_FL2)

    def layer_bases2(self):
        self.s_lshl_b32(s(sT + 4), s(sL), 3); self.s_add_u32(s(sT + 4), s(sT + 4), s(sG))
        self.smul(sT + 1, sG, ZG)
        self.base64(sZB, sWS, sT + 1, OFF_Z); self.base64(sOB, sWS, sT + 1, OFF_O); self.base64(sAB, sWS, sT + 1, OFF_A)
        self.s_mov_b64(s(sZN, 2), s(sZB, 2))
        self.s_lshl_b32(s(sT + 2), s(sT + 4), 5); self.s_add_u32(s(sT + 2), s(sT + 2), s(sS))
        self.s_lshl_b32(s(sHFO), s(sT + 2), 7); self.s_add_u32(s(sHFO), s(sHFO), hex(OFF_HFL))
        self.s_sub_u32(s(sHFI), s(sHFO), 32 * 128)
        self.smul(sT + 2, sT + 2, HALO_SZ)
        self.base64(sHB, sWS, sT + 2, OFF_HALO - L_K)
        self.s_sub_u32(s(sT + 2), s(sT + 2), 32 * HALO_SZ)
        self.s_cmp_eq_u32(s(sG), 0); self.s_cselect_b32(s(sT + 2), 0, s(sT + 2))
        self.base64(sHP, sWS, sT + 2, OFF_HALO)
        self.flagbase(sFZ, 0)
        self.s_add_u32(s(sFO), s(sFZ), 8 * 4096); self.s_addc_u32(s(sFO + 1), s(sFZ + 1), 0)
        self.s_add_u32(s(sFA), s(sFO), 8 * 4096); self.s_addc_u32(s(sFA + 1), s(sFO + 1), 0)
        self.s_add_u32(s(sFN), s(sFA), 8 * 4096); self.s_addc_u32(s(sFN + 1), s(sFA + 1), 0)
        self.smul(sEXP, sL, 3); self.s_add_u32(s(sEXP), s(sEXP), s(sTOK)); self.s_add_u32(s(sEXP), s(sEXP), 1)
        self.s_add_u32(s(sHEXP), s(sTOK), s(sL)); self.s_add_u32(s(sHEXP), s(sHEXP), 16)

    def wave_sum2(self, a_, b_, t0, t1):
        for r in (a_, b_): self.v_add_f32_dpp(v(r), v(r), v(r), mods="quad_perm:[2,3,0,1] row_mask:0xf bank_mask:0xf")
        for r in (a_, b_): self.v_add_f32_dpp(v(r), v(r), v(r), mods="row_ror:4 row_mask:0xf bank_mask:0xf")
        for r in (a_, b_): self.v_add_f32_dpp(v(r), v(r), v(r), mods="row_ror:8 row_mask:0xf bank_mask:0xf")
        self.v_permlane16_swap_b32(v(a_), v(b_)); self.v_add_f32(v(a_), v(a_), v(b_))
        self.v_mov_b32(v(t0), v(a_)); self.v_permlane32_swap_b32(v(a_), v(t0)); self.v_add_f32(v(a_), v(a_), v(t0))
        self.v_mov_b32(v(b_), v(a_)); self.v_permlane16_swap_b32(v(a_), v(b_))

    def setup2(self):
        self.cold = []; self.cold2 = []
        self.s_cmp_ge_u32(s(2), 256); self.s_cbranch_scc1("L_END")
        self.s_load_dwordx4(s(4, 4), s(0, 2), 0); self.s_load_dwordx2(s(8, 2), s(0, 2), 16)
        self.s_load_dwordx8(s(12, 8), s(0, 2), 32); self.s_load_dwordx8(s(20, 8), s(0, 2), 64)
        self.s_getpc_b64(s(100, 2))
        self.label("L_PC")
        self.v_and_b32(v(vLANE), 63, v(vTID)); self.v_lshlrev_b32(v(vL16), 4, v(vLANE)); self.v_lshlrev_b32(v(vL8), 3, v(vLANE))
        self.v_lshrrev_b32(v(4), 6, v(vTID))
        self.s_and_b32(s(sG), s(2), 7); self.s_lshr_b32(s(sS), s(2), 3)
        self.v_readfirstlane_b32(s(sW), v(4))
        self.s_mov_b32(s(sTO), 400000); self.s_mov_b32(s(sMODE), 0); self.s_mov_b32(s(sL), 0)
        self.s_getreg_b32(s(sXCC), "hwreg(HW_REG_XCC_ID, 0, 4)")
        self.x_addr(8)
        self.wait(lg=0)
        if self.o.get("span"):
            self.stamps = True; self.stamp("t0"); self.stamps = False
        self.dstamp(0)
    sPC = 100
    def code_prefetch(self, vd=224):
        self.v_lshlrev_b32(v(5), 7, v(vTID))
        self.v_min_u32(v(5), "L_HOTEND-L_PC-4", v(5))
        self.global_load_dword(v(vd), v(5), s(self.sPC, 2))
    def issue_x(self):
        for j in range(8, 12): self.v_mov_b32(v(vX + j), 0)
        self.global_load_dwordx4(v(vX, 4), v(8), s(sX, 2))
        self.global_load_dwordx4(v(vX + 4, 4), v(8), s(sX, 2), mods="offset:512")
        self.setexec(0xffffffff)
        self.global_load_dwordx4(v(vX + 8, 4), v(8), s(sX, 2), mods="offset:1024")
        self.setexec(-1)

    def w_addr(self):
        self.v_mul_u32_u24(v(8), 5462, v(vLANE)); self.v_lshrrev_b32(v(8), 16, v(8))
        self.v_mul_u32_u24(v(9), 12, v(8)); self.v_sub_u32(v(9), v(vLANE), v(9))
        self.v_lshrrev_b32(v(10), 2, v(9)); self.v_and_b32(v(11), 3, v(vLANE))
        self.smul(sT, sW, 160); self.v_add_u32(v(8), s(sT), v(8))
        self.s_mov_b32(s(sT + 1), 3840); self.v_mul_lo_u32(v(90), s(sT + 1), v(8))
        self.v_mul_u32_u24(v(91), 1280, v(10)); self.v_lshlrev_b32(v(14), 4, v(11)); self.v_add3_u32(v(90), v(90), v(91), v(14))
        self.smul(sT + 2, sS, 40); self.v_add_u32(v(90), s(sT + 2), v(90))
        self.v_lshlrev_b32(v(91), 5, v(10)); self.v_add_u32(v(91), v(91), v(14))
        self.v_cmp_eq_u32("vcc", 2, v(10)); self.v_add_u32(v(5), L_WT1 + 32, v(14)); self.v_cndmask_b32(v(91), v(91), v(5), "vcc")
        self.v_lshlrev_b32(v(5), 4, v(10)); self.v_min_u32(v(5), 24, v(5)); self.v_add_u32(v(5), L_WT1, v(5))
        self.v_cmp_eq_u32("vcc", 2, v(11)); self.v_cndmask_b32(v(91), v(91), v(5), "vcc")
        self.v_lshlrev_b32(v(8), 6, v(8)); self.v_add_u32(v(91), v(91), v(8))
    WM = sum(1 << l for l in range(60) if (l & 3) < 3)
    def w_issue(self, lo, hi):
        self.s_mov_b32(s(sSRD), s(sWQ)); self.s_mov_b32(s(sSRD + 1), s(sWQ + 1))
        self.s_mov_b32(s(sSRD + 2), 640 * 1920 * 2); self.s_mov_b32(s(sSRD + 3), "0x00020000")
        self.setexec(self.WM)
        self.s_mov_b32(s(sT + 3), lo * 5 * 3840)
        for i in range(lo, hi):
            self.buffer_load_dwordx4(a(4 * i, 4), v(90), s(sSRD + 0, 4), s(sT + 3), mods="offen")
            if i < hi - 1: self.s_add_u32(s(sT + 3), s(sT + 3), 5 * 3840)
        self.setexec(-1)
    def w_one(self, i):
        self.s_mov_b32(s(sT + 3), i * 5 * 3840)
        self.setexec(self.WM)
        self.buffer_load_dwordx4(a(4 * i, 4), v(90), s(sSRD + 0, 4), s(sT + 3), mods="offen")
        self.setexec(-1)
    def splice_w(self, items, loads):
        loads = list(loads)
        self.s_mov_b32(s(sSRD), s(sWQ)); self.s_mov_b32(s(sSRD + 1), s(sWQ + 1))
        self.s_mov_b32(s(sSRD + 2), 640 * 1920 * 2); self.s_mov_b32(s(sSRD + 3), "0x00020000")
        n = sum(1 for it in items if isinstance(it, Ins))
        step = max(1, n // (len(loads) + 1))
        cnt = 0; full = True; inbr = set()
        for it in items:
            if isinstance(it, Ins):
                if loads and cnt >= step and full and not inbr:
                    self.w_one(loads.pop(0)); cnt = 0
                if it.ops and it.ops[0] in ("exec", "exec_lo", "exec_hi"):
                    full = (it.op == "s_mov_b64" and it.ops[1] == "-1")
                if it.kind == "branch": inbr.add(it.target)
                cnt += 1
            elif it[0] == "label": inbr.discard(it[1])
            self.items.append(it)
        while loads: self.w_one(loads.pop(0))
    def w_lds(self, lo, hi):
        m128 = sum(1 << l for l in range(60) if (l & 3) < 2); m64 = sum(1 << l for l in range(60) if (l & 3) == 2)
        self.setexec(m128)
        for i in range(lo, hi): self.ds_write_b128(v(91), a(4 * i, 4), mods=f"offset:{320 * i}")
        self.setexec(m64)
        for i in range(lo, hi): self.ds_write_b64(v(91), a(4 * i, 2), mods=f"offset:{320 * i}")
        self.setexec(-1)
    def w_zero(self):
        self.v_lshlrev_b32(v(10), 6, v(vTID)); self.v_add_u32(v(10), L_WT1 + 8, v(10))
        self.ds_write_b64(v(10), v(vZERO, 2)); self.ds_write_b64(v(10), v(vZERO, 2), mods=f"offset:{256 * 64}")
        lab = self.newlabel("wz")
        self.s_cmp_ge_u32(s(sW), 2); self.s_cbranch_scc1(lab)
        self.ds_write_b64(v(10), v(vZERO, 2), mods=f"offset:{512 * 64}")
        self.label(lab)

    def z_addr(self, va):
        self.s_lshr_b32(s(sT), s(sS), 2); self.smul(sT, sT, 40960)
        self.s_and_b32(s(sT + 1), s(sS), 3); self.s_lshl_b32(s(sT + 1), s(sT + 1), 7)
        self.s_add_u32(s(sT), s(sT), s(sT + 1)); self.s_lshl_b32(s(sT + 1), s(sW), 5); self.s_add_u32(s(sT), s(sT), s(sT + 1))
        self.v_lshrrev_b32(v(va), 1, v(vLANE)); self.v_lshlrev_b32(v(va), 9, v(va))
        self.v_and_b32(v(va + 1), 1, v(vLANE)); self.v_lshlrev_b32(v(va + 1), 4, v(va + 1))
        self.v_add3_u32(v(va), v(va), v(va + 1), s(sT))
        self.v_add_u32(v(va + 1), 32 * 512, v(va)); self.v_add_u32(v(va + 2), 64 * 512, v(va))
    def z_store_list(self, zp, sbase, va):
        return [self.store(16, v(va), v(zp, 4), s(sbase, 2)), self.store(16, v(va + 1), v(zp + 4, 4), s(sbase, 2)),
                ("exec", 0xffffffff), self.store(16, v(va + 2), v(zp + 8, 4), s(sbase, 2)), ("exec", -1)]

    CKP, CVP, CSP, CRG, CCC, CTP = 96, 124, 144, 140, 141, 164
    N_C0 = 13
    def c0_issue(self):
        KP, VP, RG, CC = self.CKP, self.CVP, self.CRG, self.CCC
        self.s_mov_b32(s(sSRD), s(sBK)); self.s_mov_b32(s(sSRD + 1), s(sBK + 1))
        self.s_mov_b32(s(sSRD + 2), 2048 * 1280); self.s_mov_b32(s(sSRD + 3), "0x00020000")
        self.v_min_u32(v(4), 159, v(vTID))
        self.v_mul_u32_u24(v(RG), 6554, v(4)); self.v_lshrrev_b32(v(RG), 16, v(RG))
        self.v_mul_u32_u24(v(CC), 10, v(RG)); self.v_sub_u32(v(CC), v(4), v(CC))
        self.s_lshl_b32(s(sT), s(sS), 6); self.s_sub_u32(s(sT), s(sT), 3)
        self.v_lshl_add_u32(v(4), v(RG), 2, s(sT))
        self.s_mov_b32(s(sT + 1), 1280); self.v_mul_lo_u32(v(4), s(sT + 1), v(4))
        self.smul(sT + 2, sG, 160); self.v_lshl_add_u32(v(5), v(CC), 4, s(sT + 2)); self.v_add_u32(v(4), v(4), v(5))
        for j in range(7):
            self.buffer_load_dwordx4(v(KP + 4 * j, 4), v(4), s(sSRD, 4), 0, mods="offen")
            if j == 2: self.v_add_u32(v(5), 1280, v(4))
            if j < 6: self.v_add_u32(v(4), 1280, v(4))
        self.s_mov_b32(s(sSRD), s(sBV)); self.s_mov_b32(s(sSRD + 1), s(sBV + 1))
        for j in range(4):
            self.buffer_load_dwordx4(v(VP + 4 * j, 4), v(5), s(sSRD, 4), 0, mods="offen")
            if j < 3: self.v_add_u32(v(5), 1280, v(5))
        self.smul(sT + 2, sG, 640); self.v_min_u32(v(4), 39, v(vLANE)); self.v_lshl_add_u32(v(4), v(4), 4, s(sT + 2))
        self.global_load_dwordx4(v(self.CTP, 4), v(4), s(sSH, 2))
        self.v_min_u32(v(5), 199, v(vTID)); self.v_lshlrev_b32(v(5), 7, v(5)); self.smul(sT + 4, sS, 25600); self.v_add_u32(v(5), s(sT + 4), v(5))
        self.global_load_dword(v(231), v(5), s(sWO, 2))
    def c0_taps(self):
        self.v_min_u32(v(4), 39, v(vLANE)); self.v_lshlrev_b32(v(4), 4, v(4)); self.v_add_u32(v(4), L_SP, v(4))
        self.wait(vm=1)
        self.ds_write_b128(v(4), v(self.CTP, 4))
        self.v_lshlrev_b32(v(5), 6, v(self.CCC)); self.v_add_u32(v(5), L_SP, v(5))
        self.wait(lg=0); self.s_barrier()
        for j in range(4): self.ds_read_b128(v(self.CSP + 4 * j, 4), v(5), mods=f"offset:{16 * j}")
    def c0_compute(self, splice):
        KP, VP, SP = self.CKP, self.CVP, self.CSP
        KF, SK, VF, U, PKD = 16, 30, 38, 46, 54
        sCM = sU + 12
        self.v_cmp_gt_u32("vcc", 160, v(vTID)); self.s_mov_b64(s(sCM, 2), "vcc")
        self.v_mul_u32_u24(v(10), 1168, v(self.CCC)); self.v_lshlrev_b32(v(11), 3, v(self.CRG)); self.v_sub_u32(v(10), v(10), v(11))
        self.v_add_u32(v(10), L_K + 120, v(10))
        self.wait(lg=0)
        splice = list(splice)
        def sp():
            if splice: splice.pop(0)()
        for m in range(4):
            for j in range(7):
                self.v_lshlrev_b32(v(KF + 2 * j), 16, v(KP + 4 * j + m)); self.v_and_b32(v(KF + 2 * j + 1), "0xffff0000", v(KP + 4 * j + m))
            sp()
            for e in range(2):
                c = 2 * m + e
                self.v_lshlrev_b32(v(SK + 0 + e), 16, v(SP + 2 * c)); self.v_and_b32(v(SK + 2 + e), "0xffff0000", v(SP + 2 * c))
                self.v_lshlrev_b32(v(SK + 4 + e), 16, v(SP + 2 * c + 1)); self.v_and_b32(v(SK + 6 + e), "0xffff0000", v(SP + 2 * c + 1))
            for i in range(4):
                self.v_lshlrev_b32(v(VF + 2 * i), 16, v(VP + 4 * i + m)); self.v_and_b32(v(VF + 2 * i + 1), "0xffff0000", v(VP + 4 * i + m))
            sp()
            for i in range(4): self.v_pk_mul_f32(v(U + 2 * i, 2), v(KF + 2 * i, 2), v(SK + 6, 2))
            for i in range(4): self.v_pk_fma_f32(v(U + 2 * i, 2), v(KF + 2 * (i + 1), 2), v(SK + 4, 2), v(U + 2 * i, 2))
            for i in range(4): self.v_pk_fma_f32(v(U + 2 * i, 2), v(KF + 2 * (i + 2), 2), v(SK + 2, 2), v(U + 2 * i, 2))
            for i in range(4): self.v_pk_fma_f32(v(U + 2 * i, 2), v(KF + 2 * (i + 3), 2), v(SK + 0, 2), v(U + 2 * i, 2))
            for i in range(4): self.v_pk_mul_f32(v(U + 2 * i, 2), v(U + 2 * i, 2), v(VF + 2 * i, 2))
            sp()
            for e in range(2):
                p = PKD + 2 * e + 4 * (m & 1)
                self.v_cvt_pk_bf16_f32(v(p), v(U + 6 + e), v(U + 4 + e)); self.v_cvt_pk_bf16_f32(v(p + 1), v(U + 2 + e), v(U + e))
            self.s_mov_b64("exec", s(sCM, 2))
            for e in range(2):
                p = PKD + 2 * e + 4 * (m & 1)
                self.ds_write_b64(v(10), v(p, 2), mods=f"offset:{144 * (2 * m + e)}")
            self.s_mov_b64("exec", -1)
        while splice: sp()
    def c0_tail(self):
        self.wait(lg=0); self.s_barrier()
        self.v_lshrrev_b32(v(8), 6, v(vTID)); self.v_mul_u32_u24(v(8), 1168, v(8))
        self.v_bfe_u32(v(9), v(vTID), 3, 3); self.v_mul_u32_u24(v(9), 144, v(9))
        self.v_and_b32(v(10), 7, v(vTID)); self.v_lshlrev_b32(v(10), 4, v(10))
        self.v_add3_u32(v(8), v(8), v(9), v(10)); self.v_add_u32(v(8), L_K, v(8))
        self.smul(sU, sG, 80 * 4096); self.s_lshl_b32(s(sU + 1), s(sS), 7); self.s_sub_u32(s(sU), s(sU), s(sU + 1))
        self.s_add_u32(s(sU), s(sU), hex(OFF_R + 1984 * 2))
        self.v_lshrrev_b32(v(9), 3, v(vTID)); self.v_lshlrev_b32(v(9), 12, v(9)); self.v_add3_u32(v(9), v(9), v(10), s(sU))
        self.ds_read_b128(v(16, 4), v(8)); self.ds_read_b128(v(20, 4), v(8), mods=f"offset:{4 * 1168}")
        self.ds_read_b128(v(24, 4), v(8), mods=f"offset:{8 * 1168}")
        self.v_add_u32(v(11), 32 * 4096, v(9)); self.v_add_u32(v(14), 64 * 4096, v(9))
        self.wait(lg=0)
        self.global_store_dwordx4(v(9), v(16, 4), s(sWS, 2), mods="sc1"); self.global_store_dwordx4(v(11), v(20, 4), s(sWS, 2), mods="sc1")
        l1 = self.newlabel("c0s")
        self.s_cmp_ge_u32(s(sW), 2); self.s_cbranch_scc1(l1)
        self.global_store_dwordx4(v(14), v(24, 4), s(sWS, 2), mods="sc1")
        self.label(l1)

    ACC, ZR, WF = 16, 96, 160
    OA, OB, MSK = 176, 192, 208
    SA, SB, PP, KF0, KF1, VF0, VF1, KP0, KP1 = 16, 32, 48, 56, 60, 62, 66, 70, 74
    QA, QB = 80, 86
    vSA, vSB, vSC, vTR0, vTR1, vKA, vK1A, vVA = 224, 225, 226, 227, 228, 229, 230, 231
    vKB, vK1B, vVB = 12, 13, 14
    def zero16(self, d):
        self.v_mfma_f32_32x32x16_bf16(v(d, 16), v(vZERO, 4), v(vZERO, 4), 0)
    def qkv_addr(self):
        vzA, vzB, vw0, vw1 = 8, 9, 10, 11
        self.smul(sT, sW, 40960); self.v_add_u32(v(vzA), s(sT), v(vL16))
        self.s_sub_u32(s(sT + 1), 7, s(sW)); self.smul(sT + 1, sT + 1, 40960); self.v_add_u32(v(vzB), s(sT + 1), v(vL16))
        self.v_lshrrev_b32(v(4), 5, v(vLANE)); self.v_lshlrev_b32(v(4), 3, v(4))
        self.v_bfe_u32(v(5), v(vLANE), 2, 2); self.v_add_u32(v(4), v(4), v(5)); self.v_lshlrev_b32(v(4), 6, v(4))
        self.v_bfe_u32(v(5), v(vLANE), 4, 1); self.v_lshlrev_b32(v(5), 5, v(5))
        self.v_and_b32(v(vw0), 3, v(vLANE)); self.v_lshlrev_b32(v(vw0), 3, v(vw0))
        self.v_add3_u32(v(vw0), v(4), v(5), v(vw0)); self.v_add_u32(v(vw1), L_WT1, v(vw0))
    def qkv_init(self):
        for d in (16, 32, 48, 64): self.zero16(d)
        self.zero16(self.OA); self.zero16(self.OB)
        self.wread(0, 0)
    def wread(self, st, kk):
        for T, vw in ((0, 10), (1, 11)):
            r = self.WF + 8 * st + 4 * T
            self.ds_read_b64_tr_b16(v(r, 2), v(vw), mods=f"offset:{kk * 1024}")
            self.ds_read_b64_tr_b16(v(r + 2, 2), v(vw), mods=f"offset:{kk * 1024 + 256}")
    def zload(self, j, kk):
        ZR, vzA, vzB = self.ZR, 8, 9
        self.global_load_dwordx4(v(ZR + 8 * j, 4), v(vzA), s(sZB, 2), mods=f"offset:{(kk % 4) * 1024} sc1")
        self.global_load_dwordx4(v(ZR + 8 * j + 4, 4), v(vzB), s(sZB, 2), mods=f"offset:{(kk % 4) * 1024} sc1")
        if kk % 4 == 3:
            self.v_add_u32(v(vzA), 4096, v(vzA)); self.v_add_u32(v(vzB), 4096, v(vzB))
    def qkv_zissue(self):
        for j in range(8): self.zload(j, j)
    def qkv_run(self):
        ACC, ZR, WF = self.ACC, self.ZR, self.WF
        vzA, vzB, vw0, vw1 = 8, 9, 10, 11
        zload = self.zload
        def body(last):
            for j in range(8):
                st = j & 1
                if not (last and j == 7): self.wread(st ^ 1, j + 1)
                self.wait(vm=(14 - 2 * j) if last else 14, lg=0 if (last and j == 7) else 4)
                for blk in range(2):
                    for T in range(2):
                        d = ACC + 32 * blk + 16 * T
                        self.v_mfma_f32_32x32x16_bf16(v(d, 16), v(WF + 8 * st + 4 * T, 4), v(ZR + 8 * j + 4 * blk, 4), v(d, 16))
                if not last: zload(j, j)
            if not last:
                self.v_add_u32(v(vw0), 8192, v(vw0)); self.v_add_u32(v(vw1), 8192, v(vw1))
        lp = self.newlabel("qkv")
        self.s_mov_b32(s(sU), 4)
        self.label(lp)
        body(False)
        self.s_sub_u32(s(sU), s(sU), 1); self.s_cmp_lg_u32(s(sU), 0); self.s_cbranch_scc1(lp)
        body(True)

    def epi_prep(self):
        vSA, vSB, vSC, vTR0, vTR1 = self.vSA, self.vSB, self.vSC, self.vTR0, self.vTR1
        self.s_lshl_b32(s(sT), s(sW), 11); self.s_add_u32(s(sT), s(sT), L_VS)
        self.v_and_b32(v(4), 31, v(vLANE)); self.v_bfe_u32(v(5), v(4), 1, 3)
        self.v_lshlrev_b32(v(4), 6, v(4)); self.v_add_u32(v(4), s(sT), v(4))
        self.v_lshrrev_b32(v(vSA), 5, v(vLANE)); self.v_xor_b32(v(vSA), v(vSA), v(5)); self.v_lshl_add_u32(v(vSA), v(vSA), 3, v(4))
        self.v_xor_b32(v(vSB), 16, v(vSA))
        self.v_xor_b32(v(vSC), 40, v(vSA))
        self.v_xor_b32(v(4), 48, v(vSA))
        self.v_mov_b32(v(88), "0x3f80"); self.v_mov_b32(v(89), 0)
        self.ds_write_b64(v(4), v(88, 2))
        self.v_bfe_u32(v(4), v(vLANE), 2, 2); self.v_lshrrev_b32(v(5), 5, v(vLANE)); self.v_lshl_add_u32(v(4), v(5), 2, v(4))
        self.v_bfe_u32(v(5), v(vLANE), 4, 1); self.v_lshlrev_b32(v(5), 2, v(5)); self.v_and_b32(v(vTR0), 3, v(vLANE)); self.v_add_u32(v(5), v(5), v(vTR0))
        self.v_lshrrev_b32(v(vTR0), 1, v(4)); self.v_xor_b32(v(5), v(5), v(vTR0)); self.v_lshlrev_b32(v(5), 3, v(5))
        self.v_lshl_add_u32(v(vTR0), v(4), 6, v(5)); self.v_add_u32(v(vTR0), s(sT), v(vTR0)); self.v_xor_b32(v(vTR1), 32, v(vTR0))
        for (k0, k1, vv, blk) in ((self.vKA, self.vK1A, self.vVA, 0), (self.vKB, self.vK1B, self.vVB, 1)):
            if blk == 0: self.s_mov_b32(s(sT + 1), s(sW))
            else: self.s_sub_u32(s(sT + 1), 7, s(sW))
            self.smul(sT + 2, sT + 1, 1536); self.s_add_u32(s(sT + 2), s(sT + 2), L_K)
            self.v_add_u32(v(k0), s(sT + 2), v(vL16)); self.s_add_u32(s(sT + 2), s(sT + 2), 1024); self.v_add_u32(v(k1), s(sT + 2), v(vL8))
            self.s_lshl_b32(s(sT + 2), s(sT + 1), 11); self.s_add_u32(s(sT + 2), s(sT + 2), L_V); self.v_add_u32(v(vv), s(sT + 2), v(vL16))
        self.s_mov_b32(s(sU + 14), f32(math.log2(math.e) / math.sqrt(20.0))); self.s_mov_b32(s(sU + 15), s(sU + 14))
    def epi_run(self):
        ACC = self.ACC
        sets = []
        for blk in range(2):
            A0 = ACC + 32 * blk; A1 = A0 + 16
            Q = self.QA if blk == 0 else self.QB
            PK = 96 + 24 * blk
            K0, K1, VV, VF = PK, PK + 4, PK + 6, PK + 12
            sets.append((K0, K1, VV, VF))
            self.pack(K1, A1 + 4, 2); self.pack(VV, A1 + 8, 4)
            self.ds_write_b64(v(self.vSC), v(K1, 2)); self.ds_write_b64(v(self.vSA), v(VV, 2)); self.ds_write_b64(v(self.vSB), v(VV + 2, 2))
            self.pack(K0, A0 + 8, 4)
            for m in range(4): self.ds_read_b64_tr_b16(v(VF + 2 * m, 2), v(self.vTR1 if m & 1 else self.vTR0), mods=f"offset:{512 * m}")
            k0, k1, vv = (self.vKA, self.vK1A, self.vVA) if blk == 0 else (self.vKB, self.vK1B, self.vVB)
            self.ds_write_b128(v(k0), v(K0, 4)); self.ds_write_b64(v(k1), v(K1, 2))
            self.global_store_dwordx4(v(k0), v(K0, 4), s(sHB, 2), mods="sc1")
            self.global_store_dwordx2(v(k1), v(K1, 2), s(sHB, 2), mods="sc1")
            for r in (0, 2, 4, 6): self.v_pk_mul_f32(v(A0 + r, 2), v(A0 + r, 2), s(sU + 14, 2))
            for r in (0, 2): self.v_pk_mul_f32(v(A1 + r, 2), v(A1 + r, 2), s(sU + 14, 2))
            self.pack(Q, A0, 4); self.pack(Q + 4, A1, 2)
            self.wait(lg=2)
            self.ds_write_b128(v(vv), v(VF, 4)); self.ds_write_b128(v(vv), v(VF + 4, 4), mods="offset:1024")
            self.global_store_dwordx4(v(vv), v(VF, 4), s(sHB, 2), mods="sc1")
            self.global_store_dwordx4(v(vv), v(VF + 4, 4), s(sHB, 2), mods="offset:1024 sc1")
        self.wait(lg=0); self.s_barrier()

    def mask_gen(self, far):
        self.v_and_b32(v(4), 31, v(vLANE)); self.v_lshrrev_b32(v(5), 5, v(vLANE)); self.v_lshlrev_b32(v(5), 2, v(5))
        self.v_sub_u32(v(4), v(4), v(5))
        self.v_mov_b32(v(5), f32(-1e30))
        for r in range(16):
            kk = 8 * (r >> 2) + (r & 3)
            self.v_cmp_le_i32(s(sU + 2 * (r & 3), 2), kk, v(4))
            if r >= 1:
                q = r - 1
                self._msel(q, far)
        self._msel(15, far)
    def _msel(self, r, far):
        if far: self.v_cndmask_b32(v(self.MSK + r), 0, v(5), s(sU + 2 * (r & 3), 2))
        else: self.v_cndmask_b32(v(self.MSK + r), v(5), 0, s(sU + 2 * (r & 3), 2))

    def halo_publish(self):
        lab = self.newlabel("hp"); l0, l1 = self.newlabel("hw"), self.newlabel("hw")
        self.s_cmp_lg_u32(s(sL), 0); self.s_cbranch_scc1(l0)
        self.wait(vm=self.N_C0); self.s_branch(l1)
        self.label(l0); self.wait(vm=0); self.label(l1)
        self.setexec(1)
        self.v_mov_b32(v(4), L_CNT); self.v_mov_b32(v(5), 1)
        self.ds_add_rtn_u32(v(5), v(4), v(5))
        self.wait(lg=0)
        self.v_readfirstlane_b32(s(sT), v(5))
        self.s_and_b32(s(sT), s(sT), 3); self.s_cmp_lg_u32(s(sT), 3); self.s_cbranch_scc1(lab)
        self.v_mov_b32(v(4), s(sHFO)); self.v_mov_b32(v(5), s(sHEXP))
        self.global_store_dword(v(4), v(5), s(sWS, 2), mods="sc1")
        self.label(lab)
        self.setexec(-1)

    CD, CE, CR, CDV = 96, 112, 120, 128
    C2D, C2E, C2R, C2DV = 164, 170, 224, 228
    CH_SZ = 24832
    def conv_srd(self):
        self.s_mov_b32(s(sSRD), s(sSK)); self.s_mov_b32(s(sSRD + 1), s(sSK + 1))
        self.s_mov_b32(s(sSRD + 2), 640 * 4096); self.s_mov_b32(s(sSRD + 3), "0x00020000")
    def conv_h_issue(self):
        D = self.CD
        self.smul(sT, sG, 80); self.s_lshl_b32(s(sT + 1), s(sS), 1); self.s_add_u32(s(sT + 1), s(sT + 1), s(sT))
        self.s_lshr_b32(s(sT + 2), s(sW), 1); self.s_add_u32(s(sT + 1), s(sT + 1), s(sT + 2))
        self.s_lshl_b32(s(sT + 3), s(sT + 1), 12)
        self.conv_srd()
        self.v_and_b32(v(4), 127, v(vTID)); self.v_lshlrev_b32(v(4), 4, v(4))
        for i in range(2):
            self.buffer_load_dwordx4(v(D + 8 * i, 4), v(4), s(sSRD, 4), s(sT + 3), mods=f"offen offset:{2048 * i}")
            self.buffer_load_dwordx2(v(D + 8 * i + 4, 2), v(4), s(sSRD, 4), s(sT + 3), mods=f"offen offset:{2048 * i + 16}")
        self.s_lshr_b32(s(sT + 4), s(sT + 1), 1); self.s_lshl_b32(s(sT + 4), s(sT + 4), 2); self.v_mov_b32(v(5), s(sT + 4))
        self.global_load_dword(v(self.CDV), v(5), s(sSD, 2))
        self.s_lshr_b32(s(sT + 1), s(sS), 1); self.s_add_u32(s(sT + 1), s(sT + 1), s(sT)); self.s_add_u32(s(sT + 1), s(sT + 1), 64)
        self.s_lshl_b32(s(sT + 3), s(sT + 1), 12)
        self.v_lshlrev_b32(v(4), 4, v(vTID))
        self.buffer_load_dwordx4(v(self.C2D, 4), v(4), s(sSRD, 4), s(sT + 3), mods="offen")
        self.buffer_load_dwordx2(v(self.C2D + 4, 2), v(4), s(sSRD, 4), s(sT + 3), mods="offen offset:16")
        self.s_lshr_b32(s(sT + 4), s(sT + 1), 1); self.s_lshl_b32(s(sT + 4), s(sT + 4), 2); self.v_mov_b32(v(5), s(sT + 4))
        self.global_load_dword(v(self.C2DV), v(5), s(sSD, 2))
    def conv_r_issue(self):
        R = self.CR
        self.smul(sT, sG, 80); self.s_lshl_b32(s(sT + 1), s(sS), 1); self.s_add_u32(s(sT + 1), s(sT + 1), s(sT))
        self.s_lshr_b32(s(sT + 2), s(sW), 1); self.s_add_u32(s(sT + 1), s(sT + 1), s(sT + 2))
        self.s_lshl_b32(s(sT + 3), s(sT + 1), 12); self.s_add_u32(s(sT + 3), s(sT + 3), hex(OFF_R))
        self.v_and_b32(v(4), 127, v(vTID)); self.v_lshl_add_u32(v(4), v(4), 4, s(sT + 3))
        self.global_load_dwordx4(v(R, 4), v(4), s(sWS, 2), mods="sc1")
        self.global_load_dwordx4(v(R + 4, 4), v(4), s(sWS, 2), mods="offset:2048 sc1")
        self.s_lshr_b32(s(sT + 1), s(sS), 1); self.s_add_u32(s(sT + 1), s(sT + 1), s(sT)); self.s_add_u32(s(sT + 1), s(sT + 1), 64)
        self.s_lshl_b32(s(sT + 3), s(sT + 1), 12); self.s_add_u32(s(sT + 3), s(sT + 3), hex(OFF_R))
        self.v_lshl_add_u32(v(4), v(vTID), 4, s(sT + 3))
        self.global_load_dwordx4(v(self.C2R, 4), v(4), s(sWS, 2), mods="sc1")

    def pretouch_addr(self, va):
        self.v_min_u32(v(va), 159, v(vTID)); self.v_lshlrev_b32(v(va), 7, v(va))
        self.smul(sT, sG, ZG); self.smul(sT + 1, sS, 10240); self.s_add_u32(s(sT), s(sT), s(sT + 1)); self.s_add_u32(s(sT), s(sT), hex(OFF_O))
        self.v_add_u32(v(va), s(sT), v(va))
        self.v_add_u32(v(5), OFF_A - OFF_O - 80 * 128, v(va))
        self.v_cmp_gt_u32("vcc", 80, v(vTID)); self.v_cndmask_b32(v(va), v(5), v(va), "vcc")

    WOL = (0, 100)
    vWG = 14
    def wo_addr(self):
        self.s_and_b32(s(sT), s(sS), 7); self.smul(sT, sT, 160)
        self.v_min_u32(v(4), 49, v(vLANE))
        self.v_mul_u32_u24(v(5), 6554, v(4)); self.v_lshrrev_b32(v(5), 16, v(5))
        self.v_mul_u32_u24(v(self.vWG), 10, v(5)); self.v_sub_u32(v(4), v(4), v(self.vWG))
        self.smul(sT + 1, sW, 80); self.v_add_u32(v(5), s(sT + 1), v(5))
        self.v_mul_u32_u24(v(self.vWG), 1280, v(5)); self.v_lshl_add_u32(v(self.vWG), v(4), 4, v(self.vWG)); self.v_add_u32(v(self.vWG), s(sT), v(self.vWG))
    def wo_srd(self):
        self.s_mov_b32(s(sSRD), s(sWO)); self.s_mov_b32(s(sSRD + 1), s(sWO + 1))
        self.s_mov_b32(s(sSRD + 2), 640 * 640 * 2); self.s_mov_b32(s(sSRD + 3), "0x00020000")
    def wo_issue_one(self, n):
        hh, i = divmod(n, 16)
        self.s_mov_b32(s(sT + 7), hh * 320 * 1280 + i * 5 * 1280)
        self.buffer_load_dwordx4(a(self.WOL[hh] + 4 * i, 4), v(self.vWG), s(sSRD, 4), s(sT + 7), mods="offen")
    def wo_stage(self):
        self.v_min_u32(v(4), 49, v(vLANE))
        self.v_mul_u32_u24(v(8), 6554, v(4)); self.v_lshrrev_b32(v(8), 16, v(8))
        self.v_mul_u32_u24(v(9), 10, v(8)); self.v_sub_u32(v(9), v(4), v(9))
        self.smul(sT + 1, sW, 80); self.v_add_u32(v(8), s(sT + 1), v(8))
        self.v_mul_u32_u24(v(11), 160, v(8)); self.v_lshl_add_u32(v(11), v(9), 4, v(11)); self.v_add_u32(v(11), L_K, v(11))
        self.s_lshr_b32(s(sT), s(sW), 1)
        self.v_lshrrev_b32(v(12), 4, v(vLANE)); self.v_bfe_u32(v(13), v(vLANE), 2, 2)
        self.v_and_b32(v(16), 3, v(vLANE)); self.v_lshlrev_b32(v(16), 3, v(16)); self.v_add_u32(v(16), L_K, v(16))
        self.v_lshrrev_b32(v(17), 1, v(12)); self.v_mul_u32_u24(v(17), 20, v(17))
        self.v_and_b32(v(18), 1, v(12)); self.v_lshl_add_u32(v(17), v(18), 2, v(17)); self.v_add_u32(v(17), v(17), v(13))
        self.v_mul_u32_u24(v(17), 160, v(17)); self.v_add_u32(v(17), v(17), v(16))
        self.v_mul_u32_u24(v(18), 40, v(12)); self.v_add3_u32(v(18), v(18), v(13), 16)
        self.v_mul_u32_u24(v(18), 160, v(18)); self.v_add_u32(v(18), v(18), v(16))
        self.smul(sT + 1, sT, 32000); self.v_add_u32(v(17), s(sT + 1), v(17))
        self.s_cmp_eq_u32(s(sT), 0)
        self.s_mov_b32(s(sT + 4), 25600); self.s_mov_b32(s(sT + 5), 3200)
        self.s_cselect_b32(s(sT + 2), 6400, s(sT + 4)); self.s_cselect_b32(s(sT + 3), 1280, s(sT + 5))
        self.s_cselect_b64(s(sM0, 2), -1, 0)
        self.v_add_u32(v(19), 3 * 6400, v(17)); self.v_cndmask_b32(v(19), v(18), v(19), s(sM0, 2))
        self.v_add_u32(v(20), s(sT + 3), v(19)); self.v_add_u32(v(21), s(sT + 2), v(19)); self.v_add_u32(v(22), s(sT + 3), v(21))
        for hh in range(2):
            self.setexec((1 << 50) - 1)
            for i in range(16): self.ds_write_b128(v(11), a(self.WOL[hh] + 4 * i, 4), mods=f"offset:{800 * i}")
            self.setexec(-1)
            self.wait(lg=0); self.s_barrier()
            n = 0
            for jj in range(5):
                for ct in range(5):
                    d = ((5 * hh + jj) * 5 + ct) * 4
                    if n >= 12 and ct in (0, 2, 4): self.wait(lg=9)
                    if jj < 3:
                        self.ds_read_b64_tr_b16(a(d, 2), v(17), mods=f"offset:{6400 * jj + 32 * ct}")
                        self.ds_read_b64_tr_b16(a(d + 2, 2), v(17), mods=f"offset:{6400 * jj + 32 * ct + 1280}")
                    else:
                        self.ds_read_b64_tr_b16(a(d, 2), v(19 + 2 * (jj - 3)), mods=f"offset:{32 * ct}")
                        self.ds_read_b64_tr_b16(a(d + 2, 2), v(20 + 2 * (jj - 3)), mods=f"offset:{32 * ct}")
                    n += 2
            self.wait(lg=0)
            if hh == 0: self.wait(vm=0)
            self.s_barrier()
            if hh == 0: self.y_flag()

    def conv_head(self, sbase, sch, D, DV):
        self.v_readlane_b32(s(sT + 6), v(D), 0); self.v_readlane_b32(s(sT + 7), v(D + 1), 0)
        self.v_readfirstlane_b32(s(sT + 8), v(DV))
        self.s_and_b32(s(sT + 9), s(sch), 1); self.s_lshl_b32(s(sT + 9), s(sT + 9), 4)
        self.s_lshr_b32(s(sT + 8), s(sT + 8), s(sT + 9)); self.s_lshl_b32(s(sT + 8), s(sT + 8), 16)
        self.s_lshl_b32(s(sT + 9), s(sT + 6), 16)
        self.v_mov_b32(v(16), s(sT + 8)); self.v_add_f32(v(16), s(sT + 9), v(16))
        self.v_cvt_pk_bf16_f32(v(16), v(16), v(16)); self.v_and_b32(v(16), "0xffff", v(16))
        self.s_and_b32(s(sT + 6), s(sT + 6), "0xffff0000"); self.v_or_b32(v(16), s(sT + 6), v(16))
        self.v_mov_b32(v(17), s(sT + 7))
        self.v_lshrrev_b32(v(18), 2, v(vLANE)); self.v_sub_u32(v(19), 3, v(18)); self.v_lshlrev_b32(v(19), 4, v(19)); self.v_and_b32(v(19), 63, v(19))
        self.v_lshlrev_b64(v(26, 2), v(19), v(16, 2))
        self.v_and_b32(v(19), 3, v(vLANE)); self.v_cmp_eq_u32("vcc", 3, v(19))
        self.v_mov_b32(v(24), 0); self.v_mov_b32(v(25), 0)
        self.v_cndmask_b32(v(26), 0, v(26), "vcc"); self.v_cndmask_b32(v(27), 0, v(27), "vcc")
        self.v_mul_u32_u24(v(18), 4160, v(18)); self.v_lshl_add_u32(v(18), v(19), 4, v(18)); self.v_add_u32(v(18), s(sbase), v(18))
        self.setexec(0xffff); self.ds_write_b128(v(18), v(24, 4)); self.setexec(-1)
    def conv_copies(self, vaddr, d, e, off):
        AL = 132
        for j in range(4): self.v_alignbit_b32(v(AL + j), v(d + j + 1), v(d + j), 16)
        for j in range(3): self.v_mov_b32(v(AL + 4 + j), v(AL + 1 + j))
        self.v_alignbit_b32(v(AL + 7), v(d + 5), v(d + 4), 16)
        for j in range(4): self.v_mov_b32(v(e + j), v(d + 1 + j))
        self.ds_write_b128(v(vaddr), v(AL, 4), mods=f"offset:{off}")
        self.ds_write_b128(v(vaddr), v(e, 4), mods=f"offset:{off + 4160}")
        self.ds_write_b128(v(vaddr), v(AL + 4, 4), mods=f"offset:{off + 2 * 4160}")
        self.ds_write_b128(v(vaddr), v(d + 2, 4), mods=f"offset:{off + 3 * 4160}")
    def conv_addr(self, sbase, sstep0):
        self.v_and_b32(v(10), 3, v(vLANE)); self.v_mul_u32_u24(v(10), 4160, v(10))
        self.v_bfe_u32(v(11), v(vLANE), 2, 3); self.v_lshl_add_u32(v(10), v(11), 3, v(10))
        self.v_lshrrev_b32(v(11), 5, v(vLANE)); self.v_lshl_add_u32(v(10), v(11), 4, v(10))
        self.s_lshl_b32(s(sT + 6), s(sstep0), 5); self.s_add_u32(s(sT + 6), s(sT + 6), s(sbase)); self.v_add_u32(v(8), s(sT + 6), v(10))
        self.v_and_b32(v(10), 31, v(vLANE)); self.v_sub_u32(v(10), 31, v(10)); self.v_mul_u32_u24(v(10), 5, v(10))
        self.v_add_u32(v(10), v(10), v(11)); self.v_lshlrev_b32(v(10), 4, v(10))
        self.smul(sT + 6, sstep0, 40); self.s_add_u32(s(sT + 6), s(sT + 6), s(sbase)); self.s_add_u32(s(sT + 6), s(sT + 6), 16640)
        self.v_add_u32(v(9), s(sT + 6), v(10))

    def conv1_run(self):
        D, E, R = self.CD, self.CE, self.CR
        sB, sCHN, sHW = sU + 2, sU + 1, sU + 5
        self.s_lshr_b32(s(sU), s(sW), 1); self.smul(sB, sU, self.CH_SZ); self.s_add_u32(s(sB), s(sB), L_K)
        self.smul(sT, sG, 80); self.s_lshl_b32(s(sCHN), s(sS), 1); self.s_add_u32(s(sCHN), s(sCHN), s(sT)); self.s_add_u32(s(sCHN), s(sCHN), s(sU))
        self.s_and_b32(s(sHW), s(sW), 1)
        self.v_and_b32(v(8), 127, v(vTID)); self.v_lshlrev_b32(v(9), 4, v(8))
        self.v_add_u32(v(11), s(sB), v(9))
        self.ds_write_b128(v(11), v(vZERO, 4), mods=f"offset:{16640 + 320 * 16}")
        self.v_and_b32(v(16), 63, v(8)); self.v_lshlrev_b32(v(16), 4, v(16)); self.v_add_u32(v(16), s(sB), v(16))
        self.ds_write_b128(v(16), v(vZERO, 4), mods=f"offset:{16640 + 448 * 16}")
        self.v_add_u32(v(11), 64, v(11))
        self.v_lshrrev_b32(v(12), 2, v(8)); self.v_add_u32(v(12), v(12), v(8)); self.v_lshlrev_b32(v(12), 4, v(12)); self.v_add_u32(v(12), s(sB), v(12))
        self.wo_addr(); self.pretouch_addr(13)
        self.v_mov_b32(v(229), v(13))
        if self.o.get("fine"): self.stamp("c1ld")
        for i in range(2): self.conv_copies(11, D + 8 * i, E + 4 * i, 2048 * i)
        self.wait(vm=0)
        self.ds_write_b128(v(12), v(R, 4), mods="offset:16640"); self.ds_write_b128(v(12), v(R + 4, 4), mods=f"offset:{16640 + 160 * 16}")
        lab = self.newlabel("hd")
        self.s_cmp_lg_u32(s(sHW), 0); self.s_cbranch_scc1(lab)
        self.conv_head(sB, sCHN, D, self.CDV)
        self.label(lab)
        LO, HI, F = 16, 32, 96
        self.s_lshl_b32(s(sT + 5), s(sHW), 5)
        self.conv_addr(sB, sT + 5)
        self.wait(lg=0); self.s_barrier()
        if self.o.get("fine"): self.stamp("c1fill")
        self.zero16(LO); self.zero16(HI)
        def rd(m):
            f = F + 16 * (m & 3); oa = 32 * m; ob = 80 * (m >> 1) + 32 * (m & 1)
            return [lambda: self.ds_read_b64(v(f, 2), v(8), mods=f"offset:{oa}"), lambda: self.ds_read_b64(v(f + 2, 2), v(8), mods=f"offset:{oa + 8}"),
                    lambda: self.ds_read_b128(v(f + 8, 4), v(9), mods=f"offset:{ob + 2560}"), lambda: self.ds_read_b128(v(f + 12, 4), v(9), mods=f"offset:{ob}"),
                    lambda: self.ds_read_b64(v(f + 4, 2), v(8), mods=f"offset:{oa + 2048}"), lambda: self.ds_read_b64(v(f + 6, 2), v(8), mods=f"offset:{oa + 2056}")]
        self.wo_srd()
        for m in (0, 1):
            for f_ in rd(m): f_()
        for m in range(32):
            f = F + 16 * (m & 3)
            nx = rd(m + 2) if m + 2 < 32 else [lambda: None] * 6
            self.wait(lg=6 if m < 31 else 0)
            self.v_mfma_f32_32x32x16_bf16(v(LO, 16), v(f, 4), v(f + 8, 4), v(LO, 16)); nx[0](); nx[1]()
            self.v_mfma_f32_32x32x16_bf16(v(HI, 16), v(f, 4), v(f + 12, 4), v(HI, 16)); nx[2](); nx[3]()
            self.v_mfma_f32_32x32x16_bf16(v(HI, 16), v(f + 4, 4), v(f + 8, 4), v(HI, 16)); nx[4](); nx[5]()
            self.wo_issue_one(m)
        self.global_load_dword(v(230), v(229), s(sWS, 2))
        if self.o.get("fine"): self.stamp("c1main")
        XB = L_HK
        self.s_lshl_b32(s(sT + 6), s(sW), 12); self.s_add_u32(s(sT + 6), s(sT + 6), XB); self.v_add_u32(v(10), s(sT + 6), v(vL16))
        self.s_xor_b32(s(sT + 7), s(sW), 1); self.s_lshl_b32(s(sT + 7), s(sT + 7), 12); self.s_add_u32(s(sT + 7), s(sT + 7), XB)
        self.v_add_u32(v(11), s(sT + 7), v(vL16))
        self.s_lshl_b32(s(sT + 6), s(sW), 11); self.s_add_u32(s(sT + 6), s(sT + 6), XB + 16384)
        self.v_and_b32(v(12), 31, v(vLANE)); self.v_lshlrev_b32(v(12), 6, v(12))
        self.v_lshrrev_b32(v(13), 5, v(vLANE)); self.v_lshl_add_u32(v(12), v(13), 3, v(12)); self.v_add_u32(v(12), s(sT + 6), v(12))
        self.v_add_u32(v(13), s(sT + 6), v(vL16))
        self.s_lshl_b32(s(sT + 6), s(sHW), 11); self.s_lshl_b32(s(sT + 7), s(sCHN), 12); self.s_add_u32(s(sT + 6), s(sT + 6), s(sT + 7))
        self.s_add_u32(s(sT + 6), s(sT + 6), hex(OFF_Y))
        l1, l2 = self.newlabel("cx"), self.newlabel("cy")
        self.s_cmp_lg_u32(s(sHW), 0); self.s_cbranch_scc1(l1)
        for role, (keep, send) in enumerate(((LO, HI), (HI, LO))):
            if role: self.label(l1)
            for q in range(4): self.ds_write_b128(v(10), v(send + 4 * q, 4), mods=f"offset:{1024 * q}")
            self.wait(lg=0); self.s_barrier()
            for q in range(4): self.ds_read_b128(v(F + 4 * q, 4), v(11), mods=f"offset:{1024 * q}")
            for q in range(4):
                self.wait(lg=3 - q)
                for r in (0, 2): self.v_pk_add_f32(v(keep + 4 * q + r, 2), v(keep + 4 * q + r, 2), v(F + 4 * q + r, 2))
                self.pack(F + 16 + 2 * q, keep + 4 * q, 2)
                if q == 2: pass
            for q in range(4): self.ds_write_b64(v(12), v(F + 16 + 2 * q, 2), mods=f"offset:{16 * q}")
            if role == 0: self.s_branch(l2)
        self.label(l2)
        self.v_add_u32(v(10), s(sT + 6), v(vL16))
        self.ds_read_b128(v(LO, 4), v(13)); self.ds_read_b128(v(LO + 4, 4), v(13), mods="offset:1024")
        self.wait(lg=0)
        self.global_store_dwordx4(v(10), v(LO, 4), s(sWS, 2), mods="sc1")
        self.global_store_dwordx4(v(10), v(LO + 4, 4), s(sWS, 2), mods="offset:1024 sc1")

    def conv2_run(self):
        D, E, R = self.C2D, self.C2E, self.C2R
        sB, sCHN, sPART = sU + 2, sU + 1, sU + 5
        self.s_mov_b32(s(sB), L_K)
        self.smul(sT, sG, 80); self.s_lshr_b32(s(sCHN), s(sS), 1); self.s_add_u32(s(sCHN), s(sCHN), s(sT)); self.s_add_u32(s(sCHN), s(sCHN), 64)
        self.s_and_b32(s(sPART), s(sS), 1)
        self.v_lshlrev_b32(v(9), 4, v(vTID)); self.v_add_u32(v(11), L_K, v(9))
        self.v_min_u32(v(16), 191, v(vTID)); self.v_lshlrev_b32(v(16), 4, v(16)); self.v_add_u32(v(16), L_K, v(16))
        self.ds_write_b128(v(16), v(vZERO, 4), mods=f"offset:{16640 + 320 * 16}")
        self.v_add_u32(v(11), 64, v(11))
        self.v_lshrrev_b32(v(12), 2, v(vTID)); self.v_add_u32(v(12), v(12), v(vTID)); self.v_lshlrev_b32(v(12), 4, v(12)); self.v_add_u32(v(12), L_K, v(12))
        self.conv_copies(11, D, E, 0)
        self.ds_write_b128(v(12), v(R, 4), mods="offset:16640")
        lab = self.newlabel("hd")
        self.s_cmp_lg_u32(s(sW), 0); self.s_cbranch_scc1(lab)
        self.conv_head(sB, sCHN, D, self.C2DV)
        self.label(lab)
        AC, F = 16, 96
        self.s_lshl_b32(s(sT + 5), s(sW), 4)
        self.conv_addr(sB, sT + 5)
        self.wait(lg=0); self.s_barrier()
        self.zero16(AC)
        def reads(st, par, extra, hi):
            f = F + 16 * st
            oa, ob = 32 * par + extra * 64, 32 * par + extra * 80
            self.ds_read_b64(v(f, 2), v(8), mods=f"offset:{oa}"); self.ds_read_b64(v(f + 2, 2), v(8), mods=f"offset:{oa + 8}")
            self.ds_read_b128(v(f + 8, 4), v(9), mods=f"offset:{ob + 2560}")
            if hi:
                self.ds_read_b128(v(f + 12, 4), v(9), mods=f"offset:{ob}")
                self.ds_read_b64(v(f + 4, 2), v(8), mods=f"offset:{oa + 2048}"); self.ds_read_b64(v(f + 6, 2), v(8), mods=f"offset:{oa + 2056}")
        def mm(st, hi):
            f = F + 16 * st
            if hi:
                self.v_mfma_f32_32x32x16_bf16(v(AC, 16), v(f, 4), v(f + 12, 4), v(AC, 16))
                self.v_mfma_f32_32x32x16_bf16(v(AC, 16), v(f + 4, 4), v(f + 8, 4), v(AC, 16))
            else:
                self.v_mfma_f32_32x32x16_bf16(v(AC, 16), v(f, 4), v(f + 8, 4), v(AC, 16))
        lhi, ldone = self.newlabel("c2hi"), self.newlabel("c2d")
        self.s_mov_b32(s(sT + 6), 8)
        self.s_cmp_lg_u32(s(sPART), 0); self.s_cbranch_scc1(lhi)
        for hi in (0, 1):
            if hi: self.label(lhi)
            n = 6 if hi else 3
            reads(0, 0, 0, hi)
            lp = self.newlabel("cv")
            self.label(lp)
            reads(1, 1, 0, hi); self.wait(lg=n); mm(0, hi)
            reads(0, 0, 1, hi); self.wait(lg=n); mm(1, hi)
            self.v_add_u32(v(8), 64, v(8)); self.v_add_u32(v(9), 80, v(9))
            self.s_sub_u32(s(sT + 6), s(sT + 6), 1); self.s_cmp_lg_u32(s(sT + 6), 0); self.s_cbranch_scc1(lp)
            if not hi: self.s_branch(ldone)
        self.label(ldone)
        XB = L_HK
        self.s_lshl_b32(s(sT + 6), s(sW), 12); self.s_add_u32(s(sT + 6), s(sT + 6), XB); self.v_add_u32(v(10), s(sT + 6), v(vL16))
        self.s_lshl_b32(s(sT + 6), s(sW), 10); self.s_add_u32(s(sT + 6), s(sT + 6), XB); self.v_add_u32(v(11), s(sT + 6), v(vL16))
        self.v_and_b32(v(12), 31, v(vLANE)); self.v_lshlrev_b32(v(12), 6, v(12))
        self.v_lshrrev_b32(v(13), 5, v(vLANE)); self.v_lshl_add_u32(v(12), v(13), 3, v(12))
        self.s_lshl_b32(s(sT + 6), s(sW), 4); self.s_add_u32(s(sT + 6), s(sT + 6), XB + 16384); self.v_add_u32(v(12), s(sT + 6), v(12))
        for j in range(4): self.ds_write_b128(v(10), v(AC + 4 * j, 4), mods=f"offset:{1024 * j}")
        self.v_lshlrev_b32(v(13), 4, v(vTID)); self.v_add_u32(v(10), XB + 16384, v(13))
        self.s_lshl_b32(s(sT + 6), s(sPART), 11); self.s_lshl_b32(s(sT + 7), s(sCHN), 12); self.s_add_u32(s(sT + 6), s(sT + 6), s(sT + 7))
        self.s_add_u32(s(sT + 6), s(sT + 6), hex(OFF_Y)); self.v_add_u32(v(13), s(sT + 6), v(13))
        self.wait(lg=0); self.s_barrier()
        for j in range(4): self.ds_read_b128(v(F + 4 * j, 4), v(11), mods=f"offset:{4096 * j}")
        self.wait(lg=0)
        for r in (0, 2):
            self.v_pk_add_f32(v(F + r, 2), v(F + r, 2), v(F + 4 + r, 2)); self.v_pk_add_f32(v(F + 8 + r, 2), v(F + 8 + r, 2), v(F + 12 + r, 2))
        for r in (0, 2): self.v_pk_add_f32(v(F + r, 2), v(F + r, 2), v(F + 8 + r, 2))
        self.pack(F + 16, F, 2)
        self.ds_write_b64(v(12), v(F + 16, 2))
        self.wait(lg=0); self.s_barrier()
        lab = self.newlabel("c2s")
        self.s_cmp_ge_u32(s(sW), 2); self.s_cbranch_scc1(lab)
        self.ds_read_b128(v(16, 4), v(10))
        self.wait(lg=0)
        self.global_store_dwordx4(v(13), v(16, 4), s(sWS, 2), mods="sc1")
        self.label(lab)

    def attn_local(self):
        sKb, sVb, sN, sMI = sU + 6, sU + 7, sU + 8, sU + 9
        self.s_mov_b32(s(sKb), L_K); self.s_mov_b32(s(sVb), L_V)
        self.s_sub_u32(s(sN), 8, s(sW)); self.s_sub_u32(s(sMI), 7, s(sW))
        self.attn_seq(self.QB, self.OB, sKb, sVb, sN, sMI)
        self.halo_publish()
        self.s_add_u32(s(sN), s(sW), 1); self.s_mov_b32(s(sMI), s(sW))
        self.attn_seq(self.QA, self.OA, sKb, sVb, sN, sMI)

    def halo_prep(self):
        self.mask_gen(True)
        self.smul(sT, sW, 7168); self.v_add_u32(v(12), s(sT), v(vL16)); self.v_add_u32(v(14), 4096, v(12))
        self.v_mov_b32(v(13), s(sHFI))
    HR = 128
    def halo_issue(self):
        self.s_mov_b64(s(sT + 2, 2), -1)
        self.poll2(sWS, 13, sHEXP, sT + 2)
        for j in range(7):
            self.global_load_dwordx4(v(self.HR + 4 * j, 4), v(12 if j < 4 else 14), s(sHP, 2), mods=f"offset:{(j % 4) * 1024} sc1")
    def halo_land(self, younger):
        self.v_add_u32(v(9), L_HK, v(12))
        for j in range(7):
            self.wait(vm=6 - j + younger)
            self.ds_write_b128(v(9), v(self.HR + 4 * j, 4), mods=f"offset:{j * 1024}")
    def attn_halo(self):
        sKb, sVb, sN, sMI = sU + 6, sU + 7, sU + 8, sU + 9
        self.s_mov_b32(s(sMI), 0)
        self.smul(sKb, sW, 1536); self.s_add_u32(s(sKb), s(sKb), L_HK)
        self.s_lshl_b32(s(sVb), s(sW), 11); self.s_add_u32(s(sVb), s(sVb), L_HV)
        self.s_sub_u32(s(sN), 8, s(sW))
        self.attn_seq(self.QA, self.OA, sKb, sVb, sN, sMI)
        self.s_sub_u32(s(sT), 7, s(sW))
        self.smul(sKb, sT, 1536); self.s_add_u32(s(sKb), s(sKb), L_HK)
        self.s_lshl_b32(s(sVb), s(sT), 11); self.s_add_u32(s(sVb), s(sVb), L_HV)
        self.s_add_u32(s(sN), s(sW), 1)
        self.attn_seq(self.QB, self.OB, sKb, sVb, sN, sMI)

    def range_check(self):
        self.s_mov_b32(s(sT), f32(2.0 ** -64)); self.s_mov_b32(s(sT + 1), f32(2.0 ** 64))
        ret = []
        for blk, O in ((0, self.OA), (1, self.OB)):
            lf, lr = self.newlabel("fb"), self.newlabel("fbr")
            self.v_cmp_nle_f32("vcc", s(sT), v(O + 12))
            self.v_cmp_nge_f32(s(sM0, 2), s(sT + 1), v(O + 12))
            self.s_or_b64("vcc", "vcc", s(sM0, 2))
            self.s_cbranch_scc1(lf)
            self.label(lr)
            self.fallbacks.append((lf, lr, blk))
    def emit_fallbacks(self):
        FQ, FO, FM = 96, 104, 120
        S, P, K0, K1, V0, V1 = 16, 48, 56, 60, 62, 66
        sB, sPH, sN, sMI, sKb, sVb, sI, sPASS = sU + 8, sU + 9, sU + 10, sU + 11, sU + 12, sU + 13, sU + 14, sU + 15
        body = self.newlabel("fbody"); done = self.newlabel("fdone")
        for lf, lr, blk in self.fallbacks:
            Q = self.QA if blk == 0 else self.QB
            self.label(lf)
            for j in range(6): self.v_mov_b32(v(FQ + j), v(Q + j))
            if blk == 0: self.s_mov_b32(s(sB), s(sW))
            else: self.s_sub_u32(s(sB), 7, s(sW))
            self.s_mov_b32(s(sT + 8), blk)
            self.s_branch(body)
        self.label(body)
        self.v_add_u32(v(8), L_K, v(vL16))
        self.s_mov_b32(s(sI), 28)
        lp = self.newlabel("frl")
        self.label(lp)
        self.global_load_dwordx4(v(136, 4), v(8), s(sHB, 2), mods="sc1")
        self.wait(vm=0)
        self.ds_write_b128(v(8), v(136, 4))
        self.v_add_u32(v(8), 1024, v(8))
        self.s_sub_u32(s(sI), s(sI), 1); self.s_cmp_lg_u32(s(sI), 0); self.s_cbranch_scc1(lp)
        self.wait(lg=0)
        for r in range(16): self.v_mov_b32(v(FM + r), f32(-3.0e38))
        for r in range(16): self.v_mov_b32(v(FO + r), 0)
        self.s_mov_b32(s(sPASS), 0)
        lpass, lphase, litem, lnm, ljoin, lacc, lnext, lpe = [self.newlabel(x) for x in ("fp", "fph", "fi", "fn", "fj", "fa", "fx", "fe")]
        self.label(lpass)
        self.s_mov_b32(s(sPH), 0)
        self.label(lphase)
        l1, l2 = self.newlabel("f"), self.newlabel("f")
        self.s_cmp_lg_u32(s(sPH), 0); self.s_cbranch_scc1(l1)
        self.mask_gen(False)
        self.s_mov_b32(s(sKb), L_K); self.s_mov_b32(s(sVb), L_V); self.s_add_u32(s(sN), s(sB), 1); self.s_mov_b32(s(sMI), s(sB))
        self.s_branch(l2)
        self.label(l1)
        self.mask_gen(True)
        self.smul(sKb, sB, 1536); self.s_add_u32(s(sKb), s(sKb), L_HK); self.s_lshl_b32(s(sVb), s(sB), 11); self.s_add_u32(s(sVb), s(sVb), L_HV)
        self.s_sub_u32(s(sN), 8, s(sB)); self.s_mov_b32(s(sMI), 0)
        self.label(l2)
        self.v_add_u32(v(8), s(sKb), v(vL16)); self.v_add_u32(v(9), s(sKb), v(vL8)); self.v_add_u32(v(10), s(sVb), v(vL16))
        self.s_mov_b32(s(sI), 0)
        self.label(litem)
        self.ds_read_b128(v(K0, 4), v(8)); self.ds_read_b64(v(K1, 2), v(9), mods="offset:1024")
        self.ds_read_b128(v(V0, 4), v(10)); self.ds_read_b128(v(V1, 4), v(10), mods="offset:1024")
        self.wait(lg=0)
        self.s_cmp_eq_u32(s(sI), s(sMI)); self.s_cbranch_scc0(lnm)
        self.v_mfma_f32_32x32x16_bf16(v(S, 16), v(K0, 4), v(FQ, 4), v(self.MSK, 16))
        self.s_branch(ljoin)
        self.label(lnm)
        self.v_mfma_f32_32x32x16_bf16(v(S, 16), v(K0, 4), v(FQ, 4), 0)
        self.label(ljoin)
        self.v_mfma_f32_32x32x8_bf16(v(S, 16), v(K1, 2), v(FQ + 4, 2), v(S, 16))
        self.s_cmp_lg_u32(s(sPASS), 0); self.s_cbranch_scc1(lacc)
        for r in range(16): self.v_max_f32(v(FM + r), v(FM + r), v(S + r))
        self.s_branch(lnext)
        self.label(lacc)
        for r in range(16):
            self.v_sub_f32(v(S + r), v(S + r), v(FM)); self.v_exp_f32(v(S + r), v(S + r))
        self.pack(P, S, 8)
        self.v_mfma_f32_32x32x16_bf16(v(FO, 16), v(V0, 4), v(P, 4), v(FO, 16))
        self.v_mfma_f32_32x32x16_bf16(v(FO, 16), v(V1, 4), v(P + 4, 4), v(FO, 16))
        self.label(lnext)
        self.v_add_u32(v(8), 1536, v(8)); self.v_add_u32(v(9), 1536, v(9)); self.v_add_u32(v(10), 2048, v(10))
        self.s_add_u32(s(sI), s(sI), 1); self.s_cmp_lt_u32(s(sI), s(sN)); self.s_cbranch_scc1(litem)
        self.s_cmp_eq_u32(s(sG), 0); self.s_cbranch_scc1(lpe)
        self.s_add_u32(s(sPH), s(sPH), 1); self.s_cmp_lt_u32(s(sPH), 2); self.s_cbranch_scc1(lphase)
        self.label(lpe)
        self.s_cmp_lg_u32(s(sPASS), 0); self.s_cbranch_scc1(done)
        for r in range(1, 16): self.v_max_f32(v(FM), v(FM), v(FM + r))
        self.v_mov_b32(v(FM + 1), v(FM)); self.v_permlane32_swap_b32(v(FM), v(FM + 1)); self.v_max_f32(v(FM), v(FM), v(FM + 1))
        self.s_mov_b32(s(sPASS), 1)
        self.s_branch(lpass)
        self.label(done)
        la, lb = self.newlabel("fo"), self.newlabel("fo")
        self.s_cmp_lg_u32(s(sT + 8), 0); self.s_cbranch_scc1(la)
        for r in range(16): self.v_mov_b32(v(self.OA + r), v(FO + r))
        self.s_branch(self.fallbacks[0][1])
        self.label(la)
        for r in range(16): self.v_mov_b32(v(self.OB + r), v(FO + r))
        self.s_branch(self.fallbacks[1][1])

    vOA = 160
    def o_prep(self):
        self.s_lshr_b32(s(sT), s(sS), 4); self.s_and_b32(s(sT + 1), s(sS), 15)
        self.s_lshr_b32(s(sT + 2), s(sT + 1), 1)
        self.s_cmp_ge_u32(s(sT + 2), 5); self.s_cselect_b32(s(sT + 5), 1, 0); self.s_add_u32(s(sT + 5), s(sT + 5), s(sT)); self.smul(sT + 5, sT + 5, 5)
        self.s_add_u32(s(sT + 2), s(sT + 2), s(sT + 5)); self.s_lshl_b32(s(sT + 2), s(sT + 2), 10)
        self.s_and_b32(s(sT + 3), s(sT + 1), 1); self.s_lshl_b32(s(sT + 4), s(sT + 3), 9); self.s_add_u32(s(sT + 2), s(sT + 2), s(sT + 4))
        self.smul(sT, sT, 5); self.s_lshr_b32(s(sT + 4), s(sT + 1), 3); self.s_add_u32(s(sT + 4), s(sT + 4), s(sT)); self.s_add_u32(s(sT + 4), s(sT + 4), 13)
        self.s_lshl_b32(s(sT + 4), s(sT + 4), 10)
        self.s_bfe_u32(s(sT + 5), s(sT + 1), (2 << 16) | 1); self.s_lshl_b32(s(sT + 5), s(sT + 5), 8); self.s_add_u32(s(sT + 4), s(sT + 4), s(sT + 5))
        self.s_lshl_b32(s(sT + 3), s(sT + 3), 3); self.s_add_u32(s(sT + 4), s(sT + 4), s(sT + 3))
        self.v_bfe_u32(v(4), v(vLANE), 4, 1); self.v_mul_u32_u24(v(4), 20480, v(4))
        self.v_and_b32(v(5), 15, v(vLANE)); self.v_lshl_add_u32(v(4), v(5), 4, v(4))
        self.v_lshrrev_b32(v(5), 5, v(vLANE)); self.v_lshl_add_u32(v(5), v(5), 8, v(4))
        for blk in range(2):
            if blk == 0: self.s_mov_b32(s(sT + 6), s(sW))
            else: self.s_sub_u32(s(sT + 6), 7, s(sW))
            self.smul(sT + 6, sT + 6, 40960)
            self.s_add_u32(s(sT + 7), s(sT + 6), s(sT + 2)); self.s_add_u32(s(sT + 6), s(sT + 6), s(sT + 4))
            self.v_add_u32(v(self.vOA + 2 * blk), s(sT + 7), v(5)); self.v_add_u32(v(self.vOA + 2 * blk + 1), s(sT + 6), v(4))
    def o_store(self):
        lst = []
        self.v_rcp_f32(v(8), v(self.OA + 12)); self.v_rcp_f32(v(10), v(self.OB + 12))
        self.v_mov_b32(v(9), v(8)); self.v_mov_b32(v(11), v(10))
        for blk, O in ((0, self.OA), (1, self.OB)):
            for r in range(0, 12, 2): self.v_pk_mul_f32(v(O + r, 2), v(O + r, 2), v(8 + 2 * blk, 2))
            P = 48 + 8 * blk
            self.pack(P, O, 6)
            va = self.vOA + 2 * blk
            lst += [self.store(16, v(va), v(P, 4), s(sOB, 2)), ("exec", 0xffffffff), self.store(8, v(va + 1), v(P + 4, 2), s(sOB, 2)), ("exec", -1)]
        self.stores(lst)

    def prestore(self):
        lst = []
        for blk in range(2):
            va = self.vOA + 2 * blk
            lst += [self.store(16, v(va), v(vZERO, 4), s(sOB, 2)), ("exec", 0xffffffff), self.store(8, v(va + 1), v(vZERO, 2), s(sOB, 2)), ("exec", -1)]
        self.op_prep()
        lst += [self.store(16, v(12), v(vZERO, 4), s(sAB, 2)), self.store(16, v(12), v(vZERO, 4), s(sAB, 2), 512),
                ("exec", 0x0000ffff0000ffff), self.store(16, v(12), v(vZERO, 4), s(sAB, 2), 1024), ("exec", -1)]
        self.stores(lst)

    def op_prep(self):
        self.s_lshr_b32(s(sU), s(sS), 3); self.s_lshl_b32(s(sU), s(sU), 2)
        self.s_and_b32(s(sU + 1), s(sW), 1); self.s_lshl_b32(s(sU + 1), s(sU + 1), 1); self.s_add_u32(s(sU), s(sU), s(sU + 1))
        self.s_lshr_b32(s(sU + 1), s(sW), 1)
        self.s_add_u32(s(sU + 2), s(sU), s(sU + 1)); self.s_xor_b32(s(sU + 3), s(sU + 2), 1)
        self.smul(sU + 4, sU + 1, 10240)
        for j, sr in ((0, sU + 2), (1, sU + 3)):
            self.smul(sU + 5, sr, 20480); self.s_add_u32(s(sU + 5), s(sU + 5), s(sU + 4))
            self.v_add_u32(v(8 + j), s(sU + 5), v(vL16))
        self.smul(sU + 5, sW, 5120); self.s_add_u32(s(sU + 5), s(sU + 5), L_K); self.v_add_u32(v(10), s(sU + 5), v(vL16))
        self.s_xor_b32(s(sU + 5), s(sW), 2); self.smul(sU + 5, sU + 5, 5120); self.s_add_u32(s(sU + 5), s(sU + 5), L_K)
        self.v_add_u32(v(11), s(sU + 5), v(vL16))
        self.s_lshl_b32(s(sU + 5), s(sU + 2), 1); self.smul(sU + 5, sU + 5, 10240)
        self.s_and_b32(s(sU + 6), s(sS), 7); self.smul(sU + 6, sU + 6, 1280); self.s_add_u32(s(sU + 5), s(sU + 5), s(sU + 6))
        self.v_bfe_u32(v(12), v(vLANE), 3, 1); self.v_mul_u32_u24(v(12), 10240, v(12))
        self.v_and_b32(v(13), 7, v(vLANE)); self.v_lshl_add_u32(v(12), v(13), 4, v(12))
        self.v_bfe_u32(v(13), v(vLANE), 4, 1); self.v_lshl_add_u32(v(12), v(13), 8, v(12))
        self.v_lshrrev_b32(v(13), 5, v(vLANE)); self.v_lshl_add_u32(v(12), v(13), 7, v(12))
        self.v_add_u32(v(12), s(sU + 5), v(12))
        self.v_mov_b32(v(66), 0); self.v_mov_b32(v(67), 0)
        for j in range(2): self.v_add_u32(v(68 + j), 4096, v(8 + j)); self.v_add_u32(v(70 + j), 8192, v(8 + j))
    def op_run(self):
        OF, AC, P = 96, 16, 56
        LA = 4
        def ld(kl, j):
            va = (8, 68, 70)[kl // 4] + j
            self.global_load_dwordx4(v(OF + 8 * kl + 4 * j, 4), v(va), s(sOB, 2), mods=f"offset:{(kl % 4) * 1024} sc1")
        for kl in range(LA): ld(kl, 1); ld(kl, 0)
        for kl in range(10):
            issued = 2 * min(10, kl + LA)
            for j in (1, 0):
                self.wait(vm=issued - 2 * kl - (1 if j == 1 else 2))
                for ct in range(5):
                    d = AC + 20 * j + 4 * ct
                    self.v_mfma_f32_16x16x32_bf16(v(d, 4), a((kl * 5 + ct) * 4, 4), v(OF + 8 * kl + 4 * j, 4), v(d, 4) if kl else 0)
                    if ct == 1 and kl + LA < 10:
                        ld(kl + LA, j); issued += 1
        if self.o.get("fine2"): self.stamp("op_mm")
        for ct in range(5): self.ds_write_b128(v(10), v(AC + 20 + 4 * ct, 4), mods=f"offset:{1024 * ct}")
        self.wait(lg=0); self.s_barrier()
        if self.o.get("fine2"): self.stamp("op_x")
        for ct in range(5): self.ds_read_b128(v(OF + 4 * ct, 4), v(11), mods=f"offset:{1024 * ct}")
        for ct in range(5):
            self.wait(lg=4 - ct)
            for r in (0, 2): self.v_pk_add_f32(v(AC + 4 * ct + r, 2), v(AC + 4 * ct + r, 2), v(OF + 4 * ct + r, 2))
            self.pack(P + 2 * ct, AC + 4 * ct, 2)
        for q in range(3):
            self.v_permlane16_swap_b32(v(P + 4 * q), v(P + 4 * q + 2)); self.v_permlane16_swap_b32(v(P + 4 * q + 1), v(P + 4 * q + 3))
        self.stores([self.store(16, v(12), v(P, 4), s(sAB, 2)), self.store(16, v(12), v(P + 4, 4), s(sAB, 2), 512),
                     ("exec", 0x0000ffff0000ffff), self.store(16, v(12), v(P + 8, 4), s(sAB, 2), 1024), ("exec", -1)])

    XF, AF, AP, UU, ST, YF = 16, 64, 96, 112, 40, 136
    def p4_prep(self):
        AP = self.AP
        self.smul(sU, sS, 10240); self.s_lshl_b32(s(sU + 1), s(sW), 5); self.s_add_u32(s(sU), s(sU), s(sU + 1))
        self.v_lshrrev_b32(v(8), 1, v(vLANE)); self.v_lshlrev_b32(v(8), 7, v(8))
        self.v_and_b32(v(9), 1, v(vLANE)); self.v_lshl_add_u32(v(8), v(9), 4, v(8)); self.v_add_u32(v(8), s(sU), v(8))
        self.v_add_u32(v(9), 4096, v(8)); self.v_add_u32(v(10), 8192, v(8))
        for j in range(8, 12): self.v_mov_b32(v(AP + j), 0)
        self.unpack(self.XF, vX, 12)
        self.unpack(self.YF, vY, 12)
    def p4_run(self):
        XF, AF, AP, UU, ST, YF = self.XF, self.AF, self.AP, self.UU, self.ST, self.YF
        self.global_load_dwordx4(v(AP, 4), v(8), s(sAB, 2), mods="sc1")
        self.global_load_dwordx4(v(AP + 4, 4), v(9), s(sAB, 2), mods="sc1")
        self.setexec(0xffffffff)
        self.global_load_dwordx4(v(AP + 8, 4), v(10), s(sAB, 2), mods="sc1")
        self.setexec(-1)
        for m in range(3):
            self.wait(vm=2 - m)
            self.unpack(AF + 8 * m, AP + 4 * m, 4)
            for j in range(4 * m, 4 * m + 4): self.v_pk_add_f32(v(XF + 2 * j, 2), v(XF + 2 * j, 2), v(AF + 2 * j, 2))
        if self.o.get("fine2"): self.stamp("p4_ld")
        self.ln_stats(XF, ST)
        for j in range(12): self.v_pk_fma_f32(v(UU + 2 * j, 2), v(XF + 2 * j, 2), v(ST, 2), v(ST + 2, 2))
        for j in range(12): self.v_pk_fma_f32(v(XF + 2 * j, 2), v(UU + 2 * j, 2), v(YF + 2 * j, 2), v(XF + 2 * j, 2))
    def p4_z(self):
        XF, ST = self.XF, self.ST
        self.ln_stats(XF, ST)
        for j in range(12): self.v_pk_fma_f32(v(self.UU + 2 * j, 2), v(XF + 2 * j, 2), v(ST, 2), v(ST + 2, 2))
        self.pack(56, self.UU, 12)

    def y_flag(self):
        lab = self.newlabel("ys")
        self.s_cmp_lg_u32(s(sW), 0); self.s_cbranch_scc1(lab)
        self.s_lshl_b32(s(sT), s(2), 7); self.s_add_u32(s(sT), s(sT), hex(OFF_YFL))
        self.s_add_u32(s(sT + 1), s(sTOK), 32)
        self.v_mov_b32(v(4), s(sT)); self.v_mov_b32(v(5), s(sT + 1))
        self.setexec(1); self.global_store_dword(v(4), v(5), s(sWS, 2), mods="sc1"); self.setexec(-1)
        self.label(lab)
    def y_wait2(self):
        self.v_lshlrev_b32(v(8), 7, v(vTID)); self.v_add_u32(v(8), OFF_YFL, v(8))
        self.s_add_u32(s(sT + 1), s(sTOK), 32); self.s_mov_b64(s(sT + 2, 2), -1)
        self.poll2(sWS, 8, sT + 1, sT + 2)
        self.s_barrier()
        lab = self.newlabel("nu")
        self.s_cmp_lg_u32(s(2), 0); self.s_cbranch_scc1(lab)
        self.s_cmp_lg_u32(s(sW), 0); self.s_cbranch_scc1(lab)
        self.v_mov_b32(v(8), OFF_N); self.v_mov_b32(v(9), s(sTOK))
        self.setexec(1); self.global_store_dword(v(8), v(9), s(sWS, 2), mods="sc1"); self.setexec(-1)
        self.label(lab)

    def finish(self):
        self.label("L_END")
        self.s_endpgm()
        self.emit_cold2()
        self.label("L_HOTEND")
        self.emit_cold()
        self.emit_fallbacks()
        self.s_endpgm()

    def build(self):
        self.fallbacks = []
        self.setup2()
        NW1, NW2, NW3 = self.o.get("nw1", 4), self.o.get("nw2", 12), self.o.get("nw3", 20)
        self.issue_x()
        self.v_mov_b32(v(87), OFF_N)
        self.global_load_dword(v(87), v(87), s(sWS, 2), mods="sc1")
        self.w_addr()
        self.w_issue(0, NW1)
        if self.o.get("d2"): self.dstamp(1)
        self.stamp("w1iss")
        for r in range(4): self.v_mov_b32(v(vZERO + r), 0)
        self.v_and_b32(v(vPL), 31, v(vLANE)); self.v_lshlrev_b32(v(vPL), 7, v(vPL))
        self.s_lshl_b32(s(sT), s(sS), 7); self.v_mov_b32(v(vSO), s(sT))
        self.v_mov_b32(v(4), L_CNT); self.ds_write_b32(v(4), v(vZERO))
        self.z_addr(8)
        self.wait(vm=NW1)
        if self.o.get("d2"): self.dstamp(2)
        self.p0_ln()
        self.v_readfirstlane_b32(s(sTOK), v(87))
        self.s_add_u32(s(sTOK), s(sTOK), hex(NONCE_C))
        self.layer_bases2()
        self.stores_sc1(self.z_store_list(56, sZB, 8))
        lab = self.newlabel("xp")
        self.s_cmp_lg_u32(s(sW), 0); self.s_cbranch_scc1(lab)
        self.s_lshl_b32(s(sT), s(sG), 5); self.s_add_u32(s(sT), s(sT), s(sS)); self.s_lshl_b32(s(sT), s(sT), 7); self.s_add_u32(s(sT), s(sT), hex(OFF_XCC))
        self.s_add_u32(s(sT + 1), s(sTOK), s(sXCC)); self.s_add_u32(s(sT + 1), s(sT + 1), 64)
        self.v_mov_b32(v(4), s(sT)); self.v_mov_b32(v(5), s(sT + 1))
        self.setexec(1); self.global_store_dword(v(4), v(5), s(sWS, 2), mods="sc1"); self.setexec(-1)
        self.label(lab)
        self.stamp("z0st")
        if self.o.get("d2"): self.dstamp(3)
        self.w_issue(NW1, NW2)
        if self.o.get("d2"): self.dstamp(4)
        self.wait(vm=NW2 - NW1)
        self.s_barrier()
        lab = self.newlabel("f0")
        self.s_cmp_lg_u32(s(sW), 0); self.s_cbranch_scc1(lab)
        self.v_mov_b32(v(4), s(sEXP))
        self.setexec(1)
        self.global_store_dword(v(vSO), v(4), s(sFZ, 2), mods="sc1")
        self.setexec(-1)
        self.label(lab)
        self.stamp("flags"); self.dstamp(5 if self.o.get("d2") else 1)
        sub = K2(stamps=False, opts=self.o); sub.uid = self.uid + 100000; sub.cold = []; sub.cold2 = []
        sub.w_lds(0, NW1)
        sub.w_zero()
        sub.s_lshl_b32(s(sT + 4), s(sW), 2); sub.lanemask(sM0, s(sT + 4), 4)
        sub.s_sub_u32(s(sT + 4), 28, s(sT + 4)); sub.lanemask(sMZ, s(sT + 4), 4); sub.s_or_b64(s(sMZ, 2), s(sMZ, 2), s(sM0, 2))
        sub.s_mov_b32(s(sMO), -1); sub.s_mov_b32(s(sMO + 1), 0)
        sub.s_lshr_b32(s(sT + 4), s(sS), 3); sub.s_lshl_b32(s(sT + 4), s(sT + 4), 3); sub.lanemask(sMA, s(sT + 4), 8)
        sub.epi_prep(); sub.qkv_addr(); sub.mask_gen(False)
        self.uid = sub.uid
        self.splice_w(sub.items, range(NW2, 32))
        self.code_prefetch(86)
        self.stamp("prep")
        if self.o.get("d2"): self.dstamp(8)
        self.first_flags()
        if self.o.get("d2"): self.dstamp(9)
        self.qkv_zissue()
        if self.o.get("d2"): self.dstamp(10)
        self.w_lds(NW1, 32)
        self.wait(lg=0); self.s_barrier()
        self.stamp("wlds"); self.dstamp(11 if self.o.get("d2") else 2); self._d2ok = False
        self.qkv_init()
        self.s_branch("L_QKV")
        self.label("L_LAYER")
        self.layer_bases2()
        self.epi_prep(); self.mask_gen(False)
        self.qkv_addr(); self.qkv_init()
        self.poll2(sFZ, vPL, sEXP, sMZ)
        self.stamp("zwait")
        self.qkv_zissue()
        self.label("L_QKV")
        self.qkv_run()
        self.stamp("qkv"); self.dstamp(3, True)
        self.epi_run()
        self.stamp("epi")
        lab = self.newlabel("aux0")
        self.s_cmp_lg_u32(s(sL), 0); self.s_cbranch_scc1(lab)
        self.c0_issue()
        self.label(lab)
        self.attn_local()
        self.stamp("local"); self.dstamp(4, True)
        self.o_prep()
        lab = self.newlabel("aux1")
        self.s_cmp_lg_u32(s(sL), 0); self.s_cbranch_scc1(lab)
        self.c0_taps()
        self.c0_compute([])
        self.stamp("c0")
        self.label(lab)
        nohalo = self.newlabel("nohalo")
        self.s_cmp_eq_u32(s(sG), 0); self.s_cbranch_scc1(nohalo)
        self.halo_prep()
        self.halo_issue()
        self.label(nohalo)
        l1path, landed = self.newlabel("l1p"), self.newlabel("landed")
        self.s_cmp_lg_u32(s(sL), 0); self.s_cbranch_scc1(l1path)
        self.c0_tail()
        nh = self.newlabel("nh")
        self.s_cmp_eq_u32(s(sG), 0); self.s_cbranch_scc1(nh)
        self.halo_land(2)
        self.label(nh)
        self.wait(vm=0, lg=0); self.s_barrier()
        self.s_branch(landed)
        self.label(l1path)
        self.s_cmp_eq_u32(s(sG), 0); self.s_cbranch_scc1(landed)
        self.halo_land(0)
        self.wait(lg=0); self.s_barrier()
        self.label(landed)
        self.stamp("halof")
        lab = self.newlabel("aux1a")
        self.s_cmp_lg_u32(s(sL), 0); self.s_cbranch_scc1(lab)
        l2 = self.newlabel("fr")
        self.s_cmp_lg_u32(s(sW), 0); self.s_cbranch_scc1(l2)
        self.rflag_base(sT); self.s_add_u32(s(sT + 2), s(sTOK), 7); self.v_mov_b32(v(5), s(sT + 2))
        self.setexec(1); self.global_store_dword(v(vSO), v(5), s(sT, 2), mods="sc1"); self.setexec(-1)
        self.label(l2)
        self.conv_h_issue()
        self.label(lab)
        nohalo = self.newlabel("nohalo")
        self.s_cmp_eq_u32(s(sG), 0); self.s_cbranch_scc1(nohalo)
        self.attn_halo()
        self.label(nohalo)
        self.stamp("halo"); self.dstamp(6, True)
        lab = self.newlabel("aux1c")
        self.s_cmp_lg_u32(s(sL), 0); self.s_cbranch_scc1(lab)
        self.rflag_base(sT + 10)
        self.global_load_dword(v(170), v(vPL), s(sT + 10, 2), mods="sc1")
        self.label(lab)
        self.range_check()
        self.o_store()
        lab, l1p = self.newlabel("aux1b"), self.newlabel("aux1p")
        self.s_add_u32(s(sT), s(sEXP), 1); self.v_mov_b32(v(171), s(sT))
        self.s_cmp_lg_u32(s(sL), 0); self.s_cbranch_scc1(l1p)
        ok = self.newlabel("rfok")
        self.wait(vm=4)
        self.s_add_u32(s(sT + 2), s(sTOK), 7)
        self.v_cmp_ne_u32("vcc", s(sT + 2), v(170)); self.s_cmp_eq_u64("vcc", 0); self.s_cbranch_scc1(ok)
        self.rflag_base(sT); self.s_mov_b64(s(sM1, 2), -1)
        self.poll2(sT, vPL, sT + 2, sM1)
        self.label(ok)
        self.conv_r_issue()
        self.wait(vm=3)
        self.s_branch(lab)
        self.label(l1p)
        self.wait(vm=0)
        self.label(lab)
        self.s_barrier()
        self.flag_store(sFO, 171)
        self.stamp("osig")
        lab = self.newlabel("aux2")
        self.s_cmp_lg_u32(s(sL), 0); self.s_cbranch_scc1(lab)
        self.conv1_run()
        self.stamp("conv1")
        self.conv2_run()
        self.stamp("conv2")
        self.wait(vm=3)
        self.wo_stage()
        self.stamp("wo"); self.dstamp(5)
        self.label(lab)
        self.op_prep()
        self.s_add_u32(s(sT + 8), s(sEXP), 1)
        self.poll2(sFO, vPL, sT + 8, sMO)
        self.stamp("owait")
        self.op_run()
        if self.o.get("fine2"): self.stamp("op_st")
        lab, l1p = self.newlabel("ydone"), self.newlabel("yl1")
        self.s_add_u32(s(sT), s(sEXP), 2); self.v_mov_b32(v(176), s(sT))
        self.s_cmp_lg_u32(s(sL), 0); self.s_cbranch_scc1(l1p)
        self.y_wait2()
        self.flag_store(sFA, 176)
        self.stamp("asig"); self.dstamp(7, True)
        self.y_load()
        self.stamp("yld")
        self.s_branch(lab)
        self.label(l1p)
        self.signal2(sFA, 176)
        self.stamp("asig2")
        self.label(lab)
        self.p4_prep()
        self.s_add_u32(s(sT + 8), s(sEXP), 2)
        self.poll2(sFA, vPL, sT + 8, sMA)
        self.stamp("await")
        self.p4_run()
        self.s_cmp_lg_u32(s(sL), 0); self.s_cbranch_scc1("L_FINAL")
        self.z_addr(8)
        self.p4_z()
        self.stores(self.z_store_list(56, sZN, 8))
        if self.o.get("fine2"): self.stamp("p4_st")
        self.pack(vX, self.XF, 12)
        self.s_add_u32(s(sT), s(sEXP), 3); self.v_mov_b32(v(5), s(sT))
        self.signal2(sFN, 5)
        self.stamp("p4")
        self.s_mov_b32(s(sL), 1)
        self.s_branch("L_LAYER")
        self.label("L_FINAL")
        self.pack(vX, self.XF, 12)
        self.out_store()
        if self.o.get("span"):
            self.wait(vm=0); self.stamps = True
        self.stamp("end")
        self.dflush()
        return self.finish()

if __name__ == "__main__":
    import argparse
    ap = argparse.ArgumentParser()
    ap.add_argument("-o", default="k2.s"); ap.add_argument("--stamps", action="store_true")
    ap.add_argument("--slow", action="store_true"); ap.add_argument("-v", action="store_true"); ap.add_argument("--opt", default="")
    a_ = ap.parse_args()
    k = K2(stamps=a_.stamps, opts=dict({"force_slow": a_.slow}, **{x.split("=")[0]: (int(x.split("=")[1]) if "=" in x else 1) for x in a_.opt.split(",") if x}))
    k.build()
    ins = k.fix_all(verbose=a_.v)
    open(a_.o, "w").write(render_file(k))
    n = sum(1 for it in k.items if isinstance(it, Ins))
    print("instructions:", n, "nops inserted:", len(ins), "stamps:", ",".join(k.stamp_names))
```

```python
import sys, math
from asm import *
import kern as B
from kern import (NAME, OFF_N, OFF_XCC, OFF_HFL, OFF_YFL, OFF_Z, OFF_HALO, OFF_O, OFF_A, OFF_R, OFF_Y, OFF_DBG, ZG, HALO_SZ,
                  NONCE_C, L_W, L_WT1, L_K, L_V, L_VS, L_SP, L_HK, L_HV, LDS_BYTES, f32,
                  sX, sWQ, sWO, sBK, sBV, sSH, sSK, sSD, sOUT, sDBG, sWS, sG, sS, sW, sTOK, sMODE, sL, sSRD, sM0, sM1, sT, sTO, sXCC, sU,
                  vTID, vLANE, vL16, vX, vY, render_file)

OFF_FL2 = 0x40000
L_CNT = 135104
sEXP, sHEXP = 34, 35
sFZ, sFO, sFA, sFN = 56, 58, 60, 62
sZB, sOB, sAB, sHB, sHP, sZN = 66, 68, 70, 72, 74, 76
sHFO, sHFI = 78, 79
sMZ, sMO, sMA = 4, 6, 10
vL8, vPL = 3, 15
vZERO = 92
vSO = 6

class K2(B.K):
    def stamp(self, name):
        if not self.stamps: return
        i = self.nstamp; self.nstamp += 1; self.stamp_names.append(name)
        lab = self.newlabel("st")
        self.s_cmp_lg_u32(s(sW), 0); self.s_cbranch_scc1(lab)
        (self.s_memtime if self.o.get("cyc") else self.s_memrealtime)(s(96, 2)); self.wait(lg=0)
        self.s_mov_b64(s(98, 2), "exec"); self.setexec(1)
        self.v_accvgpr_write_b32(a(250), s(96)); self.v_accvgpr_write_b32(a(251), s(97))
        self.s_lshl_b32(s(96), s(2), 9); self.s_add_u32(s(96), s(96), hex(OFF_DBG + 8 * i))
        self.s_lshl_b32(s(97), s(sL), 8); self.s_add_u32(s(96), s(96), s(97))
        self.v_mov_b32(v(7), s(96))
        self.global_store_dwordx2(v(7), a(250, 2), s(sWS, 2))
        self.s_mov_b64("exec", s(98, 2))
        self.label(lab)

    def dstamp(self, i, per_layer=False):
        if not self.o.get("dbgspan"): return
        if self.o.get("d2") and not getattr(self, "_d2ok", True): return
        self.s_memrealtime(s(96, 2)); self.wait(lg=0)
        if per_layer:
            l0, l1 = self.newlabel("dl"), self.newlabel("dl")
            self.s_cmp_lg_u32(s(sL), 0); self.s_cbranch_scc1(l0)
            self.v_accvgpr_write_b32(a(232 + i), s(96)); self.s_branch(l1)
            self.label(l0); self.v_accvgpr_write_b32(a(240 + i), s(96)); self.label(l1)
        else:
            self.v_accvgpr_write_b32(a(232 + i), s(96))
    def dflush(self):
        if not self.o.get("dbgspan"): return
        self.wait(vm=0)
        self._d2ok = True
        self.dstamp(15)
        lab = self.newlabel("ds")
        self.s_cmp_lg_u32(s(sW), 0); self.s_cbranch_scc1(lab)
        self.setexec(1)
        self.v_accvgpr_read_b32(v(8), a(232))
        for i in range(1, 16):
            self.v_accvgpr_read_b32(v(9), a(232 + i)); self.v_sub_u32(v(9), v(9), v(8)); self.v_mov_b32(v(7), 4 * i)
            self.global_atomic_umax(v(7), v(9), s(sDBG, 2))
        self.label(lab)

    def poll2(self, sbase, voff, s_exp, s_mask, vtmp=4):
        lp, dn = self.newlabel("poll"), self.newlabel("polld")
        self.label(lp)
        self.global_load_dword(v(vtmp), v(voff), s(sbase, 2), mods="sc1")
        self.s_cmp_eq_u32(s(sTO), 0); self.s_cbranch_scc1(dn)
        self.s_sub_u32(s(sTO), s(sTO), 1)
        self.wait(vm=0)
        self.v_cmp_ne_u32("vcc", s(s_exp), v(vtmp))
        self.s_and_b64("vcc", "vcc", s(s_mask, 2))
        self.s_cbranch_scc1(lp)
        self.label(dn)
    def flag_store(self, sbase, vval, force_sc1=False):
        lab = self.newlabel("sig")
        self.s_cmp_lg_u32(s(sW), 0); self.s_cbranch_scc1(lab)
        self.setexec(1)
        if force_sc1: self.global_store_dword(v(vSO), v(vval), s(sbase, 2), mods="sc1")
        else: self.stores([self.store(4, v(vSO), v(vval), s(sbase, 2))])
        self.setexec(-1)
        self.label(lab)
    def signal2(self, sbase, vval, force_sc1=False):
        self.wait(vm=0); self.s_barrier()
        self.flag_store(sbase, vval, force_sc1)
    def stores_sc1(self, lst):
        for it in lst:
            if it[0] == "exec": self.setexec(it[1])
            else: self.I(it[0], it[1], it[2], it[3], mods=(it[4] + " sc1").strip())
    def first_flags(self):
        self.s_lshl_b32(s(sT), s(sG), 12); self.s_add_u32(s(sT), s(sT), hex(OFF_XCC))
        self.v_add_u32(v(16), s(sT), v(vPL))
        self.s_add_u32(s(sT + 2), s(sTOK), 64)
        lp, dn = self.newlabel("xpoll"), self.newlabel("xpolld")
        self.label(lp)
        self.global_load_dword(v(4), v(vPL), s(sFZ, 2), mods="sc1")
        self.global_load_dword(v(5), v(16), s(sWS, 2), mods="sc1")
        self.s_cmp_eq_u32(s(sTO), 0); self.s_cbranch_scc1(dn)
        self.s_sub_u32(s(sTO), s(sTO), 1)
        self.wait(vm=0)
        self.v_cmp_ne_u32("vcc", s(sEXP), v(4)); self.s_and_b64(s(sM0, 2), "vcc", s(sMZ, 2))
        self.v_subrev_u32(v(5), s(sT + 2), v(5))
        self.v_cmp_le_u32("vcc", 16, v(5))
        self.s_or_b64("vcc", "vcc", s(sM0, 2)); self.s_cbranch_scc1(lp)
        self.label(dn)
        self.v_cmp_ne_u32("vcc", s(sXCC), v(5))
        self.s_cmp_lg_u64("vcc", 0)
        self.s_cselect_b32(s(sMODE), 1, 0)
        if self.o.get("force_slow"): self.s_mov_b32(s(sMODE), 1)
    sFR = 8
    def rflag_base(self, d):
        self.s_lshl_b32(s(d), s(sG), 12); self.s_add_u32(s(d), s(d), hex(OFF_FL2 + 6 * 8 * 4096))
        self.s_add_u32(s(d), s(d), s(sWS)); self.s_addc_u32(s(d + 1), s(sWS + 1), 0)
    vRF = 5
    def rflag_check(self):
        ok = self.newlabel("rfok")
        self.wait(vm=8)
        self.s_add_u32(s(sT + 2), s(sTOK), 7)
        self.v_cmp_ne_u32("vcc", s(sT + 2), v(self.vRF)); self.s_cmp_eq_u64("vcc", 0); self.s_cbranch_scc1(ok)
        self.rflag_base(sT); self.s_mov_b64(s(sM1, 2), -1)
        self.poll2(sT, vPL, sT + 2, sM1)
        self.label(ok)
    def flagbase(self, d, phase_off_sreg_or_imm):
        self.smul(sT, sL, 3); self.s_add_u32(s(sT), s(sT), phase_off_sreg_or_imm)
        self.s_lshl_b32(s(sT), s(sT), 3); self.s_add_u32(s(sT), s(sT), s(sG)); self.s_lshl_b32(s(sT), s(sT), 12)
        self.base64(d, sWS, sT, OFF_FL2)

    def layer_bases2(self):
        self.s_lshl_b32(s(sT + 4), s(sL), 3); self.s_add_u32(s(sT + 4), s(sT + 4), s(sG))
        self.smul(sT + 1, sG, ZG)
        self.base64(sZB, sWS, sT + 1, OFF_Z); self.base64(sOB, sWS, sT + 1, OFF_O); self.base64(sAB, sWS, sT + 1, OFF_A)
        self.s_mov_b64(s(sZN, 2), s(sZB, 2))
        self.s_lshl_b32(s(sT + 2), s(sT + 4), 5); self.s_add_u32(s(sT + 2), s(sT + 2), s(sS))
        self.s_lshl_b32(s(sHFO), s(sT + 2), 7); self.s_add_u32(s(sHFO), s(sHFO), hex(OFF_HFL))
        self.s_sub_u32(s(sHFI), s(sHFO), 32 * 128)
        self.smul(sT + 2, sT + 2, HALO_SZ)
        self.base64(sHB, sWS, sT + 2, OFF_HALO - L_K)
        self.s_sub_u32(s(sT + 2), s(sT + 2), 32 * HALO_SZ)
        self.s_cmp_eq_u32(s(sG), 0); self.s_cselect_b32(s(sT + 2), 0, s(sT + 2))
        self.base64(sHP, sWS, sT + 2, OFF_HALO)
        self.flagbase(sFZ, 0)
        self.s_add_u32(s(sFO), s(sFZ), 8 * 4096); self.s_addc_u32(s(sFO + 1), s(sFZ + 1), 0)
        self.s_add_u32(s(sFA), s(sFO), 8 * 4096); self.s_addc_u32(s(sFA + 1), s(sFO + 1), 0)
        self.s_add_u32(s(sFN), s(sFA), 8 * 4096); self.s_addc_u32(s(sFN + 1), s(sFA + 1), 0)
        self.smul(sEXP, sL, 3); self.s_add_u32(s(sEXP), s(sEXP), s(sTOK)); self.s_add_u32(s(sEXP), s(sEXP), 1)
        self.s_add_u32(s(sHEXP), s(sTOK), s(sL)); self.s_add_u32(s(sHEXP), s(sHEXP), 16)

    def wave_sum2(self, a_, b_, t0, t1):
        for r in (a_, b_): self.v_add_f32_dpp(v(r), v(r), v(r), mods="quad_perm:[2,3,0,1] row_mask:0xf bank_mask:0xf")
        for r in (a_, b_): self.v_add_f32_dpp(v(r), v(r), v(r), mods="row_ror:4 row_mask:0xf bank_mask:0xf")
        for r in (a_, b_): self.v_add_f32_dpp(v(r), v(r), v(r), mods="row_ror:8 row_mask:0xf bank_mask:0xf")
        self.v_permlane16_swap_b32(v(a_), v(b_)); self.v_add_f32(v(a_), v(a_), v(b_))
        self.v_mov_b32(v(t0), v(a_)); self.v_permlane32_swap_b32(v(a_), v(t0)); self.v_add_f32(v(a_), v(a_), v(t0))
        self.v_mov_b32(v(b_), v(a_)); self.v_permlane16_swap_b32(v(a_), v(b_))

    def setup2(self):
        self.cold = []; self.cold2 = []
        self.s_cmp_ge_u32(s(2), 256); self.s_cbranch_scc1("L_END")
        self.s_load_dwordx4(s(4, 4), s(0, 2), 0); self.s_load_dwordx2(s(8, 2), s(0, 2), 16)
        self.s_load_dwordx8(s(12, 8), s(0, 2), 32); self.s_load_dwordx8(s(20, 8), s(0, 2), 64)
        self.s_getpc_b64(s(100, 2))
        self.label("L_PC")
        self.v_and_b32(v(vLANE), 63, v(vTID)); self.v_lshlrev_b32(v(vL16), 4, v(vLANE)); self.v_lshlrev_b32(v(vL8), 3, v(vLANE))
        self.v_lshrrev_b32(v(4), 6, v(vTID))
        self.s_and_b32(s(sG), s(2), 7); self.s_lshr_b32(s(sS), s(2), 3)
        self.v_readfirstlane_b32(s(sW), v(4))
        self.s_mov_b32(s(sTO), 400000); self.s_mov_b32(s(sMODE), 0); self.s_mov_b32(s(sL), 0)
        self.s_getreg_b32(s(sXCC), "hwreg(HW_REG_XCC_ID, 0, 4)")
        self.x_addr(8)
        self.wait(lg=0)
        if self.o.get("span"):
            self.stamps = True; self.stamp("t0"); self.stamps = False
        self.dstamp(0)
    sPC = 100
    def code_prefetch(self, vd=224):
        self.v_lshlrev_b32(v(5), 7, v(vTID))
        self.v_min_u32(v(5), "L_HOTEND-L_PC-4", v(5))
        self.global_load_dword(v(vd), v(5), s(self.sPC, 2))
    def issue_x(self):
        for j in range(8, 12): self.v_mov_b32(v(vX + j), 0)
        self.global_load_dwordx4(v(vX, 4), v(8), s(sX, 2))
        self.global_load_dwordx4(v(vX + 4, 4), v(8), s(sX, 2), mods="offset:512")
        self.setexec(0xffffffff)
        self.global_load_dwordx4(v(vX + 8, 4), v(8), s(sX, 2), mods="offset:1024")
        self.setexec(-1)

    def w_addr(self):
        self.v_mul_u32_u24(v(8), 5462, v(vLANE)); self.v_lshrrev_b32(v(8), 16, v(8))
        self.v_mul_u32_u24(v(9), 12, v(8)); self.v_sub_u32(v(9), v(vLANE), v(9))
        self.v_lshrrev_b32(v(10), 2, v(9)); self.v_and_b32(v(11), 3, v(vLANE))
        self.smul(sT, sW, 160); self.v_add_u32(v(8), s(sT), v(8))
        self.s_mov_b32(s(sT + 1), 3840); self.v_mul_lo_u32(v(90), s(sT + 1), v(8))
        self.v_mul_u32_u24(v(91), 1280, v(10)); self.v_lshlrev_b32(v(14), 4, v(11)); self.v_add3_u32(v(90), v(90), v(91), v(14))
        self.smul(sT + 2, sS, 40); self.v_add_u32(v(90), s(sT + 2), v(90))
        self.v_lshlrev_b32(v(91), 5, v(10)); self.v_add_u32(v(91), v(91), v(14))
        self.v_cmp_eq_u32("vcc", 2, v(10)); self.v_add_u32(v(5), L_WT1 + 32, v(14)); self.v_cndmask_b32(v(91), v(91), v(5), "vcc")
        self.v_lshlrev_b32(v(5), 4, v(10)); self.v_min_u32(v(5), 24, v(5)); self.v_add_u32(v(5), L_WT1, v(5))
        self.v_cmp_eq_u32("vcc", 2, v(11)); self.v_cndmask_b32(v(91), v(91), v(5), "vcc")
        self.v_lshlrev_b32(v(8), 6, v(8)); self.v_add_u32(v(91), v(91), v(8))
    WM = sum(1 << l for l in range(60) if (l & 3) < 3)
    def w_issue(self, lo, hi):
        self.s_mov_b32(s(sSRD), s(sWQ)); self.s_mov_b32(s(sSRD + 1), s(sWQ + 1))
        self.s_mov_b32(s(sSRD + 2), 640 * 1920 * 2); self.s_mov_b32(s(sSRD + 3), "0x00020000")
        self.setexec(self.WM)
        self.s_mov_b32(s(sT + 3), lo * 5 * 3840)
        for i in range(lo, hi):
            self.buffer_load_dwordx4(a(4 * i, 4), v(90), s(sSRD + 0, 4), s(sT + 3), mods="offen")
            if i < hi - 1: self.s_add_u32(s(sT + 3), s(sT + 3), 5 * 3840)
        self.setexec(-1)
    def w_one(self, i):
        self.s_mov_b32(s(sT + 3), i * 5 * 3840)
        self.setexec(self.WM)
        self.buffer_load_dwordx4(a(4 * i, 4), v(90), s(sSRD + 0, 4), s(sT + 3), mods="offen")
        self.setexec(-1)
    def splice_w(self, items, loads):
        loads = list(loads)
        self.s_mov_b32(s(sSRD), s(sWQ)); self.s_mov_b32(s(sSRD + 1), s(sWQ + 1))
        self.s_mov_b32(s(sSRD + 2), 640 * 1920 * 2); self.s_mov_b32(s(sSRD + 3), "0x00020000")
        n = sum(1 for it in items if isinstance(it, Ins))
        step = max(1, n // (len(loads) + 1))
        cnt = 0; full = True; inbr = set()
        for it in items:
            if isinstance(it, Ins):
                if loads and cnt >= step and full and not inbr:
                    self.w_one(loads.pop(0)); cnt = 0
                if it.ops and it.ops[0] in ("exec", "exec_lo", "exec_hi"):
                    full = (it.op == "s_mov_b64" and it.ops[1] == "-1")
                if it.kind == "branch": inbr.add(it.target)
                cnt += 1
            elif it[0] == "label": inbr.discard(it[1])
            self.items.append(it)
        while loads: self.w_one(loads.pop(0))
    def w_lds(self, lo, hi):
        m128 = sum(1 << l for l in range(60) if (l & 3) < 2); m64 = sum(1 << l for l in range(60) if (l & 3) == 2)
        self.setexec(m128)
        for i in range(lo, hi): self.ds_write_b128(v(91), a(4 * i, 4), mods=f"offset:{320 * i}")
        self.setexec(m64)
        for i in range(lo, hi): self.ds_write_b64(v(91), a(4 * i, 2), mods=f"offset:{320 * i}")
        self.setexec(-1)
    def w_zero(self):
        self.v_lshlrev_b32(v(10), 6, v(vTID)); self.v_add_u32(v(10), L_WT1 + 8, v(10))
        self.ds_write_b64(v(10), v(vZERO, 2)); self.ds_write_b64(v(10), v(vZERO, 2), mods=f"offset:{256 * 64}")
        lab = self.newlabel("wz")
        self.s_cmp_ge_u32(s(sW), 2); self.s_cbranch_scc1(lab)
        self.ds_write_b64(v(10), v(vZERO, 2), mods=f"offset:{512 * 64}")
        self.label(lab)

    def z_addr(self, va):
        self.s_lshr_b32(s(sT), s(sS), 2); self.smul(sT, sT, 40960)
        self.s_and_b32(s(sT + 1), s(sS), 3); self.s_lshl_b32(s(sT + 1), s(sT + 1), 7)
        self.s_add_u32(s(sT), s(sT), s(sT + 1)); self.s_lshl_b32(s(sT + 1), s(sW), 5); self.s_add_u32(s(sT), s(sT), s(sT + 1))
        self.v_lshrrev_b32(v(va), 1, v(vLANE)); self.v_lshlrev_b32(v(va), 9, v(va))
        self.v_and_b32(v(va + 1), 1, v(vLANE)); self.v_lshlrev_b32(v(va + 1), 4, v(va + 1))
        self.v_add3_u32(v(va), v(va), v(va + 1), s(sT))
        self.v_add_u32(v(va + 1), 32 * 512, v(va)); self.v_add_u32(v(va + 2), 64 * 512, v(va))
    def z_store_list(self, zp, sbase, va):
        return [self.store(16, v(va), v(zp, 4), s(sbase, 2)), self.store(16, v(va + 1), v(zp + 4, 4), s(sbase, 2)),
                ("exec", 0xffffffff), self.store(16, v(va + 2), v(zp + 8, 4), s(sbase, 2)), ("exec", -1)]

    CKP, CVP, CSP, CRG, CCC, CTP = 96, 124, 144, 140, 141, 164
    N_C0 = 13
    def c0_issue(self):
        KP, VP, RG, CC = self.CKP, self.CVP, self.CRG, self.CCC
        self.s_mov_b32(s(sSRD), s(sBK)); self.s_mov_b32(s(sSRD + 1), s(sBK + 1))
        self.s_mov_b32(s(sSRD + 2), 2048 * 1280); self.s_mov_b32(s(sSRD + 3), "0x00020000")
        self.v_min_u32(v(4), 159, v(vTID))
        self.v_mul_u32_u24(v(RG), 6554, v(4)); self.v_lshrrev_b32(v(RG), 16, v(RG))
        self.v_mul_u32_u24(v(CC), 10, v(RG)); self.v_sub_u32(v(CC), v(4), v(CC))
        self.s_lshl_b32(s(sT), s(sS), 6); self.s_sub_u32(s(sT), s(sT), 3)
        self.v_lshl_add_u32(v(4), v(RG), 2, s(sT))
        self.s_mov_b32(s(sT + 1), 1280); self.v_mul_lo_u32(v(4), s(sT + 1), v(4))
        self.smul(sT + 2, sG, 160); self.v_lshl_add_u32(v(5), v(CC), 4, s(sT + 2)); self.v_add_u32(v(4), v(4), v(5))
        for j in range(7):
            self.buffer_load_dwordx4(v(KP + 4 * j, 4), v(4), s(sSRD, 4), 0, mods="offen")
            if j == 2: self.v_add_u32(v(5), 1280, v(4))
            if j < 6: self.v_add_u32(v(4), 1280, v(4))
        self.s_mov_b32(s(sSRD), s(sBV)); self.s_mov_b32(s(sSRD + 1), s(sBV + 1))
        for j in range(4):
            self.buffer_load_dwordx4(v(VP + 4 * j, 4), v(5), s(sSRD, 4), 0, mods="offen")
            if j < 3: self.v_add_u32(v(5), 1280, v(5))
        self.smul(sT + 2, sG, 640); self.v_min_u32(v(4), 39, v(vLANE)); self.v_lshl_add_u32(v(4), v(4), 4, s(sT + 2))
        self.global_load_dwordx4(v(self.CTP, 4), v(4), s(sSH, 2))
        self.v_min_u32(v(5), 199, v(vTID)); self.v_lshlrev_b32(v(5), 7, v(5)); self.smul(sT + 4, sS, 25600); self.v_add_u32(v(5), s(sT + 4), v(5))
        self.global_load_dword(v(231), v(5), s(sWO, 2))
    def c0_taps(self):
        self.v_min_u32(v(4), 39, v(vLANE)); self.v_lshlrev_b32(v(4), 4, v(4)); self.v_add_u32(v(4), L_SP, v(4))
        self.wait(vm=1)
        self.ds_write_b128(v(4), v(self.CTP, 4))
        self.v_lshlrev_b32(v(5), 6, v(self.CCC)); self.v_add_u32(v(5), L_SP, v(5))
        self.wait(lg=0); self.s_barrier()
        for j in range(4): self.ds_read_b128(v(self.CSP + 4 * j, 4), v(5), mods=f"offset:{16 * j}")
    def c0_compute(self, splice):
        KP, VP, SP = self.CKP, self.CVP, self.CSP
        KF, SK, VF, U, PKD = 16, 30, 38, 46, 54
        sCM = sU + 12
        self.v_cmp_gt_u32("vcc", 160, v(vTID)); self.s_mov_b64(s(sCM, 2), "vcc")
        self.v_mul_u32_u24(v(10), 1168, v(self.CCC)); self.v_lshlrev_b32(v(11), 3, v(self.CRG)); self.v_sub_u32(v(10), v(10), v(11))
        self.v_add_u32(v(10), L_K + 120, v(10))
        self.wait(lg=0)
        splice = list(splice)
        def sp():
            if splice: splice.pop(0)()
        for m in range(4):
            for j in range(7):
                self.v_lshlrev_b32(v(KF + 2 * j), 16, v(KP + 4 * j + m)); self.v_and_b32(v(KF + 2 * j + 1), "0xffff0000", v(KP + 4 * j + m))
            sp()
            for e in range(2):
                c = 2 * m + e
                self.v_lshlrev_b32(v(SK + 0 + e), 16, v(SP + 2 * c)); self.v_and_b32(v(SK + 2 + e), "0xffff0000", v(SP + 2 * c))
                self.v_lshlrev_b32(v(SK + 4 + e), 16, v(SP + 2 * c + 1)); self.v_and_b32(v(SK + 6 + e), "0xffff0000", v(SP + 2 * c + 1))
            for i in range(4):
                self.v_lshlrev_b32(v(VF + 2 * i), 16, v(VP + 4 * i + m)); self.v_and_b32(v(VF + 2 * i + 1), "0xffff0000", v(VP + 4 * i + m))
            sp()
            for i in range(4): self.v_pk_mul_f32(v(U + 2 * i, 2), v(KF + 2 * i, 2), v(SK + 6, 2))
            for i in range(4): self.v_pk_fma_f32(v(U + 2 * i, 2), v(KF + 2 * (i + 1), 2), v(SK + 4, 2), v(U + 2 * i, 2))
            for i in range(4): self.v_pk_fma_f32(v(U + 2 * i, 2), v(KF + 2 * (i + 2), 2), v(SK + 2, 2), v(U + 2 * i, 2))
            for i in range(4): self.v_pk_fma_f32(v(U + 2 * i, 2), v(KF + 2 * (i + 3), 2), v(SK + 0, 2), v(U + 2 * i, 2))
            for i in range(4): self.v_pk_mul_f32(v(U + 2 * i, 2), v(U + 2 * i, 2), v(VF + 2 * i, 2))
            sp()
            for e in range(2):
                p = PKD + 2 * e + 4 * (m & 1)
                self.v_cvt_pk_bf16_f32(v(p), v(U + 6 + e), v(U + 4 + e)); self.v_cvt_pk_bf16_f32(v(p + 1), v(U + 2 + e), v(U + e))
            self.s_mov_b64("exec", s(sCM, 2))
            for e in range(2):
                p = PKD + 2 * e + 4 * (m & 1)
                self.ds_write_b64(v(10), v(p, 2), mods=f"offset:{144 * (2 * m + e)}")
            self.s_mov_b64("exec", -1)
        while splice: sp()
    def c0_tail(self):
        self.wait(lg=0); self.s_barrier()
        self.v_lshrrev_b32(v(8), 6, v(vTID)); self.v_mul_u32_u24(v(8), 1168, v(8))
        self.v_bfe_u32(v(9), v(vTID), 3, 3); self.v_mul_u32_u24(v(9), 144, v(9))
        self.v_and_b32(v(10), 7, v(vTID)); self.v_lshlrev_b32(v(10), 4, v(10))
        self.v_add3_u32(v(8), v(8), v(9), v(10)); self.v_add_u32(v(8), L_K, v(8))
        self.smul(sU, sG, 80 * 4096); self.s_lshl_b32(s(sU + 1), s(sS), 7); self.s_sub_u32(s(sU), s(sU), s(sU + 1))
        self.s_add_u32(s(sU), s(sU), hex(OFF_R + 1984 * 2))
        self.v_lshrrev_b32(v(9), 3, v(vTID)); self.v_lshlrev_b32(v(9), 12, v(9)); self.v_add3_u32(v(9), v(9), v(10), s(sU))
        self.ds_read_b128(v(16, 4), v(8)); self.ds_read_b128(v(20, 4), v(8), mods=f"offset:{4 * 1168}")
        self.ds_read_b128(v(24, 4), v(8), mods=f"offset:{8 * 1168}")
        self.v_add_u32(v(11), 32 * 4096, v(9)); self.v_add_u32(v(14), 64 * 4096, v(9))
        self.wait(lg=0)
        self.global_store_dwordx4(v(9), v(16, 4), s(sWS, 2), mods="sc1"); self.global_store_dwordx4(v(11), v(20, 4), s(sWS, 2), mods="sc1")
        l1 = self.newlabel("c0s")
        self.s_cmp_ge_u32(s(sW), 2); self.s_cbranch_scc1(l1)
        self.global_store_dwordx4(v(14), v(24, 4), s(sWS, 2), mods="sc1")
        self.label(l1)

    ACC, ZR, WF = 16, 96, 160
    OA, OB, MSK = 176, 192, 208
    SA, SB, PP, KF0, KF1, VF0, VF1, KP0, KP1 = 16, 32, 48, 56, 60, 62, 66, 70, 74
    QA, QB = 80, 86
    vSA, vSB, vSC, vTR0, vTR1, vKA, vK1A, vVA = 224, 225, 226, 227, 228, 229, 230, 231
    vKB, vK1B, vVB = 12, 13, 14
    def zero16(self, d):
        self.v_mfma_f32_32x32x16_bf16(v(d, 16), v(vZERO, 4), v(vZERO, 4), 0)
    def qkv_addr(self):
        vzA, vzB, vw0, vw1 = 8, 9, 10, 11
        self.smul(sT, sW, 40960); self.v_add_u32(v(vzA), s(sT), v(vL16))
        self.s_sub_u32(s(sT + 1), 7, s(sW)); self.smul(sT + 1, sT + 1, 40960); self.v_add_u32(v(vzB), s(sT + 1), v(vL16))
        self.v_lshrrev_b32(v(4), 5, v(vLANE)); self.v_lshlrev_b32(v(4), 3, v(4))
        self.v_bfe_u32(v(5), v(vLANE), 2, 2); self.v_add_u32(v(4), v(4), v(5)); self.v_lshlrev_b32(v(4), 6, v(4))
        self.v_bfe_u32(v(5), v(vLANE), 4, 1); self.v_lshlrev_b32(v(5), 5, v(5))
        self.v_and_b32(v(vw0), 3, v(vLANE)); self.v_lshlrev_b32(v(vw0), 3, v(vw0))
        self.v_add3_u32(v(vw0), v(4), v(5), v(vw0)); self.v_add_u32(v(vw1), L_WT1, v(vw0))
    def qkv_init(self):
        for d in (16, 32, 48, 64): self.zero16(d)
        self.zero16(self.OA); self.zero16(self.OB)
        self.wread(0, 0)
    def wread(self, st, kk):
        for T, vw in ((0, 10), (1, 11)):
            r = self.WF + 8 * st + 4 * T
            self.ds_read_b64_tr_b16(v(r, 2), v(vw), mods=f"offset:{kk * 1024}")
            self.ds_read_b64_tr_b16(v(r + 2, 2), v(vw), mods=f"offset:{kk * 1024 + 256}")
    def zload(self, j, kk):
        ZR, vzA, vzB = self.ZR, 8, 9
        self.global_load_dwordx4(v(ZR + 8 * j, 4), v(vzA), s(sZB, 2), mods=f"offset:{(kk % 4) * 1024} sc1")
        self.global_load_dwordx4(v(ZR + 8 * j + 4, 4), v(vzB), s(sZB, 2), mods=f"offset:{(kk % 4) * 1024} sc1")
        if kk % 4 == 3:
            self.v_add_u32(v(vzA), 4096, v(vzA)); self.v_add_u32(v(vzB), 4096, v(vzB))
    def qkv_zissue(self):
        for j in range(8): self.zload(j, j)
    def qkv_run(self):
        ACC, ZR, WF = self.ACC, self.ZR, self.WF
        vzA, vzB, vw0, vw1 = 8, 9, 10, 11
        zload = self.zload
        def body(last):
            for j in range(8):
                st = j & 1
                if not (last and j == 7): self.wread(st ^ 1, j + 1)
                self.wait(vm=(14 - 2 * j) if last else 14, lg=0 if (last and j == 7) else 4)
                for blk in range(2):
                    for T in range(2):
                        d = ACC + 32 * blk + 16 * T
                        self.v_mfma_f32_32x32x16_bf16(v(d, 16), v(WF + 8 * st + 4 * T, 4), v(ZR + 8 * j + 4 * blk, 4), v(d, 16))
                if not last: zload(j, j)
            if not last:
                self.v_add_u32(v(vw0), 8192, v(vw0)); self.v_add_u32(v(vw1), 8192, v(vw1))
        lp = self.newlabel("qkv")
        self.s_mov_b32(s(sU), 4)
        self.label(lp)
        body(False)
        self.s_sub_u32(s(sU), s(sU), 1); self.s_cmp_lg_u32(s(sU), 0); self.s_cbranch_scc1(lp)
        body(True)

    def epi_prep(self):
        vSA, vSB, vSC, vTR0, vTR1 = self.vSA, self.vSB, self.vSC, self.vTR0, self.vTR1
        self.s_lshl_b32(s(sT), s(sW), 11); self.s_add_u32(s(sT), s(sT), L_VS)
        self.v_and_b32(v(4), 31, v(vLANE)); self.v_bfe_u32(v(5), v(4), 1, 3)
        self.v_lshlrev_b32(v(4), 6, v(4)); self.v_add_u32(v(4), s(sT), v(4))
        self.v_lshrrev_b32(v(vSA), 5, v(vLANE)); self.v_xor_b32(v(vSA), v(vSA), v(5)); self.v_lshl_add_u32(v(vSA), v(vSA), 3, v(4))
        self.v_xor_b32(v(vSB), 16, v(vSA))
        self.v_xor_b32(v(vSC), 40, v(vSA))
        self.v_xor_b32(v(4), 48, v(vSA))
        self.v_mov_b32(v(88), "0x3f80"); self.v_mov_b32(v(89), 0)
        self.ds_write_b64(v(4), v(88, 2))
        self.v_bfe_u32(v(4), v(vLANE), 2, 2); self.v_lshrrev_b32(v(5), 5, v(vLANE)); self.v_lshl_add_u32(v(4), v(5), 2, v(4))
        self.v_bfe_u32(v(5), v(vLANE), 4, 1); self.v_lshlrev_b32(v(5), 2, v(5)); self.v_and_b32(v(vTR0), 3, v(vLANE)); self.v_add_u32(v(5), v(5), v(vTR0))
        self.v_lshrrev_b32(v(vTR0), 1, v(4)); self.v_xor_b32(v(5), v(5), v(vTR0)); self.v_lshlrev_b32(v(5), 3, v(5))
        self.v_lshl_add_u32(v(vTR0), v(4), 6, v(5)); self.v_add_u32(v(vTR0), s(sT), v(vTR0)); self.v_xor_b32(v(vTR1), 32, v(vTR0))
        for (k0, k1, vv, blk) in ((self.vKA, self.vK1A, self.vVA, 0), (self.vKB, self.vK1B, self.vVB, 1)):
            if blk == 0: self.s_mov_b32(s(sT + 1), s(sW))
            else: self.s_sub_u32(s(sT + 1), 7, s(sW))
            self.smul(sT + 2, sT + 1, 1536); self.s_add_u32(s(sT + 2), s(sT + 2), L_K)
            self.v_add_u32(v(k0), s(sT + 2), v(vL16)); self.s_add_u32(s(sT + 2), s(sT + 2), 1024); self.v_add_u32(v(k1), s(sT + 2), v(vL8))
            self.s_lshl_b32(s(sT + 2), s(sT + 1), 11); self.s_add_u32(s(sT + 2), s(sT + 2), L_V); self.v_add_u32(v(vv), s(sT + 2), v(vL16))
        self.s_mov_b32(s(sU + 14), f32(math.log2(math.e) / math.sqrt(20.0))); self.s_mov_b32(s(sU + 15), s(sU + 14))
    def epi_run(self):
        ACC = self.ACC
        sets = []
        for blk in range(2):
            A0 = ACC + 32 * blk; A1 = A0 + 16
            Q = self.QA if blk == 0 else self.QB
            PK = 96 + 24 * blk
            K0, K1, VV, VF = PK, PK + 4, PK + 6, PK + 12
            sets.append((K0, K1, VV, VF))
            self.pack(K1, A1 + 4, 2); self.pack(VV, A1 + 8, 4)
            self.ds_write_b64(v(self.vSC), v(K1, 2)); self.ds_write_b64(v(self.vSA), v(VV, 2)); self.ds_write_b64(v(self.vSB), v(VV + 2, 2))
            self.pack(K0, A0 + 8, 4)
            for m in range(4): self.ds_read_b64_tr_b16(v(VF + 2 * m, 2), v(self.vTR1 if m & 1 else self.vTR0), mods=f"offset:{512 * m}")
            k0, k1, vv = (self.vKA, self.vK1A, self.vVA) if blk == 0 else (self.vKB, self.vK1B, self.vVB)
            self.ds_write_b128(v(k0), v(K0, 4)); self.ds_write_b64(v(k1), v(K1, 2))
            self.global_store_dwordx4(v(k0), v(K0, 4), s(sHB, 2), mods="sc1")
            self.global_store_dwordx2(v(k1), v(K1, 2), s(sHB, 2), mods="sc1")
            for r in (0, 2, 4, 6): self.v_pk_mul_f32(v(A0 + r, 2), v(A0 + r, 2), s(sU + 14, 2))
            for r in (0, 2): self.v_pk_mul_f32(v(A1 + r, 2), v(A1 + r, 2), s(sU + 14, 2))
            self.pack(Q, A0, 4); self.pack(Q + 4, A1, 2)
            self.wait(lg=2)
            self.ds_write_b128(v(vv), v(VF, 4)); self.ds_write_b128(v(vv), v(VF + 4, 4), mods="offset:1024")
            self.global_store_dwordx4(v(vv), v(VF, 4), s(sHB, 2), mods="sc1")
            self.global_store_dwordx4(v(vv), v(VF + 4, 4), s(sHB, 2), mods="offset:1024 sc1")
        self.wait(lg=0); self.s_barrier()

    def mask_gen(self, far):
        self.v_and_b32(v(4), 31, v(vLANE)); self.v_lshrrev_b32(v(5), 5, v(vLANE)); self.v_lshlrev_b32(v(5), 2, v(5))
        self.v_sub_u32(v(4), v(4), v(5))
        self.v_mov_b32(v(5), f32(-1e30))
        for r in range(16):
            kk = 8 * (r >> 2) + (r & 3)
            self.v_cmp_le_i32(s(sU + 2 * (r & 3), 2), kk, v(4))
            if r >= 1:
                q = r - 1
                self._msel(q, far)
        self._msel(15, far)
    def _msel(self, r, far):
        if far: self.v_cndmask_b32(v(self.MSK + r), 0, v(5), s(sU + 2 * (r & 3), 2))
        else: self.v_cndmask_b32(v(self.MSK + r), v(5), 0, s(sU + 2 * (r & 3), 2))

    def halo_publish(self):
        lab = self.newlabel("hp"); l0, l1 = self.newlabel("hw"), self.newlabel("hw")
        self.s_cmp_lg_u32(s(sL), 0); self.s_cbranch_scc1(l0)
        self.wait(vm=self.N_C0); self.s_branch(l1)
        self.label(l0); self.wait(vm=0); self.label(l1)
        self.setexec(1)
        self.v_mov_b32(v(4), L_CNT); self.v_mov_b32(v(5), 1)
        self.ds_add_rtn_u32(v(5), v(4), v(5))
        self.wait(lg=0)
        self.v_readfirstlane_b32(s(sT), v(5))
        self.s_and_b32(s(sT), s(sT), 3); self.s_cmp_lg_u32(s(sT), 3); self.s_cbranch_scc1(lab)
        self.v_mov_b32(v(4), s(sHFO)); self.v_mov_b32(v(5), s(sHEXP))
        self.global_store_dword(v(4), v(5), s(sWS, 2), mods="sc1")
        self.label(lab)
        self.setexec(-1)

    CD, CE, CR, CDV = 96, 112, 120, 128
    C2D, C2E, C2R, C2DV = 164, 170, 224, 228
    CH_SZ = 24832
    def conv_srd(self):
        self.s_mov_b32(s(sSRD), s(sSK)); self.s_mov_b32(s(sSRD + 1), s(sSK + 1))
        self.s_mov_b32(s(sSRD + 2), 640 * 4096); self.s_mov_b32(s(sSRD + 3), "0x00020000")
    def conv_h_issue(self):
        D = self.CD
        self.smul(sT, sG, 80); self.s_lshl_b32(s(sT + 1), s(sS), 1); self.s_add_u32(s(sT + 1), s(sT + 1), s(sT))
        self.s_lshr_b32(s(sT + 2), s(sW), 1); self.s_add_u32(s(sT + 1), s(sT + 1), s(sT + 2))
        self.s_lshl_b32(s(sT + 3), s(sT + 1), 12)
        self.conv_srd()
        self.v_and_b32(v(4), 127, v(vTID)); self.v_lshlrev_b32(v(4), 4, v(4))
        for i in range(2):
            self.buffer_load_dwordx4(v(D + 8 * i, 4), v(4), s(sSRD, 4), s(sT + 3), mods=f"offen offset:{2048 * i}")
            self.buffer_load_dwordx2(v(D + 8 * i + 4, 2), v(4), s(sSRD, 4), s(sT + 3), mods=f"offen offset:{2048 * i + 16}")
        self.s_lshr_b32(s(sT + 4), s(sT + 1), 1); self.s_lshl_b32(s(sT + 4), s(sT + 4), 2); self.v_mov_b32(v(5), s(sT + 4))
        self.global_load_dword(v(self.CDV), v(5), s(sSD, 2))
        self.s_lshr_b32(s(sT + 1), s(sS), 1); self.s_add_u32(s(sT + 1), s(sT + 1), s(sT)); self.s_add_u32(s(sT + 1), s(sT + 1), 64)
        self.s_lshl_b32(s(sT + 3), s(sT + 1), 12)
        self.v_lshlrev_b32(v(4), 4, v(vTID))
        self.buffer_load_dwordx4(v(self.C2D, 4), v(4), s(sSRD, 4), s(sT + 3), mods="offen")
        self.buffer_load_dwordx2(v(self.C2D + 4, 2), v(4), s(sSRD, 4), s(sT + 3), mods="offen offset:16")
        self.s_lshr_b32(s(sT + 4), s(sT + 1), 1); self.s_lshl_b32(s(sT + 4), s(sT + 4), 2); self.v_mov_b32(v(5), s(sT + 4))
        self.global_load_dword(v(self.C2DV), v(5), s(sSD, 2))
    def conv_r_issue(self):
        R = self.CR
        self.smul(sT, sG, 80); self.s_lshl_b32(s(sT + 1), s(sS), 1); self.s_add_u32(s(sT + 1), s(sT + 1), s(sT))
        self.s_lshr_b32(s(sT + 2), s(sW), 1); self.s_add_u32(s(sT + 1), s(sT + 1), s(sT + 2))
        self.s_lshl_b32(s(sT + 3), s(sT + 1), 12); self.s_add_u32(s(sT + 3), s(sT + 3), hex(OFF_R))
        self.v_and_b32(v(4), 127, v(vTID)); self.v_lshl_add_u32(v(4), v(4), 4, s(sT + 3))
        self.global_load_dwordx4(v(R, 4), v(4), s(sWS, 2), mods="sc1")
        self.global_load_dwordx4(v(R + 4, 4), v(4), s(sWS, 2), mods="offset:2048 sc1")
        self.s_lshr_b32(s(sT + 1), s(sS), 1); self.s_add_u32(s(sT + 1), s(sT + 1), s(sT)); self.s_add_u32(s(sT + 1), s(sT + 1), 64)
        self.s_lshl_b32(s(sT + 3), s(sT + 1), 12); self.s_add_u32(s(sT + 3), s(sT + 3), hex(OFF_R))
        self.v_lshl_add_u32(v(4), v(vTID), 4, s(sT + 3))
        self.global_load_dwordx4(v(self.C2R, 4), v(4), s(sWS, 2), mods="sc1")

    def pretouch_addr(self, va):
        self.v_min_u32(v(va), 159, v(vTID)); self.v_lshlrev_b32(v(va), 7, v(va))
        self.smul(sT, sG, ZG); self.smul(sT + 1, sS, 10240); self.s_add_u32(s(sT), s(sT), s(sT + 1)); self.s_add_u32(s(sT), s(sT), hex(OFF_O))
        self.v_add_u32(v(va), s(sT), v(va))
        self.v_add_u32(v(5), OFF_A - OFF_O - 80 * 128, v(va))
        self.v_cmp_gt_u32("vcc", 80, v(vTID)); self.v_cndmask_b32(v(va), v(5), v(va), "vcc")

    WOL = (0, 100)
    vWG = 14
    def wo_addr(self):
        self.s_and_b32(s(sT), s(sS), 7); self.smul(sT, sT, 160)
        self.v_min_u32(v(4), 49, v(vLANE))
        self.v_mul_u32_u24(v(5), 6554, v(4)); self.v_lshrrev_b32(v(5), 16, v(5))
        self.v_mul_u32_u24(v(self.vWG), 10, v(5)); self.v_sub_u32(v(4), v(4), v(self.vWG))
        self.smul(sT + 1, sW, 80); self.v_add_u32(v(5), s(sT + 1), v(5))
        self.v_mul_u32_u24(v(self.vWG), 1280, v(5)); self.v_lshl_add_u32(v(self.vWG), v(4), 4, v(self.vWG)); self.v_add_u32(v(self.vWG), s(sT), v(self.vWG))
    def wo_srd(self):
        self.s_mov_b32(s(sSRD), s(sWO)); self.s_mov_b32(s(sSRD + 1), s(sWO + 1))
        self.s_mov_b32(s(sSRD + 2), 640 * 640 * 2); self.s_mov_b32(s(sSRD + 3), "0x00020000")
    def wo_issue_one(self, n):
        hh, i = divmod(n, 16)
        self.s_mov_b32(s(sT + 7), hh * 320 * 1280 + i * 5 * 1280)
        self.buffer_load_dwordx4(a(self.WOL[hh] + 4 * i, 4), v(self.vWG), s(sSRD, 4), s(sT + 7), mods="offen")
    def wo_stage(self):
        self.v_min_u32(v(4), 49, v(vLANE))
        self.v_mul_u32_u24(v(8), 6554, v(4)); self.v_lshrrev_b32(v(8), 16, v(8))
        self.v_mul_u32_u24(v(9), 10, v(8)); self.v_sub_u32(v(9), v(4), v(9))
        self.smul(sT + 1, sW, 80); self.v_add_u32(v(8), s(sT + 1), v(8))
        self.v_mul_u32_u24(v(11), 160, v(8)); self.v_lshl_add_u32(v(11), v(9), 4, v(11)); self.v_add_u32(v(11), L_K, v(11))
        self.s_lshr_b32(s(sT), s(sW), 1)
        self.v_lshrrev_b32(v(12), 4, v(vLANE)); self.v_bfe_u32(v(13), v(vLANE), 2, 2)
        self.v_and_b32(v(16), 3, v(vLANE)); self.v_lshlrev_b32(v(16), 3, v(16)); self.v_add_u32(v(16), L_K, v(16))
        self.v_lshrrev_b32(v(17), 1, v(12)); self.v_mul_u32_u24(v(17), 20, v(17))
        self.v_and_b32(v(18), 1, v(12)); self.v_lshl_add_u32(v(17), v(18), 2, v(17)); self.v_add_u32(v(17), v(17), v(13))
        self.v_mul_u32_u24(v(17), 160, v(17)); self.v_add_u32(v(17), v(17), v(16))
        self.v_mul_u32_u24(v(18), 40, v(12)); self.v_add3_u32(v(18), v(18), v(13), 16)
        self.v_mul_u32_u24(v(18), 160, v(18)); self.v_add_u32(v(18), v(18), v(16))
        self.smul(sT + 1, sT, 32000); self.v_add_u32(v(17), s(sT + 1), v(17))
        self.s_cmp_eq_u32(s(sT), 0)
        self.s_mov_b32(s(sT + 4), 25600); self.s_mov_b32(s(sT + 5), 3200)
        self.s_cselect_b32(s(sT + 2), 6400, s(sT + 4)); self.s_cselect_b32(s(sT + 3), 1280, s(sT + 5))
        self.s_cselect_b64(s(sM0, 2), -1, 0)
        self.v_add_u32(v(19), 3 * 6400, v(17)); self.v_cndmask_b32(v(19), v(18), v(19), s(sM0, 2))
        self.v_add_u32(v(20), s(sT + 3), v(19)); self.v_add_u32(v(21), s(sT + 2), v(19)); self.v_add_u32(v(22), s(sT + 3), v(21))
        for hh in range(2):
            self.setexec((1 << 50) - 1)
            for i in range(16): self.ds_write_b128(v(11), a(self.WOL[hh] + 4 * i, 4), mods=f"offset:{800 * i}")
            self.setexec(-1)
            self.wait(lg=0); self.s_barrier()
            n = 0
            for jj in range(5):
                for ct in range(5):
                    d = ((5 * hh + jj) * 5 + ct) * 4
                    if n >= 12 and ct in (0, 2, 4): self.wait(lg=9)
                    if jj < 3:
                        self.ds_read_b64_tr_b16(a(d, 2), v(17), mods=f"offset:{6400 * jj + 32 * ct}")
                        self.ds_read_b64_tr_b16(a(d + 2, 2), v(17), mods=f"offset:{6400 * jj + 32 * ct + 1280}")
                    else:
                        self.ds_read_b64_tr_b16(a(d, 2), v(19 + 2 * (jj - 3)), mods=f"offset:{32 * ct}")
                        self.ds_read_b64_tr_b16(a(d + 2, 2), v(20 + 2 * (jj - 3)), mods=f"offset:{32 * ct}")
                    n += 2
            self.wait(lg=0)
            if hh == 0: self.wait(vm=0)
            self.s_barrier()
            if hh == 0: self.y_flag()

    def conv_head(self, sbase, sch, D, DV):
        self.v_readlane_b32(s(sT + 6), v(D), 0); self.v_readlane_b32(s(sT + 7), v(D + 1), 0)
        self.v_readfirstlane_b32(s(sT + 8), v(DV))
        self.s_and_b32(s(sT + 9), s(sch), 1); self.s_lshl_b32(s(sT + 9), s(sT + 9), 4)
        self.s_lshr_b32(s(sT + 8), s(sT + 8), s(sT + 9)); self.s_lshl_b32(s(sT + 8), s(sT + 8), 16)
        self.s_lshl_b32(s(sT + 9), s(sT + 6), 16)
        self.v_mov_b32(v(16), s(sT + 8)); self.v_add_f32(v(16), s(sT + 9), v(16))
        self.v_cvt_pk_bf16_f32(v(16), v(16), v(16)); self.v_and_b32(v(16), "0xffff", v(16))
        self.s_and_b32(s(sT + 6), s(sT + 6), "0xffff0000"); self.v_or_b32(v(16), s(sT + 6), v(16))
        self.v_mov_b32(v(17), s(sT + 7))
        self.v_lshrrev_b32(v(18), 2, v(vLANE)); self.v_sub_u32(v(19), 3, v(18)); self.v_lshlrev_b32(v(19), 4, v(19)); self.v_and_b32(v(19), 63, v(19))
        self.v_lshlrev_b64(v(26, 2), v(19), v(16, 2))
        self.v_and_b32(v(19), 3, v(vLANE)); self.v_cmp_eq_u32("vcc", 3, v(19))
        self.v_mov_b32(v(24), 0); self.v_mov_b32(v(25), 0)
        self.v_cndmask_b32(v(26), 0, v(26), "vcc"); self.v_cndmask_b32(v(27), 0, v(27), "vcc")
        self.v_mul_u32_u24(v(18), 4160, v(18)); self.v_lshl_add_u32(v(18), v(19), 4, v(18)); self.v_add_u32(v(18), s(sbase), v(18))
        self.setexec(0xffff); self.ds_write_b128(v(18), v(24, 4)); self.setexec(-1)
    def conv_copies(self, vaddr, d, e, off):
        AL = 132
        for j in range(4): self.v_alignbit_b32(v(AL + j), v(d + j + 1), v(d + j), 16)
        for j in range(3): self.v_mov_b32(v(AL + 4 + j), v(AL + 1 + j))
        self.v_alignbit_b32(v(AL + 7), v(d + 5), v(d + 4), 16)
        for j in range(4): self.v_mov_b32(v(e + j), v(d + 1 + j))
        self.ds_write_b128(v(vaddr), v(AL, 4), mods=f"offset:{off}")
        self.ds_write_b128(v(vaddr), v(e, 4), mods=f"offset:{off + 4160}")
        self.ds_write_b128(v(vaddr), v(AL + 4, 4), mods=f"offset:{off + 2 * 4160}")
        self.ds_write_b128(v(vaddr), v(d + 2, 4), mods=f"offset:{off + 3 * 4160}")
    def conv_addr(self, sbase, sstep0):
        self.v_and_b32(v(10), 3, v(vLANE)); self.v_mul_u32_u24(v(10), 4160, v(10))
        self.v_bfe_u32(v(11), v(vLANE), 2, 3); self.v_lshl_add_u32(v(10), v(11), 3, v(10))
        self.v_lshrrev_b32(v(11), 5, v(vLANE)); self.v_lshl_add_u32(v(10), v(11), 4, v(10))
        self.s_lshl_b32(s(sT + 6), s(sstep0), 5); self.s_add_u32(s(sT + 6), s(sT + 6), s(sbase)); self.v_add_u32(v(8), s(sT + 6), v(10))
        self.v_and_b32(v(10), 31, v(vLANE)); self.v_sub_u32(v(10), 31, v(10)); self.v_mul_u32_u24(v(10), 5, v(10))
        self.v_add_u32(v(10), v(10), v(11)); self.v_lshlrev_b32(v(10), 4, v(10))
        self.smul(sT + 6, sstep0, 40); self.s_add_u32(s(sT + 6), s(sT + 6), s(sbase)); self.s_add_u32(s(sT + 6), s(sT + 6), 16640)
        self.v_add_u32(v(9), s(sT + 6), v(10))

    def conv1_run(self):
        D, E, R = self.CD, self.CE, self.CR
        sB, sCHN, sHW = sU + 2, sU + 1, sU + 5
        self.s_lshr_b32(s(sU), s(sW), 1); self.smul(sB, sU, self.CH_SZ); self.s_add_u32(s(sB), s(sB), L_K)
        self.smul(sT, sG, 80); self.s_lshl_b32(s(sCHN), s(sS), 1); self.s_add_u32(s(sCHN), s(sCHN), s(sT)); self.s_add_u32(s(sCHN), s(sCHN), s(sU))
        self.s_and_b32(s(sHW), s(sW), 1)
        self.v_and_b32(v(8), 127, v(vTID)); self.v_lshlrev_b32(v(9), 4, v(8))
        self.v_add_u32(v(11), s(sB), v(9))
        self.ds_write_b128(v(11), v(vZERO, 4), mods=f"offset:{16640 + 320 * 16}")
        self.v_and_b32(v(16), 63, v(8)); self.v_lshlrev_b32(v(16), 4, v(16)); self.v_add_u32(v(16), s(sB), v(16))
        self.ds_write_b128(v(16), v(vZERO, 4), mods=f"offset:{16640 + 448 * 16}")
        self.v_add_u32(v(11), 64, v(11))
        self.v_lshrrev_b32(v(12), 2, v(8)); self.v_add_u32(v(12), v(12), v(8)); self.v_lshlrev_b32(v(12), 4, v(12)); self.v_add_u32(v(12), s(sB), v(12))
        self.wo_addr(); self.pretouch_addr(13)
        self.v_mov_b32(v(229), v(13))
        if self.o.get("fine"): self.stamp("c1ld")
        for i in range(2): self.conv_copies(11, D + 8 * i, E + 4 * i, 2048 * i)
        self.wait(vm=0)
        self.ds_write_b128(v(12), v(R, 4), mods="offset:16640"); self.ds_write_b128(v(12), v(R + 4, 4), mods=f"offset:{16640 + 160 * 16}")
        lab = self.newlabel("hd")
        self.s_cmp_lg_u32(s(sHW), 0); self.s_cbranch_scc1(lab)
        self.conv_head(sB, sCHN, D, self.CDV)
        self.label(lab)
        LO, HI, F = 16, 32, 96
        self.s_lshl_b32(s(sT + 5), s(sHW), 5)
        self.conv_addr(sB, sT + 5)
        self.wait(lg=0); self.s_barrier()
        if self.o.get("fine"): self.stamp("c1fill")
        self.zero16(LO); self.zero16(HI)
        def rd(m):
            f = F + 16 * (m & 3); oa = 32 * m; ob = 80 * (m >> 1) + 32 * (m & 1)
            return [lambda: self.ds_read_b64(v(f, 2), v(8), mods=f"offset:{oa}"), lambda: self.ds_read_b64(v(f + 2, 2), v(8), mods=f"offset:{oa + 8}"),
                    lambda: self.ds_read_b128(v(f + 8, 4), v(9), mods=f"offset:{ob + 2560}"), lambda: self.ds_read_b128(v(f + 12, 4), v(9), mods=f"offset:{ob}"),
                    lambda: self.ds_read_b64(v(f + 4, 2), v(8), mods=f"offset:{oa + 2048}"), lambda: self.ds_read_b64(v(f + 6, 2), v(8), mods=f"offset:{oa + 2056}")]
        self.wo_srd()
        for m in (0, 1):
            for f_ in rd(m): f_()
        for m in range(32):
            f = F + 16 * (m & 3)
            nx = rd(m + 2) if m + 2 < 32 else [lambda: None] * 6
            self.wait(lg=6 if m < 31 else 0)
            self.v_mfma_f32_32x32x16_bf16(v(LO, 16), v(f, 4), v(f + 8, 4), v(LO, 16)); nx[0](); nx[1]()
            self.v_mfma_f32_32x32x16_bf16(v(HI, 16), v(f, 4), v(f + 12, 4), v(HI, 16)); nx[2](); nx[3]()
            self.v_mfma_f32_32x32x16_bf16(v(HI, 16), v(f + 4, 4), v(f + 8, 4), v(HI, 16)); nx[4](); nx[5]()
            self.wo_issue_one(m)
        self.global_load_dword(v(230), v(229), s(sWS, 2))
        if self.o.get("fine"): self.stamp("c1main")
        XB = L_HK
        self.s_lshl_b32(s(sT + 6), s(sW), 12); self.s_add_u32(s(sT + 6), s(sT + 6), XB); self.v_add_u32(v(10), s(sT + 6), v(vL16))
        self.s_xor_b32(s(sT + 7), s(sW), 1); self.s_lshl_b32(s(sT + 7), s(sT + 7), 12); self.s_add_u32(s(sT + 7), s(sT + 7), XB)
        self.v_add_u32(v(11), s(sT + 7), v(vL16))
        self.s_lshl_b32(s(sT + 6), s(sW), 11); self.s_add_u32(s(sT + 6), s(sT + 6), XB + 16384)
        self.v_and_b32(v(12), 31, v(vLANE)); self.v_lshlrev_b32(v(12), 6, v(12))
        self.v_lshrrev_b32(v(13), 5, v(vLANE)); self.v_lshl_add_u32(v(12), v(13), 3, v(12)); self.v_add_u32(v(12), s(sT + 6), v(12))
        self.v_add_u32(v(13), s(sT + 6), v(vL16))
        self.s_lshl_b32(s(sT + 6), s(sHW), 11); self.s_lshl_b32(s(sT + 7), s(sCHN), 12); self.s_add_u32(s(sT + 6), s(sT + 6), s(sT + 7))
        self.s_add_u32(s(sT + 6), s(sT + 6), hex(OFF_Y))
        l1, l2 = self.newlabel("cx"), self.newlabel("cy")
        self.s_cmp_lg_u32(s(sHW), 0); self.s_cbranch_scc1(l1)
        for role, (keep, send) in enumerate(((LO, HI), (HI, LO))):
            if role: self.label(l1)
            for q in range(4): self.ds_write_b128(v(10), v(send + 4 * q, 4), mods=f"offset:{1024 * q}")
            self.wait(lg=0); self.s_barrier()
            for q in range(4): self.ds_read_b128(v(F + 4 * q, 4), v(11), mods=f"offset:{1024 * q}")
            for q in range(4):
                self.wait(lg=3 - q)
                for r in (0, 2): self.v_pk_add_f32(v(keep + 4 * q + r, 2), v(keep + 4 * q + r, 2), v(F + 4 * q + r, 2))
                self.pack(F + 16 + 2 * q, keep + 4 * q, 2)
                if q == 2: pass
            for q in range(4): self.ds_write_b64(v(12), v(F + 16 + 2 * q, 2), mods=f"offset:{16 * q}")
            if role == 0: self.s_branch(l2)
        self.label(l2)
        self.v_add_u32(v(10), s(sT + 6), v(vL16))
        self.ds_read_b128(v(LO, 4), v(13)); self.ds_read_b128(v(LO + 4, 4), v(13), mods="offset:1024")
        self.wait(lg=0)
        self.global_store_dwordx4(v(10), v(LO, 4), s(sWS, 2), mods="sc1")
        self.global_store_dwordx4(v(10), v(LO + 4, 4), s(sWS, 2), mods="offset:1024 sc1")

    def conv2_run(self):
        D, E, R = self.C2D, self.C2E, self.C2R
        sB, sCHN, sPART = sU + 2, sU + 1, sU + 5
        self.s_mov_b32(s(sB), L_K)
        self.smul(sT, sG, 80); self.s_lshr_b32(s(sCHN), s(sS), 1); self.s_add_u32(s(sCHN), s(sCHN), s(sT)); self.s_add_u32(s(sCHN), s(sCHN), 64)
        self.s_and_b32(s(sPART), s(sS), 1)
        self.v_lshlrev_b32(v(9), 4, v(vTID)); self.v_add_u32(v(11), L_K, v(9))
        self.v_min_u32(v(16), 191, v(vTID)); self.v_lshlrev_b32(v(16), 4, v(16)); self.v_add_u32(v(16), L_K, v(16))
        self.ds_write_b128(v(16), v(vZERO, 4), mods=f"offset:{16640 + 320 * 16}")
        self.v_add_u32(v(11), 64, v(11))
        self.v_lshrrev_b32(v(12), 2, v(vTID)); self.v_add_u32(v(12), v(12), v(vTID)); self.v_lshlrev_b32(v(12), 4, v(12)); self.v_add_u32(v(12), L_K, v(12))
        self.conv_copies(11, D, E, 0)
        self.ds_write_b128(v(12), v(R, 4), mods="offset:16640")
        lab = self.newlabel("hd")
        self.s_cmp_lg_u32(s(sW), 0); self.s_cbranch_scc1(lab)
        self.conv_head(sB, sCHN, D, self.C2DV)
        self.label(lab)
        AC, F = 16, 96
        self.s_lshl_b32(s(sT + 5), s(sW), 4)
        self.conv_addr(sB, sT + 5)
        self.wait(lg=0); self.s_barrier()
        self.zero16(AC)
        def reads(st, par, extra, hi):
            f = F + 16 * st
            oa, ob = 32 * par + extra * 64, 32 * par + extra * 80
            self.ds_read_b64(v(f, 2), v(8), mods=f"offset:{oa}"); self.ds_read_b64(v(f + 2, 2), v(8), mods=f"offset:{oa + 8}")
            self.ds_read_b128(v(f + 8, 4), v(9), mods=f"offset:{ob + 2560}")
            if hi:
                self.ds_read_b128(v(f + 12, 4), v(9), mods=f"offset:{ob}")
                self.ds_read_b64(v(f + 4, 2), v(8), mods=f"offset:{oa + 2048}"); self.ds_read_b64(v(f + 6, 2), v(8), mods=f"offset:{oa + 2056}")
        def mm(st, hi):
            f = F + 16 * st
            if hi:
                self.v_mfma_f32_32x32x16_bf16(v(AC, 16), v(f, 4), v(f + 12, 4), v(AC, 16))
                self.v_mfma_f32_32x32x16_bf16(v(AC, 16), v(f + 4, 4), v(f + 8, 4), v(AC, 16))
            else:
                self.v_mfma_f32_32x32x16_bf16(v(AC, 16), v(f, 4), v(f + 8, 4), v(AC, 16))
        lhi, ldone = self.newlabel("c2hi"), self.newlabel("c2d")
        self.s_mov_b32(s(sT + 6), 8)
        self.s_cmp_lg_u32(s(sPART), 0); self.s_cbranch_scc1(lhi)
        for hi in (0, 1):
            if hi: self.label(lhi)
            n = 6 if hi else 3
            reads(0, 0, 0, hi)
            lp = self.newlabel("cv")
            self.label(lp)
            reads(1, 1, 0, hi); self.wait(lg=n); mm(0, hi)
            reads(0, 0, 1, hi); self.wait(lg=n); mm(1, hi)
            self.v_add_u32(v(8), 64, v(8)); self.v_add_u32(v(9), 80, v(9))
            self.s_sub_u32(s(sT + 6), s(sT + 6), 1); self.s_cmp_lg_u32(s(sT + 6), 0); self.s_cbranch_scc1(lp)
            if not hi: self.s_branch(ldone)
        self.label(ldone)
        XB = L_HK
        self.s_lshl_b32(s(sT + 6), s(sW), 12); self.s_add_u32(s(sT + 6), s(sT + 6), XB); self.v_add_u32(v(10), s(sT + 6), v(vL16))
        self.s_lshl_b32(s(sT + 6), s(sW), 10); self.s_add_u32(s(sT + 6), s(sT + 6), XB); self.v_add_u32(v(11), s(sT + 6), v(vL16))
        self.v_and_b32(v(12), 31, v(vLANE)); self.v_lshlrev_b32(v(12), 6, v(12))
        self.v_lshrrev_b32(v(13), 5, v(vLANE)); self.v_lshl_add_u32(v(12), v(13), 3, v(12))
        self.s_lshl_b32(s(sT + 6), s(sW), 4); self.s_add_u32(s(sT + 6), s(sT + 6), XB + 16384); self.v_add_u32(v(12), s(sT + 6), v(12))
        for j in range(4): self.ds_write_b128(v(10), v(AC + 4 * j, 4), mods=f"offset:{1024 * j}")
        self.v_lshlrev_b32(v(13), 4, v(vTID)); self.v_add_u32(v(10), XB + 16384, v(13))
        self.s_lshl_b32(s(sT + 6), s(sPART), 11); self.s_lshl_b32(s(sT + 7), s(sCHN), 12); self.s_add_u32(s(sT + 6), s(sT + 6), s(sT + 7))
        self.s_add_u32(s(sT + 6), s(sT + 6), hex(OFF_Y)); self.v_add_u32(v(13), s(sT + 6), v(13))
        self.wait(lg=0); self.s_barrier()
        for j in range(4): self.ds_read_b128(v(F + 4 * j, 4), v(11), mods=f"offset:{4096 * j}")
        self.wait(lg=0)
        for r in (0, 2):
            self.v_pk_add_f32(v(F + r, 2), v(F + r, 2), v(F + 4 + r, 2)); self.v_pk_add_f32(v(F + 8 + r, 2), v(F + 8 + r, 2), v(F + 12 + r, 2))
        for r in (0, 2): self.v_pk_add_f32(v(F + r, 2), v(F + r, 2), v(F + 8 + r, 2))
        self.pack(F + 16, F, 2)
        self.ds_write_b64(v(12), v(F + 16, 2))
        self.wait(lg=0); self.s_barrier()
        lab = self.newlabel("c2s")
        self.s_cmp_ge_u32(s(sW), 2); self.s_cbranch_scc1(lab)
        self.ds_read_b128(v(16, 4), v(10))
        self.wait(lg=0)
        self.global_store_dwordx4(v(13), v(16, 4), s(sWS, 2), mods="sc1")
        self.label(lab)

    def attn_local(self):
        sKb, sVb, sN, sMI = sU + 6, sU + 7, sU + 8, sU + 9
        self.s_mov_b32(s(sKb), L_K); self.s_mov_b32(s(sVb), L_V)
        self.s_sub_u32(s(sN), 8, s(sW)); self.s_sub_u32(s(sMI), 7, s(sW))
        self.attn_seq(self.QB, self.OB, sKb, sVb, sN, sMI)
        self.halo_publish()
        self.s_add_u32(s(sN), s(sW), 1); self.s_mov_b32(s(sMI), s(sW))
        self.attn_seq(self.QA, self.OA, sKb, sVb, sN, sMI)

    def halo_prep(self):
        self.mask_gen(True)
        self.smul(sT, sW, 7168); self.v_add_u32(v(12), s(sT), v(vL16)); self.v_add_u32(v(14), 4096, v(12))
        self.v_mov_b32(v(13), s(sHFI))
    HR = 128
    def halo_issue(self):
        self.s_mov_b64(s(sT + 2, 2), -1)
        self.poll2(sWS, 13, sHEXP, sT + 2)
        for j in range(7):
            self.global_load_dwordx4(v(self.HR + 4 * j, 4), v(12 if j < 4 else 14), s(sHP, 2), mods=f"offset:{(j % 4) * 1024} sc1")
    def halo_land(self, younger):
        self.v_add_u32(v(9), L_HK, v(12))
        for j in range(7):
            self.wait(vm=6 - j + younger)
            self.ds_write_b128(v(9), v(self.HR + 4 * j, 4), mods=f"offset:{j * 1024}")
    def attn_halo(self):
        sKb, sVb, sN, sMI = sU + 6, sU + 7, sU + 8, sU + 9
        self.s_mov_b32(s(sMI), 0)
        self.smul(sKb, sW, 1536); self.s_add_u32(s(sKb), s(sKb), L_HK)
        self.s_lshl_b32(s(sVb), s(sW), 11); self.s_add_u32(s(sVb), s(sVb), L_HV)
        self.s_sub_u32(s(sN), 8, s(sW))
        self.attn_seq(self.QA, self.OA, sKb, sVb, sN, sMI)
        self.s_sub_u32(s(sT), 7, s(sW))
        self.smul(sKb, sT, 1536); self.s_add_u32(s(sKb), s(sKb), L_HK)
        self.s_lshl_b32(s(sVb), s(sT), 11); self.s_add_u32(s(sVb), s(sVb), L_HV)
        self.s_add_u32(s(sN), s(sW), 1)
        self.attn_seq(self.QB, self.OB, sKb, sVb, sN, sMI)

    def range_check(self):
        self.s_mov_b32(s(sT), f32(2.0 ** -64)); self.s_mov_b32(s(sT + 1), f32(2.0 ** 64))
        ret = []
        for blk, O in ((0, self.OA), (1, self.OB)):
            lf, lr = self.newlabel("fb"), self.newlabel("fbr")
            self.v_cmp_nle_f32("vcc", s(sT), v(O + 12))
            self.v_cmp_nge_f32(s(sM0, 2), s(sT + 1), v(O + 12))
            self.s_or_b64("vcc", "vcc", s(sM0, 2))
            self.s_cbranch_scc1(lf)
            self.label(lr)
            self.fallbacks.append((lf, lr, blk))
    def emit_fallbacks(self):
        FQ, FO, FM = 96, 104, 120
        S, P, K0, K1, V0, V1 = 16, 48, 56, 60, 62, 66
        sB, sPH, sN, sMI, sKb, sVb, sI, sPASS = sU + 8, sU + 9, sU + 10, sU + 11, sU + 12, sU + 13, sU + 14, sU + 15
        body = self.newlabel("fbody"); done = self.newlabel("fdone")
        for lf, lr, blk in self.fallbacks:
            Q = self.QA if blk == 0 else self.QB
            self.label(lf)
            for j in range(6): self.v_mov_b32(v(FQ + j), v(Q + j))
            if blk == 0: self.s_mov_b32(s(sB), s(sW))
            else: self.s_sub_u32(s(sB), 7, s(sW))
            self.s_mov_b32(s(sT + 8), blk)
            self.s_branch(body)
        self.label(body)
        self.v_add_u32(v(8), L_K, v(vL16))
        self.s_mov_b32(s(sI), 28)
        lp = self.newlabel("frl")
        self.label(lp)
        self.global_load_dwordx4(v(136, 4), v(8), s(sHB, 2), mods="sc1")
        self.wait(vm=0)
        self.ds_write_b128(v(8), v(136, 4))
        self.v_add_u32(v(8), 1024, v(8))
        self.s_sub_u32(s(sI), s(sI), 1); self.s_cmp_lg_u32(s(sI), 0); self.s_cbranch_scc1(lp)
        self.wait(lg=0)
        for r in range(16): self.v_mov_b32(v(FM + r), f32(-3.0e38))
        for r in range(16): self.v_mov_b32(v(FO + r), 0)
        self.s_mov_b32(s(sPASS), 0)
        lpass, lphase, litem, lnm, ljoin, lacc, lnext, lpe = [self.newlabel(x) for x in ("fp", "fph", "fi", "fn", "fj", "fa", "fx", "fe")]
        self.label(lpass)
        self.s_mov_b32(s(sPH), 0)
        self.label(lphase)
        l1, l2 = self.newlabel("f"), self.newlabel("f")
        self.s_cmp_lg_u32(s(sPH), 0); self.s_cbranch_scc1(l1)
        self.mask_gen(False)
        self.s_mov_b32(s(sKb), L_K); self.s_mov_b32(s(sVb), L_V); self.s_add_u32(s(sN), s(sB), 1); self.s_mov_b32(s(sMI), s(sB))
        self.s_branch(l2)
        self.label(l1)
        self.mask_gen(True)
        self.smul(sKb, sB, 1536); self.s_add_u32(s(sKb), s(sKb), L_HK); self.s_lshl_b32(s(sVb), s(sB), 11); self.s_add_u32(s(sVb), s(sVb), L_HV)
        self.s_sub_u32(s(sN), 8, s(sB)); self.s_mov_b32(s(sMI), 0)
        self.label(l2)
        self.v_add_u32(v(8), s(sKb), v(vL16)); self.v_add_u32(v(9), s(sKb), v(vL8)); self.v_add_u32(v(10), s(sVb), v(vL16))
        self.s_mov_b32(s(sI), 0)
        self.label(litem)
        self.ds_read_b128(v(K0, 4), v(8)); self.ds_read_b64(v(K1, 2), v(9), mods="offset:1024")
        self.ds_read_b128(v(V0, 4), v(10)); self.ds_read_b128(v(V1, 4), v(10), mods="offset:1024")
        self.wait(lg=0)
        self.s_cmp_eq_u32(s(sI), s(sMI)); self.s_cbranch_scc0(lnm)
        self.v_mfma_f32_32x32x16_bf16(v(S, 16), v(K0, 4), v(FQ, 4), v(self.MSK, 16))
        self.s_branch(ljoin)
        self.label(lnm)
        self.v_mfma_f32_32x32x16_bf16(v(S, 16), v(K0, 4), v(FQ, 4), 0)
        self.label(ljoin)
        self.v_mfma_f32_32x32x8_bf16(v(S, 16), v(K1, 2), v(FQ + 4, 2), v(S, 16))
        self.s_cmp_lg_u32(s(sPASS), 0); self.s_cbranch_scc1(lacc)
        for r in range(16): self.v_max_f32(v(FM + r), v(FM + r), v(S + r))
        self.s_branch(lnext)
        self.label(lacc)
        for r in range(16):
            self.v_sub_f32(v(S + r), v(S + r), v(FM)); self.v_exp_f32(v(S + r), v(S + r))
        self.pack(P, S, 8)
        self.v_mfma_f32_32x32x16_bf16(v(FO, 16), v(V0, 4), v(P, 4), v(FO, 16))
        self.v_mfma_f32_32x32x16_bf16(v(FO, 16), v(V1, 4), v(P + 4, 4), v(FO, 16))
        self.label(lnext)
        self.v_add_u32(v(8), 1536, v(8)); self.v_add_u32(v(9), 1536, v(9)); self.v_add_u32(v(10), 2048, v(10))
        self.s_add_u32(s(sI), s(sI), 1); self.s_cmp_lt_u32(s(sI), s(sN)); self.s_cbranch_scc1(litem)
        self.s_cmp_eq_u32(s(sG), 0); self.s_cbranch_scc1(lpe)
        self.s_add_u32(s(sPH), s(sPH), 1); self.s_cmp_lt_u32(s(sPH), 2); self.s_cbranch_scc1(lphase)
        self.label(lpe)
        self.s_cmp_lg_u32(s(sPASS), 0); self.s_cbranch_scc1(done)
        for r in range(1, 16): self.v_max_f32(v(FM), v(FM), v(FM + r))
        self.v_mov_b32(v(FM + 1), v(FM)); self.v_permlane32_swap_b32(v(FM), v(FM + 1)); self.v_max_f32(v(FM), v(FM), v(FM + 1))
        self.s_mov_b32(s(sPASS), 1)
        self.s_branch(lpass)
        self.label(done)
        la, lb = self.newlabel("fo"), self.newlabel("fo")
        self.s_cmp_lg_u32(s(sT + 8), 0); self.s_cbranch_scc1(la)
        for r in range(16): self.v_mov_b32(v(self.OA + r), v(FO + r))
        self.s_branch(self.fallbacks[0][1])
        self.label(la)
        for r in range(16): self.v_mov_b32(v(self.OB + r), v(FO + r))
        self.s_branch(self.fallbacks[1][1])

    vOA = 160
    def o_prep(self):
        self.s_lshr_b32(s(sT), s(sS), 4); self.s_and_b32(s(sT + 1), s(sS), 15)
        self.s_lshr_b32(s(sT + 2), s(sT + 1), 1)
        self.s_cmp_ge_u32(s(sT + 2), 5); self.s_cselect_b32(s(sT + 5), 1, 0); self.s_add_u32(s(sT + 5), s(sT + 5), s(sT)); self.smul(sT + 5, sT + 5, 5)
        self.s_add_u32(s(sT + 2), s(sT + 2), s(sT + 5)); self.s_lshl_b32(s(sT + 2), s(sT + 2), 10)
        self.s_and_b32(s(sT + 3), s(sT + 1), 1); self.s_lshl_b32(s(sT + 4), s(sT + 3), 9); self.s_add_u32(s(sT + 2), s(sT + 2), s(sT + 4))
        self.smul(sT, sT, 5); self.s_lshr_b32(s(sT + 4), s(sT + 1), 3); self.s_add_u32(s(sT + 4), s(sT + 4), s(sT)); self.s_add_u32(s(sT + 4), s(sT + 4), 13)
        self.s_lshl_b32(s(sT + 4), s(sT + 4), 10)
        self.s_bfe_u32(s(sT + 5), s(sT + 1), (2 << 16) | 1); self.s_lshl_b32(s(sT + 5), s(sT + 5), 8); self.s_add_u32(s(sT + 4), s(sT + 4), s(sT + 5))
        self.s_lshl_b32(s(sT + 3), s(sT + 3), 3); self.s_add_u32(s(sT + 4), s(sT + 4), s(sT + 3))
        self.v_bfe_u32(v(4), v(vLANE), 4, 1); self.v_mul_u32_u24(v(4), 20480, v(4))
        self.v_and_b32(v(5), 15, v(vLANE)); self.v_lshl_add_u32(v(4), v(5), 4, v(4))
        self.v_lshrrev_b32(v(5), 5, v(vLANE)); self.v_lshl_add_u32(v(5), v(5), 8, v(4))
        for blk in range(2):
            if blk == 0: self.s_mov_b32(s(sT + 6), s(sW))
            else: self.s_sub_u32(s(sT + 6), 7, s(sW))
            self.smul(sT + 6, sT + 6, 40960)
            self.s_add_u32(s(sT + 7), s(sT + 6), s(sT + 2)); self.s_add_u32(s(sT + 6), s(sT + 6), s(sT + 4))
            self.v_add_u32(v(self.vOA + 2 * blk), s(sT + 7), v(5)); self.v_add_u32(v(self.vOA + 2 * blk + 1), s(sT + 6), v(4))
    def o_store(self):
        lst = []
        self.v_rcp_f32(v(8), v(self.OA + 12)); self.v_rcp_f32(v(10), v(self.OB + 12))
        self.v_mov_b32(v(9), v(8)); self.v_mov_b32(v(11), v(10))
        for blk, O in ((0, self.OA), (1, self.OB)):
            for r in range(0, 12, 2): self.v_pk_mul_f32(v(O + r, 2), v(O + r, 2), v(8 + 2 * blk, 2))
            P = 48 + 8 * blk
            self.pack(P, O, 6)
            va = self.vOA + 2 * blk
            lst += [self.store(16, v(va), v(P, 4), s(sOB, 2)), ("exec", 0xffffffff), self.store(8, v(va + 1), v(P + 4, 2), s(sOB, 2)), ("exec", -1)]
        self.stores(lst)

    def prestore(self):
        lst = []
        for blk in range(2):
            va = self.vOA + 2 * blk
            lst += [self.store(16, v(va), v(vZERO, 4), s(sOB, 2)), ("exec", 0xffffffff), self.store(8, v(va + 1), v(vZERO, 2), s(sOB, 2)), ("exec", -1)]
        self.op_prep()
        lst += [self.store(16, v(12), v(vZERO, 4), s(sAB, 2)), self.store(16, v(12), v(vZERO, 4), s(sAB, 2), 512),
                ("exec", 0x0000ffff0000ffff), self.store(16, v(12), v(vZERO, 4), s(sAB, 2), 1024), ("exec", -1)]
        self.stores(lst)

    def op_prep(self):
        self.s_lshr_b32(s(sU), s(sS), 3); self.s_lshl_b32(s(sU), s(sU), 2)
        self.s_and_b32(s(sU + 1), s(sW), 1); self.s_lshl_b32(s(sU + 1), s(sU + 1), 1); self.s_add_u32(s(sU), s(sU), s(sU + 1))
        self.s_lshr_b32(s(sU + 1), s(sW), 1)
        self.s_add_u32(s(sU + 2), s(sU), s(sU + 1)); self.s_xor_b32(s(sU + 3), s(sU + 2), 1)
        self.smul(sU + 4, sU + 1, 10240)
        for j, sr in ((0, sU + 2), (1, sU + 3)):
            self.smul(sU + 5, sr, 20480); self.s_add_u32(s(sU + 5), s(sU + 5), s(sU + 4))
            self.v_add_u32(v(8 + j), s(sU + 5), v(vL16))
        self.smul(sU + 5, sW, 5120); self.s_add_u32(s(sU + 5), s(sU + 5), L_K); self.v_add_u32(v(10), s(sU + 5), v(vL16))
        self.s_xor_b32(s(sU + 5), s(sW), 2); self.smul(sU + 5, sU + 5, 5120); self.s_add_u32(s(sU + 5), s(sU + 5), L_K)
        self.v_add_u32(v(11), s(sU + 5), v(vL16))
        self.s_lshl_b32(s(sU + 5), s(sU + 2), 1); self.smul(sU + 5, sU + 5, 10240)
        self.s_and_b32(s(sU + 6), s(sS), 7); self.smul(sU + 6, sU + 6, 1280); self.s_add_u32(s(sU + 5), s(sU + 5), s(sU + 6))
        self.v_bfe_u32(v(12), v(vLANE), 3, 1); self.v_mul_u32_u24(v(12), 10240, v(12))
        self.v_and_b32(v(13), 7, v(vLANE)); self.v_lshl_add_u32(v(12), v(13), 4, v(12))
        self.v_bfe_u32(v(13), v(vLANE), 4, 1); self.v_lshl_add_u32(v(12), v(13), 8, v(12))
        self.v_lshrrev_b32(v(13), 5, v(vLANE)); self.v_lshl_add_u32(v(12), v(13), 7, v(12))
        self.v_add_u32(v(12), s(sU + 5), v(12))
        self.v_mov_b32(v(66), 0); self.v_mov_b32(v(67), 0)
        for j in range(2): self.v_add_u32(v(68 + j), 4096, v(8 + j)); self.v_add_u32(v(70 + j), 8192, v(8 + j))
    def op_run(self):
        OF, AC, P = 96, 16, 56
        LA = 4
        def ld(kl, j):
            va = (8, 68, 70)[kl // 4] + j
            self.global_load_dwordx4(v(OF + 8 * kl + 4 * j, 4), v(va), s(sOB, 2), mods=f"offset:{(kl % 4) * 1024} sc1")
        for kl in range(LA): ld(kl, 1); ld(kl, 0)
        for kl in range(10):
            issued = 2 * min(10, kl + LA)
            for j in (1, 0):
                self.wait(vm=issued - 2 * kl - (1 if j == 1 else 2))
                for ct in range(5):
                    d = AC + 20 * j + 4 * ct
                    self.v_mfma_f32_16x16x32_bf16(v(d, 4), a((kl * 5 + ct) * 4, 4), v(OF + 8 * kl + 4 * j, 4), v(d, 4) if kl else 0)
                    if ct == 1 and kl + LA < 10:
                        ld(kl + LA, j); issued += 1
        if self.o.get("fine2"): self.stamp("op_mm")
        for ct in range(5): self.ds_write_b128(v(10), v(AC + 20 + 4 * ct, 4), mods=f"offset:{1024 * ct}")
        self.wait(lg=0); self.s_barrier()
        if self.o.get("fine2"): self.stamp("op_x")
        for ct in range(5): self.ds_read_b128(v(OF + 4 * ct, 4), v(11), mods=f"offset:{1024 * ct}")
        for ct in range(5):
            self.wait(lg=4 - ct)
            for r in (0, 2): self.v_pk_add_f32(v(AC + 4 * ct + r, 2), v(AC + 4 * ct + r, 2), v(OF + 4 * ct + r, 2))
            self.pack(P + 2 * ct, AC + 4 * ct, 2)
        for q in range(3):
            self.v_permlane16_swap_b32(v(P + 4 * q), v(P + 4 * q + 2)); self.v_permlane16_swap_b32(v(P + 4 * q + 1), v(P + 4 * q + 3))
        self.stores([self.store(16, v(12), v(P, 4), s(sAB, 2)), self.store(16, v(12), v(P + 4, 4), s(sAB, 2), 512),
                     ("exec", 0x0000ffff0000ffff), self.store(16, v(12), v(P + 8, 4), s(sAB, 2), 1024), ("exec", -1)])

    XF, AF, AP, UU, ST, YF = 16, 64, 96, 112, 40, 136
    def p4_prep(self):
        AP = self.AP
        self.smul(sU, sS, 10240); self.s_lshl_b32(s(sU + 1), s(sW), 5); self.s_add_u32(s(sU), s(sU), s(sU + 1))
        self.v_lshrrev_b32(v(8), 1, v(vLANE)); self.v_lshlrev_b32(v(8), 7, v(8))
        self.v_and_b32(v(9), 1, v(vLANE)); self.v_lshl_add_u32(v(8), v(9), 4, v(8)); self.v_add_u32(v(8), s(sU), v(8))
        self.v_add_u32(v(9), 4096, v(8)); self.v_add_u32(v(10), 8192, v(8))
        for j in range(8, 12): self.v_mov_b32(v(AP + j), 0)
        self.unpack(self.XF, vX, 12)
        self.unpack(self.YF, vY, 12)
    def p4_run(self):
        XF, AF, AP, UU, ST, YF = self.XF, self.AF, self.AP, self.UU, self.ST, self.YF
        self.global_load_dwordx4(v(AP, 4), v(8), s(sAB, 2), mods="sc1")
        self.global_load_dwordx4(v(AP + 4, 4), v(9), s(sAB, 2), mods="sc1")
        self.setexec(0xffffffff)
        self.global_load_dwordx4(v(AP + 8, 4), v(10), s(sAB, 2), mods="sc1")
        self.setexec(-1)
        for m in range(3):
            self.wait(vm=2 - m)
            self.unpack(AF + 8 * m, AP + 4 * m, 4)
            for j in range(4 * m, 4 * m + 4): self.v_pk_add_f32(v(XF + 2 * j, 2), v(XF + 2 * j, 2), v(AF + 2 * j, 2))
        if self.o.get("fine2"): self.stamp("p4_ld")
        self.ln_stats(XF, ST)
        for j in range(12): self.v_pk_fma_f32(v(UU + 2 * j, 2), v(XF + 2 * j, 2), v(ST, 2), v(ST + 2, 2))
        for j in range(12): self.v_pk_fma_f32(v(XF + 2 * j, 2), v(UU + 2 * j, 2), v(YF + 2 * j, 2), v(XF + 2 * j, 2))
    def p4_z(self):
        XF, ST = self.XF, self.ST
        self.ln_stats(XF, ST)
        for j in range(12): self.v_pk_fma_f32(v(self.UU + 2 * j, 2), v(XF + 2 * j, 2), v(ST, 2), v(ST + 2, 2))
        self.pack(56, self.UU, 12)

    def y_flag(self):
        lab = self.newlabel("ys")
        self.s_cmp_lg_u32(s(sW), 0); self.s_cbranch_scc1(lab)
        self.s_lshl_b32(s(sT), s(2), 7); self.s_add_u32(s(sT), s(sT), hex(OFF_YFL))
        self.s_add_u32(s(sT + 1), s(sTOK), 32)
        self.v_mov_b32(v(4), s(sT)); self.v_mov_b32(v(5), s(sT + 1))
        self.setexec(1); self.global_store_dword(v(4), v(5), s(sWS, 2), mods="sc1"); self.setexec(-1)
        self.label(lab)
    def y_wait2(self):
        self.v_lshlrev_b32(v(8), 7, v(vTID)); self.v_add_u32(v(8), OFF_YFL, v(8))
        self.s_add_u32(s(sT + 1), s(sTOK), 32); self.s_mov_b64(s(sT + 2, 2), -1)
        self.poll2(sWS, 8, sT + 1, sT + 2)
        self.s_barrier()
        lab = self.newlabel("nu")
        self.s_cmp_lg_u32(s(2), 0); self.s_cbranch_scc1(lab)
        self.s_cmp_lg_u32(s(sW), 0); self.s_cbranch_scc1(lab)
        self.v_mov_b32(v(8), OFF_N); self.v_mov_b32(v(9), s(sTOK))
        self.setexec(1); self.global_store_dword(v(8), v(9), s(sWS, 2), mods="sc1"); self.setexec(-1)
        self.label(lab)

    def add_nt(self):
        if self.o.get("no_nt"): return
        single = {s(sX, 2), s(sSH, 2), s(sSD, 2)}
        srd_src = None
        for it in self.items:
            if not isinstance(it, Ins): continue
            if it.op == "s_mov_b32" and it.ops[0] == s(sSRD): srd_src = it.ops[1]
            if it.op.startswith("global_load") and it.ops[-1] in single and "nt" not in it.mods: it.mods = (it.mods + " nt").strip()
            if it.op.startswith("buffer_load") and srd_src in (s(sBK), s(sBV), s(sSK)) and "nt" not in it.mods: it.mods = (it.mods + " nt").strip()
    def finish(self):
        self.add_nt()
        self.label("L_END")
        self.s_endpgm()
        self.emit_cold2()
        self.label("L_HOTEND")
        self.emit_cold()
        self.emit_fallbacks()
        self.s_endpgm()

    def build(self):
        self.fallbacks = []
        self.setup2()
        NW1, NW2, NW3 = self.o.get("nw1", 4), self.o.get("nw2", 12), self.o.get("nw3", 20)
        self.issue_x()
        self.v_mov_b32(v(87), OFF_N)
        self.global_load_dword(v(87), v(87), s(sWS, 2), mods="sc1")
        self.w_addr()
        self.w_issue(0, NW1)
        if self.o.get("d2"): self.dstamp(1)
        self.stamp("w1iss")
        for r in range(4): self.v_mov_b32(v(vZERO + r), 0)
        self.v_and_b32(v(vPL), 31, v(vLANE)); self.v_lshlrev_b32(v(vPL), 7, v(vPL))
        self.s_lshl_b32(s(sT), s(sS), 7); self.v_mov_b32(v(vSO), s(sT))
        self.v_mov_b32(v(4), L_CNT); self.ds_write_b32(v(4), v(vZERO))
        self.z_addr(8)
        self.wait(vm=NW1)
        if self.o.get("d2"): self.dstamp(2)
        self.p0_ln()
        self.v_readfirstlane_b32(s(sTOK), v(87))
        self.s_add_u32(s(sTOK), s(sTOK), hex(NONCE_C))
        self.layer_bases2()
        self.stores_sc1(self.z_store_list(56, sZB, 8))
        lab = self.newlabel("xp")
        self.s_cmp_lg_u32(s(sW), 0); self.s_cbranch_scc1(lab)
        self.s_lshl_b32(s(sT), s(sG), 5); self.s_add_u32(s(sT), s(sT), s(sS)); self.s_lshl_b32(s(sT), s(sT), 7); self.s_add_u32(s(sT), s(sT), hex(OFF_XCC))
        self.s_add_u32(s(sT + 1), s(sTOK), s(sXCC)); self.s_add_u32(s(sT + 1), s(sT + 1), 64)
        self.v_mov_b32(v(4), s(sT)); self.v_mov_b32(v(5), s(sT + 1))
        self.setexec(1); self.global_store_dword(v(4), v(5), s(sWS, 2), mods="sc1"); self.setexec(-1)
        self.label(lab)
        self.stamp("z0st")
        if self.o.get("d2"): self.dstamp(3)
        self.w_issue(NW1, NW2)
        if self.o.get("d2"): self.dstamp(4)
        self.wait(vm=NW2 - NW1)
        self.s_barrier()
        lab = self.newlabel("f0")
        self.s_cmp_lg_u32(s(sW), 0); self.s_cbranch_scc1(lab)
        self.v_mov_b32(v(4), s(sEXP))
        self.setexec(1)
        self.global_store_dword(v(vSO), v(4), s(sFZ, 2), mods="sc1")
        self.setexec(-1)
        self.label(lab)
        self.stamp("flags"); self.dstamp(5 if self.o.get("d2") else 1)
        sub = K2(stamps=False, opts=self.o); sub.uid = self.uid + 100000; sub.cold = []; sub.cold2 = []
        sub.w_lds(0, NW1)
        sub.w_zero()
        sub.s_lshl_b32(s(sT + 4), s(sW), 2); sub.lanemask(sM0, s(sT + 4), 4)
        sub.s_sub_u32(s(sT + 4), 28, s(sT + 4)); sub.lanemask(sMZ, s(sT + 4), 4); sub.s_or_b64(s(sMZ, 2), s(sMZ, 2), s(sM0, 2))
        sub.s_mov_b32(s(sMO), -1); sub.s_mov_b32(s(sMO + 1), 0)
        sub.s_lshr_b32(s(sT + 4), s(sS), 3); sub.s_lshl_b32(s(sT + 4), s(sT + 4), 3); sub.lanemask(sMA, s(sT + 4), 8)
        sub.epi_prep(); sub.qkv_addr(); sub.mask_gen(False)
        self.uid = sub.uid
        self.splice_w(sub.items, range(NW2, 32))
        self.code_prefetch(86)
        self.stamp("prep")
        if self.o.get("d2"): self.dstamp(8)
        self.first_flags()
        if self.o.get("d2"): self.dstamp(9)
        self.qkv_zissue()
        if self.o.get("d2"): self.dstamp(10)
        self.w_lds(NW1, 32)
        self.wait(lg=0); self.s_barrier()
        self.stamp("wlds"); self.dstamp(11 if self.o.get("d2") else 2); self._d2ok = False
        self.qkv_init()
        self.s_branch("L_QKV")
        self.label("L_LAYER")
        self.layer_bases2()
        self.epi_prep(); self.mask_gen(False)
        self.qkv_addr(); self.qkv_init()
        self.poll2(sFZ, vPL, sEXP, sMZ)
        self.stamp("zwait")
        self.qkv_zissue()
        self.label("L_QKV")
        self.qkv_run()
        self.stamp("qkv"); self.dstamp(3, True)
        self.epi_run()
        self.stamp("epi")
        lab = self.newlabel("aux0")
        self.s_cmp_lg_u32(s(sL), 0); self.s_cbranch_scc1(lab)
        self.c0_issue()
        self.label(lab)
        self.attn_local()
        self.stamp("local"); self.dstamp(4, True)
        self.o_prep()
        lab = self.newlabel("aux1")
        self.s_cmp_lg_u32(s(sL), 0); self.s_cbranch_scc1(lab)
        self.c0_taps()
        self.c0_compute([])
        self.stamp("c0")
        self.label(lab)
        nohalo = self.newlabel("nohalo")
        self.s_cmp_eq_u32(s(sG), 0); self.s_cbranch_scc1(nohalo)
        self.halo_prep()
        self.halo_issue()
        self.label(nohalo)
        l1path, landed = self.newlabel("l1p"), self.newlabel("landed")
        self.s_cmp_lg_u32(s(sL), 0); self.s_cbranch_scc1(l1path)
        self.c0_tail()
        nh = self.newlabel("nh")
        self.s_cmp_eq_u32(s(sG), 0); self.s_cbranch_scc1(nh)
        self.halo_land(2)
        self.label(nh)
        self.wait(vm=0, lg=0); self.s_barrier()
        self.s_branch(landed)
        self.label(l1path)
        self.s_cmp_eq_u32(s(sG), 0); self.s_cbranch_scc1(landed)
        self.halo_land(0)
        self.wait(lg=0); self.s_barrier()
        self.label(landed)
        self.stamp("halof")
        lab = self.newlabel("aux1a")
        self.s_cmp_lg_u32(s(sL), 0); self.s_cbranch_scc1(lab)
        l2 = self.newlabel("fr")
        self.s_cmp_lg_u32(s(sW), 0); self.s_cbranch_scc1(l2)
        self.rflag_base(sT); self.s_add_u32(s(sT + 2), s(sTOK), 7); self.v_mov_b32(v(5), s(sT + 2))
        self.setexec(1); self.global_store_dword(v(vSO), v(5), s(sT, 2), mods="sc1"); self.setexec(-1)
        self.label(l2)
        self.conv_h_issue()
        self.label(lab)
        nohalo = self.newlabel("nohalo")
        self.s_cmp_eq_u32(s(sG), 0); self.s_cbranch_scc1(nohalo)
        self.attn_halo()
        self.label(nohalo)
        self.stamp("halo"); self.dstamp(6, True)
        lab = self.newlabel("aux1c")
        self.s_cmp_lg_u32(s(sL), 0); self.s_cbranch_scc1(lab)
        self.rflag_base(sT + 10)
        self.global_load_dword(v(170), v(vPL), s(sT + 10, 2), mods="sc1")
        self.label(lab)
        self.range_check()
        self.o_store()
        lab, l1p = self.newlabel("aux1b"), self.newlabel("aux1p")
        self.s_add_u32(s(sT), s(sEXP), 1); self.v_mov_b32(v(171), s(sT))
        self.s_cmp_lg_u32(s(sL), 0); self.s_cbranch_scc1(l1p)
        ok = self.newlabel("rfok")
        self.wait(vm=4)
        self.s_add_u32(s(sT + 2), s(sTOK), 7)
        self.v_cmp_ne_u32("vcc", s(sT + 2), v(170)); self.s_cmp_eq_u64("vcc", 0); self.s_cbranch_scc1(ok)
        self.rflag_base(sT); self.s_mov_b64(s(sM1, 2), -1)
        self.poll2(sT, vPL, sT + 2, sM1)
        self.label(ok)
        self.conv_r_issue()
        self.wait(vm=3)
        self.s_branch(lab)
        self.label(l1p)
        self.wait(vm=0)
        self.label(lab)
        self.s_barrier()
        self.flag_store(sFO, 171)
        self.stamp("osig")
        lab = self.newlabel("aux2")
        self.s_cmp_lg_u32(s(sL), 0); self.s_cbranch_scc1(lab)
        self.conv1_run()
        self.stamp("conv1")
        self.conv2_run()
        self.stamp("conv2")
        self.wait(vm=3)
        self.wo_stage()
        self.stamp("wo"); self.dstamp(5)
        self.label(lab)
        self.op_prep()
        self.s_add_u32(s(sT + 8), s(sEXP), 1)
        self.poll2(sFO, vPL, sT + 8, sMO)
        self.stamp("owait")
        self.op_run()
        if self.o.get("fine2"): self.stamp("op_st")
        lab, l1p = self.newlabel("ydone"), self.newlabel("yl1")
        self.s_add_u32(s(sT), s(sEXP), 2); self.v_mov_b32(v(176), s(sT))
        self.s_cmp_lg_u32(s(sL), 0); self.s_cbranch_scc1(l1p)
        self.y_wait2()
        self.flag_store(sFA, 176)
        self.stamp("asig"); self.dstamp(7, True)
        self.y_load()
        self.stamp("yld")
        self.s_branch(lab)
        self.label(l1p)
        self.signal2(sFA, 176)
        self.stamp("asig2")
        self.label(lab)
        self.p4_prep()
        self.s_add_u32(s(sT + 8), s(sEXP), 2)
        self.poll2(sFA, vPL, sT + 8, sMA)
        self.stamp("await")
        self.p4_run()
        self.s_cmp_lg_u32(s(sL), 0); self.s_cbranch_scc1("L_FINAL")
        self.z_addr(8)
        self.p4_z()
        self.stores(self.z_store_list(56, sZN, 8))
        if self.o.get("fine2"): self.stamp("p4_st")
        self.pack(vX, self.XF, 12)
        self.s_add_u32(s(sT), s(sEXP), 3); self.v_mov_b32(v(5), s(sT))
        self.signal2(sFN, 5)
        self.stamp("p4")
        self.s_mov_b32(s(sL), 1)
        self.s_branch("L_LAYER")
        self.label("L_FINAL")
        self.pack(vX, self.XF, 12)
        self.out_store()
        if self.o.get("span"):
            self.wait(vm=0); self.stamps = True
        self.stamp("end")
        self.dflush()
        return self.finish()

if __name__ == "__main__":
    import argparse
    ap = argparse.ArgumentParser()
    ap.add_argument("-o", default="k2.s"); ap.add_argument("--stamps", action="store_true")
    ap.add_argument("--slow", action="store_true"); ap.add_argument("-v", action="store_true"); ap.add_argument("--opt", default="")
    a_ = ap.parse_args()
    k = K2(stamps=a_.stamps, opts=dict({"force_slow": a_.slow}, **{x.split("=")[0]: (int(x.split("=")[1]) if "=" in x else 1) for x in a_.opt.split(",") if x}))
    k.build()
    ins = k.fix_all(verbose=a_.v)
    open(a_.o, "w").write(render_file(k))
    n = sum(1 for it in k.items if isinstance(it, Ins))
    print("instructions:", n, "nops inserted:", len(ins), "stamps:", ",".join(k.stamp_names))
```

```python
import sys, math
from asm import *
import kern2 as K2M
from kern2 import *
from kern2 import (sEXP, sHEXP, sFZ, sFO, sFA, sFN, sZB, sOB, sAB, sHB, sHP, sZN, sHFO, sHFI, sMZ, sMO, sMA, vL8, vPL, vZERO, vSO,
                   OFF_FL2, L_CNT)

class K4(K2):
    CD, CDV, C2D, C2DV, CR, C2R, CE, C2E = 168, 186, 188, 194, 196, 204, 112, 120
    CH0, CH1, CH2 = L_K, L_K + 24832, L_HK
    sB1, sCH1, sHW, sCH2 = sU + 8, sU + 9, sU + 10, sU + 11
    vA1, vB1, vA2, vB2, vR1, vR2 = 74, 75, 76, 77, 70, 71
    C0T, C0TAP = L_W, L_W + 12288
    WOL = (64, 128)
    vWG = 78
    sWQ2 = sU + 12
    N_C0 = 1

    def c0_issue(self):
        KP, VP, RG, CC = self.CKP, self.CVP, self.CRG, self.CCC
        self.s_mov_b32(s(sSRD), s(sBK)); self.s_mov_b32(s(sSRD + 1), s(sBK + 1))
        self.s_mov_b32(s(sSRD + 2), 2048 * 1280); self.s_mov_b32(s(sSRD + 3), "0x00020000")
        self.v_min_u32(v(4), 159, v(vTID))
        self.v_mul_u32_u24(v(RG), 6554, v(4)); self.v_lshrrev_b32(v(RG), 16, v(RG))
        self.v_mul_u32_u24(v(CC), 10, v(RG)); self.v_sub_u32(v(CC), v(4), v(CC))
        self.s_lshl_b32(s(sT), s(sS), 6); self.s_sub_u32(s(sT), s(sT), 3)
        self.v_lshl_add_u32(v(4), v(RG), 2, s(sT))
        self.s_mov_b32(s(sT + 1), 1280); self.v_mul_lo_u32(v(4), s(sT + 1), v(4))
        self.smul(sT + 2, sG, 160); self.v_lshl_add_u32(v(5), v(CC), 4, s(sT + 2)); self.v_add_u32(v(4), v(4), v(5))
        for j in range(7):
            self.buffer_load_dwordx4(v(KP + 4 * j, 4), v(4), s(sSRD, 4), 0, mods="offen")
            if j == 2: self.v_add_u32(v(5), 1280, v(4))
            if j < 6: self.v_add_u32(v(4), 1280, v(4))
        self.s_mov_b32(s(sSRD), s(sBV)); self.s_mov_b32(s(sSRD + 1), s(sBV + 1))
        for j in range(4):
            self.buffer_load_dwordx4(v(VP + 4 * j, 4), v(5), s(sSRD, 4), 0, mods="offen")
            if j < 3: self.v_add_u32(v(5), 1280, v(5))
        self.smul(sT + 2, sG, 640); self.v_min_u32(v(4), 39, v(vLANE)); self.v_lshl_add_u32(v(4), v(4), 4, s(sT + 2))
        self.global_load_dwordx4(v(self.CTP, 4), v(4), s(sSH, 2))
    def c0_taps(self):
        self.v_min_u32(v(4), 39, v(vLANE)); self.v_lshlrev_b32(v(4), 4, v(4)); self.v_add_u32(v(4), self.C0TAP, v(4))
        self.ds_write_b128(v(4), v(self.CTP, 4))
        self.v_lshlrev_b32(v(5), 6, v(self.CCC)); self.v_add_u32(v(5), self.C0TAP, v(5))
        self.wait(lg=0); self.s_barrier()
        for j in range(4): self.ds_read_b128(v(self.CSP + 4 * j, 4), v(5), mods=f"offset:{16 * j}")
    def c0_all(self, splice):
        n0 = len(self.items)
        self.c0_compute(splice); self.c0_tail()
        for it in self.items[n0:]:
            if isinstance(it, Ins) and it.op == "v_add_u32":
                if it.ops[1] == str(L_K + 120): it.ops[1] = str(self.C0T + 120)
                elif it.ops[1] == str(L_K): it.ops[1] = str(self.C0T)

    def conv_ids(self):
        self.s_lshr_b32(s(sT), s(sW), 1); self.smul(self.sB1, sT, 24832); self.s_add_u32(s(self.sB1), s(self.sB1), L_K)
        self.smul(sT + 1, sG, 80); self.s_lshl_b32(s(self.sCH1), s(sS), 1); self.s_add_u32(s(self.sCH1), s(self.sCH1), s(sT + 1))
        self.s_add_u32(s(self.sCH1), s(self.sCH1), s(sT)); self.s_and_b32(s(self.sHW), s(sW), 1)
        self.s_lshr_b32(s(self.sCH2), s(sS), 1); self.s_add_u32(s(self.sCH2), s(self.sCH2), s(sT + 1)); self.s_add_u32(s(self.sCH2), s(self.sCH2), 64)
    def conv_h_issue(self):
        D = self.CD
        self.conv_srd()
        self.s_lshl_b32(s(sT + 3), s(self.sCH1), 12)
        self.v_and_b32(v(4), 127, v(vTID)); self.v_lshlrev_b32(v(4), 4, v(4))
        for i in range(2):
            self.buffer_load_dwordx4(v(D + 8 * i, 4), v(4), s(sSRD, 4), s(sT + 3), mods=f"offen offset:{2048 * i}")
            self.buffer_load_dwordx2(v(D + 8 * i + 4, 2), v(4), s(sSRD, 4), s(sT + 3), mods=f"offen offset:{2048 * i + 16}")
        self.s_lshr_b32(s(sT + 4), s(self.sCH1), 1); self.s_lshl_b32(s(sT + 4), s(sT + 4), 2); self.v_mov_b32(v(5), s(sT + 4))
        self.global_load_dword(v(self.CDV), v(5), s(sSD, 2))
        self.s_lshl_b32(s(sT + 3), s(self.sCH2), 12)
        self.v_lshlrev_b32(v(4), 4, v(vTID))
        self.buffer_load_dwordx4(v(self.C2D, 4), v(4), s(sSRD, 4), s(sT + 3), mods="offen")
        self.buffer_load_dwordx2(v(self.C2D + 4, 2), v(4), s(sSRD, 4), s(sT + 3), mods="offen offset:16")
        self.s_lshr_b32(s(sT + 4), s(self.sCH2), 1); self.s_lshl_b32(s(sT + 4), s(sT + 4), 2); self.v_mov_b32(v(5), s(sT + 4))
        self.global_load_dword(v(self.C2DV), v(5), s(sSD, 2))
    def conv_fill_h(self):
        sB1 = self.sB1
        self.v_and_b32(v(8), 127, v(vTID)); self.v_lshlrev_b32(v(9), 4, v(8)); self.v_add_u32(v(11), s(sB1), v(9))
        self.ds_write_b128(v(11), v(vZERO, 4), mods=f"offset:{16640 + 320 * 16}")
        self.v_and_b32(v(16), 63, v(8)); self.v_lshlrev_b32(v(16), 4, v(16)); self.v_add_u32(v(16), s(sB1), v(16))
        self.ds_write_b128(v(16), v(vZERO, 4), mods=f"offset:{16640 + 448 * 16}")
        self.v_add_u32(v(11), 64, v(11))
        self.v_lshrrev_b32(v(self.vR1), 2, v(8)); self.v_add_u32(v(self.vR1), v(self.vR1), v(8)); self.v_lshlrev_b32(v(self.vR1), 4, v(self.vR1))
        self.v_add_u32(v(self.vR1), s(sB1), v(self.vR1))
        for i in range(2): self.conv_copies(11, self.CD + 8 * i, self.CE + 4 * i, 2048 * i)
        self.v_min_u32(v(16), 191, v(vTID)); self.v_lshlrev_b32(v(16), 4, v(16)); self.v_add_u32(v(16), self.CH2, v(16))
        self.ds_write_b128(v(16), v(vZERO, 4), mods=f"offset:{16640 + 320 * 16}")
        self.v_lshlrev_b32(v(11), 4, v(vTID)); self.v_add_u32(v(11), self.CH2 + 64, v(11))
        self.v_lshrrev_b32(v(self.vR2), 2, v(vTID)); self.v_add_u32(v(self.vR2), v(self.vR2), v(vTID)); self.v_lshlrev_b32(v(self.vR2), 4, v(self.vR2))
        self.v_add_u32(v(self.vR2), self.CH2, v(self.vR2))
        self.conv_copies(11, self.C2D, self.C2E, 0)
        lab = self.newlabel("hd")
        self.s_cmp_lg_u32(s(self.sHW), 0); self.s_cbranch_scc1(lab)
        self.conv_head(sB1, self.sCH1, self.CD, self.CDV)
        self.label(lab)
        lab = self.newlabel("hd")
        self.s_cmp_lg_u32(s(sW), 0); self.s_cbranch_scc1(lab)
        self.s_mov_b32(s(sT + 10), self.CH2)
        self.conv_head(sT + 10, self.sCH2, self.C2D, self.C2DV)
        self.label(lab)
    def conv_addr2(self, va, vb, sbase, sstep0):
        self.v_and_b32(v(10), 3, v(vLANE)); self.v_mul_u32_u24(v(10), 4160, v(10))
        self.v_bfe_u32(v(11), v(vLANE), 2, 3); self.v_lshl_add_u32(v(10), v(11), 3, v(10))
        self.v_lshrrev_b32(v(11), 5, v(vLANE)); self.v_lshl_add_u32(v(10), v(11), 4, v(10))
        self.s_lshl_b32(s(sT + 6), s(sstep0), 5); self.s_add_u32(s(sT + 6), s(sT + 6), s(sbase)); self.v_add_u32(v(va), s(sT + 6), v(10))
        self.v_and_b32(v(10), 31, v(vLANE)); self.v_sub_u32(v(10), 31, v(10)); self.v_mul_u32_u24(v(10), 5, v(10))
        self.v_add_u32(v(10), v(10), v(11)); self.v_lshlrev_b32(v(10), 4, v(10))
        self.smul(sT + 6, sstep0, 40); self.s_add_u32(s(sT + 6), s(sT + 6), s(sbase)); self.s_add_u32(s(sT + 6), s(sT + 6), 16640)
        self.v_add_u32(v(vb), s(sT + 6), v(10))
    def conv_addrs(self):
        self.s_lshl_b32(s(sT + 5), s(self.sHW), 5); self.conv_addr2(self.vA1, self.vB1, self.sB1, sT + 5)
        self.s_mov_b32(s(sT + 10), self.CH2); self.s_lshl_b32(s(sT + 5), s(sW), 4); self.conv_addr2(self.vA2, self.vB2, sT + 10, sT + 5)
    def conv_r_issue(self):
        self.s_lshl_b32(s(sT + 3), s(self.sCH1), 12); self.s_add_u32(s(sT + 3), s(sT + 3), hex(OFF_R))
        self.v_and_b32(v(4), 127, v(vTID)); self.v_lshl_add_u32(v(4), v(4), 4, s(sT + 3))
        self.global_load_dwordx4(v(self.CR, 4), v(4), s(sWS, 2), mods="sc1")
        self.global_load_dwordx4(v(self.CR + 4, 4), v(4), s(sWS, 2), mods="offset:2048 sc1")
        self.s_lshl_b32(s(sT + 3), s(self.sCH2), 12); self.s_add_u32(s(sT + 3), s(sT + 3), hex(OFF_R))
        self.v_lshl_add_u32(v(4), v(vTID), 4, s(sT + 3))
        self.global_load_dwordx4(v(self.C2R, 4), v(4), s(sWS, 2), mods="sc1")
    def conv_fill_r(self, younger):
        self.wait(vm=1 + younger)
        self.ds_write_b128(v(self.vR1), v(self.CR, 4), mods="offset:16640"); self.ds_write_b128(v(self.vR1), v(self.CR + 4, 4), mods=f"offset:{16640 + 160 * 16}")
        self.wait(vm=younger)
        self.ds_write_b128(v(self.vR2), v(self.C2R, 4), mods="offset:16640")
        self.wait(lg=0); self.s_barrier()

    NE = 6
    def w_one2(self, i):
        self.s_mov_b32(s(sT + 3), i * 5 * 3840)
        self.setexec(self.WM)
        self.buffer_load_dwordx4(a(4 * (i - 16), 4), v(90), s(sSRD, 4), s(sT + 3), mods="offen")
        self.setexec(-1)
    def w_lds2(self, lo, hi):
        m128 = sum(1 << l for l in range(60) if (l & 3) < 2); m64 = sum(1 << l for l in range(60) if (l & 3) == 2)
        self.setexec(m128)
        for i in range(lo, hi): self.ds_write_b128(v(91), a(4 * (i - 16), 4), mods=f"offset:{320 * i}")
        self.setexec(m64)
        for i in range(lo, hi): self.ds_write_b64(v(91), a(4 * (i - 16), 2), mods=f"offset:{320 * i}")
        self.setexec(-1)

    LO, HI, AC, F = 16, 32, 48, 96
    def conv_mains(self, extra):
        LO, HI, AC, F = self.LO, self.HI, self.AC, self.F
        vA, vB = self.vA1, self.vB1
        def rd(m):
            f = F + 16 * (m & 3); oa = 32 * m; ob = 80 * (m >> 1) + 32 * (m & 1)
            return [lambda: self.ds_read_b64(v(f, 2), v(vA), mods=f"offset:{oa}"), lambda: self.ds_read_b64(v(f + 2, 2), v(vA), mods=f"offset:{oa + 8}"),
                    lambda: self.ds_read_b128(v(f + 8, 4), v(vB), mods=f"offset:{ob + 2560}"), lambda: self.ds_read_b128(v(f + 12, 4), v(vB), mods=f"offset:{ob}"),
                    lambda: self.ds_read_b64(v(f + 4, 2), v(vA), mods=f"offset:{oa + 2048}"), lambda: self.ds_read_b64(v(f + 6, 2), v(vA), mods=f"offset:{oa + 2056}")]
        self.zero16(LO); self.zero16(HI); self.zero16(AC)
        self.s_mov_b32(s(sSRD), s(self.sWQ2)); self.s_mov_b32(s(sSRD + 1), s(self.sWQ2 + 1))
        self.s_mov_b32(s(sSRD + 2), 640 * 1920 * 2); self.s_mov_b32(s(sSRD + 3), "0x00020000")
        pieces = [[] for _ in range(32)]
        n = sum(1 for it in extra if isinstance(it, Ins)); per = max(1, -(-n // 30)); k = 0; cnt = 0; full = True; inbr = set()
        for it in extra:
            if isinstance(it, Ins):
                if cnt >= per and full and not inbr and k < 31: k += 1; cnt = 0
                if it.ops and it.ops[0] in ("exec", "exec_lo", "exec_hi"): full = (it.op == "s_mov_b64" and it.ops[1] == "-1")
                if it.kind == "branch": inbr.add(it.target)
                cnt += 1
            elif it[0] == "label": inbr.discard(it[1])
            pieces[k].append(it)
        for m in (0, 1):
            for f_ in rd(m): f_()
        for m in range(32):
            f = F + 16 * (m & 3)
            nx = rd(m + 2) if m + 2 < 32 else [lambda: None] * 6
            self.wait(lg=6 if m < 31 else 0)
            self.v_mfma_f32_32x32x16_bf16(v(LO, 16), v(f, 4), v(f + 8, 4), v(LO, 16)); nx[0](); nx[1]()
            self.v_mfma_f32_32x32x16_bf16(v(HI, 16), v(f, 4), v(f + 12, 4), v(HI, 16)); nx[2](); nx[3]()
            self.items += pieces[m]
            self.v_mfma_f32_32x32x16_bf16(v(HI, 16), v(f + 4, 4), v(f + 8, 4), v(HI, 16)); nx[4](); nx[5]()
            if m < 16: self.w_one2(16 + m)
            else:
                if m == 16: self.wo_srd()
                self.wo_issue_one(m - 16)
        vA, vB = self.vA2, self.vB2
        lhi, ldone = self.newlabel("c2hi"), self.newlabel("c2d")
        self.s_and_b32(s(sT + 5), s(sS), 1); self.s_cbranch_scc1(lhi)
        for hi in (0, 1):
            if hi: self.label(lhi)
            nrd = 5 if hi else 3
            def rd2(m):
                f = F + 16 * (m & 3); oa = 32 * m; ob = 80 * (m >> 1) + 32 * (m & 1)
                l = [lambda: self.ds_read_b64(v(f, 2), v(vA), mods=f"offset:{oa}"), lambda: self.ds_read_b64(v(f + 2, 2), v(vA), mods=f"offset:{oa + 8}"),
                     lambda: self.ds_read_b128(v(f + 8, 4), v(vB), mods=f"offset:{ob + 2560}")]
                if hi:
                    l += [lambda: self.ds_read_b128(v(f + 12, 4), v(vB), mods=f"offset:{ob}"),
                          lambda: self.ds_read_b64(v(f + 4, 2), v(vA), mods=f"offset:{oa + 2048}"), lambda: self.ds_read_b64(v(f + 6, 2), v(vA), mods=f"offset:{oa + 2056}")]
                return l
            nr = 6 if hi else 3
            for m in (0, 1):
                for f_ in rd2(m): f_()
            for m in range(16):
                f = F + 16 * (m & 3)
                nx = rd2(m + 2) if m + 2 < 16 else [lambda: None] * nr
                self.wait(lg=nr if m < 15 else 0)
                if hi:
                    self.v_mfma_f32_32x32x16_bf16(v(AC, 16), v(f, 4), v(f + 12, 4), v(AC, 16)); nx[0](); nx[1](); nx[2]()
                    self.v_mfma_f32_32x32x16_bf16(v(AC, 16), v(f + 4, 4), v(f + 8, 4), v(AC, 16)); nx[3](); nx[4](); nx[5]()
                else:
                    self.v_mfma_f32_32x32x16_bf16(v(AC, 16), v(f, 4), v(f + 8, 4), v(AC, 16)); nx[0](); nx[1](); nx[2]()
                self.wo_issue_one(16 + m)
            if not hi: self.s_branch(ldone)
        self.label(ldone)

    def conv_tails(self):
        LO, HI, AC, F = self.LO, self.HI, self.AC, self.F
        X1, X2, TO1, TO2 = self.CH0, self.CH1, self.CH2, self.CH2 + 8192
        self.s_lshl_b32(s(sT + 6), s(sW), 12); self.v_add_u32(v(64), s(sT + 6), v(vL16))
        self.s_xor_b32(s(sT + 7), s(sW), 1); self.s_lshl_b32(s(sT + 7), s(sT + 7), 12); self.s_add_u32(s(sT + 7), s(sT + 7), X1); self.v_add_u32(v(67), s(sT + 7), v(vL16))
        self.v_add_u32(v(66), X1, v(64)); self.v_add_u32(v(65), X2, v(64))
        self.s_lshl_b32(s(sT + 6), s(sW), 10); self.s_add_u32(s(sT + 6), s(sT + 6), X2); self.v_add_u32(v(64), s(sT + 6), v(vL16))
        self.v_and_b32(v(70), 31, v(vLANE)); self.v_lshlrev_b32(v(70), 6, v(70))
        self.v_lshrrev_b32(v(71), 5, v(vLANE)); self.v_lshl_add_u32(v(70), v(71), 3, v(70))
        self.s_lshl_b32(s(sT + 6), s(sW), 11); self.s_add_u32(s(sT + 6), s(sT + 6), TO1); self.v_add_u32(v(71), s(sT + 6), v(70)); self.v_add_u32(v(72), s(sT + 6), v(vL16))
        self.s_lshl_b32(s(sT + 6), s(sW), 4); self.s_add_u32(s(sT + 6), s(sT + 6), TO2); self.v_add_u32(v(70), s(sT + 6), v(70))
        self.s_lshl_b32(s(sT + 6), s(self.sHW), 11); self.s_lshl_b32(s(sT + 7), s(self.sCH1), 12); self.s_add_u32(s(sT + 6), s(sT + 6), s(sT + 7))
        self.s_add_u32(s(sT + 6), s(sT + 6), hex(OFF_Y)); self.v_add_u32(v(73), s(sT + 6), v(vL16))
        self.s_barrier()
        l1, l2 = self.newlabel("cx"), self.newlabel("cy")
        self.s_cmp_lg_u32(s(self.sHW), 0); self.s_cbranch_scc1(l1)
        for q in range(4): self.ds_write_b128(v(66), v(HI + 4 * q, 4), mods=f"offset:{1024 * q}")
        self.s_branch(l2)
        self.label(l1)
        for q in range(4): self.ds_write_b128(v(66), v(LO + 4 * q, 4), mods=f"offset:{1024 * q}")
        self.label(l2)
        for q in range(4): self.ds_write_b128(v(65), v(AC + 4 * q, 4), mods=f"offset:{1024 * q}")
        self.wait(lg=0); self.s_barrier()
        for q in range(4): self.ds_read_b128(v(F + 4 * q, 4), v(67), mods=f"offset:{1024 * q}")
        for q in range(4): self.ds_read_b128(v(F + 16 + 4 * q, 4), v(64), mods=f"offset:{4096 * q}")
        l1, l2 = self.newlabel("cx"), self.newlabel("cy")
        self.s_cmp_lg_u32(s(self.sHW), 0); self.s_cbranch_scc1(l1)
        for role, keep in enumerate((LO, HI)):
            if role: self.label(l1)
            for q in range(4):
                self.wait(lg=7 - q)
                for r in (0, 2): self.v_pk_add_f32(v(keep + 4 * q + r, 2), v(keep + 4 * q + r, 2), v(F + 4 * q + r, 2))
                self.pack(F + 32 + 2 * q, keep + 4 * q, 2)
            if role == 0: self.s_branch(l2)
        self.label(l2)
        for q in range(4): self.ds_write_b64(v(71), v(F + 32 + 2 * q, 2), mods=f"offset:{16 * q}")
        self.wait(lg=4)
        G = F + 16
        for r in (0, 2):
            self.v_pk_add_f32(v(G + r, 2), v(G + r, 2), v(G + 4 + r, 2)); self.v_pk_add_f32(v(G + 8 + r, 2), v(G + 8 + r, 2), v(G + 12 + r, 2))
        for r in (0, 2): self.v_pk_add_f32(v(G + r, 2), v(G + r, 2), v(G + 8 + r, 2))
        self.pack(F + 40, G, 2)
        self.ds_write_b64(v(70), v(F + 40, 2))
        self.ds_read_b128(v(LO, 4), v(72)); self.ds_read_b128(v(LO + 4, 4), v(72), mods="offset:1024")
        self.s_and_b32(s(sT + 6), s(sS), 1); self.s_lshl_b32(s(sT + 6), s(sT + 6), 11); self.s_lshl_b32(s(sT + 7), s(self.sCH2), 12)
        self.s_add_u32(s(sT + 6), s(sT + 6), s(sT + 7)); self.s_add_u32(s(sT + 6), s(sT + 6), hex(OFF_Y))
        self.wait(lg=0)
        self.global_store_dwordx4(v(73), v(LO, 4), s(sWS, 2), mods="sc1")
        self.global_store_dwordx4(v(73), v(LO + 4, 4), s(sWS, 2), mods="offset:1024 sc1")
        self.s_barrier()
        self.v_and_b32(v(67), 127, v(vTID)); self.v_lshlrev_b32(v(67), 4, v(67))
        self.v_add_u32(v(66), TO2, v(67)); self.v_add_u32(v(65), s(sT + 6), v(67))
        self.ds_read_b128(v(LO + 8, 4), v(66))
        self.wait(lg=0)
        self.global_store_dwordx4(v(65), v(LO + 8, 4), s(sWS, 2), mods="sc1")

    def first_flags4(self):
        self.s_lshl_b32(s(sT), s(sG), 12); self.s_add_u32(s(sT + 1), s(sT), hex(OFF_XCC)); self.s_add_u32(s(sT), s(sT), hex(OFF_FL2 + 6 * 8 * 4096))
        self.v_mov_b32(v(16), s(sT + 1)); self.v_mov_b32(v(17), s(sT))
        self.s_mov_b32(s(sM1), 0); self.s_mov_b32(s(sM1 + 1), -1)
        self.v_cndmask_b32(v(16), v(16), v(17), s(sM1, 2)); self.v_add_u32(v(16), v(16), v(vPL))
        self.s_add_u32(s(sT + 2), s(sTOK), 64); self.s_add_u32(s(sT + 3), s(sTOK), 7)
        self.v_mov_b32(v(17), s(sT + 2)); self.v_mov_b32(v(18), s(sT + 3)); self.v_cndmask_b32(v(17), v(17), v(18), s(sM1, 2))
        self.v_mov_b32(v(18), 16); self.v_cndmask_b32(v(18), v(18), 1, s(sM1, 2))
        lp, dn = self.newlabel("xpoll"), self.newlabel("xpolld")
        self.label(lp)
        self.global_load_dword(v(4), v(vPL), s(sFZ, 2), mods="sc1")
        self.global_load_dword(v(5), v(16), s(sWS, 2), mods="sc1")
        self.s_cmp_eq_u32(s(sTO), 0); self.s_cbranch_scc1(dn)
        self.s_sub_u32(s(sTO), s(sTO), 1)
        self.wait(vm=0)
        self.v_cmp_ne_u32("vcc", s(sEXP), v(4)); self.s_and_b64(s(sM0, 2), "vcc", s(sMZ, 2))
        self.v_sub_u32(v(5), v(5), v(17))
        self.v_cmp_le_u32("vcc", v(18), v(5))
        self.s_or_b64("vcc", "vcc", s(sM0, 2)); self.s_cbranch_scc1(lp)
        self.label(dn)
        self.v_cmp_ne_u32("vcc", s(sXCC), v(5))
        self.s_and_b32(s(sT), "vcc_lo", -1)
        self.s_cselect_b32(s(sMODE), 1, 0)
        if self.o.get("force_slow"): self.s_mov_b32(s(sMODE), 1)

    def epi_prep_nolds(self):
        n0 = len(self.items)
        self.epi_prep()
        self.items[n0:] = [it for it in self.items[n0:] if not (isinstance(it, Ins) and it.op == "ds_write_b64")]

    def wo_stage_split(self):
        sub = K4(stamps=False, opts=self.o); sub.uid = self.uid + 300000; sub.cold = []; sub.cold2 = []
        sub.y_flag = lambda: None
        K2.wo_stage(sub)
        self.uid = sub.uid
        bars = [k for k, it in enumerate(sub.items) if isinstance(it, Ins) and it.op == "s_barrier"]
        cut = bars[1] + 1
        first = [it for it in sub.items[:cut] if not (isinstance(it, Ins) and it.op == "s_waitcnt" and it.ops[0] == "vmcnt(0)")]
        return first, sub.items[cut:]

    YR = 140
    def y_flags_issue(self):
        self.v_lshlrev_b32(v(4), 7, v(vTID)); self.v_add_u32(v(4), OFF_YFL, v(4))
        self.global_load_dword(v(156), v(4), s(sWS, 2), mods="sc1")
    def y_flags_check(self):
        ok = self.newlabel("yok")
        self.s_add_u32(s(sT + 1), s(sTOK), 32)
        self.v_cmp_ne_u32("vcc", s(sT + 1), v(156)); self.s_cmp_eq_u64("vcc", 0); self.s_cbranch_scc1(ok)
        self.v_lshlrev_b32(v(8), 7, v(vTID)); self.v_add_u32(v(8), OFF_YFL, v(8)); self.s_mov_b64(s(sT + 2, 2), -1)
        self.poll2(sWS, 8, sT + 1, sT + 2)
        self.label(ok)
    def y_issue(self):
        YR = self.YR
        lab = self.newlabel("nu")
        self.s_cmp_lg_u32(s(2), 0); self.s_cbranch_scc1(lab)
        self.s_cmp_lg_u32(s(sW), 0); self.s_cbranch_scc1(lab)
        self.v_mov_b32(v(8), OFF_N); self.v_mov_b32(v(9), s(sTOK))
        self.setexec(1); self.global_store_dword(v(8), v(9), s(sWS, 2), mods="sc1"); self.setexec(-1)
        self.label(lab)
        self.s_lshl_b32(s(sU), s(sG), 8); self.s_lshl_b32(s(sU + 1), s(sS), 3); self.s_add_u32(s(sU), s(sU), s(sU + 1)); self.s_lshl_b32(s(sU), s(sU), 1)
        self.s_add_u32(s(sU), s(sU), hex(OFF_Y))
        self.v_lshlrev_b32(v(8), 12, v(vTID)); self.v_add_u32(v(8), s(sU), v(8))
        self.global_load_dwordx4(v(YR, 4), v(8), s(sWS, 2), mods="sc1")
        self.v_add_u32(v(9), 256 * 4096, v(8)); self.global_load_dwordx4(v(YR + 4, 4), v(9), s(sWS, 2), mods="sc1")
        self.v_and_b32(v(9), 127, v(vTID)); self.v_lshlrev_b32(v(9), 12, v(9)); self.v_add_u32(v(9), s(sU), v(9)); self.v_add_u32(v(9), 512 * 4096, v(9))
        self.global_load_dwordx4(v(YR + 8, 4), v(9), s(sWS, 2), mods="sc1")
    def y_finish(self):
        YR, LY = self.YR, L_SP
        self.v_and_b32(v(10), 7, v(vTID)); self.v_mul_u32_u24(v(10), 320, v(10))
        self.v_lshrrev_b32(v(11), 3, v(vTID)); self.v_lshl_add_u32(v(10), v(11), 2, v(10)); self.v_add_u32(v(10), LY, v(10))
        for i in range(2):
            for w in range(4): self.ds_write_b32(v(10), v(YR + 4 * i + w), mods=f"offset:{2560 * w + 128 * i}")
        lab = self.newlabel("yl")
        self.s_cmp_ge_u32(s(sW), 2); self.s_cbranch_scc1(lab)
        for w in range(4): self.ds_write_b32(v(10), v(YR + 8 + w), mods=f"offset:{2560 * w + 256}")
        self.label(lab)
        self.smul(sU, sW, 2560); self.s_add_u32(s(sU), s(sU), LY)
        self.v_bfe_u32(v(10), v(vLANE), 2, 2); self.v_mul_u32_u24(v(10), 320, v(10))
        self.v_lshrrev_b32(v(11), 4, v(vLANE)); self.v_lshl_add_u32(v(10), v(11), 5, v(10))
        self.v_and_b32(v(11), 3, v(vLANE)); self.v_lshl_add_u32(v(10), v(11), 3, v(10)); self.v_add_u32(v(10), s(sU), v(10))
        self.wait(lg=0); self.s_barrier()
        for m in range(3):
            self.ds_read_b64_tr_b16(v(vY + 4 * m, 2), v(10), mods=f"offset:{128 * m}")
            self.ds_read_b64_tr_b16(v(vY + 4 * m + 2, 2), v(10), mods=f"offset:{128 * m + 4 * 320}")
        self.wait(lg=0)
        self.setexec(0xffffffff00000000)
        for j in range(8, 12): self.v_mov_b32(v(vY + j), 0)
        self.setexec(-1)

    def wo_batch(self, b):
        self.wo_srd()
        for n in range(8 * b, 8 * b + 8): self.wo_issue_one(n)
    def wo_batch_l0(self, b):
        lab = self.newlabel("wb")
        self.s_cmp_lg_u32(s(sL), 0); self.s_cbranch_scc1(lab)
        self.wo_batch(b)
        self.label(lab)
    def attn_first_reads(self, desc, sKblk, sVblk):
        vk, vk1, vv = 8, 9, 10
        if desc:
            self.s_sub_u32(s(sT), s(sKblk), 4608); self.s_sub_u32(s(sT + 1), s(sVblk), 4096)
            oK0, oK1, oV0 = 4608, 3072, 4096
        else:
            self.s_mov_b32(s(sT), s(sKblk)); self.s_mov_b32(s(sT + 1), s(sVblk))
            oK0, oK1, oV0 = 0, 1536, 0
        self.v_add_u32(v(vk), s(sT), v(vL16)); self.v_add_u32(v(vk1), s(sT), v(vL8)); self.v_add_u32(v(vv), s(sT + 1), v(vL16))
        self.ds_read_b128(v(self.KP0, 4), v(vk), mods=f"offset:{oK0}"); self.ds_read_b64(v(self.KP1, 2), v(vk1), mods=f"offset:{oK0 + 1024}")
        self.ds_read_b128(v(self.KF0, 4), v(vk), mods=f"offset:{oK1}"); self.ds_read_b64(v(self.KF1, 2), v(vk1), mods=f"offset:{oK1 + 1024}")
        self.ds_read_b128(v(self.VF0, 4), v(vv), mods=f"offset:{oV0}")
    def attn_seq2(self, Q, O, desc, sCNT, pending):
        SA, SB, PP, KF0, KF1, VF0, VF1, MSK, KP0, KP1 = self.SA, self.SB, self.PP, self.KF0, self.KF1, self.VF0, self.VF1, self.MSK, self.KP0, self.KP1
        vk, vk1, vv = 8, 9, 10
        if pending is not None:
            self.wait(lg=5)
            self.v_mfma_f32_32x32x16_bf16(v(pending, 16), v(VF1, 4), v(PP + 4, 4), v(pending, 16))
        self.wait(lg=3)
        self.v_mfma_f32_32x32x16_bf16(v(SA, 16), v(KP0, 4), v(Q, 4), v(MSK, 16))
        self.v_mfma_f32_32x32x8_bf16(v(SA, 16), v(KP1, 2), v(Q + 4, 2), v(SA, 16))
        self.wait(lg=1)
        self.s_nop(8)
        lp, ex, first = self.newlabel("att"), self.newlabel("attx"), self.newlabel("attf")
        self.s_branch(first)
        def body(S, Sn, entry, par):
            if desc:
                oK = 1536 if par == 0 else 0
                oV1 = (4096 if par == 0 else 2048) + 1024
                oV0 = 2048 if par == 0 else 0
            else:
                oK = 3072 if par == 0 else 4608
                oV1 = (0 if par == 0 else 2048) + 1024
                oV0 = 2048 if par == 0 else 4096
            self.wait(lg=1)
            self.v_mfma_f32_32x32x16_bf16(v(O, 16), v(VF1, 4), v(PP + 4, 4), v(O, 16))
            if entry: self.label(entry)
            self.ds_read_b128(v(VF1, 4), v(vv), mods=f"offset:{oV1}")
            for e in range(4): self.v_exp_f32(v(S + e), v(S + e))
            self.v_cvt_pk_bf16_f32(v(PP), v(S), v(S + 1)); self.v_cvt_pk_bf16_f32(v(PP + 1), v(S + 2), v(S + 3))
            self.v_mfma_f32_32x32x16_bf16(v(Sn, 16), v(KF0, 4), v(Q, 4), 0)
            self.ds_read_b128(v(KF0, 4), v(vk), mods=f"offset:{oK}")
            for e in range(4, 8): self.v_exp_f32(v(S + e), v(S + e))
            self.v_cvt_pk_bf16_f32(v(PP + 2), v(S + 4), v(S + 5)); self.v_cvt_pk_bf16_f32(v(PP + 3), v(S + 6), v(S + 7))
            self.v_mfma_f32_32x32x8_bf16(v(Sn, 16), v(KF1, 2), v(Q + 4, 2), v(Sn, 16))
            self.ds_read_b64(v(KF1, 2), v(vk1), mods=f"offset:{oK + 1024}")
            for e in range(8, 12): self.v_exp_f32(v(S + e), v(S + e))
            self.wait(lg=3)
            self.v_mfma_f32_32x32x16_bf16(v(O, 16), v(VF0, 4), v(PP, 4), v(O, 16))
            self.ds_read_b128(v(VF0, 4), v(vv), mods=f"offset:{oV0}")
            self.v_cvt_pk_bf16_f32(v(PP + 4), v(S + 8), v(S + 9)); self.v_cvt_pk_bf16_f32(v(PP + 5), v(S + 10), v(S + 11))
            for e in range(12, 16): self.v_exp_f32(v(S + e), v(S + e))
            if par == 1:
                d = (-3072, -4096) if desc else (3072, 4096)
                self.v_add_u32(v(vk), d[0] & 0xffffffff, v(vk)); self.v_add_u32(v(vk1), d[0] & 0xffffffff, v(vk1))
            self.v_cvt_pk_bf16_f32(v(PP + 6), v(S + 12), v(S + 13)); self.v_cvt_pk_bf16_f32(v(PP + 7), v(S + 14), v(S + 15))
            if par == 1: self.v_add_u32(v(vv), d[1] & 0xffffffff, v(vv))
            self.s_add_u32(s(sCNT), s(sCNT), 1)
        self.label(lp)
        body(SA, SB, first, 0)
        self.s_cbranch_scc1(ex)
        body(SB, SA, None, 1)
        self.s_cbranch_scc0(lp)
        self.label(ex)
    def attn_finish(self, O):
        self.wait(lg=0)
        self.v_mfma_f32_32x32x16_bf16(v(O, 16), v(self.VF1, 4), v(self.PP + 4, 4), v(O, 16))

    def attn_local(self):
        sKb, sVb, sN = sU + 6, sU + 7, sU + 8
        self.smul(sKb, sW, 1536); self.s_add_u32(s(sKb), s(sKb), L_K); self.s_lshl_b32(s(sVb), s(sW), 11); self.s_add_u32(s(sVb), s(sVb), L_V)
        self.attn_first_reads(True, sKb, sVb)
        self.s_sub_u32(s(sN), -1, s(sW))
        self.attn_seq2(self.QA, self.OA, True, sN, None)
        self.s_sub_u32(s(sT + 2), 7, s(sW))
        self.smul(sKb, sT + 2, 1536); self.s_add_u32(s(sKb), s(sKb), L_K); self.s_lshl_b32(s(sVb), s(sT + 2), 11); self.s_add_u32(s(sVb), s(sVb), L_V)
        self.attn_first_reads(True, sKb, sVb)
        self.s_sub_u32(s(sN), s(sW), 8)
        self.wait(lg=5)
        self.v_mfma_f32_32x32x16_bf16(v(self.OA, 16), v(self.VF1, 4), v(self.PP + 4, 4), v(self.OA, 16))
        self.halo_publish()
        self.attn_seq2(self.QB, self.OB, True, sN, None)
        self.attn_finish(self.OB)
    def attn_halo(self):
        sKb, sVb, sN = sU + 6, sU + 7, sU + 8
        self.smul(sKb, sW, 1536); self.s_add_u32(s(sKb), s(sKb), L_HK); self.s_lshl_b32(s(sVb), s(sW), 11); self.s_add_u32(s(sVb), s(sVb), L_HV)
        self.attn_first_reads(False, sKb, sVb)
        self.s_sub_u32(s(sN), s(sW), 8)
        self.attn_seq2(self.QA, self.OA, False, sN, None)
        self.s_sub_u32(s(sT + 2), 7, s(sW))
        self.smul(sKb, sT + 2, 1536); self.s_add_u32(s(sKb), s(sKb), L_HK); self.s_lshl_b32(s(sVb), s(sT + 2), 11); self.s_add_u32(s(sVb), s(sVb), L_HV)
        self.attn_first_reads(False, sKb, sVb)
        self.s_sub_u32(s(sN), -1, s(sW))
        self.attn_seq2(self.QB, self.OB, False, sN, self.OA)
        self.attn_finish(self.OB)

    def qkv_run(self):
        ACC, ZR, WF = self.ACC, self.ZR, self.WF
        vzA, vzB, vw0, vw1 = 8, 9, 10, 11
        def wr(st, kk, T):
            r = WF + 8 * st + 4 * T; vw = (vw0, vw1)[T]
            self.ds_read_b64_tr_b16(v(r, 2), v(vw), mods=f"offset:{kk * 1024}")
            self.ds_read_b64_tr_b16(v(r + 2, 2), v(vw), mods=f"offset:{kk * 1024 + 256}")
        def body(last):
            for j in range(8):
                st = j & 1
                more = not (last and j == 7)
                mf = lambda blk, T: self.v_mfma_f32_32x32x16_bf16(v(ACC + 32 * blk + 16 * T, 16), v(WF + 8 * st + 4 * T, 4), v(ZR + 8 * j + 4 * blk, 4), v(ACC + 32 * blk + 16 * T, 16))
                self.wait(vm=((15 - 2 * j) if last else 15), lg=0)
                mf(0, 0)
                if more: wr(st ^ 1, j + 1, 0)
                mf(0, 1)
                if more: wr(st ^ 1, j + 1, 1)
                if not last: self.global_load_dwordx4(v(ZR + 8 * j, 4), v(vzA), s(sZB, 2), mods=f"offset:{(j % 4) * 1024} sc1")
                self.wait(vm=((14 - 2 * j) if last else 15))
                mf(1, 0)
                if not last and j % 4 == 3: self.v_add_u32(v(vzA), 4096, v(vzA))
                mf(1, 1)
                if not last:
                    self.global_load_dwordx4(v(ZR + 8 * j + 4, 4), v(vzB), s(sZB, 2), mods=f"offset:{(j % 4) * 1024} sc1")
                    if j % 4 == 3: self.v_add_u32(v(vzB), 4096, v(vzB))
            if not last:
                self.v_add_u32(v(vw0), 8192, v(vw0)); self.v_add_u32(v(vw1), 8192, v(vw1))
        lp = self.newlabel("qkv")
        self.s_mov_b32(s(sU), -4)
        self.label(lp)
        body(False)
        self.s_add_u32(s(sU), s(sU), 1); self.s_cbranch_scc0(lp)
        body(True)

    def weights_to_mall(self):
        self.smul(sT, 2, 9600); self.v_lshlrev_b32(v(4), 4, v(vTID)); self.v_add_u32(v(4), s(sT), v(4))
        self.global_load_dwordx4(v(208, 4), v(4), s(sWQ, 2))
        self.global_load_dwordx4(v(212, 4), v(4), s(sWQ, 2), mods="offset:4080")
        self.v_min_u32(v(5), 89, v(vTID)); self.v_lshlrev_b32(v(5), 4, v(5)); self.s_add_u32(s(sT), s(sT), 8160); self.v_add_u32(v(5), s(sT), v(5))
        self.global_load_dwordx4(v(216, 4), v(5), s(sWQ, 2))
        self.smul(sT, 2, 3200); self.v_min_u32(v(5), 199, v(vTID)); self.v_lshlrev_b32(v(5), 4, v(5)); self.v_add_u32(v(5), s(sT), v(5))
        self.global_load_dwordx4(v(220, 4), v(5), s(sWO, 2))

    def startup(self):
        d2 = self.o.get("d2")
        NE = self.NE
        self.setup2()
        self.issue_x()
        self.v_mov_b32(v(87), OFF_N)
        self.global_load_dword(v(87), v(87), s(sWS, 2), mods="sc1")
        pfpos = self.o.get("pfpos", 2)
        if pfpos == 0: self.weights_to_mall()
        self.c0_issue()
        if pfpos == 1: self.weights_to_mall()
        self.stamp("issued"); self.dstamp(1) if d2 else None
        self.conv_ids()
        for r in range(4): self.v_mov_b32(v(vZERO + r), 0)
        self.v_and_b32(v(vPL), 31, v(vLANE)); self.v_lshlrev_b32(v(vPL), 7, v(vPL))
        self.s_lshl_b32(s(sT), s(sS), 7); self.v_mov_b32(v(vSO), s(sT))
        self.v_mov_b32(v(4), L_CNT); self.ds_write_b32(v(4), v(vZERO))
        self.w_addr()
        self.z_addr(8)
        self.wait(vm=16 if pfpos < 2 else 12)
        self.p0_ln()
        self.v_readfirstlane_b32(s(sTOK), v(87))
        self.s_add_u32(s(sTOK), s(sTOK), hex(NONCE_C))
        self.layer_bases2()
        self.stores_sc1(self.z_store_list(56, sZB, 8))
        lab = self.newlabel("xp")
        self.s_cmp_lg_u32(s(sW), 0); self.s_cbranch_scc1(lab)
        self.s_lshl_b32(s(sT), s(sG), 5); self.s_add_u32(s(sT), s(sT), s(sS)); self.s_lshl_b32(s(sT), s(sT), 7); self.s_add_u32(s(sT), s(sT), hex(OFF_XCC))
        self.s_add_u32(s(sT + 1), s(sTOK), s(sXCC)); self.s_add_u32(s(sT + 1), s(sT + 1), 64)
        self.v_mov_b32(v(4), s(sT)); self.v_mov_b32(v(5), s(sT + 1))
        self.setexec(1); self.global_store_dword(v(4), v(5), s(sWS, 2), mods="sc1"); self.setexec(-1)
        self.label(lab)
        self.conv_h_issue()
        if pfpos == 2: self.weights_to_mall()
        self.stamp("z0st"); self.dstamp(2) if d2 else None
        self.wait(vm=8 + 3 + (4 if pfpos == 2 else 0))
        self.c0_taps()
        self.c0_all([])
        self.s_mov_b64(s(self.sWQ2, 2), s(sWQ, 2))
        self.stamp("c0"); self.dstamp(3) if d2 else None
        self.w_issue(0, NE)
        self.wait(vm=NE); self.s_barrier()
        lab = self.newlabel("f0")
        self.s_cmp_lg_u32(s(sW), 0); self.s_cbranch_scc1(lab)
        self.v_mov_b32(v(4), s(sEXP)); self.s_add_u32(s(sT + 2), s(sTOK), 7); self.v_mov_b32(v(5), s(sT + 2))
        self.rflag_base(sT)
        self.setexec(1)
        self.global_store_dword(v(vSO), v(4), s(sFZ, 2), mods="sc1"); self.global_store_dword(v(vSO), v(5), s(sT, 2), mods="sc1")
        self.setexec(-1)
        self.label(lab)
        self.stamp("flags"); self.dstamp(4 if d2 else 1)
        NM = self.o.get("nm", 12)
        sub = K4(stamps=False, opts=self.o); sub.uid = self.uid + 200000; sub.cold = []; sub.cold2 = []
        sub.conv_fill_h()
        sub.w_zero()
        sub.s_lshl_b32(s(sT + 4), s(sW), 2); sub.lanemask(sM0, s(sT + 4), 4)
        sub.s_sub_u32(s(sT + 4), 28, s(sT + 4)); sub.lanemask(sMZ, s(sT + 4), 4); sub.s_or_b64(s(sMZ, 2), s(sMZ, 2), s(sM0, 2))
        sub.s_lshr_b32(s(sT + 4), s(sS), 3); sub.s_lshl_b32(s(sT + 4), s(sT + 4), 3); sub.lanemask(sMA, s(sT + 4), 8)
        sub.conv_addrs(); sub.wo_addr()
        self.uid = sub.uid
        self.splice_w(sub.items, range(NE, NM))
        self.s_mov_b32(s(sMO), -1); self.s_mov_b32(s(sMO + 1), 0)
        self.stamp("hfill"); self.dstamp(5) if d2 else None
        self.first_flags4()
        self.stamp("ff"); self.dstamp(6) if d2 else None
        self.conv_r_issue()
        if NM < 16:
            self.s_mov_b32(s(sSRD), s(self.sWQ2)); self.s_mov_b32(s(sSRD + 1), s(self.sWQ2 + 1))
            self.s_mov_b32(s(sSRD + 2), 640 * 1920 * 2); self.s_mov_b32(s(sSRD + 3), "0x00020000")
            for i_ in range(NM, 16): self.w_one(i_)
        self.code_prefetch(86)
        self.w_lds(0, NM)
        self.conv_fill_r(1 + 16 - NM)
        if NM < 16:
            self.wait(vm=1); self.w_lds(NM, 16); self.wait(lg=0)
        self.stamp("rfill"); self.dstamp(7) if d2 else None
        sub = K4(stamps=False, opts=self.o); sub.uid = self.uid + 100000; sub.cold = []; sub.cold2 = []
        sub.epi_prep_nolds(); sub.qkv_addr(); sub.mask_gen(False)
        self.uid = sub.uid
        self.conv_mains(sub.items)
        self.stamp("mains"); self.dstamp(8) if self.o.get("d2") else None
        self.wait(vm=32)
        self.w_lds2(16, 32)
        self.conv_tails()
        self.stamp("tails"); self.dstamp(9) if self.o.get("d2") else None
        self.qkv_zissue()
        self.v_xor_b32(v(4), 48, v(self.vSA)); self.ds_write_b64(v(4), v(88, 2))
        self.wait(vm=16, lg=0); self.s_barrier()
        self.y_flag()
        self.stamp("wlds"); self.dstamp(10 if self.o.get("d2") else 2); self._d2ok = False
        self.qkv_init()
        self.s_branch("L_QKV")

    def build(self):
        self.fallbacks = []
        self.startup()
        self.label("L_LAYER")
        self.layer_bases2()
        self.epi_prep(); self.mask_gen(False)
        self.qkv_addr(); self.qkv_init()
        self.poll2(sFZ, vPL, sEXP, sMZ)
        self.stamp("zwait")
        self.qkv_zissue()
        self.label("L_QKV")
        self.qkv_run()
        self.stamp("qkv"); self.dstamp(3, True)
        self.epi_run()
        self.stamp("epi")
        lab = self.newlabel("aux0")
        self.s_cmp_lg_u32(s(sL), 0); self.s_cbranch_scc1(lab)
        self.pretouch_addr(4)
        self.global_load_dword(v(230), v(4), s(sWS, 2))
        self.label(lab)
        self.attn_local()
        self.stamp("local"); self.dstamp(4, True)
        self.o_prep()
        l1path, joined = self.newlabel("l1p"), self.newlabel("joined")
        self.s_cmp_lg_u32(s(sL), 0); self.s_cbranch_scc1(l1path)
        wo1, wo2 = self.wo_stage_split()
        self.s_barrier()
        self.items += wo1
        nh = self.newlabel("nh")
        self.s_cmp_eq_u32(s(sG), 0); self.s_cbranch_scc1(nh)
        self.halo_prep()
        self.halo_issue()
        self.label(nh)
        self.y_flags_issue()
        self.items += wo2
        self.stamp("wo"); self.dstamp(5)
        self.wait(vm=0)
        self.y_flags_check()
        nh = self.newlabel("nh")
        self.s_cmp_eq_u32(s(sG), 0); self.s_cbranch_scc1(nh)
        self.halo_land(0)
        self.label(nh)
        self.wait(lg=0); self.s_barrier()
        self.y_issue()
        self.s_branch(joined)
        self.label(l1path)
        self.s_cmp_eq_u32(s(sG), 0); self.s_cbranch_scc1(joined)
        self.halo_prep()
        self.halo_issue()
        self.halo_land(0)
        self.wait(lg=0); self.s_barrier()
        self.label(joined)
        self.stamp("halof")
        nohalo = self.newlabel("nohalo")
        self.s_cmp_eq_u32(s(sG), 0); self.s_cbranch_scc1(nohalo)
        self.attn_halo()
        self.label(nohalo)
        self.stamp("halo"); self.dstamp(6, True)
        self.range_check()
        self.o_store()
        self.s_add_u32(s(sT), s(sEXP), 1); self.v_mov_b32(v(5), s(sT))
        self.signal2(sFO, 5)
        self.stamp("osig")
        lab = self.newlabel("aux2")
        self.s_cmp_lg_u32(s(sL), 0); self.s_cbranch_scc1(lab)
        self.y_finish()
        self.stamp("yld")
        self.label(lab)
        self.op_prep()
        self.s_add_u32(s(sT + 8), s(sEXP), 1)
        self.poll2(sFO, vPL, sT + 8, sMO)
        self.stamp("owait")
        self.op_run()
        self.s_add_u32(s(sT), s(sEXP), 2); self.v_mov_b32(v(5), s(sT))
        self.signal2(sFA, 5)
        self.stamp("asig"); self.dstamp(7, True)
        self.p4_prep()
        self.s_add_u32(s(sT + 8), s(sEXP), 2)
        self.poll2(sFA, vPL, sT + 8, sMA)
        self.stamp("await")
        self.p4_run()
        self.s_cmp_lg_u32(s(sL), 0); self.s_cbranch_scc1("L_FINAL")
        self.z_addr(8)
        self.p4_z()
        self.stores(self.z_store_list(56, sZN, 8))
        self.pack(vX, self.XF, 12)
        self.s_add_u32(s(sT), s(sEXP), 3); self.v_mov_b32(v(5), s(sT))
        self.signal2(sFN, 5)
        self.stamp("p4")
        self.s_mov_b32(s(sL), 1)
        self.s_branch("L_LAYER")
        self.label("L_FINAL")
        self.pack(vX, self.XF, 12)
        self.out_store()
        if self.o.get("span"):
            self.wait(vm=0); self.stamps = True
        self.stamp("end")
        self.dflush()
        return self.finish()

if __name__ == "__main__":
    import argparse
    ap = argparse.ArgumentParser()
    ap.add_argument("-o", default="k4.s"); ap.add_argument("--stamps", action="store_true")
    ap.add_argument("--slow", action="store_true"); ap.add_argument("-v", action="store_true"); ap.add_argument("--opt", default="")
    a_ = ap.parse_args()
    k = K4(stamps=a_.stamps, opts=dict({"force_slow": a_.slow}, **{x.split("=")[0]: (int(x.split("=")[1]) if "=" in x else 1) for x in a_.opt.split(",") if x}))
    k.build()
    ins = k.fix_all(verbose=a_.v)
    open(a_.o, "w").write(render_file(k))
    n = sum(1 for it in k.items if isinstance(it, Ins))
    print("instructions:", n, "nops inserted:", len(ins), "stamps:", ",".join(k.stamp_names))
```

```python
import sys, math, struct
from asm import *

NAME = "interleave_layers__sliding_block__ssm_conv_h3__prompt_kernel"

OFF_N    = 0x0
OFF_XCC  = 0x1000
OFF_FL   = 0x10000
OFF_HFL  = 0x14000
OFF_YFL  = 0x24000
OFF_Z    = 0x100000
OFF_HALO = 0x600000
OFF_O    = 0x1400000
OFF_A    = 0x1900000
OFF_R    = 0x1E00000
OFF_Y    = 0x2100000
OFF_DBG  = 0x3000000
ZG = 327680
HALO_SZ = 28672
NONCE_C = 0x9E3779B9

L_W    = 0
L_WT1  = 40960
L_K    = 81920
L_V    = 94208
L_VS   = 110592
L_SP   = 118784
L_HK   = 135168
L_HV   = 147456
LDS_BYTES = 163840

sX, sWQ, sWO, sBK, sBV, sSH, sSK, sSD, sOUT, sDBG, sWS = 4, 6, 8, 12, 14, 16, 18, 20, 22, 24, 26
sG, sS, sW, sTOK, sMODE, sL = 28, 29, 30, 31, 32, 33
sSRD = 36
sM0, sM1 = 40, 42
sT = 44
sTO = 64
sXCC = 65
sZB, sOB, sAB, sHB, sHP = 66, 68, 70, 72, 74
sRET = 76
sU = 80

vTID, vLANE, vL16 = 0, 1, 2
vX, vY = 232, 244

def f32(x): return "0x%08x" % struct.unpack("<I", struct.pack("<f", x))[0]

class K(Asm):
    def __init__(self, stop=None, stamps=False, opts=None):
        super().__init__()
        self.stop = stop; self.stamps = stamps; self.o = opts or {}
        self.nstamp = 0; self.stamp_names = []

    def smul(self, d, a_, imm):
        self.s_mul_i32(s(d), s(a_), imm)
    def base64(self, d, ptr, off_sreg=None, imm=0):
        if imm:
            self.s_add_u32(s(d), s(ptr), hex(imm)); self.s_addc_u32(s(d + 1), s(ptr + 1), 0)
        else:
            self.s_mov_b32(s(d), s(ptr)); self.s_mov_b32(s(d + 1), s(ptr + 1))
        if off_sreg is not None:
            self.s_add_u32(s(d), s(d), s(off_sreg)); self.s_addc_u32(s(d + 1), s(d + 1), 0)
    def setexec(self, m):
        if isinstance(m, int):
            if m == -1: self.s_mov_b64("exec", -1)
            else:
                self.s_mov_b32("exec_lo", hex(m & 0xffffffff)); self.s_mov_b32("exec_hi", hex(m >> 32))
        else: self.s_mov_b64("exec", m)
    def wait(self, vm=None, lg=None):
        p = []
        if vm is not None: p.append(f"vmcnt({vm})")
        if lg is not None: p.append(f"lgkmcnt({lg})")
        self.s_waitcnt(" ".join(p))
    def stamp(self, name):
        if not self.stamps: return
        i = self.nstamp; self.nstamp += 1; self.stamp_names.append(name)
        lab = self.newlabel("st")
        self.s_cmp_lg_u32(s(sW), 0); self.s_cbranch_scc1(lab)
        self.s_memrealtime(s(96, 2)); self.wait(lg=0)
        self.s_mov_b64(s(98, 2), "exec"); self.setexec(1)
        self.v_mov_b32(v(230), s(96)); self.v_mov_b32(v(231), s(97))
        self.s_lshl_b32(s(96), s(2), 9); self.s_add_u32(s(96), s(96), hex(OFF_DBG + 8 * i))
        self.s_lshl_b32(s(97), s(sL), 8); self.s_add_u32(s(96), s(96), s(97))
        self.v_mov_b32(v(229), s(96))
        self.global_store_dwordx2(v(229), v(230, 2), s(sWS, 2))
        self.s_mov_b64("exec", s(98, 2))
        self.label(lab)
    def maybe_stop(self, name):
        if self.stop == name:
            self.wait(vm=0, lg=0); self.s_endpgm(); self.stopped = True
            return True
        return False

    def store(self, width, vaddr, vdata, sbase, off=0):
        op = {4: "global_store_dword", 8: "global_store_dwordx2", 16: "global_store_dwordx4"}[width]
        m = f"offset:{off}" if off else ""
        return (op, vaddr, vdata, sbase, m)
    def stores(self, lst):
        l1, l2 = self.newlabel("slow"), self.newlabel("stj")
        self.s_cmp_lg_u32(s(sMODE), 0); self.s_cbranch_scc1(l1)
        big = any(it[0] != "exec" and it[0] != "global_store_dword" for it in lst)
        fast_mods = " nt" if (self.o.get("stnt") and big) else ""
        for it in lst:
            if it[0] == "exec": self.setexec(it[1])
            else: self.I(it[0], it[1], it[2], it[3], mods=(it[4] + fast_mods).strip())
        self.label(l2)
        self.cold.append((l1, l2, lst))
    def emit_cold(self):
        for l1, l2, lst in self.cold:
            self.label(l1)
            for it in lst:
                if it[0] == "exec": self.setexec(it[1])
                else: self.I(it[0], it[1], it[2], it[3], mods=(it[4] + " sc1").strip())
            self.s_branch(l2)
        self.cold = []

    def signal(self, phase_expr_sreg=None, phase_imm=None, vt=4):
        self.wait(vm=0); self.s_barrier()
        lab = self.newlabel("sig")
        self.s_cmp_lg_u32(s(sW), 0); self.s_cbranch_scc1(lab)
        if phase_imm is not None: self.s_mov_b32(s(sT), phase_imm)
        else: self.s_mov_b32(s(sT), s(phase_expr_sreg))
        self.s_add_u32(s(sT + 1), s(sTOK), s(sT)); self.s_add_u32(s(sT + 1), s(sT + 1), 1)
        self.s_lshl_b32(s(sT), s(sT), 3); self.s_add_u32(s(sT), s(sT), s(sG)); self.s_lshl_b32(s(sT), s(sT), 7)
        self.s_lshl_b32(s(sT + 2), s(sS), 2); self.s_add_u32(s(sT), s(sT), s(sT + 2)); self.s_add_u32(s(sT), s(sT), hex(OFF_FL))
        self.v_mov_b32(v(vt), s(sT)); self.v_mov_b32(v(vt + 1), s(sT + 1))
        self.setexec(1)
        self.stores([self.store(4, v(vt), v(vt + 1), s(sWS, 2))])
        self.setexec(-1)
        self.label(lab)

    def poll(self, vaddr, vtmp, s_exp, s_mask):
        lp, dn = self.newlabel("poll"), self.newlabel("polld")
        self.label(lp)
        self.global_load_dword(v(vtmp), v(vaddr), s(sWS, 2), mods="sc1")
        self.s_cmp_eq_u32(s(sTO), 0); self.s_cbranch_scc1(dn)
        self.s_sub_u32(s(sTO), s(sTO), 1)
        self.wait(vm=0)
        self.v_cmp_ne_u32("vcc", s(s_exp), v(vtmp))
        self.s_and_b64("vcc", "vcc", s(s_mask, 2))
        self.s_cbranch_scc1(lp)
        self.label(dn)

    def wait_flags(self, phase_sreg, mask_sreg, vt=4):
        self.s_add_u32(s(sT + 1), s(sTOK), s(phase_sreg)); self.s_add_u32(s(sT + 1), s(sT + 1), 1)
        self.s_lshl_b32(s(sT), s(phase_sreg), 3); self.s_add_u32(s(sT), s(sT), s(sG)); self.s_lshl_b32(s(sT), s(sT), 7)
        self.s_add_u32(s(sT), s(sT), hex(OFF_FL))
        self.v_and_b32(v(vt), 31, v(vLANE)); self.v_lshlrev_b32(v(vt), 2, v(vt)); self.v_add_u32(v(vt), s(sT), v(vt))
        self.poll(vt, vt + 1, sT + 1, mask_sreg)

    def wave_sum2(self, a_, b_, t0, t1):
        for r in (a_, b_): self.v_add_f32_dpp(v(r), v(r), v(r), mods="quad_perm:[2,3,0,1] row_mask:0xf bank_mask:0xf")
        for r in (a_, b_): self.v_add_f32_dpp(v(r), v(r), v(r), mods="row_ror:4 row_mask:0xf bank_mask:0xf")
        for r in (a_, b_): self.v_add_f32_dpp(v(r), v(r), v(r), mods="row_ror:8 row_mask:0xf bank_mask:0xf")
        self.v_mov_b32(v(t0), v(a_)); self.v_mov_b32(v(t1), v(b_))
        self.v_permlane16_swap_b32(v(a_), v(t0)); self.v_permlane16_swap_b32(v(b_), v(t1))
        self.v_add_f32(v(a_), v(a_), v(t0)); self.v_add_f32(v(b_), v(b_), v(t1))
        self.v_mov_b32(v(t0), v(a_)); self.v_mov_b32(v(t1), v(b_))
        self.v_permlane32_swap_b32(v(a_), v(t0)); self.v_permlane32_swap_b32(v(b_), v(t1))
        self.v_add_f32(v(a_), v(a_), v(t0)); self.v_add_f32(v(b_), v(b_), v(t1))
    def rbf(self, r, t):
        self.v_cvt_pk_bf16_f32(v(t), v(r), v(r)); self.v_and_b32(v(r), "0xffff0000", v(t))
    def ln_stats(self, xf, t):
        S, Q, a0, a1 = t + 4, t + 6, t + 8, t + 10
        self.v_pk_add_f32(v(S, 2), v(xf, 2), v(xf + 2, 2))
        self.v_pk_mul_f32(v(Q, 2), v(xf, 2), v(xf, 2))
        self.v_pk_fma_f32(v(Q, 2), v(xf + 2, 2), v(xf + 2, 2), v(Q, 2))
        for j in range(2, 12):
            self.v_pk_add_f32(v(S, 2), v(S, 2), v(xf + 2 * j, 2))
            self.v_pk_fma_f32(v(Q, 2), v(xf + 2 * j, 2), v(xf + 2 * j, 2), v(Q, 2))
        self.v_add_f32(v(S), v(S), v(S + 1)); self.v_add_f32(v(Q), v(Q), v(Q + 1))
        self.wave_sum2(S, Q, a0, a1)
        self.v_mul_f32(v(S), f32(1.0 / 640), v(S)); self.v_mul_f32(v(Q), f32(1.0 / 640), v(Q))
        self.v_fma_f32(v(Q), f"-{v(S)}", v(S), v(Q))
        self.v_max_f32(v(Q), 0, v(Q))
        self.rbf(S, a0); self.rbf(Q, a1)
        self.v_add_f32(v(Q), f32(1e-5), v(Q)); self.rbf(Q, a1)
        self.v_sqrt_f32(v(Q), v(Q)); self.rbf(Q, a1)
        self.v_rcp_f32(v(t), v(Q))
        self.v_mov_b32(v(t + 1), v(t))
        self.v_mul_f32(v(t + 2), v(S), v(t)); self.v_sub_f32(v(t + 2), 0, v(t + 2))
        self.v_mov_b32(v(t + 3), v(t + 2))
    def unpack(self, dst, src, n):
        for j in range(n):
            self.v_lshlrev_b32(v(dst + 2 * j), 16, v(src + j))
            self.v_and_b32(v(dst + 2 * j + 1), "0xffff0000", v(src + j))
    def pack(self, dst, src, n):
        for j in range(n): self.v_cvt_pk_bf16_f32(v(dst + j), v(src + 2 * j), v(src + 2 * j + 1))

    def z_store(self, zp, sbase, va):
        self.s_lshr_b32(s(sT), s(sS), 2); self.smul(sT, sT, 40960)
        self.s_and_b32(s(sT + 1), s(sS), 3); self.s_lshl_b32(s(sT + 1), s(sT + 1), 7)
        self.s_add_u32(s(sT), s(sT), s(sT + 1)); self.s_lshl_b32(s(sT + 1), s(sW), 5); self.s_add_u32(s(sT), s(sT), s(sT + 1))
        self.v_lshrrev_b32(v(va), 1, v(vLANE)); self.v_lshlrev_b32(v(va), 9, v(va))
        self.v_and_b32(v(va + 1), 1, v(vLANE)); self.v_lshlrev_b32(v(va + 1), 4, v(va + 1))
        self.v_add3_u32(v(va), v(va), v(va + 1), s(sT))
        self.v_add_u32(v(va + 1), 32 * 512, v(va)); self.v_add_u32(v(va + 2), 64 * 512, v(va))
        self.stores([self.store(16, v(va), v(zp, 4), s(sbase, 2)), self.store(16, v(va + 1), v(zp + 4, 4), s(sbase, 2)),
                     ("exec", 0xffffffff), self.store(16, v(va + 2), v(zp + 8, 4), s(sbase, 2)), ("exec", -1)])

    def setup(self):
        self.cold = []
        self.s_cmp_ge_u32(s(2), 256); self.s_cbranch_scc1("L_END")
        self.s_load_dwordx4(s(4, 4), s(0, 2), 0)
        self.s_load_dwordx2(s(8, 2), s(0, 2), 16)
        self.s_load_dwordx8(s(12, 8), s(0, 2), 32)
        self.s_load_dwordx8(s(20, 8), s(0, 2), 64)
        self.s_getpc_b64(s(sT, 2))
        self.label("L_PC")
        self.v_and_b32(v(vLANE), 63, v(vTID))
        self.v_lshlrev_b32(v(vL16), 4, v(vLANE))
        self.v_lshrrev_b32(v(4), 6, v(vTID))
        self.s_and_b32(s(sG), s(2), 7); self.s_lshr_b32(s(sS), s(2), 3)
        self.v_readfirstlane_b32(s(sW), v(4))
        self.s_mov_b32(s(sTO), 400000)
        self.s_mov_b32(s(sMODE), 0); self.s_mov_b32(s(sL), 0)
        self.s_getreg_b32(s(sXCC), "hwreg(HW_REG_XCC_ID, 0, 4)")
        self.v_lshlrev_b32(v(4), 4, v(vTID))
        self.npf = self.o.get("npf", 8)
        for i in range(self.npf):
            self.v_min_u32(v(5), "L_HOTEND-L_PC-16", v(4))
            self.global_load_dwordx4(v(224, 4), v(5), s(sT, 2))
            self.v_add_u32(v(4), 4096, v(4))
        self.wait(lg=0)
        self.s_load_dword(s(sTOK), s(sWS, 2), OFF_N)

    def x_addr(self, va):
        self.s_lshl_b32(s(sT), s(sG), 8); self.s_lshl_b32(s(sT + 1), s(sS), 3); self.s_add_u32(s(sT), s(sT), s(sT + 1))
        self.s_lshl_b32(s(sT + 1), s(sW), 1); self.s_add_u32(s(sT), s(sT), s(sT + 1)); self.smul(sT, sT, 1280)
        self.v_and_b32(v(va), 1, v(vLANE)); self.v_mul_u32_u24(v(va), 1280, v(va))
        self.v_lshrrev_b32(v(va + 1), 1, v(vLANE)); self.v_lshlrev_b32(v(va + 1), 4, v(va + 1))
        self.v_add3_u32(v(va), v(va), v(va + 1), s(sT))

    def p0_issue_x(self):
        self.x_addr(4)
        for j in range(8, 12): self.v_mov_b32(v(vX + j), 0)
        self.global_load_dwordx4(v(vX, 4), v(4), s(sX, 2))
        self.global_load_dwordx4(v(vX + 4, 4), v(4), s(sX, 2), mods="offset:512")
        self.setexec(0xffffffff)
        self.global_load_dwordx4(v(vX + 8, 4), v(4), s(sX, 2), mods="offset:1024")
        self.setexec(-1)

    WREG = 96
    def p0_issue_w(self):
        self.s_mov_b32(s(sSRD), s(sWQ)); self.s_mov_b32(s(sSRD + 1), s(sWQ + 1))
        self.s_mov_b32(s(sSRD + 2), 640 * 1920 * 2); self.s_mov_b32(s(sSRD + 3), "0x00020000")
        self.v_mul_u32_u24(v(8), 5462, v(vLANE)); self.v_lshrrev_b32(v(8), 16, v(8))
        self.v_mul_u32_u24(v(9), 12, v(8)); self.v_sub_u32(v(9), v(vLANE), v(9))
        self.v_lshrrev_b32(v(10), 2, v(9))
        self.v_and_b32(v(11), 3, v(vLANE))
        self.smul(sT, sW, 160)
        self.v_add_u32(v(8), s(sT), v(8))
        self.s_mov_b32(s(sT + 1), 3840)
        self.v_mul_lo_u32(v(12), s(sT + 1), v(8))
        self.v_mul_u32_u24(v(13), 1280, v(10))
        self.v_lshlrev_b32(v(14), 4, v(11))
        self.v_add3_u32(v(12), v(12), v(13), v(14))
        self.smul(sT + 2, sS, 40)
        self.v_add_u32(v(12), s(sT + 2), v(12))
        self.v_lshlrev_b32(v(13), 5, v(10))
        self.v_add_u32(v(13), v(13), v(14))
        self.v_cmp_eq_u32("vcc", 2, v(10))
        self.v_add_u32(v(15), L_WT1 + 32, v(14))
        self.v_cndmask_b32(v(13), v(13), v(15), "vcc")
        self.v_lshlrev_b32(v(15), 4, v(10))
        self.v_min_u32(v(15), 24, v(15)); self.v_add_u32(v(15), L_WT1, v(15))
        self.v_cmp_eq_u32("vcc", 2, v(11))
        self.v_cndmask_b32(v(13), v(13), v(15), "vcc")
        self.v_lshlrev_b32(v(7), 6, v(8)); self.v_add_u32(v(7), v(7), v(13))
        self.setexec((1 << 60) - 1)
        self.s_mov_b32(s(sT + 3), 0)
        for i in range(32):
            self.buffer_load_dwordx4(v(self.WREG + 4 * i, 4), v(12), s(sSRD, 4), s(sT + 3), mods="offen")
            if i < 31: self.s_add_u32(s(sT + 3), s(sT + 3), 5 * 3840)
        self.setexec(-1)

    def p0_w_to_lds(self):
        m128 = sum(1 << l for l in range(60) if (l & 3) < 2)
        m64 = sum(1 << l for l in range(60) if (l & 3) == 2)
        self.setexec(m128)
        for i in range(32): self.ds_write_b128(v(7), v(self.WREG + 4 * i, 4), mods=f"offset:{320 * i}")
        self.setexec(m64)
        for i in range(32): self.ds_write_b64(v(7), v(self.WREG + 4 * i, 2), mods=f"offset:{320 * i}")
        self.setexec(-1)
        self.v_mov_b32(v(8), 0); self.v_mov_b32(v(9), 0)
        self.v_lshlrev_b32(v(10), 6, v(vTID)); self.v_add_u32(v(10), L_WT1 + 8, v(10))
        self.ds_write_b64(v(10), v(8, 2)); self.ds_write_b64(v(10), v(8, 2), mods=f"offset:{256 * 64}")
        lab = self.newlabel("wz")
        self.s_cmp_ge_u32(s(sW), 2); self.s_cbranch_scc1(lab)
        self.ds_write_b64(v(10), v(8, 2), mods=f"offset:{512 * 64}")
        self.label(lab)

    def mode_setup(self):
        self.wait(lg=0)
        self.s_add_u32(s(sTOK), s(sTOK), hex(NONCE_C))
        lab = self.newlabel("xp")
        self.s_cmp_lg_u32(s(sW), 0); self.s_cbranch_scc1(lab)
        self.s_lshl_b32(s(sT), s(sG), 5); self.s_add_u32(s(sT), s(sT), s(sS)); self.s_lshl_b32(s(sT), s(sT), 7)
        self.s_add_u32(s(sT), s(sT), hex(OFF_XCC))
        self.s_add_u32(s(sT + 1), s(sTOK), s(sXCC)); self.s_add_u32(s(sT + 1), s(sT + 1), 64)
        self.v_mov_b32(v(8), s(sT)); self.v_mov_b32(v(9), s(sT + 1))
        self.setexec(1)
        self.global_store_dword(v(8), v(9), s(sWS, 2), mods="sc1")
        self.setexec(-1)
        self.label(lab)
    def mode_wait(self):
        self.s_lshl_b32(s(sT), s(sG), 12); self.s_add_u32(s(sT), s(sT), hex(OFF_XCC))
        self.v_and_b32(v(8), 31, v(vLANE)); self.v_lshlrev_b32(v(8), 7, v(8)); self.v_add_u32(v(8), s(sT), v(8))
        self.s_add_u32(s(sT + 1), s(sTOK), 64)
        lp, dn = self.newlabel("xpoll"), self.newlabel("xpolld")
        self.label(lp)
        self.global_load_dword(v(9), v(8), s(sWS, 2), mods="sc1")
        self.s_cmp_eq_u32(s(sTO), 0); self.s_cbranch_scc1(dn)
        self.s_sub_u32(s(sTO), s(sTO), 1)
        self.wait(vm=0)
        self.v_subrev_u32(v(9), s(sT + 1), v(9))
        self.v_cmp_le_u32("vcc", 16, v(9))
        self.s_cmp_lg_u64("vcc", 0)
        self.s_cbranch_scc1(lp)
        self.label(dn)
        self.v_cmp_ne_u32("vcc", s(sXCC), v(9))
        self.s_cmp_lg_u64("vcc", 0)
        self.s_cselect_b32(s(sMODE), 1, 0)
        if self.o.get("force_slow"): self.s_mov_b32(s(sMODE), 1)

    def p0_ln(self):
        XF = 16
        self.unpack(XF, vX, 12)
        self.ln_stats(XF, 40)
        for j in range(12): self.v_pk_fma_f32(v(XF + 2 * j, 2), v(XF + 2 * j, 2), v(40, 2), v(42, 2))
        self.pack(56, XF, 12)

    def layer_bases(self):
        self.s_lshl_b32(s(sT), s(sL), 3); self.s_add_u32(s(sT), s(sT), s(sG))
        self.smul(sT + 1, sT, ZG)
        self.base64(sZB, sWS, sT + 1, OFF_Z); self.base64(sOB, sWS, sT + 1, OFF_O); self.base64(sAB, sWS, sT + 1, OFF_A)
        self.s_lshl_b32(s(sT + 2), s(sT), 5); self.s_add_u32(s(sT + 2), s(sT + 2), s(sS))
        self.smul(sT + 2, sT + 2, HALO_SZ)
        self.base64(sHB, sWS, sT + 2, OFF_HALO)
        self.s_sub_u32(s(sT + 2), s(sT + 2), 32 * HALO_SZ)
        self.base64(sHP, sWS, None, OFF_HALO)
        self.s_cmp_eq_u32(s(sG), 0); self.s_cselect_b32(s(sT + 2), 0, s(sT + 2))
        self.s_add_u32(s(sHP), s(sHP), s(sT + 2)); self.s_addc_u32(s(sHP + 1), s(sHP + 1), 0)

    ACC = 16
    ZR = 96
    WF = 160
    def qkv(self):
        ACC, ZR, WF = self.ACC, self.ZR, self.WF
        vzA, vzB, vw0, vw1 = 8, 9, 10, 11
        self.smul(sT, sW, 40960); self.v_add_u32(v(vzA), s(sT), v(vL16))
        self.s_sub_u32(s(sT + 1), 7, s(sW)); self.smul(sT + 1, sT + 1, 40960); self.v_add_u32(v(vzB), s(sT + 1), v(vL16))
        self.v_lshrrev_b32(v(12), 5, v(vLANE)); self.v_lshlrev_b32(v(12), 3, v(12))
        self.v_bfe_u32(v(13), v(vLANE), 2, 2); self.v_add_u32(v(12), v(12), v(13))
        self.v_lshlrev_b32(v(12), 6, v(12))
        self.v_bfe_u32(v(13), v(vLANE), 4, 1); self.v_lshlrev_b32(v(13), 5, v(13))
        self.v_and_b32(v(14), 3, v(vLANE)); self.v_lshlrev_b32(v(14), 3, v(14))
        self.v_add3_u32(v(vw0), v(12), v(13), v(14))
        self.v_add_u32(v(vw1), L_WT1, v(vw0))
        sc = "" if self.o.get("z_plain") else " sc1"
        def zload(j, kk):
            if not self.o.get("noz"):
                self.global_load_dwordx4(v(ZR + 8 * j, 4), v(vzA), s(sZB, 2), mods=f"offset:{(kk % 4) * 1024}{sc}")
                self.global_load_dwordx4(v(ZR + 8 * j + 4, 4), v(vzB), s(sZB, 2), mods=f"offset:{(kk % 4) * 1024}{sc}")
            if kk % 4 == 3:
                self.v_add_u32(v(vzA), 4096, v(vzA)); self.v_add_u32(v(vzB), 4096, v(vzB))
        def wread(st, kk):
            if self.o.get("now"): return
            for T, vw in ((0, vw0), (1, vw1)):
                r = WF + 8 * st + 4 * T
                self.ds_read_b64_tr_b16(v(r, 2), v(vw), mods=f"offset:{kk * 1024}")
                self.ds_read_b64_tr_b16(v(r + 2, 2), v(vw), mods=f"offset:{kk * 1024 + 256}")
        for j in range(8): zload(j, j)
        for r in range(64): self.v_mov_b32(v(ACC + r), 0)
        wread(0, 0)
        def body(last):
            for j in range(8):
                st = j & 1
                if not (last and j == 7): wread(st ^ 1, j + 1)
                self.wait(vm=(14 - 2 * j) if last else 14, lg=0 if (last and j == 7) else 4)
                for blk in range(2):
                    for T in range(2):
                        d = ACC + 32 * blk + 16 * T
                        self.v_mfma_f32_32x32x16_bf16(v(d, 16), v(WF + 8 * st + 4 * T, 4), v(ZR + 8 * j + 4 * blk, 4), v(d, 16))
                if not last: zload(j, j)
            if not last:
                self.v_add_u32(v(vw0), 8192, v(vw0)); self.v_add_u32(v(vw1), 8192, v(vw1))
        lp = self.newlabel("qkv")
        self.s_mov_b32(s(sU), 4)
        self.label(lp)
        body(False)
        self.s_sub_u32(s(sU), s(sU), 1); self.s_cmp_lg_u32(s(sU), 0); self.s_cbranch_scc1(lp)
        body(True)

    QA, QB = 80, 86
    def qkv_epilogue(self):
        ACC = self.ACC
        c = math.log2(math.e) / math.sqrt(20.0)
        self.s_mov_b32(s(sU), f32(c)); self.s_mov_b32(s(sU + 1), f32(c))
        PK = 96
        vsw, vtr, vkl, vvl, vgh = 8, 9, 10, 11, 12
        self.v_and_b32(v(13), 31, v(vLANE)); self.v_lshlrev_b32(v(14), 6, v(13))
        self.s_lshl_b32(s(sT), s(sW), 11); self.s_add_u32(s(sT), s(sT), L_VS)
        self.v_add_u32(v(14), s(sT), v(14))
        self.v_bfe_u32(v(15), v(13), 1, 3)
        self.v_lshrrev_b32(v(13), 5, v(vLANE))
        self.v_sub_u32(v(vsw), 5, v(13)); self.v_xor_b32(v(vsw), v(vsw), v(15)); self.v_lshl_add_u32(v(vsw), v(vsw), 3, v(14))
        self.v_xor_b32(v(vsw + 168), v(13), v(15)); self.v_lshl_add_u32(v(vsw + 168), v(vsw + 168), 3, v(14))
        self.v_add_u32(v(177), 2, v(13)); self.v_xor_b32(v(177), v(177), v(15)); self.v_lshl_add_u32(v(177), v(177), 3, v(14))
        self.v_add_u32(v(178), 6, v(13)); self.v_xor_b32(v(178), v(178), v(15)); self.v_lshl_add_u32(v(178), v(178), 3, v(14))
        self.v_mov_b32(v(180), "0x3f80"); self.v_mov_b32(v(181), 0)
        self.ds_write_b64(v(178), v(180, 2))
        self.v_bfe_u32(v(13), v(vLANE), 2, 2)
        self.v_lshrrev_b32(v(14), 5, v(vLANE)); self.v_lshl_add_u32(v(13), v(14), 2, v(13))
        self.v_bfe_u32(v(14), v(vLANE), 4, 1); self.v_lshlrev_b32(v(14), 2, v(14))
        self.v_and_b32(v(15), 3, v(vLANE)); self.v_add_u32(v(14), v(14), v(15))
        for m in range(4):
            self.v_add_u32(v(15), 8 * m, v(13)); self.v_bfe_u32(v(179), v(15), 1, 3)
            self.v_xor_b32(v(179), v(179), v(14)); self.v_lshlrev_b32(v(179), 3, v(179))
            self.v_lshl_add_u32(v(182 + m), v(15), 6, v(179)); self.v_add_u32(v(182 + m), s(sT), v(182 + m))
        for blk in range(2):
            A0 = ACC + 32 * blk; A1 = A0 + 16
            Q = self.QA if blk == 0 else self.QB
            for r in (0, 2, 4, 6): self.v_pk_mul_f32(v(A0 + r, 2), v(A0 + r, 2), s(sU, 2))
            for r in (0, 2): self.v_pk_mul_f32(v(A1 + r, 2), v(A1 + r, 2), s(sU, 2))
            self.pack(Q, A0, 4); self.pack(Q + 4, A1, 2)
            K0 = PK; K1 = PK + 4; VV = PK + 6; VF = PK + 12
            self.pack(K0, A0 + 8, 4); self.pack(K1, A1 + 4, 2); self.pack(VV, A1 + 8, 4)
            self.ds_write_b64(v(vsw), v(K1, 2)); self.ds_write_b64(v(176), v(VV, 2)); self.ds_write_b64(v(177), v(VV + 2, 2))
            if blk == 0: self.s_mov_b32(s(sT + 1), s(sW))
            else: self.s_sub_u32(s(sT + 1), 7, s(sW))
            self.smul(sT + 2, sT + 1, 1536); self.s_add_u32(s(sT + 3), s(sT + 2), L_K)
            self.v_add_u32(v(vkl), s(sT + 3), v(vL16))
            self.v_lshrrev_b32(v(13), 1, v(vL16)); self.v_add_u32(v(13), s(sT + 3), v(13))
            self.ds_write_b128(v(vkl), v(K0, 4)); self.ds_write_b64(v(13), v(K1, 2), mods="offset:1024")
            self.wait(lg=2)
            for m in range(4): self.ds_read_b64_tr_b16(v(VF + 2 * m, 2), v(182 + m))
            self.v_add_u32(v(vgh), s(sT + 2), v(vL16))
            self.v_lshrrev_b32(v(14), 1, v(vL16)); self.v_add_u32(v(14), s(sT + 2), v(14)); self.v_add_u32(v(14), 1024, v(14))
            self.s_lshl_b32(s(sT + 2), s(sT + 1), 11)
            self.s_add_u32(s(sT + 3), s(sT + 2), L_V); self.v_add_u32(v(vvl), s(sT + 3), v(vL16))
            self.s_add_u32(s(sT + 2), s(sT + 2), 12288); self.v_add_u32(v(15), s(sT + 2), v(vL16))
            self.global_store_dwordx4(v(vgh), v(K0, 4), s(sHB, 2), mods="sc1")
            self.global_store_dwordx2(v(14), v(K1, 2), s(sHB, 2), mods="sc1")
            self.wait(lg=0)
            self.ds_write_b128(v(vvl), v(VF, 4)); self.ds_write_b128(v(vvl), v(VF + 4, 4), mods="offset:1024")
            self.global_store_dwordx4(v(15), v(VF, 4), s(sHB, 2), mods="sc1")
            self.global_store_dwordx4(v(15), v(VF + 4, 4), s(sHB, 2), mods="offset:1024 sc1")
            if blk == 0: self.wait(lg=0); self.s_nop(1)

    OA, OB, SA, SB, PP = 16, 32, 48, 64, 96
    KF0, KF1, VF0, VF1, MSK = 104, 108, 110, 114, 120
    def mask_gen(self, far):
        self.v_and_b32(v(8), 31, v(vLANE)); self.v_lshrrev_b32(v(9), 5, v(vLANE)); self.v_lshlrev_b32(v(9), 2, v(9))
        self.v_sub_u32(v(8), v(8), v(9))
        self.v_mov_b32(v(10), f32(-1e30)); self.v_mov_b32(v(11), 0)
        for r in range(16):
            kk = 8 * (r >> 2) + (r & 3)
            self.v_cmp_le_i32(s(sU + 2 * (r & 1), 2), kk, v(8))
            if far: self.v_cndmask_b32(v(self.MSK + r), v(11), v(10), s(sU + 2 * (r & 1), 2))
            else: self.v_cndmask_b32(v(self.MSK + r), v(10), v(11), s(sU + 2 * (r & 1), 2))

    KP0, KP1 = 136, 140
    def attn_seq(self, Q, O, sKb, sVb, sN, sMI):
        SA, SB, PP, KF0, KF1, VF0, VF1, MSK = self.SA, self.SB, self.PP, self.KF0, self.KF1, self.VF0, self.VF1, self.MSK
        KP0, KP1 = self.KP0, self.KP1
        vk, vk1, vv = 8, 9, 10
        sI = sU + 4
        self.v_add_u32(v(vk), s(sKb), v(vL16)); self.v_lshrrev_b32(v(vk1), 1, v(vL16)); self.v_add_u32(v(vk1), s(sKb), v(vk1))
        self.v_add_u32(v(vv), s(sVb), v(vL16))
        def qk(S, kreg):
            lm, lr = self.newlabel("am"), self.newlabel("ar")
            self.s_cmp_eq_u32(s(sI), s(sMI)); self.s_cbranch_scc1(lm)
            self.v_mfma_f32_32x32x16_bf16(v(S, 16), v(kreg, 4), v(Q, 4), 0)
            self.label(lr)
            self.cold2.append((lm, lr, S, kreg, Q))
        self.ds_read_b128(v(KP0, 4), v(vk)); self.ds_read_b64(v(KP1, 2), v(vk1), mods="offset:1024")
        self.ds_read_b128(v(KF0, 4), v(vk), mods="offset:1536"); self.ds_read_b64(v(KF1, 2), v(vk1), mods="offset:2560")
        self.ds_read_b128(v(VF0, 4), v(vv))
        self.s_mov_b32(s(sI), 0)
        self.wait(lg=3)
        qk(SA, KP0)
        self.v_mfma_f32_32x32x8_bf16(v(SA, 16), v(KP1, 2), v(Q + 4, 2), v(SA, 16))
        self.wait(lg=1)
        lp, ex, first = self.newlabel("att"), self.newlabel("attx"), self.newlabel("attf")
        self.s_branch(first)
        def body(S, Sn, entry):
            self.wait(lg=1)
            self.v_mfma_f32_32x32x16_bf16(v(O, 16), v(VF1, 4), v(PP + 4, 4), v(O, 16))
            if entry: self.label(entry)
            self.ds_read_b128(v(VF1, 4), v(vv), mods="offset:1024")
            for e in range(4): self.v_exp_f32(v(S + e), v(S + e))
            self.s_add_u32(s(sI), s(sI), 1)
            self.v_cvt_pk_bf16_f32(v(PP), v(S), v(S + 1)); self.v_cvt_pk_bf16_f32(v(PP + 1), v(S + 2), v(S + 3))
            qk(Sn, KF0)
            self.ds_read_b128(v(KF0, 4), v(vk), mods="offset:3072")
            for e in range(4, 8): self.v_exp_f32(v(S + e), v(S + e))
            self.v_cvt_pk_bf16_f32(v(PP + 2), v(S + 4), v(S + 5)); self.v_cvt_pk_bf16_f32(v(PP + 3), v(S + 6), v(S + 7))
            self.v_mfma_f32_32x32x8_bf16(v(Sn, 16), v(KF1, 2), v(Q + 4, 2), v(Sn, 16))
            self.ds_read_b64(v(KF1, 2), v(vk1), mods="offset:4096")
            for e in range(8, 12): self.v_exp_f32(v(S + e), v(S + e))
            self.wait(lg=3)
            self.v_mfma_f32_32x32x16_bf16(v(O, 16), v(VF0, 4), v(PP, 4), v(O, 16))
            self.ds_read_b128(v(VF0, 4), v(vv), mods="offset:2048")
            self.v_cvt_pk_bf16_f32(v(PP + 4), v(S + 8), v(S + 9)); self.v_cvt_pk_bf16_f32(v(PP + 5), v(S + 10), v(S + 11))
            for e in range(12, 16): self.v_exp_f32(v(S + e), v(S + e))
            self.v_add_u32(v(vk), 1536, v(vk)); self.v_add_u32(v(vk1), 1536, v(vk1))
            self.v_cvt_pk_bf16_f32(v(PP + 6), v(S + 12), v(S + 13)); self.v_cvt_pk_bf16_f32(v(PP + 7), v(S + 14), v(S + 15))
            self.v_add_u32(v(vv), 2048, v(vv))
            self.s_cmp_ge_u32(s(sI), s(sN))
        self.label(lp)
        body(SA, SB, first)
        self.s_cbranch_scc1(ex)
        body(SB, SA, None)
        self.s_cbranch_scc0(lp)
        self.label(ex)
        self.wait(lg=0)
        self.v_mfma_f32_32x32x16_bf16(v(O, 16), v(VF1, 4), v(PP + 4, 4), v(O, 16))

    def emit_cold2(self):
        for lm, lr, S, kreg, Q in self.cold2:
            self.label(lm)
            self.v_mfma_f32_32x32x16_bf16(v(S, 16), v(kreg, 4), v(Q, 4), v(self.MSK, 16))
            self.s_branch(lr)
        self.cold2 = []

    def attn_local(self):
        sKb, sVb, sN, sMI = sU + 6, sU + 7, sU + 8, sU + 9
        for r in range(32): self.v_mov_b32(v(self.OA + r), 0)
        self.mask_gen(False)
        self.s_mov_b32(s(sKb), L_K); self.s_mov_b32(s(sVb), L_V)
        self.s_add_u32(s(sN), s(sW), 1); self.s_mov_b32(s(sMI), s(sW))
        self.attn_seq(self.QA, self.OA, sKb, sVb, sN, sMI)
        self.s_sub_u32(s(sN), 8, s(sW)); self.s_sub_u32(s(sMI), 7, s(sW))
        self.attn_seq(self.QB, self.OB, sKb, sVb, sN, sMI)

    def halo_fetch(self):
        self.s_lshl_b32(s(sT), s(sL), 3); self.s_add_u32(s(sT), s(sT), s(sG)); self.s_sub_u32(s(sT), s(sT), 1)
        self.s_lshl_b32(s(sT), s(sT), 5); self.s_add_u32(s(sT), s(sT), s(sS)); self.s_lshl_b32(s(sT), s(sT), 7)
        self.s_add_u32(s(sT), s(sT), hex(OFF_HFL))
        self.v_mov_b32(v(8), s(sT))
        self.s_add_u32(s(sT + 1), s(sTOK), s(sL)); self.s_add_u32(s(sT + 1), s(sT + 1), 16)
        self.s_mov_b64(s(sT + 2, 2), -1)
        self.poll(8, 9, sT + 1, sT + 2)
        self.smul(sT, sW, 7168); self.v_add_u32(v(8), s(sT), v(vL16))
        self.v_add_u32(v(10), 4096, v(8))
        R = 144
        for j in range(7):
            self.global_load_dwordx4(v(R + 4 * j, 4), v(8 if j < 4 else 10), s(sHP, 2), mods=f"offset:{(j % 4) * 1024} sc1")
        self.v_add_u32(v(9), L_HK, v(8))
        for j in range(7):
            self.wait(vm=6 - j)
            self.ds_write_b128(v(9), v(R + 4 * j, 4), mods=f"offset:{j * 1024}")
        self.wait(lg=0); self.s_barrier()

    def halo_signal(self):
        self.wait(vm=0); self.s_barrier()
        lab = self.newlabel("hs")
        self.s_cmp_lg_u32(s(sW), 0); self.s_cbranch_scc1(lab)
        self.s_lshl_b32(s(sT), s(sL), 3); self.s_add_u32(s(sT), s(sT), s(sG))
        self.s_lshl_b32(s(sT), s(sT), 5); self.s_add_u32(s(sT), s(sT), s(sS)); self.s_lshl_b32(s(sT), s(sT), 7)
        self.s_add_u32(s(sT), s(sT), hex(OFF_HFL))
        self.s_add_u32(s(sT + 1), s(sTOK), s(sL)); self.s_add_u32(s(sT + 1), s(sT + 1), 16)
        self.v_mov_b32(v(8), s(sT)); self.v_mov_b32(v(9), s(sT + 1))
        self.setexec(1)
        self.global_store_dword(v(8), v(9), s(sWS, 2), mods="sc1")
        self.setexec(-1)
        self.label(lab)

    def attn_halo(self):
        sKb, sVb, sN, sMI = sU + 6, sU + 7, sU + 8, sU + 9
        self.mask_gen(True)
        self.s_mov_b32(s(sMI), 0)
        self.smul(sKb, sW, 1536); self.s_add_u32(s(sKb), s(sKb), L_HK)
        self.s_lshl_b32(s(sVb), s(sW), 11); self.s_add_u32(s(sVb), s(sVb), L_HV)
        self.s_sub_u32(s(sN), 8, s(sW))
        self.attn_seq(self.QA, self.OA, sKb, sVb, sN, sMI)
        self.s_sub_u32(s(sT), 7, s(sW))
        self.smul(sKb, sT, 1536); self.s_add_u32(s(sKb), s(sKb), L_HK)
        self.s_lshl_b32(s(sVb), s(sT), 11); self.s_add_u32(s(sVb), s(sVb), L_HV)
        self.s_add_u32(s(sN), s(sW), 1)
        self.attn_seq(self.QB, self.OB, sKb, sVb, sN, sMI)

    def o_store(self):
        self.s_lshr_b32(s(sT), s(sS), 4); self.smul(sT, sT, 10); self.s_and_b32(s(sT + 1), s(sS), 15)
        self.s_lshr_b32(s(sT + 2), s(sT + 1), 1); self.s_add_u32(s(sT + 2), s(sT + 2), s(sT)); self.s_lshl_b32(s(sT + 2), s(sT + 2), 10)
        self.s_and_b32(s(sT + 3), s(sT + 1), 1); self.s_lshl_b32(s(sT + 4), s(sT + 3), 9); self.s_add_u32(s(sT + 2), s(sT + 2), s(sT + 4))
        self.s_lshr_b32(s(sT + 4), s(sT + 1), 3); self.s_add_u32(s(sT + 4), s(sT + 4), s(sT)); self.s_add_u32(s(sT + 4), s(sT + 4), 8)
        self.s_lshl_b32(s(sT + 4), s(sT + 4), 10)
        self.s_bfe_u32(s(sT + 5), s(sT + 1), (2 << 16) | 1); self.s_lshl_b32(s(sT + 5), s(sT + 5), 8); self.s_add_u32(s(sT + 4), s(sT + 4), s(sT + 5))
        self.s_lshl_b32(s(sT + 3), s(sT + 3), 3); self.s_add_u32(s(sT + 4), s(sT + 4), s(sT + 3))
        self.v_bfe_u32(v(8), v(vLANE), 4, 1); self.v_mul_u32_u24(v(8), 20480, v(8))
        self.v_and_b32(v(9), 15, v(vLANE)); self.v_lshl_add_u32(v(8), v(9), 4, v(8))
        self.v_lshrrev_b32(v(9), 5, v(vLANE)); self.v_lshl_add_u32(v(9), v(9), 8, v(8))
        lst = []
        for blk, O in ((0, self.OA), (1, self.OB)):
            if blk == 0: self.s_mov_b32(s(sT + 6), s(sW))
            else: self.s_sub_u32(s(sT + 6), 7, s(sW))
            self.smul(sT + 6, sT + 6, 40960)
            self.s_add_u32(s(sT + 7), s(sT + 6), s(sT + 2)); self.s_add_u32(s(sT + 6), s(sT + 6), s(sT + 4))
            va = 10 + 2 * blk
            self.v_add_u32(v(va), s(sT + 7), v(9)); self.v_add_u32(v(va + 1), s(sT + 6), v(8))
            self.v_rcp_f32(v(14), v(O + 12))
            self.v_mov_b32(v(15), v(14))
            for r in range(0, 12, 2): self.v_pk_mul_f32(v(O + r, 2), v(O + r, 2), v(14, 2))
            P = 48 + 8 * blk
            self.pack(P, O, 6)
            lst += [self.store(16, v(va), v(P, 4), s(sOB, 2)), ("exec", 0xffffffff), self.store(8, v(va + 1), v(P + 4, 2), s(sOB, 2)), ("exec", -1)]
        self.stores(lst)

    def wo_load(self):
        self.s_and_b32(s(sU), s(sS), 7)
        self.smul(sU, sU, 160)
        self.s_mov_b32(s(sSRD), s(sWO)); self.s_mov_b32(s(sSRD + 1), s(sWO + 1))
        self.s_mov_b32(s(sSRD + 2), 640 * 640 * 2); self.s_mov_b32(s(sSRD + 3), "0x00020000")
        self.v_mul_u32_u24(v(8), 6554, v(vLANE)); self.v_lshrrev_b32(v(8), 16, v(8))
        self.v_mul_u32_u24(v(9), 10, v(8)); self.v_sub_u32(v(9), v(vLANE), v(9))
        self.smul(sU + 1, sW, 80); self.v_add_u32(v(8), s(sU + 1), v(8))
        self.v_mul_u32_u24(v(10), 1280, v(8)); self.v_lshl_add_u32(v(10), v(9), 4, v(10)); self.v_add_u32(v(10), s(sU), v(10))
        self.v_mul_u32_u24(v(11), 160, v(8)); self.v_lshl_add_u32(v(11), v(9), 4, v(11)); self.v_add_u32(v(11), L_K, v(11))
        self.v_lshrrev_b32(v(12), 4, v(vLANE))
        self.v_bfe_u32(v(13), v(vLANE), 2, 2)
        self.v_and_b32(v(14), 3, v(vLANE)); self.v_lshlrev_b32(v(14), 3, v(14)); self.v_add_u32(v(14), L_K, v(14))
        self.v_lshrrev_b32(v(17), 1, v(12)); self.v_mul_u32_u24(v(17), 20, v(17))
        self.v_and_b32(v(18), 1, v(12)); self.v_lshl_add_u32(v(17), v(18), 2, v(17)); self.v_add_u32(v(17), v(17), v(13))
        self.v_mul_u32_u24(v(17), 160, v(17)); self.v_add_u32(v(17), v(17), v(14))
        self.v_mul_u32_u24(v(18), 40, v(12)); self.v_add3_u32(v(18), v(18), v(13), 16)
        self.v_mul_u32_u24(v(18), 160, v(18)); self.v_add_u32(v(18), v(18), v(14))
        R = 96
        for hh in range(2):
            self.setexec((1 << 50) - 1)
            self.s_mov_b32(s(sU + 2), hh * 320 * 1280)
            for i in range(16):
                self.buffer_load_dwordx4(v(R + 4 * i, 4), v(10), s(sSRD, 4), s(sU + 2), mods="offen")
                if i < 15: self.s_add_u32(s(sU + 2), s(sU + 2), 5 * 1280)
            for i in range(16):
                self.wait(vm=15 - i)
                self.ds_write_b128(v(11), v(R + 4 * i, 4), mods=f"offset:{800 * i}")
            self.setexec(-1)
            self.wait(lg=0); self.s_barrier()
            if self.o.get("fine"): self.stamp(f"wo{hh}st")
            lab = self.newlabel("wo")
            self.s_lshr_b32(s(sU + 2), s(sW), 1); self.s_cmp_lg_u32(s(sU + 2), hh); self.s_cbranch_scc1(lab)
            for kl in range(10):
                for ct in range(5):
                    d = (kl * 5 + ct) * 4
                    if kl < 8: vb, o0, o1 = 17, 6400 * kl + 32 * ct, 6400 * kl + 32 * ct + 1280
                    else: vb, o0, o1 = 18, 25600 * (kl - 8) + 32 * ct, 25600 * (kl - 8) + 32 * ct + 3200
                    self.ds_read_b64_tr_b16(a(d, 2), v(vb), mods=f"offset:{o0}")
                    self.ds_read_b64_tr_b16(a(d + 2, 2), v(vb), mods=f"offset:{o1}")
                self.wait(lg=0)
            self.label(lab)
            self.s_barrier()

    def outproj(self):
        OF, AC, P = 96, 16, 56
        self.s_lshr_b32(s(sU), s(sS), 3); self.s_lshl_b32(s(sU), s(sU), 2)
        self.s_and_b32(s(sU + 1), s(sW), 1); self.s_lshl_b32(s(sU + 1), s(sU + 1), 1); self.s_add_u32(s(sU), s(sU), s(sU + 1))
        self.s_lshr_b32(s(sU + 1), s(sW), 1)
        self.s_add_u32(s(sU + 2), s(sU), s(sU + 1))
        self.s_xor_b32(s(sU + 3), s(sU + 2), 1)
        self.smul(sU + 4, sU + 1, 10240)
        for j, sr in ((0, sU + 2), (1, sU + 3)):
            self.smul(sU + 5, sr, 20480); self.s_add_u32(s(sU + 5), s(sU + 5), s(sU + 4))
            self.v_add_u32(v(8 + j), s(sU + 5), v(vL16))
        for kl in range(10):
            for j in range(2):
                self.global_load_dwordx4(v(OF + 8 * kl + 4 * j, 4), v(8 + j), s(sOB, 2), mods=f"offset:{(kl % 4) * 1024} sc1")
            if kl % 4 == 3:
                self.v_add_u32(v(8), 4096, v(8)); self.v_add_u32(v(9), 4096, v(9))
        for r in range(40): self.v_mov_b32(v(AC + r), 0)
        for kl in range(10):
            self.wait(vm=18 - 2 * kl)
            for j in range(2):
                for ct in range(5):
                    d = AC + 20 * j + 4 * ct
                    self.v_mfma_f32_16x16x32_bf16(v(d, 4), a((kl * 5 + ct) * 4, 4), v(OF + 8 * kl + 4 * j, 4), v(d, 4))
        self.smul(sU + 5, sW, 5120); self.s_add_u32(s(sU + 5), s(sU + 5), L_K); self.v_add_u32(v(10), s(sU + 5), v(vL16))
        self.s_xor_b32(s(sU + 5), s(sW), 2); self.smul(sU + 5, sU + 5, 5120); self.s_add_u32(s(sU + 5), s(sU + 5), L_K)
        self.v_add_u32(v(11), s(sU + 5), v(vL16))
        for ct in range(5): self.ds_write_b128(v(10), v(AC + 20 + 4 * ct, 4), mods=f"offset:{1024 * ct}")
        self.wait(lg=0); self.s_barrier()
        for ct in range(5): self.ds_read_b128(v(OF + 4 * ct, 4), v(11), mods=f"offset:{1024 * ct}")
        self.s_lshl_b32(s(sU + 5), s(sU + 2), 1); self.smul(sU + 5, sU + 5, 10240)
        self.s_and_b32(s(sU + 6), s(sS), 7); self.smul(sU + 6, sU + 6, 1280); self.s_add_u32(s(sU + 5), s(sU + 5), s(sU + 6))
        self.v_bfe_u32(v(12), v(vLANE), 3, 1); self.v_mul_u32_u24(v(12), 10240, v(12))
        self.v_and_b32(v(13), 7, v(vLANE)); self.v_lshl_add_u32(v(12), v(13), 4, v(12))
        self.v_bfe_u32(v(13), v(vLANE), 4, 1); self.v_lshl_add_u32(v(12), v(13), 8, v(12))
        self.v_lshrrev_b32(v(13), 5, v(vLANE)); self.v_lshl_add_u32(v(12), v(13), 7, v(12))
        self.v_add_u32(v(12), s(sU + 5), v(12))
        self.wait(lg=0)
        for ct in range(5):
            for r in (0, 2): self.v_pk_add_f32(v(AC + 4 * ct + r, 2), v(AC + 4 * ct + r, 2), v(OF + 4 * ct + r, 2))
        self.pack(P, AC, 10)
        self.v_mov_b32(v(P + 10), 0); self.v_mov_b32(v(P + 11), 0)
        for q in range(3):
            self.v_permlane16_swap_b32(v(P + 4 * q), v(P + 4 * q + 2)); self.v_permlane16_swap_b32(v(P + 4 * q + 1), v(P + 4 * q + 3))
        self.stores([self.store(16, v(12), v(P, 4), s(sAB, 2)), self.store(16, v(12), v(P + 4, 4), s(sAB, 2), 512),
                     ("exec", 0x0000ffff0000ffff), self.store(16, v(12), v(P + 8, 4), s(sAB, 2), 1024), ("exec", -1)])

    def y_load(self):
        LY = L_SP
        self.s_lshl_b32(s(sU), s(sG), 8); self.s_lshl_b32(s(sU + 1), s(sS), 3); self.s_add_u32(s(sU), s(sU), s(sU + 1)); self.s_lshl_b32(s(sU), s(sU), 1)
        self.s_add_u32(s(sU), s(sU), hex(OFF_Y))
        self.v_lshlrev_b32(v(8), 12, v(vTID)); self.v_add_u32(v(8), s(sU), v(8))
        self.global_load_dwordx4(v(16, 4), v(8), s(sWS, 2), mods="sc1")
        self.v_add_u32(v(9), 256 * 4096, v(8)); self.global_load_dwordx4(v(20, 4), v(9), s(sWS, 2), mods="sc1")
        lab = self.newlabel("yl")
        self.s_cmp_ge_u32(s(sW), 2); self.s_cbranch_scc1(lab)
        self.v_add_u32(v(9), 512 * 4096, v(8)); self.global_load_dwordx4(v(24, 4), v(9), s(sWS, 2), mods="sc1")
        self.label(lab)
        self.v_and_b32(v(10), 7, v(vTID)); self.v_mul_u32_u24(v(10), 320, v(10))
        self.v_lshrrev_b32(v(11), 3, v(vTID)); self.v_lshl_add_u32(v(10), v(11), 2, v(10)); self.v_add_u32(v(10), LY, v(10))
        self.wait(vm=0)
        for i in range(2):
            for w in range(4): self.ds_write_b32(v(10), v(16 + 4 * i + w), mods=f"offset:{2560 * w + 128 * i}")
        lab = self.newlabel("yl")
        self.s_cmp_ge_u32(s(sW), 2); self.s_cbranch_scc1(lab)
        for w in range(4): self.ds_write_b32(v(10), v(24 + w), mods=f"offset:{2560 * w + 256}")
        self.label(lab)
        self.wait(lg=0); self.s_barrier()
        self.smul(sU, sW, 2560); self.s_add_u32(s(sU), s(sU), LY)
        self.v_bfe_u32(v(10), v(vLANE), 2, 2); self.v_mul_u32_u24(v(10), 320, v(10))
        self.v_lshrrev_b32(v(11), 4, v(vLANE)); self.v_lshl_add_u32(v(10), v(11), 5, v(10))
        self.v_and_b32(v(11), 3, v(vLANE)); self.v_lshl_add_u32(v(10), v(11), 3, v(10)); self.v_add_u32(v(10), s(sU), v(10))
        for m in range(3):
            self.ds_read_b64_tr_b16(v(vY + 4 * m, 2), v(10), mods=f"offset:{128 * m}")
            self.ds_read_b64_tr_b16(v(vY + 4 * m + 2, 2), v(10), mods=f"offset:{128 * m + 4 * 320}")
        self.wait(lg=0)
        self.setexec(0xffffffff00000000)
        for j in range(8, 12): self.v_mov_b32(v(vY + j), 0)
        self.setexec(-1)
        self.s_barrier()

    def p4(self, last_label):
        XF, AF, AP, ST = 16, 64, 96, 40
        self.smul(sU, sS, 10240); self.s_lshl_b32(s(sU + 1), s(sW), 5); self.s_add_u32(s(sU), s(sU), s(sU + 1))
        self.v_lshrrev_b32(v(8), 1, v(vLANE)); self.v_lshlrev_b32(v(8), 7, v(8))
        self.v_and_b32(v(9), 1, v(vLANE)); self.v_lshl_add_u32(v(8), v(9), 4, v(8)); self.v_add_u32(v(8), s(sU), v(8))
        self.v_add_u32(v(9), 8192, v(8))
        for j in range(8, 12): self.v_mov_b32(v(AP + j), 0)
        self.global_load_dwordx4(v(AP, 4), v(8), s(sAB, 2), mods="sc1")
        self.v_add_u32(v(10), 4096, v(8))
        self.global_load_dwordx4(v(AP + 4, 4), v(10), s(sAB, 2), mods="sc1")
        self.setexec(0xffffffff)
        self.global_load_dwordx4(v(AP + 8, 4), v(9), s(sAB, 2), mods="sc1")
        self.setexec(-1)
        self.unpack(XF, vX, 12)
        self.wait(vm=0)
        self.unpack(AF, AP, 12)
        for j in range(12): self.v_pk_add_f32(v(XF + 2 * j, 2), v(XF + 2 * j, 2), v(AF + 2 * j, 2))
        self.pack(AP, XF, 12); self.unpack(XF, AP, 12)
        self.ln_stats(XF, ST)
        self.unpack(AF, vY, 12)
        for j in range(12):
            self.v_pk_fma_f32(v(AP + 16 + 2 * j, 2), v(XF + 2 * j, 2), v(ST, 2), v(ST + 2, 2))
        for j in range(12):
            self.v_pk_fma_f32(v(XF + 2 * j, 2), v(AP + 16 + 2 * j, 2), v(AF + 2 * j, 2), v(XF + 2 * j, 2))
        self.pack(vX, XF, 12)

    def p4_tail_z(self):
        XF, ST = 16, 40
        self.unpack(XF, vX, 12)
        self.ln_stats(XF, ST)
        for j in range(12): self.v_pk_fma_f32(v(XF + 2 * j, 2), v(XF + 2 * j, 2), v(ST, 2), v(ST + 2, 2))
        self.pack(56, XF, 12)

    def out_store(self):
        self.x_addr(8)
        self.global_store_dwordx4(v(8), v(vX, 4), s(sOUT, 2), mods="nt")
        self.global_store_dwordx4(v(8), v(vX + 4, 4), s(sOUT, 2), mods="offset:512 nt")
        self.setexec(0xffffffff)
        self.global_store_dwordx4(v(8), v(vX + 8, 4), s(sOUT, 2), mods="offset:1024 nt")
        self.setexec(-1)

    def c0(self):
        KP, VP, SP = 96, 124, 140
        KF, VF, SKF, U = 16, 0, 160, 192
        lab = self.newlabel("c0")
        self.s_mov_b32(s(sSRD), s(sBK)); self.s_mov_b32(s(sSRD + 1), s(sBK + 1))
        self.s_mov_b32(s(sSRD + 2), 2048 * 1280); self.s_mov_b32(s(sSRD + 3), "0x00020000")
        self.v_mul_u32_u24(v(8), 6554, v(vTID)); self.v_lshrrev_b32(v(8), 16, v(8))
        self.v_mul_u32_u24(v(9), 10, v(8)); self.v_sub_u32(v(9), v(vTID), v(9))
        self.v_cmp_gt_u32("vcc", 160, v(vTID))
        self.s_and_saveexec_b64(s(sM0, 2), "vcc")
        self.s_cbranch_execz(lab)
        self.s_lshl_b32(s(sU), s(sS), 6); self.s_sub_u32(s(sU), s(sU), 3)
        self.v_lshl_add_u32(v(10), v(8), 2, s(sU))
        self.s_mov_b32(s(sU + 1), 1280); self.v_mul_lo_u32(v(10), s(sU + 1), v(10))
        self.smul(sU + 2, sG, 160); self.v_lshl_add_u32(v(11), v(9), 4, s(sU + 2))
        self.v_add_u32(v(10), v(10), v(11))
        for j in range(7):
            self.buffer_load_dwordx4(v(KP + 4 * j, 4), v(10), s(sSRD, 4), 0, mods="offen")
            if j == 2: self.v_add_u32(v(12), 1280, v(10))
            self.v_add_u32(v(10), 1280, v(10))
        self.s_mov_b32(s(sSRD), s(sBV)); self.s_mov_b32(s(sSRD + 1), s(sBV + 1))
        for j in range(4):
            self.buffer_load_dwordx4(v(VP + 4 * j, 4), v(12), s(sSRD, 4), 0, mods="offen")
            self.v_add_u32(v(12), 1280, v(12))
        self.smul(sU + 2, sG, 640); self.v_lshl_add_u32(v(11), v(9), 6, s(sU + 2))
        for j in range(4): self.global_load_dwordx4(v(SP + 4 * j, 4), v(11), s(sSH, 2), mods=f"offset:{16 * j}")
        self.wait(vm=0)
        for m in range(4):
            for e in range(2):
                c = 2 * m + e
                self.v_lshlrev_b32(v(SKF + 0 + 2 * m + e), 16, v(SP + 2 * c))
                self.v_and_b32(v(SKF + 8 + 2 * m + e), "0xffff0000", v(SP + 2 * c))
                self.v_lshlrev_b32(v(SKF + 16 + 2 * m + e), 16, v(SP + 2 * c + 1))
                self.v_and_b32(v(SKF + 24 + 2 * m + e), "0xffff0000", v(SP + 2 * c + 1))
        for j in range(7): self.unpack(KF + 8 * j, KP + 4 * j, 4)
        for i in range(4):
            self.unpack(72, VP + 4 * i, 4)
            for m in range(4):
                u = U + 8 * i + 2 * m
                self.v_pk_mul_f32(v(u, 2), v(KF + 8 * i + 2 * m, 2), v(SKF + 24 + 2 * m, 2))
                self.v_pk_fma_f32(v(u, 2), v(KF + 8 * (i + 1) + 2 * m, 2), v(SKF + 16 + 2 * m, 2), v(u, 2))
                self.v_pk_fma_f32(v(u, 2), v(KF + 8 * (i + 2) + 2 * m, 2), v(SKF + 8 + 2 * m, 2), v(u, 2))
                self.v_pk_fma_f32(v(u, 2), v(KF + 8 * (i + 3) + 2 * m, 2), v(SKF + 0 + 2 * m, 2), v(u, 2))
                self.v_pk_mul_f32(v(u, 2), v(u, 2), v(72 + 2 * m, 2))
        self.v_mul_u32_u24(v(10), 1168, v(9)); self.v_lshlrev_b32(v(11), 3, v(8)); self.v_sub_u32(v(10), v(10), v(11))
        self.v_add_u32(v(10), L_K + 120, v(10))
        for c in range(8):
            self.v_cvt_pk_bf16_f32(v(96 + 2 * c), v(U + 24 + c), v(U + 16 + c))
            self.v_cvt_pk_bf16_f32(v(97 + 2 * c), v(U + 8 + c), v(U + c))
            self.ds_write_b64(v(10), v(96 + 2 * c, 2), mods=f"offset:{144 * c}")
        self.label(lab)
        self.s_mov_b64("exec", -1)
        self.wait(lg=0); self.s_barrier()
        self.v_lshrrev_b32(v(8), 6, v(vTID)); self.v_mul_u32_u24(v(8), 1168, v(8))
        self.v_bfe_u32(v(9), v(vTID), 3, 3); self.v_mul_u32_u24(v(9), 144, v(9))
        self.v_and_b32(v(10), 7, v(vTID)); self.v_lshlrev_b32(v(10), 4, v(10))
        self.v_add3_u32(v(8), v(8), v(9), v(10)); self.v_add_u32(v(8), L_K, v(8))
        self.smul(sU, sG, 80 * 4096); self.s_lshl_b32(s(sU + 1), s(sS), 7); self.s_sub_u32(s(sU), s(sU), s(sU + 1))
        self.s_add_u32(s(sU), s(sU), hex(OFF_R + 1984 * 2))
        self.v_lshrrev_b32(v(9), 3, v(vTID)); self.v_lshlrev_b32(v(9), 12, v(9)); self.v_add3_u32(v(9), v(9), v(10), s(sU))
        self.ds_read_b128(v(16, 4), v(8)); self.ds_read_b128(v(20, 4), v(8), mods=f"offset:{4 * 1168}")
        self.ds_read_b128(v(24, 4), v(8), mods=f"offset:{8 * 1168}")
        self.v_add_u32(v(11), 32 * 4096, v(9)); self.v_add_u32(v(12), 64 * 4096, v(9))
        self.wait(lg=0)
        hi = 0 if False else None
        l1 = self.newlabel("c0s")
        self.stores([self.store(16, v(9), v(16, 4), s(sWS, 2)), self.store(16, v(11), v(20, 4), s(sWS, 2))])
        self.s_cmp_ge_u32(s(sW), 2); self.s_cbranch_scc1(l1)
        self.stores([self.store(16, v(12), v(24, 4), s(sWS, 2))])
        self.label(l1)

    CH_SZ = 24832
    def conv_pair(self, sCH):
        D, E, AL = 96, 112, 128
        self.s_lshr_b32(s(sU), s(sW), 1); self.s_add_u32(s(sU + 1), s(sCH), s(sU))
        self.smul(sU + 2, sU, self.CH_SZ); self.s_add_u32(s(sU + 2), s(sU + 2), L_K)
        self.s_lshl_b32(s(sU + 3), s(sU + 1), 12)
        self.s_mov_b32(s(sSRD), s(sSK)); self.s_mov_b32(s(sSRD + 1), s(sSK + 1))
        self.s_mov_b32(s(sSRD + 2), 640 * 4096); self.s_mov_b32(s(sSRD + 3), "0x00020000")
        self.v_and_b32(v(8), 127, v(vTID))
        self.v_lshlrev_b32(v(9), 4, v(8))
        for i in range(2):
            self.buffer_load_dwordx4(v(D + 8 * i, 4), v(9), s(sSRD, 4), s(sU + 3), mods=f"offen offset:{2048 * i}")
            self.buffer_load_dwordx2(v(D + 8 * i + 4, 2), v(9), s(sSRD, 4), s(sU + 3), mods=f"offen offset:{2048 * i + 16}")
            self.buffer_load_dwordx4(v(E + 4 * i, 4), v(9), s(sSRD, 4), s(sU + 3), mods=f"offen offset:{2048 * i + 4}")
        self.s_add_u32(s(sU + 4), s(sU + 3), hex(OFF_R)); self.v_add_u32(v(10), s(sU + 4), v(9))
        self.global_load_dwordx4(v(120, 4), v(10), s(sWS, 2), mods="sc1")
        self.global_load_dwordx4(v(124, 4), v(10), s(sWS, 2), mods="offset:2048 sc1")
        self.s_add_u32(s(sU + 6), s(sSK), s(sU + 3)); self.s_addc_u32(s(sU + 7), s(sSK + 1), 0)
        self.s_load_dwordx2(s(sU + 8, 2), s(sU + 6, 2), 0)
        self.s_lshr_b32(s(sU + 5), s(sU + 1), 1); self.s_lshl_b32(s(sU + 5), s(sU + 5), 2)
        self.s_add_u32(s(sU + 6), s(sSD), s(sU + 5)); self.s_addc_u32(s(sU + 7), s(sSD + 1), 0)
        self.s_load_dword(s(sU + 10), s(sU + 6, 2), 0)
        for r in range(4): self.v_mov_b32(v(24 + r), 0)
        self.v_add_u32(v(11), s(sU + 2), v(9))
        self.ds_write_b128(v(11), v(24, 4), mods=f"offset:{16640 + 320 * 16}")
        self.v_and_b32(v(16), 63, v(8)); self.v_lshlrev_b32(v(16), 4, v(16)); self.v_add_u32(v(16), s(sU + 2), v(16))
        self.ds_write_b128(v(16), v(24, 4), mods=f"offset:{16640 + 448 * 16}")
        self.wait(lg=0)
        self.s_and_b32(s(sU + 11), s(sU + 1), 1); self.s_lshl_b32(s(sU + 11), s(sU + 11), 4)
        self.s_lshr_b32(s(sU + 10), s(sU + 10), s(sU + 11)); self.s_lshl_b32(s(sU + 10), s(sU + 10), 16)
        self.s_lshl_b32(s(sU + 11), s(sU + 8), 16)
        self.v_mov_b32(v(16), s(sU + 10)); self.v_add_f32(v(16), s(sU + 11), v(16))
        self.v_cvt_pk_bf16_f32(v(16), v(16), v(16)); self.v_and_b32(v(16), "0xffff", v(16))
        self.s_and_b32(s(sU + 8), s(sU + 8), "0xffff0000"); self.v_or_b32(v(16), s(sU + 8), v(16))
        self.v_mov_b32(v(17), s(sU + 9))
        self.v_lshrrev_b32(v(18), 2, v(vLANE)); self.v_sub_u32(v(19), 3, v(18)); self.v_lshlrev_b32(v(19), 4, v(19))
        self.v_and_b32(v(19), 63, v(19))
        self.v_lshlrev_b64(v(26, 2), v(19), v(16, 2))
        self.v_and_b32(v(19), 3, v(vLANE)); self.v_cmp_eq_u32("vcc", 3, v(19))
        self.v_cndmask_b32(v(26), 0, v(26), "vcc"); self.v_cndmask_b32(v(27), 0, v(27), "vcc")
        self.v_mul_u32_u24(v(18), 4160, v(18)); self.v_lshl_add_u32(v(18), v(19), 4, v(18)); self.v_add_u32(v(18), s(sU + 2), v(18))
        lab = self.newlabel("hd")
        self.s_and_b32(s(sU + 5), s(sW), 1); self.s_cmp_lg_u32(s(sU + 5), 0); self.s_cbranch_scc1(lab)
        self.setexec(0xffff); self.ds_write_b128(v(18), v(24, 4)); self.setexec(-1)
        self.label(lab)
        self.v_add_u32(v(11), 64, v(11))
        for i in range(2):
            self.wait(vm=2 + 3 * (1 - i))
            d = D + 8 * i
            for j in range(4): self.v_alignbit_b32(v(AL + j), v(d + j + 1), v(d + j), 16)
            for j in range(3): self.v_mov_b32(v(AL + 4 + j), v(AL + 1 + j))
            self.v_alignbit_b32(v(AL + 7), v(d + 5), v(d + 4), 16)
            o = 2048 * i
            self.ds_write_b128(v(11), v(AL, 4), mods=f"offset:{o}")
            self.ds_write_b128(v(11), v(E + 4 * i, 4), mods=f"offset:{o + 4160}")
            self.ds_write_b128(v(11), v(AL + 4, 4), mods=f"offset:{o + 2 * 4160}")
            self.ds_write_b128(v(11), v(d + 2, 4), mods=f"offset:{o + 3 * 4160}")
        self.v_lshrrev_b32(v(16), 2, v(8)); self.v_add_u32(v(16), v(16), v(8)); self.v_lshlrev_b32(v(16), 4, v(16))
        self.v_add_u32(v(16), s(sU + 2), v(16))
        self.wait(vm=0)
        self.ds_write_b128(v(16), v(120, 4), mods="offset:16640"); self.ds_write_b128(v(16), v(124, 4), mods=f"offset:{16640 + 160 * 16}")
        self.wait(lg=0); self.s_barrier()
        LO, HI, F = 16, 32, 96
        vA, vB = 8, 9
        self.s_and_b32(s(sU + 5), s(sW), 1)
        self.v_and_b32(v(10), 3, v(vLANE)); self.v_mul_u32_u24(v(10), 4160, v(10))
        self.v_bfe_u32(v(11), v(vLANE), 2, 3); self.v_lshl_add_u32(v(10), v(11), 3, v(10))
        self.v_lshrrev_b32(v(11), 5, v(vLANE)); self.v_lshl_add_u32(v(10), v(11), 4, v(10))
        self.s_lshl_b32(s(sU + 6), s(sU + 5), 10); self.s_add_u32(s(sU + 6), s(sU + 6), s(sU + 2))
        self.v_add_u32(v(vA), s(sU + 6), v(10))
        self.v_and_b32(v(10), 31, v(vLANE)); self.v_sub_u32(v(10), 31, v(10)); self.v_mul_u32_u24(v(10), 5, v(10))
        self.v_add_u32(v(10), v(10), v(11)); self.v_lshlrev_b32(v(10), 4, v(10))
        self.smul(sU + 6, sU + 5, 16 * 80); self.s_add_u32(s(sU + 6), s(sU + 6), s(sU + 2)); self.s_add_u32(s(sU + 6), s(sU + 6), 16640)
        self.v_add_u32(v(vB), s(sU + 6), v(10))
        for r in range(32): self.v_mov_b32(v(LO + r), 0)
        def reads(st, par, extra):
            f = F + 16 * st
            oa, ob = 32 * par + extra * 64, 32 * par + extra * 80
            self.ds_read_b64(v(f, 2), v(vA), mods=f"offset:{oa}"); self.ds_read_b64(v(f + 2, 2), v(vA), mods=f"offset:{oa + 8}")
            self.ds_read_b128(v(f + 8, 4), v(vB), mods=f"offset:{ob + 2560}")
            self.ds_read_b128(v(f + 12, 4), v(vB), mods=f"offset:{ob}")
            self.ds_read_b64(v(f + 4, 2), v(vA), mods=f"offset:{oa + 2048}"); self.ds_read_b64(v(f + 6, 2), v(vA), mods=f"offset:{oa + 2056}")
        def mm(st):
            f = F + 16 * st
            self.v_mfma_f32_32x32x16_bf16(v(LO, 16), v(f, 4), v(f + 8, 4), v(LO, 16))
            self.v_mfma_f32_32x32x16_bf16(v(HI, 16), v(f, 4), v(f + 12, 4), v(HI, 16))
            self.v_mfma_f32_32x32x16_bf16(v(HI, 16), v(f + 4, 4), v(f + 8, 4), v(HI, 16))
        reads(0, 0, 0)
        lp = self.newlabel("cv")
        self.s_mov_b32(s(sU + 6), 16)
        self.label(lp)
        reads(1, 1, 0); self.wait(lg=6); mm(0)
        reads(0, 0, 1); self.wait(lg=6); mm(1)
        self.v_add_u32(v(vA), 64, v(vA)); self.v_add_u32(v(vB), 80, v(vB))
        self.s_sub_u32(s(sU + 6), s(sU + 6), 1); self.s_cmp_lg_u32(s(sU + 6), 0); self.s_cbranch_scc1(lp)
        self.wait(lg=0); self.s_barrier()
        self.s_lshl_b32(s(sU + 6), s(sU + 5), 12); self.s_add_u32(s(sU + 6), s(sU + 6), s(sU + 2)); self.v_add_u32(v(10), s(sU + 6), v(vL16))
        self.s_xor_b32(s(sU + 7), s(sU + 5), 1); self.s_lshl_b32(s(sU + 7), s(sU + 7), 12); self.s_add_u32(s(sU + 7), s(sU + 7), s(sU + 2))
        self.v_add_u32(v(11), s(sU + 7), v(vL16))
        l1, l2 = self.newlabel("cx"), self.newlabel("cy")
        self.s_cmp_lg_u32(s(sU + 5), 0); self.s_cbranch_scc1(l1)
        for j in range(4): self.ds_write_b128(v(10), v(HI + 4 * j, 4), mods=f"offset:{1024 * j}")
        self.s_branch(l2)
        self.label(l1)
        for j in range(4): self.ds_write_b128(v(10), v(LO + 4 * j, 4), mods=f"offset:{1024 * j}")
        for r in range(16): self.v_mov_b32(v(LO + r), v(HI + r))
        self.label(l2)
        self.wait(lg=0); self.s_barrier()
        for j in range(4): self.ds_read_b128(v(F + 4 * j, 4), v(11), mods=f"offset:{1024 * j}")
        self.wait(lg=0)
        for r in range(0, 16, 2): self.v_pk_add_f32(v(LO + r, 2), v(LO + r, 2), v(F + r, 2))
        self.pack(F, LO, 8)
        self.s_lshl_b32(s(sU + 6), s(sU + 5), 11); self.s_add_u32(s(sU + 6), s(sU + 6), s(sU + 2)); self.s_add_u32(s(sU + 6), s(sU + 6), 8192)
        self.v_and_b32(v(10), 31, v(vLANE)); self.v_lshlrev_b32(v(10), 6, v(10))
        self.v_lshrrev_b32(v(11), 5, v(vLANE)); self.v_lshl_add_u32(v(10), v(11), 3, v(10)); self.v_add_u32(v(10), s(sU + 6), v(10))
        for rho in range(4): self.ds_write_b64(v(10), v(F + 2 * rho, 2), mods=f"offset:{16 * rho}")
        self.v_add_u32(v(11), s(sU + 6), v(vL16))
        self.wait(lg=0)
        self.ds_read_b128(v(LO, 4), v(11)); self.ds_read_b128(v(LO + 4, 4), v(11), mods="offset:1024")
        self.s_lshl_b32(s(sU + 6), s(sU + 5), 11); self.s_add_u32(s(sU + 6), s(sU + 6), s(sU + 3)); self.s_add_u32(s(sU + 6), s(sU + 6), hex(OFF_Y))
        self.v_add_u32(v(10), s(sU + 6), v(vL16))
        self.wait(lg=0)
        self.global_store_dwordx4(v(10), v(LO, 4), s(sWS, 2), mods="sc1")
        self.global_store_dwordx4(v(10), v(LO + 4, 4), s(sWS, 2), mods="offset:1024 sc1")
        self.s_barrier()

    def y_signal(self):
        self.wait(vm=0); self.s_barrier()
        lab = self.newlabel("ys")
        self.s_cmp_lg_u32(s(sW), 0); self.s_cbranch_scc1(lab)
        self.s_lshl_b32(s(sT), s(2), 7); self.s_add_u32(s(sT), s(sT), hex(OFF_YFL))
        self.s_add_u32(s(sT + 1), s(sTOK), 32)
        self.v_mov_b32(v(8), s(sT)); self.v_mov_b32(v(9), s(sT + 1))
        self.setexec(1); self.global_store_dword(v(8), v(9), s(sWS, 2), mods="sc1"); self.setexec(-1)
        self.label(lab)
    def y_wait(self):
        self.v_lshlrev_b32(v(8), 7, v(vTID)); self.v_add_u32(v(8), OFF_YFL, v(8))
        self.s_add_u32(s(sT + 1), s(sTOK), 32); self.s_mov_b64(s(sT + 2, 2), -1)
        self.poll(8, 9, sT + 1, sT + 2)
        self.s_barrier()
        lab = self.newlabel("nu")
        self.s_cmp_lg_u32(s(2), 0); self.s_cbranch_scc1(lab)
        self.s_cmp_lg_u32(s(sW), 0); self.s_cbranch_scc1(lab)
        self.v_mov_b32(v(8), OFF_N); self.v_mov_b32(v(9), s(sTOK))
        self.setexec(1); self.global_store_dword(v(8), v(9), s(sWS, 2), mods="sc1"); self.setexec(-1)
        self.label(lab)

    def lanemask(self, d, first_sreg_or_imm, count):
        self.s_mov_b32(s(d), hex((1 << count) - 1 & 0xffffffff)); self.s_mov_b32(s(d + 1), 0)
        self.s_lshl_b64(s(d, 2), s(d, 2), first_sreg_or_imm)

    def build(self):
        self.cold = []; self.cold2 = []
        self.setup()
        self.stamp("start")
        self.p0_issue_x()
        self.p0_issue_w()
        self.mode_setup()
        self.stamp("issued")
        self.wait(vm=32 + (1 if self.stamps else 0) * 0)
        self.stamp("xarr")
        self.p0_ln()
        self.stamp("lncomp")
        if self.o.get("wwait"):
            self.wait(vm=0)
            self.stamp("warr")
        self.mode_wait()
        self.stamp("ln0")
        self.layer_bases()
        self.z_store(56, sZB, 8)
        self.signal(phase_imm=0)
        self.stamp("z0sig")
        self.p0_w_to_lds()
        self.wait(lg=0); self.s_barrier()
        self.stamp("wlds")
        self.wo_load()
        self.stamp("wo")
        self.c0()
        self.signal(phase_imm=6)
        self.s_mov_b32(s(sU + 12), 6); self.s_mov_b32(s(sM1), -1); self.s_mov_b32(s(sM1 + 1), 0)
        self.wait_flags(sU + 12, sM1)
        self.stamp("c0")
        sCH = sU + 13
        self.smul(sCH, sG, 80); self.s_lshl_b32(s(sT), s(sS), 1); self.s_add_u32(s(sCH), s(sCH), s(sT))
        self.conv_pair(sCH)
        lab = self.newlabel("cv2")
        self.s_cmp_ge_u32(s(sS), 8); self.s_cbranch_scc1(lab)
        self.s_add_u32(s(sCH), s(sCH), 64)
        self.conv_pair(sCH)
        self.label(lab)
        self.y_signal()
        self.stamp("conv")
        if self.maybe_stop("conv"): return self.finish()
        self.label("L_LAYER")
        self.layer_bases()
        self.smul(sU + 12, sL, 3)
        self.s_lshl_b32(s(sT + 4), s(sW), 2); self.lanemask(sM0, s(sT + 4), 4)
        self.s_sub_u32(s(sT + 4), 28, s(sT + 4)); self.lanemask(sM1, s(sT + 4), 4)
        self.s_or_b64(s(sM1, 2), s(sM1, 2), s(sM0, 2))
        self.wait_flags(sU + 12, sM1)
        self.stamp("zwait")
        self.qkv()
        self.stamp("qkv")
        self.qkv_epilogue()
        self.halo_signal()
        self.wait(lg=0); self.s_barrier()
        self.stamp("qkvepi")
        if self.maybe_stop("qkv"): return self.finish()
        self.attn_local()
        self.stamp("local")
        lab = self.newlabel("nohalo")
        self.s_cmp_eq_u32(s(sG), 0); self.s_cbranch_scc1(lab)
        self.halo_fetch()
        self.stamp("halof")
        self.attn_halo()
        self.label(lab)
        self.stamp("halo")
        self.o_store()
        self.smul(sU + 12, sL, 3); self.s_add_u32(s(sU + 12), s(sU + 12), 1)
        self.signal(phase_expr_sreg=sU + 12)
        if self.maybe_stop("attn"): return self.finish()
        self.stamp("osig")
        self.s_lshr_b32(s(sT + 4), s(sW), 1); self.s_lshl_b32(s(sT + 4), s(sT + 4), 4); self.lanemask(sM1, s(sT + 4), 16)
        self.wait_flags(sU + 12, sM1)
        self.stamp("owait")
        self.outproj()
        self.smul(sU + 12, sL, 3); self.s_add_u32(s(sU + 12), s(sU + 12), 2)
        self.signal(phase_expr_sreg=sU + 12)
        self.stamp("asig")
        if self.maybe_stop("oproj"): return self.finish()
        lab = self.newlabel("ydone")
        self.s_cmp_lg_u32(s(sL), 0); self.s_cbranch_scc1(lab)
        self.y_wait()
        self.y_load()
        self.label(lab)
        self.smul(sU + 12, sL, 3); self.s_add_u32(s(sU + 12), s(sU + 12), 2)
        self.s_lshr_b32(s(sT + 4), s(sS), 3); self.s_lshl_b32(s(sT + 4), s(sT + 4), 3); self.lanemask(sM1, s(sT + 4), 8)
        self.wait_flags(sU + 12, sM1)
        self.stamp("await")
        self.p4(None)
        self.s_cmp_lg_u32(s(sL), 0); self.s_cbranch_scc1("L_FINAL")
        self.p4_tail_z()
        self.s_mov_b32(s(sL), 1)
        self.layer_bases()
        self.z_store(56, sZB, 8)
        self.signal(phase_imm=3)
        self.stamp("p4")
        if self.maybe_stop("l1"): return self.finish()
        self.s_branch("L_LAYER")
        self.label("L_FINAL")
        self.out_store()
        self.stamp("end")
        return self.finish()

    def finish(self):
        self.label("L_END")
        self.s_endpgm()
        self.emit_cold2()
        self.label("L_HOTEND")
        self.emit_cold()
        self.s_endpgm()

def render_file(k, lds=LDS_BYTES):
    hdr = open("interleave_layers__sliding_block__ssm_conv_h3__prompt.s.ref").read()
    head = hdr[:hdr.index(".amdgcn_target")]
    head = head.replace("; @launch grid=(5120,1,1) block=(256,1,1) lds=0", f"; @launch grid=(256,1,1) block=(256,1,1) lds={lds}")
    out = head + '.amdgcn_target "amdgcn-amd-amdhsa--gfx950"\n.text\n'
    out += f".globl {NAME}\n.p2align 8\n.type {NAME},@function\n{NAME}:\n"
    out += k.render()
    out += f""".section .rodata,"a"
.p2align 6
.amdhsa_kernel {NAME}
  .amdhsa_next_free_vgpr 512
  .amdhsa_next_free_sgpr 102
  .amdhsa_accum_offset 256
  .amdhsa_group_segment_fixed_size 0
  .amdhsa_kernarg_size 96
  .amdhsa_user_sgpr_count 2
  .amdhsa_user_sgpr_kernarg_segment_ptr 1
  .amdhsa_system_sgpr_workgroup_id_x 1
  .amdhsa_float_denorm_mode_32 3
.end_amdhsa_kernel
"""
    return out

if __name__ == "__main__":
    import argparse
    ap = argparse.ArgumentParser()
    ap.add_argument("-o", default="k.s"); ap.add_argument("--stop"); ap.add_argument("--stamps", action="store_true")
    ap.add_argument("--slow", action="store_true"); ap.add_argument("-v", action="store_true"); ap.add_argument("--opt", default="")
    a_ = ap.parse_args()
    k = K(stop=a_.stop, stamps=a_.stamps, opts=dict({"force_slow": a_.slow}, **{x.split("=")[0]: (int(x.split("=")[1]) if "=" in x else 1) for x in a_.opt.split(",") if x}))
    k.build()
    ins = k.fix_all(verbose=a_.v)
    open(a_.o, "w").write(render_file(k))
    n = sum(1 for it in k.items if isinstance(it, Ins))
    print("instructions:", n, "nops inserted:", len(ins), "stamps:", k.stamp_names)
```

```python
import sys, math
from asm import *
import kern2 as K2M
from kern2 import *
from kern2 import (sEXP, sHEXP, sFZ, sFO, sFA, sFN, sZB, sOB, sAB, sHB, sHP, sZN, sHFO, sHFI, sMZ, sMO, sMA, vL8, vPL, vZERO, vSO,
                   OFF_FL2, L_CNT)

class K4(K2):
    CD, CDV, C2D, C2DV, CR, C2R, CE, C2E = 168, 186, 188, 194, 196, 204, 112, 120
    CH0, CH1, CH2 = L_K, L_K + 24832, L_HK
    sB1, sCH1, sHW, sCH2 = sU + 8, sU + 9, sU + 10, sU + 11
    vA1, vB1, vA2, vB2, vR1, vR2 = 74, 75, 76, 77, 70, 71
    C0T, C0TAP = L_W, L_W + 12288
    WOL = (64, 128)
    vWG = 78
    sWQ2 = sU + 12
    @property
    def N_C0(self): return 0 if self.o.get("ptearly") else 1

    def c0_issue(self):
        KP, VP, RG, CC = self.CKP, self.CVP, self.CRG, self.CCC
        self.s_mov_b32(s(sSRD), s(sBK)); self.s_mov_b32(s(sSRD + 1), s(sBK + 1))
        self.s_mov_b32(s(sSRD + 2), 2048 * 1280); self.s_mov_b32(s(sSRD + 3), "0x00020000")
        self.v_min_u32(v(4), 159, v(vTID))
        self.v_mul_u32_u24(v(RG), 6554, v(4)); self.v_lshrrev_b32(v(RG), 16, v(RG))
        self.v_mul_u32_u24(v(CC), 10, v(RG)); self.v_sub_u32(v(CC), v(4), v(CC))
        self.s_lshl_b32(s(sT), s(sS), 6); self.s_sub_u32(s(sT), s(sT), 3)
        self.v_lshl_add_u32(v(4), v(RG), 2, s(sT))
        self.s_mov_b32(s(sT + 1), 1280); self.v_mul_lo_u32(v(4), s(sT + 1), v(4))
        self.smul(sT + 2, sG, 160); self.v_lshl_add_u32(v(5), v(CC), 4, s(sT + 2)); self.v_add_u32(v(4), v(4), v(5))
        for j in range(7):
            self.buffer_load_dwordx4(v(KP + 4 * j, 4), v(4), s(sSRD, 4), 0, mods="offen")
            if j == 2: self.v_add_u32(v(5), 1280, v(4))
            if j < 6: self.v_add_u32(v(4), 1280, v(4))
        self.s_mov_b32(s(sSRD), s(sBV)); self.s_mov_b32(s(sSRD + 1), s(sBV + 1))
        for j in range(4):
            self.buffer_load_dwordx4(v(VP + 4 * j, 4), v(5), s(sSRD, 4), 0, mods="offen")
            if j < 3: self.v_add_u32(v(5), 1280, v(5))
        self.smul(sT + 2, sG, 640); self.v_min_u32(v(4), 39, v(vLANE)); self.v_lshl_add_u32(v(4), v(4), 4, s(sT + 2))
        self.global_load_dwordx4(v(self.CTP, 4), v(4), s(sSH, 2))
    def c0_taps(self):
        self.v_min_u32(v(4), 39, v(vLANE)); self.v_lshlrev_b32(v(4), 4, v(4)); self.v_add_u32(v(4), self.C0TAP, v(4))
        self.ds_write_b128(v(4), v(self.CTP, 4))
        self.v_lshlrev_b32(v(5), 6, v(self.CCC)); self.v_add_u32(v(5), self.C0TAP, v(5))
        self.wait(lg=0); self.s_barrier()
        for j in range(4): self.ds_read_b128(v(self.CSP + 4 * j, 4), v(5), mods=f"offset:{16 * j}")
    def c0_all(self, splice):
        n0 = len(self.items)
        self.c0_compute(splice); self.c0_tail()
        for it in self.items[n0:]:
            if isinstance(it, Ins) and it.op == "v_add_u32":
                if it.ops[1] == str(L_K + 120): it.ops[1] = str(self.C0T + 120)
                elif it.ops[1] == str(L_K): it.ops[1] = str(self.C0T)

    def conv_ids(self):
        self.s_lshr_b32(s(sT), s(sW), 1); self.smul(self.sB1, sT, 24832); self.s_add_u32(s(self.sB1), s(self.sB1), L_K)
        self.smul(sT + 1, sG, 80); self.s_lshl_b32(s(self.sCH1), s(sS), 1); self.s_add_u32(s(self.sCH1), s(self.sCH1), s(sT + 1))
        self.s_add_u32(s(self.sCH1), s(self.sCH1), s(sT)); self.s_and_b32(s(self.sHW), s(sW), 1)
        self.s_lshr_b32(s(self.sCH2), s(sS), 1); self.s_add_u32(s(self.sCH2), s(self.sCH2), s(sT + 1)); self.s_add_u32(s(self.sCH2), s(self.sCH2), 64)
    def conv_h_issue(self):
        D = self.CD
        self.conv_srd()
        self.s_lshl_b32(s(sT + 3), s(self.sCH1), 12)
        self.v_and_b32(v(4), 127, v(vTID)); self.v_lshlrev_b32(v(4), 4, v(4))
        for i in range(2):
            self.buffer_load_dwordx4(v(D + 8 * i, 4), v(4), s(sSRD, 4), s(sT + 3), mods=f"offen offset:{2048 * i}")
            self.buffer_load_dwordx2(v(D + 8 * i + 4, 2), v(4), s(sSRD, 4), s(sT + 3), mods=f"offen offset:{2048 * i + 16}")
        self.s_lshr_b32(s(sT + 4), s(self.sCH1), 1); self.s_lshl_b32(s(sT + 4), s(sT + 4), 2); self.v_mov_b32(v(5), s(sT + 4))
        self.global_load_dword(v(self.CDV), v(5), s(sSD, 2))
        self.s_lshl_b32(s(sT + 3), s(self.sCH2), 12)
        self.v_lshlrev_b32(v(4), 4, v(vTID))
        self.buffer_load_dwordx4(v(self.C2D, 4), v(4), s(sSRD, 4), s(sT + 3), mods="offen")
        self.buffer_load_dwordx2(v(self.C2D + 4, 2), v(4), s(sSRD, 4), s(sT + 3), mods="offen offset:16")
        self.s_lshr_b32(s(sT + 4), s(self.sCH2), 1); self.s_lshl_b32(s(sT + 4), s(sT + 4), 2); self.v_mov_b32(v(5), s(sT + 4))
        self.global_load_dword(v(self.C2DV), v(5), s(sSD, 2))
    def conv_fill_h(self):
        sB1 = self.sB1
        self.v_and_b32(v(8), 127, v(vTID)); self.v_lshlrev_b32(v(9), 4, v(8)); self.v_add_u32(v(11), s(sB1), v(9))
        self.ds_write_b128(v(11), v(vZERO, 4), mods=f"offset:{16640 + 320 * 16}")
        self.v_and_b32(v(16), 63, v(8)); self.v_lshlrev_b32(v(16), 4, v(16)); self.v_add_u32(v(16), s(sB1), v(16))
        self.ds_write_b128(v(16), v(vZERO, 4), mods=f"offset:{16640 + 448 * 16}")
        self.v_add_u32(v(11), 64, v(11))
        self.v_lshrrev_b32(v(self.vR1), 2, v(8)); self.v_add_u32(v(self.vR1), v(self.vR1), v(8)); self.v_lshlrev_b32(v(self.vR1), 4, v(self.vR1))
        self.v_add_u32(v(self.vR1), s(sB1), v(self.vR1))
        for i in range(2): self.conv_copies(11, self.CD + 8 * i, self.CE + 4 * i, 2048 * i)
        self.v_min_u32(v(16), 191, v(vTID)); self.v_lshlrev_b32(v(16), 4, v(16)); self.v_add_u32(v(16), self.CH2, v(16))
        self.ds_write_b128(v(16), v(vZERO, 4), mods=f"offset:{16640 + 320 * 16}")
        self.v_lshlrev_b32(v(11), 4, v(vTID)); self.v_add_u32(v(11), self.CH2 + 64, v(11))
        self.v_lshrrev_b32(v(self.vR2), 2, v(vTID)); self.v_add_u32(v(self.vR2), v(self.vR2), v(vTID)); self.v_lshlrev_b32(v(self.vR2), 4, v(self.vR2))
        self.v_add_u32(v(self.vR2), self.CH2, v(self.vR2))
        self.conv_copies(11, self.C2D, self.C2E, 0)
        lab = self.newlabel("hd")
        self.s_cmp_lg_u32(s(self.sHW), 0); self.s_cbranch_scc1(lab)
        self.conv_head(sB1, self.sCH1, self.CD, self.CDV)
        self.label(lab)
        lab = self.newlabel("hd")
        self.s_cmp_lg_u32(s(sW), 0); self.s_cbranch_scc1(lab)
        self.s_mov_b32(s(sT + 10), self.CH2)
        self.conv_head(sT + 10, self.sCH2, self.C2D, self.C2DV)
        self.label(lab)
    def conv_addr2(self, va, vb, sbase, sstep0):
        self.v_and_b32(v(10), 3, v(vLANE)); self.v_mul_u32_u24(v(10), 4160, v(10))
        self.v_bfe_u32(v(11), v(vLANE), 2, 3); self.v_lshl_add_u32(v(10), v(11), 3, v(10))
        self.v_lshrrev_b32(v(11), 5, v(vLANE)); self.v_lshl_add_u32(v(10), v(11), 4, v(10))
        self.s_lshl_b32(s(sT + 6), s(sstep0), 5); self.s_add_u32(s(sT + 6), s(sT + 6), s(sbase)); self.v_add_u32(v(va), s(sT + 6), v(10))
        self.v_and_b32(v(10), 31, v(vLANE)); self.v_sub_u32(v(10), 31, v(10)); self.v_mul_u32_u24(v(10), 5, v(10))
        self.v_add_u32(v(10), v(10), v(11)); self.v_lshlrev_b32(v(10), 4, v(10))
        self.smul(sT + 6, sstep0, 40); self.s_add_u32(s(sT + 6), s(sT + 6), s(sbase)); self.s_add_u32(s(sT + 6), s(sT + 6), 16640)
        self.v_add_u32(v(vb), s(sT + 6), v(10))
    def conv_addrs(self):
        self.s_lshl_b32(s(sT + 5), s(self.sHW), 5); self.conv_addr2(self.vA1, self.vB1, self.sB1, sT + 5)
        self.s_mov_b32(s(sT + 10), self.CH2); self.s_lshl_b32(s(sT + 5), s(sW), 4); self.conv_addr2(self.vA2, self.vB2, sT + 10, sT + 5)
    def conv_r_issue(self):
        self.s_lshl_b32(s(sT + 3), s(self.sCH1), 12); self.s_add_u32(s(sT + 3), s(sT + 3), hex(OFF_R))
        self.v_and_b32(v(4), 127, v(vTID)); self.v_lshl_add_u32(v(4), v(4), 4, s(sT + 3))
        self.global_load_dwordx4(v(self.CR, 4), v(4), s(sWS, 2), mods="sc1")
        self.global_load_dwordx4(v(self.CR + 4, 4), v(4), s(sWS, 2), mods="offset:2048 sc1")
        self.s_lshl_b32(s(sT + 3), s(self.sCH2), 12); self.s_add_u32(s(sT + 3), s(sT + 3), hex(OFF_R))
        self.v_lshl_add_u32(v(4), v(vTID), 4, s(sT + 3))
        self.global_load_dwordx4(v(self.C2R, 4), v(4), s(sWS, 2), mods="sc1")
    def conv_fill_r(self, younger):
        self.wait(vm=1 + younger)
        self.ds_write_b128(v(self.vR1), v(self.CR, 4), mods="offset:16640"); self.ds_write_b128(v(self.vR1), v(self.CR + 4, 4), mods=f"offset:{16640 + 160 * 16}")
        self.wait(vm=younger)
        self.ds_write_b128(v(self.vR2), v(self.C2R, 4), mods="offset:16640")
        self.wait(lg=0); self.s_barrier()

    NE = 6
    def w_one2(self, i):
        self.s_mov_b32(s(sT + 3), i * 5 * 3840)
        self.setexec(self.WM)
        self.buffer_load_dwordx4(a(4 * (i - 16), 4), v(90), s(sSRD, 4), s(sT + 3), mods="offen")
        self.setexec(-1)
    def w_lds2(self, lo, hi):
        m128 = sum(1 << l for l in range(60) if (l & 3) < 2); m64 = sum(1 << l for l in range(60) if (l & 3) == 2)
        self.setexec(m128)
        for i in range(lo, hi): self.ds_write_b128(v(91), a(4 * (i - 16), 4), mods=f"offset:{320 * i}")
        self.setexec(m64)
        for i in range(lo, hi): self.ds_write_b64(v(91), a(4 * (i - 16), 2), mods=f"offset:{320 * i}")
        self.setexec(-1)

    LO, HI, AC, F = 16, 32, 48, 96
    def conv_mains(self, extra):
        LO, HI, AC, F = self.LO, self.HI, self.AC, self.F
        vA, vB = self.vA1, self.vB1
        def rd(m):
            f = F + 16 * (m & 3); oa = 32 * m; ob = 80 * (m >> 1) + 32 * (m & 1)
            return [lambda: self.ds_read_b64(v(f, 2), v(vA), mods=f"offset:{oa}"), lambda: self.ds_read_b64(v(f + 2, 2), v(vA), mods=f"offset:{oa + 8}"),
                    lambda: self.ds_read_b128(v(f + 8, 4), v(vB), mods=f"offset:{ob + 2560}"), lambda: self.ds_read_b128(v(f + 12, 4), v(vB), mods=f"offset:{ob}"),
                    lambda: self.ds_read_b64(v(f + 4, 2), v(vA), mods=f"offset:{oa + 2048}"), lambda: self.ds_read_b64(v(f + 6, 2), v(vA), mods=f"offset:{oa + 2056}")]
        self.zero16(LO); self.zero16(HI); self.zero16(AC)
        self.s_mov_b32(s(sSRD), s(self.sWQ2)); self.s_mov_b32(s(sSRD + 1), s(self.sWQ2 + 1))
        self.s_mov_b32(s(sSRD + 2), 640 * 1920 * 2); self.s_mov_b32(s(sSRD + 3), "0x00020000")
        pieces = [[] for _ in range(32)]
        n = sum(1 for it in extra if isinstance(it, Ins)); per = max(1, -(-n // 30)); k = 0; cnt = 0; full = True; inbr = set()
        for it in extra:
            if isinstance(it, Ins):
                if cnt >= per and full and not inbr and k < 31: k += 1; cnt = 0
                if it.ops and it.ops[0] in ("exec", "exec_lo", "exec_hi"): full = (it.op == "s_mov_b64" and it.ops[1] == "-1")
                if it.kind == "branch": inbr.add(it.target)
                cnt += 1
            elif it[0] == "label": inbr.discard(it[1])
            pieces[k].append(it)
        for m in (0, 1):
            for f_ in rd(m): f_()
        for m in range(32):
            f = F + 16 * (m & 3)
            nx = rd(m + 2) if m + 2 < 32 else [lambda: None] * 6
            self.wait(lg=6 if m < 31 else 0)
            self.v_mfma_f32_32x32x16_bf16(v(LO, 16), v(f, 4), v(f + 8, 4), v(LO, 16)); nx[0](); nx[1]()
            self.v_mfma_f32_32x32x16_bf16(v(HI, 16), v(f, 4), v(f + 12, 4), v(HI, 16)); nx[2](); nx[3]()
            self.items += pieces[m]
            self.v_mfma_f32_32x32x16_bf16(v(HI, 16), v(f + 4, 4), v(f + 8, 4), v(HI, 16)); nx[4](); nx[5]()
            if m < 16: self.w_one2(16 + m)
            else:
                if m == 16: self.wo_srd()
                self.wo_issue_one(m - 16)
        vA, vB = self.vA2, self.vB2
        lhi, ldone = self.newlabel("c2hi"), self.newlabel("c2d")
        self.s_and_b32(s(sT + 5), s(sS), 1); self.s_cbranch_scc1(lhi)
        for hi in (0, 1):
            if hi: self.label(lhi)
            nrd = 5 if hi else 3
            def rd2(m):
                f = F + 16 * (m & 3); oa = 32 * m; ob = 80 * (m >> 1) + 32 * (m & 1)
                l = [lambda: self.ds_read_b64(v(f, 2), v(vA), mods=f"offset:{oa}"), lambda: self.ds_read_b64(v(f + 2, 2), v(vA), mods=f"offset:{oa + 8}"),
                     lambda: self.ds_read_b128(v(f + 8, 4), v(vB), mods=f"offset:{ob + 2560}")]
                if hi:
                    l += [lambda: self.ds_read_b128(v(f + 12, 4), v(vB), mods=f"offset:{ob}"),
                          lambda: self.ds_read_b64(v(f + 4, 2), v(vA), mods=f"offset:{oa + 2048}"), lambda: self.ds_read_b64(v(f + 6, 2), v(vA), mods=f"offset:{oa + 2056}")]
                return l
            nr = 6 if hi else 3
            for m in (0, 1):
                for f_ in rd2(m): f_()
            for m in range(16):
                f = F + 16 * (m & 3)
                nx = rd2(m + 2) if m + 2 < 16 else [lambda: None] * nr
                self.wait(lg=nr if m < 15 else 0)
                if hi:
                    self.v_mfma_f32_32x32x16_bf16(v(AC, 16), v(f, 4), v(f + 12, 4), v(AC, 16)); nx[0](); nx[1](); nx[2]()
                    self.v_mfma_f32_32x32x16_bf16(v(AC, 16), v(f + 4, 4), v(f + 8, 4), v(AC, 16)); nx[3](); nx[4](); nx[5]()
                else:
                    self.v_mfma_f32_32x32x16_bf16(v(AC, 16), v(f, 4), v(f + 8, 4), v(AC, 16)); nx[0](); nx[1](); nx[2]()
                self.wo_issue_one(16 + m)
            if not hi: self.s_branch(ldone)
        self.label(ldone)

    def conv_tails(self):
        LO, HI, AC, F = self.LO, self.HI, self.AC, self.F
        X1, X2, TO1, TO2 = self.CH0, self.CH1, self.CH2, self.CH2 + 8192
        self.s_lshl_b32(s(sT + 6), s(sW), 12); self.v_add_u32(v(64), s(sT + 6), v(vL16))
        self.s_xor_b32(s(sT + 7), s(sW), 1); self.s_lshl_b32(s(sT + 7), s(sT + 7), 12); self.s_add_u32(s(sT + 7), s(sT + 7), X1); self.v_add_u32(v(67), s(sT + 7), v(vL16))
        self.v_add_u32(v(66), X1, v(64)); self.v_add_u32(v(65), X2, v(64))
        self.s_lshl_b32(s(sT + 6), s(sW), 10); self.s_add_u32(s(sT + 6), s(sT + 6), X2); self.v_add_u32(v(64), s(sT + 6), v(vL16))
        self.v_and_b32(v(70), 31, v(vLANE)); self.v_lshlrev_b32(v(70), 6, v(70))
        self.v_lshrrev_b32(v(71), 5, v(vLANE)); self.v_lshl_add_u32(v(70), v(71), 3, v(70))
        self.s_lshl_b32(s(sT + 6), s(sW), 11); self.s_add_u32(s(sT + 6), s(sT + 6), TO1); self.v_add_u32(v(71), s(sT + 6), v(70)); self.v_add_u32(v(72), s(sT + 6), v(vL16))
        self.s_lshl_b32(s(sT + 6), s(sW), 4); self.s_add_u32(s(sT + 6), s(sT + 6), TO2); self.v_add_u32(v(70), s(sT + 6), v(70))
        self.s_lshl_b32(s(sT + 6), s(self.sHW), 11); self.s_lshl_b32(s(sT + 7), s(self.sCH1), 12); self.s_add_u32(s(sT + 6), s(sT + 6), s(sT + 7))
        self.s_add_u32(s(sT + 6), s(sT + 6), hex(OFF_Y)); self.v_add_u32(v(73), s(sT + 6), v(vL16))
        self.s_barrier()
        l1, l2 = self.newlabel("cx"), self.newlabel("cy")
        self.s_cmp_lg_u32(s(self.sHW), 0); self.s_cbranch_scc1(l1)
        for q in range(4): self.ds_write_b128(v(66), v(HI + 4 * q, 4), mods=f"offset:{1024 * q}")
        self.s_branch(l2)
        self.label(l1)
        for q in range(4): self.ds_write_b128(v(66), v(LO + 4 * q, 4), mods=f"offset:{1024 * q}")
        self.label(l2)
        for q in range(4): self.ds_write_b128(v(65), v(AC + 4 * q, 4), mods=f"offset:{1024 * q}")
        self.wait(lg=0); self.s_barrier()
        for q in range(4): self.ds_read_b128(v(F + 4 * q, 4), v(67), mods=f"offset:{1024 * q}")
        for q in range(4): self.ds_read_b128(v(F + 16 + 4 * q, 4), v(64), mods=f"offset:{4096 * q}")
        l1, l2 = self.newlabel("cx"), self.newlabel("cy")
        self.s_cmp_lg_u32(s(self.sHW), 0); self.s_cbranch_scc1(l1)
        for role, keep in enumerate((LO, HI)):
            if role: self.label(l1)
            for q in range(4):
                self.wait(lg=7 - q)
                for r in (0, 2): self.v_pk_add_f32(v(keep + 4 * q + r, 2), v(keep + 4 * q + r, 2), v(F + 4 * q + r, 2))
                self.pack(F + 32 + 2 * q, keep + 4 * q, 2)
            if role == 0: self.s_branch(l2)
        self.label(l2)
        for q in range(4): self.ds_write_b64(v(71), v(F + 32 + 2 * q, 2), mods=f"offset:{16 * q}")
        self.wait(lg=4)
        G = F + 16
        for r in (0, 2):
            self.v_pk_add_f32(v(G + r, 2), v(G + r, 2), v(G + 4 + r, 2)); self.v_pk_add_f32(v(G + 8 + r, 2), v(G + 8 + r, 2), v(G + 12 + r, 2))
        for r in (0, 2): self.v_pk_add_f32(v(G + r, 2), v(G + r, 2), v(G + 8 + r, 2))
        self.pack(F + 40, G, 2)
        self.ds_write_b64(v(70), v(F + 40, 2))
        self.ds_read_b128(v(LO, 4), v(72)); self.ds_read_b128(v(LO + 4, 4), v(72), mods="offset:1024")
        self.s_and_b32(s(sT + 6), s(sS), 1); self.s_lshl_b32(s(sT + 6), s(sT + 6), 11); self.s_lshl_b32(s(sT + 7), s(self.sCH2), 12)
        self.s_add_u32(s(sT + 6), s(sT + 6), s(sT + 7)); self.s_add_u32(s(sT + 6), s(sT + 6), hex(OFF_Y))
        self.wait(lg=0)
        self.global_store_dwordx4(v(73), v(LO, 4), s(sWS, 2), mods="sc1")
        self.global_store_dwordx4(v(73), v(LO + 4, 4), s(sWS, 2), mods="offset:1024 sc1")
        self.s_barrier()
        self.v_and_b32(v(67), 127, v(vTID)); self.v_lshlrev_b32(v(67), 4, v(67))
        self.v_add_u32(v(66), TO2, v(67)); self.v_add_u32(v(65), s(sT + 6), v(67))
        self.ds_read_b128(v(LO + 8, 4), v(66))
        self.wait(lg=0)
        self.global_store_dwordx4(v(65), v(LO + 8, 4), s(sWS, 2), mods="sc1")

    def first_flags4(self):
        self.s_lshl_b32(s(sT), s(sG), 12); self.s_add_u32(s(sT + 1), s(sT), hex(OFF_XCC)); self.s_add_u32(s(sT), s(sT), hex(OFF_FL2 + 6 * 8 * 4096))
        self.v_mov_b32(v(16), s(sT + 1)); self.v_mov_b32(v(17), s(sT))
        self.s_mov_b32(s(sM1), 0); self.s_mov_b32(s(sM1 + 1), -1)
        self.v_cndmask_b32(v(16), v(16), v(17), s(sM1, 2)); self.v_add_u32(v(16), v(16), v(vPL))
        self.s_add_u32(s(sT + 2), s(sTOK), 64); self.s_add_u32(s(sT + 3), s(sTOK), 7)
        self.v_mov_b32(v(17), s(sT + 2)); self.v_mov_b32(v(18), s(sT + 3)); self.v_cndmask_b32(v(17), v(17), v(18), s(sM1, 2))
        self.v_mov_b32(v(18), 16); self.v_cndmask_b32(v(18), v(18), 1, s(sM1, 2))
        lp, dn = self.newlabel("xpoll"), self.newlabel("xpolld")
        self.label(lp)
        self.global_load_dword(v(4), v(vPL), s(sFZ, 2), mods="sc1")
        self.global_load_dword(v(5), v(16), s(sWS, 2), mods="sc1")
        self.s_cmp_eq_u32(s(sTO), 0); self.s_cbranch_scc1(dn)
        self.s_sub_u32(s(sTO), s(sTO), 1)
        self.wait(vm=0)
        self.v_cmp_ne_u32("vcc", s(sEXP), v(4)); self.s_and_b64(s(sM0, 2), "vcc", s(sMZ, 2))
        self.v_sub_u32(v(5), v(5), v(17))
        self.v_cmp_le_u32("vcc", v(18), v(5))
        self.s_or_b64("vcc", "vcc", s(sM0, 2)); self.s_cbranch_scc1(lp)
        self.label(dn)
        self.v_cmp_ne_u32("vcc", s(sXCC), v(5))
        self.s_and_b32(s(sT), "vcc_lo", -1)
        self.s_cselect_b32(s(sMODE), 1, 0)
        if self.o.get("force_slow"): self.s_mov_b32(s(sMODE), 1)

    def epi_prep_nolds(self):
        n0 = len(self.items)
        self.epi_prep()
        self.items[n0:] = [it for it in self.items[n0:] if not (isinstance(it, Ins) and it.op == "ds_write_b64")]

    def wo_stage_split(self):
        sub = K4(stamps=False, opts=self.o); sub.uid = self.uid + 300000; sub.cold = []; sub.cold2 = []
        sub.y_flag = lambda: None
        K2.wo_stage(sub)
        self.uid = sub.uid
        bars = [k for k, it in enumerate(sub.items) if isinstance(it, Ins) and it.op == "s_barrier"]
        cut = bars[1] + 1
        first = [it for it in sub.items[:cut] if not (isinstance(it, Ins) and it.op == "s_waitcnt" and it.ops[0] == "vmcnt(0)")]
        return first, sub.items[cut:]

    YR = 140
    def y_flags_issue(self):
        self.v_lshlrev_b32(v(4), 7, v(vTID)); self.v_add_u32(v(4), OFF_YFL, v(4))
        self.global_load_dword(v(156), v(4), s(sWS, 2), mods="sc1")
    def y_flags_check(self):
        ok = self.newlabel("yok")
        self.s_add_u32(s(sT + 1), s(sTOK), 32)
        self.v_cmp_ne_u32("vcc", s(sT + 1), v(156)); self.s_cmp_eq_u64("vcc", 0); self.s_cbranch_scc1(ok)
        self.v_lshlrev_b32(v(8), 7, v(vTID)); self.v_add_u32(v(8), OFF_YFL, v(8)); self.s_mov_b64(s(sT + 2, 2), -1)
        self.poll2(sWS, 8, sT + 1, sT + 2)
        self.label(ok)
    def y_issue(self):
        YR = self.YR
        lab = self.newlabel("nu")
        self.s_cmp_lg_u32(s(2), 0); self.s_cbranch_scc1(lab)
        self.s_cmp_lg_u32(s(sW), 0); self.s_cbranch_scc1(lab)
        self.v_mov_b32(v(8), OFF_N); self.v_mov_b32(v(9), s(sTOK))
        self.setexec(1); self.global_store_dword(v(8), v(9), s(sWS, 2), mods="sc1"); self.setexec(-1)
        self.label(lab)
        self.s_lshl_b32(s(sU), s(sG), 8); self.s_lshl_b32(s(sU + 1), s(sS), 3); self.s_add_u32(s(sU), s(sU), s(sU + 1)); self.s_lshl_b32(s(sU), s(sU), 1)
        self.s_add_u32(s(sU), s(sU), hex(OFF_Y))
        self.v_lshlrev_b32(v(8), 12, v(vTID)); self.v_add_u32(v(8), s(sU), v(8))
        self.global_load_dwordx4(v(YR, 4), v(8), s(sWS, 2), mods="sc1")
        self.v_add_u32(v(9), 256 * 4096, v(8)); self.global_load_dwordx4(v(YR + 4, 4), v(9), s(sWS, 2), mods="sc1")
        self.v_and_b32(v(9), 127, v(vTID)); self.v_lshlrev_b32(v(9), 12, v(9)); self.v_add_u32(v(9), s(sU), v(9)); self.v_add_u32(v(9), 512 * 4096, v(9))
        self.global_load_dwordx4(v(YR + 8, 4), v(9), s(sWS, 2), mods="sc1")
    def y_finish(self):
        YR, LY = self.YR, L_SP
        self.v_and_b32(v(10), 7, v(vTID)); self.v_mul_u32_u24(v(10), 320, v(10))
        self.v_lshrrev_b32(v(11), 3, v(vTID)); self.v_lshl_add_u32(v(10), v(11), 2, v(10)); self.v_add_u32(v(10), LY, v(10))
        for i in range(2):
            for w in range(4): self.ds_write_b32(v(10), v(YR + 4 * i + w), mods=f"offset:{2560 * w + 128 * i}")
        lab = self.newlabel("yl")
        self.s_cmp_ge_u32(s(sW), 2); self.s_cbranch_scc1(lab)
        for w in range(4): self.ds_write_b32(v(10), v(YR + 8 + w), mods=f"offset:{2560 * w + 256}")
        self.label(lab)
        self.smul(sU, sW, 2560); self.s_add_u32(s(sU), s(sU), LY)
        self.v_bfe_u32(v(10), v(vLANE), 2, 2); self.v_mul_u32_u24(v(10), 320, v(10))
        self.v_lshrrev_b32(v(11), 4, v(vLANE)); self.v_lshl_add_u32(v(10), v(11), 5, v(10))
        self.v_and_b32(v(11), 3, v(vLANE)); self.v_lshl_add_u32(v(10), v(11), 3, v(10)); self.v_add_u32(v(10), s(sU), v(10))
        self.wait(lg=0); self.s_barrier()
        for m in range(3):
            self.ds_read_b64_tr_b16(v(vY + 4 * m, 2), v(10), mods=f"offset:{128 * m}")
            self.ds_read_b64_tr_b16(v(vY + 4 * m + 2, 2), v(10), mods=f"offset:{128 * m + 4 * 320}")
        self.wait(lg=0)
        self.setexec(0xffffffff00000000)
        for j in range(8, 12): self.v_mov_b32(v(vY + j), 0)
        self.setexec(-1)

    def wo_batch(self, b):
        self.wo_srd()
        for n in range(8 * b, 8 * b + 8): self.wo_issue_one(n)
    def wo_batch_l0(self, b):
        lab = self.newlabel("wb")
        self.s_cmp_lg_u32(s(sL), 0); self.s_cbranch_scc1(lab)
        self.wo_batch(b)
        self.label(lab)
    def attn_first_reads(self, desc, sKblk, sVblk):
        vk, vk1, vv = 8, 9, 10
        if desc:
            self.s_sub_u32(s(sT), s(sKblk), 4608); self.s_sub_u32(s(sT + 1), s(sVblk), 4096)
            oK0, oK1, oV0 = 4608, 3072, 4096
        else:
            self.s_mov_b32(s(sT), s(sKblk)); self.s_mov_b32(s(sT + 1), s(sVblk))
            oK0, oK1, oV0 = 0, 1536, 0
        self.v_add_u32(v(vk), s(sT), v(vL16)); self.v_add_u32(v(vk1), s(sT), v(vL8)); self.v_add_u32(v(vv), s(sT + 1), v(vL16))
        self.ds_read_b128(v(self.KP0, 4), v(vk), mods=f"offset:{oK0}"); self.ds_read_b64(v(self.KP1, 2), v(vk1), mods=f"offset:{oK0 + 1024}")
        self.ds_read_b128(v(self.KF0, 4), v(vk), mods=f"offset:{oK1}"); self.ds_read_b64(v(self.KF1, 2), v(vk1), mods=f"offset:{oK1 + 1024}")
        self.ds_read_b128(v(self.VF0, 4), v(vv), mods=f"offset:{oV0}")
    def attn_seq2(self, Q, O, desc, sCNT, pending):
        SA, SB, PP, KF0, KF1, VF0, VF1, MSK, KP0, KP1 = self.SA, self.SB, self.PP, self.KF0, self.KF1, self.VF0, self.VF1, self.MSK, self.KP0, self.KP1
        vk, vk1, vv = 8, 9, 10
        if pending is not None:
            self.wait(lg=5)
            self.v_mfma_f32_32x32x16_bf16(v(pending, 16), v(VF1, 4), v(PP + 4, 4), v(pending, 16))
        self.wait(lg=3)
        self.v_mfma_f32_32x32x16_bf16(v(SA, 16), v(KP0, 4), v(Q, 4), v(MSK, 16))
        self.v_mfma_f32_32x32x8_bf16(v(SA, 16), v(KP1, 2), v(Q + 4, 2), v(SA, 16))
        self.wait(lg=1)
        self.s_nop(8)
        lp, ex, first = self.newlabel("att"), self.newlabel("attx"), self.newlabel("attf")
        self.s_branch(first)
        def body(S, Sn, entry, par):
            if desc:
                oK = 1536 if par == 0 else 0
                oV1 = (4096 if par == 0 else 2048) + 1024
                oV0 = 2048 if par == 0 else 0
            else:
                oK = 3072 if par == 0 else 4608
                oV1 = (0 if par == 0 else 2048) + 1024
                oV0 = 2048 if par == 0 else 4096
            self.wait(lg=1)
            self.v_mfma_f32_32x32x16_bf16(v(O, 16), v(VF1, 4), v(PP + 4, 4), v(O, 16))
            if entry: self.label(entry)
            self.ds_read_b128(v(VF1, 4), v(vv), mods=f"offset:{oV1}")
            for e in range(4): self.v_exp_f32(v(S + e), v(S + e))
            self.v_cvt_pk_bf16_f32(v(PP), v(S), v(S + 1)); self.v_cvt_pk_bf16_f32(v(PP + 1), v(S + 2), v(S + 3))
            self.v_mfma_f32_32x32x16_bf16(v(Sn, 16), v(KF0, 4), v(Q, 4), 0)
            self.ds_read_b128(v(KF0, 4), v(vk), mods=f"offset:{oK}")
            for e in range(4, 8): self.v_exp_f32(v(S + e), v(S + e))
            self.v_cvt_pk_bf16_f32(v(PP + 2), v(S + 4), v(S + 5)); self.v_cvt_pk_bf16_f32(v(PP + 3), v(S + 6), v(S + 7))
            self.v_mfma_f32_32x32x8_bf16(v(Sn, 16), v(KF1, 2), v(Q + 4, 2), v(Sn, 16))
            self.ds_read_b64(v(KF1, 2), v(vk1), mods=f"offset:{oK + 1024}")
            for e in range(8, 12): self.v_exp_f32(v(S + e), v(S + e))
            self.wait(lg=3)
            self.v_mfma_f32_32x32x16_bf16(v(O, 16), v(VF0, 4), v(PP, 4), v(O, 16))
            self.ds_read_b128(v(VF0, 4), v(vv), mods=f"offset:{oV0}")
            self.v_cvt_pk_bf16_f32(v(PP + 4), v(S + 8), v(S + 9)); self.v_cvt_pk_bf16_f32(v(PP + 5), v(S + 10), v(S + 11))
            for e in range(12, 16): self.v_exp_f32(v(S + e), v(S + e))
            if par == 1:
                d = (-3072, -4096) if desc else (3072, 4096)
                self.v_add_u32(v(vk), d[0] & 0xffffffff, v(vk)); self.v_add_u32(v(vk1), d[0] & 0xffffffff, v(vk1))
            self.v_cvt_pk_bf16_f32(v(PP + 6), v(S + 12), v(S + 13)); self.v_cvt_pk_bf16_f32(v(PP + 7), v(S + 14), v(S + 15))
            if par == 1: self.v_add_u32(v(vv), d[1] & 0xffffffff, v(vv))
            self.s_add_u32(s(sCNT), s(sCNT), 1)
        self.label(lp)
        body(SA, SB, first, 0)
        self.s_cbranch_scc1(ex)
        body(SB, SA, None, 1)
        self.s_cbranch_scc0(lp)
        self.label(ex)
    def attn_finish(self, O):
        self.wait(lg=0)
        self.v_mfma_f32_32x32x16_bf16(v(O, 16), v(self.VF1, 4), v(self.PP + 4, 4), v(O, 16))

    def attn_local(self):
        sKb, sVb, sN = sU + 6, sU + 7, sU + 8
        self.smul(sKb, sW, 1536); self.s_add_u32(s(sKb), s(sKb), L_K); self.s_lshl_b32(s(sVb), s(sW), 11); self.s_add_u32(s(sVb), s(sVb), L_V)
        self.attn_first_reads(True, sKb, sVb)
        self.s_sub_u32(s(sN), -1, s(sW))
        self.attn_seq2(self.QA, self.OA, True, sN, None)
        self.s_sub_u32(s(sT + 2), 7, s(sW))
        self.smul(sKb, sT + 2, 1536); self.s_add_u32(s(sKb), s(sKb), L_K); self.s_lshl_b32(s(sVb), s(sT + 2), 11); self.s_add_u32(s(sVb), s(sVb), L_V)
        self.attn_first_reads(True, sKb, sVb)
        self.s_sub_u32(s(sN), s(sW), 8)
        self.wait(lg=5)
        self.v_mfma_f32_32x32x16_bf16(v(self.OA, 16), v(self.VF1, 4), v(self.PP + 4, 4), v(self.OA, 16))
        self.halo_publish()
        self.attn_seq2(self.QB, self.OB, True, sN, None)
        self.attn_finish(self.OB)
    def attn_halo(self):
        sKb, sVb, sN = sU + 6, sU + 7, sU + 8
        self.smul(sKb, sW, 1536); self.s_add_u32(s(sKb), s(sKb), L_HK); self.s_lshl_b32(s(sVb), s(sW), 11); self.s_add_u32(s(sVb), s(sVb), L_HV)
        self.attn_first_reads(False, sKb, sVb)
        self.s_sub_u32(s(sN), s(sW), 8)
        self.attn_seq2(self.QA, self.OA, False, sN, None)
        self.s_sub_u32(s(sT + 2), 7, s(sW))
        self.smul(sKb, sT + 2, 1536); self.s_add_u32(s(sKb), s(sKb), L_HK); self.s_lshl_b32(s(sVb), s(sT + 2), 11); self.s_add_u32(s(sVb), s(sVb), L_HV)
        self.attn_first_reads(False, sKb, sVb)
        self.s_sub_u32(s(sN), -1, s(sW))
        self.attn_seq2(self.QB, self.OB, False, sN, self.OA)
        self.attn_finish(self.OB)

    def qkv_run(self):
        ACC, ZR, WF = self.ACC, self.ZR, self.WF
        vzA, vzB, vw0, vw1 = 8, 9, 10, 11
        def wr(st, kk, T):
            r = WF + 8 * st + 4 * T; vw = (vw0, vw1)[T]
            self.ds_read_b64_tr_b16(v(r, 2), v(vw), mods=f"offset:{kk * 1024}")
            self.ds_read_b64_tr_b16(v(r + 2, 2), v(vw), mods=f"offset:{kk * 1024 + 256}")
        def body(last):
            for j in range(8):
                st = j & 1
                more = not (last and j == 7)
                mf = lambda blk, T: self.v_mfma_f32_32x32x16_bf16(v(ACC + 32 * blk + 16 * T, 16), v(WF + 8 * st + 4 * T, 4), v(ZR + 8 * j + 4 * blk, 4), v(ACC + 32 * blk + 16 * T, 16))
                self.wait(vm=((15 - 2 * j) if last else 15), lg=0)
                mf(0, 0)
                if more: wr(st ^ 1, j + 1, 0)
                mf(0, 1)
                if more: wr(st ^ 1, j + 1, 1)
                if not last: self.global_load_dwordx4(v(ZR + 8 * j, 4), v(vzA), s(sZB, 2), mods=f"offset:{(j % 4) * 1024} sc1")
                self.wait(vm=((14 - 2 * j) if last else 15))
                mf(1, 0)
                if not last and j % 4 == 3: self.v_add_u32(v(vzA), 4096, v(vzA))
                mf(1, 1)
                if not last:
                    self.global_load_dwordx4(v(ZR + 8 * j + 4, 4), v(vzB), s(sZB, 2), mods=f"offset:{(j % 4) * 1024} sc1")
                    if j % 4 == 3: self.v_add_u32(v(vzB), 4096, v(vzB))
            if not last:
                self.v_add_u32(v(vw0), 8192, v(vw0)); self.v_add_u32(v(vw1), 8192, v(vw1))
        lp = self.newlabel("qkv")
        self.s_mov_b32(s(sU), -4)
        self.label(lp)
        body(False)
        self.s_add_u32(s(sU), s(sU), 1); self.s_cbranch_scc0(lp)
        body(True)

    def weights_to_mall(self):
        self.smul(sT, 2, 9600); self.v_lshlrev_b32(v(4), 4, v(vTID)); self.v_add_u32(v(4), s(sT), v(4))
        self.global_load_dwordx4(v(208, 4), v(4), s(sWQ, 2))
        self.global_load_dwordx4(v(212, 4), v(4), s(sWQ, 2), mods="offset:4080")
        self.v_min_u32(v(5), 89, v(vTID)); self.v_lshlrev_b32(v(5), 4, v(5)); self.s_add_u32(s(sT), s(sT), 8160); self.v_add_u32(v(5), s(sT), v(5))
        self.global_load_dwordx4(v(216, 4), v(5), s(sWQ, 2))
        self.smul(sT, 2, 3200); self.v_min_u32(v(5), 199, v(vTID)); self.v_lshlrev_b32(v(5), 4, v(5)); self.v_add_u32(v(5), s(sT), v(5))
        self.global_load_dwordx4(v(220, 4), v(5), s(sWO, 2))

    def startup(self):
        d2 = self.o.get("d2")
        NE = self.NE
        self.setup2()
        self.issue_x()
        self.v_mov_b32(v(87), OFF_N)
        self.global_load_dword(v(87), v(87), s(sWS, 2), mods="sc1")
        pfpos = self.o.get("pfpos", 2)
        if pfpos == 0: self.weights_to_mall()
        self.c0_issue()
        if pfpos == 1: self.weights_to_mall()
        self.stamp("issued"); self.dstamp(1) if d2 else None
        self.conv_ids()
        for r in range(4): self.v_mov_b32(v(vZERO + r), 0)
        self.v_and_b32(v(vPL), 31, v(vLANE)); self.v_lshlrev_b32(v(vPL), 7, v(vPL))
        self.s_lshl_b32(s(sT), s(sS), 7); self.v_mov_b32(v(vSO), s(sT))
        self.v_mov_b32(v(4), L_CNT); self.ds_write_b32(v(4), v(vZERO))
        self.w_addr()
        self.z_addr(8)
        self.wait(vm=16 if pfpos < 2 else 12)
        self.p0_ln()
        self.v_readfirstlane_b32(s(sTOK), v(87))
        self.s_add_u32(s(sTOK), s(sTOK), hex(NONCE_C))
        self.layer_bases2()
        self.stores_sc1(self.z_store_list(56, sZB, 8))
        lab = self.newlabel("xp")
        self.s_cmp_lg_u32(s(sW), 0); self.s_cbranch_scc1(lab)
        self.s_lshl_b32(s(sT), s(sG), 5); self.s_add_u32(s(sT), s(sT), s(sS)); self.s_lshl_b32(s(sT), s(sT), 7); self.s_add_u32(s(sT), s(sT), hex(OFF_XCC))
        self.s_add_u32(s(sT + 1), s(sTOK), s(sXCC)); self.s_add_u32(s(sT + 1), s(sT + 1), 64)
        self.v_mov_b32(v(4), s(sT)); self.v_mov_b32(v(5), s(sT + 1))
        self.setexec(1); self.global_store_dword(v(4), v(5), s(sWS, 2), mods="sc1"); self.setexec(-1)
        self.label(lab)
        self.conv_h_issue()
        if pfpos == 2: self.weights_to_mall()
        self.stamp("z0st"); self.dstamp(2) if d2 else None
        self.wait(vm=8 + 3 + (4 if pfpos == 2 else 0))
        self.c0_taps()
        self.c0_all([])
        self.s_mov_b64(s(self.sWQ2, 2), s(sWQ, 2))
        self.stamp("c0"); self.dstamp(3) if d2 else None
        self.w_issue(0, NE)
        self.wait(vm=NE); self.s_barrier()
        lab = self.newlabel("f0")
        self.s_cmp_lg_u32(s(sW), 0); self.s_cbranch_scc1(lab)
        self.v_mov_b32(v(4), s(sEXP)); self.s_add_u32(s(sT + 2), s(sTOK), 7); self.v_mov_b32(v(5), s(sT + 2))
        self.rflag_base(sT)
        self.setexec(1)
        self.global_store_dword(v(vSO), v(4), s(sFZ, 2), mods="sc1"); self.global_store_dword(v(vSO), v(5), s(sT, 2), mods="sc1")
        self.setexec(-1)
        self.label(lab)
        self.stamp("flags"); self.dstamp(4 if d2 else 1)
        NM = self.o.get("nm", 12)
        sub = K4(stamps=False, opts=self.o); sub.uid = self.uid + 200000; sub.cold = []; sub.cold2 = []
        sub.conv_fill_h()
        sub.w_zero()
        sub.s_lshl_b32(s(sT + 4), s(sW), 2); sub.lanemask(sM0, s(sT + 4), 4)
        sub.s_sub_u32(s(sT + 4), 28, s(sT + 4)); sub.lanemask(sMZ, s(sT + 4), 4); sub.s_or_b64(s(sMZ, 2), s(sMZ, 2), s(sM0, 2))
        sub.s_lshr_b32(s(sT + 4), s(sS), 3); sub.s_lshl_b32(s(sT + 4), s(sT + 4), 3); sub.lanemask(sMA, s(sT + 4), 8)
        sub.conv_addrs(); sub.wo_addr()
        self.uid = sub.uid
        self.splice_w(sub.items, range(NE, NM))
        self.s_mov_b32(s(sMO), -1); self.s_mov_b32(s(sMO + 1), 0)
        self.stamp("hfill"); self.dstamp(5) if d2 else None
        self.first_flags4()
        self.stamp("ff"); self.dstamp(6) if d2 else None
        self.conv_r_issue()
        if NM < 16:
            self.s_mov_b32(s(sSRD), s(self.sWQ2)); self.s_mov_b32(s(sSRD + 1), s(self.sWQ2 + 1))
            self.s_mov_b32(s(sSRD + 2), 640 * 1920 * 2); self.s_mov_b32(s(sSRD + 3), "0x00020000")
            for i_ in range(NM, 16): self.w_one(i_)
        self.code_prefetch(86)
        extra = 0
        if self.o.get("ptearly"):
            self.pretouch_addr(4); self.global_load_dword(v(85), v(4), s(sWS, 2), mods="nt" if self.o.get("ptnt") else ""); extra = 1
        self.w_lds(0, NM)
        self.conv_fill_r(1 + extra + 16 - NM)
        if NM < 16:
            self.wait(vm=1 + extra); self.w_lds(NM, 16); self.wait(lg=0)
        self.stamp("rfill"); self.dstamp(7) if d2 else None
        sub = K4(stamps=False, opts=self.o); sub.uid = self.uid + 100000; sub.cold = []; sub.cold2 = []
        sub.epi_prep_nolds(); sub.qkv_addr(); sub.mask_gen(False)
        self.uid = sub.uid
        self.conv_mains(sub.items)
        self.stamp("mains"); self.dstamp(8) if self.o.get("d2") else None
        self.wait(vm=32)
        self.w_lds2(16, 32)
        self.conv_tails()
        self.stamp("tails"); self.dstamp(9) if self.o.get("d2") else None
        self.qkv_zissue()
        self.v_xor_b32(v(4), 48, v(self.vSA)); self.ds_write_b64(v(4), v(88, 2))
        self.wait(vm=16, lg=0); self.s_barrier()
        self.y_flag()
        self.stamp("wlds"); self.dstamp(10 if self.o.get("d2") else 2); self._d2ok = False
        self.qkv_init()
        self.s_branch("L_QKV")

    def build(self):
        self.fallbacks = []
        self.startup()
        self.label("L_LAYER")
        self.layer_bases2()
        self.epi_prep(); self.mask_gen(False)
        self.qkv_addr(); self.qkv_init()
        self.poll2(sFZ, vPL, sEXP, sMZ)
        self.stamp("zwait")
        self.qkv_zissue()
        self.label("L_QKV")
        self.qkv_run()
        self.stamp("qkv"); self.dstamp(3, True)
        self.epi_run()
        self.stamp("epi")
        lab = self.newlabel("aux0")
        self.s_cmp_lg_u32(s(sL), 0); self.s_cbranch_scc1(lab)
        if self.o.get("ptearly"): self.s_branch(lab)
        self.pretouch_addr(4)
        self.global_load_dword(v(230), v(4), s(sWS, 2), mods="nt" if self.o.get("ptnt") else "")
        self.label(lab)
        self.attn_local()
        self.stamp("local"); self.dstamp(4, True)
        self.o_prep()
        l1path, joined = self.newlabel("l1p"), self.newlabel("joined")
        self.s_cmp_lg_u32(s(sL), 0); self.s_cbranch_scc1(l1path)
        wo1, wo2 = self.wo_stage_split()
        self.s_barrier()
        self.items += wo1
        nh = self.newlabel("nh")
        self.s_cmp_eq_u32(s(sG), 0); self.s_cbranch_scc1(nh)
        self.halo_prep()
        self.halo_issue()
        self.label(nh)
        self.y_flags_issue()
        self.items += wo2
        self.stamp("wo"); self.dstamp(5)
        self.wait(vm=0)
        self.y_flags_check()
        nh = self.newlabel("nh")
        self.s_cmp_eq_u32(s(sG), 0); self.s_cbranch_scc1(nh)
        self.halo_land(0)
        self.label(nh)
        self.wait(lg=0); self.s_barrier()
        self.y_issue()
        self.s_branch(joined)
        self.label(l1path)
        self.s_cmp_eq_u32(s(sG), 0); self.s_cbranch_scc1(joined)
        self.halo_prep()
        self.halo_issue()
        self.halo_land(0)
        self.wait(lg=0); self.s_barrier()
        self.label(joined)
        self.stamp("halof")
        nohalo = self.newlabel("nohalo")
        self.s_cmp_eq_u32(s(sG), 0); self.s_cbranch_scc1(nohalo)
        self.attn_halo()
        self.label(nohalo)
        self.stamp("halo"); self.dstamp(6, True)
        self.range_check()
        self.o_store()
        self.s_add_u32(s(sT), s(sEXP), 1); self.v_mov_b32(v(5), s(sT))
        self.signal2(sFO, 5)
        self.stamp("osig")
        lab = self.newlabel("aux2")
        self.s_cmp_lg_u32(s(sL), 0); self.s_cbranch_scc1(lab)
        self.y_finish()
        self.stamp("yld")
        self.label(lab)
        self.op_prep()
        self.s_add_u32(s(sT + 8), s(sEXP), 1)
        self.poll2(sFO, vPL, sT + 8, sMO)
        self.stamp("owait")
        self.op_run()
        self.s_add_u32(s(sT), s(sEXP), 2); self.v_mov_b32(v(5), s(sT))
        self.signal2(sFA, 5)
        self.stamp("asig"); self.dstamp(7, True)
        self.p4_prep()
        self.s_add_u32(s(sT + 8), s(sEXP), 2)
        self.poll2(sFA, vPL, sT + 8, sMA)
        self.stamp("await")
        self.p4_run()
        self.s_cmp_lg_u32(s(sL), 0); self.s_cbranch_scc1("L_FINAL")
        self.z_addr(8)
        self.p4_z()
        self.stores(self.z_store_list(56, sZN, 8))
        self.pack(vX, self.XF, 12)
        self.s_add_u32(s(sT), s(sEXP), 3); self.v_mov_b32(v(5), s(sT))
        self.signal2(sFN, 5)
        self.stamp("p4")
        self.s_mov_b32(s(sL), 1)
        self.s_branch("L_LAYER")
        self.label("L_FINAL")
        self.pack(vX, self.XF, 12)
        self.out_store()
        if self.o.get("span"):
            self.wait(vm=0); self.stamps = True
        self.stamp("end")
        self.dflush()
        return self.finish()

if __name__ == "__main__":
    import argparse
    ap = argparse.ArgumentParser()
    ap.add_argument("-o", default="k4.s"); ap.add_argument("--stamps", action="store_true")
    ap.add_argument("--slow", action="store_true"); ap.add_argument("-v", action="store_true"); ap.add_argument("--opt", default="")
    a_ = ap.parse_args()
    k = K4(stamps=a_.stamps, opts=dict({"force_slow": a_.slow}, **{x.split("=")[0]: (int(x.split("=")[1]) if "=" in x else 1) for x in a_.opt.split(",") if x}))
    k.build()
    ins = k.fix_all(verbose=a_.v)
    open(a_.o, "w").write(render_file(k))
    n = sum(1 for it in k.items if isinstance(it, Ins))
    print("instructions:", n, "nops inserted:", len(ins), "stamps:", ",".join(k.stamp_names))
```

```python
import sys, math
from asm import *
import kern2 as K2M
from kern2 import *
from kern2 import (sEXP, sHEXP, sFZ, sFO, sFA, sFN, sZB, sOB, sAB, sHB, sHP, sZN, sHFO, sHFI, sMZ, sMO, sMA, vL8, vPL, vZERO, vSO,
                   OFF_FL2, L_CNT)

class K4(K2):
    CD, CDV, C2D, C2DV, CR, C2R, CE, C2E = 168, 186, 188, 194, 196, 204, 112, 120
    CH0, CH1, CH2 = L_K, L_K + 24832, L_HK
    sB1, sCH1, sHW, sCH2 = sU + 8, sU + 9, sU + 10, sU + 11
    vA1, vB1, vA2, vB2, vR1, vR2 = 74, 75, 76, 77, 70, 71
    C0T, C0TAP = L_W, L_W + 12288
    WOL = (64, 128)
    vWG = 78
    sWQ2 = sU + 12
    @property
    def N_C0(self): return 0 if self.o.get("ptearly") else 1

    def c0_issue(self):
        KP, VP, RG, CC = self.CKP, self.CVP, self.CRG, self.CCC
        self.s_mov_b32(s(sSRD), s(sBK)); self.s_mov_b32(s(sSRD + 1), s(sBK + 1))
        self.s_mov_b32(s(sSRD + 2), 2048 * 1280); self.s_mov_b32(s(sSRD + 3), "0x00020000")
        self.v_min_u32(v(4), 159, v(vTID))
        self.v_mul_u32_u24(v(RG), 6554, v(4)); self.v_lshrrev_b32(v(RG), 16, v(RG))
        self.v_mul_u32_u24(v(CC), 10, v(RG)); self.v_sub_u32(v(CC), v(4), v(CC))
        self.s_lshl_b32(s(sT), s(sS), 6); self.s_sub_u32(s(sT), s(sT), 3)
        self.v_lshl_add_u32(v(4), v(RG), 2, s(sT))
        self.s_mov_b32(s(sT + 1), 1280); self.v_mul_lo_u32(v(4), s(sT + 1), v(4))
        self.smul(sT + 2, sG, 160); self.v_lshl_add_u32(v(5), v(CC), 4, s(sT + 2)); self.v_add_u32(v(4), v(4), v(5))
        for j in range(7):
            self.buffer_load_dwordx4(v(KP + 4 * j, 4), v(4), s(sSRD, 4), 0, mods="offen")
            if j == 2: self.v_add_u32(v(5), 1280, v(4))
            if j < 6: self.v_add_u32(v(4), 1280, v(4))
        self.s_mov_b32(s(sSRD), s(sBV)); self.s_mov_b32(s(sSRD + 1), s(sBV + 1))
        for j in range(4):
            self.buffer_load_dwordx4(v(VP + 4 * j, 4), v(5), s(sSRD, 4), 0, mods="offen")
            if j < 3: self.v_add_u32(v(5), 1280, v(5))
        self.smul(sT + 2, sG, 640); self.v_min_u32(v(4), 39, v(vLANE)); self.v_lshl_add_u32(v(4), v(4), 4, s(sT + 2))
        self.global_load_dwordx4(v(self.CTP, 4), v(4), s(sSH, 2))
    def c0_taps(self):
        self.v_min_u32(v(4), 39, v(vLANE)); self.v_lshlrev_b32(v(4), 4, v(4)); self.v_add_u32(v(4), self.C0TAP, v(4))
        self.ds_write_b128(v(4), v(self.CTP, 4))
        self.v_lshlrev_b32(v(5), 6, v(self.CCC)); self.v_add_u32(v(5), self.C0TAP, v(5))
        self.wait(lg=0); self.s_barrier()
        for j in range(4): self.ds_read_b128(v(self.CSP + 4 * j, 4), v(5), mods=f"offset:{16 * j}")
    def c0_all(self, splice):
        n0 = len(self.items)
        self.c0_compute(splice); self.c0_tail()
        for it in self.items[n0:]:
            if isinstance(it, Ins) and it.op == "v_add_u32":
                if it.ops[1] == str(L_K + 120): it.ops[1] = str(self.C0T + 120)
                elif it.ops[1] == str(L_K): it.ops[1] = str(self.C0T)

    def conv_ids(self):
        self.s_lshr_b32(s(sT), s(sW), 1); self.smul(self.sB1, sT, 24832); self.s_add_u32(s(self.sB1), s(self.sB1), L_K)
        self.smul(sT + 1, sG, 80); self.s_lshl_b32(s(self.sCH1), s(sS), 1); self.s_add_u32(s(self.sCH1), s(self.sCH1), s(sT + 1))
        self.s_add_u32(s(self.sCH1), s(self.sCH1), s(sT)); self.s_and_b32(s(self.sHW), s(sW), 1)
        self.s_lshr_b32(s(self.sCH2), s(sS), 1); self.s_add_u32(s(self.sCH2), s(self.sCH2), s(sT + 1)); self.s_add_u32(s(self.sCH2), s(self.sCH2), 64)
    def conv_h_issue(self):
        D = self.CD
        self.conv_srd()
        self.s_lshl_b32(s(sT + 3), s(self.sCH1), 12)
        self.v_and_b32(v(4), 127, v(vTID)); self.v_lshlrev_b32(v(4), 4, v(4))
        for i in range(2):
            self.buffer_load_dwordx4(v(D + 8 * i, 4), v(4), s(sSRD, 4), s(sT + 3), mods=f"offen offset:{2048 * i}")
            self.buffer_load_dwordx2(v(D + 8 * i + 4, 2), v(4), s(sSRD, 4), s(sT + 3), mods=f"offen offset:{2048 * i + 16}")
        self.s_lshr_b32(s(sT + 4), s(self.sCH1), 1); self.s_lshl_b32(s(sT + 4), s(sT + 4), 2); self.v_mov_b32(v(5), s(sT + 4))
        self.global_load_dword(v(self.CDV), v(5), s(sSD, 2))
        self.s_lshl_b32(s(sT + 3), s(self.sCH2), 12)
        self.v_lshlrev_b32(v(4), 4, v(vTID))
        self.buffer_load_dwordx4(v(self.C2D, 4), v(4), s(sSRD, 4), s(sT + 3), mods="offen")
        self.buffer_load_dwordx2(v(self.C2D + 4, 2), v(4), s(sSRD, 4), s(sT + 3), mods="offen offset:16")
        self.s_lshr_b32(s(sT + 4), s(self.sCH2), 1); self.s_lshl_b32(s(sT + 4), s(sT + 4), 2); self.v_mov_b32(v(5), s(sT + 4))
        self.global_load_dword(v(self.C2DV), v(5), s(sSD, 2))
    def conv_fill_h(self):
        sB1 = self.sB1
        self.v_and_b32(v(8), 127, v(vTID)); self.v_lshlrev_b32(v(9), 4, v(8)); self.v_add_u32(v(11), s(sB1), v(9))
        self.ds_write_b128(v(11), v(vZERO, 4), mods=f"offset:{16640 + 320 * 16}")
        self.v_and_b32(v(16), 63, v(8)); self.v_lshlrev_b32(v(16), 4, v(16)); self.v_add_u32(v(16), s(sB1), v(16))
        self.ds_write_b128(v(16), v(vZERO, 4), mods=f"offset:{16640 + 448 * 16}")
        self.v_add_u32(v(11), 64, v(11))
        self.v_lshrrev_b32(v(self.vR1), 2, v(8)); self.v_add_u32(v(self.vR1), v(self.vR1), v(8)); self.v_lshlrev_b32(v(self.vR1), 4, v(self.vR1))
        self.v_add_u32(v(self.vR1), s(sB1), v(self.vR1))
        for i in range(2): self.conv_copies(11, self.CD + 8 * i, self.CE + 4 * i, 2048 * i)
        self.v_min_u32(v(16), 191, v(vTID)); self.v_lshlrev_b32(v(16), 4, v(16)); self.v_add_u32(v(16), self.CH2, v(16))
        self.ds_write_b128(v(16), v(vZERO, 4), mods=f"offset:{16640 + 320 * 16}")
        self.v_lshlrev_b32(v(11), 4, v(vTID)); self.v_add_u32(v(11), self.CH2 + 64, v(11))
        self.v_lshrrev_b32(v(self.vR2), 2, v(vTID)); self.v_add_u32(v(self.vR2), v(self.vR2), v(vTID)); self.v_lshlrev_b32(v(self.vR2), 4, v(self.vR2))
        self.v_add_u32(v(self.vR2), self.CH2, v(self.vR2))
        self.conv_copies(11, self.C2D, self.C2E, 0)
        lab = self.newlabel("hd")
        self.s_cmp_lg_u32(s(self.sHW), 0); self.s_cbranch_scc1(lab)
        self.conv_head(sB1, self.sCH1, self.CD, self.CDV)
        self.label(lab)
        lab = self.newlabel("hd")
        self.s_cmp_lg_u32(s(sW), 0); self.s_cbranch_scc1(lab)
        self.s_mov_b32(s(sT + 10), self.CH2)
        self.conv_head(sT + 10, self.sCH2, self.C2D, self.C2DV)
        self.label(lab)
    def conv_addr2(self, va, vb, sbase, sstep0):
        self.v_and_b32(v(10), 3, v(vLANE)); self.v_mul_u32_u24(v(10), 4160, v(10))
        self.v_bfe_u32(v(11), v(vLANE), 2, 3); self.v_lshl_add_u32(v(10), v(11), 3, v(10))
        self.v_lshrrev_b32(v(11), 5, v(vLANE)); self.v_lshl_add_u32(v(10), v(11), 4, v(10))
        self.s_lshl_b32(s(sT + 6), s(sstep0), 5); self.s_add_u32(s(sT + 6), s(sT + 6), s(sbase)); self.v_add_u32(v(va), s(sT + 6), v(10))
        self.v_and_b32(v(10), 31, v(vLANE)); self.v_sub_u32(v(10), 31, v(10)); self.v_mul_u32_u24(v(10), 5, v(10))
        self.v_add_u32(v(10), v(10), v(11)); self.v_lshlrev_b32(v(10), 4, v(10))
        self.smul(sT + 6, sstep0, 40); self.s_add_u32(s(sT + 6), s(sT + 6), s(sbase)); self.s_add_u32(s(sT + 6), s(sT + 6), 16640)
        self.v_add_u32(v(vb), s(sT + 6), v(10))
    def conv_addrs(self):
        self.s_lshl_b32(s(sT + 5), s(self.sHW), 5); self.conv_addr2(self.vA1, self.vB1, self.sB1, sT + 5)
        self.s_mov_b32(s(sT + 10), self.CH2); self.s_lshl_b32(s(sT + 5), s(sW), 4); self.conv_addr2(self.vA2, self.vB2, sT + 10, sT + 5)
    def conv_r_issue(self):
        self.s_lshl_b32(s(sT + 3), s(self.sCH1), 12); self.s_add_u32(s(sT + 3), s(sT + 3), hex(OFF_R))
        self.v_and_b32(v(4), 127, v(vTID)); self.v_lshl_add_u32(v(4), v(4), 4, s(sT + 3))
        self.global_load_dwordx4(v(self.CR, 4), v(4), s(sWS, 2), mods="sc1")
        self.global_load_dwordx4(v(self.CR + 4, 4), v(4), s(sWS, 2), mods="offset:2048 sc1")
        self.s_lshl_b32(s(sT + 3), s(self.sCH2), 12); self.s_add_u32(s(sT + 3), s(sT + 3), hex(OFF_R))
        self.v_lshl_add_u32(v(4), v(vTID), 4, s(sT + 3))
        self.global_load_dwordx4(v(self.C2R, 4), v(4), s(sWS, 2), mods="sc1")
    def conv_fill_r(self, younger):
        self.wait(vm=1 + younger)
        self.ds_write_b128(v(self.vR1), v(self.CR, 4), mods="offset:16640"); self.ds_write_b128(v(self.vR1), v(self.CR + 4, 4), mods=f"offset:{16640 + 160 * 16}")
        self.wait(vm=younger)
        self.ds_write_b128(v(self.vR2), v(self.C2R, 4), mods="offset:16640")
        self.wait(lg=0); self.s_barrier()

    NE = 6
    def w_one2(self, i):
        self.s_mov_b32(s(sT + 3), i * 5 * 3840)
        self.setexec(self.WM)
        self.buffer_load_dwordx4(a(4 * (i - 16), 4), v(90), s(sSRD, 4), s(sT + 3), mods="offen")
        self.setexec(-1)
    def w_lds2(self, lo, hi):
        m128 = sum(1 << l for l in range(60) if (l & 3) < 2); m64 = sum(1 << l for l in range(60) if (l & 3) == 2)
        self.setexec(m128)
        for i in range(lo, hi): self.ds_write_b128(v(91), a(4 * (i - 16), 4), mods=f"offset:{320 * i}")
        self.setexec(m64)
        for i in range(lo, hi): self.ds_write_b64(v(91), a(4 * (i - 16), 2), mods=f"offset:{320 * i}")
        self.setexec(-1)

    LO, HI, AC, F = 16, 32, 48, 96
    def conv_mains(self, extra):
        LO, HI, AC, F = self.LO, self.HI, self.AC, self.F
        vA, vB = self.vA1, self.vB1
        def rd(m):
            f = F + 16 * (m & 3); oa = 32 * m; ob = 80 * (m >> 1) + 32 * (m & 1)
            return [lambda: self.ds_read_b64(v(f, 2), v(vA), mods=f"offset:{oa}"), lambda: self.ds_read_b64(v(f + 2, 2), v(vA), mods=f"offset:{oa + 8}"),
                    lambda: self.ds_read_b128(v(f + 8, 4), v(vB), mods=f"offset:{ob + 2560}"), lambda: self.ds_read_b128(v(f + 12, 4), v(vB), mods=f"offset:{ob}"),
                    lambda: self.ds_read_b64(v(f + 4, 2), v(vA), mods=f"offset:{oa + 2048}"), lambda: self.ds_read_b64(v(f + 6, 2), v(vA), mods=f"offset:{oa + 2056}")]
        self.zero16(LO); self.zero16(HI); self.zero16(AC)
        self.s_mov_b32(s(sSRD), s(self.sWQ2)); self.s_mov_b32(s(sSRD + 1), s(self.sWQ2 + 1))
        self.s_mov_b32(s(sSRD + 2), 640 * 1920 * 2); self.s_mov_b32(s(sSRD + 3), "0x00020000")
        pieces = [[] for _ in range(32)]
        n = sum(1 for it in extra if isinstance(it, Ins)); per = max(1, -(-n // 30)); k = 0; cnt = 0; full = True; inbr = set()
        for it in extra:
            if isinstance(it, Ins):
                if cnt >= per and full and not inbr and k < 31: k += 1; cnt = 0
                if it.ops and it.ops[0] in ("exec", "exec_lo", "exec_hi"): full = (it.op == "s_mov_b64" and it.ops[1] == "-1")
                if it.kind == "branch": inbr.add(it.target)
                cnt += 1
            elif it[0] == "label": inbr.discard(it[1])
            pieces[k].append(it)
        for m in (0, 1):
            for f_ in rd(m): f_()
        for m in range(32):
            f = F + 16 * (m & 3)
            nx = rd(m + 2) if m + 2 < 32 else [lambda: None] * 6
            self.wait(lg=6 if m < 31 else 0)
            self.v_mfma_f32_32x32x16_bf16(v(LO, 16), v(f, 4), v(f + 8, 4), v(LO, 16)); nx[0](); nx[1]()
            self.v_mfma_f32_32x32x16_bf16(v(HI, 16), v(f, 4), v(f + 12, 4), v(HI, 16)); nx[2](); nx[3]()
            self.items += pieces[m]
            self.v_mfma_f32_32x32x16_bf16(v(HI, 16), v(f + 4, 4), v(f + 8, 4), v(HI, 16)); nx[4](); nx[5]()
            if m < 16: self.w_one2(16 + m)
            else:
                if m == 16: self.wo_srd()
                self.wo_issue_one(m - 16)
        vA, vB = self.vA2, self.vB2
        lhi, ldone = self.newlabel("c2hi"), self.newlabel("c2d")
        self.s_and_b32(s(sT + 5), s(sS), 1); self.s_cbranch_scc1(lhi)
        for hi in (0, 1):
            if hi: self.label(lhi)
            nrd = 5 if hi else 3
            def rd2(m):
                f = F + 16 * (m & 3); oa = 32 * m; ob = 80 * (m >> 1) + 32 * (m & 1)
                l = [lambda: self.ds_read_b64(v(f, 2), v(vA), mods=f"offset:{oa}"), lambda: self.ds_read_b64(v(f + 2, 2), v(vA), mods=f"offset:{oa + 8}"),
                     lambda: self.ds_read_b128(v(f + 8, 4), v(vB), mods=f"offset:{ob + 2560}")]
                if hi:
                    l += [lambda: self.ds_read_b128(v(f + 12, 4), v(vB), mods=f"offset:{ob}"),
                          lambda: self.ds_read_b64(v(f + 4, 2), v(vA), mods=f"offset:{oa + 2048}"), lambda: self.ds_read_b64(v(f + 6, 2), v(vA), mods=f"offset:{oa + 2056}")]
                return l
            nr = 6 if hi else 3
            for m in (0, 1):
                for f_ in rd2(m): f_()
            for m in range(16):
                f = F + 16 * (m & 3)
                nx = rd2(m + 2) if m + 2 < 16 else [lambda: None] * nr
                self.wait(lg=nr if m < 15 else 0)
                if hi:
                    self.v_mfma_f32_32x32x16_bf16(v(AC, 16), v(f, 4), v(f + 12, 4), v(AC, 16)); nx[0](); nx[1](); nx[2]()
                    self.v_mfma_f32_32x32x16_bf16(v(AC, 16), v(f + 4, 4), v(f + 8, 4), v(AC, 16)); nx[3](); nx[4](); nx[5]()
                else:
                    self.v_mfma_f32_32x32x16_bf16(v(AC, 16), v(f, 4), v(f + 8, 4), v(AC, 16)); nx[0](); nx[1](); nx[2]()
                self.wo_issue_one(16 + m)
            if not hi: self.s_branch(ldone)
        self.label(ldone)

    def conv_tails(self):
        LO, HI, AC, F = self.LO, self.HI, self.AC, self.F
        X1, X2, TO1, TO2 = self.CH0, self.CH1, self.CH2, self.CH2 + 8192
        self.s_lshl_b32(s(sT + 6), s(sW), 12); self.v_add_u32(v(64), s(sT + 6), v(vL16))
        self.s_xor_b32(s(sT + 7), s(sW), 1); self.s_lshl_b32(s(sT + 7), s(sT + 7), 12); self.s_add_u32(s(sT + 7), s(sT + 7), X1); self.v_add_u32(v(67), s(sT + 7), v(vL16))
        self.v_add_u32(v(66), X1, v(64)); self.v_add_u32(v(65), X2, v(64))
        self.s_lshl_b32(s(sT + 6), s(sW), 10); self.s_add_u32(s(sT + 6), s(sT + 6), X2); self.v_add_u32(v(64), s(sT + 6), v(vL16))
        self.v_and_b32(v(70), 31, v(vLANE)); self.v_lshlrev_b32(v(70), 6, v(70))
        self.v_lshrrev_b32(v(71), 5, v(vLANE)); self.v_lshl_add_u32(v(70), v(71), 3, v(70))
        self.s_lshl_b32(s(sT + 6), s(sW), 11); self.s_add_u32(s(sT + 6), s(sT + 6), TO1); self.v_add_u32(v(71), s(sT + 6), v(70)); self.v_add_u32(v(72), s(sT + 6), v(vL16))
        self.s_lshl_b32(s(sT + 6), s(sW), 4); self.s_add_u32(s(sT + 6), s(sT + 6), TO2); self.v_add_u32(v(70), s(sT + 6), v(70))
        self.s_lshl_b32(s(sT + 6), s(self.sHW), 11); self.s_lshl_b32(s(sT + 7), s(self.sCH1), 12); self.s_add_u32(s(sT + 6), s(sT + 6), s(sT + 7))
        self.s_add_u32(s(sT + 6), s(sT + 6), hex(OFF_Y)); self.v_add_u32(v(73), s(sT + 6), v(vL16))
        self.s_barrier()
        l1, l2 = self.newlabel("cx"), self.newlabel("cy")
        self.s_cmp_lg_u32(s(self.sHW), 0); self.s_cbranch_scc1(l1)
        for q in range(4): self.ds_write_b128(v(66), v(HI + 4 * q, 4), mods=f"offset:{1024 * q}")
        self.s_branch(l2)
        self.label(l1)
        for q in range(4): self.ds_write_b128(v(66), v(LO + 4 * q, 4), mods=f"offset:{1024 * q}")
        self.label(l2)
        for q in range(4): self.ds_write_b128(v(65), v(AC + 4 * q, 4), mods=f"offset:{1024 * q}")
        self.wait(lg=0); self.s_barrier()
        for q in range(4): self.ds_read_b128(v(F + 4 * q, 4), v(67), mods=f"offset:{1024 * q}")
        for q in range(4): self.ds_read_b128(v(F + 16 + 4 * q, 4), v(64), mods=f"offset:{4096 * q}")
        l1, l2 = self.newlabel("cx"), self.newlabel("cy")
        self.s_cmp_lg_u32(s(self.sHW), 0); self.s_cbranch_scc1(l1)
        for role, keep in enumerate((LO, HI)):
            if role: self.label(l1)
            for q in range(4):
                self.wait(lg=7 - q)
                for r in (0, 2): self.v_pk_add_f32(v(keep + 4 * q + r, 2), v(keep + 4 * q + r, 2), v(F + 4 * q + r, 2))
                self.pack(F + 32 + 2 * q, keep + 4 * q, 2)
            if role == 0: self.s_branch(l2)
        self.label(l2)
        for q in range(4): self.ds_write_b64(v(71), v(F + 32 + 2 * q, 2), mods=f"offset:{16 * q}")
        self.wait(lg=4)
        G = F + 16
        for r in (0, 2):
            self.v_pk_add_f32(v(G + r, 2), v(G + r, 2), v(G + 4 + r, 2)); self.v_pk_add_f32(v(G + 8 + r, 2), v(G + 8 + r, 2), v(G + 12 + r, 2))
        for r in (0, 2): self.v_pk_add_f32(v(G + r, 2), v(G + r, 2), v(G + 8 + r, 2))
        self.pack(F + 40, G, 2)
        self.ds_write_b64(v(70), v(F + 40, 2))
        self.ds_read_b128(v(LO, 4), v(72)); self.ds_read_b128(v(LO + 4, 4), v(72), mods="offset:1024")
        self.s_and_b32(s(sT + 6), s(sS), 1); self.s_lshl_b32(s(sT + 6), s(sT + 6), 11); self.s_lshl_b32(s(sT + 7), s(self.sCH2), 12)
        self.s_add_u32(s(sT + 6), s(sT + 6), s(sT + 7)); self.s_add_u32(s(sT + 6), s(sT + 6), hex(OFF_Y))
        self.wait(lg=0)
        self.global_store_dwordx4(v(73), v(LO, 4), s(sWS, 2), mods="sc1")
        self.global_store_dwordx4(v(73), v(LO + 4, 4), s(sWS, 2), mods="offset:1024 sc1")
        self.s_barrier()
        self.v_and_b32(v(67), 127, v(vTID)); self.v_lshlrev_b32(v(67), 4, v(67))
        self.v_add_u32(v(66), TO2, v(67)); self.v_add_u32(v(65), s(sT + 6), v(67))
        self.ds_read_b128(v(LO + 8, 4), v(66))
        self.wait(lg=0)
        self.global_store_dwordx4(v(65), v(LO + 8, 4), s(sWS, 2), mods="sc1")

    def first_flags4(self):
        self.s_lshl_b32(s(sT), s(sG), 12); self.s_add_u32(s(sT + 1), s(sT), hex(OFF_XCC)); self.s_add_u32(s(sT), s(sT), hex(OFF_FL2 + 6 * 8 * 4096))
        self.v_mov_b32(v(16), s(sT + 1)); self.v_mov_b32(v(17), s(sT))
        self.s_mov_b32(s(sM1), 0); self.s_mov_b32(s(sM1 + 1), -1)
        self.v_cndmask_b32(v(16), v(16), v(17), s(sM1, 2)); self.v_add_u32(v(16), v(16), v(vPL))
        self.s_add_u32(s(sT + 2), s(sTOK), 64); self.s_add_u32(s(sT + 3), s(sTOK), 7)
        self.v_mov_b32(v(17), s(sT + 2)); self.v_mov_b32(v(18), s(sT + 3)); self.v_cndmask_b32(v(17), v(17), v(18), s(sM1, 2))
        self.v_mov_b32(v(18), 16); self.v_cndmask_b32(v(18), v(18), 1, s(sM1, 2))
        lp, dn = self.newlabel("xpoll"), self.newlabel("xpolld")
        self.label(lp)
        self.global_load_dword(v(4), v(vPL), s(sFZ, 2), mods="sc1")
        self.global_load_dword(v(5), v(16), s(sWS, 2), mods="sc1")
        self.s_cmp_eq_u32(s(sTO), 0); self.s_cbranch_scc1(dn)
        self.s_sub_u32(s(sTO), s(sTO), 1)
        self.wait(vm=0)
        self.v_cmp_ne_u32("vcc", s(sEXP), v(4)); self.s_and_b64(s(sM0, 2), "vcc", s(sMZ, 2))
        self.v_sub_u32(v(5), v(5), v(17))
        self.v_cmp_le_u32("vcc", v(18), v(5))
        self.s_or_b64("vcc", "vcc", s(sM0, 2)); self.s_cbranch_scc1(lp)
        self.label(dn)
        self.v_cmp_ne_u32("vcc", s(sXCC), v(5))
        self.s_and_b32(s(sT), "vcc_lo", -1)
        self.s_cselect_b32(s(sMODE), 1, 0)
        if self.o.get("force_slow"): self.s_mov_b32(s(sMODE), 1)

    def epi_prep_nolds(self):
        n0 = len(self.items)
        self.epi_prep()
        self.items[n0:] = [it for it in self.items[n0:] if not (isinstance(it, Ins) and it.op == "ds_write_b64")]

    def wo_stage_split(self):
        sub = K4(stamps=False, opts=self.o); sub.uid = self.uid + 300000; sub.cold = []; sub.cold2 = []
        sub.y_flag = lambda: None
        K2.wo_stage(sub)
        self.uid = sub.uid
        bars = [k for k, it in enumerate(sub.items) if isinstance(it, Ins) and it.op == "s_barrier"]
        cut = bars[1] + 1
        first = [it for it in sub.items[:cut] if not (isinstance(it, Ins) and it.op == "s_waitcnt" and it.ops[0] == "vmcnt(0)")]
        return first, sub.items[cut:]

    YR = 140
    def y_flags_issue(self):
        self.v_lshlrev_b32(v(4), 7, v(vTID)); self.v_add_u32(v(4), OFF_YFL, v(4))
        self.global_load_dword(v(156), v(4), s(sWS, 2), mods="sc1")
    def y_flags_check(self):
        ok = self.newlabel("yok")
        self.s_add_u32(s(sT + 1), s(sTOK), 32)
        self.v_cmp_ne_u32("vcc", s(sT + 1), v(156)); self.s_cmp_eq_u64("vcc", 0); self.s_cbranch_scc1(ok)
        self.v_lshlrev_b32(v(8), 7, v(vTID)); self.v_add_u32(v(8), OFF_YFL, v(8)); self.s_mov_b64(s(sT + 2, 2), -1)
        self.poll2(sWS, 8, sT + 1, sT + 2)
        self.label(ok)
    def y_issue(self):
        YR = self.YR
        lab = self.newlabel("nu")
        self.s_cmp_lg_u32(s(2), 0); self.s_cbranch_scc1(lab)
        self.s_cmp_lg_u32(s(sW), 0); self.s_cbranch_scc1(lab)
        self.v_mov_b32(v(8), OFF_N); self.v_mov_b32(v(9), s(sTOK))
        self.setexec(1); self.global_store_dword(v(8), v(9), s(sWS, 2), mods="sc1"); self.setexec(-1)
        self.label(lab)
        self.s_lshl_b32(s(sU), s(sG), 8); self.s_lshl_b32(s(sU + 1), s(sS), 3); self.s_add_u32(s(sU), s(sU), s(sU + 1)); self.s_lshl_b32(s(sU), s(sU), 1)
        self.s_add_u32(s(sU), s(sU), hex(OFF_Y))
        self.v_lshlrev_b32(v(8), 12, v(vTID)); self.v_add_u32(v(8), s(sU), v(8))
        self.global_load_dwordx4(v(YR, 4), v(8), s(sWS, 2), mods="sc1")
        self.v_add_u32(v(9), 256 * 4096, v(8)); self.global_load_dwordx4(v(YR + 4, 4), v(9), s(sWS, 2), mods="sc1")
        self.v_and_b32(v(9), 127, v(vTID)); self.v_lshlrev_b32(v(9), 12, v(9)); self.v_add_u32(v(9), s(sU), v(9)); self.v_add_u32(v(9), 512 * 4096, v(9))
        self.global_load_dwordx4(v(YR + 8, 4), v(9), s(sWS, 2), mods="sc1")
    def y_finish(self):
        YR, LY = self.YR, L_SP
        self.v_and_b32(v(10), 7, v(vTID)); self.v_mul_u32_u24(v(10), 320, v(10))
        self.v_lshrrev_b32(v(11), 3, v(vTID)); self.v_lshl_add_u32(v(10), v(11), 2, v(10)); self.v_add_u32(v(10), LY, v(10))
        for i in range(2):
            for w in range(4): self.ds_write_b32(v(10), v(YR + 4 * i + w), mods=f"offset:{2560 * w + 128 * i}")
        lab = self.newlabel("yl")
        self.s_cmp_ge_u32(s(sW), 2); self.s_cbranch_scc1(lab)
        for w in range(4): self.ds_write_b32(v(10), v(YR + 8 + w), mods=f"offset:{2560 * w + 256}")
        self.label(lab)
        self.smul(sU, sW, 2560); self.s_add_u32(s(sU), s(sU), LY)
        self.v_bfe_u32(v(10), v(vLANE), 2, 2); self.v_mul_u32_u24(v(10), 320, v(10))
        self.v_lshrrev_b32(v(11), 4, v(vLANE)); self.v_lshl_add_u32(v(10), v(11), 5, v(10))
        self.v_and_b32(v(11), 3, v(vLANE)); self.v_lshl_add_u32(v(10), v(11), 3, v(10)); self.v_add_u32(v(10), s(sU), v(10))
        self.wait(lg=0); self.s_barrier()
        for m in range(3):
            self.ds_read_b64_tr_b16(v(vY + 4 * m, 2), v(10), mods=f"offset:{128 * m}")
            self.ds_read_b64_tr_b16(v(vY + 4 * m + 2, 2), v(10), mods=f"offset:{128 * m + 4 * 320}")
        self.wait(lg=0)
        self.setexec(0xffffffff00000000)
        for j in range(8, 12): self.v_mov_b32(v(vY + j), 0)
        self.setexec(-1)

    def wo_batch(self, b):
        self.wo_srd()
        for n in range(8 * b, 8 * b + 8): self.wo_issue_one(n)
    def wo_batch_l0(self, b):
        lab = self.newlabel("wb")
        self.s_cmp_lg_u32(s(sL), 0); self.s_cbranch_scc1(lab)
        self.wo_batch(b)
        self.label(lab)
    def attn_first_reads(self, desc, sKblk, sVblk):
        vk, vk1, vv = 8, 9, 10
        if desc:
            self.s_sub_u32(s(sT), s(sKblk), 4608); self.s_sub_u32(s(sT + 1), s(sVblk), 4096)
            oK0, oK1, oV0 = 4608, 3072, 4096
        else:
            self.s_mov_b32(s(sT), s(sKblk)); self.s_mov_b32(s(sT + 1), s(sVblk))
            oK0, oK1, oV0 = 0, 1536, 0
        self.v_add_u32(v(vk), s(sT), v(vL16)); self.v_add_u32(v(vk1), s(sT), v(vL8)); self.v_add_u32(v(vv), s(sT + 1), v(vL16))
        self.ds_read_b128(v(self.KP0, 4), v(vk), mods=f"offset:{oK0}"); self.ds_read_b64(v(self.KP1, 2), v(vk1), mods=f"offset:{oK0 + 1024}")
        self.ds_read_b128(v(self.KF0, 4), v(vk), mods=f"offset:{oK1}"); self.ds_read_b64(v(self.KF1, 2), v(vk1), mods=f"offset:{oK1 + 1024}")
        self.ds_read_b128(v(self.VF0, 4), v(vv), mods=f"offset:{oV0}")
    def attn_seq2(self, Q, O, desc, sCNT, pending):
        SA, SB, PP, KF0, KF1, VF0, VF1, MSK, KP0, KP1 = self.SA, self.SB, self.PP, self.KF0, self.KF1, self.VF0, self.VF1, self.MSK, self.KP0, self.KP1
        vk, vk1, vv = 8, 9, 10
        if pending is not None:
            self.wait(lg=5)
            self.v_mfma_f32_32x32x16_bf16(v(pending, 16), v(VF1, 4), v(PP + 4, 4), v(pending, 16))
        self.wait(lg=3)
        self.v_mfma_f32_32x32x16_bf16(v(SA, 16), v(KP0, 4), v(Q, 4), v(MSK, 16))
        self.v_mfma_f32_32x32x8_bf16(v(SA, 16), v(KP1, 2), v(Q + 4, 2), v(SA, 16))
        self.wait(lg=1)
        self.s_nop(8)
        lp, ex, first = self.newlabel("att"), self.newlabel("attx"), self.newlabel("attf")
        self.s_branch(first)
        def body(S, Sn, entry, par):
            if desc:
                oK = 1536 if par == 0 else 0
                oV1 = (4096 if par == 0 else 2048) + 1024
                oV0 = 2048 if par == 0 else 0
            else:
                oK = 3072 if par == 0 else 4608
                oV1 = (0 if par == 0 else 2048) + 1024
                oV0 = 2048 if par == 0 else 4096
            self.wait(lg=1)
            self.v_mfma_f32_32x32x16_bf16(v(O, 16), v(VF1, 4), v(PP + 4, 4), v(O, 16))
            if entry: self.label(entry)
            self.ds_read_b128(v(VF1, 4), v(vv), mods=f"offset:{oV1}")
            for e in range(4): self.v_exp_f32(v(S + e), v(S + e))
            self.v_cvt_pk_bf16_f32(v(PP), v(S), v(S + 1)); self.v_cvt_pk_bf16_f32(v(PP + 1), v(S + 2), v(S + 3))
            self.v_mfma_f32_32x32x16_bf16(v(Sn, 16), v(KF0, 4), v(Q, 4), 0)
            self.ds_read_b128(v(KF0, 4), v(vk), mods=f"offset:{oK}")
            for e in range(4, 8): self.v_exp_f32(v(S + e), v(S + e))
            self.v_cvt_pk_bf16_f32(v(PP + 2), v(S + 4), v(S + 5)); self.v_cvt_pk_bf16_f32(v(PP + 3), v(S + 6), v(S + 7))
            self.v_mfma_f32_32x32x8_bf16(v(Sn, 16), v(KF1, 2), v(Q + 4, 2), v(Sn, 16))
            self.ds_read_b64(v(KF1, 2), v(vk1), mods=f"offset:{oK + 1024}")
            for e in range(8, 12): self.v_exp_f32(v(S + e), v(S + e))
            self.wait(lg=3)
            self.v_mfma_f32_32x32x16_bf16(v(O, 16), v(VF0, 4), v(PP, 4), v(O, 16))
            self.ds_read_b128(v(VF0, 4), v(vv), mods=f"offset:{oV0}")
            self.v_cvt_pk_bf16_f32(v(PP + 4), v(S + 8), v(S + 9)); self.v_cvt_pk_bf16_f32(v(PP + 5), v(S + 10), v(S + 11))
            for e in range(12, 16): self.v_exp_f32(v(S + e), v(S + e))
            if par == 1:
                d = (-3072, -4096) if desc else (3072, 4096)
                self.v_add_u32(v(vk), d[0] & 0xffffffff, v(vk)); self.v_add_u32(v(vk1), d[0] & 0xffffffff, v(vk1))
            self.v_cvt_pk_bf16_f32(v(PP + 6), v(S + 12), v(S + 13)); self.v_cvt_pk_bf16_f32(v(PP + 7), v(S + 14), v(S + 15))
            if par == 1: self.v_add_u32(v(vv), d[1] & 0xffffffff, v(vv))
            self.s_add_u32(s(sCNT), s(sCNT), 1)
        self.label(lp)
        body(SA, SB, first, 0)
        self.s_cbranch_scc1(ex)
        body(SB, SA, None, 1)
        self.s_cbranch_scc0(lp)
        self.label(ex)
    def attn_finish(self, O):
        self.wait(lg=0)
        self.v_mfma_f32_32x32x16_bf16(v(O, 16), v(self.VF1, 4), v(self.PP + 4, 4), v(O, 16))

    def attn_local(self):
        sKb, sVb, sN = sU + 6, sU + 7, sU + 8
        self.smul(sKb, sW, 1536); self.s_add_u32(s(sKb), s(sKb), L_K); self.s_lshl_b32(s(sVb), s(sW), 11); self.s_add_u32(s(sVb), s(sVb), L_V)
        self.attn_first_reads(True, sKb, sVb)
        self.s_sub_u32(s(sN), -1, s(sW))
        self.attn_seq2(self.QA, self.OA, True, sN, None)
        self.s_sub_u32(s(sT + 2), 7, s(sW))
        self.smul(sKb, sT + 2, 1536); self.s_add_u32(s(sKb), s(sKb), L_K); self.s_lshl_b32(s(sVb), s(sT + 2), 11); self.s_add_u32(s(sVb), s(sVb), L_V)
        self.attn_first_reads(True, sKb, sVb)
        self.s_sub_u32(s(sN), s(sW), 8)
        self.wait(lg=5)
        self.v_mfma_f32_32x32x16_bf16(v(self.OA, 16), v(self.VF1, 4), v(self.PP + 4, 4), v(self.OA, 16))
        self.halo_publish()
        self.attn_seq2(self.QB, self.OB, True, sN, None)
        self.attn_finish(self.OB)
    def attn_halo(self):
        sKb, sVb, sN = sU + 6, sU + 7, sU + 8
        self.smul(sKb, sW, 1536); self.s_add_u32(s(sKb), s(sKb), L_HK); self.s_lshl_b32(s(sVb), s(sW), 11); self.s_add_u32(s(sVb), s(sVb), L_HV)
        self.attn_first_reads(False, sKb, sVb)
        self.s_sub_u32(s(sN), s(sW), 8)
        self.attn_seq2(self.QA, self.OA, False, sN, None)
        self.s_sub_u32(s(sT + 2), 7, s(sW))
        self.smul(sKb, sT + 2, 1536); self.s_add_u32(s(sKb), s(sKb), L_HK); self.s_lshl_b32(s(sVb), s(sT + 2), 11); self.s_add_u32(s(sVb), s(sVb), L_HV)
        self.attn_first_reads(False, sKb, sVb)
        self.s_sub_u32(s(sN), -1, s(sW))
        self.attn_seq2(self.QB, self.OB, False, sN, self.OA)
        self.attn_finish(self.OB)

    def qkv_run(self):
        ACC, ZR, WF = self.ACC, self.ZR, self.WF
        vzA, vzB, vw0, vw1 = 8, 9, 10, 11
        def wr(st, kk, T):
            r = WF + 8 * st + 4 * T; vw = (vw0, vw1)[T]
            self.ds_read_b64_tr_b16(v(r, 2), v(vw), mods=f"offset:{kk * 1024}")
            self.ds_read_b64_tr_b16(v(r + 2, 2), v(vw), mods=f"offset:{kk * 1024 + 256}")
        def body(last):
            for j in range(8):
                st = j & 1
                more = not (last and j == 7)
                mf = lambda blk, T: self.v_mfma_f32_32x32x16_bf16(v(ACC + 32 * blk + 16 * T, 16), v(WF + 8 * st + 4 * T, 4), v(ZR + 8 * j + 4 * blk, 4), v(ACC + 32 * blk + 16 * T, 16))
                self.wait(vm=((15 - 2 * j) if last else 15), lg=0)
                mf(0, 0)
                if more: wr(st ^ 1, j + 1, 0)
                mf(0, 1)
                if more: wr(st ^ 1, j + 1, 1)
                if not last: self.global_load_dwordx4(v(ZR + 8 * j, 4), v(vzA), s(sZB, 2), mods=f"offset:{(j % 4) * 1024} sc1")
                self.wait(vm=((14 - 2 * j) if last else 15))
                mf(1, 0)
                if not last and j % 4 == 3: self.v_add_u32(v(vzA), 4096, v(vzA))
                mf(1, 1)
                if not last:
                    self.global_load_dwordx4(v(ZR + 8 * j + 4, 4), v(vzB), s(sZB, 2), mods=f"offset:{(j % 4) * 1024} sc1")
                    if j % 4 == 3: self.v_add_u32(v(vzB), 4096, v(vzB))
            if not last:
                self.v_add_u32(v(vw0), 8192, v(vw0)); self.v_add_u32(v(vw1), 8192, v(vw1))
        lp = self.newlabel("qkv")
        self.s_mov_b32(s(sU), -4)
        self.label(lp)
        body(False)
        self.s_add_u32(s(sU), s(sU), 1); self.s_cbranch_scc0(lp)
        body(True)

    def op_prep(self):
        super().op_prep()
        self.s_lshr_b32(s(sU + 5), s(sU + 2), 1); self.smul(sU + 5, sU + 5, 40960)
        self.s_and_b32(s(sU + 6), s(sU + 2), 1); self.s_lshl_b32(s(sU + 6), s(sU + 6), 8); self.s_add_u32(s(sU + 5), s(sU + 5), s(sU + 6))
        self.s_and_b32(s(sU + 6), s(sS), 7); self.smul(sU + 6, sU + 6, 5120); self.s_add_u32(s(sU + 5), s(sU + 5), s(sU + 6))
        self.v_bfe_u32(v(12), v(vLANE), 3, 1); self.v_lshlrev_b32(v(12), 7, v(12))
        self.v_and_b32(v(13), 7, v(vLANE)); self.v_lshl_add_u32(v(12), v(13), 4, v(12))
        self.v_bfe_u32(v(13), v(vLANE), 4, 1); self.v_lshl_add_u32(v(12), v(13), 10, v(12))
        self.v_lshrrev_b32(v(13), 5, v(vLANE)); self.v_lshl_add_u32(v(12), v(13), 9, v(12))
        self.v_add_u32(v(12), s(sU + 5), v(12)); self.v_add_u32(v(13), 4096, v(12))
    def op_run(self):
        n0 = len(self.items); c0 = len(self.cold)
        super().op_run()
        def fix(ops, mods):
            if "offset:512" in mods: return ops, mods.replace("offset:512", "offset:2048")
            if "offset:1024" in mods: return [v(13)] + ops[1:], mods.replace("offset:1024", "").strip()
            return ops, mods
        for it in self.items[n0:]:
            if isinstance(it, Ins) and it.op == "global_store_dwordx4" and it.ops[2] == s(sAB, 2):
                it.ops, it.mods = fix(it.ops, it.mods); it.ops[2] = s(sZB, 2); it.classify()
        l1, l2, lst = self.cold[-1]
        new = []
        for e in lst:
            if e[0] == "exec": new.append(e)
            else:
                ops, mods = fix([e[1], e[2], e[3]], e[4]); new.append((e[0], ops[0], ops[1], s(sZB, 2), mods))
        self.cold[-1] = (l1, l2, new)
    def p4_prep(self):
        self.z_addr(8)
        for j in range(8, 12): self.v_mov_b32(v(self.AP + j), 0)
        self.unpack(self.XF, vX, 12)
        self.unpack(self.YF, vY, 12)
    def p4_run(self):
        n0 = len(self.items)
        super().p4_run()
        for it in self.items[n0:]:
            if isinstance(it, Ins) and it.op == "global_load_dwordx4" and it.ops[2] == s(sAB, 2):
                it.ops[2] = s(sZB, 2); it.classify()
    def pretouch_addr(self, va):
        self.v_min_u32(v(va), 79, v(vTID)); self.v_lshlrev_b32(v(va), 7, v(va))
        self.smul(sT, sG, ZG); self.smul(sT + 1, sS, 10240); self.s_add_u32(s(sT), s(sT), s(sT + 1)); self.s_add_u32(s(sT), s(sT), hex(OFF_O))
        self.v_add_u32(v(va), s(sT), v(va))

    def weights_to_mall(self):
        self.smul(sT, 2, 9600); self.v_lshlrev_b32(v(4), 4, v(vTID)); self.v_add_u32(v(4), s(sT), v(4))
        self.global_load_dwordx4(v(208, 4), v(4), s(sWQ, 2))
        self.global_load_dwordx4(v(212, 4), v(4), s(sWQ, 2), mods="offset:4080")
        self.v_min_u32(v(5), 89, v(vTID)); self.v_lshlrev_b32(v(5), 4, v(5)); self.s_add_u32(s(sT), s(sT), 8160); self.v_add_u32(v(5), s(sT), v(5))
        self.global_load_dwordx4(v(216, 4), v(5), s(sWQ, 2))
        self.smul(sT, 2, 3200); self.v_min_u32(v(5), 199, v(vTID)); self.v_lshlrev_b32(v(5), 4, v(5)); self.v_add_u32(v(5), s(sT), v(5))
        self.global_load_dwordx4(v(220, 4), v(5), s(sWO, 2))

    def startup(self):
        d2 = self.o.get("d2")
        NE = self.NE
        self.setup2()
        self.issue_x()
        self.v_mov_b32(v(87), OFF_N)
        self.global_load_dword(v(87), v(87), s(sWS, 2), mods="sc1")
        pfpos = self.o.get("pfpos", 2)
        if pfpos == 0: self.weights_to_mall()
        self.c0_issue()
        if pfpos == 1: self.weights_to_mall()
        self.stamp("issued"); self.dstamp(1) if d2 else None
        self.conv_ids()
        for r in range(4): self.v_mov_b32(v(vZERO + r), 0)
        self.v_and_b32(v(vPL), 31, v(vLANE)); self.v_lshlrev_b32(v(vPL), 7, v(vPL))
        self.s_lshl_b32(s(sT), s(sS), 7); self.v_mov_b32(v(vSO), s(sT))
        self.v_mov_b32(v(4), L_CNT); self.ds_write_b32(v(4), v(vZERO))
        self.w_addr()
        self.z_addr(8)
        self.wait(vm=16 if pfpos < 2 else 12)
        self.p0_ln()
        self.v_readfirstlane_b32(s(sTOK), v(87))
        self.s_add_u32(s(sTOK), s(sTOK), hex(NONCE_C))
        self.layer_bases2()
        self.stores_sc1(self.z_store_list(56, sZB, 8))
        lab = self.newlabel("xp")
        self.s_cmp_lg_u32(s(sW), 0); self.s_cbranch_scc1(lab)
        self.s_lshl_b32(s(sT), s(sG), 5); self.s_add_u32(s(sT), s(sT), s(sS)); self.s_lshl_b32(s(sT), s(sT), 7); self.s_add_u32(s(sT), s(sT), hex(OFF_XCC))
        self.s_add_u32(s(sT + 1), s(sTOK), s(sXCC)); self.s_add_u32(s(sT + 1), s(sT + 1), 64)
        self.v_mov_b32(v(4), s(sT)); self.v_mov_b32(v(5), s(sT + 1))
        self.setexec(1); self.global_store_dword(v(4), v(5), s(sWS, 2), mods="sc1"); self.setexec(-1)
        self.label(lab)
        self.conv_h_issue()
        if pfpos == 2: self.weights_to_mall()
        self.stamp("z0st"); self.dstamp(2) if d2 else None
        self.wait(vm=8 + 3 + (4 if pfpos == 2 else 0))
        self.c0_taps()
        self.c0_all([])
        self.s_mov_b64(s(self.sWQ2, 2), s(sWQ, 2))
        self.stamp("c0"); self.dstamp(3) if d2 else None
        self.w_issue(0, NE)
        self.wait(vm=NE); self.s_barrier()
        lab = self.newlabel("f0")
        self.s_cmp_lg_u32(s(sW), 0); self.s_cbranch_scc1(lab)
        self.v_mov_b32(v(4), s(sEXP)); self.s_add_u32(s(sT + 2), s(sTOK), 7); self.v_mov_b32(v(5), s(sT + 2))
        self.rflag_base(sT)
        self.setexec(1)
        self.global_store_dword(v(vSO), v(4), s(sFZ, 2), mods="sc1"); self.global_store_dword(v(vSO), v(5), s(sT, 2), mods="sc1")
        self.setexec(-1)
        self.label(lab)
        self.stamp("flags"); self.dstamp(4 if d2 else 1)
        NM = self.o.get("nm", 12)
        sub = K4(stamps=False, opts=self.o); sub.uid = self.uid + 200000; sub.cold = []; sub.cold2 = []
        sub.conv_fill_h()
        sub.w_zero()
        sub.s_lshl_b32(s(sT + 4), s(sW), 2); sub.lanemask(sM0, s(sT + 4), 4)
        sub.s_sub_u32(s(sT + 4), 28, s(sT + 4)); sub.lanemask(sMZ, s(sT + 4), 4); sub.s_or_b64(s(sMZ, 2), s(sMZ, 2), s(sM0, 2))
        sub.s_lshr_b32(s(sT + 4), s(sS), 3); sub.s_lshl_b32(s(sT + 4), s(sT + 4), 3); sub.lanemask(sMA, s(sT + 4), 8)
        sub.conv_addrs(); sub.wo_addr()
        self.uid = sub.uid
        self.splice_w(sub.items, range(NE, NM))
        self.s_mov_b32(s(sMO), -1); self.s_mov_b32(s(sMO + 1), 0)
        self.stamp("hfill"); self.dstamp(5) if d2 else None
        self.first_flags4()
        self.stamp("ff"); self.dstamp(6) if d2 else None
        self.conv_r_issue()
        if NM < 16:
            self.s_mov_b32(s(sSRD), s(self.sWQ2)); self.s_mov_b32(s(sSRD + 1), s(self.sWQ2 + 1))
            self.s_mov_b32(s(sSRD + 2), 640 * 1920 * 2); self.s_mov_b32(s(sSRD + 3), "0x00020000")
            for i_ in range(NM, 16): self.w_one(i_)
        self.code_prefetch(86)
        extra = 0
        if self.o.get("ptearly"):
            self.pretouch_addr(4); self.global_load_dword(v(85), v(4), s(sWS, 2), mods="nt" if self.o.get("ptnt") else ""); extra = 1
        self.w_lds(0, NM)
        self.conv_fill_r(1 + extra + 16 - NM)
        if NM < 16:
            self.wait(vm=1 + extra); self.w_lds(NM, 16); self.wait(lg=0)
        self.stamp("rfill"); self.dstamp(7) if d2 else None
        sub = K4(stamps=False, opts=self.o); sub.uid = self.uid + 100000; sub.cold = []; sub.cold2 = []
        sub.epi_prep_nolds(); sub.qkv_addr(); sub.mask_gen(False)
        self.uid = sub.uid
        self.conv_mains(sub.items)
        self.stamp("mains"); self.dstamp(8) if self.o.get("d2") else None
        self.wait(vm=32)
        self.w_lds2(16, 32)
        self.conv_tails()
        self.stamp("tails"); self.dstamp(9) if self.o.get("d2") else None
        self.qkv_zissue()
        self.v_xor_b32(v(4), 48, v(self.vSA)); self.ds_write_b64(v(4), v(88, 2))
        self.wait(vm=16, lg=0); self.s_barrier()
        self.y_flag()
        self.stamp("wlds"); self.dstamp(10 if self.o.get("d2") else 2); self._d2ok = False
        self.qkv_init()
        self.s_branch("L_QKV")

    def build(self):
        self.fallbacks = []
        self.startup()
        self.label("L_LAYER")
        self.layer_bases2()
        self.epi_prep(); self.mask_gen(False)
        self.qkv_addr(); self.qkv_init()
        self.poll2(sFZ, vPL, sEXP, sMZ)
        self.stamp("zwait")
        self.qkv_zissue()
        self.label("L_QKV")
        self.qkv_run()
        self.stamp("qkv"); self.dstamp(3, True)
        self.epi_run()
        self.stamp("epi")
        lab = self.newlabel("aux0")
        self.s_cmp_lg_u32(s(sL), 0); self.s_cbranch_scc1(lab)
        if self.o.get("ptearly"): self.s_branch(lab)
        self.pretouch_addr(4)
        self.global_load_dword(v(230), v(4), s(sWS, 2), mods="nt" if self.o.get("ptnt") else "")
        self.label(lab)
        self.attn_local()
        self.stamp("local"); self.dstamp(4, True)
        self.o_prep()
        l1path, joined = self.newlabel("l1p"), self.newlabel("joined")
        self.s_cmp_lg_u32(s(sL), 0); self.s_cbranch_scc1(l1path)
        wo1, wo2 = self.wo_stage_split()
        self.s_barrier()
        self.items += wo1
        nh = self.newlabel("nh")
        self.s_cmp_eq_u32(s(sG), 0); self.s_cbranch_scc1(nh)
        self.halo_prep()
        self.halo_issue()
        self.label(nh)
        self.y_flags_issue()
        self.items += wo2
        self.stamp("wo"); self.dstamp(5)
        self.wait(vm=0)
        self.y_flags_check()
        nh = self.newlabel("nh")
        self.s_cmp_eq_u32(s(sG), 0); self.s_cbranch_scc1(nh)
        self.halo_land(0)
        self.label(nh)
        self.wait(lg=0); self.s_barrier()
        self.y_issue()
        self.s_branch(joined)
        self.label(l1path)
        self.s_cmp_eq_u32(s(sG), 0); self.s_cbranch_scc1(joined)
        self.halo_prep()
        self.halo_issue()
        self.halo_land(0)
        self.wait(lg=0); self.s_barrier()
        self.label(joined)
        self.stamp("halof")
        nohalo = self.newlabel("nohalo")
        self.s_cmp_eq_u32(s(sG), 0); self.s_cbranch_scc1(nohalo)
        self.attn_halo()
        self.label(nohalo)
        self.stamp("halo"); self.dstamp(6, True)
        self.range_check()
        self.o_store()
        self.s_add_u32(s(sT), s(sEXP), 1); self.v_mov_b32(v(5), s(sT))
        self.signal2(sFO, 5)
        self.stamp("osig")
        lab = self.newlabel("aux2")
        self.s_cmp_lg_u32(s(sL), 0); self.s_cbranch_scc1(lab)
        self.y_finish()
        self.stamp("yld")
        self.label(lab)
        self.op_prep()
        self.s_add_u32(s(sT + 8), s(sEXP), 1)
        self.poll2(sFO, vPL, sT + 8, sMO)
        self.stamp("owait")
        self.op_run()
        self.s_add_u32(s(sT), s(sEXP), 2); self.v_mov_b32(v(5), s(sT))
        self.signal2(sFA, 5)
        self.stamp("asig"); self.dstamp(7, True)
        if self.o.get("wb"):
            lab = self.newlabel("wb")
            self.s_cmp_eq_u32(s(sL), 0); self.s_cbranch_scc1(lab)
            self.s_cmp_lg_u32(s(sS), 0); self.s_cbranch_scc1(lab)
            self.s_cmp_lg_u32(s(sW), 3); self.s_cbranch_scc1(lab)
            self.I("buffer_wbl2", mods="sc1")
            self.label(lab)
        self.p4_prep()
        self.s_add_u32(s(sT + 8), s(sEXP), 2)
        self.poll2(sFA, vPL, sT + 8, sMA)
        self.stamp("await")
        self.p4_run()
        self.s_cmp_lg_u32(s(sL), 0); self.s_cbranch_scc1("L_FINAL")
        self.p4_z()
        self.stores(self.z_store_list(56, sZN, 8))
        self.pack(vX, self.XF, 12)
        self.s_add_u32(s(sT), s(sEXP), 3); self.v_mov_b32(v(5), s(sT))
        self.signal2(sFN, 5)
        self.stamp("p4")
        self.s_mov_b32(s(sL), 1)
        self.s_branch("L_LAYER")
        self.label("L_FINAL")
        self.pack(vX, self.XF, 12)
        self.out_store()
        if self.o.get("span"):
            self.wait(vm=0); self.stamps = True
        self.stamp("end")
        self.dflush()
        return self.finish()

if __name__ == "__main__":
    import argparse
    ap = argparse.ArgumentParser()
    ap.add_argument("-o", default="k4.s"); ap.add_argument("--stamps", action="store_true")
    ap.add_argument("--slow", action="store_true"); ap.add_argument("-v", action="store_true"); ap.add_argument("--opt", default="")
    a_ = ap.parse_args()
    k = K4(stamps=a_.stamps, opts=dict({"force_slow": a_.slow}, **{x.split("=")[0]: (int(x.split("=")[1]) if "=" in x else 1) for x in a_.opt.split(",") if x}))
    k.build()
    ins = k.fix_all(verbose=a_.v)
    open(a_.o, "w").write(render_file(k))
    n = sum(1 for it in k.items if isinstance(it, Ins))
    print("instructions:", n, "nops inserted:", len(ins), "stamps:", ",".join(k.stamp_names))
```

```python
import sys, math
from asm import *
import kern2 as K2M
from kern2 import *
from kern2 import (sEXP, sHEXP, sFZ, sFO, sFA, sFN, sZB, sOB, sAB, sHB, sHP, sZN, sHFO, sHFI, sMZ, sMO, sMA, vL8, vPL, vZERO, vSO,
                   OFF_FL2, L_CNT)

class K4(K2):
    CD, CDV, C2D, C2DV, CR, C2R, CE, C2E = 168, 186, 188, 194, 196, 204, 112, 120
    CH0, CH1, CH2 = L_K, L_K + 24832, L_HK
    sB1, sCH1, sHW, sCH2 = sU + 8, sU + 9, sU + 10, sU + 11
    vA1, vB1, vA2, vB2, vR1, vR2 = 74, 75, 76, 77, 70, 71
    C0T, C0TAP = L_W, L_W + 12288
    WOL = (64, 128)
    vWG = 78
    sWQ2 = sU + 12
    @property
    def N_C0(self): return 0 if self.o.get("ptearly") else 1

    def c0_issue(self):
        KP, VP, RG, CC = self.CKP, self.CVP, self.CRG, self.CCC
        self.s_mov_b32(s(sSRD), s(sBK)); self.s_mov_b32(s(sSRD + 1), s(sBK + 1))
        self.s_mov_b32(s(sSRD + 2), 2048 * 1280); self.s_mov_b32(s(sSRD + 3), "0x00020000")
        self.v_min_u32(v(4), 159, v(vTID))
        self.v_mul_u32_u24(v(RG), 6554, v(4)); self.v_lshrrev_b32(v(RG), 16, v(RG))
        self.v_mul_u32_u24(v(CC), 10, v(RG)); self.v_sub_u32(v(CC), v(4), v(CC))
        self.s_lshl_b32(s(sT), s(sS), 6); self.s_sub_u32(s(sT), s(sT), 3)
        self.v_lshl_add_u32(v(4), v(RG), 2, s(sT))
        self.s_mov_b32(s(sT + 1), 1280); self.v_mul_lo_u32(v(4), s(sT + 1), v(4))
        self.smul(sT + 2, sG, 160); self.v_lshl_add_u32(v(5), v(CC), 4, s(sT + 2)); self.v_add_u32(v(4), v(4), v(5))
        for j in range(7):
            self.buffer_load_dwordx4(v(KP + 4 * j, 4), v(4), s(sSRD, 4), 0, mods="offen")
            if j == 2: self.v_add_u32(v(5), 1280, v(4))
            if j < 6: self.v_add_u32(v(4), 1280, v(4))
        self.s_mov_b32(s(sSRD), s(sBV)); self.s_mov_b32(s(sSRD + 1), s(sBV + 1))
        for j in range(4):
            self.buffer_load_dwordx4(v(VP + 4 * j, 4), v(5), s(sSRD, 4), 0, mods="offen")
            if j < 3: self.v_add_u32(v(5), 1280, v(5))
        self.smul(sT + 2, sG, 640); self.v_min_u32(v(4), 39, v(vLANE)); self.v_lshl_add_u32(v(4), v(4), 4, s(sT + 2))
        self.global_load_dwordx4(v(self.CTP, 4), v(4), s(sSH, 2))
    def c0_taps(self):
        self.v_min_u32(v(4), 39, v(vLANE)); self.v_lshlrev_b32(v(4), 4, v(4)); self.v_add_u32(v(4), self.C0TAP, v(4))
        self.ds_write_b128(v(4), v(self.CTP, 4))
        self.v_lshlrev_b32(v(5), 6, v(self.CCC)); self.v_add_u32(v(5), self.C0TAP, v(5))
        self.wait(lg=0); self.s_barrier()
        for j in range(4): self.ds_read_b128(v(self.CSP + 4 * j, 4), v(5), mods=f"offset:{16 * j}")
    def c0_all(self, splice):
        n0 = len(self.items)
        self.c0_compute(splice); self.c0_tail()
        for it in self.items[n0:]:
            if isinstance(it, Ins) and it.op == "v_add_u32":
                if it.ops[1] == str(L_K + 120): it.ops[1] = str(self.C0T + 120)
                elif it.ops[1] == str(L_K): it.ops[1] = str(self.C0T)

    def conv_ids(self):
        self.s_lshr_b32(s(sT), s(sW), 1); self.smul(self.sB1, sT, 24832); self.s_add_u32(s(self.sB1), s(self.sB1), L_K)
        self.smul(sT + 1, sG, 80); self.s_lshl_b32(s(self.sCH1), s(sS), 1); self.s_add_u32(s(self.sCH1), s(self.sCH1), s(sT + 1))
        self.s_add_u32(s(self.sCH1), s(self.sCH1), s(sT)); self.s_and_b32(s(self.sHW), s(sW), 1)
        self.s_lshr_b32(s(self.sCH2), s(sS), 1); self.s_add_u32(s(self.sCH2), s(self.sCH2), s(sT + 1)); self.s_add_u32(s(self.sCH2), s(self.sCH2), 64)
    def conv_h_issue(self):
        D = self.CD
        self.conv_srd()
        self.s_lshl_b32(s(sT + 3), s(self.sCH1), 12)
        self.v_and_b32(v(4), 127, v(vTID)); self.v_lshlrev_b32(v(4), 4, v(4))
        for i in range(2):
            self.buffer_load_dwordx4(v(D + 8 * i, 4), v(4), s(sSRD, 4), s(sT + 3), mods=f"offen offset:{2048 * i}")
            self.buffer_load_dwordx2(v(D + 8 * i + 4, 2), v(4), s(sSRD, 4), s(sT + 3), mods=f"offen offset:{2048 * i + 16}")
        self.s_lshr_b32(s(sT + 4), s(self.sCH1), 1); self.s_lshl_b32(s(sT + 4), s(sT + 4), 2); self.v_mov_b32(v(5), s(sT + 4))
        self.global_load_dword(v(self.CDV), v(5), s(sSD, 2))
        self.s_lshl_b32(s(sT + 3), s(self.sCH2), 12)
        self.v_lshlrev_b32(v(4), 4, v(vTID))
        self.buffer_load_dwordx4(v(self.C2D, 4), v(4), s(sSRD, 4), s(sT + 3), mods="offen")
        self.buffer_load_dwordx2(v(self.C2D + 4, 2), v(4), s(sSRD, 4), s(sT + 3), mods="offen offset:16")
        self.s_lshr_b32(s(sT + 4), s(self.sCH2), 1); self.s_lshl_b32(s(sT + 4), s(sT + 4), 2); self.v_mov_b32(v(5), s(sT + 4))
        self.global_load_dword(v(self.C2DV), v(5), s(sSD, 2))
    def conv_fill_h(self):
        sB1 = self.sB1
        self.v_and_b32(v(8), 127, v(vTID)); self.v_lshlrev_b32(v(9), 4, v(8)); self.v_add_u32(v(11), s(sB1), v(9))
        self.ds_write_b128(v(11), v(vZERO, 4), mods=f"offset:{16640 + 320 * 16}")
        self.v_and_b32(v(16), 63, v(8)); self.v_lshlrev_b32(v(16), 4, v(16)); self.v_add_u32(v(16), s(sB1), v(16))
        self.ds_write_b128(v(16), v(vZERO, 4), mods=f"offset:{16640 + 448 * 16}")
        self.v_add_u32(v(11), 64, v(11))
        self.v_lshrrev_b32(v(self.vR1), 2, v(8)); self.v_add_u32(v(self.vR1), v(self.vR1), v(8)); self.v_lshlrev_b32(v(self.vR1), 4, v(self.vR1))
        self.v_add_u32(v(self.vR1), s(sB1), v(self.vR1))
        for i in range(2): self.conv_copies(11, self.CD + 8 * i, self.CE + 4 * i, 2048 * i)
        self.v_min_u32(v(16), 191, v(vTID)); self.v_lshlrev_b32(v(16), 4, v(16)); self.v_add_u32(v(16), self.CH2, v(16))
        self.ds_write_b128(v(16), v(vZERO, 4), mods=f"offset:{16640 + 320 * 16}")
        self.v_lshlrev_b32(v(11), 4, v(vTID)); self.v_add_u32(v(11), self.CH2 + 64, v(11))
        self.v_lshrrev_b32(v(self.vR2), 2, v(vTID)); self.v_add_u32(v(self.vR2), v(self.vR2), v(vTID)); self.v_lshlrev_b32(v(self.vR2), 4, v(self.vR2))
        self.v_add_u32(v(self.vR2), self.CH2, v(self.vR2))
        self.conv_copies(11, self.C2D, self.C2E, 0)
        lab = self.newlabel("hd")
        self.s_cmp_lg_u32(s(self.sHW), 0); self.s_cbranch_scc1(lab)
        self.conv_head(sB1, self.sCH1, self.CD, self.CDV)
        self.label(lab)
        lab = self.newlabel("hd")
        self.s_cmp_lg_u32(s(sW), 0); self.s_cbranch_scc1(lab)
        self.s_mov_b32(s(sT + 10), self.CH2)
        self.conv_head(sT + 10, self.sCH2, self.C2D, self.C2DV)
        self.label(lab)
    def conv_addr2(self, va, vb, sbase, sstep0):
        self.v_and_b32(v(10), 3, v(vLANE)); self.v_mul_u32_u24(v(10), 4160, v(10))
        self.v_bfe_u32(v(11), v(vLANE), 2, 3); self.v_lshl_add_u32(v(10), v(11), 3, v(10))
        self.v_lshrrev_b32(v(11), 5, v(vLANE)); self.v_lshl_add_u32(v(10), v(11), 4, v(10))
        self.s_lshl_b32(s(sT + 6), s(sstep0), 5); self.s_add_u32(s(sT + 6), s(sT + 6), s(sbase)); self.v_add_u32(v(va), s(sT + 6), v(10))
        self.v_and_b32(v(10), 31, v(vLANE)); self.v_sub_u32(v(10), 31, v(10)); self.v_mul_u32_u24(v(10), 5, v(10))
        self.v_add_u32(v(10), v(10), v(11)); self.v_lshlrev_b32(v(10), 4, v(10))
        self.smul(sT + 6, sstep0, 40); self.s_add_u32(s(sT + 6), s(sT + 6), s(sbase)); self.s_add_u32(s(sT + 6), s(sT + 6), 16640)
        self.v_add_u32(v(vb), s(sT + 6), v(10))
    def conv_addrs(self):
        self.s_lshl_b32(s(sT + 5), s(self.sHW), 5); self.conv_addr2(self.vA1, self.vB1, self.sB1, sT + 5)
        self.s_mov_b32(s(sT + 10), self.CH2); self.s_lshl_b32(s(sT + 5), s(sW), 4); self.conv_addr2(self.vA2, self.vB2, sT + 10, sT + 5)
    def conv_r_issue(self):
        self.s_lshl_b32(s(sT + 3), s(self.sCH1), 12); self.s_add_u32(s(sT + 3), s(sT + 3), hex(OFF_R))
        self.v_and_b32(v(4), 127, v(vTID)); self.v_lshl_add_u32(v(4), v(4), 4, s(sT + 3))
        self.global_load_dwordx4(v(self.CR, 4), v(4), s(sWS, 2), mods="sc1")
        self.global_load_dwordx4(v(self.CR + 4, 4), v(4), s(sWS, 2), mods="offset:2048 sc1")
        self.s_lshl_b32(s(sT + 3), s(self.sCH2), 12); self.s_add_u32(s(sT + 3), s(sT + 3), hex(OFF_R))
        self.v_lshl_add_u32(v(4), v(vTID), 4, s(sT + 3))
        self.global_load_dwordx4(v(self.C2R, 4), v(4), s(sWS, 2), mods="sc1")
    def conv_fill_r(self, younger):
        self.wait(vm=1 + younger)
        self.ds_write_b128(v(self.vR1), v(self.CR, 4), mods="offset:16640"); self.ds_write_b128(v(self.vR1), v(self.CR + 4, 4), mods=f"offset:{16640 + 160 * 16}")
        self.wait(vm=younger)
        self.ds_write_b128(v(self.vR2), v(self.C2R, 4), mods="offset:16640")
        self.wait(lg=0); self.s_barrier()

    NE = 6
    def w_one2(self, i):
        self.s_mov_b32(s(sT + 3), i * 5 * 3840)
        self.setexec(self.WM)
        self.buffer_load_dwordx4(a(4 * (i - 16), 4), v(90), s(sSRD, 4), s(sT + 3), mods="offen")
        self.setexec(-1)
    def w_lds2(self, lo, hi):
        m128 = sum(1 << l for l in range(60) if (l & 3) < 2); m64 = sum(1 << l for l in range(60) if (l & 3) == 2)
        self.setexec(m128)
        for i in range(lo, hi): self.ds_write_b128(v(91), a(4 * (i - 16), 4), mods=f"offset:{320 * i}")
        self.setexec(m64)
        for i in range(lo, hi): self.ds_write_b64(v(91), a(4 * (i - 16), 2), mods=f"offset:{320 * i}")
        self.setexec(-1)

    LO, HI, AC, F = 16, 32, 48, 96
    def conv_mains(self, extra):
        LO, HI, AC, F = self.LO, self.HI, self.AC, self.F
        vA, vB = self.vA1, self.vB1
        def rd(m):
            f = F + 16 * (m & 3); oa = 32 * m; ob = 80 * (m >> 1) + 32 * (m & 1)
            return [lambda: self.ds_read_b64(v(f, 2), v(vA), mods=f"offset:{oa}"), lambda: self.ds_read_b64(v(f + 2, 2), v(vA), mods=f"offset:{oa + 8}"),
                    lambda: self.ds_read_b128(v(f + 8, 4), v(vB), mods=f"offset:{ob + 2560}"), lambda: self.ds_read_b128(v(f + 12, 4), v(vB), mods=f"offset:{ob}"),
                    lambda: self.ds_read_b64(v(f + 4, 2), v(vA), mods=f"offset:{oa + 2048}"), lambda: self.ds_read_b64(v(f + 6, 2), v(vA), mods=f"offset:{oa + 2056}")]
        self.zero16(LO); self.zero16(HI); self.zero16(AC)
        self.s_mov_b32(s(sSRD), s(self.sWQ2)); self.s_mov_b32(s(sSRD + 1), s(self.sWQ2 + 1))
        self.s_mov_b32(s(sSRD + 2), 640 * 1920 * 2); self.s_mov_b32(s(sSRD + 3), "0x00020000")
        pieces = [[] for _ in range(32)]
        n = sum(1 for it in extra if isinstance(it, Ins)); per = max(1, -(-n // 30)); k = 0; cnt = 0; full = True; inbr = set()
        for it in extra:
            if isinstance(it, Ins):
                if cnt >= per and full and not inbr and k < 31: k += 1; cnt = 0
                if it.ops and it.ops[0] in ("exec", "exec_lo", "exec_hi"): full = (it.op == "s_mov_b64" and it.ops[1] == "-1")
                if it.kind == "branch": inbr.add(it.target)
                cnt += 1
            elif it[0] == "label": inbr.discard(it[1])
            pieces[k].append(it)
        for m in (0, 1):
            for f_ in rd(m): f_()
        for m in range(32):
            f = F + 16 * (m & 3)
            nx = rd(m + 2) if m + 2 < 32 else [lambda: None] * 6
            self.wait(lg=6 if m < 31 else 0)
            self.v_mfma_f32_32x32x16_bf16(v(LO, 16), v(f, 4), v(f + 8, 4), v(LO, 16)); nx[0](); nx[1]()
            self.v_mfma_f32_32x32x16_bf16(v(HI, 16), v(f, 4), v(f + 12, 4), v(HI, 16)); nx[2](); nx[3]()
            self.items += pieces[m]
            self.v_mfma_f32_32x32x16_bf16(v(HI, 16), v(f + 4, 4), v(f + 8, 4), v(HI, 16)); nx[4](); nx[5]()
            if m < 16: self.w_one2(16 + m)
            else:
                if m == 16: self.wo_srd()
                self.wo_issue_one(m - 16)
        vA, vB = self.vA2, self.vB2
        lhi, ldone = self.newlabel("c2hi"), self.newlabel("c2d")
        self.s_and_b32(s(sT + 5), s(sS), 1); self.s_cbranch_scc1(lhi)
        for hi in (0, 1):
            if hi: self.label(lhi)
            nrd = 5 if hi else 3
            def rd2(m):
                f = F + 16 * (m & 3); oa = 32 * m; ob = 80 * (m >> 1) + 32 * (m & 1)
                l = [lambda: self.ds_read_b64(v(f, 2), v(vA), mods=f"offset:{oa}"), lambda: self.ds_read_b64(v(f + 2, 2), v(vA), mods=f"offset:{oa + 8}"),
                     lambda: self.ds_read_b128(v(f + 8, 4), v(vB), mods=f"offset:{ob + 2560}")]
                if hi:
                    l += [lambda: self.ds_read_b128(v(f + 12, 4), v(vB), mods=f"offset:{ob}"),
                          lambda: self.ds_read_b64(v(f + 4, 2), v(vA), mods=f"offset:{oa + 2048}"), lambda: self.ds_read_b64(v(f + 6, 2), v(vA), mods=f"offset:{oa + 2056}")]
                return l
            nr = 6 if hi else 3
            for m in (0, 1):
                for f_ in rd2(m): f_()
            for m in range(16):
                f = F + 16 * (m & 3)
                nx = rd2(m + 2) if m + 2 < 16 else [lambda: None] * nr
                self.wait(lg=nr if m < 15 else 0)
                if hi:
                    self.v_mfma_f32_32x32x16_bf16(v(AC, 16), v(f, 4), v(f + 12, 4), v(AC, 16)); nx[0](); nx[1](); nx[2]()
                    self.v_mfma_f32_32x32x16_bf16(v(AC, 16), v(f + 4, 4), v(f + 8, 4), v(AC, 16)); nx[3](); nx[4](); nx[5]()
                else:
                    self.v_mfma_f32_32x32x16_bf16(v(AC, 16), v(f, 4), v(f + 8, 4), v(AC, 16)); nx[0](); nx[1](); nx[2]()
                self.wo_issue_one(16 + m)
            if not hi: self.s_branch(ldone)
        self.label(ldone)

    def conv_tails(self):
        LO, HI, AC, F = self.LO, self.HI, self.AC, self.F
        X1, X2, TO1, TO2 = self.CH0, self.CH1, self.CH2, self.CH2 + 8192
        self.s_lshl_b32(s(sT + 6), s(sW), 12); self.v_add_u32(v(64), s(sT + 6), v(vL16))
        self.s_xor_b32(s(sT + 7), s(sW), 1); self.s_lshl_b32(s(sT + 7), s(sT + 7), 12); self.s_add_u32(s(sT + 7), s(sT + 7), X1); self.v_add_u32(v(67), s(sT + 7), v(vL16))
        self.v_add_u32(v(66), X1, v(64)); self.v_add_u32(v(65), X2, v(64))
        self.s_lshl_b32(s(sT + 6), s(sW), 10); self.s_add_u32(s(sT + 6), s(sT + 6), X2); self.v_add_u32(v(64), s(sT + 6), v(vL16))
        self.v_and_b32(v(70), 31, v(vLANE)); self.v_lshlrev_b32(v(70), 6, v(70))
        self.v_lshrrev_b32(v(71), 5, v(vLANE)); self.v_lshl_add_u32(v(70), v(71), 3, v(70))
        self.s_lshl_b32(s(sT + 6), s(sW), 11); self.s_add_u32(s(sT + 6), s(sT + 6), TO1); self.v_add_u32(v(71), s(sT + 6), v(70)); self.v_add_u32(v(72), s(sT + 6), v(vL16))
        self.s_lshl_b32(s(sT + 6), s(sW), 4); self.s_add_u32(s(sT + 6), s(sT + 6), TO2); self.v_add_u32(v(70), s(sT + 6), v(70))
        self.s_lshl_b32(s(sT + 6), s(self.sHW), 11); self.s_lshl_b32(s(sT + 7), s(self.sCH1), 12); self.s_add_u32(s(sT + 6), s(sT + 6), s(sT + 7))
        self.s_add_u32(s(sT + 6), s(sT + 6), hex(OFF_Y)); self.v_add_u32(v(73), s(sT + 6), v(vL16))
        self.s_barrier()
        l1, l2 = self.newlabel("cx"), self.newlabel("cy")
        self.s_cmp_lg_u32(s(self.sHW), 0); self.s_cbranch_scc1(l1)
        for q in range(4): self.ds_write_b128(v(66), v(HI + 4 * q, 4), mods=f"offset:{1024 * q}")
        self.s_branch(l2)
        self.label(l1)
        for q in range(4): self.ds_write_b128(v(66), v(LO + 4 * q, 4), mods=f"offset:{1024 * q}")
        self.label(l2)
        for q in range(4): self.ds_write_b128(v(65), v(AC + 4 * q, 4), mods=f"offset:{1024 * q}")
        self.wait(lg=0); self.s_barrier()
        for q in range(4): self.ds_read_b128(v(F + 4 * q, 4), v(67), mods=f"offset:{1024 * q}")
        for q in range(4): self.ds_read_b128(v(F + 16 + 4 * q, 4), v(64), mods=f"offset:{4096 * q}")
        l1, l2 = self.newlabel("cx"), self.newlabel("cy")
        self.s_cmp_lg_u32(s(self.sHW), 0); self.s_cbranch_scc1(l1)
        for role, keep in enumerate((LO, HI)):
            if role: self.label(l1)
            for q in range(4):
                self.wait(lg=7 - q)
                for r in (0, 2): self.v_pk_add_f32(v(keep + 4 * q + r, 2), v(keep + 4 * q + r, 2), v(F + 4 * q + r, 2))
                self.pack(F + 32 + 2 * q, keep + 4 * q, 2)
            if role == 0: self.s_branch(l2)
        self.label(l2)
        for q in range(4): self.ds_write_b64(v(71), v(F + 32 + 2 * q, 2), mods=f"offset:{16 * q}")
        self.wait(lg=4)
        G = F + 16
        for r in (0, 2):
            self.v_pk_add_f32(v(G + r, 2), v(G + r, 2), v(G + 4 + r, 2)); self.v_pk_add_f32(v(G + 8 + r, 2), v(G + 8 + r, 2), v(G + 12 + r, 2))
        for r in (0, 2): self.v_pk_add_f32(v(G + r, 2), v(G + r, 2), v(G + 8 + r, 2))
        self.pack(F + 40, G, 2)
        self.ds_write_b64(v(70), v(F + 40, 2))
        self.ds_read_b128(v(LO, 4), v(72)); self.ds_read_b128(v(LO + 4, 4), v(72), mods="offset:1024")
        self.s_and_b32(s(sT + 6), s(sS), 1); self.s_lshl_b32(s(sT + 6), s(sT + 6), 11); self.s_lshl_b32(s(sT + 7), s(self.sCH2), 12)
        self.s_add_u32(s(sT + 6), s(sT + 6), s(sT + 7)); self.s_add_u32(s(sT + 6), s(sT + 6), hex(OFF_Y))
        self.wait(lg=0)
        self.global_store_dwordx4(v(73), v(LO, 4), s(sWS, 2), mods="sc1")
        self.global_store_dwordx4(v(73), v(LO + 4, 4), s(sWS, 2), mods="offset:1024 sc1")
        self.s_barrier()
        self.v_and_b32(v(67), 127, v(vTID)); self.v_lshlrev_b32(v(67), 4, v(67))
        self.v_add_u32(v(66), TO2, v(67)); self.v_add_u32(v(65), s(sT + 6), v(67))
        self.ds_read_b128(v(LO + 8, 4), v(66))
        self.wait(lg=0)
        self.global_store_dwordx4(v(65), v(LO + 8, 4), s(sWS, 2), mods="sc1")

    def first_flags4(self):
        self.s_lshl_b32(s(sT), s(sG), 12); self.s_add_u32(s(sT + 1), s(sT), hex(OFF_XCC)); self.s_add_u32(s(sT), s(sT), hex(OFF_FL2 + 6 * 8 * 4096))
        self.v_mov_b32(v(16), s(sT + 1)); self.v_mov_b32(v(17), s(sT))
        self.s_mov_b32(s(sM1), 0); self.s_mov_b32(s(sM1 + 1), -1)
        self.v_cndmask_b32(v(16), v(16), v(17), s(sM1, 2)); self.v_add_u32(v(16), v(16), v(vPL))
        self.s_add_u32(s(sT + 2), s(sTOK), 64); self.s_add_u32(s(sT + 3), s(sTOK), 7)
        self.v_mov_b32(v(17), s(sT + 2)); self.v_mov_b32(v(18), s(sT + 3)); self.v_cndmask_b32(v(17), v(17), v(18), s(sM1, 2))
        self.v_mov_b32(v(18), 16); self.v_cndmask_b32(v(18), v(18), 1, s(sM1, 2))
        lp, dn = self.newlabel("xpoll"), self.newlabel("xpolld")
        self.label(lp)
        self.global_load_dword(v(4), v(vPL), s(sFZ, 2), mods="sc1")
        self.global_load_dword(v(5), v(16), s(sWS, 2), mods="sc1")
        self.s_cmp_eq_u32(s(sTO), 0); self.s_cbranch_scc1(dn)
        self.s_sub_u32(s(sTO), s(sTO), 1)
        self.wait(vm=0)
        self.v_cmp_ne_u32("vcc", s(sEXP), v(4)); self.s_and_b64(s(sM0, 2), "vcc", s(sMZ, 2))
        self.v_sub_u32(v(5), v(5), v(17))
        self.v_cmp_le_u32("vcc", v(18), v(5))
        self.s_or_b64("vcc", "vcc", s(sM0, 2)); self.s_cbranch_scc1(lp)
        self.label(dn)
        self.v_cmp_ne_u32("vcc", s(sXCC), v(5))
        self.s_and_b32(s(sT), "vcc_lo", -1)
        self.s_cselect_b32(s(sMODE), 1, 0)
        if self.o.get("force_slow"): self.s_mov_b32(s(sMODE), 1)

    def epi_prep_nolds(self):
        n0 = len(self.items)
        self.epi_prep()
        self.items[n0:] = [it for it in self.items[n0:] if not (isinstance(it, Ins) and it.op == "ds_write_b64")]

    def wo_stage_split(self):
        sub = K4(stamps=False, opts=self.o); sub.uid = self.uid + 300000; sub.cold = []; sub.cold2 = []
        sub.y_flag = lambda: None
        K2.wo_stage(sub)
        self.uid = sub.uid
        bars = [k for k, it in enumerate(sub.items) if isinstance(it, Ins) and it.op == "s_barrier"]
        cut = bars[1] + 1
        first = [it for it in sub.items[:cut] if not (isinstance(it, Ins) and it.op == "s_waitcnt" and it.ops[0] == "vmcnt(0)")]
        return first, sub.items[cut:]

    YR = 140
    def y_flags_issue(self):
        self.v_lshlrev_b32(v(4), 7, v(vTID)); self.v_add_u32(v(4), OFF_YFL, v(4))
        self.global_load_dword(v(156), v(4), s(sWS, 2), mods="sc1")
    def y_flags_check(self):
        ok = self.newlabel("yok")
        self.s_add_u32(s(sT + 1), s(sTOK), 32)
        self.v_cmp_ne_u32("vcc", s(sT + 1), v(156)); self.s_cmp_eq_u64("vcc", 0); self.s_cbranch_scc1(ok)
        self.v_lshlrev_b32(v(8), 7, v(vTID)); self.v_add_u32(v(8), OFF_YFL, v(8)); self.s_mov_b64(s(sT + 2, 2), -1)
        self.poll2(sWS, 8, sT + 1, sT + 2)
        self.label(ok)
    def y_issue(self):
        YR = self.YR
        lab = self.newlabel("nu")
        self.s_cmp_lg_u32(s(2), 0); self.s_cbranch_scc1(lab)
        self.s_cmp_lg_u32(s(sW), 0); self.s_cbranch_scc1(lab)
        self.v_mov_b32(v(8), OFF_N); self.v_mov_b32(v(9), s(sTOK))
        self.setexec(1); self.global_store_dword(v(8), v(9), s(sWS, 2), mods="sc1"); self.setexec(-1)
        self.label(lab)
        self.s_lshl_b32(s(sU), s(sG), 8); self.s_lshl_b32(s(sU + 1), s(sS), 3); self.s_add_u32(s(sU), s(sU), s(sU + 1)); self.s_lshl_b32(s(sU), s(sU), 1)
        self.s_add_u32(s(sU), s(sU), hex(OFF_Y))
        self.v_lshlrev_b32(v(8), 12, v(vTID)); self.v_add_u32(v(8), s(sU), v(8))
        self.global_load_dwordx4(v(YR, 4), v(8), s(sWS, 2), mods="sc1")
        self.v_add_u32(v(9), 256 * 4096, v(8)); self.global_load_dwordx4(v(YR + 4, 4), v(9), s(sWS, 2), mods="sc1")
        self.v_and_b32(v(9), 127, v(vTID)); self.v_lshlrev_b32(v(9), 12, v(9)); self.v_add_u32(v(9), s(sU), v(9)); self.v_add_u32(v(9), 512 * 4096, v(9))
        self.global_load_dwordx4(v(YR + 8, 4), v(9), s(sWS, 2), mods="sc1")
    def y_finish(self):
        YR, LY = self.YR, L_SP
        self.v_and_b32(v(10), 7, v(vTID)); self.v_mul_u32_u24(v(10), 320, v(10))
        self.v_lshrrev_b32(v(11), 3, v(vTID)); self.v_lshl_add_u32(v(10), v(11), 2, v(10)); self.v_add_u32(v(10), LY, v(10))
        for i in range(2):
            for w in range(4): self.ds_write_b32(v(10), v(YR + 4 * i + w), mods=f"offset:{2560 * w + 128 * i}")
        lab = self.newlabel("yl")
        self.s_cmp_ge_u32(s(sW), 2); self.s_cbranch_scc1(lab)
        for w in range(4): self.ds_write_b32(v(10), v(YR + 8 + w), mods=f"offset:{2560 * w + 256}")
        self.label(lab)
        self.smul(sU, sW, 2560); self.s_add_u32(s(sU), s(sU), LY)
        self.v_bfe_u32(v(10), v(vLANE), 2, 2); self.v_mul_u32_u24(v(10), 320, v(10))
        self.v_lshrrev_b32(v(11), 4, v(vLANE)); self.v_lshl_add_u32(v(10), v(11), 5, v(10))
        self.v_and_b32(v(11), 3, v(vLANE)); self.v_lshl_add_u32(v(10), v(11), 3, v(10)); self.v_add_u32(v(10), s(sU), v(10))
        self.wait(lg=0); self.s_barrier()
        for m in range(3):
            self.ds_read_b64_tr_b16(v(vY + 4 * m, 2), v(10), mods=f"offset:{128 * m}")
            self.ds_read_b64_tr_b16(v(vY + 4 * m + 2, 2), v(10), mods=f"offset:{128 * m + 4 * 320}")
        self.wait(lg=0)
        self.setexec(0xffffffff00000000)
        for j in range(8, 12): self.v_mov_b32(v(vY + j), 0)
        self.setexec(-1)

    def wo_batch(self, b):
        self.wo_srd()
        for n in range(8 * b, 8 * b + 8): self.wo_issue_one(n)
    def wo_batch_l0(self, b):
        lab = self.newlabel("wb")
        self.s_cmp_lg_u32(s(sL), 0); self.s_cbranch_scc1(lab)
        self.wo_batch(b)
        self.label(lab)
    def attn_first_reads(self, desc, sKblk, sVblk):
        vk, vk1, vv = 8, 9, 10
        if desc:
            self.s_sub_u32(s(sT), s(sKblk), 4608); self.s_sub_u32(s(sT + 1), s(sVblk), 4096)
            oK0, oK1, oV0 = 4608, 3072, 4096
        else:
            self.s_mov_b32(s(sT), s(sKblk)); self.s_mov_b32(s(sT + 1), s(sVblk))
            oK0, oK1, oV0 = 0, 1536, 0
        self.v_add_u32(v(vk), s(sT), v(vL16)); self.v_add_u32(v(vk1), s(sT), v(vL8)); self.v_add_u32(v(vv), s(sT + 1), v(vL16))
        self.ds_read_b128(v(self.KP0, 4), v(vk), mods=f"offset:{oK0}"); self.ds_read_b64(v(self.KP1, 2), v(vk1), mods=f"offset:{oK0 + 1024}")
        self.ds_read_b128(v(self.KF0, 4), v(vk), mods=f"offset:{oK1}"); self.ds_read_b64(v(self.KF1, 2), v(vk1), mods=f"offset:{oK1 + 1024}")
        self.ds_read_b128(v(self.VF0, 4), v(vv), mods=f"offset:{oV0}")
    def attn_seq2(self, Q, O, desc, sCNT, pending):
        SA, SB, PP, KF0, KF1, VF0, VF1, MSK, KP0, KP1 = self.SA, self.SB, self.PP, self.KF0, self.KF1, self.VF0, self.VF1, self.MSK, self.KP0, self.KP1
        vk, vk1, vv = 8, 9, 10
        if pending is not None:
            self.wait(lg=5)
            self.v_mfma_f32_32x32x16_bf16(v(pending, 16), v(VF1, 4), v(PP + 4, 4), v(pending, 16))
        self.wait(lg=3)
        self.v_mfma_f32_32x32x16_bf16(v(SA, 16), v(KP0, 4), v(Q, 4), v(MSK, 16))
        self.v_mfma_f32_32x32x8_bf16(v(SA, 16), v(KP1, 2), v(Q + 4, 2), v(SA, 16))
        self.wait(lg=1)
        self.s_nop(8)
        lp, ex, first = self.newlabel("att"), self.newlabel("attx"), self.newlabel("attf")
        self.s_branch(first)
        def body(S, Sn, entry, par):
            if desc:
                oK = 1536 if par == 0 else 0
                oV1 = (4096 if par == 0 else 2048) + 1024
                oV0 = 2048 if par == 0 else 0
            else:
                oK = 3072 if par == 0 else 4608
                oV1 = (0 if par == 0 else 2048) + 1024
                oV0 = 2048 if par == 0 else 4096
            self.wait(lg=1)
            self.v_mfma_f32_32x32x16_bf16(v(O, 16), v(VF1, 4), v(PP + 4, 4), v(O, 16))
            if entry: self.label(entry)
            self.ds_read_b128(v(VF1, 4), v(vv), mods=f"offset:{oV1}")
            for e in range(4): self.v_exp_f32(v(S + e), v(S + e))
            self.v_cvt_pk_bf16_f32(v(PP), v(S), v(S + 1)); self.v_cvt_pk_bf16_f32(v(PP + 1), v(S + 2), v(S + 3))
            self.v_mfma_f32_32x32x16_bf16(v(Sn, 16), v(KF0, 4), v(Q, 4), 0)
            self.ds_read_b128(v(KF0, 4), v(vk), mods=f"offset:{oK}")
            for e in range(4, 8): self.v_exp_f32(v(S + e), v(S + e))
            self.v_cvt_pk_bf16_f32(v(PP + 2), v(S + 4), v(S + 5)); self.v_cvt_pk_bf16_f32(v(PP + 3), v(S + 6), v(S + 7))
            self.v_mfma_f32_32x32x8_bf16(v(Sn, 16), v(KF1, 2), v(Q + 4, 2), v(Sn, 16))
            self.ds_read_b64(v(KF1, 2), v(vk1), mods=f"offset:{oK + 1024}")
            for e in range(8, 12): self.v_exp_f32(v(S + e), v(S + e))
            self.wait(lg=3)
            self.v_mfma_f32_32x32x16_bf16(v(O, 16), v(VF0, 4), v(PP, 4), v(O, 16))
            self.ds_read_b128(v(VF0, 4), v(vv), mods=f"offset:{oV0}")
            self.v_cvt_pk_bf16_f32(v(PP + 4), v(S + 8), v(S + 9)); self.v_cvt_pk_bf16_f32(v(PP + 5), v(S + 10), v(S + 11))
            for e in range(12, 16): self.v_exp_f32(v(S + e), v(S + e))
            if par == 1:
                d = (-3072, -4096) if desc else (3072, 4096)
                self.v_add_u32(v(vk), d[0] & 0xffffffff, v(vk)); self.v_add_u32(v(vk1), d[0] & 0xffffffff, v(vk1))
            self.v_cvt_pk_bf16_f32(v(PP + 6), v(S + 12), v(S + 13)); self.v_cvt_pk_bf16_f32(v(PP + 7), v(S + 14), v(S + 15))
            if par == 1: self.v_add_u32(v(vv), d[1] & 0xffffffff, v(vv))
            self.s_add_u32(s(sCNT), s(sCNT), 1)
        self.label(lp)
        body(SA, SB, first, 0)
        self.s_cbranch_scc1(ex)
        body(SB, SA, None, 1)
        self.s_cbranch_scc0(lp)
        self.label(ex)
    def attn_finish(self, O):
        self.wait(lg=0)
        self.v_mfma_f32_32x32x16_bf16(v(O, 16), v(self.VF1, 4), v(self.PP + 4, 4), v(O, 16))

    def attn_local(self):
        sKb, sVb, sN = sU + 6, sU + 7, sU + 8
        self.smul(sKb, sW, 1536); self.s_add_u32(s(sKb), s(sKb), L_K); self.s_lshl_b32(s(sVb), s(sW), 11); self.s_add_u32(s(sVb), s(sVb), L_V)
        self.attn_first_reads(True, sKb, sVb)
        self.s_sub_u32(s(sN), -1, s(sW))
        self.attn_seq2(self.QA, self.OA, True, sN, None)
        self.s_sub_u32(s(sT + 2), 7, s(sW))
        self.smul(sKb, sT + 2, 1536); self.s_add_u32(s(sKb), s(sKb), L_K); self.s_lshl_b32(s(sVb), s(sT + 2), 11); self.s_add_u32(s(sVb), s(sVb), L_V)
        self.attn_first_reads(True, sKb, sVb)
        self.s_sub_u32(s(sN), s(sW), 8)
        self.wait(lg=5)
        self.v_mfma_f32_32x32x16_bf16(v(self.OA, 16), v(self.VF1, 4), v(self.PP + 4, 4), v(self.OA, 16))
        self.halo_publish()
        self.attn_seq2(self.QB, self.OB, True, sN, None)
        self.attn_finish(self.OB)
    def attn_halo(self):
        sKb, sVb, sN = sU + 6, sU + 7, sU + 8
        self.smul(sKb, sW, 1536); self.s_add_u32(s(sKb), s(sKb), L_HK); self.s_lshl_b32(s(sVb), s(sW), 11); self.s_add_u32(s(sVb), s(sVb), L_HV)
        self.attn_first_reads(False, sKb, sVb)
        self.s_sub_u32(s(sN), s(sW), 8)
        self.attn_seq2(self.QA, self.OA, False, sN, None)
        self.s_sub_u32(s(sT + 2), 7, s(sW))
        self.smul(sKb, sT + 2, 1536); self.s_add_u32(s(sKb), s(sKb), L_HK); self.s_lshl_b32(s(sVb), s(sT + 2), 11); self.s_add_u32(s(sVb), s(sVb), L_HV)
        self.attn_first_reads(False, sKb, sVb)
        self.s_sub_u32(s(sN), -1, s(sW))
        self.attn_seq2(self.QB, self.OB, False, sN, self.OA)
        self.attn_finish(self.OB)

    def qkv_run(self):
        ACC, ZR, WF = self.ACC, self.ZR, self.WF
        vzA, vzB, vw0, vw1 = 8, 9, 10, 11
        def wr(st, kk, T):
            r = WF + 8 * st + 4 * T; vw = (vw0, vw1)[T]
            self.ds_read_b64_tr_b16(v(r, 2), v(vw), mods=f"offset:{kk * 1024}")
            self.ds_read_b64_tr_b16(v(r + 2, 2), v(vw), mods=f"offset:{kk * 1024 + 256}")
        def body(last):
            for j in range(8):
                st = j & 1
                more = not (last and j == 7)
                mf = lambda blk, T: self.v_mfma_f32_32x32x16_bf16(v(ACC + 32 * blk + 16 * T, 16), v(WF + 8 * st + 4 * T, 4), v(ZR + 8 * j + 4 * blk, 4), v(ACC + 32 * blk + 16 * T, 16))
                self.wait(vm=((15 - 2 * j) if last else 15), lg=0)
                mf(0, 0)
                if more: wr(st ^ 1, j + 1, 0)
                mf(0, 1)
                if more: wr(st ^ 1, j + 1, 1)
                if not last: self.global_load_dwordx4(v(ZR + 8 * j, 4), v(vzA), s(sZB, 2), mods=f"offset:{(j % 4) * 1024} sc1")
                self.wait(vm=((14 - 2 * j) if last else 15))
                mf(1, 0)
                if not last and j % 4 == 3: self.v_add_u32(v(vzA), 4096, v(vzA))
                mf(1, 1)
                if not last:
                    self.global_load_dwordx4(v(ZR + 8 * j + 4, 4), v(vzB), s(sZB, 2), mods=f"offset:{(j % 4) * 1024} sc1")
                    if j % 4 == 3: self.v_add_u32(v(vzB), 4096, v(vzB))
            if not last:
                self.v_add_u32(v(vw0), 8192, v(vw0)); self.v_add_u32(v(vw1), 8192, v(vw1))
        lp = self.newlabel("qkv")
        self.s_mov_b32(s(sU), -4)
        self.label(lp)
        body(False)
        self.s_add_u32(s(sU), s(sU), 1); self.s_cbranch_scc0(lp)
        body(True)

    def op_prep(self):
        super().op_prep()
        self.s_lshr_b32(s(sU + 5), s(sU + 2), 1); self.smul(sU + 5, sU + 5, 40960)
        self.s_and_b32(s(sU + 6), s(sU + 2), 1); self.s_lshl_b32(s(sU + 6), s(sU + 6), 8); self.s_add_u32(s(sU + 5), s(sU + 5), s(sU + 6))
        self.s_and_b32(s(sU + 6), s(sS), 7); self.smul(sU + 6, sU + 6, 5120); self.s_add_u32(s(sU + 5), s(sU + 5), s(sU + 6))
        self.v_bfe_u32(v(12), v(vLANE), 3, 1); self.v_lshlrev_b32(v(12), 7, v(12))
        self.v_and_b32(v(13), 7, v(vLANE)); self.v_lshl_add_u32(v(12), v(13), 4, v(12))
        self.v_bfe_u32(v(13), v(vLANE), 4, 1); self.v_lshl_add_u32(v(12), v(13), 10, v(12))
        self.v_lshrrev_b32(v(13), 5, v(vLANE)); self.v_lshl_add_u32(v(12), v(13), 9, v(12))
        self.v_add_u32(v(12), s(sU + 5), v(12)); self.v_add_u32(v(13), 4096, v(12))
    def op_run(self):
        n0 = len(self.items); c0 = len(self.cold)
        super().op_run()
        def fix(ops, mods):
            if "offset:512" in mods: return ops, mods.replace("offset:512", "offset:2048")
            if "offset:1024" in mods: return [v(13)] + ops[1:], mods.replace("offset:1024", "").strip()
            return ops, mods
        for it in self.items[n0:]:
            if isinstance(it, Ins) and it.op == "global_store_dwordx4" and it.ops[2] == s(sAB, 2):
                it.ops, it.mods = fix(it.ops, it.mods); it.ops[2] = s(sZB, 2); it.classify()
        l1, l2, lst = self.cold[-1]
        new = []
        for e in lst:
            if e[0] == "exec": new.append(e)
            else:
                ops, mods = fix([e[1], e[2], e[3]], e[4]); new.append((e[0], ops[0], ops[1], s(sZB, 2), mods))
        self.cold[-1] = (l1, l2, new)
    def p4_prep(self):
        self.z_addr(8)
        for j in range(8, 12): self.v_mov_b32(v(self.AP + j), 0)
        self.unpack(self.XF, vX, 12)
        self.unpack(self.YF, vY, 12)
    def p4_run(self):
        n0 = len(self.items)
        super().p4_run()
        if self.o.get("wb2"):
            k = max(i for i, it in enumerate(self.items) if isinstance(it, Ins) and it.op == "s_waitcnt" and it.ops[0] == "vmcnt(0)" and i >= n0)
            lab = self.newlabel("wb")
            ins = [Ins("s_cmp_eq_u32", [s(sL), "0"]), Ins("s_cbranch_scc1", [lab]), Ins("s_cmp_lg_u32", [s(sS), "0"]), Ins("s_cbranch_scc1", [lab]),
                   Ins("s_cmp_lg_u32", [s(sW), "3"]), Ins("s_cbranch_scc1", [lab]), Ins("buffer_wbl2", [], "sc1"), ("label", lab)]
            self.items[k + 1:k + 1] = ins
        for it in self.items[n0:]:
            if isinstance(it, Ins) and it.op == "global_load_dwordx4" and it.ops[2] == s(sAB, 2):
                it.ops[2] = s(sZB, 2); it.classify()
    def pretouch_addr(self, va):
        self.v_min_u32(v(va), 79, v(vTID)); self.v_lshlrev_b32(v(va), 7, v(va))
        self.smul(sT, sG, ZG); self.smul(sT + 1, sS, 10240); self.s_add_u32(s(sT), s(sT), s(sT + 1)); self.s_add_u32(s(sT), s(sT), hex(OFF_O))
        self.v_add_u32(v(va), s(sT), v(va))

    def weights_to_mall(self):
        self.smul(sT, 2, 9600); self.v_lshlrev_b32(v(4), 4, v(vTID)); self.v_add_u32(v(4), s(sT), v(4))
        self.global_load_dwordx4(v(208, 4), v(4), s(sWQ, 2))
        self.global_load_dwordx4(v(212, 4), v(4), s(sWQ, 2), mods="offset:4080")
        self.v_min_u32(v(5), 89, v(vTID)); self.v_lshlrev_b32(v(5), 4, v(5)); self.s_add_u32(s(sT), s(sT), 8160); self.v_add_u32(v(5), s(sT), v(5))
        self.global_load_dwordx4(v(216, 4), v(5), s(sWQ, 2))
        self.smul(sT, 2, 3200); self.v_min_u32(v(5), 199, v(vTID)); self.v_lshlrev_b32(v(5), 4, v(5)); self.v_add_u32(v(5), s(sT), v(5))
        self.global_load_dwordx4(v(220, 4), v(5), s(sWO, 2))

    def startup(self):
        d2 = self.o.get("d2")
        NE = self.NE
        self.setup2()
        self.issue_x()
        self.v_mov_b32(v(87), OFF_N)
        self.global_load_dword(v(87), v(87), s(sWS, 2), mods="sc1")
        pfpos = self.o.get("pfpos", 2)
        if pfpos == 0: self.weights_to_mall()
        self.c0_issue()
        if pfpos == 1: self.weights_to_mall()
        self.stamp("issued"); self.dstamp(1) if d2 else None
        self.conv_ids()
        for r in range(4): self.v_mov_b32(v(vZERO + r), 0)
        self.v_and_b32(v(vPL), 31, v(vLANE)); self.v_lshlrev_b32(v(vPL), 7, v(vPL))
        self.s_lshl_b32(s(sT), s(sS), 7); self.v_mov_b32(v(vSO), s(sT))
        self.v_mov_b32(v(4), L_CNT); self.ds_write_b32(v(4), v(vZERO))
        self.w_addr()
        self.z_addr(8)
        self.wait(vm=16 if pfpos < 2 else 12)
        self.p0_ln()
        self.v_readfirstlane_b32(s(sTOK), v(87))
        self.s_add_u32(s(sTOK), s(sTOK), hex(NONCE_C))
        self.layer_bases2()
        self.stores_sc1(self.z_store_list(56, sZB, 8))
        lab = self.newlabel("xp")
        self.s_cmp_lg_u32(s(sW), 0); self.s_cbranch_scc1(lab)
        self.s_lshl_b32(s(sT), s(sG), 5); self.s_add_u32(s(sT), s(sT), s(sS)); self.s_lshl_b32(s(sT), s(sT), 7); self.s_add_u32(s(sT), s(sT), hex(OFF_XCC))
        self.s_add_u32(s(sT + 1), s(sTOK), s(sXCC)); self.s_add_u32(s(sT + 1), s(sT + 1), 64)
        self.v_mov_b32(v(4), s(sT)); self.v_mov_b32(v(5), s(sT + 1))
        self.setexec(1); self.global_store_dword(v(4), v(5), s(sWS, 2), mods="sc1"); self.setexec(-1)
        self.label(lab)
        self.conv_h_issue()
        if pfpos == 2: self.weights_to_mall()
        self.stamp("z0st"); self.dstamp(2) if d2 else None
        self.wait(vm=8 + 3 + (4 if pfpos == 2 else 0))
        self.c0_taps()
        self.c0_all([])
        self.s_mov_b64(s(self.sWQ2, 2), s(sWQ, 2))
        self.stamp("c0"); self.dstamp(3) if d2 else None
        self.w_issue(0, NE)
        self.wait(vm=NE); self.s_barrier()
        lab = self.newlabel("f0")
        self.s_cmp_lg_u32(s(sW), 0); self.s_cbranch_scc1(lab)
        self.v_mov_b32(v(4), s(sEXP)); self.s_add_u32(s(sT + 2), s(sTOK), 7); self.v_mov_b32(v(5), s(sT + 2))
        self.rflag_base(sT)
        self.setexec(1)
        self.global_store_dword(v(vSO), v(4), s(sFZ, 2), mods="sc1"); self.global_store_dword(v(vSO), v(5), s(sT, 2), mods="sc1")
        self.setexec(-1)
        self.label(lab)
        self.stamp("flags"); self.dstamp(4 if d2 else 1)
        NM = self.o.get("nm", 12)
        sub = K4(stamps=False, opts=self.o); sub.uid = self.uid + 200000; sub.cold = []; sub.cold2 = []
        sub.conv_fill_h()
        sub.w_zero()
        sub.s_lshl_b32(s(sT + 4), s(sW), 2); sub.lanemask(sM0, s(sT + 4), 4)
        sub.s_sub_u32(s(sT + 4), 28, s(sT + 4)); sub.lanemask(sMZ, s(sT + 4), 4); sub.s_or_b64(s(sMZ, 2), s(sMZ, 2), s(sM0, 2))
        sub.s_lshr_b32(s(sT + 4), s(sS), 3); sub.s_lshl_b32(s(sT + 4), s(sT + 4), 3); sub.lanemask(sMA, s(sT + 4), 8)
        sub.conv_addrs(); sub.wo_addr()
        self.uid = sub.uid
        self.splice_w(sub.items, range(NE, NM))
        self.s_mov_b32(s(sMO), -1); self.s_mov_b32(s(sMO + 1), 0)
        self.stamp("hfill"); self.dstamp(5) if d2 else None
        self.first_flags4()
        self.stamp("ff"); self.dstamp(6) if d2 else None
        self.conv_r_issue()
        if NM < 16:
            self.s_mov_b32(s(sSRD), s(self.sWQ2)); self.s_mov_b32(s(sSRD + 1), s(self.sWQ2 + 1))
            self.s_mov_b32(s(sSRD + 2), 640 * 1920 * 2); self.s_mov_b32(s(sSRD + 3), "0x00020000")
            for i_ in range(NM, 16): self.w_one(i_)
        self.code_prefetch(86)
        extra = 0
        if self.o.get("ptearly"):
            self.pretouch_addr(4); self.global_load_dword(v(85), v(4), s(sWS, 2), mods="nt" if self.o.get("ptnt") else ""); extra = 1
        self.w_lds(0, NM)
        self.conv_fill_r(1 + extra + 16 - NM)
        if NM < 16:
            self.wait(vm=1 + extra); self.w_lds(NM, 16); self.wait(lg=0)
        self.stamp("rfill"); self.dstamp(7) if d2 else None
        sub = K4(stamps=False, opts=self.o); sub.uid = self.uid + 100000; sub.cold = []; sub.cold2 = []
        sub.epi_prep_nolds(); sub.qkv_addr(); sub.mask_gen(False)
        self.uid = sub.uid
        self.conv_mains(sub.items)
        self.stamp("mains"); self.dstamp(8) if self.o.get("d2") else None
        self.wait(vm=32)
        self.w_lds2(16, 32)
        self.conv_tails()
        self.stamp("tails"); self.dstamp(9) if self.o.get("d2") else None
        self.qkv_zissue()
        self.v_xor_b32(v(4), 48, v(self.vSA)); self.ds_write_b64(v(4), v(88, 2))
        self.wait(vm=16, lg=0); self.s_barrier()
        self.y_flag()
        self.stamp("wlds"); self.dstamp(10 if self.o.get("d2") else 2); self._d2ok = False
        self.qkv_init()
        self.s_branch("L_QKV")

    def build(self):
        self.fallbacks = []
        self.startup()
        self.label("L_LAYER")
        self.layer_bases2()
        self.epi_prep(); self.mask_gen(False)
        self.qkv_addr(); self.qkv_init()
        self.poll2(sFZ, vPL, sEXP, sMZ)
        self.stamp("zwait")
        self.qkv_zissue()
        self.label("L_QKV")
        self.qkv_run()
        self.stamp("qkv"); self.dstamp(3, True)
        self.epi_run()
        self.stamp("epi")
        lab = self.newlabel("aux0")
        self.s_cmp_lg_u32(s(sL), 0); self.s_cbranch_scc1(lab)
        if self.o.get("ptearly"): self.s_branch(lab)
        self.pretouch_addr(4)
        self.global_load_dword(v(230), v(4), s(sWS, 2), mods="nt" if self.o.get("ptnt") else "")
        self.label(lab)
        self.attn_local()
        self.stamp("local"); self.dstamp(4, True)
        self.o_prep()
        l1path, joined = self.newlabel("l1p"), self.newlabel("joined")
        self.s_cmp_lg_u32(s(sL), 0); self.s_cbranch_scc1(l1path)
        wo1, wo2 = self.wo_stage_split()
        self.s_barrier()
        self.items += wo1
        nh = self.newlabel("nh")
        self.s_cmp_eq_u32(s(sG), 0); self.s_cbranch_scc1(nh)
        self.halo_prep()
        self.halo_issue()
        self.label(nh)
        self.y_flags_issue()
        self.items += wo2
        self.stamp("wo"); self.dstamp(5)
        self.wait(vm=0)
        self.y_flags_check()
        nh = self.newlabel("nh")
        self.s_cmp_eq_u32(s(sG), 0); self.s_cbranch_scc1(nh)
        self.halo_land(0)
        self.label(nh)
        self.wait(lg=0); self.s_barrier()
        self.y_issue()
        self.s_branch(joined)
        self.label(l1path)
        self.s_cmp_eq_u32(s(sG), 0); self.s_cbranch_scc1(joined)
        self.halo_prep()
        self.halo_issue()
        self.halo_land(0)
        self.wait(lg=0); self.s_barrier()
        self.label(joined)
        self.stamp("halof")
        nohalo = self.newlabel("nohalo")
        self.s_cmp_eq_u32(s(sG), 0); self.s_cbranch_scc1(nohalo)
        self.attn_halo()
        self.label(nohalo)
        self.stamp("halo"); self.dstamp(6, True)
        self.range_check()
        self.o_store()
        self.s_add_u32(s(sT), s(sEXP), 1); self.v_mov_b32(v(5), s(sT))
        self.signal2(sFO, 5)
        self.stamp("osig")
        lab = self.newlabel("aux2")
        self.s_cmp_lg_u32(s(sL), 0); self.s_cbranch_scc1(lab)
        self.y_finish()
        self.stamp("yld")
        self.label(lab)
        self.op_prep()
        self.s_add_u32(s(sT + 8), s(sEXP), 1)
        self.poll2(sFO, vPL, sT + 8, sMO)
        self.stamp("owait")
        self.op_run()
        self.s_add_u32(s(sT), s(sEXP), 2); self.v_mov_b32(v(5), s(sT))
        self.signal2(sFA, 5)
        self.stamp("asig"); self.dstamp(7, True)
        if self.o.get("wb"):
            lab = self.newlabel("wb")
            self.s_cmp_eq_u32(s(sL), 0); self.s_cbranch_scc1(lab)
            self.s_cmp_lg_u32(s(sS), 0); self.s_cbranch_scc1(lab)
            self.s_cmp_lg_u32(s(sW), 3); self.s_cbranch_scc1(lab)
            self.I("buffer_wbl2", mods="sc1")
            self.label(lab)
        self.p4_prep()
        self.s_add_u32(s(sT + 8), s(sEXP), 2)
        self.poll2(sFA, vPL, sT + 8, sMA)
        self.stamp("await")
        self.p4_run()
        self.s_cmp_lg_u32(s(sL), 0); self.s_cbranch_scc1("L_FINAL")
        self.p4_z()
        self.stores(self.z_store_list(56, sZN, 8))
        self.pack(vX, self.XF, 12)
        self.s_add_u32(s(sT), s(sEXP), 3); self.v_mov_b32(v(5), s(sT))
        self.signal2(sFN, 5)
        self.stamp("p4")
        self.s_mov_b32(s(sL), 1)
        self.s_branch("L_LAYER")
        self.label("L_FINAL")
        self.pack(vX, self.XF, 12)
        self.out_store()
        if self.o.get("span"):
            self.wait(vm=0); self.stamps = True
        self.stamp("end")
        self.dflush()
        return self.finish()

if __name__ == "__main__":
    import argparse
    ap = argparse.ArgumentParser()
    ap.add_argument("-o", default="k4.s"); ap.add_argument("--stamps", action="store_true")
    ap.add_argument("--slow", action="store_true"); ap.add_argument("-v", action="store_true"); ap.add_argument("--opt", default="")
    a_ = ap.parse_args()
    k = K4(stamps=a_.stamps, opts=dict({"force_slow": a_.slow}, **{x.split("=")[0]: (int(x.split("=")[1]) if "=" in x else 1) for x in a_.opt.split(",") if x}))
    k.build()
    ins = k.fix_all(verbose=a_.v)
    open(a_.o, "w").write(render_file(k))
    n = sum(1 for it in k.items if isinstance(it, Ins))
    print("instructions:", n, "nops inserted:", len(ins), "stamps:", ",".join(k.stamp_names))
```

```python
import sys, math
from asm import *
import kern2 as K2M
from kern2 import *
from kern2 import (sEXP, sHEXP, sFZ, sFO, sFA, sFN, sZB, sOB, sAB, sHB, sHP, sZN, sHFO, sHFI, sMZ, sMO, sMA, vL8, vPL, vZERO, vSO,
                   OFF_FL2, L_CNT)

class K4(K2):
    CD, CDV, C2D, C2DV, CR, C2R, CE, C2E = 168, 186, 188, 194, 196, 204, 112, 120
    CH0, CH1, CH2 = L_K, L_K + 24832, L_HK
    sB1, sCH1, sHW, sCH2 = sU + 8, sU + 9, sU + 10, sU + 11
    vA1, vB1, vA2, vB2, vR1, vR2 = 74, 75, 76, 77, 70, 71
    C0T, C0TAP = L_W, L_W + 12288
    @property
    def WOL(self): return (0, 100) if self.o.get("wolate") else (64, 128)
    vWG = 78
    sWQ2 = sU + 12
    @property
    def N_C0(self): return 0

    def c0_issue(self):
        KP, VP, RG, CC = self.CKP, self.CVP, self.CRG, self.CCC
        self.s_mov_b32(s(sSRD), s(sBK)); self.s_mov_b32(s(sSRD + 1), s(sBK + 1))
        self.s_mov_b32(s(sSRD + 2), 2048 * 1280); self.s_mov_b32(s(sSRD + 3), "0x00020000")
        self.v_min_u32(v(4), 159, v(vTID))
        self.v_mul_u32_u24(v(RG), 6554, v(4)); self.v_lshrrev_b32(v(RG), 16, v(RG))
        self.v_mul_u32_u24(v(CC), 10, v(RG)); self.v_sub_u32(v(CC), v(4), v(CC))
        self.s_lshl_b32(s(sT), s(sS), 6); self.s_sub_u32(s(sT), s(sT), 3)
        self.v_lshl_add_u32(v(4), v(RG), 2, s(sT))
        self.s_mov_b32(s(sT + 1), 1280); self.v_mul_lo_u32(v(4), s(sT + 1), v(4))
        self.smul(sT + 2, sG, 160); self.v_lshl_add_u32(v(5), v(CC), 4, s(sT + 2)); self.v_add_u32(v(4), v(4), v(5))
        for j in range(7):
            self.buffer_load_dwordx4(v(KP + 4 * j, 4), v(4), s(sSRD, 4), 0, mods="offen")
            if j == 2: self.v_add_u32(v(5), 1280, v(4))
            if j < 6: self.v_add_u32(v(4), 1280, v(4))
        self.s_mov_b32(s(sSRD), s(sBV)); self.s_mov_b32(s(sSRD + 1), s(sBV + 1))
        for j in range(4):
            self.buffer_load_dwordx4(v(VP + 4 * j, 4), v(5), s(sSRD, 4), 0, mods="offen")
            if j < 3: self.v_add_u32(v(5), 1280, v(5))
        self.smul(sT + 2, sG, 640); self.v_min_u32(v(4), 39, v(vLANE)); self.v_lshl_add_u32(v(4), v(4), 4, s(sT + 2))
        self.global_load_dwordx4(v(self.CTP, 4), v(4), s(sSH, 2))
    def c0_taps(self):
        self.v_min_u32(v(4), 39, v(vLANE)); self.v_lshlrev_b32(v(4), 4, v(4)); self.v_add_u32(v(4), self.C0TAP, v(4))
        self.ds_write_b128(v(4), v(self.CTP, 4))
        self.v_lshlrev_b32(v(5), 6, v(self.CCC)); self.v_add_u32(v(5), self.C0TAP, v(5))
        self.wait(lg=0); self.s_barrier()
        for j in range(4): self.ds_read_b128(v(self.CSP + 4 * j, 4), v(5), mods=f"offset:{16 * j}")
    def c0_all(self, splice):
        n0 = len(self.items)
        self.c0_compute(splice); self.c0_tail()
        for it in self.items[n0:]:
            if isinstance(it, Ins) and it.op == "v_add_u32":
                if it.ops[1] == str(L_K + 120): it.ops[1] = str(self.C0T + 120)
                elif it.ops[1] == str(L_K): it.ops[1] = str(self.C0T)

    def conv_ids(self):
        self.s_lshr_b32(s(sT), s(sW), 1); self.smul(self.sB1, sT, 24832); self.s_add_u32(s(self.sB1), s(self.sB1), L_K)
        self.smul(sT + 1, sG, 80); self.s_lshl_b32(s(self.sCH1), s(sS), 1); self.s_add_u32(s(self.sCH1), s(self.sCH1), s(sT + 1))
        self.s_add_u32(s(self.sCH1), s(self.sCH1), s(sT)); self.s_and_b32(s(self.sHW), s(sW), 1)
        self.s_lshr_b32(s(self.sCH2), s(sS), 1); self.s_add_u32(s(self.sCH2), s(self.sCH2), s(sT + 1)); self.s_add_u32(s(self.sCH2), s(self.sCH2), 64)
    def conv_h_issue(self):
        D = self.CD
        self.conv_srd()
        self.s_lshl_b32(s(sT + 3), s(self.sCH1), 12)
        self.v_and_b32(v(4), 127, v(vTID)); self.v_lshlrev_b32(v(4), 4, v(4))
        for i in range(2):
            self.buffer_load_dwordx4(v(D + 8 * i, 4), v(4), s(sSRD, 4), s(sT + 3), mods=f"offen offset:{2048 * i}")
            self.buffer_load_dwordx2(v(D + 8 * i + 4, 2), v(4), s(sSRD, 4), s(sT + 3), mods=f"offen offset:{2048 * i + 16}")
        self.s_lshr_b32(s(sT + 4), s(self.sCH1), 1); self.s_lshl_b32(s(sT + 4), s(sT + 4), 2); self.v_mov_b32(v(5), s(sT + 4))
        self.global_load_dword(v(self.CDV), v(5), s(sSD, 2))
        self.s_lshl_b32(s(sT + 3), s(self.sCH2), 12)
        self.v_lshlrev_b32(v(4), 4, v(vTID))
        self.buffer_load_dwordx4(v(self.C2D, 4), v(4), s(sSRD, 4), s(sT + 3), mods="offen")
        self.buffer_load_dwordx2(v(self.C2D + 4, 2), v(4), s(sSRD, 4), s(sT + 3), mods="offen offset:16")
        self.s_lshr_b32(s(sT + 4), s(self.sCH2), 1); self.s_lshl_b32(s(sT + 4), s(sT + 4), 2); self.v_mov_b32(v(5), s(sT + 4))
        self.global_load_dword(v(self.C2DV), v(5), s(sSD, 2))
    def conv_fill_h(self):
        sB1 = self.sB1
        self.v_and_b32(v(8), 127, v(vTID)); self.v_lshlrev_b32(v(9), 4, v(8)); self.v_add_u32(v(11), s(sB1), v(9))
        self.ds_write_b128(v(11), v(vZERO, 4), mods=f"offset:{16640 + 320 * 16}")
        self.v_and_b32(v(16), 63, v(8)); self.v_lshlrev_b32(v(16), 4, v(16)); self.v_add_u32(v(16), s(sB1), v(16))
        self.ds_write_b128(v(16), v(vZERO, 4), mods=f"offset:{16640 + 448 * 16}")
        self.v_add_u32(v(11), 64, v(11))
        self.v_lshrrev_b32(v(self.vR1), 2, v(8)); self.v_add_u32(v(self.vR1), v(self.vR1), v(8)); self.v_lshlrev_b32(v(self.vR1), 4, v(self.vR1))
        self.v_add_u32(v(self.vR1), s(sB1), v(self.vR1))
        for i in range(2): self.conv_copies(11, self.CD + 8 * i, self.CE + 4 * i, 2048 * i)
        self.v_min_u32(v(16), 191, v(vTID)); self.v_lshlrev_b32(v(16), 4, v(16)); self.v_add_u32(v(16), self.CH2, v(16))
        self.ds_write_b128(v(16), v(vZERO, 4), mods=f"offset:{16640 + 320 * 16}")
        self.v_lshlrev_b32(v(11), 4, v(vTID)); self.v_add_u32(v(11), self.CH2 + 64, v(11))
        self.v_lshrrev_b32(v(self.vR2), 2, v(vTID)); self.v_add_u32(v(self.vR2), v(self.vR2), v(vTID)); self.v_lshlrev_b32(v(self.vR2), 4, v(self.vR2))
        self.v_add_u32(v(self.vR2), self.CH2, v(self.vR2))
        self.conv_copies(11, self.C2D, self.C2E, 0)
        lab = self.newlabel("hd")
        self.s_cmp_lg_u32(s(self.sHW), 0); self.s_cbranch_scc1(lab)
        self.conv_head(sB1, self.sCH1, self.CD, self.CDV)
        self.label(lab)
        lab = self.newlabel("hd")
        self.s_cmp_lg_u32(s(sW), 0); self.s_cbranch_scc1(lab)
        self.s_mov_b32(s(sT + 10), self.CH2)
        self.conv_head(sT + 10, self.sCH2, self.C2D, self.C2DV)
        self.label(lab)
    def conv_addr2(self, va, vb, sbase, sstep0):
        self.v_and_b32(v(10), 3, v(vLANE)); self.v_mul_u32_u24(v(10), 4160, v(10))
        self.v_bfe_u32(v(11), v(vLANE), 2, 3); self.v_lshl_add_u32(v(10), v(11), 3, v(10))
        self.v_lshrrev_b32(v(11), 5, v(vLANE)); self.v_lshl_add_u32(v(10), v(11), 4, v(10))
        self.s_lshl_b32(s(sT + 6), s(sstep0), 5); self.s_add_u32(s(sT + 6), s(sT + 6), s(sbase)); self.v_add_u32(v(va), s(sT + 6), v(10))
        self.v_and_b32(v(10), 31, v(vLANE)); self.v_sub_u32(v(10), 31, v(10)); self.v_mul_u32_u24(v(10), 5, v(10))
        self.v_add_u32(v(10), v(10), v(11)); self.v_lshlrev_b32(v(10), 4, v(10))
        self.smul(sT + 6, sstep0, 40); self.s_add_u32(s(sT + 6), s(sT + 6), s(sbase)); self.s_add_u32(s(sT + 6), s(sT + 6), 16640)
        self.v_add_u32(v(vb), s(sT + 6), v(10))
    def conv_addrs(self):
        self.s_lshl_b32(s(sT + 5), s(self.sHW), 5); self.conv_addr2(self.vA1, self.vB1, self.sB1, sT + 5)
        self.s_mov_b32(s(sT + 10), self.CH2); self.s_lshl_b32(s(sT + 5), s(sW), 4); self.conv_addr2(self.vA2, self.vB2, sT + 10, sT + 5)
    def conv_r_issue(self):
        self.s_lshl_b32(s(sT + 3), s(self.sCH1), 12); self.s_add_u32(s(sT + 3), s(sT + 3), hex(OFF_R))
        self.v_and_b32(v(4), 127, v(vTID)); self.v_lshl_add_u32(v(4), v(4), 4, s(sT + 3))
        self.global_load_dwordx4(v(self.CR, 4), v(4), s(sWS, 2), mods="sc1")
        self.global_load_dwordx4(v(self.CR + 4, 4), v(4), s(sWS, 2), mods="offset:2048 sc1")
        self.s_lshl_b32(s(sT + 3), s(self.sCH2), 12); self.s_add_u32(s(sT + 3), s(sT + 3), hex(OFF_R))
        self.v_lshl_add_u32(v(4), v(vTID), 4, s(sT + 3))
        self.global_load_dwordx4(v(self.C2R, 4), v(4), s(sWS, 2), mods="sc1")
    def conv_fill_r(self, younger):
        self.wait(vm=1 + younger)
        self.ds_write_b128(v(self.vR1), v(self.CR, 4), mods="offset:16640"); self.ds_write_b128(v(self.vR1), v(self.CR + 4, 4), mods=f"offset:{16640 + 160 * 16}")
        self.wait(vm=younger)
        self.ds_write_b128(v(self.vR2), v(self.C2R, 4), mods="offset:16640")
        self.wait(lg=0); self.s_barrier()

    NE = 6
    def w_one2(self, i):
        self.s_mov_b32(s(sT + 3), i * 5 * 3840)
        self.s_mov_b64("exec", s(sM1, 2))
        self.buffer_load_dwordx4(a(4 * (i - 16), 4), v(90), s(sSRD, 4), s(sT + 3), mods="offen")
        self.setexec(-1)
    def w_lds2(self, lo, hi):
        m128 = sum(1 << l for l in range(60) if (l & 3) < 2); m64 = sum(1 << l for l in range(60) if (l & 3) == 2)
        self.setexec(m128)
        for i in range(lo, hi): self.ds_write_b128(v(91), a(4 * (i - 16), 4), mods=f"offset:{320 * i}")
        self.setexec(m64)
        for i in range(lo, hi): self.ds_write_b64(v(91), a(4 * (i - 16), 2), mods=f"offset:{320 * i}")
        self.setexec(-1)

    LO, HI, AC, F = 16, 32, 48, 96
    def conv_mains(self, extra):
        LO, HI, AC, F = self.LO, self.HI, self.AC, self.F
        vA, vB = self.vA1, self.vB1
        def rd(m):
            f = F + 16 * (m & 3); oa = 32 * m; ob = 80 * (m >> 1) + 32 * (m & 1)
            return [lambda: self.ds_read_b64(v(f, 2), v(vA), mods=f"offset:{oa}"), lambda: self.ds_read_b64(v(f + 2, 2), v(vA), mods=f"offset:{oa + 8}"),
                    lambda: self.ds_read_b128(v(f + 8, 4), v(vB), mods=f"offset:{ob + 2560}"), lambda: self.ds_read_b128(v(f + 12, 4), v(vB), mods=f"offset:{ob}"),
                    lambda: self.ds_read_b64(v(f + 4, 2), v(vA), mods=f"offset:{oa + 2048}"), lambda: self.ds_read_b64(v(f + 6, 2), v(vA), mods=f"offset:{oa + 2056}")]
        self.zero16(LO); self.zero16(HI); self.zero16(AC)
        self.s_mov_b32(s(sM1), hex(self.WM & 0xffffffff)); self.s_mov_b32(s(sM1 + 1), hex(self.WM >> 32))
        self.s_mov_b32(s(sSRD), s(self.sWQ2)); self.s_mov_b32(s(sSRD + 1), s(self.sWQ2 + 1))
        self.s_mov_b32(s(sSRD + 2), 640 * 1920 * 2); self.s_mov_b32(s(sSRD + 3), "0x00020000")
        pieces = [[] for _ in range(32)]
        n = sum(1 for it in extra if isinstance(it, Ins)); per = max(1, -(-n // 30)); k = 0; cnt = 0; full = True; inbr = set()
        for it in extra:
            if isinstance(it, Ins):
                if cnt >= per and full and not inbr and k < 31: k += 1; cnt = 0
                if it.ops and it.ops[0] in ("exec", "exec_lo", "exec_hi"): full = (it.op == "s_mov_b64" and it.ops[1] == "-1")
                if it.kind == "branch": inbr.add(it.target)
                cnt += 1
            elif it[0] == "label": inbr.discard(it[1])
            pieces[k].append(it)
        for m in (0, 1):
            for f_ in rd(m): f_()
        for m in range(32):
            f = F + 16 * (m & 3)
            nx = rd(m + 2) if m + 2 < 32 else [lambda: None] * 6
            self.wait(lg=6 if m < 31 else 0)
            self.v_mfma_f32_32x32x16_bf16(v(LO, 16), v(f, 4), v(f + 8, 4), v(LO, 16)); nx[0](); nx[1]()
            self.v_mfma_f32_32x32x16_bf16(v(HI, 16), v(f, 4), v(f + 12, 4), v(HI, 16)); nx[2](); nx[3]()
            self.items += pieces[m]
            self.v_mfma_f32_32x32x16_bf16(v(HI, 16), v(f + 4, 4), v(f + 8, 4), v(HI, 16)); nx[4](); nx[5]()
            if m < 16: self.w_one2(16 + m)
            elif not self.o.get("wolate"):
                if m == 16: self.wo_srd()
                self.wo_issue_one(m - 16)
        vA, vB = self.vA2, self.vB2
        lhi, ldone = self.newlabel("c2hi"), self.newlabel("c2d")
        self.s_and_b32(s(sT + 5), s(sS), 1); self.s_cbranch_scc1(lhi)
        for hi in (0, 1):
            if hi: self.label(lhi)
            nrd = 5 if hi else 3
            def rd2(m):
                f = F + 16 * (m & 3); oa = 32 * m; ob = 80 * (m >> 1) + 32 * (m & 1)
                l = [lambda: self.ds_read_b64(v(f, 2), v(vA), mods=f"offset:{oa}"), lambda: self.ds_read_b64(v(f + 2, 2), v(vA), mods=f"offset:{oa + 8}"),
                     lambda: self.ds_read_b128(v(f + 8, 4), v(vB), mods=f"offset:{ob + 2560}")]
                if hi:
                    l += [lambda: self.ds_read_b128(v(f + 12, 4), v(vB), mods=f"offset:{ob}"),
                          lambda: self.ds_read_b64(v(f + 4, 2), v(vA), mods=f"offset:{oa + 2048}"), lambda: self.ds_read_b64(v(f + 6, 2), v(vA), mods=f"offset:{oa + 2056}")]
                return l
            nr = 6 if hi else 3
            for m in (0, 1):
                for f_ in rd2(m): f_()
            for m in range(16):
                f = F + 16 * (m & 3)
                nx = rd2(m + 2) if m + 2 < 16 else [lambda: None] * nr
                self.wait(lg=nr if m < 15 else 0)
                if hi:
                    self.v_mfma_f32_32x32x16_bf16(v(AC, 16), v(f, 4), v(f + 12, 4), v(AC, 16)); nx[0](); nx[1](); nx[2]()
                    self.v_mfma_f32_32x32x16_bf16(v(AC, 16), v(f + 4, 4), v(f + 8, 4), v(AC, 16)); nx[3](); nx[4](); nx[5]()
                else:
                    self.v_mfma_f32_32x32x16_bf16(v(AC, 16), v(f, 4), v(f + 8, 4), v(AC, 16)); nx[0](); nx[1](); nx[2]()
                if not self.o.get("wolate"): self.wo_issue_one(16 + m)
            if not hi: self.s_branch(ldone)
        self.label(ldone)

    def conv_tails_addr(self):
        LO, HI, AC, F = self.LO, self.HI, self.AC, self.F
        X1, X2, TO1, TO2 = self.CH0, self.CH1, self.CH2, self.CH2 + 8192
        self.s_lshl_b32(s(sT + 8), s(sW), 12); self.v_add_u32(v(64), s(sT + 8), v(vL16))
        self.s_xor_b32(s(sT + 9), s(sW), 1); self.s_lshl_b32(s(sT + 9), s(sT + 9), 12); self.s_add_u32(s(sT + 9), s(sT + 9), X1); self.v_add_u32(v(67), s(sT + 9), v(vL16))
        self.v_add_u32(v(66), X1, v(64)); self.v_add_u32(v(65), X2, v(64))
        self.s_lshl_b32(s(sT + 8), s(sW), 10); self.s_add_u32(s(sT + 8), s(sT + 8), X2); self.v_add_u32(v(64), s(sT + 8), v(vL16))
        self.v_and_b32(v(70), 31, v(vLANE)); self.v_lshlrev_b32(v(70), 6, v(70))
        self.v_lshrrev_b32(v(71), 5, v(vLANE)); self.v_lshl_add_u32(v(70), v(71), 3, v(70))
        self.s_lshl_b32(s(sT + 8), s(sW), 11); self.s_add_u32(s(sT + 8), s(sT + 8), TO1); self.v_add_u32(v(71), s(sT + 8), v(70)); self.v_add_u32(v(72), s(sT + 8), v(vL16))
        self.s_lshl_b32(s(sT + 8), s(sW), 4); self.s_add_u32(s(sT + 8), s(sT + 8), TO2); self.v_add_u32(v(70), s(sT + 8), v(70))
        self.s_lshl_b32(s(sT + 8), s(self.sHW), 11); self.s_lshl_b32(s(sT + 9), s(self.sCH1), 12); self.s_add_u32(s(sT + 8), s(sT + 8), s(sT + 9))
        self.s_add_u32(s(sT + 8), s(sT + 8), hex(OFF_Y)); self.v_add_u32(v(73), s(sT + 8), v(vL16))
    def conv_tails(self):
        LO, HI, AC, F = self.LO, self.HI, self.AC, self.F
        X1, X2, TO1, TO2 = self.CH0, self.CH1, self.CH2, self.CH2 + 8192
        self.s_barrier()
        l1, l2 = self.newlabel("cx"), self.newlabel("cy")
        self.s_cmp_lg_u32(s(self.sHW), 0); self.s_cbranch_scc1(l1)
        for q in range(4): self.ds_write_b128(v(66), v(HI + 4 * q, 4), mods=f"offset:{1024 * q}")
        self.s_branch(l2)
        self.label(l1)
        for q in range(4): self.ds_write_b128(v(66), v(LO + 4 * q, 4), mods=f"offset:{1024 * q}")
        self.label(l2)
        for q in range(4): self.ds_write_b128(v(65), v(AC + 4 * q, 4), mods=f"offset:{1024 * q}")
        self.wait(lg=0); self.s_barrier()
        for q in range(4): self.ds_read_b128(v(F + 4 * q, 4), v(67), mods=f"offset:{1024 * q}")
        for q in range(4): self.ds_read_b128(v(F + 16 + 4 * q, 4), v(64), mods=f"offset:{4096 * q}")
        l1, l2 = self.newlabel("cx"), self.newlabel("cy")
        self.s_cmp_lg_u32(s(self.sHW), 0); self.s_cbranch_scc1(l1)
        for role, keep in enumerate((LO, HI)):
            if role: self.label(l1)
            for q in range(4):
                self.wait(lg=7 - q)
                for r in (0, 2): self.v_pk_add_f32(v(keep + 4 * q + r, 2), v(keep + 4 * q + r, 2), v(F + 4 * q + r, 2))
                self.pack(F + 32 + 2 * q, keep + 4 * q, 2)
            if role == 0: self.s_branch(l2)
        self.label(l2)
        for q in range(4): self.ds_write_b64(v(71), v(F + 32 + 2 * q, 2), mods=f"offset:{16 * q}")
        self.wait(lg=4)
        G = F + 16
        for r in (0, 2):
            self.v_pk_add_f32(v(G + r, 2), v(G + r, 2), v(G + 4 + r, 2)); self.v_pk_add_f32(v(G + 8 + r, 2), v(G + 8 + r, 2), v(G + 12 + r, 2))
        for r in (0, 2): self.v_pk_add_f32(v(G + r, 2), v(G + r, 2), v(G + 8 + r, 2))
        self.pack(F + 40, G, 2)
        self.ds_write_b64(v(70), v(F + 40, 2))
        self.ds_read_b128(v(LO, 4), v(72)); self.ds_read_b128(v(LO + 4, 4), v(72), mods="offset:1024")
        self.s_and_b32(s(sT + 6), s(sS), 1); self.s_lshl_b32(s(sT + 6), s(sT + 6), 11); self.s_lshl_b32(s(sT + 7), s(self.sCH2), 12)
        self.s_add_u32(s(sT + 6), s(sT + 6), s(sT + 7)); self.s_add_u32(s(sT + 6), s(sT + 6), hex(OFF_Y))
        self.wait(lg=0)
        self.global_store_dwordx4(v(73), v(LO, 4), s(sWS, 2), mods="sc1")
        self.global_store_dwordx4(v(73), v(LO + 4, 4), s(sWS, 2), mods="offset:1024 sc1")
        self.s_barrier()
        self.v_and_b32(v(67), 127, v(vTID)); self.v_lshlrev_b32(v(67), 4, v(67))
        self.v_add_u32(v(66), TO2, v(67)); self.v_add_u32(v(65), s(sT + 6), v(67))
        self.ds_read_b128(v(LO + 8, 4), v(66))
        self.wait(lg=0)
        self.global_store_dwordx4(v(65), v(LO + 8, 4), s(sWS, 2), mods="sc1")

    def first_flags4(self):
        self.s_lshl_b32(s(sT), s(sG), 12); self.s_add_u32(s(sT + 1), s(sT), hex(OFF_XCC)); self.s_add_u32(s(sT), s(sT), hex(OFF_FL2 + 6 * 8 * 4096))
        self.v_mov_b32(v(16), s(sT + 1)); self.v_mov_b32(v(17), s(sT))
        self.s_mov_b32(s(sM1), 0); self.s_mov_b32(s(sM1 + 1), -1)
        self.v_cndmask_b32(v(16), v(16), v(17), s(sM1, 2)); self.v_add_u32(v(16), v(16), v(vPL))
        self.s_add_u32(s(sT + 2), s(sTOK), 64); self.s_add_u32(s(sT + 3), s(sTOK), 7)
        self.v_mov_b32(v(17), s(sT + 2)); self.v_mov_b32(v(18), s(sT + 3)); self.v_cndmask_b32(v(17), v(17), v(18), s(sM1, 2))
        self.v_mov_b32(v(18), 16); self.v_cndmask_b32(v(18), v(18), 1, s(sM1, 2))
        lp, dn = self.newlabel("xpoll"), self.newlabel("xpolld")
        self.label(lp)
        self.global_load_dword(v(5), v(16), s(sWS, 2), mods="sc1")
        self.s_cmp_eq_u32(s(sTO), 0); self.s_cbranch_scc1(dn)
        self.s_sub_u32(s(sTO), s(sTO), 1)
        self.wait(vm=0)
        self.v_sub_u32(v(5), v(5), v(17))
        self.v_cmp_le_u32("vcc", v(18), v(5))
        self.s_cmp_lg_u64("vcc", 0); self.s_cbranch_scc1(lp)
        self.label(dn)
        self.v_cmp_ne_u32("vcc", s(sXCC), v(5))
        self.s_and_b32(s(sT), "vcc_lo", -1)
        self.s_cselect_b32(s(sMODE), 1, 0)
        if self.o.get("force_slow"): self.s_mov_b32(s(sMODE), 1)

    def epi_prep_nolds(self):
        n0 = len(self.items)
        self.epi_prep()
        self.items[n0:] = [it for it in self.items[n0:] if not (isinstance(it, Ins) and it.op == "ds_write_b64")]

    def wo_stage_split(self):
        sub = K4(stamps=False, opts=self.o); sub.uid = self.uid + 300000; sub.cold = []; sub.cold2 = []
        sub.y_flag = lambda: None
        K2.wo_stage(sub)
        self.uid = sub.uid
        bars = [k for k, it in enumerate(sub.items) if isinstance(it, Ins) and it.op == "s_barrier"]
        cut = bars[1] + 1
        first = [it for it in sub.items[:cut] if not (isinstance(it, Ins) and it.op == "s_waitcnt" and it.ops[0] == "vmcnt(0)")]
        return first, sub.items[cut:]

    YR = 140
    def y_flags_issue(self):
        self.v_lshlrev_b32(v(4), 7, v(vTID)); self.v_add_u32(v(4), OFF_YFL, v(4))
        self.global_load_dword(v(156), v(4), s(sWS, 2), mods="sc1")
    def y_flags_check(self):
        ok = self.newlabel("yok")
        self.s_add_u32(s(sT + 1), s(sTOK), 32)
        self.v_cmp_ne_u32("vcc", s(sT + 1), v(156)); self.s_cmp_eq_u64("vcc", 0); self.s_cbranch_scc1(ok)
        self.v_lshlrev_b32(v(8), 7, v(vTID)); self.v_add_u32(v(8), OFF_YFL, v(8)); self.s_mov_b64(s(sT + 2, 2), -1)
        self.poll2(sWS, 8, sT + 1, sT + 2)
        self.label(ok)
    def y_issue(self):
        YR = self.YR
        lab = self.newlabel("nu")
        self.s_cmp_lg_u32(s(2), 0); self.s_cbranch_scc1(lab)
        self.s_cmp_lg_u32(s(sW), 0); self.s_cbranch_scc1(lab)
        self.v_mov_b32(v(8), OFF_N); self.v_mov_b32(v(9), s(sTOK))
        self.setexec(1); self.global_store_dword(v(8), v(9), s(sWS, 2), mods="sc1"); self.setexec(-1)
        self.label(lab)
        self.s_lshl_b32(s(sU), s(sG), 8); self.s_lshl_b32(s(sU + 1), s(sS), 3); self.s_add_u32(s(sU), s(sU), s(sU + 1)); self.s_lshl_b32(s(sU), s(sU), 1)
        self.s_add_u32(s(sU), s(sU), hex(OFF_Y))
        self.v_lshlrev_b32(v(8), 12, v(vTID)); self.v_add_u32(v(8), s(sU), v(8))
        self.global_load_dwordx4(v(YR, 4), v(8), s(sWS, 2), mods="sc1")
        self.v_add_u32(v(9), 256 * 4096, v(8)); self.global_load_dwordx4(v(YR + 4, 4), v(9), s(sWS, 2), mods="sc1")
        self.v_and_b32(v(9), 127, v(vTID)); self.v_lshlrev_b32(v(9), 12, v(9)); self.v_add_u32(v(9), s(sU), v(9)); self.v_add_u32(v(9), 512 * 4096, v(9))
        self.global_load_dwordx4(v(YR + 8, 4), v(9), s(sWS, 2), mods="sc1")
    def y_finish(self):
        YR, LY = self.YR, L_SP
        self.v_and_b32(v(10), 7, v(vTID)); self.v_mul_u32_u24(v(10), 320, v(10))
        self.v_lshrrev_b32(v(11), 3, v(vTID)); self.v_lshl_add_u32(v(10), v(11), 2, v(10)); self.v_add_u32(v(10), LY, v(10))
        for i in range(2):
            for w in range(4): self.ds_write_b32(v(10), v(YR + 4 * i + w), mods=f"offset:{2560 * w + 128 * i}")
        lab = self.newlabel("yl")
        self.s_cmp_ge_u32(s(sW), 2); self.s_cbranch_scc1(lab)
        for w in range(4): self.ds_write_b32(v(10), v(YR + 8 + w), mods=f"offset:{2560 * w + 256}")
        self.label(lab)
        self.smul(sU, sW, 2560); self.s_add_u32(s(sU), s(sU), LY)
        self.v_bfe_u32(v(10), v(vLANE), 2, 2); self.v_mul_u32_u24(v(10), 320, v(10))
        self.v_lshrrev_b32(v(11), 4, v(vLANE)); self.v_lshl_add_u32(v(10), v(11), 5, v(10))
        self.v_and_b32(v(11), 3, v(vLANE)); self.v_lshl_add_u32(v(10), v(11), 3, v(10)); self.v_add_u32(v(10), s(sU), v(10))
        self.wait(lg=0); self.s_barrier()
        for m in range(3):
            self.ds_read_b64_tr_b16(v(vY + 4 * m, 2), v(10), mods=f"offset:{128 * m}")
            self.ds_read_b64_tr_b16(v(vY + 4 * m + 2, 2), v(10), mods=f"offset:{128 * m + 4 * 320}")
        self.wait(lg=0)
        self.setexec(0xffffffff00000000)
        for j in range(8, 12): self.v_mov_b32(v(vY + j), 0)
        self.setexec(-1)

    def wo_range(self, lo, hi):
        lab = self.newlabel("wb")
        self.s_cmp_lg_u32(s(sL), 0); self.s_cbranch_scc1(lab)
        self.wo_srd()
        for n in range(lo, hi): self.wo_issue_one(n)
        self.label(lab)
    def wo_batch(self, b):
        self.wo_srd()
        for n in range(8 * b, 8 * b + 8): self.wo_issue_one(n)
    def wo_batch_l0(self, b):
        lab = self.newlabel("wb")
        self.s_cmp_lg_u32(s(sL), 0); self.s_cbranch_scc1(lab)
        self.wo_batch(b)
        self.label(lab)
    def attn_first_reads(self, desc, sKblk, sVblk):
        vk, vk1, vv = 8, 9, 10
        if desc:
            self.s_sub_u32(s(sT), s(sKblk), 4608); self.s_sub_u32(s(sT + 1), s(sVblk), 4096)
            oK0, oK1, oV0 = 4608, 3072, 4096
        else:
            self.s_mov_b32(s(sT), s(sKblk)); self.s_mov_b32(s(sT + 1), s(sVblk))
            oK0, oK1, oV0 = 0, 1536, 0
        self.v_add_u32(v(vk), s(sT), v(vL16)); self.v_add_u32(v(vk1), s(sT), v(vL8)); self.v_add_u32(v(vv), s(sT + 1), v(vL16))
        self.ds_read_b128(v(self.KP0, 4), v(vk), mods=f"offset:{oK0}"); self.ds_read_b64(v(self.KP1, 2), v(vk1), mods=f"offset:{oK0 + 1024}")
        self.ds_read_b128(v(self.KF0, 4), v(vk), mods=f"offset:{oK1}"); self.ds_read_b64(v(self.KF1, 2), v(vk1), mods=f"offset:{oK1 + 1024}")
        self.ds_read_b128(v(self.VF0, 4), v(vv), mods=f"offset:{oV0}")
    def attn_seq2(self, Q, O, desc, sCNT, pending):
        SA, SB, PP, KF0, KF1, VF0, VF1, MSK, KP0, KP1 = self.SA, self.SB, self.PP, self.KF0, self.KF1, self.VF0, self.VF1, self.MSK, self.KP0, self.KP1
        vk, vk1, vv = 8, 9, 10
        if pending is not None:
            self.wait(lg=5)
            self.v_mfma_f32_32x32x16_bf16(v(pending, 16), v(VF1, 4), v(PP + 4, 4), v(pending, 16))
        self.wait(lg=3)
        self.v_mfma_f32_32x32x16_bf16(v(SA, 16), v(KP0, 4), v(Q, 4), v(MSK, 16))
        self.v_mfma_f32_32x32x8_bf16(v(SA, 16), v(KP1, 2), v(Q + 4, 2), v(SA, 16))
        self.wait(lg=1)
        self.s_nop(8)
        lp, ex, first = self.newlabel("att"), self.newlabel("attx"), self.newlabel("attf")
        self.s_branch(first)
        def body(S, Sn, entry, par):
            if desc:
                oK = 1536 if par == 0 else 0
                oV1 = (4096 if par == 0 else 2048) + 1024
                oV0 = 2048 if par == 0 else 0
            else:
                oK = 3072 if par == 0 else 4608
                oV1 = (0 if par == 0 else 2048) + 1024
                oV0 = 2048 if par == 0 else 4096
            self.wait(lg=1)
            self.v_mfma_f32_32x32x16_bf16(v(O, 16), v(VF1, 4), v(PP + 4, 4), v(O, 16))
            if entry: self.label(entry)
            self.ds_read_b128(v(VF1, 4), v(vv), mods=f"offset:{oV1}")
            for e in range(4): self.v_exp_f32(v(S + e), v(S + e))
            self.v_cvt_pk_bf16_f32(v(PP), v(S), v(S + 1)); self.v_cvt_pk_bf16_f32(v(PP + 1), v(S + 2), v(S + 3))
            self.v_mfma_f32_32x32x16_bf16(v(Sn, 16), v(KF0, 4), v(Q, 4), 0)
            self.ds_read_b128(v(KF0, 4), v(vk), mods=f"offset:{oK}")
            for e in range(4, 8): self.v_exp_f32(v(S + e), v(S + e))
            self.v_cvt_pk_bf16_f32(v(PP + 2), v(S + 4), v(S + 5)); self.v_cvt_pk_bf16_f32(v(PP + 3), v(S + 6), v(S + 7))
            self.v_mfma_f32_32x32x8_bf16(v(Sn, 16), v(KF1, 2), v(Q + 4, 2), v(Sn, 16))
            self.ds_read_b64(v(KF1, 2), v(vk1), mods=f"offset:{oK + 1024}")
            for e in range(8, 12): self.v_exp_f32(v(S + e), v(S + e))
            self.wait(lg=3)
            self.v_mfma_f32_32x32x16_bf16(v(O, 16), v(VF0, 4), v(PP, 4), v(O, 16))
            self.ds_read_b128(v(VF0, 4), v(vv), mods=f"offset:{oV0}")
            self.v_cvt_pk_bf16_f32(v(PP + 4), v(S + 8), v(S + 9)); self.v_cvt_pk_bf16_f32(v(PP + 5), v(S + 10), v(S + 11))
            for e in range(12, 16): self.v_exp_f32(v(S + e), v(S + e))
            if par == 1:
                d = (-3072, -4096) if desc else (3072, 4096)
                self.v_add_u32(v(vk), d[0] & 0xffffffff, v(vk)); self.v_add_u32(v(vk1), d[0] & 0xffffffff, v(vk1))
            self.v_cvt_pk_bf16_f32(v(PP + 6), v(S + 12), v(S + 13)); self.v_cvt_pk_bf16_f32(v(PP + 7), v(S + 14), v(S + 15))
            if par == 1: self.v_add_u32(v(vv), d[1] & 0xffffffff, v(vv))
            self.s_add_u32(s(sCNT), s(sCNT), 1)
        self.label(lp)
        body(SA, SB, first, 0)
        self.s_cbranch_scc1(ex)
        body(SB, SA, None, 1)
        self.s_cbranch_scc0(lp)
        self.label(ex)
    def attn_finish(self, O):
        self.wait(lg=0)
        self.v_mfma_f32_32x32x16_bf16(v(O, 16), v(self.VF1, 4), v(self.PP + 4, 4), v(O, 16))

    def attn_local(self):
        sKb, sVb, sN = sU + 6, sU + 7, sU + 8
        self.smul(sKb, sW, 1536); self.s_add_u32(s(sKb), s(sKb), L_K); self.s_lshl_b32(s(sVb), s(sW), 11); self.s_add_u32(s(sVb), s(sVb), L_V)
        self.attn_first_reads(True, sKb, sVb)
        self.s_sub_u32(s(sN), -1, s(sW))
        self.attn_seq2(self.QA, self.OA, True, sN, None)
        self.s_sub_u32(s(sT + 2), 7, s(sW))
        self.smul(sKb, sT + 2, 1536); self.s_add_u32(s(sKb), s(sKb), L_K); self.s_lshl_b32(s(sVb), s(sT + 2), 11); self.s_add_u32(s(sVb), s(sVb), L_V)
        self.attn_first_reads(True, sKb, sVb)
        self.s_sub_u32(s(sN), s(sW), 8)
        self.wait(lg=5)
        self.v_mfma_f32_32x32x16_bf16(v(self.OA, 16), v(self.VF1, 4), v(self.PP + 4, 4), v(self.OA, 16))
        self.halo_publish()
        lab = self.newlabel("pt")
        self.s_cmp_lg_u32(s(sL), 0); self.s_cbranch_scc1(lab)
        self.pretouch_addr(4)
        self.global_load_dword(v(230), v(4), s(sWS, 2))
        self.label(lab)
        if self.o.get("wolate"):
            lab = self.newlabel("wa")
            self.s_cmp_lg_u32(s(sL), 0); self.s_cbranch_scc1(lab)
            self.wo_addr()
            self.label(lab)
            self.wo_range(0, 8)
        self.attn_seq2(self.QB, self.OB, True, sN, None)
        self.attn_finish(self.OB)
    def attn_halo(self):
        sKb, sVb, sN = sU + 6, sU + 7, sU + 8
        self.smul(sKb, sW, 1536); self.s_add_u32(s(sKb), s(sKb), L_HK); self.s_lshl_b32(s(sVb), s(sW), 11); self.s_add_u32(s(sVb), s(sVb), L_HV)
        if self.o.get("wolate"): self.wo_range(8, 20)
        self.attn_first_reads(False, sKb, sVb)
        self.s_sub_u32(s(sN), s(sW), 8)
        self.attn_seq2(self.QA, self.OA, False, sN, None)
        if self.o.get("wolate"): self.wo_range(20, 32)
        self.s_sub_u32(s(sT + 2), 7, s(sW))
        self.smul(sKb, sT + 2, 1536); self.s_add_u32(s(sKb), s(sKb), L_HK); self.s_lshl_b32(s(sVb), s(sT + 2), 11); self.s_add_u32(s(sVb), s(sVb), L_HV)
        self.attn_first_reads(False, sKb, sVb)
        self.s_sub_u32(s(sN), -1, s(sW))
        self.attn_seq2(self.QB, self.OB, False, sN, self.OA)
        self.attn_finish(self.OB)

    def qkv_run(self):
        ACC, ZR, WF = self.ACC, self.ZR, self.WF
        vzA, vzB, vw0, vw1 = 8, 9, 10, 11
        def wr(st, kk, T):
            r = WF + 8 * st + 4 * T; vw = (vw0, vw1)[T]
            self.ds_read_b64_tr_b16(v(r, 2), v(vw), mods=f"offset:{kk * 1024}")
            self.ds_read_b64_tr_b16(v(r + 2, 2), v(vw), mods=f"offset:{kk * 1024 + 256}")
        def body(last):
            for j in range(8):
                st = j & 1
                more = not (last and j == 7)
                mf = lambda blk, T: self.v_mfma_f32_32x32x16_bf16(v(ACC + 32 * blk + 16 * T, 16), v(WF + 8 * st + 4 * T, 4), v(ZR + 8 * j + 4 * blk, 4), v(ACC + 32 * blk + 16 * T, 16))
                self.wait(vm=((15 - 2 * j) if last else 15), lg=0)
                mf(0, 0)
                if more: wr(st ^ 1, j + 1, 0)
                mf(0, 1)
                if more: wr(st ^ 1, j + 1, 1)
                if not last: self.global_load_dwordx4(v(ZR + 8 * j, 4), v(vzA), s(sZB, 2), mods=f"offset:{(j % 4) * 1024} sc1")
                self.wait(vm=((14 - 2 * j) if last else 15))
                mf(1, 0)
                if not last and j % 4 == 3: self.v_add_u32(v(vzA), 4096, v(vzA))
                mf(1, 1)
                if not last:
                    self.global_load_dwordx4(v(ZR + 8 * j + 4, 4), v(vzB), s(sZB, 2), mods=f"offset:{(j % 4) * 1024} sc1")
                    if j % 4 == 3: self.v_add_u32(v(vzB), 4096, v(vzB))
            if not last:
                self.v_add_u32(v(vw0), 8192, v(vw0)); self.v_add_u32(v(vw1), 8192, v(vw1))
        lp = self.newlabel("qkv")
        self.s_mov_b32(s(sU), -4)
        self.label(lp)
        body(False)
        self.s_add_u32(s(sU), s(sU), 1); self.s_cbranch_scc0(lp)
        body(True)

    def op_prep(self):
        super().op_prep()
        self.s_lshr_b32(s(sU + 5), s(sU + 2), 1); self.smul(sU + 5, sU + 5, 40960)
        self.s_and_b32(s(sU + 6), s(sU + 2), 1); self.s_lshl_b32(s(sU + 6), s(sU + 6), 8); self.s_add_u32(s(sU + 5), s(sU + 5), s(sU + 6))
        self.s_and_b32(s(sU + 6), s(sS), 7); self.smul(sU + 6, sU + 6, 5120); self.s_add_u32(s(sU + 5), s(sU + 5), s(sU + 6))
        self.v_bfe_u32(v(12), v(vLANE), 3, 1); self.v_lshlrev_b32(v(12), 7, v(12))
        self.v_and_b32(v(13), 7, v(vLANE)); self.v_lshl_add_u32(v(12), v(13), 4, v(12))
        self.v_bfe_u32(v(13), v(vLANE), 4, 1); self.v_lshl_add_u32(v(12), v(13), 10, v(12))
        self.v_lshrrev_b32(v(13), 5, v(vLANE)); self.v_lshl_add_u32(v(12), v(13), 9, v(12))
        self.v_add_u32(v(12), s(sU + 5), v(12)); self.v_add_u32(v(13), 4096, v(12))
    def op_run(self):
        n0 = len(self.items); c0 = len(self.cold)
        super().op_run()
        def fix(ops, mods):
            if "offset:512" in mods: return ops, mods.replace("offset:512", "offset:2048")
            if "offset:1024" in mods: return [v(13)] + ops[1:], mods.replace("offset:1024", "").strip()
            return ops, mods
        for it in self.items[n0:]:
            if isinstance(it, Ins) and it.op == "global_store_dwordx4" and it.ops[2] == s(sAB, 2):
                it.ops, it.mods = fix(it.ops, it.mods); it.ops[2] = s(sZB, 2); it.classify()
        l1, l2, lst = self.cold[-1]
        new = []
        for e in lst:
            if e[0] == "exec": new.append(e)
            else:
                ops, mods = fix([e[1], e[2], e[3]], e[4]); new.append((e[0], ops[0], ops[1], s(sZB, 2), mods))
        self.cold[-1] = (l1, l2, new)
    def p4_prep(self):
        self.z_addr(8)
        for j in range(8, 12): self.v_mov_b32(v(self.AP + j), 0)
        self.unpack(self.XF, vX, 12)
        self.unpack(self.YF, vY, 12)
    def p4_run(self):
        n0 = len(self.items)
        super().p4_run()
        if self.o.get("wb2"):
            k = max(i for i, it in enumerate(self.items) if isinstance(it, Ins) and it.op == "s_waitcnt" and it.ops[0] == "vmcnt(0)" and i >= n0)
            lab = self.newlabel("wb")
            ins = [Ins("s_cmp_eq_u32", [s(sL), "0"]), Ins("s_cbranch_scc1", [lab]), Ins("s_cmp_lg_u32", [s(sS), "0"]), Ins("s_cbranch_scc1", [lab]),
                   Ins("s_cmp_lg_u32", [s(sW), "3"]), Ins("s_cbranch_scc1", [lab]), Ins("buffer_wbl2", [], "sc1"), ("label", lab)]
            self.items[k + 1:k + 1] = ins
        for it in self.items[n0:]:
            if isinstance(it, Ins) and it.op == "global_load_dwordx4" and it.ops[2] == s(sAB, 2):
                it.ops[2] = s(sZB, 2); it.classify()
    def pretouch_addr(self, va):
        self.v_min_u32(v(va), 79, v(vTID)); self.v_lshlrev_b32(v(va), 7, v(va))
        self.smul(sT, sG, ZG); self.smul(sT + 1, sS, 10240); self.s_add_u32(s(sT), s(sT), s(sT + 1)); self.s_add_u32(s(sT), s(sT), hex(OFF_O))
        self.v_add_u32(v(va), s(sT), v(va))

    def halo_prep(self):
        self.smul(sT, sW, 7168); self.v_add_u32(v(12), s(sT), v(vL16)); self.v_add_u32(v(14), 4096, v(12))
        self.v_mov_b32(v(13), s(sHFI))
    def halo_issue(self):
        super().halo_issue()
        self.mask_gen(True)

    def weights_to_mall(self):
        self.smul(sT, 2, 9600); self.v_lshlrev_b32(v(4), 4, v(vTID)); self.v_add_u32(v(4), s(sT), v(4))
        self.global_load_dwordx4(v(208, 4), v(4), s(sWQ, 2))
        self.global_load_dwordx4(v(212, 4), v(4), s(sWQ, 2), mods="offset:4080")
        self.v_min_u32(v(5), 89, v(vTID)); self.v_lshlrev_b32(v(5), 4, v(5)); self.s_add_u32(s(sT), s(sT), 8160); self.v_add_u32(v(5), s(sT), v(5))
        self.global_load_dwordx4(v(216, 4), v(5), s(sWQ, 2))
        self.smul(sT, 2, 3200); self.v_min_u32(v(5), 199, v(vTID)); self.v_lshlrev_b32(v(5), 4, v(5)); self.v_add_u32(v(5), s(sT), v(5))
        self.global_load_dwordx4(v(220, 4), v(5), s(sWO, 2))

    def startup(self):
        d2 = self.o.get("d2")
        NE = self.NE
        self.setup2()
        self.issue_x()
        self.v_mov_b32(v(87), OFF_N)
        self.global_load_dword(v(87), v(87), s(sWS, 2), mods="sc1")
        self.conv_ids()
        self.c0_issue()
        self.conv_h_issue()
        self.weights_to_mall()
        self.stamp("issued"); self.dstamp(1) if d2 else None
        for r in range(4): self.v_mov_b32(v(vZERO + r), 0)
        self.v_and_b32(v(vPL), 31, v(vLANE)); self.v_lshlrev_b32(v(vPL), 7, v(vPL))
        self.s_lshl_b32(s(sT), s(sS), 7); self.v_mov_b32(v(vSO), s(sT))
        self.v_mov_b32(v(4), L_CNT); self.ds_write_b32(v(4), v(vZERO))
        self.w_addr()
        self.wait(vm=8 + 4)
        self.v_readfirstlane_b32(s(sTOK), v(87))
        self.s_add_u32(s(sTOK), s(sTOK), hex(NONCE_C))
        lab = self.newlabel("xp")
        self.s_cmp_lg_u32(s(sW), 0); self.s_cbranch_scc1(lab)
        self.s_lshl_b32(s(sT), s(sG), 5); self.s_add_u32(s(sT), s(sT), s(sS)); self.s_lshl_b32(s(sT), s(sT), 7); self.s_add_u32(s(sT), s(sT), hex(OFF_XCC))
        self.s_add_u32(s(sT + 1), s(sTOK), s(sXCC)); self.s_add_u32(s(sT + 1), s(sT + 1), 64)
        self.v_mov_b32(v(4), s(sT)); self.v_mov_b32(v(5), s(sT + 1))
        self.setexec(1); self.global_store_dword(v(4), v(5), s(sWS, 2), mods="sc1"); self.setexec(-1)
        self.label(lab)
        self.stamp("z0st"); self.dstamp(2) if d2 else None
        self.c0_taps()
        self.c0_all([])
        self.s_mov_b64(s(self.sWQ2, 2), s(sWQ, 2))
        self.stamp("c0"); self.dstamp(3) if d2 else None
        self.w_issue(0, NE)
        self.wait(vm=NE); self.s_barrier()
        lab = self.newlabel("f0")
        self.s_cmp_lg_u32(s(sW), 0); self.s_cbranch_scc1(lab)
        self.s_add_u32(s(sT + 2), s(sTOK), 7); self.v_mov_b32(v(5), s(sT + 2))
        self.rflag_base(sT)
        self.setexec(1)
        self.global_store_dword(v(vSO), v(5), s(sT, 2), mods="sc1")
        self.setexec(-1)
        self.label(lab)
        self.stamp("flags"); self.dstamp(4 if d2 else 1)
        self.layer_bases2()
        self.z_addr(8)
        self.p0_ln()
        self.stores_sc1(self.z_store_list(56, sZB, 8))
        NM = self.o.get("nm", 12)
        sub = K4(stamps=False, opts=self.o); sub.uid = self.uid + 200000; sub.cold = []; sub.cold2 = []
        sub.conv_fill_h()
        sub.w_zero()
        sub.s_lshl_b32(s(sT + 4), s(sW), 2); sub.lanemask(sM0, s(sT + 4), 4)
        sub.s_sub_u32(s(sT + 4), 28, s(sT + 4)); sub.lanemask(sMZ, s(sT + 4), 4); sub.s_or_b64(s(sMZ, 2), s(sMZ, 2), s(sM0, 2))
        sub.s_lshr_b32(s(sT + 4), s(sS), 3); sub.s_lshl_b32(s(sT + 4), s(sT + 4), 3); sub.lanemask(sMA, s(sT + 4), 8)
        sub.conv_addrs(); sub.wo_addr()
        self.uid = sub.uid
        self.splice_w(sub.items, range(NE, NM))
        self.s_mov_b32(s(sMO), -1); self.s_mov_b32(s(sMO + 1), 0)
        self.epi_prep_nolds(); self.qkv_addr(); self.mask_gen(False)
        self.stamp("hfill"); self.dstamp(5) if d2 else None
        self.first_flags4()
        self.stamp("ff"); self.dstamp(6) if d2 else None
        self.conv_r_issue()
        if NM < 16:
            self.s_mov_b32(s(sSRD), s(self.sWQ2)); self.s_mov_b32(s(sSRD + 1), s(self.sWQ2 + 1))
            self.s_mov_b32(s(sSRD + 2), 640 * 1920 * 2); self.s_mov_b32(s(sSRD + 3), "0x00020000")
            for i_ in range(NM, 16): self.w_one(i_)
        self.code_prefetch(86)
        extra = 0
        if not self.o.get("noflagpt"):
            self.v_min_u32(v(4), 4, v(vLANE)); self.v_add_u32(v(4), 1, v(4)); self.v_lshlrev_b32(v(4), 15, v(4))
            self.s_lshl_b32(s(sT), s(sG), 12); self.s_lshl_b32(s(sT + 1), s(sS), 7); self.s_add_u32(s(sT), s(sT), s(sT + 1)); self.s_add_u32(s(sT), s(sT), hex(OFF_FL2))
            self.v_add_u32(v(4), s(sT), v(4))
            self.global_load_dword(v(84), v(4), s(sWS, 2)); extra += 1
        if self.o.get("ptearly"):
            self.pretouch_addr(4); self.global_load_dword(v(85), v(4), s(sWS, 2), mods="nt" if self.o.get("ptnt") else ""); extra += 1
        self.w_lds(0, NM)
        self.conv_fill_r(1 + extra + 16 - NM)
        lab = self.newlabel("fz")
        self.s_cmp_lg_u32(s(sW), 0); self.s_cbranch_scc1(lab)
        self.v_mov_b32(v(4), s(sEXP))
        self.setexec(1); self.global_store_dword(v(vSO), v(4), s(sFZ, 2), mods="sc1"); self.setexec(-1)
        self.label(lab)
        if NM < 16:
            self.wait(vm=1 + extra); self.w_lds(NM, 16); self.wait(lg=0)
        self.stamp("rfill"); self.dstamp(7) if d2 else None
        sub = K4(stamps=False, opts=self.o); sub.uid = self.uid + 100000; sub.cold = []; sub.cold2 = []
        sub.conv_tails_addr()
        self.uid = sub.uid
        self.conv_mains(sub.items)
        self.stamp("mains"); self.dstamp(8) if self.o.get("d2") else None
        self.global_load_dword(v(79), v(vPL), s(sFZ, 2), mods="sc1")
        self.wait(vm=1 if self.o.get("wolate") else 33)
        self.w_lds2(16, 32)
        self.conv_tails()
        self.stamp("tails"); self.dstamp(9) if self.o.get("d2") else None
        ok = self.newlabel("zok")
        self.wait(vm=3)
        self.v_cmp_ne_u32("vcc", s(sEXP), v(79)); self.s_and_b64("vcc", "vcc", s(sMZ, 2)); self.s_cbranch_scc0(ok)
        self.poll2(sFZ, vPL, sEXP, sMZ)
        self.label(ok)
        self.qkv_zissue()
        self.v_xor_b32(v(4), 48, v(self.vSA)); self.ds_write_b64(v(4), v(88, 2))
        self.wait(lg=0); self.s_barrier()
        self.stamp("wlds"); self.dstamp(10 if self.o.get("d2") else 2); self._d2ok = False
        self.qkv_init()
        self.s_branch("L_QKV")

    def build(self):
        self.fallbacks = []
        self.startup()
        self.label("L_LAYER")
        self.layer_bases2()
        self.epi_prep(); self.mask_gen(False)
        self.qkv_addr(); self.qkv_init()
        self.poll2(sFZ, vPL, sEXP, sMZ)
        if self.o.get("l1wt"): self.s_mov_b32(s(sMODE), 1)
        self.stamp("zwait")
        self.qkv_zissue()
        self.label("L_QKV")
        self.qkv_run()
        self.stamp("qkv"); self.dstamp(3, True)
        self.epi_run()
        self.stamp("epi")
        lab = self.newlabel("aux0")
        self.s_cmp_lg_u32(s(sL), 0); self.s_cbranch_scc1(lab)
        self.y_flag()
        self.label(lab)
        self.attn_local()
        self.stamp("local"); self.dstamp(4, True)
        self.o_prep()
        l1path, joined = self.newlabel("l1p"), self.newlabel("joined")
        self.s_cmp_lg_u32(s(sL), 0); self.s_cbranch_scc1(l1path)
        if self.o.get("wolate"):
            self.y_flags_issue()
            nh = self.newlabel("nh")
            self.s_cmp_eq_u32(s(sG), 0); self.s_cbranch_scc1(nh)
            self.halo_prep()
            self.halo_issue()
            self.label(nh)
            self.wait(vm=0)
            self.y_flags_check()
            nh = self.newlabel("nh")
            self.s_cmp_eq_u32(s(sG), 0); self.s_cbranch_scc1(nh)
            self.halo_land(0)
            self.label(nh)
            self.wait(lg=0); self.s_barrier()
            self.y_issue()
            nh = self.newlabel("nh")
            self.s_cmp_lg_u32(s(sG), 0); self.s_cbranch_scc1(nh)
            self.wo_range(8, 32)
            self.label(nh)
        else:
            wo1, wo2 = self.wo_stage_split()
            self.s_barrier()
            self.items += wo1
            nh = self.newlabel("nh")
            self.s_cmp_eq_u32(s(sG), 0); self.s_cbranch_scc1(nh)
            self.halo_prep()
            self.halo_issue()
            self.label(nh)
            self.y_flags_issue()
            self.items += wo2
            self.stamp("wo"); self.dstamp(5)
            self.wait(vm=0)
            self.y_flags_check()
            nh = self.newlabel("nh")
            self.s_cmp_eq_u32(s(sG), 0); self.s_cbranch_scc1(nh)
            self.halo_land(0)
            self.label(nh)
            self.wait(lg=0); self.s_barrier()
            self.y_issue()
        self.s_branch(joined)
        self.label(l1path)
        self.s_cmp_eq_u32(s(sG), 0); self.s_cbranch_scc1(joined)
        self.halo_prep()
        self.halo_issue()
        self.halo_land(0)
        self.wait(lg=0); self.s_barrier()
        self.label(joined)
        self.stamp("halof")
        nohalo = self.newlabel("nohalo")
        self.s_cmp_eq_u32(s(sG), 0); self.s_cbranch_scc1(nohalo)
        self.attn_halo()
        self.label(nohalo)
        self.stamp("halo"); self.dstamp(6, True)
        self.range_check()
        self.o_store()
        self.s_add_u32(s(sT), s(sEXP), 1); self.v_mov_b32(v(5), s(sT))
        self.signal2(sFO, 5)
        self.stamp("osig")
        lab = self.newlabel("aux2")
        self.s_cmp_lg_u32(s(sL), 0); self.s_cbranch_scc1(lab)
        self.y_finish()
        if self.o.get("wolate"):
            wo1, wo2 = self.wo_stage_split()
            self.s_barrier()
            self.items += wo1; self.items += wo2
        self.stamp("yld")
        self.label(lab)
        self.op_prep()
        self.s_add_u32(s(sT + 8), s(sEXP), 1)
        self.poll2(sFO, vPL, sT + 8, sMO)
        self.stamp("owait")
        self.op_run()
        self.s_add_u32(s(sT), s(sEXP), 2); self.v_mov_b32(v(5), s(sT))
        self.signal2(sFA, 5)
        self.stamp("asig"); self.dstamp(7, True)
        if self.o.get("wb"):
            lab = self.newlabel("wb")
            self.s_cmp_eq_u32(s(sL), 0); self.s_cbranch_scc1(lab)
            self.s_cmp_lg_u32(s(sS), 0); self.s_cbranch_scc1(lab)
            self.s_cmp_lg_u32(s(sW), 3); self.s_cbranch_scc1(lab)
            self.I("buffer_wbl2", mods="sc1")
            self.label(lab)
        self.p4_prep()
        self.s_add_u32(s(sT + 8), s(sEXP), 2)
        self.poll2(sFA, vPL, sT + 8, sMA)
        self.stamp("await")
        self.p4_run()
        self.s_cmp_lg_u32(s(sL), 0); self.s_cbranch_scc1("L_FINAL")
        self.p4_z()
        self.stores(self.z_store_list(56, sZN, 8))
        self.pack(vX, self.XF, 12)
        self.s_add_u32(s(sT), s(sEXP), 3); self.v_mov_b32(v(5), s(sT))
        self.signal2(sFN, 5)
        self.stamp("p4")
        self.s_mov_b32(s(sL), 1)
        self.s_branch("L_LAYER")
        self.label("L_FINAL")
        self.pack(vX, self.XF, 12)
        self.out_store()
        if self.o.get("span"):
            self.wait(vm=0); self.stamps = True
        self.stamp("end")
        self.dflush()
        return self.finish()

if __name__ == "__main__":
    import argparse
    ap = argparse.ArgumentParser()
    ap.add_argument("-o", default="k4.s"); ap.add_argument("--stamps", action="store_true")
    ap.add_argument("--slow", action="store_true"); ap.add_argument("-v", action="store_true"); ap.add_argument("--opt", default="")
    a_ = ap.parse_args()
    k = K4(stamps=a_.stamps, opts=dict({"force_slow": a_.slow}, **{x.split("=")[0]: (int(x.split("=")[1]) if "=" in x else 1) for x in a_.opt.split(",") if x}))
    k.build()
    ins = k.fix_all(verbose=a_.v)
    open(a_.o, "w").write(render_file(k))
    n = sum(1 for it in k.items if isinstance(it, Ins))
    print("instructions:", n, "nops inserted:", len(ins), "stamps:", ",".join(k.stamp_names))
```

```python
import sys, math
from asm import *
import kern2 as K2M
from kern2 import *
from kern2 import (sEXP, sHEXP, sFZ, sFO, sFA, sFN, sZB, sOB, sAB, sHB, sHP, sZN, sHFO, sHFI, sMZ, sMO, sMA, vL8, vPL, vZERO, vSO,
                   OFF_FL2, L_CNT)

class K4(K2):
    CD, CDV, C2D, C2DV, CR, C2R, CE, C2E = 168, 186, 188, 194, 196, 204, 112, 120
    CH0, CH1, CH2 = L_K, L_K + 24832, L_HK
    sB1, sCH1, sHW, sCH2 = sU + 8, sU + 9, sU + 10, sU + 11
    vA1, vB1, vA2, vB2, vR1, vR2 = 74, 75, 76, 77, 70, 71
    C0T, C0TAP = L_W, L_W + 12288
    @property
    def WOL(self): return (0, 100) if self.o.get("wolate") else (64, 128)
    vWG = 78
    sWQ2 = sU + 12
    @property
    def N_C0(self): return 0

    def c0_issue(self):
        KP, VP, RG, CC = self.CKP, self.CVP, self.CRG, self.CCC
        self.s_mov_b32(s(sSRD), s(sBK)); self.s_mov_b32(s(sSRD + 1), s(sBK + 1))
        self.s_mov_b32(s(sSRD + 2), 2048 * 1280); self.s_mov_b32(s(sSRD + 3), "0x00020000")
        self.v_min_u32(v(4), 159, v(vTID))
        self.v_mul_u32_u24(v(RG), 6554, v(4)); self.v_lshrrev_b32(v(RG), 16, v(RG))
        self.v_mul_u32_u24(v(CC), 10, v(RG)); self.v_sub_u32(v(CC), v(4), v(CC))
        self.s_lshl_b32(s(sT), s(sS), 6); self.s_sub_u32(s(sT), s(sT), 3)
        self.v_lshl_add_u32(v(4), v(RG), 2, s(sT))
        self.s_mov_b32(s(sT + 1), 1280); self.v_mul_lo_u32(v(4), s(sT + 1), v(4))
        self.smul(sT + 2, sG, 160); self.v_lshl_add_u32(v(5), v(CC), 4, s(sT + 2)); self.v_add_u32(v(4), v(4), v(5))
        for j in range(7):
            self.buffer_load_dwordx4(v(KP + 4 * j, 4), v(4), s(sSRD, 4), 0, mods="offen")
            if j == 2: self.v_add_u32(v(5), 1280, v(4))
            if j < 6: self.v_add_u32(v(4), 1280, v(4))
        self.s_mov_b32(s(sSRD), s(sBV)); self.s_mov_b32(s(sSRD + 1), s(sBV + 1))
        for j in range(4):
            self.buffer_load_dwordx4(v(VP + 4 * j, 4), v(5), s(sSRD, 4), 0, mods="offen")
            if j < 3: self.v_add_u32(v(5), 1280, v(5))
        self.smul(sT + 2, sG, 640); self.v_min_u32(v(4), 39, v(vLANE)); self.v_lshl_add_u32(v(4), v(4), 4, s(sT + 2))
        self.global_load_dwordx4(v(self.CTP, 4), v(4), s(sSH, 2))
    def c0_taps(self):
        self.v_min_u32(v(4), 39, v(vLANE)); self.v_lshlrev_b32(v(4), 4, v(4)); self.v_add_u32(v(4), self.C0TAP, v(4))
        self.ds_write_b128(v(4), v(self.CTP, 4))
        self.v_lshlrev_b32(v(5), 6, v(self.CCC)); self.v_add_u32(v(5), self.C0TAP, v(5))
        self.wait(lg=0); self.s_barrier()
        for j in range(4): self.ds_read_b128(v(self.CSP + 4 * j, 4), v(5), mods=f"offset:{16 * j}")
    def c0_all(self, splice):
        n0 = len(self.items)
        self.c0_compute(splice); self.c0_tail()
        for it in self.items[n0:]:
            if isinstance(it, Ins) and it.op == "v_add_u32":
                if it.ops[1] == str(L_K + 120): it.ops[1] = str(self.C0T + 120)
                elif it.ops[1] == str(L_K): it.ops[1] = str(self.C0T)

    def conv_ids(self):
        self.s_lshr_b32(s(sT), s(sW), 1); self.smul(self.sB1, sT, 24832); self.s_add_u32(s(self.sB1), s(self.sB1), L_K)
        self.smul(sT + 1, sG, 80); self.s_lshl_b32(s(self.sCH1), s(sS), 1); self.s_add_u32(s(self.sCH1), s(self.sCH1), s(sT + 1))
        self.s_add_u32(s(self.sCH1), s(self.sCH1), s(sT)); self.s_and_b32(s(self.sHW), s(sW), 1)
        self.s_lshr_b32(s(self.sCH2), s(sS), 1); self.s_add_u32(s(self.sCH2), s(self.sCH2), s(sT + 1)); self.s_add_u32(s(self.sCH2), s(self.sCH2), 64)
    def conv_h_issue(self):
        D = self.CD
        self.conv_srd()
        self.s_lshl_b32(s(sT + 3), s(self.sCH1), 12)
        self.v_and_b32(v(4), 127, v(vTID)); self.v_lshlrev_b32(v(4), 4, v(4))
        for i in range(2):
            self.buffer_load_dwordx4(v(D + 8 * i, 4), v(4), s(sSRD, 4), s(sT + 3), mods=f"offen offset:{2048 * i}")
            self.buffer_load_dwordx2(v(D + 8 * i + 4, 2), v(4), s(sSRD, 4), s(sT + 3), mods=f"offen offset:{2048 * i + 16}")
        self.s_lshr_b32(s(sT + 4), s(self.sCH1), 1); self.s_lshl_b32(s(sT + 4), s(sT + 4), 2); self.v_mov_b32(v(5), s(sT + 4))
        self.global_load_dword(v(self.CDV), v(5), s(sSD, 2))
        self.s_lshl_b32(s(sT + 3), s(self.sCH2), 12)
        self.v_lshlrev_b32(v(4), 4, v(vTID))
        self.buffer_load_dwordx4(v(self.C2D, 4), v(4), s(sSRD, 4), s(sT + 3), mods="offen")
        self.buffer_load_dwordx2(v(self.C2D + 4, 2), v(4), s(sSRD, 4), s(sT + 3), mods="offen offset:16")
        self.s_lshr_b32(s(sT + 4), s(self.sCH2), 1); self.s_lshl_b32(s(sT + 4), s(sT + 4), 2); self.v_mov_b32(v(5), s(sT + 4))
        self.global_load_dword(v(self.C2DV), v(5), s(sSD, 2))
    def conv_fill_h(self):
        sB1 = self.sB1
        self.v_and_b32(v(8), 127, v(vTID)); self.v_lshlrev_b32(v(9), 4, v(8)); self.v_add_u32(v(11), s(sB1), v(9))
        self.ds_write_b128(v(11), v(vZERO, 4), mods=f"offset:{16640 + 320 * 16}")
        self.v_and_b32(v(16), 63, v(8)); self.v_lshlrev_b32(v(16), 4, v(16)); self.v_add_u32(v(16), s(sB1), v(16))
        self.ds_write_b128(v(16), v(vZERO, 4), mods=f"offset:{16640 + 448 * 16}")
        self.v_add_u32(v(11), 64, v(11))
        self.v_lshrrev_b32(v(self.vR1), 2, v(8)); self.v_add_u32(v(self.vR1), v(self.vR1), v(8)); self.v_lshlrev_b32(v(self.vR1), 4, v(self.vR1))
        self.v_add_u32(v(self.vR1), s(sB1), v(self.vR1))
        for i in range(2): self.conv_copies(11, self.CD + 8 * i, self.CE + 4 * i, 2048 * i)
        self.v_min_u32(v(16), 191, v(vTID)); self.v_lshlrev_b32(v(16), 4, v(16)); self.v_add_u32(v(16), self.CH2, v(16))
        self.ds_write_b128(v(16), v(vZERO, 4), mods=f"offset:{16640 + 320 * 16}")
        self.v_lshlrev_b32(v(11), 4, v(vTID)); self.v_add_u32(v(11), self.CH2 + 64, v(11))
        self.v_lshrrev_b32(v(self.vR2), 2, v(vTID)); self.v_add_u32(v(self.vR2), v(self.vR2), v(vTID)); self.v_lshlrev_b32(v(self.vR2), 4, v(self.vR2))
        self.v_add_u32(v(self.vR2), self.CH2, v(self.vR2))
        self.conv_copies(11, self.C2D, self.C2E, 0)
        lab = self.newlabel("hd")
        self.s_cmp_lg_u32(s(self.sHW), 0); self.s_cbranch_scc1(lab)
        self.conv_head(sB1, self.sCH1, self.CD, self.CDV)
        self.label(lab)
        lab = self.newlabel("hd")
        self.s_cmp_lg_u32(s(sW), 0); self.s_cbranch_scc1(lab)
        self.s_mov_b32(s(sT + 10), self.CH2)
        self.conv_head(sT + 10, self.sCH2, self.C2D, self.C2DV)
        self.label(lab)
    def conv_addr2(self, va, vb, sbase, sstep0):
        self.v_and_b32(v(10), 3, v(vLANE)); self.v_mul_u32_u24(v(10), 4160, v(10))
        self.v_bfe_u32(v(11), v(vLANE), 2, 3); self.v_lshl_add_u32(v(10), v(11), 3, v(10))
        self.v_lshrrev_b32(v(11), 5, v(vLANE)); self.v_lshl_add_u32(v(10), v(11), 4, v(10))
        self.s_lshl_b32(s(sT + 6), s(sstep0), 5); self.s_add_u32(s(sT + 6), s(sT + 6), s(sbase)); self.v_add_u32(v(va), s(sT + 6), v(10))
        self.v_and_b32(v(10), 31, v(vLANE)); self.v_sub_u32(v(10), 31, v(10)); self.v_mul_u32_u24(v(10), 5, v(10))
        self.v_add_u32(v(10), v(10), v(11)); self.v_lshlrev_b32(v(10), 4, v(10))
        self.smul(sT + 6, sstep0, 40); self.s_add_u32(s(sT + 6), s(sT + 6), s(sbase)); self.s_add_u32(s(sT + 6), s(sT + 6), 16640)
        self.v_add_u32(v(vb), s(sT + 6), v(10))
    def conv_addrs(self):
        self.s_lshl_b32(s(sT + 5), s(self.sHW), 5); self.conv_addr2(self.vA1, self.vB1, self.sB1, sT + 5)
        self.s_mov_b32(s(sT + 10), self.CH2); self.s_lshl_b32(s(sT + 5), s(sW), 4); self.conv_addr2(self.vA2, self.vB2, sT + 10, sT + 5)
    def conv_r_issue(self):
        self.s_lshl_b32(s(sT + 3), s(self.sCH1), 12); self.s_add_u32(s(sT + 3), s(sT + 3), hex(OFF_R))
        self.v_and_b32(v(4), 127, v(vTID)); self.v_lshl_add_u32(v(4), v(4), 4, s(sT + 3))
        self.global_load_dwordx4(v(self.CR, 4), v(4), s(sWS, 2), mods="sc1")
        self.global_load_dwordx4(v(self.CR + 4, 4), v(4), s(sWS, 2), mods="offset:2048 sc1")
        self.s_lshl_b32(s(sT + 3), s(self.sCH2), 12); self.s_add_u32(s(sT + 3), s(sT + 3), hex(OFF_R))
        self.v_lshl_add_u32(v(4), v(vTID), 4, s(sT + 3))
        self.global_load_dwordx4(v(self.C2R, 4), v(4), s(sWS, 2), mods="sc1")
    def conv_fill_r(self, younger):
        self.wait(vm=1 + younger)
        self.ds_write_b128(v(self.vR1), v(self.CR, 4), mods="offset:16640"); self.ds_write_b128(v(self.vR1), v(self.CR + 4, 4), mods=f"offset:{16640 + 160 * 16}")
        self.wait(vm=younger)
        self.ds_write_b128(v(self.vR2), v(self.C2R, 4), mods="offset:16640")
        self.wait(lg=0); self.s_barrier()

    NE = 6
    def w_one2(self, i):
        self.s_mov_b32(s(sT + 3), i * 5 * 3840)
        self.s_mov_b64("exec", s(sM1, 2))
        self.buffer_load_dwordx4(a(4 * (i - 16), 4), v(90), s(sSRD, 4), s(sT + 3), mods="offen")
        self.setexec(-1)
    def w_lds2(self, lo, hi):
        m128 = sum(1 << l for l in range(60) if (l & 3) < 2); m64 = sum(1 << l for l in range(60) if (l & 3) == 2)
        self.setexec(m128)
        for i in range(lo, hi): self.ds_write_b128(v(91), a(4 * (i - 16), 4), mods=f"offset:{320 * i}")
        self.setexec(m64)
        for i in range(lo, hi): self.ds_write_b64(v(91), a(4 * (i - 16), 2), mods=f"offset:{320 * i}")
        self.setexec(-1)

    LO, HI, AC, F = 16, 32, 48, 96
    def conv_mains(self, extra):
        LO, HI, AC, F = self.LO, self.HI, self.AC, self.F
        vA, vB = self.vA1, self.vB1
        def rd(m):
            f = F + 16 * (m & 3); oa = 32 * m; ob = 80 * (m >> 1) + 32 * (m & 1)
            return [lambda: self.ds_read_b64(v(f, 2), v(vA), mods=f"offset:{oa}"), lambda: self.ds_read_b64(v(f + 2, 2), v(vA), mods=f"offset:{oa + 8}"),
                    lambda: self.ds_read_b128(v(f + 8, 4), v(vB), mods=f"offset:{ob + 2560}"), lambda: self.ds_read_b128(v(f + 12, 4), v(vB), mods=f"offset:{ob}"),
                    lambda: self.ds_read_b64(v(f + 4, 2), v(vA), mods=f"offset:{oa + 2048}"), lambda: self.ds_read_b64(v(f + 6, 2), v(vA), mods=f"offset:{oa + 2056}")]
        self.zero16(LO); self.zero16(HI); self.zero16(AC)
        self.s_mov_b32(s(sM1), hex(self.WM & 0xffffffff)); self.s_mov_b32(s(sM1 + 1), hex(self.WM >> 32))
        self.s_mov_b32(s(sSRD), s(self.sWQ2)); self.s_mov_b32(s(sSRD + 1), s(self.sWQ2 + 1))
        self.s_mov_b32(s(sSRD + 2), 640 * 1920 * 2); self.s_mov_b32(s(sSRD + 3), "0x00020000")
        pieces = [[] for _ in range(32)]
        n = sum(1 for it in extra if isinstance(it, Ins)); per = max(1, -(-n // 30)); k = 0; cnt = 0; full = True; inbr = set()
        for it in extra:
            if isinstance(it, Ins):
                if cnt >= per and full and not inbr and k < 31: k += 1; cnt = 0
                if it.ops and it.ops[0] in ("exec", "exec_lo", "exec_hi"): full = (it.op == "s_mov_b64" and it.ops[1] == "-1")
                if it.kind == "branch": inbr.add(it.target)
                cnt += 1
            elif it[0] == "label": inbr.discard(it[1])
            pieces[k].append(it)
        for m in (0, 1):
            for f_ in rd(m): f_()
        for m in range(32):
            f = F + 16 * (m & 3)
            nx = rd(m + 2) if m + 2 < 32 else [lambda: None] * 6
            self.wait(lg=6 if m < 31 else 0)
            self.v_mfma_f32_32x32x16_bf16(v(LO, 16), v(f, 4), v(f + 8, 4), v(LO, 16)); nx[0](); nx[1]()
            self.v_mfma_f32_32x32x16_bf16(v(HI, 16), v(f, 4), v(f + 12, 4), v(HI, 16)); nx[2](); nx[3]()
            self.items += pieces[m]
            self.v_mfma_f32_32x32x16_bf16(v(HI, 16), v(f + 4, 4), v(f + 8, 4), v(HI, 16)); nx[4](); nx[5]()
            if m < 16: self.w_one2(16 + m)
            elif not self.o.get("wolate"):
                if m == 16: self.wo_srd()
                self.wo_issue_one(m - 16)
        vA, vB = self.vA2, self.vB2
        lhi, ldone = self.newlabel("c2hi"), self.newlabel("c2d")
        self.s_and_b32(s(sT + 5), s(sS), 1); self.s_cbranch_scc1(lhi)
        for hi in (0, 1):
            if hi: self.label(lhi)
            nrd = 5 if hi else 3
            def rd2(m):
                f = F + 16 * (m & 3); oa = 32 * m; ob = 80 * (m >> 1) + 32 * (m & 1)
                l = [lambda: self.ds_read_b64(v(f, 2), v(vA), mods=f"offset:{oa}"), lambda: self.ds_read_b64(v(f + 2, 2), v(vA), mods=f"offset:{oa + 8}"),
                     lambda: self.ds_read_b128(v(f + 8, 4), v(vB), mods=f"offset:{ob + 2560}")]
                if hi:
                    l += [lambda: self.ds_read_b128(v(f + 12, 4), v(vB), mods=f"offset:{ob}"),
                          lambda: self.ds_read_b64(v(f + 4, 2), v(vA), mods=f"offset:{oa + 2048}"), lambda: self.ds_read_b64(v(f + 6, 2), v(vA), mods=f"offset:{oa + 2056}")]
                return l
            nr = 6 if hi else 3
            for m in (0, 1):
                for f_ in rd2(m): f_()
            for m in range(16):
                f = F + 16 * (m & 3)
                nx = rd2(m + 2) if m + 2 < 16 else [lambda: None] * nr
                self.wait(lg=nr if m < 15 else 0)
                if hi:
                    self.v_mfma_f32_32x32x16_bf16(v(AC, 16), v(f, 4), v(f + 12, 4), v(AC, 16)); nx[0](); nx[1](); nx[2]()
                    self.v_mfma_f32_32x32x16_bf16(v(AC, 16), v(f + 4, 4), v(f + 8, 4), v(AC, 16)); nx[3](); nx[4](); nx[5]()
                else:
                    self.v_mfma_f32_32x32x16_bf16(v(AC, 16), v(f, 4), v(f + 8, 4), v(AC, 16)); nx[0](); nx[1](); nx[2]()
                if not self.o.get("wolate"): self.wo_issue_one(16 + m)
            if not hi: self.s_branch(ldone)
        self.label(ldone)

    def conv_tails_addr(self):
        LO, HI, AC, F = self.LO, self.HI, self.AC, self.F
        X1, X2, TO1, TO2 = self.CH0, self.CH1, self.CH2, self.CH2 + 8192
        self.s_lshl_b32(s(sT + 8), s(sW), 12); self.v_add_u32(v(64), s(sT + 8), v(vL16))
        self.s_xor_b32(s(sT + 9), s(sW), 1); self.s_lshl_b32(s(sT + 9), s(sT + 9), 12); self.s_add_u32(s(sT + 9), s(sT + 9), X1); self.v_add_u32(v(67), s(sT + 9), v(vL16))
        self.v_add_u32(v(66), X1, v(64)); self.v_add_u32(v(65), X2, v(64))
        self.s_lshl_b32(s(sT + 8), s(sW), 10); self.s_add_u32(s(sT + 8), s(sT + 8), X2); self.v_add_u32(v(64), s(sT + 8), v(vL16))
        self.v_and_b32(v(70), 31, v(vLANE)); self.v_lshlrev_b32(v(70), 6, v(70))
        self.v_lshrrev_b32(v(71), 5, v(vLANE)); self.v_lshl_add_u32(v(70), v(71), 3, v(70))
        self.s_lshl_b32(s(sT + 8), s(sW), 11); self.s_add_u32(s(sT + 8), s(sT + 8), TO1); self.v_add_u32(v(71), s(sT + 8), v(70)); self.v_add_u32(v(72), s(sT + 8), v(vL16))
        self.s_lshl_b32(s(sT + 8), s(sW), 4); self.s_add_u32(s(sT + 8), s(sT + 8), TO2); self.v_add_u32(v(70), s(sT + 8), v(70))
        self.s_lshl_b32(s(sT + 8), s(self.sHW), 11); self.s_lshl_b32(s(sT + 9), s(self.sCH1), 12); self.s_add_u32(s(sT + 8), s(sT + 8), s(sT + 9))
        self.s_add_u32(s(sT + 8), s(sT + 8), hex(OFF_Y)); self.v_add_u32(v(73), s(sT + 8), v(vL16))
    def conv_tails(self):
        LO, HI, AC, F = self.LO, self.HI, self.AC, self.F
        X1, X2, TO1, TO2 = self.CH0, self.CH1, self.CH2, self.CH2 + 8192
        self.s_barrier()
        l1, l2 = self.newlabel("cx"), self.newlabel("cy")
        self.s_cmp_lg_u32(s(self.sHW), 0); self.s_cbranch_scc1(l1)
        for q in range(4): self.ds_write_b128(v(66), v(HI + 4 * q, 4), mods=f"offset:{1024 * q}")
        self.s_branch(l2)
        self.label(l1)
        for q in range(4): self.ds_write_b128(v(66), v(LO + 4 * q, 4), mods=f"offset:{1024 * q}")
        self.label(l2)
        for q in range(4): self.ds_write_b128(v(65), v(AC + 4 * q, 4), mods=f"offset:{1024 * q}")
        self.wait(lg=0); self.s_barrier()
        for q in range(4): self.ds_read_b128(v(F + 4 * q, 4), v(67), mods=f"offset:{1024 * q}")
        for q in range(4): self.ds_read_b128(v(F + 16 + 4 * q, 4), v(64), mods=f"offset:{4096 * q}")
        l1, l2 = self.newlabel("cx"), self.newlabel("cy")
        self.s_cmp_lg_u32(s(self.sHW), 0); self.s_cbranch_scc1(l1)
        for role, keep in enumerate((LO, HI)):
            if role: self.label(l1)
            for q in range(4):
                self.wait(lg=7 - q)
                for r in (0, 2): self.v_pk_add_f32(v(keep + 4 * q + r, 2), v(keep + 4 * q + r, 2), v(F + 4 * q + r, 2))
                self.pack(F + 32 + 2 * q, keep + 4 * q, 2)
            if role == 0: self.s_branch(l2)
        self.label(l2)
        for q in range(4): self.ds_write_b64(v(71), v(F + 32 + 2 * q, 2), mods=f"offset:{16 * q}")
        self.wait(lg=4)
        G = F + 16
        for r in (0, 2):
            self.v_pk_add_f32(v(G + r, 2), v(G + r, 2), v(G + 4 + r, 2)); self.v_pk_add_f32(v(G + 8 + r, 2), v(G + 8 + r, 2), v(G + 12 + r, 2))
        for r in (0, 2): self.v_pk_add_f32(v(G + r, 2), v(G + r, 2), v(G + 8 + r, 2))
        self.pack(F + 40, G, 2)
        self.ds_write_b64(v(70), v(F + 40, 2))
        self.ds_read_b128(v(LO, 4), v(72)); self.ds_read_b128(v(LO + 4, 4), v(72), mods="offset:1024")
        self.s_and_b32(s(sT + 6), s(sS), 1); self.s_lshl_b32(s(sT + 6), s(sT + 6), 11); self.s_lshl_b32(s(sT + 7), s(self.sCH2), 12)
        self.s_add_u32(s(sT + 6), s(sT + 6), s(sT + 7)); self.s_add_u32(s(sT + 6), s(sT + 6), hex(OFF_Y))
        self.wait(lg=0)
        self.global_store_dwordx4(v(73), v(LO, 4), s(sWS, 2), mods="sc1")
        self.global_store_dwordx4(v(73), v(LO + 4, 4), s(sWS, 2), mods="offset:1024 sc1")
        self.s_barrier()
        self.v_and_b32(v(67), 127, v(vTID)); self.v_lshlrev_b32(v(67), 4, v(67))
        self.v_add_u32(v(66), TO2, v(67)); self.v_add_u32(v(65), s(sT + 6), v(67))
        self.ds_read_b128(v(LO + 8, 4), v(66))
        self.wait(lg=0)
        self.global_store_dwordx4(v(65), v(LO + 8, 4), s(sWS, 2), mods="sc1")

    def first_flags4(self):
        self.s_lshl_b32(s(sT), s(sG), 12); self.s_add_u32(s(sT + 1), s(sT), hex(OFF_XCC)); self.s_add_u32(s(sT), s(sT), hex(OFF_FL2 + 6 * 8 * 4096))
        self.v_mov_b32(v(16), s(sT + 1)); self.v_mov_b32(v(17), s(sT))
        self.s_mov_b32(s(sM1), 0); self.s_mov_b32(s(sM1 + 1), -1)
        self.v_cndmask_b32(v(16), v(16), v(17), s(sM1, 2)); self.v_add_u32(v(16), v(16), v(vPL))
        self.s_add_u32(s(sT + 2), s(sTOK), 64); self.s_add_u32(s(sT + 3), s(sTOK), 7)
        self.v_mov_b32(v(17), s(sT + 2)); self.v_mov_b32(v(18), s(sT + 3)); self.v_cndmask_b32(v(17), v(17), v(18), s(sM1, 2))
        self.v_mov_b32(v(18), 16); self.v_cndmask_b32(v(18), v(18), 1, s(sM1, 2))
        lp, dn = self.newlabel("xpoll"), self.newlabel("xpolld")
        self.label(lp)
        self.global_load_dword(v(5), v(16), s(sWS, 2), mods="sc1")
        self.s_cmp_eq_u32(s(sTO), 0); self.s_cbranch_scc1(dn)
        self.s_sub_u32(s(sTO), s(sTO), 1)
        self.wait(vm=0)
        self.v_sub_u32(v(5), v(5), v(17))
        self.v_cmp_le_u32("vcc", v(18), v(5))
        self.s_cmp_lg_u64("vcc", 0); self.s_cbranch_scc1(lp)
        self.label(dn)
        self.v_cmp_ne_u32("vcc", s(sXCC), v(5))
        self.s_and_b32(s(sT), "vcc_lo", -1)
        self.s_cselect_b32(s(sMODE), 1, 0)
        if self.o.get("force_slow"): self.s_mov_b32(s(sMODE), 1)

    def epi_prep_nolds(self):
        n0 = len(self.items)
        self.epi_prep()
        self.items[n0:] = [it for it in self.items[n0:] if not (isinstance(it, Ins) and it.op == "ds_write_b64")]

    def wo_stage_split(self):
        sub = K4(stamps=False, opts=self.o); sub.uid = self.uid + 300000; sub.cold = []; sub.cold2 = []
        sub.y_flag = lambda: None
        K2.wo_stage(sub)
        self.uid = sub.uid
        bars = [k for k, it in enumerate(sub.items) if isinstance(it, Ins) and it.op == "s_barrier"]
        cut = bars[1] + 1
        first = [it for it in sub.items[:cut] if not (isinstance(it, Ins) and it.op == "s_waitcnt" and it.ops[0] == "vmcnt(0)")]
        return first, sub.items[cut:]

    YR = 140
    def y_flags_issue(self):
        self.v_lshlrev_b32(v(4), 7, v(vTID)); self.v_add_u32(v(4), OFF_YFL, v(4))
        self.global_load_dword(v(156), v(4), s(sWS, 2), mods="sc1")
    def y_flags_check(self):
        ok = self.newlabel("yok")
        self.s_add_u32(s(sT + 1), s(sTOK), 32)
        self.v_cmp_ne_u32("vcc", s(sT + 1), v(156)); self.s_cmp_eq_u64("vcc", 0); self.s_cbranch_scc1(ok)
        self.v_lshlrev_b32(v(8), 7, v(vTID)); self.v_add_u32(v(8), OFF_YFL, v(8)); self.s_mov_b64(s(sT + 2, 2), -1)
        self.poll2(sWS, 8, sT + 1, sT + 2)
        self.label(ok)
    def y_issue(self):
        YR = self.YR
        lab = self.newlabel("nu")
        self.s_cmp_lg_u32(s(2), 0); self.s_cbranch_scc1(lab)
        self.s_cmp_lg_u32(s(sW), 0); self.s_cbranch_scc1(lab)
        self.v_mov_b32(v(8), OFF_N); self.v_mov_b32(v(9), s(sTOK))
        self.setexec(1); self.global_store_dword(v(8), v(9), s(sWS, 2), mods="sc1"); self.setexec(-1)
        self.label(lab)
        self.s_lshl_b32(s(sU), s(sG), 8); self.s_lshl_b32(s(sU + 1), s(sS), 3); self.s_add_u32(s(sU), s(sU), s(sU + 1)); self.s_lshl_b32(s(sU), s(sU), 1)
        self.s_add_u32(s(sU), s(sU), hex(OFF_Y))
        self.v_lshlrev_b32(v(8), 12, v(vTID)); self.v_add_u32(v(8), s(sU), v(8))
        self.global_load_dwordx4(v(YR, 4), v(8), s(sWS, 2), mods="sc1")
        self.v_add_u32(v(9), 256 * 4096, v(8)); self.global_load_dwordx4(v(YR + 4, 4), v(9), s(sWS, 2), mods="sc1")
        self.v_and_b32(v(9), 127, v(vTID)); self.v_lshlrev_b32(v(9), 12, v(9)); self.v_add_u32(v(9), s(sU), v(9)); self.v_add_u32(v(9), 512 * 4096, v(9))
        self.global_load_dwordx4(v(YR + 8, 4), v(9), s(sWS, 2), mods="sc1")
    def y_finish(self):
        YR, LY = self.YR, L_SP
        self.v_and_b32(v(10), 7, v(vTID)); self.v_mul_u32_u24(v(10), 320, v(10))
        self.v_lshrrev_b32(v(11), 3, v(vTID)); self.v_lshl_add_u32(v(10), v(11), 2, v(10)); self.v_add_u32(v(10), LY, v(10))
        for i in range(2):
            for w in range(4): self.ds_write_b32(v(10), v(YR + 4 * i + w), mods=f"offset:{2560 * w + 128 * i}")
        lab = self.newlabel("yl")
        self.s_cmp_ge_u32(s(sW), 2); self.s_cbranch_scc1(lab)
        for w in range(4): self.ds_write_b32(v(10), v(YR + 8 + w), mods=f"offset:{2560 * w + 256}")
        self.label(lab)
        self.smul(sU, sW, 2560); self.s_add_u32(s(sU), s(sU), LY)
        self.v_bfe_u32(v(10), v(vLANE), 2, 2); self.v_mul_u32_u24(v(10), 320, v(10))
        self.v_lshrrev_b32(v(11), 4, v(vLANE)); self.v_lshl_add_u32(v(10), v(11), 5, v(10))
        self.v_and_b32(v(11), 3, v(vLANE)); self.v_lshl_add_u32(v(10), v(11), 3, v(10)); self.v_add_u32(v(10), s(sU), v(10))
        self.wait(lg=0); self.s_barrier()
        for m in range(3):
            self.ds_read_b64_tr_b16(v(vY + 4 * m, 2), v(10), mods=f"offset:{128 * m}")
            self.ds_read_b64_tr_b16(v(vY + 4 * m + 2, 2), v(10), mods=f"offset:{128 * m + 4 * 320}")
        self.wait(lg=0)
        self.setexec(0xffffffff00000000)
        for j in range(8, 12): self.v_mov_b32(v(vY + j), 0)
        self.setexec(-1)

    def wo_range(self, lo, hi):
        lab = self.newlabel("wb")
        self.s_cmp_lg_u32(s(sL), 0); self.s_cbranch_scc1(lab)
        self.wo_srd()
        for n in range(lo, hi): self.wo_issue_one(n)
        self.label(lab)
    def wo_batch(self, b):
        self.wo_srd()
        for n in range(8 * b, 8 * b + 8): self.wo_issue_one(n)
    def wo_batch_l0(self, b):
        lab = self.newlabel("wb")
        self.s_cmp_lg_u32(s(sL), 0); self.s_cbranch_scc1(lab)
        self.wo_batch(b)
        self.label(lab)
    def attn_first_reads(self, desc, sKblk, sVblk):
        vk, vk1, vv = 8, 9, 10
        if desc:
            self.s_sub_u32(s(sT), s(sKblk), 4608); self.s_sub_u32(s(sT + 1), s(sVblk), 4096)
            oK0, oK1, oV0 = 4608, 3072, 4096
        else:
            self.s_mov_b32(s(sT), s(sKblk)); self.s_mov_b32(s(sT + 1), s(sVblk))
            oK0, oK1, oV0 = 0, 1536, 0
        self.v_add_u32(v(vk), s(sT), v(vL16)); self.v_add_u32(v(vk1), s(sT), v(vL8)); self.v_add_u32(v(vv), s(sT + 1), v(vL16))
        self.ds_read_b128(v(self.KP0, 4), v(vk), mods=f"offset:{oK0}"); self.ds_read_b64(v(self.KP1, 2), v(vk1), mods=f"offset:{oK0 + 1024}")
        self.ds_read_b128(v(self.KF0, 4), v(vk), mods=f"offset:{oK1}"); self.ds_read_b64(v(self.KF1, 2), v(vk1), mods=f"offset:{oK1 + 1024}")
        self.ds_read_b128(v(self.VF0, 4), v(vv), mods=f"offset:{oV0}")
    def attn_seq2(self, Q, O, desc, sCNT, pending):
        SA, SB, PP, KF0, KF1, VF0, VF1, MSK, KP0, KP1 = self.SA, self.SB, self.PP, self.KF0, self.KF1, self.VF0, self.VF1, self.MSK, self.KP0, self.KP1
        vk, vk1, vv = 8, 9, 10
        if pending is not None:
            self.wait(lg=5)
            self.v_mfma_f32_32x32x16_bf16(v(pending, 16), v(VF1, 4), v(PP + 4, 4), v(pending, 16))
        self.wait(lg=3)
        self.v_mfma_f32_32x32x16_bf16(v(SA, 16), v(KP0, 4), v(Q, 4), v(MSK, 16))
        self.v_mfma_f32_32x32x8_bf16(v(SA, 16), v(KP1, 2), v(Q + 4, 2), v(SA, 16))
        self.wait(lg=1)
        self.s_nop(8)
        lp, ex, first = self.newlabel("att"), self.newlabel("attx"), self.newlabel("attf")
        self.s_branch(first)
        def body(S, Sn, entry, par):
            if desc:
                oK = 1536 if par == 0 else 0
                oV1 = (4096 if par == 0 else 2048) + 1024
                oV0 = 2048 if par == 0 else 0
            else:
                oK = 3072 if par == 0 else 4608
                oV1 = (0 if par == 0 else 2048) + 1024
                oV0 = 2048 if par == 0 else 4096
            self.wait(lg=1)
            self.v_mfma_f32_32x32x16_bf16(v(O, 16), v(VF1, 4), v(PP + 4, 4), v(O, 16))
            if entry: self.label(entry)
            self.ds_read_b128(v(VF1, 4), v(vv), mods=f"offset:{oV1}")
            for e in range(4): self.v_exp_f32(v(S + e), v(S + e))
            self.v_cvt_pk_bf16_f32(v(PP), v(S), v(S + 1)); self.v_cvt_pk_bf16_f32(v(PP + 1), v(S + 2), v(S + 3))
            self.v_mfma_f32_32x32x16_bf16(v(Sn, 16), v(KF0, 4), v(Q, 4), 0)
            self.ds_read_b128(v(KF0, 4), v(vk), mods=f"offset:{oK}")
            for e in range(4, 8): self.v_exp_f32(v(S + e), v(S + e))
            self.v_cvt_pk_bf16_f32(v(PP + 2), v(S + 4), v(S + 5)); self.v_cvt_pk_bf16_f32(v(PP + 3), v(S + 6), v(S + 7))
            self.v_mfma_f32_32x32x8_bf16(v(Sn, 16), v(KF1, 2), v(Q + 4, 2), v(Sn, 16))
            self.ds_read_b64(v(KF1, 2), v(vk1), mods=f"offset:{oK + 1024}")
            for e in range(8, 12): self.v_exp_f32(v(S + e), v(S + e))
            self.wait(lg=3)
            self.v_mfma_f32_32x32x16_bf16(v(O, 16), v(VF0, 4), v(PP, 4), v(O, 16))
            self.ds_read_b128(v(VF0, 4), v(vv), mods=f"offset:{oV0}")
            self.v_cvt_pk_bf16_f32(v(PP + 4), v(S + 8), v(S + 9)); self.v_cvt_pk_bf16_f32(v(PP + 5), v(S + 10), v(S + 11))
            for e in range(12, 16): self.v_exp_f32(v(S + e), v(S + e))
            if par == 1:
                d = (-3072, -4096) if desc else (3072, 4096)
                self.v_add_u32(v(vk), d[0] & 0xffffffff, v(vk)); self.v_add_u32(v(vk1), d[0] & 0xffffffff, v(vk1))
            self.v_cvt_pk_bf16_f32(v(PP + 6), v(S + 12), v(S + 13)); self.v_cvt_pk_bf16_f32(v(PP + 7), v(S + 14), v(S + 15))
            if par == 1: self.v_add_u32(v(vv), d[1] & 0xffffffff, v(vv))
            self.s_add_u32(s(sCNT), s(sCNT), 1)
        self.label(lp)
        body(SA, SB, first, 0)
        self.s_cbranch_scc1(ex)
        body(SB, SA, None, 1)
        self.s_cbranch_scc0(lp)
        self.label(ex)
    def attn_finish(self, O):
        self.wait(lg=0)
        self.v_mfma_f32_32x32x16_bf16(v(O, 16), v(self.VF1, 4), v(self.PP + 4, 4), v(O, 16))

    def attn_local(self):
        sKb, sVb, sN = sU + 6, sU + 7, sU + 8
        self.smul(sKb, sW, 1536); self.s_add_u32(s(sKb), s(sKb), L_K); self.s_lshl_b32(s(sVb), s(sW), 11); self.s_add_u32(s(sVb), s(sVb), L_V)
        self.attn_first_reads(True, sKb, sVb)
        self.s_sub_u32(s(sN), -1, s(sW))
        self.attn_seq2(self.QA, self.OA, True, sN, None)
        self.s_sub_u32(s(sT + 2), 7, s(sW))
        self.smul(sKb, sT + 2, 1536); self.s_add_u32(s(sKb), s(sKb), L_K); self.s_lshl_b32(s(sVb), s(sT + 2), 11); self.s_add_u32(s(sVb), s(sVb), L_V)
        self.attn_first_reads(True, sKb, sVb)
        self.s_sub_u32(s(sN), s(sW), 8)
        self.wait(lg=5)
        self.v_mfma_f32_32x32x16_bf16(v(self.OA, 16), v(self.VF1, 4), v(self.PP + 4, 4), v(self.OA, 16))
        self.halo_publish()
        lab = self.newlabel("pt")
        self.s_cmp_lg_u32(s(sL), 0); self.s_cbranch_scc1(lab)
        self.pretouch_addr(4)
        self.global_load_dword(v(230), v(4), s(sWS, 2))
        self.label(lab)
        if self.o.get("wolate"):
            lab = self.newlabel("wa")
            self.s_cmp_lg_u32(s(sL), 0); self.s_cbranch_scc1(lab)
            self.wo_addr()
            self.label(lab)
            self.wo_range(0, 8)
        self.attn_seq2(self.QB, self.OB, True, sN, None)
        self.attn_finish(self.OB)
    def attn_halo(self):
        sKb, sVb, sN = sU + 6, sU + 7, sU + 8
        self.smul(sKb, sW, 1536); self.s_add_u32(s(sKb), s(sKb), L_HK); self.s_lshl_b32(s(sVb), s(sW), 11); self.s_add_u32(s(sVb), s(sVb), L_HV)
        if self.o.get("wolate"): self.wo_range(8, 20)
        self.attn_first_reads(False, sKb, sVb)
        self.s_sub_u32(s(sN), s(sW), 8)
        self.attn_seq2(self.QA, self.OA, False, sN, None)
        if self.o.get("wolate"): self.wo_range(20, 32)
        self.s_sub_u32(s(sT + 2), 7, s(sW))
        self.smul(sKb, sT + 2, 1536); self.s_add_u32(s(sKb), s(sKb), L_HK); self.s_lshl_b32(s(sVb), s(sT + 2), 11); self.s_add_u32(s(sVb), s(sVb), L_HV)
        self.attn_first_reads(False, sKb, sVb)
        self.s_sub_u32(s(sN), -1, s(sW))
        self.attn_seq2(self.QB, self.OB, False, sN, self.OA)
        self.attn_finish(self.OB)

    def qkv_run(self):
        ACC, ZR, WF = self.ACC, self.ZR, self.WF
        vzA, vzB, vw0, vw1 = 8, 9, 10, 11
        def wr(st, kk, T):
            r = WF + 8 * st + 4 * T; vw = (vw0, vw1)[T]
            self.ds_read_b64_tr_b16(v(r, 2), v(vw), mods=f"offset:{kk * 1024}")
            self.ds_read_b64_tr_b16(v(r + 2, 2), v(vw), mods=f"offset:{kk * 1024 + 256}")
        def body(last):
            for j in range(8):
                st = j & 1
                more = not (last and j == 7)
                mf = lambda blk, T: self.v_mfma_f32_32x32x16_bf16(v(ACC + 32 * blk + 16 * T, 16), v(WF + 8 * st + 4 * T, 4), v(ZR + 8 * j + 4 * blk, 4), v(ACC + 32 * blk + 16 * T, 16))
                self.wait(vm=((15 - 2 * j) if last else 15), lg=0)
                mf(0, 0)
                if more: wr(st ^ 1, j + 1, 0)
                mf(0, 1)
                if more: wr(st ^ 1, j + 1, 1)
                if not last: self.global_load_dwordx4(v(ZR + 8 * j, 4), v(vzA), s(sZB, 2), mods=f"offset:{(j % 4) * 1024} sc1")
                self.wait(vm=((14 - 2 * j) if last else 15))
                mf(1, 0)
                if not last and j % 4 == 3: self.v_add_u32(v(vzA), 4096, v(vzA))
                mf(1, 1)
                if not last:
                    self.global_load_dwordx4(v(ZR + 8 * j + 4, 4), v(vzB), s(sZB, 2), mods=f"offset:{(j % 4) * 1024} sc1")
                    if j % 4 == 3: self.v_add_u32(v(vzB), 4096, v(vzB))
            if not last:
                self.v_add_u32(v(vw0), 8192, v(vw0)); self.v_add_u32(v(vw1), 8192, v(vw1))
        lp = self.newlabel("qkv")
        self.s_mov_b32(s(sU), -4)
        self.label(lp)
        body(False)
        self.s_add_u32(s(sU), s(sU), 1); self.s_cbranch_scc0(lp)
        body(True)

    def op_prep(self):
        super().op_prep()
        self.s_lshr_b32(s(sU + 5), s(sU + 2), 1); self.smul(sU + 5, sU + 5, 40960)
        self.s_and_b32(s(sU + 6), s(sU + 2), 1); self.s_lshl_b32(s(sU + 6), s(sU + 6), 8); self.s_add_u32(s(sU + 5), s(sU + 5), s(sU + 6))
        self.s_and_b32(s(sU + 6), s(sS), 7); self.smul(sU + 6, sU + 6, 5120); self.s_add_u32(s(sU + 5), s(sU + 5), s(sU + 6))
        self.v_bfe_u32(v(12), v(vLANE), 3, 1); self.v_lshlrev_b32(v(12), 7, v(12))
        self.v_and_b32(v(13), 7, v(vLANE)); self.v_lshl_add_u32(v(12), v(13), 4, v(12))
        self.v_bfe_u32(v(13), v(vLANE), 4, 1); self.v_lshl_add_u32(v(12), v(13), 10, v(12))
        self.v_lshrrev_b32(v(13), 5, v(vLANE)); self.v_lshl_add_u32(v(12), v(13), 9, v(12))
        self.v_add_u32(v(12), s(sU + 5), v(12)); self.v_add_u32(v(13), 4096, v(12))
    def op_run(self):
        n0 = len(self.items); c0 = len(self.cold)
        super().op_run()
        def fix(ops, mods):
            if "offset:512" in mods: return ops, mods.replace("offset:512", "offset:2048")
            if "offset:1024" in mods: return [v(13)] + ops[1:], mods.replace("offset:1024", "").strip()
            return ops, mods
        for it in self.items[n0:]:
            if isinstance(it, Ins) and it.op == "global_store_dwordx4" and it.ops[2] == s(sAB, 2):
                it.ops, it.mods = fix(it.ops, it.mods); it.ops[2] = s(sZB, 2); it.classify()
        l1, l2, lst = self.cold[-1]
        new = []
        for e in lst:
            if e[0] == "exec": new.append(e)
            else:
                ops, mods = fix([e[1], e[2], e[3]], e[4]); new.append((e[0], ops[0], ops[1], s(sZB, 2), mods))
        self.cold[-1] = (l1, l2, new)
    def p4_prep(self):
        self.z_addr(8)
        for j in range(8, 12): self.v_mov_b32(v(self.AP + j), 0)
        self.unpack(self.XF, vX, 12)
        self.unpack(self.YF, vY, 12)
    def p4_run(self):
        n0 = len(self.items)
        super().p4_run()
        if self.o.get("wb2"):
            k = max(i for i, it in enumerate(self.items) if isinstance(it, Ins) and it.op == "s_waitcnt" and it.ops[0] == "vmcnt(0)" and i >= n0)
            lab = self.newlabel("wb")
            ins = [Ins("s_cmp_eq_u32", [s(sL), "0"]), Ins("s_cbranch_scc1", [lab]), Ins("s_cmp_lg_u32", [s(sS), "0"]), Ins("s_cbranch_scc1", [lab]),
                   Ins("s_cmp_lg_u32", [s(sW), "3"]), Ins("s_cbranch_scc1", [lab]), Ins("buffer_wbl2", [], "sc1"), ("label", lab)]
            self.items[k + 1:k + 1] = ins
        for it in self.items[n0:]:
            if isinstance(it, Ins) and it.op == "global_load_dwordx4" and it.ops[2] == s(sAB, 2):
                it.ops[2] = s(sZB, 2); it.classify()
    def pretouch_addr(self, va):
        self.v_min_u32(v(va), 79, v(vTID)); self.v_lshlrev_b32(v(va), 7, v(va))
        self.smul(sT, sG, ZG); self.smul(sT + 1, sS, 10240); self.s_add_u32(s(sT), s(sT), s(sT + 1)); self.s_add_u32(s(sT), s(sT), hex(OFF_O))
        self.v_add_u32(v(va), s(sT), v(va))

    def halo_prep(self):
        self.smul(sT, sW, 7168); self.v_add_u32(v(12), s(sT), v(vL16)); self.v_add_u32(v(14), 4096, v(12))
        self.v_mov_b32(v(13), s(sHFI))
    def halo_issue(self):
        super().halo_issue()
        self.mask_gen(True)

    def weights_to_mall(self):
        self.smul(sT, 2, 9600); self.v_lshlrev_b32(v(4), 4, v(vTID)); self.v_add_u32(v(4), s(sT), v(4))
        self.global_load_dwordx4(v(208, 4), v(4), s(sWQ, 2))
        self.global_load_dwordx4(v(212, 4), v(4), s(sWQ, 2), mods="offset:4080")
        self.v_min_u32(v(5), 89, v(vTID)); self.v_lshlrev_b32(v(5), 4, v(5)); self.s_add_u32(s(sT), s(sT), 8160); self.v_add_u32(v(5), s(sT), v(5))
        self.global_load_dwordx4(v(216, 4), v(5), s(sWQ, 2))
        self.smul(sT, 2, 3200); self.v_min_u32(v(5), 199, v(vTID)); self.v_lshlrev_b32(v(5), 4, v(5)); self.v_add_u32(v(5), s(sT), v(5))
        self.global_load_dwordx4(v(220, 4), v(5), s(sWO, 2))
        self.v_min_u32(v(5), 79, v(vTID)); self.v_lshlrev_b32(v(5), 9, v(5))
        self.s_lshr_b32(s(sT), s(sS), 2); self.smul(sT, sT, 40960); self.s_and_b32(s(sT + 1), s(sS), 3); self.s_lshl_b32(s(sT + 1), s(sT + 1), 7)
        self.s_add_u32(s(sT), s(sT), s(sT + 1)); self.smul(sT + 1, sG, ZG); self.s_add_u32(s(sT), s(sT), s(sT + 1)); self.s_add_u32(s(sT), s(sT), hex(OFF_Z))
        self.v_add_u32(v(5), s(sT), v(5))
        self.global_load_dword(v(85), v(5), s(sWS, 2))

    def startup(self):
        d2 = self.o.get("d2")
        NE = self.NE
        self.setup2()
        self.issue_x()
        self.v_mov_b32(v(87), OFF_N)
        self.global_load_dword(v(87), v(87), s(sWS, 2), mods="sc1")
        self.conv_ids()
        self.c0_issue()
        self.conv_h_issue()
        self.weights_to_mall()
        self.stamp("issued"); self.dstamp(1) if d2 else None
        for r in range(4): self.v_mov_b32(v(vZERO + r), 0)
        self.v_and_b32(v(vPL), 31, v(vLANE)); self.v_lshlrev_b32(v(vPL), 7, v(vPL))
        self.s_lshl_b32(s(sT), s(sS), 7); self.v_mov_b32(v(vSO), s(sT))
        self.v_mov_b32(v(4), L_CNT); self.ds_write_b32(v(4), v(vZERO))
        self.w_addr()
        self.wait(vm=8 + 5)
        self.v_readfirstlane_b32(s(sTOK), v(87))
        self.s_add_u32(s(sTOK), s(sTOK), hex(NONCE_C))
        lab = self.newlabel("xp")
        self.s_cmp_lg_u32(s(sW), 0); self.s_cbranch_scc1(lab)
        self.s_lshl_b32(s(sT), s(sG), 5); self.s_add_u32(s(sT), s(sT), s(sS)); self.s_lshl_b32(s(sT), s(sT), 7); self.s_add_u32(s(sT), s(sT), hex(OFF_XCC))
        self.s_add_u32(s(sT + 1), s(sTOK), s(sXCC)); self.s_add_u32(s(sT + 1), s(sT + 1), 64)
        self.v_mov_b32(v(4), s(sT)); self.v_mov_b32(v(5), s(sT + 1))
        self.setexec(1); self.global_store_dword(v(4), v(5), s(sWS, 2), mods="sc1"); self.setexec(-1)
        self.label(lab)
        self.stamp("z0st"); self.dstamp(2) if d2 else None
        self.c0_taps()
        self.c0_all([])
        self.s_mov_b64(s(self.sWQ2, 2), s(sWQ, 2))
        self.stamp("c0"); self.dstamp(3) if d2 else None
        self.w_issue(0, NE)
        self.wait(vm=NE); self.s_barrier()
        lab = self.newlabel("f0")
        self.s_cmp_lg_u32(s(sW), 0); self.s_cbranch_scc1(lab)
        self.s_add_u32(s(sT + 2), s(sTOK), 7); self.v_mov_b32(v(5), s(sT + 2))
        self.rflag_base(sT)
        self.setexec(1)
        self.global_store_dword(v(vSO), v(5), s(sT, 2), mods="sc1")
        self.setexec(-1)
        self.label(lab)
        self.stamp("flags"); self.dstamp(4 if d2 else 1)
        self.layer_bases2()
        NM = self.o.get("nm", 12)
        sub = K4(stamps=False, opts=self.o); sub.uid = self.uid + 200000; sub.cold = []; sub.cold2 = []
        sub.conv_fill_h()
        sub.w_zero()
        sub.s_lshl_b32(s(sT + 4), s(sW), 2); sub.lanemask(sM0, s(sT + 4), 4)
        sub.s_sub_u32(s(sT + 4), 28, s(sT + 4)); sub.lanemask(sMZ, s(sT + 4), 4); sub.s_or_b64(s(sMZ, 2), s(sMZ, 2), s(sM0, 2))
        sub.s_lshr_b32(s(sT + 4), s(sS), 3); sub.s_lshl_b32(s(sT + 4), s(sT + 4), 3); sub.lanemask(sMA, s(sT + 4), 8)
        sub.conv_addrs(); sub.wo_addr()
        self.uid = sub.uid
        self.splice_w(sub.items, range(NE, NM))
        self.s_mov_b32(s(sMO), -1); self.s_mov_b32(s(sMO + 1), 0)
        self.stamp("hfill"); self.dstamp(5) if d2 else None
        self.first_flags4()
        self.stamp("ff"); self.dstamp(6) if d2 else None
        self.conv_r_issue()
        self.z_addr(8)
        self.p0_ln()
        self.stores(self.z_store_list(56, sZB, 8))
        if NM < 16:
            self.s_mov_b32(s(sSRD), s(self.sWQ2)); self.s_mov_b32(s(sSRD + 1), s(self.sWQ2 + 1))
            self.s_mov_b32(s(sSRD + 2), 640 * 1920 * 2); self.s_mov_b32(s(sSRD + 3), "0x00020000")
            for i_ in range(NM, 16): self.w_one(i_)
        self.code_prefetch(86)
        extra = 0
        if not self.o.get("noflagpt"):
            self.v_min_u32(v(4), 5, v(vLANE)); self.v_lshlrev_b32(v(4), 15, v(4))
            self.s_lshl_b32(s(sT), s(sG), 12); self.s_lshl_b32(s(sT + 1), s(sS), 7); self.s_add_u32(s(sT), s(sT), s(sT + 1)); self.s_add_u32(s(sT), s(sT), hex(OFF_FL2))
            self.v_add_u32(v(4), s(sT), v(4))
            self.global_load_dword(v(84), v(4), s(sWS, 2)); extra += 1
        if self.o.get("ptearly"):
            self.pretouch_addr(4); self.global_load_dword(v(85), v(4), s(sWS, 2), mods="nt" if self.o.get("ptnt") else ""); extra += 1
        self.w_lds(0, NM)
        self.conv_fill_r(3 + 1 + extra + 16 - NM)
        self.wait(vm=1 + extra)
        if NM < 16: self.w_lds(NM, 16)
        self.wait(lg=0); self.s_barrier()
        self.v_mov_b32(v(4), s(sEXP))
        self.flag_store(sFZ, 4)
        self.stamp("rfill"); self.dstamp(7) if d2 else None
        sub = K4(stamps=False, opts=self.o); sub.uid = self.uid + 100000; sub.cold = []; sub.cold2 = []
        sub.epi_prep_nolds(); sub.qkv_addr(); sub.mask_gen(False)
        sub.conv_tails_addr()
        self.uid = sub.uid
        self.conv_mains(sub.items)
        self.stamp("mains"); self.dstamp(8) if self.o.get("d2") else None
        self.global_load_dword(v(79), v(vPL), s(sFZ, 2), mods="sc1")
        self.wait(vm=1 if self.o.get("wolate") else 33)
        self.w_lds2(16, 32)
        self.conv_tails()
        self.stamp("tails"); self.dstamp(9) if self.o.get("d2") else None
        ok = self.newlabel("zok")
        self.wait(vm=3)
        self.v_cmp_ne_u32("vcc", s(sEXP), v(79)); self.s_and_b64("vcc", "vcc", s(sMZ, 2)); self.s_cbranch_scc0(ok)
        self.poll2(sFZ, vPL, sEXP, sMZ)
        self.label(ok)
        self.qkv_zissue()
        self.v_xor_b32(v(4), 48, v(self.vSA)); self.ds_write_b64(v(4), v(88, 2))
        self.wait(lg=0); self.s_barrier()
        self.stamp("wlds"); self.dstamp(10 if self.o.get("d2") else 2); self._d2ok = False
        self.qkv_init()
        self.s_branch("L_QKV")

    def build(self):
        self.fallbacks = []
        self.startup()
        self.label("L_LAYER")
        self.layer_bases2()
        self.epi_prep(); self.mask_gen(False)
        self.qkv_addr(); self.qkv_init()
        self.poll2(sFZ, vPL, sEXP, sMZ)
        if self.o.get("l1wt"): self.s_mov_b32(s(sMODE), 1)
        self.stamp("zwait")
        self.qkv_zissue()
        self.label("L_QKV")
        self.qkv_run()
        self.stamp("qkv"); self.dstamp(3, True)
        self.epi_run()
        self.stamp("epi")
        lab = self.newlabel("aux0")
        self.s_cmp_lg_u32(s(sL), 0); self.s_cbranch_scc1(lab)
        self.y_flag()
        self.label(lab)
        self.attn_local()
        self.stamp("local"); self.dstamp(4, True)
        self.o_prep()
        l1path, joined = self.newlabel("l1p"), self.newlabel("joined")
        self.s_cmp_lg_u32(s(sL), 0); self.s_cbranch_scc1(l1path)
        if self.o.get("wolate"):
            self.y_flags_issue()
            nh = self.newlabel("nh")
            self.s_cmp_eq_u32(s(sG), 0); self.s_cbranch_scc1(nh)
            self.halo_prep()
            self.halo_issue()
            self.label(nh)
            self.wait(vm=0)
            self.y_flags_check()
            nh = self.newlabel("nh")
            self.s_cmp_eq_u32(s(sG), 0); self.s_cbranch_scc1(nh)
            self.halo_land(0)
            self.label(nh)
            self.wait(lg=0); self.s_barrier()
            self.y_issue()
            nh = self.newlabel("nh")
            self.s_cmp_lg_u32(s(sG), 0); self.s_cbranch_scc1(nh)
            self.wo_range(8, 32)
            self.label(nh)
        else:
            wo1, wo2 = self.wo_stage_split()
            self.s_barrier()
            self.items += wo1
            nh = self.newlabel("nh")
            self.s_cmp_eq_u32(s(sG), 0); self.s_cbranch_scc1(nh)
            self.halo_prep()
            self.halo_issue()
            self.label(nh)
            self.y_flags_issue()
            self.items += wo2
            self.stamp("wo"); self.dstamp(5)
            self.wait(vm=0)
            self.y_flags_check()
            nh = self.newlabel("nh")
            self.s_cmp_eq_u32(s(sG), 0); self.s_cbranch_scc1(nh)
            self.halo_land(0)
            self.label(nh)
            self.wait(lg=0); self.s_barrier()
            self.y_issue()
        self.s_branch(joined)
        self.label(l1path)
        self.s_cmp_eq_u32(s(sG), 0); self.s_cbranch_scc1(joined)
        self.halo_prep()
        self.halo_issue()
        self.halo_land(0)
        self.wait(lg=0); self.s_barrier()
        self.label(joined)
        self.stamp("halof")
        nohalo = self.newlabel("nohalo")
        self.s_cmp_eq_u32(s(sG), 0); self.s_cbranch_scc1(nohalo)
        self.attn_halo()
        self.label(nohalo)
        self.stamp("halo"); self.dstamp(6, True)
        self.range_check()
        self.o_store()
        self.s_add_u32(s(sT), s(sEXP), 1); self.v_mov_b32(v(5), s(sT))
        self.signal2(sFO, 5)
        self.stamp("osig")
        lab = self.newlabel("aux2")
        self.s_cmp_lg_u32(s(sL), 0); self.s_cbranch_scc1(lab)
        self.y_finish()
        if self.o.get("wolate"):
            wo1, wo2 = self.wo_stage_split()
            self.s_barrier()
            self.items += wo1; self.items += wo2
        self.stamp("yld")
        self.label(lab)
        self.op_prep()
        self.s_add_u32(s(sT + 8), s(sEXP), 1)
        self.poll2(sFO, vPL, sT + 8, sMO)
        self.stamp("owait")
        self.op_run()
        self.s_add_u32(s(sT), s(sEXP), 2); self.v_mov_b32(v(5), s(sT))
        self.signal2(sFA, 5)
        self.stamp("asig"); self.dstamp(7, True)
        if self.o.get("wb"):
            lab = self.newlabel("wb")
            self.s_cmp_eq_u32(s(sL), 0); self.s_cbranch_scc1(lab)
            self.s_cmp_lg_u32(s(sS), 0); self.s_cbranch_scc1(lab)
            self.s_cmp_lg_u32(s(sW), 3); self.s_cbranch_scc1(lab)
            self.I("buffer_wbl2", mods="sc1")
            self.label(lab)
        self.p4_prep()
        self.s_add_u32(s(sT + 8), s(sEXP), 2)
        self.poll2(sFA, vPL, sT + 8, sMA)
        self.stamp("await")
        self.p4_run()
        self.s_cmp_lg_u32(s(sL), 0); self.s_cbranch_scc1("L_FINAL")
        self.p4_z()
        self.stores(self.z_store_list(56, sZN, 8))
        self.pack(vX, self.XF, 12)
        self.s_add_u32(s(sT), s(sEXP), 3); self.v_mov_b32(v(5), s(sT))
        self.signal2(sFN, 5)
        self.stamp("p4")
        self.s_mov_b32(s(sL), 1)
        self.s_branch("L_LAYER")
        self.label("L_FINAL")
        self.pack(vX, self.XF, 12)
        self.out_store()
        if self.o.get("span"):
            self.wait(vm=0); self.stamps = True
        self.stamp("end")
        self.dflush()
        return self.finish()

if __name__ == "__main__":
    import argparse
    ap = argparse.ArgumentParser()
    ap.add_argument("-o", default="k4.s"); ap.add_argument("--stamps", action="store_true")
    ap.add_argument("--slow", action="store_true"); ap.add_argument("-v", action="store_true"); ap.add_argument("--opt", default="")
    a_ = ap.parse_args()
    k = K4(stamps=a_.stamps, opts=dict({"force_slow": a_.slow}, **{x.split("=")[0]: (int(x.split("=")[1]) if "=" in x else 1) for x in a_.opt.split(",") if x}))
    k.build()
    ins = k.fix_all(verbose=a_.v)
    open(a_.o, "w").write(render_file(k))
    n = sum(1 for it in k.items if isinstance(it, Ins))
    print("instructions:", n, "nops inserted:", len(ins), "stamps:", ",".join(k.stamp_names))
```

```python
import sys, math
from asm import *
import kern2 as K2M
from kern2 import *
from kern2 import (sEXP, sHEXP, sFZ, sFO, sFA, sFN, sZB, sOB, sAB, sHB, sHP, sZN, sHFO, sHFI, sMZ, sMO, sMA, vL8, vPL, vZERO, vSO,
                   OFF_FL2, L_CNT)

class K4(K2):
    CD, CDV, C2D, C2DV, CR, C2R, CE, C2E = 168, 186, 188, 194, 196, 204, 112, 120
    CH0, CH1, CH2 = L_K, L_K + 24832, L_HK
    sB1, sCH1, sHW, sCH2 = sU + 8, sU + 9, sU + 10, sU + 11
    vA1, vB1, vA2, vB2, vR1, vR2 = 74, 75, 76, 77, 70, 71
    C0T, C0TAP = L_W, L_W + 12288
    @property
    def WOL(self): return (0, 100) if self.o.get("wolate") else (64, 128)
    vWG = 78
    sWQ2 = sU + 12
    @property
    def N_C0(self): return 0

    def c0_issue(self):
        KP, VP, RG, CC = self.CKP, self.CVP, self.CRG, self.CCC
        self.s_mov_b32(s(sSRD), s(sBK)); self.s_mov_b32(s(sSRD + 1), s(sBK + 1))
        self.s_mov_b32(s(sSRD + 2), 2048 * 1280); self.s_mov_b32(s(sSRD + 3), "0x00020000")
        self.v_min_u32(v(4), 159, v(vTID))
        self.v_mul_u32_u24(v(RG), 6554, v(4)); self.v_lshrrev_b32(v(RG), 16, v(RG))
        self.v_mul_u32_u24(v(CC), 10, v(RG)); self.v_sub_u32(v(CC), v(4), v(CC))
        self.s_lshl_b32(s(sT), s(sS), 6); self.s_sub_u32(s(sT), s(sT), 3)
        self.v_lshl_add_u32(v(4), v(RG), 2, s(sT))
        self.s_mov_b32(s(sT + 1), 1280); self.v_mul_lo_u32(v(4), s(sT + 1), v(4))
        self.smul(sT + 2, sG, 160); self.v_lshl_add_u32(v(5), v(CC), 4, s(sT + 2)); self.v_add_u32(v(4), v(4), v(5))
        for j in range(7):
            self.buffer_load_dwordx4(v(KP + 4 * j, 4), v(4), s(sSRD, 4), 0, mods="offen")
            if j == 2: self.v_add_u32(v(5), 1280, v(4))
            if j < 6: self.v_add_u32(v(4), 1280, v(4))
        self.s_mov_b32(s(sSRD), s(sBV)); self.s_mov_b32(s(sSRD + 1), s(sBV + 1))
        for j in range(4):
            self.buffer_load_dwordx4(v(VP + 4 * j, 4), v(5), s(sSRD, 4), 0, mods="offen")
            if j < 3: self.v_add_u32(v(5), 1280, v(5))
        self.smul(sT + 2, sG, 640); self.v_min_u32(v(4), 39, v(vLANE)); self.v_lshl_add_u32(v(4), v(4), 4, s(sT + 2))
        self.global_load_dwordx4(v(self.CTP, 4), v(4), s(sSH, 2))
    def c0_taps(self):
        self.v_min_u32(v(4), 39, v(vLANE)); self.v_lshlrev_b32(v(4), 4, v(4)); self.v_add_u32(v(4), self.C0TAP, v(4))
        self.ds_write_b128(v(4), v(self.CTP, 4))
        self.v_lshlrev_b32(v(5), 6, v(self.CCC)); self.v_add_u32(v(5), self.C0TAP, v(5))
        self.wait(lg=0); self.s_barrier()
        for j in range(4): self.ds_read_b128(v(self.CSP + 4 * j, 4), v(5), mods=f"offset:{16 * j}")
    def c0_all(self, splice):
        n0 = len(self.items)
        self.c0_compute(splice); self.c0_tail4()
        for it in self.items[n0:]:
            if isinstance(it, Ins) and it.op == "v_add_u32":
                if it.ops[1] == str(L_K + 120): it.ops[1] = str(self.C0T + 120)
                elif it.ops[1] == str(L_K): it.ops[1] = str(self.C0T)

    RD, RA = 40, 52
    def c0_tail4(self):
        RD, RA = self.RD, self.RA
        self.v_lshrrev_b32(v(8), 6, v(vTID)); self.v_mul_u32_u24(v(8), 1168, v(8))
        self.v_bfe_u32(v(9), v(vTID), 3, 3); self.v_mul_u32_u24(v(9), 144, v(9))
        self.v_and_b32(v(11), 7, v(vTID)); self.v_lshlrev_b32(v(11), 4, v(11))
        self.v_add3_u32(v(8), v(8), v(9), v(11)); self.v_add_u32(v(8), L_K, v(8))
        self.smul(sU, sG, 80 * 4096); self.s_lshl_b32(s(sU + 1), s(sS), 7); self.s_sub_u32(s(sU), s(sU), s(sU + 1))
        self.s_add_u32(s(sU), s(sU), hex(OFF_R + 1984 * 2))
        self.v_lshrrev_b32(v(9), 3, v(vTID)); self.v_lshlrev_b32(v(9), 12, v(9)); self.v_add3_u32(v(RA), v(9), v(11), s(sU))
        self.v_add_u32(v(RA + 1), 32 * 4096, v(RA)); self.v_add_u32(v(RA + 2), 64 * 4096, v(RA))
        self.wait(lg=0); self.s_barrier()
        self.ds_read_b128(v(RD, 4), v(8)); self.ds_read_b128(v(RD + 4, 4), v(8), mods=f"offset:{4 * 1168}")
        self.ds_read_b128(v(RD + 8, 4), v(8), mods=f"offset:{8 * 1168}")
        self.wait(lg=0)
        self.r_stores("")
    def r_stores(self, mods):
        RD, RA = self.RD, self.RA
        self.global_store_dwordx4(v(RA), v(RD, 4), s(sWS, 2), mods=mods); self.global_store_dwordx4(v(RA + 1), v(RD + 4, 4), s(sWS, 2), mods=mods)
        l1 = self.newlabel("c0s")
        self.s_cmp_ge_u32(s(sW), 2); self.s_cbranch_scc1(l1)
        self.global_store_dwordx4(v(RA + 2), v(RD + 8, 4), s(sWS, 2), mods=mods)
        self.label(l1)
    def emit_slow_r(self):
        l_in, l_out = self.slow_r
        self.label(l_in)
        self.r_stores("sc1")
        self.wait(vm=0); self.s_barrier()
        self.s_lshl_b32(s(sT), s(sG), 12); self.s_add_u32(s(sT), s(sT), hex(OFF_FL2 + 7 * 8 * 4096))
        self.s_add_u32(s(sT), s(sT), s(sWS)); self.s_addc_u32(s(sT + 1), s(sWS + 1), 0)
        self.s_add_u32(s(sT + 2), s(sTOK), 8); self.v_mov_b32(v(5), s(sT + 2))
        self.flag_store(sT, 5, force_sc1=True)
        self.s_mov_b64(s(sM1, 2), -1)
        self.poll2(sT, vPL, sT + 2, sM1)
        self.s_branch(l_out)

    def conv_ids(self):
        self.s_lshr_b32(s(sT), s(sW), 1); self.smul(self.sB1, sT, 24832); self.s_add_u32(s(self.sB1), s(self.sB1), L_K)
        self.smul(sT + 1, sG, 80); self.s_lshl_b32(s(self.sCH1), s(sS), 1); self.s_add_u32(s(self.sCH1), s(self.sCH1), s(sT + 1))
        self.s_add_u32(s(self.sCH1), s(self.sCH1), s(sT)); self.s_and_b32(s(self.sHW), s(sW), 1)
        self.s_lshr_b32(s(self.sCH2), s(sS), 1); self.s_add_u32(s(self.sCH2), s(self.sCH2), s(sT + 1)); self.s_add_u32(s(self.sCH2), s(self.sCH2), 64)
    def conv_h_issue(self):
        D = self.CD
        self.conv_srd()
        self.s_lshl_b32(s(sT + 3), s(self.sCH1), 12)
        self.v_and_b32(v(4), 127, v(vTID)); self.v_lshlrev_b32(v(4), 4, v(4))
        for i in range(2):
            self.buffer_load_dwordx4(v(D + 8 * i, 4), v(4), s(sSRD, 4), s(sT + 3), mods=f"offen offset:{2048 * i}")
            self.buffer_load_dwordx2(v(D + 8 * i + 4, 2), v(4), s(sSRD, 4), s(sT + 3), mods=f"offen offset:{2048 * i + 16}")
        self.s_lshr_b32(s(sT + 4), s(self.sCH1), 1); self.s_lshl_b32(s(sT + 4), s(sT + 4), 2); self.v_mov_b32(v(5), s(sT + 4))
        self.global_load_dword(v(self.CDV), v(5), s(sSD, 2))
        self.s_lshl_b32(s(sT + 3), s(self.sCH2), 12)
        self.v_lshlrev_b32(v(4), 4, v(vTID))
        self.buffer_load_dwordx4(v(self.C2D, 4), v(4), s(sSRD, 4), s(sT + 3), mods="offen")
        self.buffer_load_dwordx2(v(self.C2D + 4, 2), v(4), s(sSRD, 4), s(sT + 3), mods="offen offset:16")
        self.s_lshr_b32(s(sT + 4), s(self.sCH2), 1); self.s_lshl_b32(s(sT + 4), s(sT + 4), 2); self.v_mov_b32(v(5), s(sT + 4))
        self.global_load_dword(v(self.C2DV), v(5), s(sSD, 2))
    def conv_fill_h(self):
        sB1 = self.sB1
        self.v_and_b32(v(8), 127, v(vTID)); self.v_lshlrev_b32(v(9), 4, v(8)); self.v_add_u32(v(11), s(sB1), v(9))
        self.ds_write_b128(v(11), v(vZERO, 4), mods=f"offset:{16640 + 320 * 16}")
        self.v_and_b32(v(16), 63, v(8)); self.v_lshlrev_b32(v(16), 4, v(16)); self.v_add_u32(v(16), s(sB1), v(16))
        self.ds_write_b128(v(16), v(vZERO, 4), mods=f"offset:{16640 + 448 * 16}")
        self.v_add_u32(v(11), 64, v(11))
        self.v_lshrrev_b32(v(self.vR1), 2, v(8)); self.v_add_u32(v(self.vR1), v(self.vR1), v(8)); self.v_lshlrev_b32(v(self.vR1), 4, v(self.vR1))
        self.v_add_u32(v(self.vR1), s(sB1), v(self.vR1))
        for i in range(2): self.conv_copies(11, self.CD + 8 * i, self.CE + 4 * i, 2048 * i)
        self.v_min_u32(v(16), 191, v(vTID)); self.v_lshlrev_b32(v(16), 4, v(16)); self.v_add_u32(v(16), self.CH2, v(16))
        self.ds_write_b128(v(16), v(vZERO, 4), mods=f"offset:{16640 + 320 * 16}")
        self.v_lshlrev_b32(v(11), 4, v(vTID)); self.v_add_u32(v(11), self.CH2 + 64, v(11))
        self.v_lshrrev_b32(v(self.vR2), 2, v(vTID)); self.v_add_u32(v(self.vR2), v(self.vR2), v(vTID)); self.v_lshlrev_b32(v(self.vR2), 4, v(self.vR2))
        self.v_add_u32(v(self.vR2), self.CH2, v(self.vR2))
        self.conv_copies(11, self.C2D, self.C2E, 0)
        lab = self.newlabel("hd")
        self.s_cmp_lg_u32(s(self.sHW), 0); self.s_cbranch_scc1(lab)
        self.conv_head(sB1, self.sCH1, self.CD, self.CDV)
        self.label(lab)
        lab = self.newlabel("hd")
        self.s_cmp_lg_u32(s(sW), 0); self.s_cbranch_scc1(lab)
        self.s_mov_b32(s(sT + 10), self.CH2)
        self.conv_head(sT + 10, self.sCH2, self.C2D, self.C2DV)
        self.label(lab)
    def conv_addr2(self, va, vb, sbase, sstep0):
        self.v_and_b32(v(10), 3, v(vLANE)); self.v_mul_u32_u24(v(10), 4160, v(10))
        self.v_bfe_u32(v(11), v(vLANE), 2, 3); self.v_lshl_add_u32(v(10), v(11), 3, v(10))
        self.v_lshrrev_b32(v(11), 5, v(vLANE)); self.v_lshl_add_u32(v(10), v(11), 4, v(10))
        self.s_lshl_b32(s(sT + 6), s(sstep0), 5); self.s_add_u32(s(sT + 6), s(sT + 6), s(sbase)); self.v_add_u32(v(va), s(sT + 6), v(10))
        self.v_and_b32(v(10), 31, v(vLANE)); self.v_sub_u32(v(10), 31, v(10)); self.v_mul_u32_u24(v(10), 5, v(10))
        self.v_add_u32(v(10), v(10), v(11)); self.v_lshlrev_b32(v(10), 4, v(10))
        self.smul(sT + 6, sstep0, 40); self.s_add_u32(s(sT + 6), s(sT + 6), s(sbase)); self.s_add_u32(s(sT + 6), s(sT + 6), 16640)
        self.v_add_u32(v(vb), s(sT + 6), v(10))
    def conv_addrs(self):
        self.s_lshl_b32(s(sT + 5), s(self.sHW), 5); self.conv_addr2(self.vA1, self.vB1, self.sB1, sT + 5)
        self.s_mov_b32(s(sT + 10), self.CH2); self.s_lshl_b32(s(sT + 5), s(sW), 4); self.conv_addr2(self.vA2, self.vB2, sT + 10, sT + 5)
    def conv_r_issue(self):
        self.s_lshl_b32(s(sT + 3), s(self.sCH1), 12); self.s_add_u32(s(sT + 3), s(sT + 3), hex(OFF_R))
        self.v_and_b32(v(4), 127, v(vTID)); self.v_lshl_add_u32(v(4), v(4), 4, s(sT + 3))
        self.global_load_dwordx4(v(self.CR, 4), v(4), s(sWS, 2), mods="sc1")
        self.global_load_dwordx4(v(self.CR + 4, 4), v(4), s(sWS, 2), mods="offset:2048 sc1")
        self.s_lshl_b32(s(sT + 3), s(self.sCH2), 12); self.s_add_u32(s(sT + 3), s(sT + 3), hex(OFF_R))
        self.v_lshl_add_u32(v(4), v(vTID), 4, s(sT + 3))
        self.global_load_dwordx4(v(self.C2R, 4), v(4), s(sWS, 2), mods="sc1")
    def conv_fill_r(self, younger):
        self.wait(vm=1 + younger)
        self.ds_write_b128(v(self.vR1), v(self.CR, 4), mods="offset:16640"); self.ds_write_b128(v(self.vR1), v(self.CR + 4, 4), mods=f"offset:{16640 + 160 * 16}")
        self.wait(vm=younger)
        self.ds_write_b128(v(self.vR2), v(self.C2R, 4), mods="offset:16640")
        self.wait(lg=0); self.s_barrier()

    NE = 6
    def w_one2(self, i):
        self.s_mov_b32(s(sT + 3), i * 5 * 3840)
        self.s_mov_b64("exec", s(sM1, 2))
        self.buffer_load_dwordx4(a(4 * (i - 16), 4), v(90), s(sSRD, 4), s(sT + 3), mods="offen")
        self.setexec(-1)
    def w_lds2(self, lo, hi):
        m128 = sum(1 << l for l in range(60) if (l & 3) < 2); m64 = sum(1 << l for l in range(60) if (l & 3) == 2)
        self.setexec(m128)
        for i in range(lo, hi): self.ds_write_b128(v(91), a(4 * (i - 16), 4), mods=f"offset:{320 * i}")
        self.setexec(m64)
        for i in range(lo, hi): self.ds_write_b64(v(91), a(4 * (i - 16), 2), mods=f"offset:{320 * i}")
        self.setexec(-1)

    LO, HI, AC, F = 16, 32, 48, 96
    def conv_mains(self, extra):
        LO, HI, AC, F = self.LO, self.HI, self.AC, self.F
        vA, vB = self.vA1, self.vB1
        def rd(m):
            f = F + 16 * (m & 3); oa = 32 * m; ob = 80 * (m >> 1) + 32 * (m & 1)
            return [lambda: self.ds_read_b64(v(f, 2), v(vA), mods=f"offset:{oa}"), lambda: self.ds_read_b64(v(f + 2, 2), v(vA), mods=f"offset:{oa + 8}"),
                    lambda: self.ds_read_b128(v(f + 8, 4), v(vB), mods=f"offset:{ob + 2560}"), lambda: self.ds_read_b128(v(f + 12, 4), v(vB), mods=f"offset:{ob}"),
                    lambda: self.ds_read_b64(v(f + 4, 2), v(vA), mods=f"offset:{oa + 2048}"), lambda: self.ds_read_b64(v(f + 6, 2), v(vA), mods=f"offset:{oa + 2056}")]
        self.zero16(LO); self.zero16(HI); self.zero16(AC)
        self.s_mov_b32(s(sM1), hex(self.WM & 0xffffffff)); self.s_mov_b32(s(sM1 + 1), hex(self.WM >> 32))
        self.s_mov_b32(s(sSRD), s(self.sWQ2)); self.s_mov_b32(s(sSRD + 1), s(self.sWQ2 + 1))
        self.s_mov_b32(s(sSRD + 2), 640 * 1920 * 2); self.s_mov_b32(s(sSRD + 3), "0x00020000")
        pieces = [[] for _ in range(32)]
        n = sum(1 for it in extra if isinstance(it, Ins)); per = max(1, -(-n // 30)); k = 0; cnt = 0; full = True; inbr = set()
        for it in extra:
            if isinstance(it, Ins):
                if cnt >= per and full and not inbr and k < 31: k += 1; cnt = 0
                if it.ops and it.ops[0] in ("exec", "exec_lo", "exec_hi"): full = (it.op == "s_mov_b64" and it.ops[1] == "-1")
                if it.kind == "branch": inbr.add(it.target)
                cnt += 1
            elif it[0] == "label": inbr.discard(it[1])
            pieces[k].append(it)
        for m in (0, 1):
            for f_ in rd(m): f_()
        for m in range(32):
            f = F + 16 * (m & 3)
            nx = rd(m + 2) if m + 2 < 32 else [lambda: None] * 6
            self.wait(lg=6 if m < 31 else 0)
            self.v_mfma_f32_32x32x16_bf16(v(LO, 16), v(f, 4), v(f + 8, 4), v(LO, 16)); nx[0](); nx[1]()
            self.v_mfma_f32_32x32x16_bf16(v(HI, 16), v(f, 4), v(f + 12, 4), v(HI, 16)); nx[2](); nx[3]()
            self.items += pieces[m]
            self.v_mfma_f32_32x32x16_bf16(v(HI, 16), v(f + 4, 4), v(f + 8, 4), v(HI, 16)); nx[4](); nx[5]()
            if m < 16: self.w_one2(16 + m)
            elif not self.o.get("wolate"):
                if m == 16: self.wo_srd()
                self.wo_issue_one(m - 16)
        vA, vB = self.vA2, self.vB2
        lhi, ldone = self.newlabel("c2hi"), self.newlabel("c2d")
        self.s_and_b32(s(sT + 5), s(sS), 1); self.s_cbranch_scc1(lhi)
        for hi in (0, 1):
            if hi: self.label(lhi)
            nrd = 5 if hi else 3
            def rd2(m):
                f = F + 16 * (m & 3); oa = 32 * m; ob = 80 * (m >> 1) + 32 * (m & 1)
                l = [lambda: self.ds_read_b64(v(f, 2), v(vA), mods=f"offset:{oa}"), lambda: self.ds_read_b64(v(f + 2, 2), v(vA), mods=f"offset:{oa + 8}"),
                     lambda: self.ds_read_b128(v(f + 8, 4), v(vB), mods=f"offset:{ob + 2560}")]
                if hi:
                    l += [lambda: self.ds_read_b128(v(f + 12, 4), v(vB), mods=f"offset:{ob}"),
                          lambda: self.ds_read_b64(v(f + 4, 2), v(vA), mods=f"offset:{oa + 2048}"), lambda: self.ds_read_b64(v(f + 6, 2), v(vA), mods=f"offset:{oa + 2056}")]
                return l
            nr = 6 if hi else 3
            for m in (0, 1):
                for f_ in rd2(m): f_()
            for m in range(16):
                f = F + 16 * (m & 3)
                nx = rd2(m + 2) if m + 2 < 16 else [lambda: None] * nr
                self.wait(lg=nr if m < 15 else 0)
                if hi:
                    self.v_mfma_f32_32x32x16_bf16(v(AC, 16), v(f, 4), v(f + 12, 4), v(AC, 16)); nx[0](); nx[1](); nx[2]()
                    self.v_mfma_f32_32x32x16_bf16(v(AC, 16), v(f + 4, 4), v(f + 8, 4), v(AC, 16)); nx[3](); nx[4](); nx[5]()
                else:
                    self.v_mfma_f32_32x32x16_bf16(v(AC, 16), v(f, 4), v(f + 8, 4), v(AC, 16)); nx[0](); nx[1](); nx[2]()
                if not self.o.get("wolate"): self.wo_issue_one(16 + m)
            if not hi: self.s_branch(ldone)
        self.label(ldone)

    def conv_tails_addr(self):
        LO, HI, AC, F = self.LO, self.HI, self.AC, self.F
        X1, X2, TO1, TO2 = self.CH0, self.CH1, self.CH2, self.CH2 + 8192
        self.s_lshl_b32(s(sT + 8), s(sW), 12); self.v_add_u32(v(64), s(sT + 8), v(vL16))
        self.s_xor_b32(s(sT + 9), s(sW), 1); self.s_lshl_b32(s(sT + 9), s(sT + 9), 12); self.s_add_u32(s(sT + 9), s(sT + 9), X1); self.v_add_u32(v(67), s(sT + 9), v(vL16))
        self.v_add_u32(v(66), X1, v(64)); self.v_add_u32(v(65), X2, v(64))
        self.s_lshl_b32(s(sT + 8), s(sW), 10); self.s_add_u32(s(sT + 8), s(sT + 8), X2); self.v_add_u32(v(64), s(sT + 8), v(vL16))
        self.v_and_b32(v(70), 31, v(vLANE)); self.v_lshlrev_b32(v(70), 6, v(70))
        self.v_lshrrev_b32(v(71), 5, v(vLANE)); self.v_lshl_add_u32(v(70), v(71), 3, v(70))
        self.s_lshl_b32(s(sT + 8), s(sW), 11); self.s_add_u32(s(sT + 8), s(sT + 8), TO1); self.v_add_u32(v(71), s(sT + 8), v(70)); self.v_add_u32(v(72), s(sT + 8), v(vL16))
        self.s_lshl_b32(s(sT + 8), s(sW), 4); self.s_add_u32(s(sT + 8), s(sT + 8), TO2); self.v_add_u32(v(70), s(sT + 8), v(70))
        self.s_lshl_b32(s(sT + 8), s(self.sHW), 11); self.s_lshl_b32(s(sT + 9), s(self.sCH1), 12); self.s_add_u32(s(sT + 8), s(sT + 8), s(sT + 9))
        self.s_add_u32(s(sT + 8), s(sT + 8), hex(OFF_Y)); self.v_add_u32(v(73), s(sT + 8), v(vL16))
    def conv_tails(self):
        LO, HI, AC, F = self.LO, self.HI, self.AC, self.F
        X1, X2, TO1, TO2 = self.CH0, self.CH1, self.CH2, self.CH2 + 8192
        self.s_barrier()
        l1, l2 = self.newlabel("cx"), self.newlabel("cy")
        self.s_cmp_lg_u32(s(self.sHW), 0); self.s_cbranch_scc1(l1)
        for q in range(4): self.ds_write_b128(v(66), v(HI + 4 * q, 4), mods=f"offset:{1024 * q}")
        self.s_branch(l2)
        self.label(l1)
        for q in range(4): self.ds_write_b128(v(66), v(LO + 4 * q, 4), mods=f"offset:{1024 * q}")
        self.label(l2)
        for q in range(4): self.ds_write_b128(v(65), v(AC + 4 * q, 4), mods=f"offset:{1024 * q}")
        self.wait(lg=0); self.s_barrier()
        for q in range(4): self.ds_read_b128(v(F + 4 * q, 4), v(67), mods=f"offset:{1024 * q}")
        for q in range(4): self.ds_read_b128(v(F + 16 + 4 * q, 4), v(64), mods=f"offset:{4096 * q}")
        l1, l2 = self.newlabel("cx"), self.newlabel("cy")
        self.s_cmp_lg_u32(s(self.sHW), 0); self.s_cbranch_scc1(l1)
        for role, keep in enumerate((LO, HI)):
            if role: self.label(l1)
            for q in range(4):
                self.wait(lg=7 - q)
                for r in (0, 2): self.v_pk_add_f32(v(keep + 4 * q + r, 2), v(keep + 4 * q + r, 2), v(F + 4 * q + r, 2))
                self.pack(F + 32 + 2 * q, keep + 4 * q, 2)
            if role == 0: self.s_branch(l2)
        self.label(l2)
        for q in range(4): self.ds_write_b64(v(71), v(F + 32 + 2 * q, 2), mods=f"offset:{16 * q}")
        self.wait(lg=4)
        G = F + 16
        for r in (0, 2):
            self.v_pk_add_f32(v(G + r, 2), v(G + r, 2), v(G + 4 + r, 2)); self.v_pk_add_f32(v(G + 8 + r, 2), v(G + 8 + r, 2), v(G + 12 + r, 2))
        for r in (0, 2): self.v_pk_add_f32(v(G + r, 2), v(G + r, 2), v(G + 8 + r, 2))
        self.pack(F + 40, G, 2)
        self.ds_write_b64(v(70), v(F + 40, 2))
        self.ds_read_b128(v(LO, 4), v(72)); self.ds_read_b128(v(LO + 4, 4), v(72), mods="offset:1024")
        self.s_and_b32(s(sT + 6), s(sS), 1); self.s_lshl_b32(s(sT + 6), s(sT + 6), 11); self.s_lshl_b32(s(sT + 7), s(self.sCH2), 12)
        self.s_add_u32(s(sT + 6), s(sT + 6), s(sT + 7)); self.s_add_u32(s(sT + 6), s(sT + 6), hex(OFF_Y))
        self.wait(lg=0)
        self.global_store_dwordx4(v(73), v(LO, 4), s(sWS, 2), mods="sc1")
        self.global_store_dwordx4(v(73), v(LO + 4, 4), s(sWS, 2), mods="offset:1024 sc1")
        self.s_barrier()
        self.v_and_b32(v(67), 127, v(vTID)); self.v_lshlrev_b32(v(67), 4, v(67))
        self.v_add_u32(v(66), TO2, v(67)); self.v_add_u32(v(65), s(sT + 6), v(67))
        self.ds_read_b128(v(LO + 8, 4), v(66))
        self.wait(lg=0)
        self.global_store_dwordx4(v(65), v(LO + 8, 4), s(sWS, 2), mods="sc1")

    def first_flags4(self):
        self.s_lshl_b32(s(sT), s(sG), 12); self.s_add_u32(s(sT + 1), s(sT), hex(OFF_XCC)); self.s_add_u32(s(sT), s(sT), hex(OFF_FL2 + 6 * 8 * 4096))
        self.v_mov_b32(v(16), s(sT + 1)); self.v_mov_b32(v(17), s(sT))
        self.s_mov_b32(s(sM1), 0); self.s_mov_b32(s(sM1 + 1), -1)
        self.v_cndmask_b32(v(16), v(16), v(17), s(sM1, 2)); self.v_add_u32(v(16), v(16), v(vPL))
        self.s_add_u32(s(sT + 2), s(sTOK), 64); self.s_add_u32(s(sT + 3), s(sTOK), 7)
        self.v_mov_b32(v(17), s(sT + 2)); self.v_mov_b32(v(18), s(sT + 3)); self.v_cndmask_b32(v(17), v(17), v(18), s(sM1, 2))
        self.v_mov_b32(v(18), 16); self.v_cndmask_b32(v(18), v(18), 1, s(sM1, 2))
        lp, dn = self.newlabel("xpoll"), self.newlabel("xpolld")
        self.label(lp)
        self.global_load_dword(v(5), v(16), s(sWS, 2), mods="sc1")
        self.s_cmp_eq_u32(s(sTO), 0); self.s_cbranch_scc1(dn)
        self.s_sub_u32(s(sTO), s(sTO), 1)
        self.wait(vm=0)
        self.v_sub_u32(v(5), v(5), v(17))
        self.v_cmp_le_u32("vcc", v(18), v(5))
        self.s_cmp_lg_u32("vcc_lo", 0); self.s_cbranch_scc1(lp)
        self.s_mov_b32(s(sT + 4), "vcc_hi")
        self.v_cmp_ne_u32("vcc", s(sXCC), v(5))
        self.s_cmp_lg_u32("vcc_lo", 0); self.s_cbranch_scc1(dn)
        self.s_cmp_lg_u32(s(sT + 4), 0); self.s_cbranch_scc1(lp)
        self.label(dn)
        self.v_cmp_ne_u32("vcc", s(sXCC), v(5))
        self.s_cmp_lg_u32("vcc_lo", 0)
        self.s_cselect_b32(s(sMODE), 1, 0)
        if self.o.get("force_slow"): self.s_mov_b32(s(sMODE), 1)
        self.slow_r = (self.newlabel("slowr"), self.newlabel("slowrj"))
        self.s_cmp_lg_u32(s(sMODE), 0); self.s_cbranch_scc1(self.slow_r[0])
        self.label(self.slow_r[1])

    def epi_prep_nolds(self):
        n0 = len(self.items)
        self.epi_prep()
        self.items[n0:] = [it for it in self.items[n0:] if not (isinstance(it, Ins) and it.op == "ds_write_b64")]

    def wo_stage_split(self):
        sub = K4(stamps=False, opts=self.o); sub.uid = self.uid + 300000; sub.cold = []; sub.cold2 = []
        sub.y_flag = lambda: None
        K2.wo_stage(sub)
        self.uid = sub.uid
        bars = [k for k, it in enumerate(sub.items) if isinstance(it, Ins) and it.op == "s_barrier"]
        cut = bars[1] + 1
        first = [it for it in sub.items[:cut] if not (isinstance(it, Ins) and it.op == "s_waitcnt" and it.ops[0] == "vmcnt(0)")]
        return first, sub.items[cut:]

    YR = 140
    def y_flags_issue(self):
        self.v_lshlrev_b32(v(4), 7, v(vTID)); self.v_add_u32(v(4), OFF_YFL, v(4))
        self.global_load_dword(v(156), v(4), s(sWS, 2), mods="sc1")
    def y_flags_check(self):
        ok = self.newlabel("yok")
        self.s_add_u32(s(sT + 1), s(sTOK), 32)
        self.v_cmp_ne_u32("vcc", s(sT + 1), v(156)); self.s_cmp_eq_u64("vcc", 0); self.s_cbranch_scc1(ok)
        self.v_lshlrev_b32(v(8), 7, v(vTID)); self.v_add_u32(v(8), OFF_YFL, v(8)); self.s_mov_b64(s(sT + 2, 2), -1)
        self.poll2(sWS, 8, sT + 1, sT + 2)
        self.label(ok)
    def y_issue(self):
        YR = self.YR
        lab = self.newlabel("nu")
        self.s_cmp_lg_u32(s(2), 0); self.s_cbranch_scc1(lab)
        self.s_cmp_lg_u32(s(sW), 0); self.s_cbranch_scc1(lab)
        self.v_mov_b32(v(8), OFF_N); self.v_mov_b32(v(9), s(sTOK))
        self.setexec(1); self.global_store_dword(v(8), v(9), s(sWS, 2), mods="sc1"); self.setexec(-1)
        self.label(lab)
        self.s_lshl_b32(s(sU), s(sG), 8); self.s_lshl_b32(s(sU + 1), s(sS), 3); self.s_add_u32(s(sU), s(sU), s(sU + 1)); self.s_lshl_b32(s(sU), s(sU), 1)
        self.s_add_u32(s(sU), s(sU), hex(OFF_Y))
        self.v_lshlrev_b32(v(8), 12, v(vTID)); self.v_add_u32(v(8), s(sU), v(8))
        self.global_load_dwordx4(v(YR, 4), v(8), s(sWS, 2), mods="sc1")
        self.v_add_u32(v(9), 256 * 4096, v(8)); self.global_load_dwordx4(v(YR + 4, 4), v(9), s(sWS, 2), mods="sc1")
        self.v_and_b32(v(9), 127, v(vTID)); self.v_lshlrev_b32(v(9), 12, v(9)); self.v_add_u32(v(9), s(sU), v(9)); self.v_add_u32(v(9), 512 * 4096, v(9))
        self.global_load_dwordx4(v(YR + 8, 4), v(9), s(sWS, 2), mods="sc1")
    def y_finish(self):
        YR, LY = self.YR, L_SP
        self.v_and_b32(v(10), 7, v(vTID)); self.v_mul_u32_u24(v(10), 320, v(10))
        self.v_lshrrev_b32(v(11), 3, v(vTID)); self.v_lshl_add_u32(v(10), v(11), 2, v(10)); self.v_add_u32(v(10), LY, v(10))
        for i in range(2):
            for w in range(4): self.ds_write_b32(v(10), v(YR + 4 * i + w), mods=f"offset:{2560 * w + 128 * i}")
        lab = self.newlabel("yl")
        self.s_cmp_ge_u32(s(sW), 2); self.s_cbranch_scc1(lab)
        for w in range(4): self.ds_write_b32(v(10), v(YR + 8 + w), mods=f"offset:{2560 * w + 256}")
        self.label(lab)
        self.smul(sU, sW, 2560); self.s_add_u32(s(sU), s(sU), LY)
        self.v_bfe_u32(v(10), v(vLANE), 2, 2); self.v_mul_u32_u24(v(10), 320, v(10))
        self.v_lshrrev_b32(v(11), 4, v(vLANE)); self.v_lshl_add_u32(v(10), v(11), 5, v(10))
        self.v_and_b32(v(11), 3, v(vLANE)); self.v_lshl_add_u32(v(10), v(11), 3, v(10)); self.v_add_u32(v(10), s(sU), v(10))
        self.wait(lg=0); self.s_barrier()
        for m in range(3):
            self.ds_read_b64_tr_b16(v(vY + 4 * m, 2), v(10), mods=f"offset:{128 * m}")
            self.ds_read_b64_tr_b16(v(vY + 4 * m + 2, 2), v(10), mods=f"offset:{128 * m + 4 * 320}")
        self.wait(lg=0)
        self.setexec(0xffffffff00000000)
        for j in range(8, 12): self.v_mov_b32(v(vY + j), 0)
        self.setexec(-1)

    def wo_range(self, lo, hi):
        lab = self.newlabel("wb")
        self.s_cmp_lg_u32(s(sL), 0); self.s_cbranch_scc1(lab)
        self.wo_srd()
        for n in range(lo, hi): self.wo_issue_one(n)
        self.label(lab)
    def wo_batch(self, b):
        self.wo_srd()
        for n in range(8 * b, 8 * b + 8): self.wo_issue_one(n)
    def wo_batch_l0(self, b):
        lab = self.newlabel("wb")
        self.s_cmp_lg_u32(s(sL), 0); self.s_cbranch_scc1(lab)
        self.wo_batch(b)
        self.label(lab)
    def attn_first_reads(self, desc, sKblk, sVblk):
        vk, vk1, vv = 8, 9, 10
        if desc:
            self.s_sub_u32(s(sT), s(sKblk), 4608); self.s_sub_u32(s(sT + 1), s(sVblk), 4096)
            oK0, oK1, oV0 = 4608, 3072, 4096
        else:
            self.s_mov_b32(s(sT), s(sKblk)); self.s_mov_b32(s(sT + 1), s(sVblk))
            oK0, oK1, oV0 = 0, 1536, 0
        self.v_add_u32(v(vk), s(sT), v(vL16)); self.v_add_u32(v(vk1), s(sT), v(vL8)); self.v_add_u32(v(vv), s(sT + 1), v(vL16))
        self.ds_read_b128(v(self.KP0, 4), v(vk), mods=f"offset:{oK0}"); self.ds_read_b64(v(self.KP1, 2), v(vk1), mods=f"offset:{oK0 + 1024}")
        self.ds_read_b128(v(self.KF0, 4), v(vk), mods=f"offset:{oK1}"); self.ds_read_b64(v(self.KF1, 2), v(vk1), mods=f"offset:{oK1 + 1024}")
        self.ds_read_b128(v(self.VF0, 4), v(vv), mods=f"offset:{oV0}")
    def attn_seq2(self, Q, O, desc, sCNT, pending):
        SA, SB, PP, KF0, KF1, VF0, VF1, MSK, KP0, KP1 = self.SA, self.SB, self.PP, self.KF0, self.KF1, self.VF0, self.VF1, self.MSK, self.KP0, self.KP1
        vk, vk1, vv = 8, 9, 10
        if pending is not None:
            self.wait(lg=5)
            self.v_mfma_f32_32x32x16_bf16(v(pending, 16), v(VF1, 4), v(PP + 4, 4), v(pending, 16))
        self.wait(lg=3)
        self.v_mfma_f32_32x32x16_bf16(v(SA, 16), v(KP0, 4), v(Q, 4), v(MSK, 16))
        self.v_mfma_f32_32x32x8_bf16(v(SA, 16), v(KP1, 2), v(Q + 4, 2), v(SA, 16))
        self.wait(lg=1)
        self.s_nop(8)
        lp, ex, first = self.newlabel("att"), self.newlabel("attx"), self.newlabel("attf")
        self.s_branch(first)
        def body(S, Sn, entry, par):
            if desc:
                oK = 1536 if par == 0 else 0
                oV1 = (4096 if par == 0 else 2048) + 1024
                oV0 = 2048 if par == 0 else 0
            else:
                oK = 3072 if par == 0 else 4608
                oV1 = (0 if par == 0 else 2048) + 1024
                oV0 = 2048 if par == 0 else 4096
            self.wait(lg=1)
            self.v_mfma_f32_32x32x16_bf16(v(O, 16), v(VF1, 4), v(PP + 4, 4), v(O, 16))
            if entry: self.label(entry)
            self.ds_read_b128(v(VF1, 4), v(vv), mods=f"offset:{oV1}")
            for e in range(4): self.v_exp_f32(v(S + e), v(S + e))
            self.v_cvt_pk_bf16_f32(v(PP), v(S), v(S + 1)); self.v_cvt_pk_bf16_f32(v(PP + 1), v(S + 2), v(S + 3))
            self.v_mfma_f32_32x32x16_bf16(v(Sn, 16), v(KF0, 4), v(Q, 4), 0)
            self.ds_read_b128(v(KF0, 4), v(vk), mods=f"offset:{oK}")
            for e in range(4, 8): self.v_exp_f32(v(S + e), v(S + e))
            self.v_cvt_pk_bf16_f32(v(PP + 2), v(S + 4), v(S + 5)); self.v_cvt_pk_bf16_f32(v(PP + 3), v(S + 6), v(S + 7))
            self.v_mfma_f32_32x32x8_bf16(v(Sn, 16), v(KF1, 2), v(Q + 4, 2), v(Sn, 16))
            self.ds_read_b64(v(KF1, 2), v(vk1), mods=f"offset:{oK + 1024}")
            for e in range(8, 12): self.v_exp_f32(v(S + e), v(S + e))
            self.wait(lg=3)
            self.v_mfma_f32_32x32x16_bf16(v(O, 16), v(VF0, 4), v(PP, 4), v(O, 16))
            self.ds_read_b128(v(VF0, 4), v(vv), mods=f"offset:{oV0}")
            self.v_cvt_pk_bf16_f32(v(PP + 4), v(S + 8), v(S + 9)); self.v_cvt_pk_bf16_f32(v(PP + 5), v(S + 10), v(S + 11))
            for e in range(12, 16): self.v_exp_f32(v(S + e), v(S + e))
            if par == 1:
                d = (-3072, -4096) if desc else (3072, 4096)
                self.v_add_u32(v(vk), d[0] & 0xffffffff, v(vk)); self.v_add_u32(v(vk1), d[0] & 0xffffffff, v(vk1))
            self.v_cvt_pk_bf16_f32(v(PP + 6), v(S + 12), v(S + 13)); self.v_cvt_pk_bf16_f32(v(PP + 7), v(S + 14), v(S + 15))
            if par == 1: self.v_add_u32(v(vv), d[1] & 0xffffffff, v(vv))
            self.s_add_u32(s(sCNT), s(sCNT), 1)
        self.label(lp)
        body(SA, SB, first, 0)
        self.s_cbranch_scc1(ex)
        body(SB, SA, None, 1)
        self.s_cbranch_scc0(lp)
        self.label(ex)
    def attn_finish(self, O):
        self.wait(lg=0)
        self.v_mfma_f32_32x32x16_bf16(v(O, 16), v(self.VF1, 4), v(self.PP + 4, 4), v(O, 16))

    def attn_local(self):
        sKb, sVb, sN = sU + 6, sU + 7, sU + 8
        self.smul(sKb, sW, 1536); self.s_add_u32(s(sKb), s(sKb), L_K); self.s_lshl_b32(s(sVb), s(sW), 11); self.s_add_u32(s(sVb), s(sVb), L_V)
        self.attn_first_reads(True, sKb, sVb)
        self.s_sub_u32(s(sN), -1, s(sW))
        self.attn_seq2(self.QA, self.OA, True, sN, None)
        self.s_sub_u32(s(sT + 2), 7, s(sW))
        self.smul(sKb, sT + 2, 1536); self.s_add_u32(s(sKb), s(sKb), L_K); self.s_lshl_b32(s(sVb), s(sT + 2), 11); self.s_add_u32(s(sVb), s(sVb), L_V)
        self.attn_first_reads(True, sKb, sVb)
        self.s_sub_u32(s(sN), s(sW), 8)
        self.wait(lg=5)
        self.v_mfma_f32_32x32x16_bf16(v(self.OA, 16), v(self.VF1, 4), v(self.PP + 4, 4), v(self.OA, 16))
        self.halo_publish()
        lab = self.newlabel("pt")
        self.s_cmp_lg_u32(s(sL), 0); self.s_cbranch_scc1(lab)
        self.pretouch_addr(4)
        self.global_load_dword(v(230), v(4), s(sWS, 2))
        self.label(lab)
        if self.o.get("wolate"):
            lab = self.newlabel("wa")
            self.s_cmp_lg_u32(s(sL), 0); self.s_cbranch_scc1(lab)
            self.wo_addr()
            self.label(lab)
            self.wo_range(0, 8)
        self.attn_seq2(self.QB, self.OB, True, sN, None)
        self.attn_finish(self.OB)
    def attn_halo(self):
        sKb, sVb, sN = sU + 6, sU + 7, sU + 8
        self.smul(sKb, sW, 1536); self.s_add_u32(s(sKb), s(sKb), L_HK); self.s_lshl_b32(s(sVb), s(sW), 11); self.s_add_u32(s(sVb), s(sVb), L_HV)
        if self.o.get("wolate"): self.wo_range(8, 20)
        self.attn_first_reads(False, sKb, sVb)
        self.s_sub_u32(s(sN), s(sW), 8)
        self.attn_seq2(self.QA, self.OA, False, sN, None)
        if self.o.get("wolate"): self.wo_range(20, 32)
        self.s_sub_u32(s(sT + 2), 7, s(sW))
        self.smul(sKb, sT + 2, 1536); self.s_add_u32(s(sKb), s(sKb), L_HK); self.s_lshl_b32(s(sVb), s(sT + 2), 11); self.s_add_u32(s(sVb), s(sVb), L_HV)
        self.attn_first_reads(False, sKb, sVb)
        self.s_sub_u32(s(sN), -1, s(sW))
        self.attn_seq2(self.QB, self.OB, False, sN, self.OA)
        self.attn_finish(self.OB)

    def qkv_run(self):
        ACC, ZR, WF = self.ACC, self.ZR, self.WF
        vzA, vzB, vw0, vw1 = 8, 9, 10, 11
        def wr(st, kk, T):
            r = WF + 8 * st + 4 * T; vw = (vw0, vw1)[T]
            self.ds_read_b64_tr_b16(v(r, 2), v(vw), mods=f"offset:{kk * 1024}")
            self.ds_read_b64_tr_b16(v(r + 2, 2), v(vw), mods=f"offset:{kk * 1024 + 256}")
        def body(last):
            for j in range(8):
                st = j & 1
                more = not (last and j == 7)
                mf = lambda blk, T: self.v_mfma_f32_32x32x16_bf16(v(ACC + 32 * blk + 16 * T, 16), v(WF + 8 * st + 4 * T, 4), v(ZR + 8 * j + 4 * blk, 4), v(ACC + 32 * blk + 16 * T, 16))
                self.wait(vm=((15 - 2 * j) if last else 15), lg=0)
                mf(0, 0)
                if more: wr(st ^ 1, j + 1, 0)
                mf(0, 1)
                if more: wr(st ^ 1, j + 1, 1)
                if not last: self.global_load_dwordx4(v(ZR + 8 * j, 4), v(vzA), s(sZB, 2), mods=f"offset:{(j % 4) * 1024} sc1")
                self.wait(vm=((14 - 2 * j) if last else 15))
                mf(1, 0)
                if not last and j % 4 == 3: self.v_add_u32(v(vzA), 4096, v(vzA))
                mf(1, 1)
                if not last:
                    self.global_load_dwordx4(v(ZR + 8 * j + 4, 4), v(vzB), s(sZB, 2), mods=f"offset:{(j % 4) * 1024} sc1")
                    if j % 4 == 3: self.v_add_u32(v(vzB), 4096, v(vzB))
            if not last:
                self.v_add_u32(v(vw0), 8192, v(vw0)); self.v_add_u32(v(vw1), 8192, v(vw1))
        lp = self.newlabel("qkv")
        self.s_mov_b32(s(sU), -4)
        self.label(lp)
        body(False)
        self.s_add_u32(s(sU), s(sU), 1); self.s_cbranch_scc0(lp)
        body(True)

    def op_prep(self):
        super().op_prep()
        self.s_lshr_b32(s(sU + 5), s(sU + 2), 1); self.smul(sU + 5, sU + 5, 40960)
        self.s_and_b32(s(sU + 6), s(sU + 2), 1); self.s_lshl_b32(s(sU + 6), s(sU + 6), 8); self.s_add_u32(s(sU + 5), s(sU + 5), s(sU + 6))
        self.s_and_b32(s(sU + 6), s(sS), 7); self.smul(sU + 6, sU + 6, 5120); self.s_add_u32(s(sU + 5), s(sU + 5), s(sU + 6))
        self.v_bfe_u32(v(12), v(vLANE), 3, 1); self.v_lshlrev_b32(v(12), 7, v(12))
        self.v_and_b32(v(13), 7, v(vLANE)); self.v_lshl_add_u32(v(12), v(13), 4, v(12))
        self.v_bfe_u32(v(13), v(vLANE), 4, 1); self.v_lshl_add_u32(v(12), v(13), 10, v(12))
        self.v_lshrrev_b32(v(13), 5, v(vLANE)); self.v_lshl_add_u32(v(12), v(13), 9, v(12))
        self.v_add_u32(v(12), s(sU + 5), v(12)); self.v_add_u32(v(13), 4096, v(12))
    def op_run(self):
        n0 = len(self.items); c0 = len(self.cold)
        super().op_run()
        def fix(ops, mods):
            if "offset:512" in mods: return ops, mods.replace("offset:512", "offset:2048")
            if "offset:1024" in mods: return [v(13)] + ops[1:], mods.replace("offset:1024", "").strip()
            return ops, mods
        for it in self.items[n0:]:
            if isinstance(it, Ins) and it.op == "global_store_dwordx4" and it.ops[2] == s(sAB, 2):
                it.ops, it.mods = fix(it.ops, it.mods); it.ops[2] = s(sZB, 2); it.classify()
        l1, l2, lst = self.cold[-1]
        new = []
        for e in lst:
            if e[0] == "exec": new.append(e)
            else:
                ops, mods = fix([e[1], e[2], e[3]], e[4]); new.append((e[0], ops[0], ops[1], s(sZB, 2), mods))
        self.cold[-1] = (l1, l2, new)
    def p4_prep(self):
        self.z_addr(8)
        for j in range(8, 12): self.v_mov_b32(v(self.AP + j), 0)
        self.unpack(self.XF, vX, 12)
        self.unpack(self.YF, vY, 12)
    def p4_run(self):
        n0 = len(self.items)
        super().p4_run()
        if self.o.get("wb2"):
            k = max(i for i, it in enumerate(self.items) if isinstance(it, Ins) and it.op == "s_waitcnt" and it.ops[0] == "vmcnt(0)" and i >= n0)
            lab = self.newlabel("wb")
            ins = [Ins("s_cmp_eq_u32", [s(sL), "0"]), Ins("s_cbranch_scc1", [lab]), Ins("s_cmp_lg_u32", [s(sS), "0"]), Ins("s_cbranch_scc1", [lab]),
                   Ins("s_cmp_lg_u32", [s(sW), "3"]), Ins("s_cbranch_scc1", [lab]), Ins("buffer_wbl2", [], "sc1"), ("label", lab)]
            self.items[k + 1:k + 1] = ins
        for it in self.items[n0:]:
            if isinstance(it, Ins) and it.op == "global_load_dwordx4" and it.ops[2] == s(sAB, 2):
                it.ops[2] = s(sZB, 2); it.classify()
    def pretouch_addr(self, va):
        self.v_min_u32(v(va), 79, v(vTID)); self.v_lshlrev_b32(v(va), 7, v(va))
        self.smul(sT, sG, ZG); self.smul(sT + 1, sS, 10240); self.s_add_u32(s(sT), s(sT), s(sT + 1)); self.s_add_u32(s(sT), s(sT), hex(OFF_O))
        self.v_add_u32(v(va), s(sT), v(va))

    def halo_prep(self):
        self.smul(sT, sW, 7168); self.v_add_u32(v(12), s(sT), v(vL16)); self.v_add_u32(v(14), 4096, v(12))
        self.v_mov_b32(v(13), s(sHFI))
    def halo_issue(self):
        super().halo_issue()
        self.mask_gen(True)

    def weights_to_mall(self):
        self.smul(sT, 2, 9600); self.v_lshlrev_b32(v(4), 4, v(vTID)); self.v_add_u32(v(4), s(sT), v(4))
        self.global_load_dwordx4(v(208, 4), v(4), s(sWQ, 2))
        self.global_load_dwordx4(v(212, 4), v(4), s(sWQ, 2), mods="offset:4080")
        self.v_min_u32(v(5), 89, v(vTID)); self.v_lshlrev_b32(v(5), 4, v(5)); self.s_add_u32(s(sT), s(sT), 8160); self.v_add_u32(v(5), s(sT), v(5))
        self.global_load_dwordx4(v(216, 4), v(5), s(sWQ, 2))
        self.smul(sT, 2, 3200); self.v_min_u32(v(5), 199, v(vTID)); self.v_lshlrev_b32(v(5), 4, v(5)); self.v_add_u32(v(5), s(sT), v(5))
        self.global_load_dwordx4(v(220, 4), v(5), s(sWO, 2))
        self.v_min_u32(v(5), 79, v(vTID)); self.v_lshlrev_b32(v(5), 9, v(5))
        self.s_lshr_b32(s(sT), s(sS), 2); self.smul(sT, sT, 40960); self.s_and_b32(s(sT + 1), s(sS), 3); self.s_lshl_b32(s(sT + 1), s(sT + 1), 7)
        self.s_add_u32(s(sT), s(sT), s(sT + 1)); self.smul(sT + 1, sG, ZG); self.s_add_u32(s(sT), s(sT), s(sT + 1)); self.s_add_u32(s(sT), s(sT), hex(OFF_Z))
        self.v_add_u32(v(5), s(sT), v(5))
        self.global_load_dword(v(85), v(5), s(sWS, 2))
        self.v_min_u32(v(5), 79, v(vTID)); self.v_lshlrev_b32(v(5), 12, v(5))
        self.smul(sT, sG, 80 * 4096); self.s_lshl_b32(s(sT + 1), s(sS), 7); self.s_sub_u32(s(sT), s(sT), s(sT + 1)); self.s_add_u32(s(sT), s(sT), hex(OFF_R + 1984 * 2))
        self.v_add_u32(v(5), s(sT), v(5))
        self.s_lshl_b32(s(sT), s(sG), 12); self.s_lshl_b32(s(sT + 1), s(sS), 7); self.s_add_u32(s(sT), s(sT), s(sT + 1)); self.s_add_u32(s(sT), s(sT), hex(OFF_FL2 + 6 * 8 * 4096))
        self.v_mov_b32(v(4), s(sT)); self.v_cmp_gt_u32("vcc", 80, v(vTID)); self.v_cndmask_b32(v(5), v(4), v(5), "vcc")
        self.global_load_dword(v(84), v(5), s(sWS, 2))

    def startup(self):
        d2 = self.o.get("d2")
        NE = self.NE
        self.setup2()
        self.issue_x()
        self.v_mov_b32(v(87), OFF_N)
        self.global_load_dword(v(87), v(87), s(sWS, 2), mods="sc1")
        self.conv_ids()
        self.c0_issue()
        self.conv_h_issue()
        self.weights_to_mall()
        self.stamp("issued"); self.dstamp(1) if d2 else None
        for r in range(4): self.v_mov_b32(v(vZERO + r), 0)
        self.v_and_b32(v(vPL), 31, v(vLANE)); self.v_lshlrev_b32(v(vPL), 7, v(vPL))
        self.s_lshl_b32(s(sT), s(sS), 7); self.v_mov_b32(v(vSO), s(sT))
        self.v_mov_b32(v(4), L_CNT); self.ds_write_b32(v(4), v(vZERO))
        self.w_addr()
        self.wait(vm=8 + 6)
        self.v_readfirstlane_b32(s(sTOK), v(87))
        self.s_add_u32(s(sTOK), s(sTOK), hex(NONCE_C))
        lab = self.newlabel("xp")
        self.s_cmp_lg_u32(s(sW), 0); self.s_cbranch_scc1(lab)
        self.s_lshl_b32(s(sT), s(sG), 5); self.s_add_u32(s(sT), s(sT), s(sS)); self.s_lshl_b32(s(sT), s(sT), 7); self.s_add_u32(s(sT), s(sT), hex(OFF_XCC))
        self.s_add_u32(s(sT + 1), s(sTOK), s(sXCC)); self.s_add_u32(s(sT + 1), s(sT + 1), 64)
        self.v_mov_b32(v(4), s(sT)); self.v_mov_b32(v(5), s(sT + 1))
        self.setexec(1); self.global_store_dword(v(4), v(5), s(sWS, 2), mods="sc1"); self.setexec(-1)
        self.label(lab)
        self.stamp("z0st"); self.dstamp(2) if d2 else None
        self.c0_taps()
        self.c0_all([])
        self.s_mov_b64(s(self.sWQ2, 2), s(sWQ, 2))
        self.stamp("c0"); self.dstamp(3) if d2 else None
        self.w_issue(0, NE)
        self.wait(vm=NE); self.s_barrier()
        lab = self.newlabel("f0")
        self.s_cmp_lg_u32(s(sW), 0); self.s_cbranch_scc1(lab)
        self.s_add_u32(s(sT + 2), s(sTOK), 7); self.v_mov_b32(v(5), s(sT + 2))
        self.rflag_base(sT)
        self.setexec(1)
        self.global_store_dword(v(vSO), v(5), s(sT, 2))
        self.setexec(-1)
        self.label(lab)
        self.stamp("flags"); self.dstamp(4 if d2 else 1)
        self.layer_bases2()
        NM = self.o.get("nm", 12)
        sub = K4(stamps=False, opts=self.o); sub.uid = self.uid + 200000; sub.cold = []; sub.cold2 = []
        sub.conv_fill_h()
        sub.w_zero()
        sub.s_lshl_b32(s(sT + 4), s(sW), 2); sub.lanemask(sM0, s(sT + 4), 4)
        sub.s_sub_u32(s(sT + 4), 28, s(sT + 4)); sub.lanemask(sMZ, s(sT + 4), 4); sub.s_or_b64(s(sMZ, 2), s(sMZ, 2), s(sM0, 2))
        sub.s_lshr_b32(s(sT + 4), s(sS), 3); sub.s_lshl_b32(s(sT + 4), s(sT + 4), 3); sub.lanemask(sMA, s(sT + 4), 8)
        sub.conv_addrs(); sub.wo_addr()
        self.uid = sub.uid
        self.splice_w(sub.items, range(NE, NM))
        self.s_mov_b32(s(sMO), -1); self.s_mov_b32(s(sMO + 1), 0)
        self.stamp("hfill"); self.dstamp(5) if d2 else None
        self.first_flags4()
        self.stamp("ff"); self.dstamp(6) if d2 else None
        self.conv_r_issue()
        self.z_addr(8)
        self.p0_ln()
        self.stores(self.z_store_list(56, sZB, 8))
        if NM < 16:
            self.s_mov_b32(s(sSRD), s(self.sWQ2)); self.s_mov_b32(s(sSRD + 1), s(self.sWQ2 + 1))
            self.s_mov_b32(s(sSRD + 2), 640 * 1920 * 2); self.s_mov_b32(s(sSRD + 3), "0x00020000")
            for i_ in range(NM, 16): self.w_one(i_)
        self.code_prefetch(86)
        extra = 0
        if not self.o.get("noflagpt"):
            self.v_min_u32(v(4), 5, v(vLANE)); self.v_lshlrev_b32(v(4), 15, v(4))
            self.s_lshl_b32(s(sT), s(sG), 12); self.s_lshl_b32(s(sT + 1), s(sS), 7); self.s_add_u32(s(sT), s(sT), s(sT + 1)); self.s_add_u32(s(sT), s(sT), hex(OFF_FL2))
            self.v_add_u32(v(4), s(sT), v(4))
            self.global_load_dword(v(84), v(4), s(sWS, 2)); extra += 1
        if self.o.get("ptearly"):
            self.pretouch_addr(4); self.global_load_dword(v(85), v(4), s(sWS, 2), mods="nt" if self.o.get("ptnt") else ""); extra += 1
        self.w_lds(0, NM)
        self.conv_fill_r(3 + 1 + extra + 16 - NM)
        self.wait(vm=1 + extra)
        if NM < 16: self.w_lds(NM, 16)
        self.wait(lg=0); self.s_barrier()
        self.v_mov_b32(v(4), s(sEXP))
        self.flag_store(sFZ, 4)
        self.stamp("rfill"); self.dstamp(7) if d2 else None
        sub = K4(stamps=False, opts=self.o); sub.uid = self.uid + 100000; sub.cold = []; sub.cold2 = []
        sub.epi_prep_nolds(); sub.qkv_addr(); sub.mask_gen(False)
        sub.conv_tails_addr()
        self.uid = sub.uid
        self.conv_mains(sub.items)
        self.stamp("mains"); self.dstamp(8) if self.o.get("d2") else None
        self.global_load_dword(v(79), v(vPL), s(sFZ, 2), mods="sc1")
        self.wait(vm=1 if self.o.get("wolate") else 33)
        self.w_lds2(16, 32)
        self.conv_tails()
        self.stamp("tails"); self.dstamp(9) if self.o.get("d2") else None
        ok = self.newlabel("zok")
        self.wait(vm=3)
        self.v_cmp_ne_u32("vcc", s(sEXP), v(79)); self.s_and_b64("vcc", "vcc", s(sMZ, 2)); self.s_cbranch_scc0(ok)
        self.poll2(sFZ, vPL, sEXP, sMZ)
        self.label(ok)
        self.qkv_zissue()
        self.v_xor_b32(v(4), 48, v(self.vSA)); self.ds_write_b64(v(4), v(88, 2))
        self.wait(lg=0); self.s_barrier()
        self.stamp("wlds"); self.dstamp(10 if self.o.get("d2") else 2); self._d2ok = False
        self.qkv_init()
        self.s_branch("L_QKV")

    def finish(self):
        self.add_nt()
        self.label("L_END")
        self.s_endpgm()
        self.emit_cold2()
        self.label("L_HOTEND")
        self.emit_slow_r()
        self.emit_cold()
        self.emit_fallbacks()
        self.s_endpgm()

    def build(self):
        self.fallbacks = []
        self.startup()
        self.label("L_LAYER")
        self.layer_bases2()
        self.epi_prep(); self.mask_gen(False)
        self.qkv_addr(); self.qkv_init()
        self.poll2(sFZ, vPL, sEXP, sMZ)
        if self.o.get("l1wt"): self.s_mov_b32(s(sMODE), 1)
        self.stamp("zwait")
        self.qkv_zissue()
        self.label("L_QKV")
        self.qkv_run()
        self.stamp("qkv"); self.dstamp(3, True)
        self.epi_run()
        self.stamp("epi")
        lab = self.newlabel("aux0")
        self.s_cmp_lg_u32(s(sL), 0); self.s_cbranch_scc1(lab)
        self.y_flag()
        self.label(lab)
        self.attn_local()
        self.stamp("local"); self.dstamp(4, True)
        self.o_prep()
        l1path, joined = self.newlabel("l1p"), self.newlabel("joined")
        self.s_cmp_lg_u32(s(sL), 0); self.s_cbranch_scc1(l1path)
        if self.o.get("wolate"):
            self.y_flags_issue()
            nh = self.newlabel("nh")
            self.s_cmp_eq_u32(s(sG), 0); self.s_cbranch_scc1(nh)
            self.halo_prep()
            self.halo_issue()
            self.label(nh)
            self.wait(vm=0)
            self.y_flags_check()
            nh = self.newlabel("nh")
            self.s_cmp_eq_u32(s(sG), 0); self.s_cbranch_scc1(nh)
            self.halo_land(0)
            self.label(nh)
            self.wait(lg=0); self.s_barrier()
            self.y_issue()
            nh = self.newlabel("nh")
            self.s_cmp_lg_u32(s(sG), 0); self.s_cbranch_scc1(nh)
            self.wo_range(8, 32)
            self.label(nh)
        else:
            wo1, wo2 = self.wo_stage_split()
            self.s_barrier()
            self.items += wo1
            nh = self.newlabel("nh")
            self.s_cmp_eq_u32(s(sG), 0); self.s_cbranch_scc1(nh)
            self.halo_prep()
            self.halo_issue()
            self.label(nh)
            self.y_flags_issue()
            self.items += wo2
            self.stamp("wo"); self.dstamp(5)
            self.wait(vm=0)
            self.y_flags_check()
            nh = self.newlabel("nh")
            self.s_cmp_eq_u32(s(sG), 0); self.s_cbranch_scc1(nh)
            self.halo_land(0)
            self.label(nh)
            self.wait(lg=0); self.s_barrier()
            self.y_issue()
        self.s_branch(joined)
        self.label(l1path)
        self.s_cmp_eq_u32(s(sG), 0); self.s_cbranch_scc1(joined)
        self.halo_prep()
        self.halo_issue()
        self.halo_land(0)
        self.wait(lg=0); self.s_barrier()
        self.label(joined)
        self.stamp("halof")
        nohalo = self.newlabel("nohalo")
        self.s_cmp_eq_u32(s(sG), 0); self.s_cbranch_scc1(nohalo)
        self.attn_halo()
        self.label(nohalo)
        self.stamp("halo"); self.dstamp(6, True)
        self.range_check()
        self.o_store()
        self.s_add_u32(s(sT), s(sEXP), 1); self.v_mov_b32(v(5), s(sT))
        self.signal2(sFO, 5)
        self.stamp("osig")
        lab = self.newlabel("aux2")
        self.s_cmp_lg_u32(s(sL), 0); self.s_cbranch_scc1(lab)
        self.y_finish()
        if self.o.get("wolate"):
            wo1, wo2 = self.wo_stage_split()
            self.s_barrier()
            self.items += wo1; self.items += wo2
        self.stamp("yld")
        self.label(lab)
        self.op_prep()
        self.s_add_u32(s(sT + 8), s(sEXP), 1)
        self.poll2(sFO, vPL, sT + 8, sMO)
        self.stamp("owait")
        self.op_run()
        self.s_add_u32(s(sT), s(sEXP), 2); self.v_mov_b32(v(5), s(sT))
        self.signal2(sFA, 5)
        self.stamp("asig"); self.dstamp(7, True)
        if self.o.get("wb"):
            lab = self.newlabel("wb")
            self.s_cmp_eq_u32(s(sL), 0); self.s_cbranch_scc1(lab)
            self.s_cmp_lg_u32(s(sS), 0); self.s_cbranch_scc1(lab)
            self.s_cmp_lg_u32(s(sW), 3); self.s_cbranch_scc1(lab)
            self.I("buffer_wbl2", mods="sc1")
            self.label(lab)
        self.p4_prep()
        self.s_add_u32(s(sT + 8), s(sEXP), 2)
        self.poll2(sFA, vPL, sT + 8, sMA)
        self.stamp("await")
        self.p4_run()
        self.s_cmp_lg_u32(s(sL), 0); self.s_cbranch_scc1("L_FINAL")
        self.p4_z()
        self.stores(self.z_store_list(56, sZN, 8))
        self.pack(vX, self.XF, 12)
        self.s_add_u32(s(sT), s(sEXP), 3); self.v_mov_b32(v(5), s(sT))
        self.signal2(sFN, 5)
        self.stamp("p4")
        self.s_mov_b32(s(sL), 1)
        self.s_branch("L_LAYER")
        self.label("L_FINAL")
        self.pack(vX, self.XF, 12)
        self.out_store()
        if self.o.get("span"):
            self.wait(vm=0); self.stamps = True
        self.stamp("end")
        self.dflush()
        return self.finish()

if __name__ == "__main__":
    import argparse
    ap = argparse.ArgumentParser()
    ap.add_argument("-o", default="k4.s"); ap.add_argument("--stamps", action="store_true")
    ap.add_argument("--slow", action="store_true"); ap.add_argument("-v", action="store_true"); ap.add_argument("--opt", default="")
    a_ = ap.parse_args()
    k = K4(stamps=a_.stamps, opts=dict({"force_slow": a_.slow}, **{x.split("=")[0]: (int(x.split("=")[1]) if "=" in x else 1) for x in a_.opt.split(",") if x}))
    k.build()
    ins = k.fix_all(verbose=a_.v)
    open(a_.o, "w").write(render_file(k))
    n = sum(1 for it in k.items if isinstance(it, Ins))
    print("instructions:", n, "nops inserted:", len(ins), "stamps:", ",".join(k.stamp_names))
```

```python
import sys, math
from asm import *
import kern2 as K2M
from kern2 import *
from kern2 import (sEXP, sHEXP, sFZ, sFO, sFA, sFN, sZB, sOB, sAB, sHB, sHP, sZN, sHFO, sHFI, sMZ, sMO, sMA, vL8, vPL, vZERO, vSO,
                   OFF_FL2, L_CNT)

class K4(K2):
    CD, CDV, C2D, C2DV, CR, C2R, CE, C2E = 168, 186, 188, 194, 196, 204, 112, 120
    CH0, CH1, CH2 = L_K, L_K + 24832, L_HK
    sB1, sCH1, sHW, sCH2 = sU + 8, sU + 9, sU + 10, sU + 11
    vA1, vB1, vA2, vB2, vR1, vR2 = 74, 75, 76, 77, 70, 71
    C0T, C0TAP = L_W, L_W + 12288
    @property
    def WOL(self): return (128, 192) if "n3" in self.o else ((0, 100) if self.o.get("wolate") else (64, 128))
    @property
    def vWG(self): return 7 if self.o.get("womid") else 78
    sWQ2 = sU + 12
    @property
    def N_C0(self): return 0

    def c0_issue(self):
        KP, VP, RG, CC = self.CKP, self.CVP, self.CRG, self.CCC
        self.s_mov_b32(s(sSRD), s(sBK)); self.s_mov_b32(s(sSRD + 1), s(sBK + 1))
        self.s_mov_b32(s(sSRD + 2), 2048 * 1280); self.s_mov_b32(s(sSRD + 3), "0x00020000")
        self.v_min_u32(v(4), 159, v(vTID))
        self.v_mul_u32_u24(v(RG), 6554, v(4)); self.v_lshrrev_b32(v(RG), 16, v(RG))
        self.v_mul_u32_u24(v(CC), 10, v(RG)); self.v_sub_u32(v(CC), v(4), v(CC))
        self.s_lshl_b32(s(sT), s(sS), 6); self.s_sub_u32(s(sT), s(sT), 3)
        self.v_lshl_add_u32(v(4), v(RG), 2, s(sT))
        self.s_mov_b32(s(sT + 1), 1280); self.v_mul_lo_u32(v(4), s(sT + 1), v(4))
        self.smul(sT + 2, sG, 160); self.v_lshl_add_u32(v(5), v(CC), 4, s(sT + 2)); self.v_add_u32(v(4), v(4), v(5))
        for j in range(7):
            self.buffer_load_dwordx4(v(KP + 4 * j, 4), v(4), s(sSRD, 4), 0, mods="offen")
            if j == 2: self.v_add_u32(v(5), 1280, v(4))
            if j < 6: self.v_add_u32(v(4), 1280, v(4))
        self.s_mov_b32(s(sSRD), s(sBV)); self.s_mov_b32(s(sSRD + 1), s(sBV + 1))
        for j in range(4):
            self.buffer_load_dwordx4(v(VP + 4 * j, 4), v(5), s(sSRD, 4), 0, mods="offen")
            if j < 3: self.v_add_u32(v(5), 1280, v(5))
        self.smul(sT + 2, sG, 640); self.v_min_u32(v(4), 39, v(vLANE)); self.v_lshl_add_u32(v(4), v(4), 4, s(sT + 2))
        self.global_load_dwordx4(v(self.CTP, 4), v(4), s(sSH, 2))
    def c0_taps(self):
        self.v_min_u32(v(4), 39, v(vLANE)); self.v_lshlrev_b32(v(4), 4, v(4)); self.v_add_u32(v(4), self.C0TAP, v(4))
        self.ds_write_b128(v(4), v(self.CTP, 4))
        self.v_lshlrev_b32(v(5), 6, v(self.CCC)); self.v_add_u32(v(5), self.C0TAP, v(5))
        self.wait(lg=0); self.s_barrier()
        for j in range(4): self.ds_read_b128(v(self.CSP + 4 * j, 4), v(5), mods=f"offset:{16 * j}")
    def c0_all(self, splice):
        n0 = len(self.items)
        self.c0_compute(splice); self.c0_tail4()
        for it in self.items[n0:]:
            if isinstance(it, Ins) and it.op == "v_add_u32":
                if it.ops[1] == str(L_K + 120): it.ops[1] = str(self.C0T + 120)
                elif it.ops[1] == str(L_K): it.ops[1] = str(self.C0T)

    RD, RA = 40, 52
    def c0_tail4(self):
        RD, RA = self.RD, self.RA
        self.v_lshrrev_b32(v(8), 6, v(vTID)); self.v_mul_u32_u24(v(8), 1168, v(8))
        self.v_bfe_u32(v(9), v(vTID), 3, 3); self.v_mul_u32_u24(v(9), 144, v(9))
        self.v_and_b32(v(11), 7, v(vTID)); self.v_lshlrev_b32(v(11), 4, v(11))
        self.v_add3_u32(v(8), v(8), v(9), v(11)); self.v_add_u32(v(8), L_K, v(8))
        self.smul(sU, sG, 80 * 4096); self.s_lshl_b32(s(sU + 1), s(sS), 7); self.s_sub_u32(s(sU), s(sU), s(sU + 1))
        self.s_add_u32(s(sU), s(sU), hex(OFF_R + 1984 * 2))
        self.v_lshrrev_b32(v(9), 3, v(vTID)); self.v_lshlrev_b32(v(9), 12, v(9)); self.v_add3_u32(v(RA), v(9), v(11), s(sU))
        self.v_add_u32(v(RA + 1), 32 * 4096, v(RA)); self.v_add_u32(v(RA + 2), 64 * 4096, v(RA))
        self.wait(lg=0); self.s_barrier()
        self.ds_read_b128(v(RD, 4), v(8)); self.ds_read_b128(v(RD + 4, 4), v(8), mods=f"offset:{4 * 1168}")
        self.ds_read_b128(v(RD + 8, 4), v(8), mods=f"offset:{8 * 1168}")
        self.wait(lg=0)
        self.r_stores("")
    def r_stores(self, mods):
        RD, RA = self.RD, self.RA
        self.global_store_dwordx4(v(RA), v(RD, 4), s(sWS, 2), mods=mods); self.global_store_dwordx4(v(RA + 1), v(RD + 4, 4), s(sWS, 2), mods=mods)
        l1 = self.newlabel("c0s")
        self.s_cmp_ge_u32(s(sW), 2); self.s_cbranch_scc1(l1)
        self.global_store_dwordx4(v(RA + 2), v(RD + 8, 4), s(sWS, 2), mods=mods)
        self.label(l1)
    def emit_slow_r(self):
        l_in, l_out = self.slow_r
        self.label(l_in)
        self.r_stores("sc1")
        self.wait(vm=0); self.s_barrier()
        self.s_lshl_b32(s(sT), s(sG), 12); self.s_add_u32(s(sT), s(sT), hex(OFF_FL2 + 7 * 8 * 4096))
        self.s_add_u32(s(sT), s(sT), s(sWS)); self.s_addc_u32(s(sT + 1), s(sWS + 1), 0)
        self.s_add_u32(s(sT + 2), s(sTOK), 8); self.v_mov_b32(v(5), s(sT + 2))
        self.flag_store(sT, 5, force_sc1=True)
        self.s_mov_b64(s(sM1, 2), -1)
        self.poll2(sT, vPL, sT + 2, sM1)
        self.s_branch(l_out)

    def conv_ids(self):
        self.s_lshr_b32(s(sT), s(sW), 1); self.smul(self.sB1, sT, 24832); self.s_add_u32(s(self.sB1), s(self.sB1), L_K)
        self.smul(sT + 1, sG, 80); self.s_lshl_b32(s(self.sCH1), s(sS), 1); self.s_add_u32(s(self.sCH1), s(self.sCH1), s(sT + 1))
        self.s_add_u32(s(self.sCH1), s(self.sCH1), s(sT)); self.s_and_b32(s(self.sHW), s(sW), 1)
        self.s_lshr_b32(s(self.sCH2), s(sS), 1); self.s_add_u32(s(self.sCH2), s(self.sCH2), s(sT + 1)); self.s_add_u32(s(self.sCH2), s(self.sCH2), 64)
    def conv_h_issue(self):
        D = self.CD
        self.conv_srd()
        self.s_lshl_b32(s(sT + 3), s(self.sCH1), 12)
        self.v_and_b32(v(4), 127, v(vTID)); self.v_lshlrev_b32(v(4), 4, v(4))
        for i in range(2):
            self.buffer_load_dwordx4(v(D + 8 * i, 4), v(4), s(sSRD, 4), s(sT + 3), mods=f"offen offset:{2048 * i}")
            self.buffer_load_dwordx2(v(D + 8 * i + 4, 2), v(4), s(sSRD, 4), s(sT + 3), mods=f"offen offset:{2048 * i + 16}")
        self.s_lshr_b32(s(sT + 4), s(self.sCH1), 1); self.s_lshl_b32(s(sT + 4), s(sT + 4), 2); self.v_mov_b32(v(5), s(sT + 4))
        self.global_load_dword(v(self.CDV), v(5), s(sSD, 2))
        self.s_lshl_b32(s(sT + 3), s(self.sCH2), 12)
        self.v_lshlrev_b32(v(4), 4, v(vTID))
        self.buffer_load_dwordx4(v(self.C2D, 4), v(4), s(sSRD, 4), s(sT + 3), mods="offen")
        self.buffer_load_dwordx2(v(self.C2D + 4, 2), v(4), s(sSRD, 4), s(sT + 3), mods="offen offset:16")
        self.s_lshr_b32(s(sT + 4), s(self.sCH2), 1); self.s_lshl_b32(s(sT + 4), s(sT + 4), 2); self.v_mov_b32(v(5), s(sT + 4))
        self.global_load_dword(v(self.C2DV), v(5), s(sSD, 2))
    def conv_fill_h(self):
        sB1 = self.sB1
        self.v_and_b32(v(8), 127, v(vTID)); self.v_lshlrev_b32(v(9), 4, v(8)); self.v_add_u32(v(11), s(sB1), v(9))
        self.ds_write_b128(v(11), v(vZERO, 4), mods=f"offset:{16640 + 320 * 16}")
        self.v_and_b32(v(16), 63, v(8)); self.v_lshlrev_b32(v(16), 4, v(16)); self.v_add_u32(v(16), s(sB1), v(16))
        self.ds_write_b128(v(16), v(vZERO, 4), mods=f"offset:{16640 + 448 * 16}")
        self.v_add_u32(v(11), 64, v(11))
        self.v_lshrrev_b32(v(self.vR1), 2, v(8)); self.v_add_u32(v(self.vR1), v(self.vR1), v(8)); self.v_lshlrev_b32(v(self.vR1), 4, v(self.vR1))
        self.v_add_u32(v(self.vR1), s(sB1), v(self.vR1))
        for i in range(2): self.conv_copies(11, self.CD + 8 * i, self.CE + 4 * i, 2048 * i)
        self.v_min_u32(v(16), 191, v(vTID)); self.v_lshlrev_b32(v(16), 4, v(16)); self.v_add_u32(v(16), self.CH2, v(16))
        self.ds_write_b128(v(16), v(vZERO, 4), mods=f"offset:{16640 + 320 * 16}")
        self.v_lshlrev_b32(v(11), 4, v(vTID)); self.v_add_u32(v(11), self.CH2 + 64, v(11))
        self.v_lshrrev_b32(v(self.vR2), 2, v(vTID)); self.v_add_u32(v(self.vR2), v(self.vR2), v(vTID)); self.v_lshlrev_b32(v(self.vR2), 4, v(self.vR2))
        self.v_add_u32(v(self.vR2), self.CH2, v(self.vR2))
        self.conv_copies(11, self.C2D, self.C2E, 0)
        lab = self.newlabel("hd")
        self.s_cmp_lg_u32(s(self.sHW), 0); self.s_cbranch_scc1(lab)
        self.conv_head(sB1, self.sCH1, self.CD, self.CDV)
        self.label(lab)
        lab = self.newlabel("hd")
        self.s_cmp_lg_u32(s(sW), 0); self.s_cbranch_scc1(lab)
        self.s_mov_b32(s(sT + 10), self.CH2)
        self.conv_head(sT + 10, self.sCH2, self.C2D, self.C2DV)
        self.label(lab)
    def conv_addr2(self, va, vb, sbase, sstep0):
        self.v_and_b32(v(10), 3, v(vLANE)); self.v_mul_u32_u24(v(10), 4160, v(10))
        self.v_bfe_u32(v(11), v(vLANE), 2, 3); self.v_lshl_add_u32(v(10), v(11), 3, v(10))
        self.v_lshrrev_b32(v(11), 5, v(vLANE)); self.v_lshl_add_u32(v(10), v(11), 4, v(10))
        self.s_lshl_b32(s(sT + 6), s(sstep0), 5); self.s_add_u32(s(sT + 6), s(sT + 6), s(sbase)); self.v_add_u32(v(va), s(sT + 6), v(10))
        self.v_and_b32(v(10), 31, v(vLANE)); self.v_sub_u32(v(10), 31, v(10)); self.v_mul_u32_u24(v(10), 5, v(10))
        self.v_add_u32(v(10), v(10), v(11)); self.v_lshlrev_b32(v(10), 4, v(10))
        self.smul(sT + 6, sstep0, 40); self.s_add_u32(s(sT + 6), s(sT + 6), s(sbase)); self.s_add_u32(s(sT + 6), s(sT + 6), 16640)
        self.v_add_u32(v(vb), s(sT + 6), v(10))
    def conv_addrs(self):
        self.s_lshl_b32(s(sT + 5), s(self.sHW), 5); self.conv_addr2(self.vA1, self.vB1, self.sB1, sT + 5)
        self.s_mov_b32(s(sT + 10), self.CH2); self.s_lshl_b32(s(sT + 5), s(sW), 4); self.conv_addr2(self.vA2, self.vB2, sT + 10, sT + 5)
    def conv_r_issue(self):
        self.s_lshl_b32(s(sT + 3), s(self.sCH1), 12); self.s_add_u32(s(sT + 3), s(sT + 3), hex(OFF_R))
        self.v_and_b32(v(4), 127, v(vTID)); self.v_lshl_add_u32(v(4), v(4), 4, s(sT + 3))
        self.global_load_dwordx4(v(self.CR, 4), v(4), s(sWS, 2), mods="sc1")
        self.global_load_dwordx4(v(self.CR + 4, 4), v(4), s(sWS, 2), mods="offset:2048 sc1")
        self.s_lshl_b32(s(sT + 3), s(self.sCH2), 12); self.s_add_u32(s(sT + 3), s(sT + 3), hex(OFF_R))
        self.v_lshl_add_u32(v(4), v(vTID), 4, s(sT + 3))
        self.global_load_dwordx4(v(self.C2R, 4), v(4), s(sWS, 2), mods="sc1")
    def conv_fill_r(self, younger):
        self.wait(vm=1 + younger)
        self.ds_write_b128(v(self.vR1), v(self.CR, 4), mods="offset:16640"); self.ds_write_b128(v(self.vR1), v(self.CR + 4, 4), mods=f"offset:{16640 + 160 * 16}")
        self.wait(vm=younger)
        self.ds_write_b128(v(self.vR2), v(self.C2R, 4), mods="offset:16640")
        self.wait(lg=0); self.s_barrier()

    NE = 6
    def w_one2(self, i):
        self.s_mov_b32(s(sT + 3), i * 5 * 3840)
        self.s_mov_b64("exec", s(sM1, 2))
        self.buffer_load_dwordx4(a(4 * (i - 16), 4), v(90), s(sSRD, 4), s(sT + 3), mods="offen")
        self.setexec(-1)
    def w_one3(self, i):
        self.s_mov_b32(s(sT + 3), i * 5 * 3840)
        self.s_mov_b64("exec", s(sM1, 2))
        self.buffer_load_dwordx4(a(4 * i, 4), v(90), s(sSRD, 4), s(sT + 3), mods="offen")
        self.setexec(-1)
    def w_lds2(self, lo, hi):
        m128 = sum(1 << l for l in range(60) if (l & 3) < 2); m64 = sum(1 << l for l in range(60) if (l & 3) == 2)
        self.setexec(m128)
        for i in range(lo, hi): self.ds_write_b128(v(91), a(4 * (i - 16), 4), mods=f"offset:{320 * i}")
        self.setexec(m64)
        for i in range(lo, hi): self.ds_write_b64(v(91), a(4 * (i - 16), 2), mods=f"offset:{320 * i}")
        self.setexec(-1)

    LO, HI, AC, F = 16, 32, 48, 96
    def conv_mains(self, extra):
        LO, HI, AC, F = self.LO, self.HI, self.AC, self.F
        vA, vB = self.vA1, self.vB1
        def rd(m):
            f = F + 16 * (m & 3); oa = 32 * m; ob = 80 * (m >> 1) + 32 * (m & 1)
            return [lambda: self.ds_read_b64(v(f, 2), v(vA), mods=f"offset:{oa}"), lambda: self.ds_read_b64(v(f + 2, 2), v(vA), mods=f"offset:{oa + 8}"),
                    lambda: self.ds_read_b128(v(f + 8, 4), v(vB), mods=f"offset:{ob + 2560}"), lambda: self.ds_read_b128(v(f + 12, 4), v(vB), mods=f"offset:{ob}"),
                    lambda: self.ds_read_b64(v(f + 4, 2), v(vA), mods=f"offset:{oa + 2048}"), lambda: self.ds_read_b64(v(f + 6, 2), v(vA), mods=f"offset:{oa + 2056}")]
        self.zero16(LO); self.zero16(HI); self.zero16(AC)
        self.s_mov_b32(s(sM1), hex(self.WM & 0xffffffff)); self.s_mov_b32(s(sM1 + 1), hex(self.WM >> 32))
        self.s_mov_b32(s(sSRD), s(self.sWQ2)); self.s_mov_b32(s(sSRD + 1), s(self.sWQ2 + 1))
        self.s_mov_b32(s(sSRD + 2), 640 * 1920 * 2); self.s_mov_b32(s(sSRD + 3), "0x00020000")
        pieces = [[] for _ in range(32)]
        n = sum(1 for it in extra if isinstance(it, Ins)); per = max(1, -(-n // 30)); k = 0; cnt = 0; full = True; inbr = set()
        for it in extra:
            if isinstance(it, Ins):
                if cnt >= per and full and not inbr and k < 31: k += 1; cnt = 0
                if it.ops and it.ops[0] in ("exec", "exec_lo", "exec_hi"): full = (it.op == "s_mov_b64" and it.ops[1] == "-1")
                if it.kind == "branch": inbr.add(it.target)
                cnt += 1
            elif it[0] == "label": inbr.discard(it[1])
            pieces[k].append(it)
        for m in (0, 1):
            for f_ in rd(m): f_()
        for m in range(32):
            f = F + 16 * (m & 3)
            nx = rd(m + 2) if m + 2 < 32 else [lambda: None] * 6
            self.wait(lg=6 if m < 31 else 0)
            self.v_mfma_f32_32x32x16_bf16(v(LO, 16), v(f, 4), v(f + 8, 4), v(LO, 16)); nx[0](); nx[1]()
            self.v_mfma_f32_32x32x16_bf16(v(HI, 16), v(f, 4), v(f + 12, 4), v(HI, 16)); nx[2](); nx[3]()
            self.items += pieces[m]
            self.v_mfma_f32_32x32x16_bf16(v(HI, 16), v(f + 4, 4), v(f + 8, 4), v(HI, 16)); nx[4](); nx[5]()
            if self.gen:
                nw = 32 - self.NL
                if m < nw: self.w_one3(self.NL + m)
                else:
                    if m == nw: self.wo_srd()
                    if m - nw < 32: self.wo_issue_one(m - nw)
            elif m < 16: self.w_one2(16 + m)
            elif not self.o.get("wolate") and not self.o.get("womid"):
                if m == 16: self.wo_srd()
                self.wo_issue_one(m - 16)
        vA, vB = self.vA2, self.vB2
        self.global_load_dword(v(79), v(vPL), s(sFZ, 2), mods="sc1")
        lhi, ldone = self.newlabel("c2hi"), self.newlabel("c2d")
        self.s_and_b32(s(sT + 5), s(sS), 1); self.s_cbranch_scc1(lhi)
        for hi in (0, 1):
            if hi: self.label(lhi)
            nrd = 5 if hi else 3
            def rd2(m):
                f = F + 16 * (m & 3); oa = 32 * m; ob = 80 * (m >> 1) + 32 * (m & 1)
                l = [lambda: self.ds_read_b64(v(f, 2), v(vA), mods=f"offset:{oa}"), lambda: self.ds_read_b64(v(f + 2, 2), v(vA), mods=f"offset:{oa + 8}"),
                     lambda: self.ds_read_b128(v(f + 8, 4), v(vB), mods=f"offset:{ob + 2560}")]
                if hi:
                    l += [lambda: self.ds_read_b128(v(f + 12, 4), v(vB), mods=f"offset:{ob}"),
                          lambda: self.ds_read_b64(v(f + 4, 2), v(vA), mods=f"offset:{oa + 2048}"), lambda: self.ds_read_b64(v(f + 6, 2), v(vA), mods=f"offset:{oa + 2056}")]
                return l
            nr = 6 if hi else 3
            for m in (0, 1):
                for f_ in rd2(m): f_()
            for m in range(16):
                f = F + 16 * (m & 3)
                nx = rd2(m + 2) if m + 2 < 16 else [lambda: None] * nr
                self.wait(lg=nr if m < 15 else 0)
                if hi:
                    self.v_mfma_f32_32x32x16_bf16(v(AC, 16), v(f, 4), v(f + 12, 4), v(AC, 16)); nx[0](); nx[1](); nx[2]()
                    self.v_mfma_f32_32x32x16_bf16(v(AC, 16), v(f + 4, 4), v(f + 8, 4), v(AC, 16)); nx[3](); nx[4](); nx[5]()
                else:
                    self.v_mfma_f32_32x32x16_bf16(v(AC, 16), v(f, 4), v(f + 8, 4), v(AC, 16)); nx[0](); nx[1](); nx[2]()
                if self.gen:
                    nn = 32 - (32 - self.NL) + m
                    if nn < 32: self.wo_issue_one(nn)
                elif not self.o.get("wolate") and not self.o.get("womid"): self.wo_issue_one(16 + m)
            if not hi: self.s_branch(ldone)
        self.label(ldone)

    def conv_tails_addr(self):
        LO, HI, AC, F = self.LO, self.HI, self.AC, self.F
        X1, X2, TO1, TO2 = self.CH0, self.CH1, self.CH2, self.CH2 + 8192
        self.s_lshl_b32(s(sT + 8), s(sW), 12); self.v_add_u32(v(64), s(sT + 8), v(vL16))
        self.s_xor_b32(s(sT + 9), s(sW), 1); self.s_lshl_b32(s(sT + 9), s(sT + 9), 12); self.s_add_u32(s(sT + 9), s(sT + 9), X1); self.v_add_u32(v(67), s(sT + 9), v(vL16))
        self.v_add_u32(v(66), X1, v(64)); self.v_add_u32(v(65), X2, v(64))
        self.s_lshl_b32(s(sT + 8), s(sW), 10); self.s_add_u32(s(sT + 8), s(sT + 8), X2); self.v_add_u32(v(64), s(sT + 8), v(vL16))
        self.v_and_b32(v(70), 31, v(vLANE)); self.v_lshlrev_b32(v(70), 6, v(70))
        self.v_lshrrev_b32(v(71), 5, v(vLANE)); self.v_lshl_add_u32(v(70), v(71), 3, v(70))
        self.s_lshl_b32(s(sT + 8), s(sW), 11); self.s_add_u32(s(sT + 8), s(sT + 8), TO1); self.v_add_u32(v(71), s(sT + 8), v(70)); self.v_add_u32(v(72), s(sT + 8), v(vL16))
        self.s_lshl_b32(s(sT + 8), s(sW), 4); self.s_add_u32(s(sT + 8), s(sT + 8), TO2); self.v_add_u32(v(70), s(sT + 8), v(70))
        self.s_lshl_b32(s(sT + 8), s(self.sHW), 11); self.s_lshl_b32(s(sT + 9), s(self.sCH1), 12); self.s_add_u32(s(sT + 8), s(sT + 8), s(sT + 9))
        self.s_add_u32(s(sT + 8), s(sT + 8), hex(OFF_Y)); self.v_add_u32(v(73), s(sT + 8), v(vL16))
    def conv_tails(self):
        LO, HI, AC, F = self.LO, self.HI, self.AC, 160
        X1, X2, TO1, TO2 = self.CH0, self.CH1, self.CH2, self.CH2 + 8192
        self.s_barrier()
        l1, l2 = self.newlabel("cx"), self.newlabel("cy")
        self.s_cmp_lg_u32(s(self.sHW), 0); self.s_cbranch_scc1(l1)
        for q in range(4): self.ds_write_b128(v(66), v(HI + 4 * q, 4), mods=f"offset:{1024 * q}")
        self.s_branch(l2)
        self.label(l1)
        for q in range(4): self.ds_write_b128(v(66), v(LO + 4 * q, 4), mods=f"offset:{1024 * q}")
        self.label(l2)
        for q in range(4): self.ds_write_b128(v(65), v(AC + 4 * q, 4), mods=f"offset:{1024 * q}")
        self.wait(lg=0); self.s_barrier()
        for q in range(4): self.ds_read_b128(v(F + 4 * q, 4), v(67), mods=f"offset:{1024 * q}")
        for q in range(4): self.ds_read_b128(v(F + 16 + 4 * q, 4), v(64), mods=f"offset:{4096 * q}")
        l1, l2 = self.newlabel("cx"), self.newlabel("cy")
        self.s_cmp_lg_u32(s(self.sHW), 0); self.s_cbranch_scc1(l1)
        for role, keep in enumerate((LO, HI)):
            if role: self.label(l1)
            for q in range(4):
                self.wait(lg=7 - q)
                for r in (0, 2): self.v_pk_add_f32(v(keep + 4 * q + r, 2), v(keep + 4 * q + r, 2), v(F + 4 * q + r, 2))
                self.pack(F + 32 + 2 * q, keep + 4 * q, 2)
            if role == 0: self.s_branch(l2)
        self.label(l2)
        for q in range(4): self.ds_write_b64(v(71), v(F + 32 + 2 * q, 2), mods=f"offset:{16 * q}")
        self.wait(lg=4)
        G = F + 16
        for r in (0, 2):
            self.v_pk_add_f32(v(G + r, 2), v(G + r, 2), v(G + 4 + r, 2)); self.v_pk_add_f32(v(G + 8 + r, 2), v(G + 8 + r, 2), v(G + 12 + r, 2))
        for r in (0, 2): self.v_pk_add_f32(v(G + r, 2), v(G + r, 2), v(G + 8 + r, 2))
        self.pack(F + 40, G, 2)
        self.ds_write_b64(v(70), v(F + 40, 2))
        self.ds_read_b128(v(LO, 4), v(72)); self.ds_read_b128(v(LO + 4, 4), v(72), mods="offset:1024")
        self.s_and_b32(s(sT + 6), s(sS), 1); self.s_lshl_b32(s(sT + 6), s(sT + 6), 11); self.s_lshl_b32(s(sT + 7), s(self.sCH2), 12)
        self.s_add_u32(s(sT + 6), s(sT + 6), s(sT + 7)); self.s_add_u32(s(sT + 6), s(sT + 6), hex(OFF_Y))
        self.wait(lg=0)
        self.global_store_dwordx4(v(73), v(LO, 4), s(sWS, 2), mods="sc1")
        self.global_store_dwordx4(v(73), v(LO + 4, 4), s(sWS, 2), mods="offset:1024 sc1")
        self.s_barrier()
        self.v_and_b32(v(67), 127, v(vTID)); self.v_lshlrev_b32(v(67), 4, v(67))
        self.v_add_u32(v(66), TO2, v(67)); self.v_add_u32(v(65), s(sT + 6), v(67))
        self.ds_read_b128(v(LO + 8, 4), v(66))
        self.wait(lg=0)
        self.global_store_dwordx4(v(65), v(LO + 8, 4), s(sWS, 2), mods="sc1")

    def first_flags4(self):
        self.s_lshl_b32(s(sT), s(sG), 12); self.s_add_u32(s(sT + 1), s(sT), hex(OFF_XCC)); self.s_add_u32(s(sT), s(sT), hex(OFF_FL2 + 6 * 8 * 4096))
        self.v_mov_b32(v(16), s(sT + 1)); self.v_mov_b32(v(17), s(sT))
        self.s_mov_b32(s(sM1), 0); self.s_mov_b32(s(sM1 + 1), -1)
        self.v_cndmask_b32(v(16), v(16), v(17), s(sM1, 2)); self.v_add_u32(v(16), v(16), v(vPL))
        self.s_add_u32(s(sT + 2), s(sTOK), 64); self.s_add_u32(s(sT + 3), s(sTOK), 7)
        self.v_mov_b32(v(17), s(sT + 2)); self.v_mov_b32(v(18), s(sT + 3)); self.v_cndmask_b32(v(17), v(17), v(18), s(sM1, 2))
        self.v_mov_b32(v(18), 16); self.v_cndmask_b32(v(18), v(18), 1, s(sM1, 2))
        lp, dn = self.newlabel("xpoll"), self.newlabel("xpolld")
        self.label(lp)
        self.global_load_dword(v(5), v(16), s(sWS, 2), mods="sc1")
        self.s_cmp_eq_u32(s(sTO), 0); self.s_cbranch_scc1(dn)
        self.s_sub_u32(s(sTO), s(sTO), 1)
        self.wait(vm=0)
        self.v_sub_u32(v(5), v(5), v(17))
        self.v_cmp_le_u32("vcc", v(18), v(5))
        self.s_cmp_lg_u32("vcc_lo", 0); self.s_cbranch_scc1(lp)
        self.s_mov_b32(s(sT + 4), "vcc_hi")
        self.v_cmp_ne_u32("vcc", s(sXCC), v(5))
        self.s_cmp_lg_u32("vcc_lo", 0); self.s_cbranch_scc1(dn)
        self.s_cmp_lg_u32(s(sT + 4), 0); self.s_cbranch_scc1(lp)
        self.label(dn)
        self.v_cmp_ne_u32("vcc", s(sXCC), v(5))
        self.s_cmp_lg_u32("vcc_lo", 0)
        self.s_cselect_b32(s(sMODE), 1, 0)
        if self.o.get("force_slow"): self.s_mov_b32(s(sMODE), 1)
        self.slow_r = (self.newlabel("slowr"), self.newlabel("slowrj"))
        self.s_cmp_lg_u32(s(sMODE), 0); self.s_cbranch_scc1(self.slow_r[0])
        self.label(self.slow_r[1])

    def epi_prep_nolds(self):
        n0 = len(self.items)
        self.epi_prep()
        self.items[n0:] = [it for it in self.items[n0:] if not (isinstance(it, Ins) and it.op == "ds_write_b64")]

    def wo_stage_split(self):
        sub = K4(stamps=False, opts=self.o); sub.uid = self.uid + 300000; sub.cold = []; sub.cold2 = []
        sub.y_flag = lambda: None
        K2.wo_stage(sub)
        self.uid = sub.uid
        bars = [k for k, it in enumerate(sub.items) if isinstance(it, Ins) and it.op == "s_barrier"]
        cut = bars[1] + 1
        first = [it for it in sub.items[:cut] if not (isinstance(it, Ins) and it.op == "s_waitcnt" and it.ops[0] == "vmcnt(0)")]
        return first, sub.items[cut:]

    YR = 140
    def y_flags_issue(self):
        self.v_lshlrev_b32(v(4), 7, v(vTID)); self.v_add_u32(v(4), OFF_YFL, v(4))
        self.global_load_dword(v(156), v(4), s(sWS, 2), mods="sc1")
    def y_flags_check(self):
        ok = self.newlabel("yok")
        self.s_add_u32(s(sT + 1), s(sTOK), 32)
        self.v_cmp_ne_u32("vcc", s(sT + 1), v(156)); self.s_cmp_eq_u64("vcc", 0); self.s_cbranch_scc1(ok)
        self.v_lshlrev_b32(v(8), 7, v(vTID)); self.v_add_u32(v(8), OFF_YFL, v(8)); self.s_mov_b64(s(sT + 2, 2), -1)
        self.poll2(sWS, 8, sT + 1, sT + 2)
        self.label(ok)
    def y_issue(self):
        YR = self.YR
        lab = self.newlabel("nu")
        self.s_cmp_lg_u32(s(2), 0); self.s_cbranch_scc1(lab)
        self.s_cmp_lg_u32(s(sW), 0); self.s_cbranch_scc1(lab)
        self.v_mov_b32(v(8), OFF_N); self.v_mov_b32(v(9), s(sTOK))
        self.setexec(1); self.global_store_dword(v(8), v(9), s(sWS, 2), mods="sc1"); self.setexec(-1)
        self.label(lab)
        self.s_lshl_b32(s(sU), s(sG), 8); self.s_lshl_b32(s(sU + 1), s(sS), 3); self.s_add_u32(s(sU), s(sU), s(sU + 1)); self.s_lshl_b32(s(sU), s(sU), 1)
        self.s_add_u32(s(sU), s(sU), hex(OFF_Y))
        self.v_lshlrev_b32(v(8), 12, v(vTID)); self.v_add_u32(v(8), s(sU), v(8))
        self.global_load_dwordx4(v(YR, 4), v(8), s(sWS, 2), mods="sc1")
        self.v_add_u32(v(9), 256 * 4096, v(8)); self.global_load_dwordx4(v(YR + 4, 4), v(9), s(sWS, 2), mods="sc1")
        self.v_and_b32(v(9), 127, v(vTID)); self.v_lshlrev_b32(v(9), 12, v(9)); self.v_add_u32(v(9), s(sU), v(9)); self.v_add_u32(v(9), 512 * 4096, v(9))
        self.global_load_dwordx4(v(YR + 8, 4), v(9), s(sWS, 2), mods="sc1")
    def y_finish(self):
        YR, LY = self.YR, L_SP
        self.v_and_b32(v(10), 7, v(vTID)); self.v_mul_u32_u24(v(10), 320, v(10))
        self.v_lshrrev_b32(v(11), 3, v(vTID)); self.v_lshl_add_u32(v(10), v(11), 2, v(10)); self.v_add_u32(v(10), LY, v(10))
        for i in range(2):
            for w in range(4): self.ds_write_b32(v(10), v(YR + 4 * i + w), mods=f"offset:{2560 * w + 128 * i}")
        lab = self.newlabel("yl")
        self.s_cmp_ge_u32(s(sW), 2); self.s_cbranch_scc1(lab)
        for w in range(4): self.ds_write_b32(v(10), v(YR + 8 + w), mods=f"offset:{2560 * w + 256}")
        self.label(lab)
        self.smul(sU, sW, 2560); self.s_add_u32(s(sU), s(sU), LY)
        self.v_bfe_u32(v(10), v(vLANE), 2, 2); self.v_mul_u32_u24(v(10), 320, v(10))
        self.v_lshrrev_b32(v(11), 4, v(vLANE)); self.v_lshl_add_u32(v(10), v(11), 5, v(10))
        self.v_and_b32(v(11), 3, v(vLANE)); self.v_lshl_add_u32(v(10), v(11), 3, v(10)); self.v_add_u32(v(10), s(sU), v(10))
        self.wait(lg=0); self.s_barrier()
        for m in range(3):
            self.ds_read_b64_tr_b16(v(vY + 4 * m, 2), v(10), mods=f"offset:{128 * m}")
            self.ds_read_b64_tr_b16(v(vY + 4 * m + 2, 2), v(10), mods=f"offset:{128 * m + 4 * 320}")
        self.wait(lg=0)
        self.setexec(0xffffffff00000000)
        for j in range(8, 12): self.v_mov_b32(v(vY + j), 0)
        self.setexec(-1)

    def wo_range(self, lo, hi):
        lab = self.newlabel("wb")
        self.s_cmp_lg_u32(s(sL), 0); self.s_cbranch_scc1(lab)
        self.wo_srd()
        for n in range(lo, hi): self.wo_issue_one(n)
        self.label(lab)
    def wo_batch(self, b):
        self.wo_srd()
        for n in range(8 * b, 8 * b + 8): self.wo_issue_one(n)
    def wo_batch_l0(self, b):
        lab = self.newlabel("wb")
        self.s_cmp_lg_u32(s(sL), 0); self.s_cbranch_scc1(lab)
        self.wo_batch(b)
        self.label(lab)
    def attn_first_reads(self, desc, sKblk, sVblk):
        vk, vk1, vv = 8, 9, 10
        if desc:
            self.s_sub_u32(s(sT), s(sKblk), 4608); self.s_sub_u32(s(sT + 1), s(sVblk), 4096)
            oK0, oK1, oV0 = 4608, 3072, 4096
        else:
            self.s_mov_b32(s(sT), s(sKblk)); self.s_mov_b32(s(sT + 1), s(sVblk))
            oK0, oK1, oV0 = 0, 1536, 0
        self.v_add_u32(v(vk), s(sT), v(vL16)); self.v_add_u32(v(vk1), s(sT), v(vL8)); self.v_add_u32(v(vv), s(sT + 1), v(vL16))
        self.ds_read_b128(v(self.KP0, 4), v(vk), mods=f"offset:{oK0}"); self.ds_read_b64(v(self.KP1, 2), v(vk1), mods=f"offset:{oK0 + 1024}")
        self.ds_read_b128(v(self.KF0, 4), v(vk), mods=f"offset:{oK1}"); self.ds_read_b64(v(self.KF1, 2), v(vk1), mods=f"offset:{oK1 + 1024}")
        self.ds_read_b128(v(self.VF0, 4), v(vv), mods=f"offset:{oV0}")
    def attn_seq2(self, Q, O, desc, sCNT, pending):
        SA, SB, PP, KF0, KF1, VF0, VF1, MSK, KP0, KP1 = self.SA, self.SB, self.PP, self.KF0, self.KF1, self.VF0, self.VF1, self.MSK, self.KP0, self.KP1
        vk, vk1, vv = 8, 9, 10
        if pending is not None:
            self.wait(lg=5)
            self.v_mfma_f32_32x32x16_bf16(v(pending, 16), v(VF1, 4), v(PP + 4, 4), v(pending, 16))
        self.wait(lg=3)
        self.v_mfma_f32_32x32x16_bf16(v(SA, 16), v(KP0, 4), v(Q, 4), v(MSK, 16))
        self.v_mfma_f32_32x32x8_bf16(v(SA, 16), v(KP1, 2), v(Q + 4, 2), v(SA, 16))
        self.wait(lg=1)
        self.s_nop(8)
        lp, ex, first = self.newlabel("att"), self.newlabel("attx"), self.newlabel("attf")
        self.s_branch(first)
        def body(S, Sn, entry, par):
            if desc:
                oK = 1536 if par == 0 else 0
                oV1 = (4096 if par == 0 else 2048) + 1024
                oV0 = 2048 if par == 0 else 0
            else:
                oK = 3072 if par == 0 else 4608
                oV1 = (0 if par == 0 else 2048) + 1024
                oV0 = 2048 if par == 0 else 4096
            self.wait(lg=1)
            self.v_mfma_f32_32x32x16_bf16(v(O, 16), v(VF1, 4), v(PP + 4, 4), v(O, 16))
            if entry: self.label(entry)
            self.ds_read_b128(v(VF1, 4), v(vv), mods=f"offset:{oV1}")
            for e in range(4): self.v_exp_f32(v(S + e), v(S + e))
            self.v_cvt_pk_bf16_f32(v(PP), v(S), v(S + 1)); self.v_cvt_pk_bf16_f32(v(PP + 1), v(S + 2), v(S + 3))
            self.v_mfma_f32_32x32x16_bf16(v(Sn, 16), v(KF0, 4), v(Q, 4), 0)
            self.ds_read_b128(v(KF0, 4), v(vk), mods=f"offset:{oK}")
            for e in range(4, 8): self.v_exp_f32(v(S + e), v(S + e))
            self.v_cvt_pk_bf16_f32(v(PP + 2), v(S + 4), v(S + 5)); self.v_cvt_pk_bf16_f32(v(PP + 3), v(S + 6), v(S + 7))
            self.v_mfma_f32_32x32x8_bf16(v(Sn, 16), v(KF1, 2), v(Q + 4, 2), v(Sn, 16))
            self.ds_read_b64(v(KF1, 2), v(vk1), mods=f"offset:{oK + 1024}")
            for e in range(8, 12): self.v_exp_f32(v(S + e), v(S + e))
            self.wait(lg=3)
            self.v_mfma_f32_32x32x16_bf16(v(O, 16), v(VF0, 4), v(PP, 4), v(O, 16))
            self.ds_read_b128(v(VF0, 4), v(vv), mods=f"offset:{oV0}")
            self.v_cvt_pk_bf16_f32(v(PP + 4), v(S + 8), v(S + 9)); self.v_cvt_pk_bf16_f32(v(PP + 5), v(S + 10), v(S + 11))
            for e in range(12, 16): self.v_exp_f32(v(S + e), v(S + e))
            if par == 1:
                d = (-3072, -4096) if desc else (3072, 4096)
                self.v_add_u32(v(vk), d[0] & 0xffffffff, v(vk)); self.v_add_u32(v(vk1), d[0] & 0xffffffff, v(vk1))
            self.v_cvt_pk_bf16_f32(v(PP + 6), v(S + 12), v(S + 13)); self.v_cvt_pk_bf16_f32(v(PP + 7), v(S + 14), v(S + 15))
            if par == 1: self.v_add_u32(v(vv), d[1] & 0xffffffff, v(vv))
            self.s_add_u32(s(sCNT), s(sCNT), 1)
        self.label(lp)
        body(SA, SB, first, 0)
        self.s_cbranch_scc1(ex)
        body(SB, SA, None, 1)
        self.s_cbranch_scc0(lp)
        self.label(ex)
    def attn_finish(self, O):
        self.wait(lg=0)
        self.v_mfma_f32_32x32x16_bf16(v(O, 16), v(self.VF1, 4), v(self.PP + 4, 4), v(O, 16))

    def attn_local(self):
        sKb, sVb, sN = sU + 6, sU + 7, sU + 8
        self.smul(sKb, sW, 1536); self.s_add_u32(s(sKb), s(sKb), L_K); self.s_lshl_b32(s(sVb), s(sW), 11); self.s_add_u32(s(sVb), s(sVb), L_V)
        self.attn_first_reads(True, sKb, sVb)
        self.s_sub_u32(s(sN), -1, s(sW))
        self.attn_seq2(self.QA, self.OA, True, sN, None)
        self.s_sub_u32(s(sT + 2), 7, s(sW))
        self.smul(sKb, sT + 2, 1536); self.s_add_u32(s(sKb), s(sKb), L_K); self.s_lshl_b32(s(sVb), s(sT + 2), 11); self.s_add_u32(s(sVb), s(sVb), L_V)
        self.attn_first_reads(True, sKb, sVb)
        self.s_sub_u32(s(sN), s(sW), 8)
        self.wait(lg=5)
        self.v_mfma_f32_32x32x16_bf16(v(self.OA, 16), v(self.VF1, 4), v(self.PP + 4, 4), v(self.OA, 16))
        self.halo_publish()
        lab = self.newlabel("pt")
        self.s_cmp_lg_u32(s(sL), 0); self.s_cbranch_scc1(lab)
        self.pretouch_addr(4)
        self.global_load_dword(v(230), v(4), s(sWS, 2))
        self.label(lab)
        if self.o.get("womid"): self.wo_range(16, 32)
        if self.o.get("wolate"):
            lab = self.newlabel("wa")
            self.s_cmp_lg_u32(s(sL), 0); self.s_cbranch_scc1(lab)
            self.wo_addr()
            self.label(lab)
            self.wo_range(0, 8)
        self.attn_seq2(self.QB, self.OB, True, sN, None)
        self.attn_finish(self.OB)
    def attn_halo(self):
        sKb, sVb, sN = sU + 6, sU + 7, sU + 8
        self.smul(sKb, sW, 1536); self.s_add_u32(s(sKb), s(sKb), L_HK); self.s_lshl_b32(s(sVb), s(sW), 11); self.s_add_u32(s(sVb), s(sVb), L_HV)
        if self.o.get("wolate"): self.wo_range(8, 20)
        self.attn_first_reads(False, sKb, sVb)
        self.s_sub_u32(s(sN), s(sW), 8)
        self.attn_seq2(self.QA, self.OA, False, sN, None)
        if self.o.get("wolate"): self.wo_range(20, 32)
        self.s_sub_u32(s(sT + 2), 7, s(sW))
        self.smul(sKb, sT + 2, 1536); self.s_add_u32(s(sKb), s(sKb), L_HK); self.s_lshl_b32(s(sVb), s(sT + 2), 11); self.s_add_u32(s(sVb), s(sVb), L_HV)
        self.attn_first_reads(False, sKb, sVb)
        self.s_sub_u32(s(sN), -1, s(sW))
        self.attn_seq2(self.QB, self.OB, False, sN, self.OA)
        self.attn_finish(self.OB)

    def qkv_run(self):
        ACC, ZR, WF = self.ACC, self.ZR, self.WF
        vzA, vzB, vw0, vw1 = 8, 9, 10, 11
        def wr(st, kk, T):
            r = WF + 8 * st + 4 * T; vw = (vw0, vw1)[T]
            self.ds_read_b64_tr_b16(v(r, 2), v(vw), mods=f"offset:{kk * 1024}")
            self.ds_read_b64_tr_b16(v(r + 2, 2), v(vw), mods=f"offset:{kk * 1024 + 256}")
        def body(last, wo=False):
            nwo = 0
            for j in range(8):
                st = j & 1
                more = not (last and j == 7)
                mf = lambda blk, T: self.v_mfma_f32_32x32x16_bf16(v(ACC + 32 * blk + 16 * T, 16), v(WF + 8 * st + 4 * T, 4), v(ZR + 8 * j + 4 * blk, 4), v(ACC + 32 * blk + 16 * T, 16))
                self.wait(vm=((15 - 2 * j + nwo) if last else 15), lg=0)
                mf(0, 0)
                if more: wr(st ^ 1, j + 1, 0)
                mf(0, 1)
                if more: wr(st ^ 1, j + 1, 1)
                if not last: self.global_load_dwordx4(v(ZR + 8 * j, 4), v(vzA), s(sZB, 2), mods=f"offset:{(j % 4) * 1024} sc1")
                if wo: self.wo_issue_one(nwo); nwo += 1
                self.wait(vm=((14 - 2 * j + nwo) if last else 15))
                mf(1, 0)
                if wo: self.wo_issue_one(nwo); nwo += 1
                if not last and j % 4 == 3: self.v_add_u32(v(vzA), 4096, v(vzA))
                mf(1, 1)
                if not last:
                    self.global_load_dwordx4(v(ZR + 8 * j + 4, 4), v(vzB), s(sZB, 2), mods=f"offset:{(j % 4) * 1024} sc1")
                    if j % 4 == 3: self.v_add_u32(v(vzB), 4096, v(vzB))
            if not last:
                self.v_add_u32(v(vw0), 8192, v(vw0)); self.v_add_u32(v(vw1), 8192, v(vw1))
        lp = self.newlabel("qkv")
        self.s_mov_b32(s(sU), -4)
        self.label(lp)
        body(False)
        self.s_add_u32(s(sU), s(sU), 1); self.s_cbranch_scc0(lp)
        if self.o.get("womid"):
            l1, l2 = self.newlabel("lb"), self.newlabel("lb")
            self.s_cmp_lg_u32(s(sL), 0); self.s_cbranch_scc1(l1)
            self.wo_srd()
            body(True, True)
            self.s_branch(l2)
            self.label(l1)
            body(True)
            self.label(l2)
        else:
            body(True)

    def op_prep(self):
        super().op_prep()
        self.s_lshr_b32(s(sU + 5), s(sU + 2), 1); self.smul(sU + 5, sU + 5, 40960)
        self.s_and_b32(s(sU + 6), s(sU + 2), 1); self.s_lshl_b32(s(sU + 6), s(sU + 6), 8); self.s_add_u32(s(sU + 5), s(sU + 5), s(sU + 6))
        self.s_and_b32(s(sU + 6), s(sS), 7); self.smul(sU + 6, sU + 6, 5120); self.s_add_u32(s(sU + 5), s(sU + 5), s(sU + 6))
        self.v_bfe_u32(v(12), v(vLANE), 3, 1); self.v_lshlrev_b32(v(12), 7, v(12))
        self.v_and_b32(v(13), 7, v(vLANE)); self.v_lshl_add_u32(v(12), v(13), 4, v(12))
        self.v_bfe_u32(v(13), v(vLANE), 4, 1); self.v_lshl_add_u32(v(12), v(13), 10, v(12))
        self.v_lshrrev_b32(v(13), 5, v(vLANE)); self.v_lshl_add_u32(v(12), v(13), 9, v(12))
        self.v_add_u32(v(12), s(sU + 5), v(12)); self.v_add_u32(v(13), 4096, v(12))
    def op_run(self):
        n0 = len(self.items); c0 = len(self.cold)
        super().op_run()
        def fix(ops, mods):
            if "offset:512" in mods: return ops, mods.replace("offset:512", "offset:2048")
            if "offset:1024" in mods: return [v(13)] + ops[1:], mods.replace("offset:1024", "").strip()
            return ops, mods
        for it in self.items[n0:]:
            if isinstance(it, Ins) and it.op == "global_store_dwordx4" and it.ops[2] == s(sAB, 2):
                it.ops, it.mods = fix(it.ops, it.mods); it.ops[2] = s(sZB, 2); it.classify()
        l1, l2, lst = self.cold[-1]
        new = []
        for e in lst:
            if e[0] == "exec": new.append(e)
            else:
                ops, mods = fix([e[1], e[2], e[3]], e[4]); new.append((e[0], ops[0], ops[1], s(sZB, 2), mods))
        self.cold[-1] = (l1, l2, new)
    def p4_prep(self):
        self.z_addr(8)
        for j in range(8, 12): self.v_mov_b32(v(self.AP + j), 0)
        self.unpack(self.XF, vX, 12)
        self.unpack(self.YF, vY, 12)
    def p4_run(self):
        n0 = len(self.items)
        super().p4_run()
        if self.o.get("wb2"):
            k = max(i for i, it in enumerate(self.items) if isinstance(it, Ins) and it.op == "s_waitcnt" and it.ops[0] == "vmcnt(0)" and i >= n0)
            lab = self.newlabel("wb")
            ins = [Ins("s_cmp_eq_u32", [s(sL), "0"]), Ins("s_cbranch_scc1", [lab]), Ins("s_cmp_lg_u32", [s(sS), "0"]), Ins("s_cbranch_scc1", [lab]),
                   Ins("s_cmp_lg_u32", [s(sW), "3"]), Ins("s_cbranch_scc1", [lab]), Ins("buffer_wbl2", [], "sc1"), ("label", lab)]
            self.items[k + 1:k + 1] = ins
        for it in self.items[n0:]:
            if isinstance(it, Ins) and it.op == "global_load_dwordx4" and it.ops[2] == s(sAB, 2):
                it.ops[2] = s(sZB, 2); it.classify()
    def pretouch_addr(self, va):
        self.v_min_u32(v(va), 79, v(vTID)); self.v_lshlrev_b32(v(va), 7, v(va))
        self.smul(sT, sG, ZG); self.smul(sT + 1, sS, 10240); self.s_add_u32(s(sT), s(sT), s(sT + 1)); self.s_add_u32(s(sT), s(sT), hex(OFF_O))
        self.v_add_u32(v(va), s(sT), v(va))

    def halo_prep(self):
        self.smul(sT, sW, 7168); self.v_add_u32(v(12), s(sT), v(vL16)); self.v_add_u32(v(14), 4096, v(12))
        self.v_mov_b32(v(13), s(sHFI))
    def halo_issue(self):
        super().halo_issue()
        self.mask_gen(True)

    def epi_run(self):
        ACC = self.ACC
        regs = []
        for blk in range(2):
            A0 = ACC + 32 * blk; A1 = A0 + 16
            PK = 96 + 24 * blk
            K0, K1, VV, VF = PK, PK + 4, PK + 6, PK + 12
            regs.append((A0, A1, K0, K1, VV, VF))
            self.pack(K1, A1 + 4, 2); self.pack(VV, A1 + 8, 4)
            if blk == 1: self.wait(lg=6)
            self.ds_write_b64(v(self.vSC), v(K1, 2)); self.ds_write_b64(v(self.vSA), v(VV, 2)); self.ds_write_b64(v(self.vSB), v(VV + 2, 2))
            for m in range(4): self.ds_read_b64_tr_b16(v(VF + 2 * m, 2), v(self.vTR1 if m & 1 else self.vTR0), mods=f"offset:{512 * m}")
            self.pack(K0, A0 + 8, 4)
            k0, k1, vv = (self.vKA, self.vK1A, self.vVA) if blk == 0 else (self.vKB, self.vK1B, self.vVB)
            self.ds_write_b128(v(k0), v(K0, 4)); self.ds_write_b64(v(k1), v(K1, 2))
            self.global_store_dwordx4(v(k0), v(K0, 4), s(sHB, 2), mods="sc1")
            self.global_store_dwordx2(v(k1), v(K1, 2), s(sHB, 2), mods="sc1")
        for blk in range(2):
            A0, A1, K0, K1, VV, VF = regs[blk]
            vv = self.vVA if blk == 0 else self.vVB
            self.wait(lg=8 if blk == 0 else 2)
            self.ds_write_b128(v(vv), v(VF, 4)); self.ds_write_b128(v(vv), v(VF + 4, 4), mods="offset:1024")
            self.global_store_dwordx4(v(vv), v(VF, 4), s(sHB, 2), mods="sc1")
            self.global_store_dwordx4(v(vv), v(VF + 4, 4), s(sHB, 2), mods="offset:1024 sc1")
        for blk in range(2):
            A0 = ACC + 32 * blk; A1 = A0 + 16
            Q = self.QA if blk == 0 else self.QB
            for r in (0, 2, 4, 6): self.v_pk_mul_f32(v(A0 + r, 2), v(A0 + r, 2), s(sU + 14, 2))
            for r in (0, 2): self.v_pk_mul_f32(v(A1 + r, 2), v(A1 + r, 2), s(sU + 14, 2))
            self.pack(Q, A0, 4); self.pack(Q + 4, A1, 2)
        self.wait(lg=0); self.s_barrier()

    def weights_to_mall(self):
        self.smul(sT, 2, 9600); self.v_lshlrev_b32(v(4), 4, v(vTID)); self.v_add_u32(v(4), s(sT), v(4))
        self.global_load_dwordx4(v(208, 4), v(4), s(sWQ, 2))
        self.global_load_dwordx4(v(212, 4), v(4), s(sWQ, 2), mods="offset:4080")
        self.v_min_u32(v(5), 89, v(vTID)); self.v_lshlrev_b32(v(5), 4, v(5)); self.s_add_u32(s(sT), s(sT), 8160); self.v_add_u32(v(5), s(sT), v(5))
        self.global_load_dwordx4(v(216, 4), v(5), s(sWQ, 2))
        self.smul(sT, 2, 3200); self.v_min_u32(v(5), 199, v(vTID)); self.v_lshlrev_b32(v(5), 4, v(5)); self.v_add_u32(v(5), s(sT), v(5))
        self.global_load_dwordx4(v(220, 4), v(5), s(sWO, 2))
        self.v_min_u32(v(5), 79, v(vTID)); self.v_lshlrev_b32(v(5), 9, v(5))
        self.s_lshr_b32(s(sT), s(sS), 2); self.smul(sT, sT, 40960); self.s_and_b32(s(sT + 1), s(sS), 3); self.s_lshl_b32(s(sT + 1), s(sT + 1), 7)
        self.s_add_u32(s(sT), s(sT), s(sT + 1)); self.smul(sT + 1, sG, ZG); self.s_add_u32(s(sT), s(sT), s(sT + 1)); self.s_add_u32(s(sT), s(sT), hex(OFF_Z))
        self.v_add_u32(v(5), s(sT), v(5))
        self.global_load_dword(v(85), v(5), s(sWS, 2))
    def r_touch(self):
        self.v_min_u32(v(5), 79, v(vTID)); self.v_lshlrev_b32(v(5), 12, v(5))
        self.smul(sT, sG, 80 * 4096); self.s_lshl_b32(s(sT + 1), s(sS), 7); self.s_sub_u32(s(sT), s(sT), s(sT + 1)); self.s_add_u32(s(sT), s(sT), hex(OFF_R + 1984 * 2))
        self.v_add_u32(v(5), s(sT), v(5))
        self.s_lshl_b32(s(sT), s(sG), 12); self.s_lshl_b32(s(sT + 1), s(sS), 7); self.s_add_u32(s(sT), s(sT), s(sT + 1)); self.s_add_u32(s(sT), s(sT), hex(OFF_FL2 + 6 * 8 * 4096))
        self.v_mov_b32(v(4), s(sT)); self.v_cmp_gt_u32("vcc", 80, v(vTID)); self.v_cndmask_b32(v(5), v(4), v(5), "vcc")
        self.global_load_dword(v(84), v(5), s(sWS, 2))

    def startup(self):
        d2 = self.o.get("d2")
        NE = self.NE
        self.setup2()
        self.issue_x()
        self.v_mov_b32(v(87), OFF_N)
        self.global_load_dword(v(87), v(87), s(sWS, 2), mods="sc1")
        order = self.o.get("ord", 0)
        self.gen = "n3" in self.o
        N0, N1, N2, N3 = (self.o.get("n0", 0), self.o.get("n1", 6), self.o.get("n2", 12), self.o.get("n3", 16))
        self.conv_ids()
        if order == 3: self.weights_to_mall()
        self.c0_issue()
        self.r_touch()
        if order in (0, 1, 3): self.conv_h_issue()
        if order == 0: self.weights_to_mall()
        self.stamp("issued"); self.dstamp(1) if d2 else None
        for r in range(4): self.v_mov_b32(v(vZERO + r), 0)
        self.v_and_b32(v(vPL), 31, v(vLANE)); self.v_lshlrev_b32(v(vPL), 7, v(vPL))
        self.s_lshl_b32(s(sT), s(sS), 7); self.v_mov_b32(v(vSO), s(sT))
        self.v_mov_b32(v(4), L_CNT); self.ds_write_b32(v(4), v(vZERO))
        self.w_addr()
        self.wait(vm={0: 1 + 8 + 5, 1: 1 + 8, 2: 1, 3: 1 + 8}[order])
        self.v_readfirstlane_b32(s(sTOK), v(87))
        self.s_add_u32(s(sTOK), s(sTOK), hex(NONCE_C))
        lab = self.newlabel("xp")
        self.s_cmp_lg_u32(s(sW), 0); self.s_cbranch_scc1(lab)
        self.s_lshl_b32(s(sT), s(sG), 5); self.s_add_u32(s(sT), s(sT), s(sS)); self.s_lshl_b32(s(sT), s(sT), 7); self.s_add_u32(s(sT), s(sT), hex(OFF_XCC))
        self.s_add_u32(s(sT + 1), s(sTOK), s(sXCC)); self.s_add_u32(s(sT + 1), s(sT + 1), 64)
        self.v_mov_b32(v(4), s(sT)); self.v_mov_b32(v(5), s(sT + 1))
        self.setexec(1); self.global_store_dword(v(4), v(5), s(sWS, 2), mods="sc1"); self.setexec(-1)
        self.label(lab)
        self.stamp("z0st"); self.dstamp(2) if d2 else None
        self.c0_taps()
        if order == 2: self.conv_h_issue()
        def wsrd(p):
            self.s_mov_b32(s(sSRD), s(p)); self.s_mov_b32(s(sSRD + 1), s(p + 1))
            self.s_mov_b32(s(sSRD + 2), 640 * 1920 * 2); self.s_mov_b32(s(sSRD + 3), "0x00020000")
        if self.gen:
            wsrd(sWQ)
            self.c0_all([(lambda i=i: self.w_one(i)) for i in range(0, N0)])
            NE = N1
        else:
            self.c0_all([])
        self.s_mov_b64(s(self.sWQ2, 2), s(sWQ, 2))
        self.stamp("c0"); self.dstamp(3) if d2 else None
        if order in (1, 2): self.weights_to_mall()
        self.w_issue(N0 if self.gen else 0, NE)
        self.wait(vm=NE - (N0 if self.gen else 0) + (5 if order in (1, 2) else 0)); self.s_barrier()
        lab = self.newlabel("f0")
        self.s_cmp_lg_u32(s(sW), 0); self.s_cbranch_scc1(lab)
        self.s_add_u32(s(sT + 2), s(sTOK), 7); self.v_mov_b32(v(5), s(sT + 2))
        self.rflag_base(sT)
        self.setexec(1)
        self.global_store_dword(v(vSO), v(5), s(sT, 2))
        self.setexec(-1)
        self.label(lab)
        self.stamp("flags"); self.dstamp(4 if d2 else 1)
        self.layer_bases2()
        NM = N2 if self.gen else self.o.get("nm", 12)
        NL = N3 if self.gen else 16
        sub = K4(stamps=False, opts=self.o); sub.uid = self.uid + 200000; sub.cold = []; sub.cold2 = []
        sub.conv_fill_h()
        sub.w_zero()
        sub.s_lshl_b32(s(sT + 4), s(sW), 2); sub.lanemask(sM0, s(sT + 4), 4)
        sub.s_sub_u32(s(sT + 4), 28, s(sT + 4)); sub.lanemask(sMZ, s(sT + 4), 4); sub.s_or_b64(s(sMZ, 2), s(sMZ, 2), s(sM0, 2))
        sub.s_lshr_b32(s(sT + 4), s(sS), 3); sub.s_lshl_b32(s(sT + 4), s(sT + 4), 3); sub.lanemask(sMA, s(sT + 4), 8)
        sub.conv_addrs(); sub.wo_addr()
        self.uid = sub.uid
        self.splice_w(sub.items, range(NE, NM))
        self.s_mov_b32(s(sMO), -1); self.s_mov_b32(s(sMO + 1), 0)
        self.stamp("hfill"); self.dstamp(5) if d2 else None
        self.first_flags4()
        self.stamp("ff"); self.dstamp(6) if d2 else None
        self.conv_r_issue()
        self.z_addr(8)
        self.p0_ln()
        self.stores(self.z_store_list(56, sZB, 8))
        if NM < NL:
            wsrd(self.sWQ2)
            for i_ in range(NM, NL): self.w_one(i_)
        self.code_prefetch(86)
        extra = 0
        if not self.o.get("noflagpt"):
            self.v_min_u32(v(4), 5, v(vLANE)); self.v_lshlrev_b32(v(4), 15, v(4))
            self.s_lshl_b32(s(sT), s(sG), 12); self.s_lshl_b32(s(sT + 1), s(sS), 7); self.s_add_u32(s(sT), s(sT), s(sT + 1)); self.s_add_u32(s(sT), s(sT), hex(OFF_FL2))
            self.v_add_u32(v(4), s(sT), v(4))
            self.global_load_dword(v(84), v(4), s(sWS, 2)); extra += 1
        if self.o.get("ptearly"):
            self.pretouch_addr(4); self.global_load_dword(v(85), v(4), s(sWS, 2), mods="nt" if self.o.get("ptnt") else ""); extra += 1
        self.w_lds(0, NM)
        self.conv_fill_r(3 + 1 + extra + NL - NM)
        self.wait(vm=1 + extra)
        if NM < NL: self.w_lds(NM, NL)
        self.wait(lg=0); self.s_barrier()
        self.v_mov_b32(v(4), s(sEXP))
        self.flag_store(sFZ, 4)
        self.stamp("rfill"); self.dstamp(7) if d2 else None
        sub = K4(stamps=False, opts=self.o); sub.uid = self.uid + 100000; sub.cold = []; sub.cold2 = []
        if self.o.get("womid"): sub.wo_addr()
        sub.epi_prep_nolds(); sub.qkv_addr(); sub.mask_gen(False)
        sub.conv_tails_addr()
        self.uid = sub.uid
        self.NL = NL
        self.conv_mains(sub.items)
        self.stamp("mains"); self.dstamp(8) if self.o.get("d2") else None
        assert not self.gen and not self.o.get("wolate")
        ok = self.newlabel("zok")
        self.wait(vm=0 if self.o.get("womid") else 16)
        self.v_cmp_ne_u32("vcc", s(sEXP), v(79)); self.s_and_b64("vcc", "vcc", s(sMZ, 2)); self.s_cbranch_scc0(ok)
        self.poll2(sFZ, vPL, sEXP, sMZ)
        self.label(ok)
        self.qkv_zissue()
        self.w_lds2(16, 32)
        self.conv_tails()
        self.stamp("tails"); self.dstamp(9) if self.o.get("d2") else None
        self.v_xor_b32(v(4), 48, v(self.vSA)); self.ds_write_b64(v(4), v(88, 2))
        self.wait(lg=0); self.s_barrier()
        self.stamp("wlds"); self.dstamp(10 if self.o.get("d2") else 2); self._d2ok = False
        self.qkv_init()
        self.s_branch("L_QKV")

    def finish(self):
        self.add_nt()
        self.label("L_END")
        self.s_endpgm()
        self.emit_cold2()
        self.label("L_HOTEND")
        self.emit_slow_r()
        self.emit_cold()
        self.emit_fallbacks()
        self.s_endpgm()

    def build(self):
        self.fallbacks = []
        self.startup()
        self.label("L_LAYER")
        self.layer_bases2()
        self.epi_prep(); self.mask_gen(False)
        self.qkv_addr(); self.qkv_init()
        self.poll2(sFZ, vPL, sEXP, sMZ)
        if self.o.get("l1wt"): self.s_mov_b32(s(sMODE), 1)
        self.stamp("zwait")
        self.qkv_zissue()
        self.label("L_QKV")
        self.qkv_run()
        self.stamp("qkv"); self.dstamp(3, True)
        if self.o.get("diag_sleep"): self.s_sleep(self.o["diag_sleep"])
        self.epi_run()
        self.stamp("epi")
        lab = self.newlabel("aux0")
        self.s_cmp_lg_u32(s(sL), 0); self.s_cbranch_scc1(lab)
        self.y_flag()
        self.label(lab)
        self.attn_local()
        self.stamp("local"); self.dstamp(4, True)
        self.o_prep()
        l1path, joined = self.newlabel("l1p"), self.newlabel("joined")
        self.s_cmp_lg_u32(s(sL), 0); self.s_cbranch_scc1(l1path)
        if self.o.get("wolate"):
            self.y_flags_issue()
            nh = self.newlabel("nh")
            self.s_cmp_eq_u32(s(sG), 0); self.s_cbranch_scc1(nh)
            self.halo_prep()
            self.halo_issue()
            self.label(nh)
            self.wait(vm=0)
            self.y_flags_check()
            nh = self.newlabel("nh")
            self.s_cmp_eq_u32(s(sG), 0); self.s_cbranch_scc1(nh)
            self.halo_land(0)
            self.label(nh)
            self.wait(lg=0); self.s_barrier()
            self.y_issue()
            nh = self.newlabel("nh")
            self.s_cmp_lg_u32(s(sG), 0); self.s_cbranch_scc1(nh)
            self.wo_range(8, 32)
            self.label(nh)
        else:
            wo1, wo2 = self.wo_stage_split()
            self.s_barrier()
            self.items += wo1
            nh = self.newlabel("nh")
            self.s_cmp_eq_u32(s(sG), 0); self.s_cbranch_scc1(nh)
            self.halo_prep()
            self.halo_issue()
            self.label(nh)
            self.y_flags_issue()
            self.items += wo2
            self.stamp("wo"); self.dstamp(5)
            self.wait(vm=0)
            self.y_flags_check()
            nh = self.newlabel("nh")
            self.s_cmp_eq_u32(s(sG), 0); self.s_cbranch_scc1(nh)
            self.halo_land(0)
            self.label(nh)
            self.wait(lg=0); self.s_barrier()
            self.y_issue()
        self.s_branch(joined)
        self.label(l1path)
        self.s_cmp_eq_u32(s(sG), 0); self.s_cbranch_scc1(joined)
        self.halo_prep()
        self.halo_issue()
        self.halo_land(0)
        self.wait(lg=0); self.s_barrier()
        self.label(joined)
        self.stamp("halof")
        nohalo = self.newlabel("nohalo")
        self.s_cmp_eq_u32(s(sG), 0); self.s_cbranch_scc1(nohalo)
        self.attn_halo()
        self.label(nohalo)
        self.stamp("halo"); self.dstamp(6, True)
        self.range_check()
        self.o_store()
        self.s_add_u32(s(sT), s(sEXP), 1); self.v_mov_b32(v(5), s(sT))
        self.signal2(sFO, 5)
        self.stamp("osig")
        lab = self.newlabel("aux2")
        self.s_cmp_lg_u32(s(sL), 0); self.s_cbranch_scc1(lab)
        self.y_finish()
        if self.o.get("wolate"):
            wo1, wo2 = self.wo_stage_split()
            self.s_barrier()
            self.items += wo1; self.items += wo2
        self.stamp("yld")
        self.label(lab)
        self.op_prep()
        self.s_add_u32(s(sT + 8), s(sEXP), 1)
        self.poll2(sFO, vPL, sT + 8, sMO)
        self.stamp("owait")
        self.op_run()
        self.s_add_u32(s(sT), s(sEXP), 2); self.v_mov_b32(v(5), s(sT))
        self.signal2(sFA, 5)
        self.stamp("asig"); self.dstamp(7, True)
        if self.o.get("wb"):
            lab = self.newlabel("wb")
            self.s_cmp_eq_u32(s(sL), 0); self.s_cbranch_scc1(lab)
            self.s_cmp_lg_u32(s(sS), 0); self.s_cbranch_scc1(lab)
            self.s_cmp_lg_u32(s(sW), 3); self.s_cbranch_scc1(lab)
            self.I("buffer_wbl2", mods="sc1")
            self.label(lab)
        self.p4_prep()
        self.s_add_u32(s(sT + 8), s(sEXP), 2)
        self.poll2(sFA, vPL, sT + 8, sMA)
        self.stamp("await")
        self.p4_run()
        self.s_cmp_lg_u32(s(sL), 0); self.s_cbranch_scc1("L_FINAL")
        self.p4_z()
        self.stores(self.z_store_list(56, sZN, 8))
        self.pack(vX, self.XF, 12)
        self.s_add_u32(s(sT), s(sEXP), 3); self.v_mov_b32(v(5), s(sT))
        self.signal2(sFN, 5)
        self.stamp("p4")
        self.s_mov_b32(s(sL), 1)
        self.s_branch("L_LAYER")
        self.label("L_FINAL")
        self.pack(vX, self.XF, 12)
        self.out_store()
        if self.o.get("span"):
            self.wait(vm=0); self.stamps = True
        self.stamp("end")
        self.dflush()
        return self.finish()

if __name__ == "__main__":
    import argparse
    ap = argparse.ArgumentParser()
    ap.add_argument("-o", default="k4.s"); ap.add_argument("--stamps", action="store_true")
    ap.add_argument("--slow", action="store_true"); ap.add_argument("-v", action="store_true"); ap.add_argument("--opt", default="")
    a_ = ap.parse_args()
    k = K4(stamps=a_.stamps, opts=dict({"force_slow": a_.slow}, **{x.split("=")[0]: (int(x.split("=")[1]) if "=" in x else 1) for x in a_.opt.split(",") if x}))
    k.build()
    ins = k.fix_all(verbose=a_.v)
    open(a_.o, "w").write(render_file(k))
    n = sum(1 for it in k.items if isinstance(it, Ins))
    print("instructions:", n, "nops inserted:", len(ins), "stamps:", ",".join(k.stamp_names))
```
